```python
import torch

def _softmax(x, axis=-1):
    return torch.softmax(x, dim=axis)
def _gelu(x):
    return torch.nn.functional.gelu(x, approximate="tanh")
def _silu(x):
    return torch.nn.functional.silu(x)
def _sigmoid(x):
    return torch.sigmoid(x)
def _layernorm(x, axis=-1, eps=1e-5):
    m = x.mean(dim=axis, keepdim=True)
    v = x.var(dim=axis, keepdim=True, unbiased=False)
    return (x - m) / torch.sqrt(v + eps)
def _scatter_add(tgt, idx, src, axis=0):
    return tgt.clone().index_add_(axis, idx, src)
def _segment_sum(src, seg, n):
    out = torch.zeros((n,) + src.shape[1:], dtype=src.dtype)
    return out.index_add_(0, seg, src)
def _pad(x, pw):
    flat = tuple(v for pair in reversed(pw) for v in pair)
    return torch.nn.functional.pad(x, flat)

kernel_name = 'gated_mix__sliding_block_cached__glu_gated_reglu__decode'

def setup_inputs():

    _w = (lambda a: (lambda t: t.to(torch.bfloat16) if t.is_floating_point() else t)(torch.as_tensor(a)))
    def _A_setup():
        B, Sq, D = 1, 1, 576
        Hq, Hkv, Sk, Dh = 32, 16, 65536, 128
        assert Hq % Hkv == 0, (Hq, Hkv)
        return {
            "x": _w((lambda *s: torch.randn(*s, dtype=torch.bfloat16) * 0.05)(B, Sq, D)),
            "k_cache": _w((lambda *s: torch.randn(*s, dtype=torch.bfloat16) * 3.2)(B, Hkv, Sk, Dh)),
            "v_cache": _w((lambda *s: torch.randn(*s, dtype=torch.bfloat16) * 0.05)(B, Hkv, Sk, Dh)),
            "wq": _w((lambda *s: torch.randn(*s, dtype=torch.bfloat16) * 3.2)(D, Hq * Dh) * (D ** -0.5)),
            "wo": _w((lambda *s: torch.randn(*s, dtype=torch.bfloat16) * 0.05)(Hq * Dh, D) * ((Hq * Dh) ** -0.5)),
        }
    _A_in = _A_setup()

    def _B_setup():
        B, S, D, F = 1, 1, 576, 4608
        return {
            "x": _w((lambda *s: torch.randn(*s, dtype=torch.bfloat16) * 0.05)(B, S, D)),
            "W_gate": _w((lambda *s: torch.randn(*s, dtype=torch.bfloat16) * 0.2)(D, F) * (2.0 / D) ** 0.5),
            "W_up": _w((lambda *s: torch.randn(*s, dtype=torch.bfloat16) * 0.2)(D, F) * (2.0 / D) ** 0.5),
            "W_down": _w((lambda *s: torch.randn(*s, dtype=torch.bfloat16) * 0.2)(F, D) * (1.0 / F) ** 0.5),
        }
    _B_in = _B_setup()

    return {
        "A_x": _A_in["x"],
        "A_k_cache": _A_in["k_cache"],
        "A_v_cache": _A_in["v_cache"],
        "A_wq": _A_in["wq"],
        "A_wo": _A_in["wo"],
        "B_x": _B_in["x"],
        "B_W_gate": _B_in["W_gate"],
        "B_W_up": _B_in["W_up"],
        "B_W_down": _B_in["W_down"],
        "gate_w": _w((lambda *s: torch.randn(*s, dtype=torch.bfloat16) * 0.05)(576) * 16.0),
    }

def reference(A_x, A_k_cache, A_v_cache, A_wq, A_wo, B_x, B_W_gate, B_W_up, B_W_down, gate_w):
    def _A_ref(x, k_cache, v_cache, wq, wo):
        B, Sq, D = x.shape
        Hq, Dh = 32, 128
        Hkv, Sk = k_cache.shape[1], k_cache.shape[2]
        W = min(4096, max(256, Sk // 4))
        rep = Hq // Hkv
        q = (lambda x, *d: x.permute(*d))((x @ wq).reshape(B, Sq, Hq, Dh), 0, 2, 1, 3)
        k = (lambda x, n, axis: torch.repeat_interleave(x, n, dim=axis))(k_cache[:, :, Sk - W:, :], rep, axis=1)
        v = (lambda x, n, axis: torch.repeat_interleave(x, n, dim=axis))(v_cache[:, :, Sk - W:, :], rep, axis=1)
        scores = torch.einsum("bhqd,bhkd->bhqk", q, k) * (Dh ** -0.5)
        p = _softmax(scores, axis=-1)
        o = torch.einsum("bhqk,bhkd->bhqd", p, v)
        return (lambda x, *d: x.permute(*d))(o, 0, 2, 1, 3).reshape(B, Sq, Hq * Dh) @ wo

    def _B_ref(x, W_gate, W_up, W_down):
        gate = torch.einsum("bsd,df->bsf", x, W_gate)
        up = torch.einsum("bsd,df->bsf", x, W_up)
        gate = gate * (lambda x, dt: x.to(dt))(gate > 0, gate.dtype)
        h = gate * up
        return torch.einsum("bsf,fd->bsd", h, W_down)

    x = A_x
    g = _sigmoid((x * gate_w).sum(-1, keepdims=True))
    a = _A_ref(x, A_k_cache, A_v_cache, A_wq, A_wo)
    b = _B_ref(x, B_W_gate, B_W_up, B_W_down)
    return g * a + (1 - g) * b
```

```python
import re

def regs(tok):
    tok = tok.strip()
    neg = tok.lstrip('-')
    m = re.fullmatch(r'(?:abs\()?\|?([vsa])(\d+)\|?\)?', neg)
    if m: return {(m.group(1), int(m.group(2)))}
    m = re.fullmatch(r'([vsa])\[(\d+):(\d+)\]', neg)
    if m: return {(m.group(1), i) for i in range(int(m.group(2)), int(m.group(3)) + 1)}
    if neg == 'vcc': return {('s', 'vcc')}
    if neg == 'exec': return {('s', 'exec')}
    return set()

TRANS = ('v_exp_f32', 'v_log_f32', 'v_rcp_f32', 'v_rsq_f32', 'v_sqrt_f32', 'v_sin_f32', 'v_cos_f32')

def parse(line):
    s = line.split(';')[0].strip()
    if not s or s.endswith(':') or s.startswith('.'):
        return None
    parts = s.split(None, 1)
    op = parts[0]
    ops = []
    mods = ''
    if len(parts) > 1:
        depth = 0; cur = ''
        for ch in parts[1]:
            if ch == '[': depth += 1
            if ch == ']': depth -= 1
            if ch == ',' and depth == 0:
                ops.append(cur); cur = ''
            else: cur += ch
        ops.append(cur)
        last = ops[-1].strip().split(None, 1)
        ops[-1] = last[0] if last else ''
        mods = last[1] if len(last) > 1 else ''
    return op, [o.strip() for o in ops], mods

def classify(op, ops, mods):
    d = dict(kind='other', w=set(), r=set(), dpp=set(), srcc=set(), passes=0)
    R = [regs(o) for o in ops]
    allr = set().union(*R) if R else set()
    if op.startswith('v_mfma'):
        d['kind'] = 'mfma'; d['w'] = R[0]; d['r'] = R[1] | R[2] | R[3]; d['srcc'] = R[3]; d['ab'] = R[1] | R[2]
        d['passes'] = 2 if '4x4x4' in op else (4 if '16x16' in op else 8)
    elif op.startswith('v_cmp'):
        d['kind'] = 'valu'; d['w'] = R[0]; d['r'] = set().union(*R[1:])
    elif op.startswith('v_readfirstlane') or op.startswith('v_readlane'):
        d['kind'] = 'readlane'; d['w'] = R[0]; d['r'] = set().union(*R[1:])
    elif op.startswith('v_permlane'):
        d['kind'] = 'permlane'; d['w'] = allr; d['r'] = allr
    elif op.startswith('v_'):
        d['kind'] = 'trans' if op.replace('_e32','').replace('_e64','') in TRANS else 'valu'
        d['w'] = R[0]; d['r'] = set().union(*R[1:]) if len(R) > 1 else set()
        if op.startswith('v_fmac') or op.startswith('v_pk_fmac') or op.startswith('v_dot2c'): d['r'] |= R[0]
        if '_co_' in op: d['w'] |= R[1]
        if op.startswith('v_cndmask') and len(ops) == 3: d['r'] |= {('s', 'vcc')}
        if '_dpp' in op or 'quad_perm' in mods or 'row_' in mods:
            d['dpp'] = R[1]; d['r'] |= R[0]
    elif op.startswith('buffer_load') or op.startswith('global_load'):
        d['kind'] = 'vmem'; d['w'] = R[0] if 'lds' not in mods.split() and 'lds' not in op else set(); d['r'] = set().union(*R[1:]) if d['w'] else allr
    elif op.startswith('buffer_store') or op.startswith('global_store') or op.startswith('buffer_atomic') or op.startswith('global_atomic'):
        d['kind'] = 'vmem'; d['r'] = allr; d['store'] = True
        d['wide'] = ('x4' in op or 'x3' in op)
        d['sdata'] = R[0] if op.startswith('buffer') else R[1]
    elif op.startswith('ds_read') or op.startswith('ds_bpermute') or op.startswith('ds_swizzle'):
        d['kind'] = 'ds'; d['w'] = R[0]; d['r'] = set().union(*R[1:])
    elif op.startswith('ds_'):
        d['kind'] = 'ds'; d['r'] = allr
    elif op.startswith('s_nop'):
        d['kind'] = 'nop'; d['n'] = int(ops[0], 0) + 1
    elif op.startswith('s_'):
        d['kind'] = 'salu'
        if op.startswith('s_cmp') or op.startswith('s_cbranch') or op in ('s_waitcnt', 's_barrier', 's_branch', 's_endpgm', 's_sleep', 's_setprio'):
            d['r'] = allr
            if 'vcc' in op: d['r'] |= {('s', 'vcc')}
        else:
            d['w'] = R[0] if R else set(); d['r'] = set().union(*R[1:]) if len(R) > 1 else set()
    return d

def need(prod, cons):
    n = 0
    pk, ck = prod['kind'], cons['kind']
    pw = prod['w']
    vw = {x for x in pw if x[0] in 'va'}
    sw = {x for x in pw if x[0] == 's'}
    isvalu = pk in ('valu', 'trans', 'permlane', 'readlane')
    if isvalu:
        if ck == 'mfma' and vw & cons['r']: n = max(n, 2)
        if cons['dpp'] & vw: n = max(n, 2)
        if ck == 'permlane' and vw & cons['r']: n = max(n, 2)
        if ck == 'readlane' and vw & cons['r']: n = max(n, 1)
        if pk == 'trans' and ck in ('valu', 'permlane', 'readlane', 'trans', 'vmem', 'ds') and vw & cons['r']: n = max(n, 1)
        if sw:
            if ck in ('valu', 'trans', 'mfma') and sw & cons['r']: n = max(n, 2)
            if ck == 'readlane' and sw & cons['r']: n = max(n, 4)
            if ck == 'vmem' and sw & cons['r']: n = max(n, 5)
            if ck == 'salu' and sw & cons['r']: n = max(n, 1)
    if pk == 'mfma':
        p = prod['passes']
        full = {2: 5, 4: 8, 8: 12}[p]
        if ck == 'mfma':
            if vw & cons['ab']: n = max(n, full)
            if vw & cons['srcc']:
                if cons['srcc'] == vw and cons['passes'] == p: n = max(n, 2 if p == 2 else 0)
                else: n = max(n, {2: 4, 4: 6, 8: 10}[p])
            elif vw & cons['w']:
                n = max(n, full)
        elif ck in ('valu', 'trans', 'permlane', 'readlane', 'vmem', 'ds'):
            if vw & (cons['r'] | cons['w']): n = max(n, full)
        if ck in ('valu', 'trans', 'permlane') and prod['srcc'] & cons['w']:
            n = max(n, {2: 1, 4: 3, 8: 7}[p])
    if pk == 'vmem' and prod.get('store') and prod.get('wide'):
        if prod['sdata'] & cons['w']: n = max(n, 2)
    return n

def fix(lines):
    out = []
    hist = []
    snap = {}
    for line in lines:
        p = parse(line)
        if p is None:
            t = line.split(';')[0].strip()
            if t.endswith(':') and t[:-1] in snap:
                hist = hist + snap.pop(t[:-1])
            out.append(line); continue
        d = classify(*p)
        req = 0
        for (h, dist) in hist:
            r = need(h, d) - dist
            if r > req: req = r
        if req > 0:
            out.append(f"    s_nop {req-1}")
            hist = [(h, dist + req) for (h, dist) in hist]
        out.append(line)
        step = d['n'] if d['kind'] == 'nop' else 1
        hist = [(h, dist + step) for (h, dist) in hist if dist + step < 14]
        if d['kind'] != 'nop': hist.append((d, 0))
        if p[0].startswith('s_cbranch') or p[0] == 's_branch':
            snap.setdefault(p[1][0], []).extend(hist)
            if p[0] == 's_branch': hist = []
    return out
```

```python
import sys, struct
from hazard import fix
KN = "gated_mix__sliding_block_cached__glu_gated_reglu__decode"
STAMP_OFF = 0x30000000

def f2u(x): return struct.unpack("<I", struct.pack("<f", x))[0]

class Gen:
    def __init__(self, **opt):
        self.o = dict(W=10, stamps=False, wsoff=0, qpoll_after=8, hpoll_after=3, R=36, round_scores=True,
                      prefetch=0, jitter=0, lds=90112, nt="nt", spin=20000)
        self.o.update(opt)
        self.l = []
        self.vm = []
        self.nl = 0
        self.nst = 0
    def a(self, s):
        for x in s.strip().split("\n"):
            x = x.strip()
            if not x: continue
            self.l.append(x if x.endswith(":") else "    " + x)
    def lab(self, p):
        self.nl += 1
        return f"L_{p}{self.nl}"
    def issue(self, label, s):
        self.a(s); self.vm.append(label)
    def wait(self, label):
        n = len(self.vm) - 1 - self.vm.index(label)
        assert n <= 63
        self.a(f"s_waitcnt vmcnt({n})")
    def stamp(self):
        if self.o["stamps"]:
            assert self.nst < 8
            r = 16 + 2 * self.nst
            self.a(f"s_memrealtime s[{r}:{r+1}]")
            self.nst += 1

    def build(self):
        o = self.o; a = self.a; nt = o["nt"]; W = o["W"]
        assert W <= 16
        QB, GB, OB, FB = 0x1000, 0x20000, 0xB0000, 0x100000
        R = o["R"]; CG = 144 // R
        LQ, LG, QL, MX, LS, GS, HP, HL, OL, OW, LF, RD = 0, 2048, 11264, 15360, 15488, 15616, 15744, 16512, 16576, 16640, 20736, 29952
        vL = 1; vM = [2, 3, 4, 5]; vSel = [6, 7, 8, 9]
        vQa, vQb, vGU, vK, vV, vP3, vP3b, vTM = 10, 11, 12, 13, 14, 15, 16, 17
        vXQ, vXQb, vXG, vGX, vGW = 18, 20, 22, 28, 30
        vS = 32; vBq = 48; vAcc = 52; vAD = 56; vAO = 64; vT = 72; vPoll = 92
        R1 = 100; R2 = 168; vU = 232
        vRS, vCH, vG, vOMG, vJ = 21, 96, 97, 98, 99
        dst = {}
        for i in range(5): dst[f"Q{i}"] = R1 + 4 * i
        for i in range(12): dst[f"G{i}"] = R1 + 20 + 4 * i
        for i in range(16): dst[f"K{i}"] = R2 + 4 * i; dst[f"V{i}"] = R1 + 4 * i
        for i in range(6): dst[f"D{i}"] = R2 + 4 * i; dst[f"O{i}"] = R2 + 24 + 4 * i
        big = [f"Q{i}" for i in range(5)] + [f"G{i}" for i in range(12)] + [f"K{i}" for i in range(16)] + \
              [f"V{i}" for i in range(16)] + [f"D{i}" for i in range(6)] + [f"O{i}" for i in range(6)]
        sTAG = 62; sJ = 3; sXCD, sG, sS = 8, 9, 10; sLIN = 12
        sKV = 13; sGU = 14; sC = 15
        SQ, SGU, SK, SV, SD, SO, SX, SGW, SW = 64, 68, 72, 76, 80, 84, 88, 92, 96
        def r4(v): return f"v[{v}:{v+3}]"
        def r2(v): return f"v[{v}:{v+1}]"
        self.ip = 0
        def issue_next():
            lb = big[self.ip]; self.ip += 1
            d = r4(dst[lb]); k = int(lb[1:]); c = lb[0]
            if c == "Q":
                if k == 0: self.issue(lb, f"buffer_load_dwordx4 {d}, v{vQa}, s[{SQ}:{SQ+3}], 0 offen {nt}")
                elif k < 4: self.issue(lb, f"buffer_load_dwordx4 {d}, v{vQa}, s[{SQ}:{SQ+3}], s{32+k} offen {nt}")
                else: self.issue(lb, f"buffer_load_dwordx4 {d}, v{vQb}, s[{SQ}:{SQ+3}], 0 offen {nt}")
            elif c == "G":
                if k == 0: a(f"s_mov_b32 s{sGU}, 0")
                else: a(f"s_addk_i32 s{sGU}, 9216")
                self.issue(lb, f"buffer_load_dwordx4 {d}, v{vGU}, s[{SGU}:{SGU+3}], s{sGU} offen {nt}")
            elif c in "KV":
                if k == 0: a(f"s_mov_b32 s{sKV}, 0")
                else: a(f"s_addk_i32 s{sKV}, 4096")
                sr, vo = (SK, vK) if c == "K" else (SV, vV)
                self.issue(lb, f"buffer_load_dwordx4 {d}, v{vo}, s[{sr}:{sr+3}], s{sKV} offen {nt}")
                if c == "K" and k == o["qpoll_after"]:
                    self.issue("QP", f"buffer_load_dwordx4 {r4(vPoll)}, v{vQa}, s[{SW}:{SW+3}], 0 offen sc1")
                if c == "V" and k == o["hpoll_after"]:
                    self.issue("HPL", f"buffer_load_dwordx4 {r4(vAO)}, v{vQb}, s[{SW}:{SW+3}], 0 offen sc1")
            else:
                sr = SD if c == "D" else SO
                vo, im = (vP3, k * 1152) if k < 4 else (vP3b, (k - 4) * 1152)
                self.issue(lb, f"buffer_load_dwordx4 {d}, v{vo}, s[{sr}:{sr+3}], 0 offen offset:{im} {nt}")
        def fill(upto_label, extra=0):
            idx = big.index(upto_label)
            while self.ip < len(big) and self.ip <= idx + W + extra:
                issue_next()
        def tagins(v):
            for i in range(4): a(f"v_and_or_b32 v{v+i}, v{v+i}, v{vTM}, s{sTAG}")
        def tagchk(vs, acc, first=True):
            for v in vs:
                for i in range(4):
                    if first: a(f"v_xor_b32 v{acc}, s{sTAG}, v{v+i}"); first = False
                    else: a(f"v_bitop3_b32 v{acc}, v{v+i}, s{sTAG}, v{acc} bitop3:0xbe")
            a(f"v_and_b32 v{acc}, 0xff, v{acc}")
        def retry_loop(name, loads, vs, acc, lanemask=None):
            Lok = self.lab(name + "ok"); Lre = self.lab(name + "re")
            def chk():
                tagchk(vs, acc)
                a(f"v_cmp_ne_u32 vcc, 0, v{acc}")
                if lanemask is not None:
                    a(f"s_and_b64 vcc, vcc, s[{lanemask}:{lanemask+1}]")
            chk()
            a(f"s_cbranch_vccz {Lok}")
            a(f"s_mov_b32 s7, {o['spin']}")
            a(f"{Lre}:")
            for ld in loads: a(ld)
            a("s_waitcnt vmcnt(0)")
            chk()
            a(f"s_cbranch_vccz {Lok}")
            a("s_sub_u32 s7, s7, 1")
            a("s_cmp_lg_u32 s7, 0")
            a(f"s_cbranch_scc1 {Lre}")
            a(f"{Lok}:")

        self.stamp()
        JIT = ""
        if o["jitter"]:
            JIT = f"""s_mul_i32 s4, s2, 0x9e3779b1
            s_lshr_b32 s4, s4, {32-o["jitter"]}
            L_jit:
            s_cmp_eq_u32 s4, 0
            s_cbranch_scc1 L_jitd
            s_sleep 40
            s_sub_u32 s4, s4, 1
            s_branch L_jit
            L_jitd:"""
        a(f"""
        s_cmp_ge_u32 s2, 0x100
        s_cbranch_scc1 L_end
        {JIT}
        s_load_dwordx16 s[36:51], s[0:1], 0
        s_load_dwordx8 s[52:59], s[0:1], 64
        s_load_dwordx2 s[60:61], s[0:1], 96
        s_and_b32 s{sXCD}, s2, 7
        s_bfe_u32 s{sG}, s2, 0x10003
        s_lshl1_add_u32 s{sG}, s{sXCD}, s{sG}
        s_lshr_b32 s{sS}, s2, 4
        s_lshr_b32 s11, s2, 6
        s_mul_i32 s4, s11, {144*8192}
        s_lshl_b32 s5, s{sG}, 9
        s_add_u32 s4, s4, s5
        s_and_b32 s5, s{sS}, 3
        s_lshl_b32 s5, s5, 7
        s_add_u32 s4, s4, s5
        v_lshrrev_b32 v{vT}, 3, v0
        v_and_b32 v{vT+1}, 7, v0
        v_lshlrev_b32 v{vT+1}, 4, v{vT+1}
        v_lshl_add_u32 v{vQa}, v{vT}, 15, v{vT+1}
        v_lshl_add_u32 v{vQb}, v{vT}, 13, v{vT+1}
        v_add_u32 v{vQb}, {128*8192}, v{vQb}
        s_mov_b32 s{SQ+2}, {143*8192+128}
        s_mov_b32 s{SQ+3}, 0x20000
        s_movk_i32 s33, 0x2000
        s_movk_i32 s34, 0x4000
        s_movk_i32 s35, 0x6000
        s_waitcnt lgkmcnt(0)
        s_add_u32 s{SQ}, s42, s4
        s_addc_u32 s{SQ+1}, s43, 0
        """)
        for i in range(5): issue_next()
        a(f"""
        s_add_u32 s60, s60, {o['wsoff']:#x}
        s_addc_u32 s61, s61, 0
        s_load_dword s{sTAG}, s[60:61], 0
        s_mov_b32 s{SX}, s36
        s_mov_b32 s{SX+1}, s37
        s_movk_i32 s{SX+2}, 1152
        s_mov_b32 s{SX+3}, 0x20000
        s_mul_i32 s5, s11, 288
        v_lshl_add_u32 v{vT+2}, v{vT}, 3, s5
        v_lshl_add_u32 v{vT+3}, v{vT}, 1, s5
        """)
        self.issue("XQa", f"buffer_load_dwordx2 {r2(vXQ)}, v{vT+2}, s[{SX}:{SX+3}], 0 offen")
        self.issue("XQb", f"buffer_load_ushort v{vXQb}, v{vT+3}, s[{SX}:{SX+3}], 0 offen offset:256")
        a(f"""
        s_bitcmp1_b32 s2, 3
        s_cselect_b32 s{SGU}, s50, s48
        s_cselect_b32 s{SGU+1}, s51, s49
        s_mul_i32 s4, s{sS}, {36*9216}
        s_mul_i32 s5, s{sXCD}, 1152
        s_add_u32 s4, s4, s5
        s_add_u32 s{SGU}, s{SGU}, s4
        s_addc_u32 s{SGU+1}, s{SGU+1}, 0
        s_mov_b32 s{SGU+2}, {35*9216+1152}
        s_mov_b32 s{SGU+3}, 0x20000
        v_mul_u32_u24 v{vRS}, 911, v0
        v_lshrrev_b32 v{vRS}, 16, v{vRS}
        v_mul_u32_u24 v{vCH}, 72, v{vRS}
        v_sub_u32 v{vCH}, v0, v{vCH}
        v_mul_u32_u24 v{vGU}, {12*9216}, v{vRS}
        v_lshl_add_u32 v{vGU}, v{vCH}, 4, v{vGU}
        s_mul_i32 s5, s{sS}, 72
        v_mul_u32_u24 v{vT+2}, 24, v{vRS}
        v_add_u32 v{vT+2}, s5, v{vT+2}
        """)
        self.issue("XGa", f"buffer_load_dwordx4 {r4(vXG)}, v{vT+2}, s[{SX}:{SX+3}], 0 offen")
        self.issue("XGb", f"buffer_load_dwordx2 {r2(vXG+4)}, v{vT+2}, s[{SX}:{SX+3}], 0 offen offset:16")
        for i in range(4): issue_next()
        a(f"""
        s_mov_b32 s{SGW}, s54
        s_mov_b32 s{SGW+1}, s55
        s_movk_i32 s{SGW+2}, 1152
        s_mov_b32 s{SGW+3}, 0x20000
        v_lshlrev_b32 v{vT+2}, 3, v0
        """)
        self.issue("GX", f"buffer_load_dwordx2 {r2(vGX)}, v{vT+2}, s[{SX}:{SX+3}], 0 offen")
        self.issue("GW", f"buffer_load_dwordx2 {r2(vGW)}, v{vT+2}, s[{SGW}:{SGW+3}], 0 offen")
        if o["prefetch"]:
            a(f"""
            s_getpc_b64 s[4:5]
            v_lshlrev_b32 v{vT+2}, 4, v0
            """)
            for i in range(o["prefetch"]):
                if i: a(f"v_add_u32 v{vT+2}, 4096, v{vT+2}")
                self.issue(f"PF{i}", f"global_load_dwordx4 {r4(vU)}, v{vT+2}, s[4:5]")
        a(f"""
        s_lshl_b32 s4, s{sG}, 24
        s_lshl_b32 s5, s{sS}, 16
        s_add_u32 s4, s4, s5
        s_add_u32 s4, s4, {61440*256}
        s_add_u32 s{SK}, s38, s4
        s_addc_u32 s{SK+1}, s39, 0
        s_mov_b32 s{SK+2}, 0x10000
        s_mov_b32 s{SK+3}, 0x20000
        s_add_u32 s{SV}, s40, s4
        s_addc_u32 s{SV+1}, s41, 0
        s_mov_b32 s{SV+2}, 0x10000
        s_mov_b32 s{SV+3}, 0x20000
        s_lshr_b32 s4, s2, 3
        s_lshl_b32 s{sLIN}, s{sXCD}, 5
        s_add_u32 s{sLIN}, s{sLIN}, s4
        s_mul_i32 s4, s{sLIN}, {18*1152}
        s_add_u32 s{SD}, s52, s4
        s_addc_u32 s{SD+1}, s53, 0
        s_movk_i32 s{SD+2}, {18*1152}
        s_mov_b32 s{SD+3}, 0x20000
        s_lshl_b32 s4, s{sG}, 4
        s_add_u32 s4, s4, s{sS}
        s_mul_i32 s4, s4, {16*1152}
        s_add_u32 s{SO}, s44, s4
        s_addc_u32 s{SO+1}, s45, 0
        s_movk_i32 s{SO+2}, {16*1152}
        s_mov_b32 s{SO+3}, 0x20000
        s_mov_b32 s{SW}, s60
        s_mov_b32 s{SW+1}, s61
        s_mov_b32 s{SW+2}, 0x200000
        s_mov_b32 s{SW+3}, 0x20000
        v_and_b32 v{vL}, 63, v0
        v_lshrrev_b32 v{vJ}, 6, v0
        v_lshlrev_b32 v{vV}, 4, v0
        v_readfirstlane_b32 s{sJ}, v{vJ}
        v_and_b32 v{vT}, 3, v0
        v_lshlrev_b32 v{vT}, 4, v{vT}
        v_bfe_u32 v{vT+1}, v0, 2, 2
        v_lshl_add_u32 v{vT}, v{vT+1}, 8, v{vT}
        v_bfe_u32 v{vT+1}, v0, 4, 2
        v_lshl_add_u32 v{vT}, v{vT+1}, 6, v{vT}
        v_lshl_add_u32 v{vK}, v{vJ}, 10, v{vT}
        v_mul_u32_u24 v{vP3}, {6*1152}, v{vRS}
        v_lshl_add_u32 v{vP3}, v{vCH}, 4, v{vP3}
        v_add_u32 v{vP3b}, 4608, v{vP3}
        v_mov_b32 v{vTM}, 0xffffff00
        v_and_b32 v{vT}, 1, v0
        v_lshlrev_b32 v{vT}, 4, v{vT}
        v_mov_b32 v{vT+1}, 0xffff
        v_lshlrev_b32 v{vT}, v{vT}, v{vT+1}
        v_bfe_u32 v{vT+1}, v0, 1, 2
        v_cmp_eq_u32 s[4:5], 0, v{vT+1}
        v_cmp_eq_u32 s[6:7], 1, v{vT+1}
        v_cndmask_b32 v{vM[0]}, 0, v{vT}, s[4:5]
        v_cndmask_b32 v{vM[1]}, 0, v{vT}, s[6:7]
        v_cmp_eq_u32 s[4:5], 2, v{vT+1}
        v_cmp_eq_u32 s[6:7], 3, v{vT+1}
        v_cndmask_b32 v{vM[2]}, 0, v{vT}, s[4:5]
        v_cndmask_b32 v{vM[3]}, 0, v{vT}, s[6:7]
        v_or_b32 v{vT}, v{vM[0]}, v{vM[2]}
        v_or_b32 v{vT+1}, v{vM[1]}, v{vM[3]}
        v_mov_b32 v{vT+2}, 0x0c0c0c0c
        s_mov_b32 s32, 0x01000100
        s_mov_b32 s63, 0x03020302
        v_bfi_b32 v{vSel[0]}, v{vT}, s32, v{vT+2}
        v_bfi_b32 v{vSel[1]}, v{vT+1}, s32, v{vT+2}
        v_bfi_b32 v{vSel[2]}, v{vT}, s63, v{vT+2}
        v_bfi_b32 v{vSel[3]}, v{vT+1}, s63, v{vT+2}
        """)
        a(f"""
        v_lshlrev_b32 v{vT}, 2, v{vL}
        v_and_b32 v{vT}, 0x7c, v{vT}
        v_mov_b32 v{vT+1}, 0
        ds_write_b32 v{vT}, v{vT+1} offset:{HL}
        """)
        fill("Q0", -1)
        self.stamp()
        self.wait("XQb")
        for t in range(5):
            src = vXQ + (t >> 1) if t < 4 else vXQb
            sel = "s63" if (t < 4 and t & 1) else "s32"
            a(f"v_perm_b32 v{vU}, v{src}, v{src}, {sel}")
            for j in range(4): a(f"v_and_b32 v{vT+4*t+j}, v{vU}, v{vM[j]}")
        for t in range(5):
            c = "0" if t == 0 else r4(vAcc)
            a(f"v_mfma_f32_16x16x32_bf16 {r4(vAcc)}, {r4(dst[f'Q{t}'])}, {r4(vT+4*t)}, {c}")
        fill("Q4")
        a(f"""
        v_bfe_u32 v{vU}, v0, 3, 1
        v_bfe_u32 v{vU+1}, v0, 5, 1
        v_cmp_eq_u32 vcc, v{vU}, v{vU+1}
        v_lshrrev_b32 v{vU}, 5, v0
        v_lshlrev_b32 v{vU}, 8, v{vU}
        v_bfe_u32 v{vU+1}, v0, 4, 1
        v_lshl_add_u32 v{vU}, v{vU+1}, 7, v{vU}
        v_and_b32 v{vU+1}, 7, v0
        v_lshl_add_u32 v{vU}, v{vU+1}, 2, v{vU}
        v_mov_b32 v{vU+1}, {QL}
        v_cndmask_b32 v{vU}, v{vU+1}, v{vU}, vcc
        """)
        for i in range(4): a(f"ds_write_b32 v{vU}, v{vAcc+i} offset:{LQ+32*i}")
        a(f"""
        s_waitcnt lgkmcnt(0)
        s_barrier
        s_add_u32 s{sTAG}, s{sTAG}, 1
        s_and_b32 s{sTAG}, s{sTAG}, 0xff
        """)
        Lq = self.lab("qpub")
        a(f"""
        s_cmp_lg_u32 s{sJ}, 0
        s_cbranch_scc1 {Lq}
        s_mov_b64 exec, 0xffff
        v_lshlrev_b32 v{vU}, 4, v{vL}
        """)
        for p in range(8): a(f"ds_read_b128 {r4(vT+4*p) if p < 5 else r4(vU+4+4*(p-5))}, v{vU} offset:{LQ+256*p}")
        a(f"""
        s_lshl_b32 s4, s{sG}, 12
        s_lshl_b32 s5, s{sS}, 8
        s_add_u32 s4, s4, s5
        s_add_u32 s4, s4, {QB}
        v_add_u32 v{vU}, s4, v{vU}
        s_waitcnt lgkmcnt(0)
        """)
        for p in range(1, 8):
            src = vT + 4 * p if p < 5 else vU + 4 + 4 * (p - 5)
            a(f"v_pk_add_f32 {r2(vT)}, {r2(vT)}, {r2(src)}")
            a(f"v_pk_add_f32 {r2(vT+2)}, {r2(vT+2)}, {r2(src+2)}")
        tagins(vT)
        a(f"""
        buffer_store_dwordx4 {r4(vT)}, v{vU}, s[{SW}:{SW+3}], 0 offen sc1
        s_mov_b64 exec, -1
        {Lq}:
        """)
        self.stamp()
        a(f"""
        s_lshl_b32 s4, s{sG}, 12
        s_add_u32 s4, s4, {QB}
        v_add_u32 v{vQa}, s4, v{vV}
        s_lshr_b32 s4, s2, 3
        s_mul_i32 s4, s4, 9
        s_lshr_b32 s4, s4, 1
        s_lshl_b32 s4, s4, 4
        s_mul_i32 s5, s{sXCD}, {32*2304}
        s_add_u32 s4, s4, s5
        s_mul_i32 s5, s{sJ}, {8*2304}
        s_add_u32 s4, s4, s5
        s_add_u32 s4, s4, {GB}
        v_and_b32 v{vU}, 7, v0
        v_mul_u32_u24 v{vU}, 2304, v{vU}
        v_lshrrev_b32 v{vU+1}, 3, v{vL}
        v_min_u32 v{vU+1}, 4, v{vU+1}
        v_lshl_add_u32 v{vU}, v{vU+1}, 4, v{vU}
        v_add_u32 v{vQb}, s4, v{vU}
        """)
        def flat_step(k, xsrc, data, acc, first):
            p = k & 1
            A = vU + 2 * (k & 1)
            a(f"v_perm_b32 v{A}, v{xsrc+(k>>1)}, v{xsrc+(k>>1)}, v{vSel[2*p]}")
            a(f"v_perm_b32 v{A+1}, v{xsrc+(k>>1)}, v{xsrc+(k>>1)}, v{vSel[2*p+1]}")
            return A
        def flat_mfma(A, data, acc, first):
            a(f"v_mfma_f32_4x4x4_16b_bf16 {r4(acc)}, {r2(A)}, {r2(data)}, {'0' if first else r4(acc)}")
            a(f"v_mfma_f32_4x4x4_16b_bf16 {r4(acc+4)}, {r2(A)}, {r2(data+2)}, {'0' if first else r4(acc+4)}")
        self.wait("XGb")
        for k in range(12):
            A = flat_step(k, vXG, None, None, None)
            self.wait(f"G{k}")
            flat_mfma(A, dst[f"G{k}"], vAD, k == 0)
            fill(f"G{k}")
        a(f"""
        v_lshlrev_b32 v{vT}, 16, v{vGX}
        v_and_b32 v{vT+1}, 0xffff0000, v{vGX}
        v_lshlrev_b32 v{vT+2}, 16, v{vGX+1}
        v_and_b32 v{vT+3}, 0xffff0000, v{vGX+1}
        v_lshlrev_b32 v{vT+4}, 16, v{vGW}
        v_and_b32 v{vT+5}, 0xffff0000, v{vGW}
        v_lshlrev_b32 v{vT+6}, 16, v{vGW+1}
        v_and_b32 v{vT+7}, 0xffff0000, v{vGW+1}
        v_pk_mul_f32 {r2(vT)}, {r2(vT)}, {r2(vT+4)}
        v_pk_mul_f32 {r2(vT+2)}, {r2(vT+2)}, {r2(vT+6)}
        v_cvt_pk_bf16_f32 v{vT}, v{vT}, v{vT+1}
        v_cvt_pk_bf16_f32 v{vT+2}, v{vT+2}, v{vT+3}
        v_and_b32 v{vT+1}, 0xffff0000, v{vT}
        v_lshlrev_b32 v{vT}, 16, v{vT}
        v_and_b32 v{vT+3}, 0xffff0000, v{vT+2}
        v_lshlrev_b32 v{vT+2}, 16, v{vT+2}
        v_pk_add_f32 {r2(vT)}, {r2(vT)}, {r2(vT+2)}
        v_add_f32 v{vT}, v{vT}, v{vT+1}
        """)
        a(f"""
        v_mul_u32_u24 v{vRS}, 2304, v{vRS}
        v_lshl_add_u32 v{vCH}, v{vCH}, 5, v{vRS}
        """)
        for r in (1, 2, 4, 8): a(f"v_add_f32_dpp v{vT}, v{vT}, v{vT} row_ror:{r} row_mask:0xf bank_mask:0xf")
        a(f"""
        ds_write_b128 v{vCH}, {r4(vAD)} offset:{LG}
        ds_write_b128 v{vCH}, {r4(vAD+4)} offset:{LG+16}
        v_lshrrev_b32 v{vT+1}, 4, v0
        v_lshlrev_b32 v{vT+1}, 2, v{vT+1}
        ds_write_b32 v{vT+1}, v{vT} offset:{GS}
        s_waitcnt lgkmcnt(0)
        s_barrier
        """)
        def flat_reduce(base, voff, Lskip):
            a(f"""
            v_cmp_gt_u32 vcc, 144, v0
            s_and_saveexec_b64 s[4:5], vcc
            s_cbranch_execz {Lskip}
            ds_read_b128 {r4(vT)}, v{vV} offset:{base}
            ds_read_b128 {r4(vT+4)}, v{vV} offset:{base+2304}
            ds_read_b128 {r4(vT+8)}, v{vV} offset:{base+4608}
            s_waitcnt lgkmcnt(1)
            v_pk_add_f32 {r2(vT)}, {r2(vT)}, {r2(vT+4)}
            v_pk_add_f32 {r2(vT+2)}, {r2(vT+2)}, {r2(vT+6)}
            s_waitcnt lgkmcnt(0)
            v_pk_add_f32 {r2(vT)}, {r2(vT)}, {r2(vT+8)}
            v_pk_add_f32 {r2(vT+2)}, {r2(vT+2)}, {r2(vT+10)}
            """)
            tagins(vT)
            a(f"""
            buffer_store_dwordx4 {r4(vT)}, v{voff}, s[{SW}:{SW+3}], 0 offen sc1
            {Lskip}:
            s_mov_b64 exec, s[4:5]
            """)
        a(f"""
        s_mul_i32 s6, s{sLIN}, 2304
        s_add_u32 s6, s6, {GB}
        v_add_u32 v{vU}, s6, v{vV}
        """)
        flat_reduce(LG, vU, self.lab("gpub"))
        self.stamp()
        a(f"""
        v_mov_b32 v{vU}, 0
        ds_read_b128 {r4(vT)}, v{vU} offset:{GS}
        ds_read_b128 {r4(vT+4)}, v{vU} offset:{GS+16}
        ds_read_b128 {r4(vT+8)}, v{vU} offset:{GS+32}
        s_waitcnt lgkmcnt(0)
        v_pk_add_f32 {r2(vT)}, {r2(vT)}, {r2(vT+2)}
        v_pk_add_f32 {r2(vT+4)}, {r2(vT+4)}, {r2(vT+6)}
        v_pk_add_f32 {r2(vT+8)}, {r2(vT+8)}, {r2(vT+10)}
        v_pk_add_f32 {r2(vT)}, {r2(vT)}, {r2(vT+4)}
        v_pk_add_f32 {r2(vT)}, {r2(vT)}, {r2(vT+8)}
        v_add_f32 v{vT}, v{vT}, v{vT+1}
        v_cvt_pk_bf16_f32 v{vT}, v{vT}, v{vT}
        v_lshlrev_b32 v{vT}, 16, v{vT}
        v_mul_f32 v{vT}, {f2u(-1.4426950408889634):#x}, v{vT}
        v_exp_f32 v{vT}, v{vT}
        v_add_f32 v{vT}, 1.0, v{vT}
        v_rcp_f32 v{vT}, v{vT}
        v_cvt_pk_bf16_f32 v{vT}, v{vT}, v{vT}
        v_lshlrev_b32 v{vG}, 16, v{vT}
        v_sub_f32 v{vT}, 1.0, v{vG}
        v_cvt_pk_bf16_f32 v{vT}, v{vT}, v{vT}
        v_lshlrev_b32 v{vOMG}, 16, v{vT}
        """)
        qa = o["qpoll_after"]
        for k in range(qa + 1):
            if f"K{k}" in self.vm and self.ip < len(big):
                self.wait(f"K{k}")
            fill(f"K{k}")
        self.wait("QP")
        retry_loop("q", [f"buffer_load_dwordx4 {r4(vPoll)}, v{vQa}, s[{SW}:{SW+3}], 0 offen sc1"], [vPoll], vU)
        a(f"""
        ds_write_b128 v{vV}, {r4(vPoll)} offset:{QL}
        v_bfe_u32 v{vU}, v0, 3, 1
        v_lshlrev_b32 v{vU}, 9, v{vU}
        v_bfe_u32 v{vU+1}, v0, 4, 2
        v_lshl_add_u32 v{vU}, v{vU+1}, 7, v{vU}
        v_and_b32 v{vU+1}, 3, v0
        v_lshl_add_u32 v{vU}, v{vU+1}, 5, v{vU}
        s_waitcnt lgkmcnt(0)
        s_barrier
        """)
        qd = [vT, vT + 8, vU + 8, vU + 16]
        for k in range(4):
            a(f"ds_read_b128 {r4(qd[k])}, v{vU} offset:{QL+1024*k}")
            a(f"ds_read_b128 {r4(qd[k]+4)}, v{vU} offset:{QL+1024*k+16}")
        a("s_waitcnt lgkmcnt(4)")
        for i in range(0, 8, 2): a(f"v_pk_add_f32 {r2(qd[0]+i)}, {r2(qd[0]+i)}, {r2(qd[1]+i)}")
        a("s_waitcnt lgkmcnt(0)")
        for i in range(0, 8, 2): a(f"v_pk_add_f32 {r2(qd[2]+i)}, {r2(qd[2]+i)}, {r2(qd[3]+i)}")
        for i in range(0, 8, 2): a(f"v_pk_add_f32 {r2(qd[0]+i)}, {r2(qd[0]+i)}, {r2(qd[2]+i)}")
        for i in range(4): a(f"v_cvt_pk_bf16_f32 v{vBq+i}, v{qd[0]+2*i}, v{qd[0]+2*i+1}")
        self.stamp()
        def qk_mfma(t):
            D = vT + 4 * (t % 4)
            a(f"v_mfma_f32_16x16x32_bf16 {r4(D)}, {r4(dst[f'K{t}'])}, {r4(vBq)}, 0")
        def qk_fin(t):
            D = vT + 4 * (t % 4)
            a(f"v_mov_b32_dpp v{vS+t}, v{D} quad_perm:[0,0,0,0] row_mask:0xf bank_mask:0xf")
            for u in range(1, 4):
                a(f"v_add_f32_dpp v{vS+t}, v{D+u}, v{vS+t} quad_perm:[{u},{u},{u},{u}] row_mask:0xf bank_mask:0xf")
        for t in range(16):
            if t > qa:
                self.wait(f"K{t}")
            qk_mfma(t)
            if t > qa: fill(f"K{t}")
            if t >= 2: qk_fin(t - 2)
        qk_fin(14); qk_fin(15)
        if o["round_scores"]:
            a(f"s_mov_b32 s{sC}, {f2u(128 ** -0.5):#x}")
            for t in range(0, 16, 2):
                a(f"""
                v_cvt_pk_bf16_f32 v{vT}, v{vS+t}, v{vS+t+1}
                v_lshlrev_b32 v{vS+t}, 16, v{vT}
                v_and_b32 v{vS+t+1}, 0xffff0000, v{vT}
                v_mul_f32 v{vS+t}, s{sC}, v{vS+t}
                v_mul_f32 v{vS+t+1}, s{sC}, v{vS+t+1}
                v_cvt_pk_bf16_f32 v{vT}, v{vS+t}, v{vS+t+1}
                v_lshlrev_b32 v{vS+t}, 16, v{vT}
                v_and_b32 v{vS+t+1}, 0xffff0000, v{vT}
                """)
            cexp = 1.4426950408889634
        else:
            cexp = 128 ** -0.5 * 1.4426950408889634
        a(f"s_mov_b32 s{sC}, {f2u(cexp):#x}")
        a(f"v_max3_f32 v{vT}, v{vS}, v{vS+1}, v{vS+2}")
        for t in range(3, 15, 2): a(f"v_max3_f32 v{vT}, v{vT}, v{vS+t}, v{vS+t+1}")
        a(f"v_max_f32 v{vT}, v{vT}, v{vS+15}")
        a(f"""
        v_bfe_u32 v{vU}, v0, 3, 1
        v_lshlrev_b32 v{vU}, 6, v{vU}
        v_lshrrev_b32 v{vU+1}, 4, v0
        v_lshl_add_u32 v{vK}, v{vU+1}, 2, v{vU}
        ds_write_b32 v{vK}, v{vT} offset:{MX}
        s_waitcnt lgkmcnt(0)
        s_barrier
        """)
        for i in range(4): a(f"ds_read_b128 {r4(vT+4*i)}, v{vU} offset:{MX+16*i}")
        a("s_waitcnt lgkmcnt(0)")
        a(f"v_max3_f32 v{vT}, v{vT}, v{vT+1}, v{vT+2}")
        for t in range(3, 15, 2): a(f"v_max3_f32 v{vT}, v{vT}, v{vT+t}, v{vT+t+1}")
        a(f"v_max_f32 v{vXQ}, v{vT}, v{vT+15}")
        a(f"v_and_b32 v{vXQ}, v{vXQ}, v{vTM}")
        a(f"v_mul_f32 v{vXQ+1}, s{sC}, v{vXQ}")
        for t in range(16): a(f"v_fma_f32 v{vS+t}, v{vS+t}, s{sC}, -v{vXQ+1}")
        for t in range(16): a(f"v_exp_f32 v{vS+t}, v{vS+t}")
        a(f"v_pk_add_f32 {r2(vT)}, {r2(vS)}, {r2(vS+2)}")
        for t in range(4, 16, 2): a(f"v_pk_add_f32 {r2(vT)}, {r2(vT)}, {r2(vS+t)}")
        a(f"v_add_f32 v{vT}, v{vT}, v{vT+1}")
        a(f"ds_write_b32 v{vK}, v{vT} offset:{LS}")
        for t in range(16): a(f"v_cvt_pk_bf16_f32 v{vS+t}, v{vS+t}, v{vS+t}")
        self.stamp()
        ha = o["hpoll_after"]
        for t in range(16):
            B = vT + 4 * (t % 2)
            for j in range(4): a(f"v_and_b32 v{B+j}, v{vS+t}, v{vM[j]}")
            self.wait(f"V{t}")
            a(f"v_mfma_f32_16x16x32_bf16 {r4(vAcc)}, {r4(dst[f'V{t}'])}, {r4(B)}, {'0' if t == 0 else r4(vAcc)}")
            fill(f"V{t}")
            if t == ha:
                self.wait("HPL")
                retry_loop("h", [f"buffer_load_dwordx4 {r4(vAO)}, v{vQb}, s[{SW}:{SW+3}], 0 offen sc1"], [vAO], vU)
                for i in range(4): a(f"v_add_f32_dpp v{vAO+i}, v{vAO+i}, v{vAO+i} quad_perm:[2,3,0,1] row_mask:0xf bank_mask:0xf")
                for i in range(4): a(f"v_add_f32_dpp v{vAO+i}, v{vAO+i}, v{vAO+i} row_shl:4 row_mask:0xf bank_mask:0xf")
                a(f"""
                v_and_b32 v{vU}, 7, v0
                v_cmp_gt_u32 vcc, 2, v{vU}
                v_mul_u32_u24 v{vU}, 96, v{vU}
                v_lshrrev_b32 v{vU+1}, 3, v{vL}
                v_min_u32 v{vU+1}, 5, v{vU+1}
                v_lshl_add_u32 v{vU}, v{vU+1}, 4, v{vU}
                s_mul_i32 s4, s{sJ}, 192
                s_add_u32 s4, s4, {HP}
                v_add_u32 v{vU}, s4, v{vU}
                v_mov_b32 v{vU+1}, {QL}
                v_cndmask_b32 v{vU}, v{vU+1}, v{vU}, vcc
                ds_write_b128 v{vU}, {r4(vAO)}
                s_waitcnt lgkmcnt(0)
                s_barrier
                """)
                Lh = self.lab("hfin")
                a(f"""
                s_cmp_lg_u32 s{sJ}, 1
                s_cbranch_scc1 {Lh}
                s_mov_b64 exec, 0x3ffff
                s_bfe_u32 s4, s2, 0x10003
                s_lshl_b32 s4, s4, 3
                v_lshl_add_u32 v{vU}, v{vL}, 2, s4
                """)
                for jj in range(4):
                    a(f"ds_read2_b32 {r2(vU+2+2*jj)}, v{vU} offset0:{(HP+192*jj)//4 - HP//4} offset1:{(192*jj+96)//4}".replace(f"v{vU} ", f"v{vU+1} "))
                idx = len(self.l) - 4
                self.l.insert(idx, f"    v_add_u32 v{vU+1}, {HP}, v{vU}")
                a(f"""
                s_waitcnt lgkmcnt(0)
                v_pk_add_f32 {r2(vU+2)}, {r2(vU+2)}, {r2(vU+4)}
                v_pk_add_f32 {r2(vU+6)}, {r2(vU+6)}, {r2(vU+8)}
                v_pk_add_f32 {r2(vU+2)}, {r2(vU+2)}, {r2(vU+6)}
                v_cvt_pk_bf16_f32 v{vU+2}, v{vU+2}, v{vU+3}
                v_and_b32 v{vU+3}, 0xffff0000, v{vU+2}
                v_lshlrev_b32 v{vU+2}, 16, v{vU+2}
                v_max_f32 v{vU+2}, 0, v{vU+2}
                v_mul_f32 v{vU+2}, v{vU+2}, v{vU+3}
                v_cvt_pk_bf16_f32 v{vU+2}, v{vU+2}, v{vU+2}
                v_lshlrev_b32 v{vU}, 1, v{vL}
                ds_write_b16 v{vU}, v{vU+2} offset:{HL}
                s_mov_b64 exec, -1
                {Lh}:
                """)
        a(f"""
        v_bfe_u32 v{vU}, v0, 3, 1
        v_lshlrev_b32 v{vU}, 9, v{vU}
        v_bfe_u32 v{vU+1}, v0, 4, 2
        v_lshl_add_u32 v{vU}, v{vU+1}, 7, v{vU}
        v_and_b32 v{vU+1}, 7, v0
        v_lshl_add_u32 v{vU}, v{vU+1}, 2, v{vU}
        v_lshl_add_u32 v{vU}, v{vJ}, 10, v{vU}
        """)
        for i in range(4): a(f"ds_write_b32 v{vU}, v{vAcc+i} offset:{OW+32*i}")
        a(f"""
        s_waitcnt lgkmcnt(0)
        s_barrier
        """)
        self.stamp()
        Lo1 = self.lab("opub")
        a(f"""
        s_lshl_b32 s6, s{sG}, 4
        s_cmp_lg_u32 s{sJ}, 0
        s_cbranch_scc1 {Lo1}
        """)
        for jj in range(4): a(f"ds_read_b128 {r4(vT+4*jj)}, v{vV} offset:{OW+1024*jj}")
        a(f"""
        v_bfe_u32 v{vU}, v0, 3, 1
        v_lshlrev_b32 v{vU}, 6, v{vU}
        """)
        for i in range(4): a(f"ds_read_b128 {r4(vU+4+4*i)}, v{vU} offset:{LS+16*i}")
        a(f"""
        s_add_u32 s4, s6, s{sS}
        s_mul_i32 s4, s4, 1152
        s_add_u32 s4, s4, {OB}
        v_add_u32 v{vU}, s4, v{vV}
        s_waitcnt lgkmcnt(4)
        v_pk_add_f32 {r2(vT)}, {r2(vT)}, {r2(vT+4)}
        v_pk_add_f32 {r2(vT+2)}, {r2(vT+2)}, {r2(vT+6)}
        v_pk_add_f32 {r2(vT+8)}, {r2(vT+8)}, {r2(vT+12)}
        v_pk_add_f32 {r2(vT+10)}, {r2(vT+10)}, {r2(vT+14)}
        v_pk_add_f32 {r2(vT)}, {r2(vT)}, {r2(vT+8)}
        v_pk_add_f32 {r2(vT+2)}, {r2(vT+2)}, {r2(vT+10)}
        """)
        tagins(vT)
        a(f"""
        buffer_store_dwordx4 {r4(vT)}, v{vU}, s[{SW}:{SW+3}], 0 offen sc1
        s_waitcnt lgkmcnt(0)
        """)
        for i in range(2, 16, 2): a(f"v_pk_add_f32 {r2(vU+4)}, {r2(vU+4)}, {r2(vU+4+i)}")
        a(f"""
        v_add_f32 v{vT+5}, v{vU+4}, v{vU+5}
        v_mov_b32 v{vT+4}, v{vXQ}
        v_mov_b32_dpp v{vT+6}, v{vXQ} row_shl:8 row_mask:0xf bank_mask:0xf
        v_mov_b32_dpp v{vT+7}, v{vT+5} row_shl:8 row_mask:0xf bank_mask:0xf
        """)
        tagins(vT + 4)
        a(f"""
        s_mov_b64 exec, 1
        buffer_store_dwordx4 {r4(vT+4)}, v{vU}, s[{SW}:{SW+3}], 0 offen offset:1024 sc1
        s_mov_b64 exec, -1
        {Lo1}:
        """)
        a(f"""
        s_mul_i32 s4, s6, 1152
        s_add_u32 s4, s4, {OB}
        v_and_b32 v{vQa}, 15, v0
        v_mul_u32_u24 v{vQa}, 1152, v{vQa}
        v_add_u32 v{vQa}, s4, v{vQa}
        v_bfe_u32 v{vQb}, v0, 4, 2
        v_lshl_add_u32 v{vQb}, s{sS}, 2, v{vQb}
        v_lshl_add_u32 v{vQb}, v{vQb}, 4, v{vQa}
        """)
        oloads = [f"buffer_load_dwordx4 {r4(vPoll)}, v{vQb}, s[{SW}:{SW+3}], 0 offen sc1",
                  f"buffer_load_dwordx4 {r4(vAcc)}, v{vQa}, s[{SW}:{SW+3}], 0 offen offset:1024 sc1"]
        a(f"""
        v_mul_u32_u24 v{vU}, 911, v0
        v_lshrrev_b32 v{vU}, 16, v{vU}
        v_mul_u32_u24 v{vRS}, 12, v{vU}
        v_add_u32 v{vU}, {HL}, v{vRS}
        ds_read2_b32 {r2(vXG)}, v{vU} offset0:0 offset1:1
        ds_read_b32 v{vXG+2}, v{vU} offset:8
        s_waitcnt lgkmcnt(0)
        """)
        while self.ip < len(big): issue_next()
        for k in range(6):
            A = flat_step(k, vXG, None, None, None)
            self.wait(f"D{k}")
            flat_mfma(A, dst[f"D{k}"], vAD, k == 0)
        Lo2 = self.lab("ocons")
        a(f"""
        s_cmp_lg_u32 s{sJ}, 1
        s_cbranch_scc1 {Lo2}
        """)
        for ld in oloads: a(ld)
        a("s_waitcnt vmcnt(0)")
        retry_loop("o", oloads, [vPoll, vAcc], vU)
        a(f"""
        s_cmp_ge_u32 s{sS}, 8
        s_cselect_b64 vcc, -1, 0
        v_cndmask_b32 v{vT}, v{vAcc}, v{vAcc+2}, vcc
        v_cndmask_b32 v{vT+1}, v{vAcc+1}, v{vAcc+3}, vcc
        v_and_b32 v{vT}, v{vT}, v{vTM}
        v_max_f32_dpp v{vT+2}, v{vT}, v{vT} row_ror:1 row_mask:0xf bank_mask:0xf
        """)
        for r in (2, 4, 8): a(f"v_max_f32_dpp v{vT+2}, v{vT+2}, v{vT+2} row_ror:{r} row_mask:0xf bank_mask:0xf")
        a(f"""
        v_sub_f32 v{vT}, v{vT}, v{vT+2}
        v_mul_f32 v{vT}, s{sC}, v{vT}
        v_exp_f32 v{vT}, v{vT}
        v_mul_f32 v{vT+1}, v{vT}, v{vT+1}
        """)
        for i in range(4): a(f"v_mul_f32 v{vPoll+i}, v{vT}, v{vPoll+i}")
        for r in (1, 2, 4, 8):
            a(f"v_add_f32_dpp v{vT+1}, v{vT+1}, v{vT+1} row_ror:{r} row_mask:0xf bank_mask:0xf")
            for i in range(4): a(f"v_add_f32_dpp v{vPoll+i}, v{vPoll+i}, v{vPoll+i} row_ror:{r} row_mask:0xf bank_mask:0xf")
        a(f"v_rcp_f32 v{vT+1}, v{vT+1}")
        for i in range(4): a(f"v_mul_f32 v{vPoll+i}, v{vT+1}, v{vPoll+i}")
        a(f"""
        v_cvt_pk_bf16_f32 v{vT+2}, v{vPoll}, v{vPoll+1}
        v_cvt_pk_bf16_f32 v{vT+3}, v{vPoll+2}, v{vPoll+3}
        v_lshrrev_b32 v{vU}, 4, v{vL}
        v_lshlrev_b32 v{vU}, 3, v{vU}
        ds_write_b64 v{vU}, {r2(vT+2)} offset:{OL}
        {Lo2}:
        """)
        for i in range(0, 8): a(f"v_mul_f32 v{vAD+i}, v{vOMG}, v{vAD+i}")
        a(f"""
        v_add_u32 v{vU+4}, {OL}, v{vRS}
        s_waitcnt lgkmcnt(0)
        s_barrier
        ds_read2_b32 {r2(vXG)}, v{vU+4} offset0:0 offset1:1
        ds_read_b32 v{vXG+2}, v{vU+4} offset:8
        """)
        a(f"""
        v_lshrrev_b32 v{vQa}, {CG.bit_length()-1}, v0
        v_mul_u32_u24 v{vQa}, {256*CG*16}, v{vQa}
        v_and_b32 v{vQb}, {CG-1}, v0
        v_lshl_add_u32 v{vQa}, v{vQb}, 4, v{vQa}
        s_mul_i32 s4, s2, {CG*16}
        s_add_u32 s4, s4, {FB}
        v_add_u32 v{vQa}, s4, v{vQa}
        s_waitcnt lgkmcnt(0)
        """)
        for k in range(6):
            A = flat_step(k, vXG, None, None, None)
            self.wait(f"O{k}")
            flat_mfma(A, dst[f"O{k}"], vAO, k == 0)
        for i in range(8): a(f"v_fma_f32 v{vAD+i}, v{vG}, v{vAO+i}, v{vAD+i}")
        a(f"""
        ds_write_b128 v{vCH}, {r4(vAD)} offset:{LF}
        ds_write_b128 v{vCH}, {r4(vAD+4)} offset:{LF+16}
        s_waitcnt lgkmcnt(0)
        s_barrier
        """)
        flat_reduce(LF, vQa, self.lab("fpub"))
        self.stamp() if self.nst < 7 else None
        a(f"""
        s_cmp_ge_u32 s2, {R}
        s_cbranch_scc1 L_fin
        """)
        assert CG == 4
        a(f"""
        s_mul_i32 s4, s2, {256*CG*16}
        s_add_u32 s4, s4, {FB}
        v_and_b32 v{vQa}, 15, v0
        v_lshlrev_b32 v{vQa}, 6, v{vQa}
        v_bfe_u32 v{vQb}, v0, 4, 2
        v_lshl_add_u32 v{vQa}, v{vQb}, 4, v{vQa}
        v_lshl_add_u32 v{vQa}, v{vJ}, 10, v{vQa}
        v_add_u32 v{vQa}, s4, v{vQa}
        s_movk_i32 s33, 0x1000
        s_movk_i32 s34, 0x2000
        s_movk_i32 s35, 0x3000
        """)
        floads = [f"buffer_load_dwordx4 {r4(R1+4*k)}, v{vQa}, s[{SW}:{SW+3}], {'0' if k == 0 else f's{32+k}'} offen sc1" for k in range(4)]
        for ld in floads: a(ld)
        a("s_waitcnt vmcnt(0)")
        retry_loop("f", floads, [R1 + 4 * k for k in range(4)], vU)
        a(f"""
        v_pk_add_f32 {r2(R1)}, {r2(R1)}, {r2(R1+4)}
        v_pk_add_f32 {r2(R1+2)}, {r2(R1+2)}, {r2(R1+6)}
        v_pk_add_f32 {r2(R1+8)}, {r2(R1+8)}, {r2(R1+12)}
        v_pk_add_f32 {r2(R1+10)}, {r2(R1+10)}, {r2(R1+14)}
        v_pk_add_f32 {r2(R1)}, {r2(R1)}, {r2(R1+8)}
        v_pk_add_f32 {r2(R1+2)}, {r2(R1+2)}, {r2(R1+10)}
        """)
        for r in (1, 2, 4, 8):
            for i in range(4): a(f"v_add_f32_dpp v{R1+i}, v{R1+i}, v{R1+i} row_ror:{r} row_mask:0xf bank_mask:0xf")
        a(f"""
        v_lshrrev_b32 v{vU}, 4, v0
        v_lshlrev_b32 v{vU}, 4, v{vU}
        ds_write_b128 v{vU}, {r4(R1)} offset:{RD}
        s_waitcnt lgkmcnt(0)
        s_barrier
        s_cmp_lg_u32 s{sJ}, 0
        s_cbranch_scc1 L_fin
        s_mov_b64 exec, 15
        """)
        for jj in range(4): a(f"ds_read_b128 {r4(vT+4*jj)}, v{vV} offset:{RD+64*jj}")
        a(f"""
        s_mov_b32 s{SX}, s56
        s_mov_b32 s{SX+1}, s57
        s_lshl_b32 s4, s2, 5
        v_lshl_add_u32 v{vU}, v0, 3, s4
        s_waitcnt lgkmcnt(0)
        v_pk_add_f32 {r2(vT)}, {r2(vT)}, {r2(vT+4)}
        v_pk_add_f32 {r2(vT+2)}, {r2(vT+2)}, {r2(vT+6)}
        v_pk_add_f32 {r2(vT+8)}, {r2(vT+8)}, {r2(vT+12)}
        v_pk_add_f32 {r2(vT+10)}, {r2(vT+10)}, {r2(vT+14)}
        v_pk_add_f32 {r2(vT)}, {r2(vT)}, {r2(vT+8)}
        v_pk_add_f32 {r2(vT+2)}, {r2(vT+2)}, {r2(vT+10)}
        v_cvt_pk_bf16_f32 v{vT}, v{vT}, v{vT+1}
        v_cvt_pk_bf16_f32 v{vT+1}, v{vT+2}, v{vT+3}
        buffer_store_dwordx2 {r2(vT)}, v{vU}, s[{SX}:{SX+3}], 0 offen
        s_cmp_lg_u32 s2, 0
        s_cbranch_scc1 L_fin
        s_mov_b64 exec, 1
        v_mov_b32 v{vT+4}, s{sTAG}
        v_mov_b32 v{vT+5}, 0
        buffer_store_dword v{vT+4}, v{vT+5}, s[{SW}:{SW+3}], 0 offen sc1
        L_fin:
        """)
        if o["stamps"]:
            self.nst = 7; self.stamp()
            a(f"""
            s_waitcnt lgkmcnt(0)
            s_lshl_b32 s4, s2, 2
            s_add_u32 s4, s4, s{sJ}
            s_lshl_b32 s4, s4, 6
            s_add_u32 s4, s4, {STAMP_OFF - o['wsoff']:#x}
            s_add_u32 s6, s60, s4
            s_addc_u32 s7, s61, 0
            s_mov_b64 exec, 1
            v_mov_b32 v4, 0
            """)
            for j in range(8):
                a(f"""
                v_mov_b32 v2, s{16+2*j}
                v_mov_b32 v3, s{17+2*j}
                global_store_dwordx2 v4, v[2:3], s[6:7] offset:{8*j}
                s_nop 1
                """)
        a("L_end:")
        a("s_endpgm")
        body = "\n".join(fix(self.l)) + "\n"
        head = open("cdna_kernels/" + KN + ".s.ref").read().split("; Override launch")[0]
        return head + f"""; @launch grid=(256,1,1) block=(256,1,1) lds={o['lds']}
.amdgcn_target "amdgcn-amd-amdhsa--gfx950"
.text
.globl {KN}_kernel
.p2align 8
.type {KN}_kernel,@function
{KN}_kernel:
""" + body + f""".section .rodata,"a"
.p2align 6
.amdhsa_kernel {KN}_kernel
  .amdhsa_next_free_vgpr 256
  .amdhsa_next_free_sgpr 102
  .amdhsa_accum_offset 256
  .amdhsa_group_segment_fixed_size 0
  .amdhsa_kernarg_size 104
  .amdhsa_user_sgpr_count 2
  .amdhsa_user_sgpr_kernarg_segment_ptr 1
  .amdhsa_system_sgpr_workgroup_id_x 1
.end_amdhsa_kernel
"""

if __name__ == "__main__":
    out = sys.argv[1]
    opt = {}
    for kv in sys.argv[2:]:
        k, v = kv.split("=")
        opt[k] = eval(v)
    open(out, "w").write(Gen(**opt).build())
```

```python
import sys, struct
from hazard import fix
KN = "gated_mix__sliding_block_cached__glu_gated_reglu__decode"
STAMP_OFF = 0x30000000

def f2u(x): return struct.unpack("<I", struct.pack("<f", x))[0]

class Gen:
    def __init__(self, **opt):
        self.o = dict(W=10, stamps=False, wsoff=0, qpoll_after=8, hpoll_after=3, R=36, round_scores=True,
                      prefetch=0, jitter=0, dbgst=False, lds=90112, nt="nt", spin=20000)
        self.o.update(opt)
        self.l = []
        self.vm = []
        self.nl = 0
        self.nst = 0
    def a(self, s):
        for x in s.strip().split("\n"):
            x = x.strip()
            if not x: continue
            self.l.append(x if x.endswith(":") else "    " + x)
    def lab(self, p):
        self.nl += 1
        return f"L_{p}{self.nl}"
    def issue(self, label, s):
        self.a(s); self.vm.append(label)
    def wait(self, label):
        n = len(self.vm) - 1 - self.vm.index(label)
        assert n <= 63
        self.a(f"s_waitcnt vmcnt({n})")
    def stamp(self):
        if self.o["stamps"]:
            assert self.nst < 8
            r = 16 + 2 * self.nst
            self.a(f"s_memrealtime s[{r}:{r+1}]")
            self.nst += 1

    def build(self):
        o = self.o; a = self.a; nt = o["nt"]; W = o["W"]
        assert W <= 16
        QB, GB, OB, FB = 0x1000, 0x20000, 0xB0000, 0x100000
        R = o["R"]; CG = 144 // R
        LQ, LG, QL, MX, LS, GS, HP, HL, OL, OW, LF, RD = 0, 2048, 11264, 15360, 15488, 15616, 15744, 16512, 16576, 16640, 20736, 29952
        vL = 1; vM = [2, 3, 4, 5]; vSel = [6, 7, 8, 9]
        vQa, vQb, vGU, vK, vV, vP3, vP3b, vTM = 10, 11, 12, 13, 14, 15, 16, 17
        vXQ, vXQb, vXG, vGX, vGW = 18, 20, 22, 28, 30
        vS = 32; vBq = 48; vAcc = 52; vAD = 56; vAO = 64; vT = 72; vPoll = 92
        R1 = 100; R2 = 168; vU = 232
        vRS, vCH, vG, vOMG, vJ = 21, 96, 97, 98, 99
        dst = {}
        for i in range(5): dst[f"Q{i}"] = R1 + 4 * i
        for i in range(12): dst[f"G{i}"] = R1 + 20 + 4 * i
        for i in range(16): dst[f"K{i}"] = R2 + 4 * i; dst[f"V{i}"] = R1 + 4 * i
        for i in range(6): dst[f"D{i}"] = R2 + 4 * i; dst[f"O{i}"] = R2 + 24 + 4 * i
        big = [f"Q{i}" for i in range(5)] + [f"G{i}" for i in range(12)] + [f"K{i}" for i in range(16)] + \
              [f"V{i}" for i in range(16)] + [f"D{i}" for i in range(6)] + [f"O{i}" for i in range(6)]
        sTAG = 62; sJ = 3; sXCD, sG, sS = 8, 9, 10; sLIN = 12
        sKV = 13; sGU = 14; sC = 15
        SQ, SGU, SK, SV, SD, SO, SX, SGW, SW = 64, 68, 72, 76, 80, 84, 88, 92, 96
        def r4(v): return f"v[{v}:{v+3}]"
        def r2(v): return f"v[{v}:{v+1}]"
        self.ip = 0
        def issue_next():
            lb = big[self.ip]; self.ip += 1
            d = r4(dst[lb]); k = int(lb[1:]); c = lb[0]
            if c == "Q":
                if k == 0: self.issue(lb, f"buffer_load_dwordx4 {d}, v{vQa}, s[{SQ}:{SQ+3}], 0 offen {nt}")
                elif k < 4: self.issue(lb, f"buffer_load_dwordx4 {d}, v{vQa}, s[{SQ}:{SQ+3}], s{32+k} offen {nt}")
                else: self.issue(lb, f"buffer_load_dwordx4 {d}, v{vQb}, s[{SQ}:{SQ+3}], 0 offen {nt}")
            elif c == "G":
                if k == 0: a(f"s_mov_b32 s{sGU}, 0")
                else: a(f"s_addk_i32 s{sGU}, 9216")
                self.issue(lb, f"buffer_load_dwordx4 {d}, v{vGU}, s[{SGU}:{SGU+3}], s{sGU} offen {nt}")
            elif c in "KV":
                if k == 0: a(f"s_mov_b32 s{sKV}, 0")
                else: a(f"s_addk_i32 s{sKV}, 4096")
                sr, vo = (SK, vK) if c == "K" else (SV, vV)
                self.issue(lb, f"buffer_load_dwordx4 {d}, v{vo}, s[{sr}:{sr+3}], s{sKV} offen {nt}")
                if c == "K" and k == o["qpoll_after"]:
                    self.issue("QP", f"buffer_load_dwordx4 {r4(vPoll)}, v{vQa}, s[{SW}:{SW+3}], 0 offen sc1")
                if c == "V" and k == o["hpoll_after"]:
                    self.issue("HPL", f"buffer_load_dwordx4 {r4(vAO)}, v{vQb}, s[{SW}:{SW+3}], 0 offen sc1")
            else:
                sr = SD if c == "D" else SO
                vo, im = (vP3, k * 1152) if k < 4 else (vP3b, (k - 4) * 1152)
                self.issue(lb, f"buffer_load_dwordx4 {d}, v{vo}, s[{sr}:{sr+3}], 0 offen offset:{im} {nt}")
        def fill(upto_label, extra=0):
            idx = big.index(upto_label)
            while self.ip < len(big) and self.ip <= idx + W + extra:
                issue_next()
        def tagins(v):
            for i in range(4): a(f"v_and_or_b32 v{v+i}, v{v+i}, v{vTM}, s{sTAG}")
        def tagchk(vs, acc, first=True):
            for v in vs:
                for i in range(4):
                    if first: a(f"v_xor_b32 v{acc}, s{sTAG}, v{v+i}"); first = False
                    else: a(f"v_bitop3_b32 v{acc}, v{v+i}, s{sTAG}, v{acc} bitop3:0xbe")
            a(f"v_and_b32 v{acc}, 0xff, v{acc}")
        def retry_loop(name, loads, vs, acc, lanemask=None):
            Lok = self.lab(name + "ok"); Lre = self.lab(name + "re")
            def chk():
                tagchk(vs, acc)
                a(f"v_cmp_ne_u32 vcc, 0, v{acc}")
                if lanemask is not None:
                    a(f"s_and_b64 vcc, vcc, s[{lanemask}:{lanemask+1}]")
            chk()
            a(f"s_cbranch_vccz {Lok}")
            a(f"s_mov_b32 s7, {o['spin']}")
            a(f"{Lre}:")
            for ld in loads: a(ld)
            a("s_waitcnt vmcnt(0)")
            chk()
            a(f"s_cbranch_vccz {Lok}")
            a("s_sub_u32 s7, s7, 1")
            a("s_cmp_lg_u32 s7, 0")
            a(f"s_cbranch_scc1 {Lre}")
            a(f"{Lok}:")

        self.stamp()
        JIT = ""
        if o["jitter"]:
            JIT = f"""s_mul_i32 s4, s2, 0x9e3779b1
            s_lshr_b32 s4, s4, {32-o["jitter"]}
            L_jit:
            s_cmp_eq_u32 s4, 0
            s_cbranch_scc1 L_jitd
            s_sleep 40
            s_sub_u32 s4, s4, 1
            s_branch L_jit
            L_jitd:"""
        a(f"""
        s_cmp_ge_u32 s2, 0x100
        s_cbranch_scc1 L_end
        {JIT}
        s_load_dwordx16 s[36:51], s[0:1], 0
        s_load_dwordx8 s[52:59], s[0:1], 64
        s_load_dwordx2 s[60:61], s[0:1], 96
        s_and_b32 s{sXCD}, s2, 7
        s_bfe_u32 s{sG}, s2, 0x10003
        s_lshl1_add_u32 s{sG}, s{sXCD}, s{sG}
        s_lshr_b32 s{sS}, s2, 4
        s_lshr_b32 s11, s2, 6
        s_mul_i32 s4, s11, {144*8192}
        s_lshl_b32 s5, s{sG}, 9
        s_add_u32 s4, s4, s5
        s_and_b32 s5, s{sS}, 3
        s_lshl_b32 s5, s5, 7
        s_add_u32 s4, s4, s5
        v_lshrrev_b32 v{vT}, 3, v0
        v_and_b32 v{vT+1}, 7, v0
        v_lshlrev_b32 v{vT+1}, 4, v{vT+1}
        v_lshl_add_u32 v{vQa}, v{vT}, 15, v{vT+1}
        v_lshl_add_u32 v{vQb}, v{vT}, 13, v{vT+1}
        v_add_u32 v{vQb}, {128*8192}, v{vQb}
        s_mov_b32 s{SQ+2}, {143*8192+128}
        s_mov_b32 s{SQ+3}, 0x20000
        s_movk_i32 s33, 0x2000
        s_movk_i32 s34, 0x4000
        s_movk_i32 s35, 0x6000
        s_waitcnt lgkmcnt(0)
        s_add_u32 s{SQ}, s42, s4
        s_addc_u32 s{SQ+1}, s43, 0
        """)
        for i in range(5): issue_next()
        a(f"""
        s_add_u32 s60, s60, {o['wsoff']:#x}
        s_addc_u32 s61, s61, 0
        s_load_dword s{sTAG}, s[60:61], 0
        s_mov_b32 s{SX}, s36
        s_mov_b32 s{SX+1}, s37
        s_movk_i32 s{SX+2}, 1152
        s_mov_b32 s{SX+3}, 0x20000
        s_mul_i32 s5, s11, 288
        v_lshl_add_u32 v{vT+2}, v{vT}, 3, s5
        v_lshl_add_u32 v{vT+3}, v{vT}, 1, s5
        """)
        self.issue("XQa", f"buffer_load_dwordx2 {r2(vXQ)}, v{vT+2}, s[{SX}:{SX+3}], 0 offen")
        self.issue("XQb", f"buffer_load_ushort v{vXQb}, v{vT+3}, s[{SX}:{SX+3}], 0 offen offset:256")
        a(f"""
        s_bitcmp1_b32 s2, 3
        s_cselect_b32 s{SGU}, s50, s48
        s_cselect_b32 s{SGU+1}, s51, s49
        s_mul_i32 s4, s{sS}, {36*9216}
        s_mul_i32 s5, s{sXCD}, 1152
        s_add_u32 s4, s4, s5
        s_add_u32 s{SGU}, s{SGU}, s4
        s_addc_u32 s{SGU+1}, s{SGU+1}, 0
        s_mov_b32 s{SGU+2}, {35*9216+1152}
        s_mov_b32 s{SGU+3}, 0x20000
        v_mul_u32_u24 v{vRS}, 911, v0
        v_lshrrev_b32 v{vRS}, 16, v{vRS}
        v_mul_u32_u24 v{vCH}, 72, v{vRS}
        v_sub_u32 v{vCH}, v0, v{vCH}
        v_mul_u32_u24 v{vGU}, {12*9216}, v{vRS}
        v_lshl_add_u32 v{vGU}, v{vCH}, 4, v{vGU}
        s_mul_i32 s5, s{sS}, 72
        v_mul_u32_u24 v{vT+2}, 24, v{vRS}
        v_add_u32 v{vT+2}, s5, v{vT+2}
        """)
        self.issue("XGa", f"buffer_load_dwordx4 {r4(vXG)}, v{vT+2}, s[{SX}:{SX+3}], 0 offen")
        self.issue("XGb", f"buffer_load_dwordx2 {r2(vXG+4)}, v{vT+2}, s[{SX}:{SX+3}], 0 offen offset:16")
        for i in range(4): issue_next()
        a(f"""
        s_mov_b32 s{SGW}, s54
        s_mov_b32 s{SGW+1}, s55
        s_movk_i32 s{SGW+2}, 1152
        s_mov_b32 s{SGW+3}, 0x20000
        v_lshlrev_b32 v{vT+2}, 3, v0
        """)
        self.issue("GX", f"buffer_load_dwordx2 {r2(vGX)}, v{vT+2}, s[{SX}:{SX+3}], 0 offen")
        self.issue("GW", f"buffer_load_dwordx2 {r2(vGW)}, v{vT+2}, s[{SGW}:{SGW+3}], 0 offen")
        if o["prefetch"]:
            a(f"""
            s_getpc_b64 s[4:5]
            v_lshlrev_b32 v{vT+2}, 4, v0
            """)
            for i in range(o["prefetch"]):
                if i: a(f"v_add_u32 v{vT+2}, 4096, v{vT+2}")
                self.issue(f"PF{i}", f"global_load_dwordx4 {r4(vPoll)}, v{vT+2}, s[4:5]")
        a(f"""
        s_lshl_b32 s4, s{sG}, 24
        s_lshl_b32 s5, s{sS}, 16
        s_add_u32 s4, s4, s5
        s_add_u32 s4, s4, {61440*256}
        s_add_u32 s{SK}, s38, s4
        s_addc_u32 s{SK+1}, s39, 0
        s_mov_b32 s{SK+2}, 0x10000
        s_mov_b32 s{SK+3}, 0x20000
        s_add_u32 s{SV}, s40, s4
        s_addc_u32 s{SV+1}, s41, 0
        s_mov_b32 s{SV+2}, 0x10000
        s_mov_b32 s{SV+3}, 0x20000
        s_lshr_b32 s4, s2, 3
        s_lshl_b32 s{sLIN}, s{sXCD}, 5
        s_add_u32 s{sLIN}, s{sLIN}, s4
        s_mul_i32 s4, s{sLIN}, {18*1152}
        s_add_u32 s{SD}, s52, s4
        s_addc_u32 s{SD+1}, s53, 0
        s_movk_i32 s{SD+2}, {18*1152}
        s_mov_b32 s{SD+3}, 0x20000
        s_lshl_b32 s4, s{sG}, 4
        s_add_u32 s4, s4, s{sS}
        s_mul_i32 s4, s4, {16*1152}
        s_add_u32 s{SO}, s44, s4
        s_addc_u32 s{SO+1}, s45, 0
        s_movk_i32 s{SO+2}, {16*1152}
        s_mov_b32 s{SO+3}, 0x20000
        s_mov_b32 s{SW}, s60
        s_mov_b32 s{SW+1}, s61
        s_mov_b32 s{SW+2}, 0x200000
        s_mov_b32 s{SW+3}, 0x20000
        v_and_b32 v{vL}, 63, v0
        v_lshrrev_b32 v{vJ}, 6, v0
        v_lshlrev_b32 v{vV}, 4, v0
        v_readfirstlane_b32 s{sJ}, v{vJ}
        v_and_b32 v{vT}, 3, v0
        v_lshlrev_b32 v{vT}, 4, v{vT}
        v_bfe_u32 v{vT+1}, v0, 2, 2
        v_lshl_add_u32 v{vT}, v{vT+1}, 8, v{vT}
        v_bfe_u32 v{vT+1}, v0, 4, 2
        v_lshl_add_u32 v{vT}, v{vT+1}, 6, v{vT}
        v_lshl_add_u32 v{vK}, v{vJ}, 10, v{vT}
        v_mul_u32_u24 v{vP3}, {6*1152}, v{vRS}
        v_lshl_add_u32 v{vP3}, v{vCH}, 4, v{vP3}
        v_add_u32 v{vP3b}, 4608, v{vP3}
        v_mov_b32 v{vTM}, 0xffffff00
        v_and_b32 v{vT}, 1, v0
        v_lshlrev_b32 v{vT}, 4, v{vT}
        v_mov_b32 v{vT+1}, 0xffff
        v_lshlrev_b32 v{vT}, v{vT}, v{vT+1}
        v_bfe_u32 v{vT+1}, v0, 1, 2
        v_cmp_eq_u32 s[4:5], 0, v{vT+1}
        v_cmp_eq_u32 s[6:7], 1, v{vT+1}
        v_cndmask_b32 v{vM[0]}, 0, v{vT}, s[4:5]
        v_cndmask_b32 v{vM[1]}, 0, v{vT}, s[6:7]
        v_cmp_eq_u32 s[4:5], 2, v{vT+1}
        v_cmp_eq_u32 s[6:7], 3, v{vT+1}
        v_cndmask_b32 v{vM[2]}, 0, v{vT}, s[4:5]
        v_cndmask_b32 v{vM[3]}, 0, v{vT}, s[6:7]
        v_or_b32 v{vT}, v{vM[0]}, v{vM[2]}
        v_or_b32 v{vT+1}, v{vM[1]}, v{vM[3]}
        v_mov_b32 v{vT+2}, 0x0c0c0c0c
        s_mov_b32 s32, 0x01000100
        s_mov_b32 s63, 0x03020302
        v_bfi_b32 v{vSel[0]}, v{vT}, s32, v{vT+2}
        v_bfi_b32 v{vSel[1]}, v{vT+1}, s32, v{vT+2}
        v_bfi_b32 v{vSel[2]}, v{vT}, s63, v{vT+2}
        v_bfi_b32 v{vSel[3]}, v{vT+1}, s63, v{vT+2}
        """)
        a(f"""
        v_lshlrev_b32 v{vT}, 2, v{vL}
        v_and_b32 v{vT}, 0x7c, v{vT}
        v_mov_b32 v{vT+1}, 0
        ds_write_b32 v{vT}, v{vT+1} offset:{HL}
        """)
        fill("Q0", -1)
        self.stamp()
        self.wait("XQb")
        for t in range(5):
            src = vXQ + (t >> 1) if t < 4 else vXQb
            sel = "s63" if (t < 4 and t & 1) else "s32"
            a(f"v_perm_b32 v{vU}, v{src}, v{src}, {sel}")
            for j in range(4): a(f"v_and_b32 v{vT+4*t+j}, v{vU}, v{vM[j]}")
        for t in range(5):
            c = "0" if t == 0 else r4(vAcc)
            a(f"v_mfma_f32_16x16x32_bf16 {r4(vAcc)}, {r4(dst[f'Q{t}'])}, {r4(vT+4*t)}, {c}")
        fill("Q4")
        a(f"""
        v_bfe_u32 v{vU}, v0, 3, 1
        v_bfe_u32 v{vU+1}, v0, 5, 1
        v_cmp_eq_u32 vcc, v{vU}, v{vU+1}
        v_lshrrev_b32 v{vU}, 5, v0
        v_lshlrev_b32 v{vU}, 8, v{vU}
        v_bfe_u32 v{vU+1}, v0, 4, 1
        v_lshl_add_u32 v{vU}, v{vU+1}, 7, v{vU}
        v_and_b32 v{vU+1}, 7, v0
        v_lshl_add_u32 v{vU}, v{vU+1}, 2, v{vU}
        v_mov_b32 v{vU+1}, {QL}
        v_cndmask_b32 v{vU}, v{vU+1}, v{vU}, vcc
        """)
        for i in range(4): a(f"ds_write_b32 v{vU}, v{vAcc+i} offset:{LQ+32*i}")
        a(f"""
        s_waitcnt lgkmcnt(0)
        s_barrier
        s_add_u32 s{sTAG}, s{sTAG}, 1
        s_and_b32 s{sTAG}, s{sTAG}, 0xff
        """)
        Lq = self.lab("qpub")
        a(f"""
        s_cmp_lg_u32 s{sJ}, 0
        s_cbranch_scc1 {Lq}
        s_mov_b64 exec, 0xffff
        v_lshlrev_b32 v{vU}, 4, v{vL}
        """)
        for p in range(8): a(f"ds_read_b128 {r4(vT+4*p) if p < 5 else r4(vU+4+4*(p-5))}, v{vU} offset:{LQ+256*p}")
        a(f"""
        s_lshl_b32 s4, s{sG}, 12
        s_lshl_b32 s5, s{sS}, 8
        s_add_u32 s4, s4, s5
        s_add_u32 s4, s4, {QB}
        v_add_u32 v{vU}, s4, v{vU}
        s_waitcnt lgkmcnt(0)
        """)
        for p in range(1, 8):
            src = vT + 4 * p if p < 5 else vU + 4 + 4 * (p - 5)
            a(f"v_pk_add_f32 {r2(vT)}, {r2(vT)}, {r2(src)}")
            a(f"v_pk_add_f32 {r2(vT+2)}, {r2(vT+2)}, {r2(src+2)}")
        tagins(vT)
        a(f"""
        buffer_store_dwordx4 {r4(vT)}, v{vU}, s[{SW}:{SW+3}], 0 offen sc1
        s_mov_b64 exec, -1
        {Lq}:
        """)
        self.stamp()
        a(f"""
        s_lshl_b32 s4, s{sG}, 12
        s_add_u32 s4, s4, {QB}
        v_add_u32 v{vQa}, s4, v{vV}
        s_lshr_b32 s4, s2, 3
        s_mul_i32 s4, s4, 9
        s_lshr_b32 s4, s4, 1
        s_lshl_b32 s4, s4, 4
        s_mul_i32 s5, s{sXCD}, {32*2304}
        s_add_u32 s4, s4, s5
        s_mul_i32 s5, s{sJ}, {8*2304}
        s_add_u32 s4, s4, s5
        s_add_u32 s4, s4, {GB}
        v_and_b32 v{vU}, 7, v0
        v_mul_u32_u24 v{vU}, 2304, v{vU}
        v_lshrrev_b32 v{vU+1}, 3, v{vL}
        v_min_u32 v{vU+1}, 4, v{vU+1}
        v_lshl_add_u32 v{vU}, v{vU+1}, 4, v{vU}
        v_add_u32 v{vQb}, s4, v{vU}
        """)
        def flat_step(k, xsrc, data, acc, first):
            p = k & 1
            A = vU + 2 * (k & 1)
            a(f"v_perm_b32 v{A}, v{xsrc+(k>>1)}, v{xsrc+(k>>1)}, v{vSel[2*p]}")
            a(f"v_perm_b32 v{A+1}, v{xsrc+(k>>1)}, v{xsrc+(k>>1)}, v{vSel[2*p+1]}")
            return A
        def flat_mfma(A, data, acc, first):
            a(f"v_mfma_f32_4x4x4_16b_bf16 {r4(acc)}, {r2(A)}, {r2(data)}, {'0' if first else r4(acc)}")
            a(f"v_mfma_f32_4x4x4_16b_bf16 {r4(acc+4)}, {r2(A)}, {r2(data+2)}, {'0' if first else r4(acc+4)}")
        self.wait("XGb")
        for k in range(12):
            A = flat_step(k, vXG, None, None, None)
            self.wait(f"G{k}")
            flat_mfma(A, dst[f"G{k}"], vAD, k == 0)
            fill(f"G{k}")
        a(f"""
        v_lshlrev_b32 v{vT}, 16, v{vGX}
        v_and_b32 v{vT+1}, 0xffff0000, v{vGX}
        v_lshlrev_b32 v{vT+2}, 16, v{vGX+1}
        v_and_b32 v{vT+3}, 0xffff0000, v{vGX+1}
        v_lshlrev_b32 v{vT+4}, 16, v{vGW}
        v_and_b32 v{vT+5}, 0xffff0000, v{vGW}
        v_lshlrev_b32 v{vT+6}, 16, v{vGW+1}
        v_and_b32 v{vT+7}, 0xffff0000, v{vGW+1}
        v_pk_mul_f32 {r2(vT)}, {r2(vT)}, {r2(vT+4)}
        v_pk_mul_f32 {r2(vT+2)}, {r2(vT+2)}, {r2(vT+6)}
        v_cvt_pk_bf16_f32 v{vT}, v{vT}, v{vT+1}
        v_cvt_pk_bf16_f32 v{vT+2}, v{vT+2}, v{vT+3}
        v_and_b32 v{vT+1}, 0xffff0000, v{vT}
        v_lshlrev_b32 v{vT}, 16, v{vT}
        v_and_b32 v{vT+3}, 0xffff0000, v{vT+2}
        v_lshlrev_b32 v{vT+2}, 16, v{vT+2}
        v_pk_add_f32 {r2(vT)}, {r2(vT)}, {r2(vT+2)}
        v_add_f32 v{vT}, v{vT}, v{vT+1}
        """)
        a(f"""
        v_mul_u32_u24 v{vRS}, 2304, v{vRS}
        v_lshl_add_u32 v{vCH}, v{vCH}, 5, v{vRS}
        """)
        for r in (1, 2, 4, 8): a(f"v_add_f32_dpp v{vT}, v{vT}, v{vT} row_ror:{r} row_mask:0xf bank_mask:0xf")
        a(f"""
        ds_write_b128 v{vCH}, {r4(vAD)} offset:{LG}
        ds_write_b128 v{vCH}, {r4(vAD+4)} offset:{LG+16}
        v_lshrrev_b32 v{vT+1}, 4, v0
        v_lshlrev_b32 v{vT+1}, 2, v{vT+1}
        ds_write_b32 v{vT+1}, v{vT} offset:{GS}
        s_waitcnt lgkmcnt(0)
        s_barrier
        """)
        def flat_reduce(base, voff, Lskip):
            a(f"""
            v_cmp_gt_u32 vcc, 144, v0
            s_and_saveexec_b64 s[4:5], vcc
            s_cbranch_execz {Lskip}
            ds_read_b128 {r4(vT)}, v{vV} offset:{base}
            ds_read_b128 {r4(vT+4)}, v{vV} offset:{base+2304}
            ds_read_b128 {r4(vT+8)}, v{vV} offset:{base+4608}
            s_waitcnt lgkmcnt(1)
            v_pk_add_f32 {r2(vT)}, {r2(vT)}, {r2(vT+4)}
            v_pk_add_f32 {r2(vT+2)}, {r2(vT+2)}, {r2(vT+6)}
            s_waitcnt lgkmcnt(0)
            v_pk_add_f32 {r2(vT)}, {r2(vT)}, {r2(vT+8)}
            v_pk_add_f32 {r2(vT+2)}, {r2(vT+2)}, {r2(vT+10)}
            """)
            tagins(vT)
            a(f"""
            buffer_store_dwordx4 {r4(vT)}, v{voff}, s[{SW}:{SW+3}], 0 offen sc1
            {Lskip}:
            s_mov_b64 exec, s[4:5]
            """)
        a(f"""
        s_mul_i32 s6, s{sLIN}, 2304
        s_add_u32 s6, s6, {GB}
        v_add_u32 v{vU}, s6, v{vV}
        """)
        flat_reduce(LG, vU, self.lab("gpub"))
        self.stamp()
        a(f"""
        v_mov_b32 v{vU}, 0
        ds_read_b128 {r4(vT)}, v{vU} offset:{GS}
        ds_read_b128 {r4(vT+4)}, v{vU} offset:{GS+16}
        ds_read_b128 {r4(vT+8)}, v{vU} offset:{GS+32}
        s_waitcnt lgkmcnt(0)
        v_pk_add_f32 {r2(vT)}, {r2(vT)}, {r2(vT+2)}
        v_pk_add_f32 {r2(vT+4)}, {r2(vT+4)}, {r2(vT+6)}
        v_pk_add_f32 {r2(vT+8)}, {r2(vT+8)}, {r2(vT+10)}
        v_pk_add_f32 {r2(vT)}, {r2(vT)}, {r2(vT+4)}
        v_pk_add_f32 {r2(vT)}, {r2(vT)}, {r2(vT+8)}
        v_add_f32 v{vT}, v{vT}, v{vT+1}
        v_cvt_pk_bf16_f32 v{vT}, v{vT}, v{vT}
        v_lshlrev_b32 v{vT}, 16, v{vT}
        v_mul_f32 v{vT}, {f2u(-1.4426950408889634):#x}, v{vT}
        v_exp_f32 v{vT}, v{vT}
        v_add_f32 v{vT}, 1.0, v{vT}
        v_rcp_f32 v{vT}, v{vT}
        v_cvt_pk_bf16_f32 v{vT}, v{vT}, v{vT}
        v_lshlrev_b32 v{vG}, 16, v{vT}
        v_sub_f32 v{vT}, 1.0, v{vG}
        v_cvt_pk_bf16_f32 v{vT}, v{vT}, v{vT}
        v_lshlrev_b32 v{vOMG}, 16, v{vT}
        """)
        qa = o["qpoll_after"]
        for k in range(qa + 1):
            if f"K{k}" in self.vm and self.ip < len(big):
                self.wait(f"K{k}")
            fill(f"K{k}")
        self.wait("QP")
        retry_loop("q", [f"buffer_load_dwordx4 {r4(vPoll)}, v{vQa}, s[{SW}:{SW+3}], 0 offen sc1"], [vPoll], vU)
        a(f"""
        ds_write_b128 v{vV}, {r4(vPoll)} offset:{QL}
        v_bfe_u32 v{vU}, v0, 3, 1
        v_lshlrev_b32 v{vU}, 9, v{vU}
        v_bfe_u32 v{vU+1}, v0, 4, 2
        v_lshl_add_u32 v{vU}, v{vU+1}, 7, v{vU}
        v_and_b32 v{vU+1}, 3, v0
        v_lshl_add_u32 v{vU}, v{vU+1}, 5, v{vU}
        s_waitcnt lgkmcnt(0)
        s_barrier
        """)
        qd = [vT, vT + 8, vU + 8, vU + 16]
        for k in range(4):
            a(f"ds_read_b128 {r4(qd[k])}, v{vU} offset:{QL+1024*k}")
            a(f"ds_read_b128 {r4(qd[k]+4)}, v{vU} offset:{QL+1024*k+16}")
        a("s_waitcnt lgkmcnt(4)")
        for i in range(0, 8, 2): a(f"v_pk_add_f32 {r2(qd[0]+i)}, {r2(qd[0]+i)}, {r2(qd[1]+i)}")
        a("s_waitcnt lgkmcnt(0)")
        for i in range(0, 8, 2): a(f"v_pk_add_f32 {r2(qd[2]+i)}, {r2(qd[2]+i)}, {r2(qd[3]+i)}")
        for i in range(0, 8, 2): a(f"v_pk_add_f32 {r2(qd[0]+i)}, {r2(qd[0]+i)}, {r2(qd[2]+i)}")
        for i in range(4): a(f"v_cvt_pk_bf16_f32 v{vBq+i}, v{qd[0]+2*i}, v{qd[0]+2*i+1}")
        self.stamp()
        def qk_mfma(t):
            D = vT + 4 * (t % 4)
            a(f"v_mfma_f32_16x16x32_bf16 {r4(D)}, {r4(dst[f'K{t}'])}, {r4(vBq)}, 0")
        def qk_fin(t):
            D = vT + 4 * (t % 4)
            a(f"v_mov_b32_dpp v{vS+t}, v{D} quad_perm:[0,0,0,0] row_mask:0xf bank_mask:0xf")
            for u in range(1, 4):
                a(f"v_add_f32_dpp v{vS+t}, v{D+u}, v{vS+t} quad_perm:[{u},{u},{u},{u}] row_mask:0xf bank_mask:0xf")
        for t in range(16):
            if t > qa:
                self.wait(f"K{t}")
            qk_mfma(t)
            if t > qa: fill(f"K{t}")
            if t >= 2: qk_fin(t - 2)
        qk_fin(14); qk_fin(15)
        if o["round_scores"]:
            a(f"s_mov_b32 s{sC}, {f2u(128 ** -0.5):#x}")
            for t in range(0, 16, 2):
                a(f"""
                v_cvt_pk_bf16_f32 v{vT}, v{vS+t}, v{vS+t+1}
                v_lshlrev_b32 v{vS+t}, 16, v{vT}
                v_and_b32 v{vS+t+1}, 0xffff0000, v{vT}
                v_mul_f32 v{vS+t}, s{sC}, v{vS+t}
                v_mul_f32 v{vS+t+1}, s{sC}, v{vS+t+1}
                v_cvt_pk_bf16_f32 v{vT}, v{vS+t}, v{vS+t+1}
                v_lshlrev_b32 v{vS+t}, 16, v{vT}
                v_and_b32 v{vS+t+1}, 0xffff0000, v{vT}
                """)
            cexp = 1.4426950408889634
        else:
            cexp = 128 ** -0.5 * 1.4426950408889634
        a(f"s_mov_b32 s{sC}, {f2u(cexp):#x}")
        a(f"v_max3_f32 v{vT}, v{vS}, v{vS+1}, v{vS+2}")
        for t in range(3, 15, 2): a(f"v_max3_f32 v{vT}, v{vT}, v{vS+t}, v{vS+t+1}")
        a(f"v_max_f32 v{vT}, v{vT}, v{vS+15}")
        a(f"""
        v_bfe_u32 v{vU}, v0, 3, 1
        v_lshlrev_b32 v{vU}, 6, v{vU}
        v_lshrrev_b32 v{vU+1}, 4, v0
        v_lshl_add_u32 v{vK}, v{vU+1}, 2, v{vU}
        ds_write_b32 v{vK}, v{vT} offset:{MX}
        s_waitcnt lgkmcnt(0)
        s_barrier
        """)
        for i in range(4): a(f"ds_read_b128 {r4(vT+4*i)}, v{vU} offset:{MX+16*i}")
        a("s_waitcnt lgkmcnt(0)")
        a(f"v_max3_f32 v{vT}, v{vT}, v{vT+1}, v{vT+2}")
        for t in range(3, 15, 2): a(f"v_max3_f32 v{vT}, v{vT}, v{vT+t}, v{vT+t+1}")
        a(f"v_max_f32 v{vXQ}, v{vT}, v{vT+15}")
        a(f"v_and_b32 v{vXQ}, v{vXQ}, v{vTM}")
        a(f"v_mul_f32 v{vXQ+1}, s{sC}, v{vXQ}")
        for t in range(16): a(f"v_fma_f32 v{vS+t}, v{vS+t}, s{sC}, -v{vXQ+1}")
        for t in range(16): a(f"v_exp_f32 v{vS+t}, v{vS+t}")
        a(f"v_pk_add_f32 {r2(vT)}, {r2(vS)}, {r2(vS+2)}")
        for t in range(4, 16, 2): a(f"v_pk_add_f32 {r2(vT)}, {r2(vT)}, {r2(vS+t)}")
        a(f"v_add_f32 v{vT}, v{vT}, v{vT+1}")
        a(f"ds_write_b32 v{vK}, v{vT} offset:{LS}")
        for t in range(16): a(f"v_cvt_pk_bf16_f32 v{vS+t}, v{vS+t}, v{vS+t}")
        self.stamp()
        ha = o["hpoll_after"]
        for t in range(16):
            B = vT + 4 * (t % 2)
            for j in range(4): a(f"v_and_b32 v{B+j}, v{vS+t}, v{vM[j]}")
            self.wait(f"V{t}")
            a(f"v_mfma_f32_16x16x32_bf16 {r4(vAcc)}, {r4(dst[f'V{t}'])}, {r4(B)}, {'0' if t == 0 else r4(vAcc)}")
            fill(f"V{t}")
            if t == ha:
                self.wait("HPL")
                retry_loop("h", [f"buffer_load_dwordx4 {r4(vAO)}, v{vQb}, s[{SW}:{SW+3}], 0 offen sc1"], [vAO], vU)
                for i in range(4): a(f"v_add_f32_dpp v{vAO+i}, v{vAO+i}, v{vAO+i} quad_perm:[2,3,0,1] row_mask:0xf bank_mask:0xf")
                for i in range(4): a(f"v_add_f32_dpp v{vAO+i}, v{vAO+i}, v{vAO+i} row_shl:4 row_mask:0xf bank_mask:0xf")
                a(f"""
                v_and_b32 v{vU}, 7, v0
                v_cmp_gt_u32 vcc, 2, v{vU}
                v_mul_u32_u24 v{vU}, 96, v{vU}
                v_lshrrev_b32 v{vU+1}, 3, v{vL}
                v_min_u32 v{vU+1}, 5, v{vU+1}
                v_lshl_add_u32 v{vU}, v{vU+1}, 4, v{vU}
                s_mul_i32 s4, s{sJ}, 192
                s_add_u32 s4, s4, {HP}
                v_add_u32 v{vU}, s4, v{vU}
                v_mov_b32 v{vU+1}, {QL}
                v_cndmask_b32 v{vU}, v{vU+1}, v{vU}, vcc
                ds_write_b128 v{vU}, {r4(vAO)}
                s_waitcnt lgkmcnt(0)
                s_barrier
                """)
                Lh = self.lab("hfin")
                a(f"""
                s_cmp_lg_u32 s{sJ}, 1
                s_cbranch_scc1 {Lh}
                s_mov_b64 exec, 0x3ffff
                s_bfe_u32 s4, s2, 0x10003
                s_lshl_b32 s4, s4, 3
                v_lshl_add_u32 v{vU}, v{vL}, 2, s4
                """)
                for jj in range(4):
                    a(f"ds_read2_b32 {r2(vU+2+2*jj)}, v{vU} offset0:{(HP+192*jj)//4 - HP//4} offset1:{(192*jj+96)//4}".replace(f"v{vU} ", f"v{vU+1} "))
                idx = len(self.l) - 4
                self.l.insert(idx, f"    v_add_u32 v{vU+1}, {HP}, v{vU}")
                a(f"""
                s_waitcnt lgkmcnt(0)
                v_pk_add_f32 {r2(vU+2)}, {r2(vU+2)}, {r2(vU+4)}
                v_pk_add_f32 {r2(vU+6)}, {r2(vU+6)}, {r2(vU+8)}
                v_pk_add_f32 {r2(vU+2)}, {r2(vU+2)}, {r2(vU+6)}
                v_cvt_pk_bf16_f32 v{vU+2}, v{vU+2}, v{vU+3}
                v_and_b32 v{vU+3}, 0xffff0000, v{vU+2}
                v_lshlrev_b32 v{vU+2}, 16, v{vU+2}
                v_max_f32 v{vU+2}, 0, v{vU+2}
                v_mul_f32 v{vU+2}, v{vU+2}, v{vU+3}
                v_cvt_pk_bf16_f32 v{vU+2}, v{vU+2}, v{vU+2}
                v_lshlrev_b32 v{vU}, 1, v{vL}
                ds_write_b16 v{vU}, v{vU+2} offset:{HL}
                s_mov_b64 exec, -1
                {Lh}:
                """)
        a(f"""
        v_bfe_u32 v{vU}, v0, 3, 1
        v_lshlrev_b32 v{vU}, 9, v{vU}
        v_bfe_u32 v{vU+1}, v0, 4, 2
        v_lshl_add_u32 v{vU}, v{vU+1}, 7, v{vU}
        v_and_b32 v{vU+1}, 7, v0
        v_lshl_add_u32 v{vU}, v{vU+1}, 2, v{vU}
        v_lshl_add_u32 v{vU}, v{vJ}, 10, v{vU}
        """)
        for i in range(4): a(f"ds_write_b32 v{vU}, v{vAcc+i} offset:{OW+32*i}")
        a(f"""
        s_waitcnt lgkmcnt(0)
        s_barrier
        """)
        self.stamp()
        Lo1 = self.lab("opub")
        a(f"""
        s_lshl_b32 s6, s{sG}, 4
        s_cmp_lg_u32 s{sJ}, 0
        s_cbranch_scc1 {Lo1}
        """)
        for jj in range(4): a(f"ds_read_b128 {r4(vT+4*jj)}, v{vV} offset:{OW+1024*jj}")
        a(f"""
        v_bfe_u32 v{vU}, v0, 3, 1
        v_lshlrev_b32 v{vU}, 6, v{vU}
        """)
        for i in range(4): a(f"ds_read_b128 {r4(vU+4+4*i)}, v{vU} offset:{LS+16*i}")
        a(f"""
        s_add_u32 s4, s6, s{sS}
        s_mul_i32 s4, s4, 1152
        s_add_u32 s4, s4, {OB}
        v_add_u32 v{vU}, s4, v{vV}
        s_waitcnt lgkmcnt(4)
        v_pk_add_f32 {r2(vT)}, {r2(vT)}, {r2(vT+4)}
        v_pk_add_f32 {r2(vT+2)}, {r2(vT+2)}, {r2(vT+6)}
        v_pk_add_f32 {r2(vT+8)}, {r2(vT+8)}, {r2(vT+12)}
        v_pk_add_f32 {r2(vT+10)}, {r2(vT+10)}, {r2(vT+14)}
        v_pk_add_f32 {r2(vT)}, {r2(vT)}, {r2(vT+8)}
        v_pk_add_f32 {r2(vT+2)}, {r2(vT+2)}, {r2(vT+10)}
        """)
        tagins(vT)
        a(f"""
        buffer_store_dwordx4 {r4(vT)}, v{vU}, s[{SW}:{SW+3}], 0 offen sc1
        s_waitcnt lgkmcnt(0)
        """)
        for i in range(2, 16, 2): a(f"v_pk_add_f32 {r2(vU+4)}, {r2(vU+4)}, {r2(vU+4+i)}")
        a(f"""
        v_add_f32 v{vT+5}, v{vU+4}, v{vU+5}
        v_mov_b32 v{vT+4}, v{vXQ}
        v_mov_b32_dpp v{vT+6}, v{vXQ} row_shl:8 row_mask:0xf bank_mask:0xf
        v_mov_b32_dpp v{vT+7}, v{vT+5} row_shl:8 row_mask:0xf bank_mask:0xf
        """)
        tagins(vT + 4)
        a(f"""
        s_mov_b64 exec, 1
        buffer_store_dwordx4 {r4(vT+4)}, v{vU}, s[{SW}:{SW+3}], 0 offen offset:1024 sc1
        s_mov_b64 exec, -1
        {Lo1}:
        """)
        a(f"""
        s_mul_i32 s4, s6, 1152
        s_add_u32 s4, s4, {OB}
        v_and_b32 v{vQa}, 15, v0
        v_mul_u32_u24 v{vQa}, 1152, v{vQa}
        v_add_u32 v{vQa}, s4, v{vQa}
        v_bfe_u32 v{vQb}, v0, 4, 2
        v_lshl_add_u32 v{vQb}, s{sS}, 2, v{vQb}
        v_lshl_add_u32 v{vQb}, v{vQb}, 4, v{vQa}
        """)
        oloads = [f"buffer_load_dwordx4 {r4(vPoll)}, v{vQb}, s[{SW}:{SW+3}], 0 offen sc1",
                  f"buffer_load_dwordx4 {r4(vAcc)}, v{vQa}, s[{SW}:{SW+3}], 0 offen offset:1024 sc1"]
        a(f"""
        v_mul_u32_u24 v{vU}, 911, v0
        v_lshrrev_b32 v{vU}, 16, v{vU}
        v_mul_u32_u24 v{vRS}, 12, v{vU}
        v_add_u32 v{vU}, {HL}, v{vRS}
        ds_read2_b32 {r2(vXG)}, v{vU} offset0:0 offset1:1
        ds_read_b32 v{vXG+2}, v{vU} offset:8
        s_waitcnt lgkmcnt(0)
        """)
        while self.ip < len(big): issue_next()
        for k in range(6):
            A = flat_step(k, vXG, None, None, None)
            self.wait(f"D{k}")
            flat_mfma(A, dst[f"D{k}"], vAD, k == 0)
        Lo2 = self.lab("ocons")
        a(f"""
        s_cmp_lg_u32 s{sJ}, 1
        s_cbranch_scc1 {Lo2}
        """)
        for ld in oloads: a(ld)
        a("s_waitcnt vmcnt(0)")
        retry_loop("o", oloads, [vPoll, vAcc], vU)
        a(f"""
        s_cmp_ge_u32 s{sS}, 8
        s_cselect_b64 vcc, -1, 0
        v_cndmask_b32 v{vT}, v{vAcc}, v{vAcc+2}, vcc
        v_cndmask_b32 v{vT+1}, v{vAcc+1}, v{vAcc+3}, vcc
        v_and_b32 v{vT}, v{vT}, v{vTM}
        v_max_f32_dpp v{vT+2}, v{vT}, v{vT} row_ror:1 row_mask:0xf bank_mask:0xf
        """)
        for r in (2, 4, 8): a(f"v_max_f32_dpp v{vT+2}, v{vT+2}, v{vT+2} row_ror:{r} row_mask:0xf bank_mask:0xf")
        a(f"""
        v_sub_f32 v{vT}, v{vT}, v{vT+2}
        v_mul_f32 v{vT}, s{sC}, v{vT}
        v_exp_f32 v{vT}, v{vT}
        v_mul_f32 v{vT+1}, v{vT}, v{vT+1}
        """)
        for i in range(4): a(f"v_mul_f32 v{vPoll+i}, v{vT}, v{vPoll+i}")
        for r in (1, 2, 4, 8):
            a(f"v_add_f32_dpp v{vT+1}, v{vT+1}, v{vT+1} row_ror:{r} row_mask:0xf bank_mask:0xf")
            for i in range(4): a(f"v_add_f32_dpp v{vPoll+i}, v{vPoll+i}, v{vPoll+i} row_ror:{r} row_mask:0xf bank_mask:0xf")
        a(f"v_rcp_f32 v{vT+1}, v{vT+1}")
        for i in range(4): a(f"v_mul_f32 v{vPoll+i}, v{vT+1}, v{vPoll+i}")
        a(f"""
        v_cvt_pk_bf16_f32 v{vT+2}, v{vPoll}, v{vPoll+1}
        v_cvt_pk_bf16_f32 v{vT+3}, v{vPoll+2}, v{vPoll+3}
        v_lshrrev_b32 v{vU}, 4, v{vL}
        v_lshlrev_b32 v{vU}, 3, v{vU}
        ds_write_b64 v{vU}, {r2(vT+2)} offset:{OL}
        {Lo2}:
        """)
        for i in range(0, 8): a(f"v_mul_f32 v{vAD+i}, v{vOMG}, v{vAD+i}")
        a(f"""
        v_add_u32 v{vU+4}, {OL}, v{vRS}
        s_waitcnt lgkmcnt(0)
        s_barrier
        ds_read2_b32 {r2(vXG)}, v{vU+4} offset0:0 offset1:1
        ds_read_b32 v{vXG+2}, v{vU+4} offset:8
        """)
        a(f"""
        v_lshrrev_b32 v{vQa}, {CG.bit_length()-1}, v0
        v_mul_u32_u24 v{vQa}, {256*CG*16}, v{vQa}
        v_and_b32 v{vQb}, {CG-1}, v0
        v_lshl_add_u32 v{vQa}, v{vQb}, 4, v{vQa}
        s_mul_i32 s4, s2, {CG*16}
        s_add_u32 s4, s4, {FB}
        v_add_u32 v{vQa}, s4, v{vQa}
        s_waitcnt lgkmcnt(0)
        """)
        for k in range(6):
            A = flat_step(k, vXG, None, None, None)
            self.wait(f"O{k}")
            flat_mfma(A, dst[f"O{k}"], vAO, k == 0)
        for i in range(8): a(f"v_fma_f32 v{vAD+i}, v{vG}, v{vAO+i}, v{vAD+i}")
        a(f"""
        ds_write_b128 v{vCH}, {r4(vAD)} offset:{LF}
        ds_write_b128 v{vCH}, {r4(vAD+4)} offset:{LF+16}
        s_waitcnt lgkmcnt(0)
        s_barrier
        """)
        flat_reduce(LF, vQa, self.lab("fpub"))
        self.stamp() if self.nst < 7 else None
        a(f"""
        s_cmp_ge_u32 s2, {R}
        s_cbranch_scc1 L_fin
        """)
        assert CG == 4
        a(f"""
        s_mul_i32 s4, s2, {256*CG*16}
        s_add_u32 s4, s4, {FB}
        v_and_b32 v{vQa}, 15, v0
        v_lshlrev_b32 v{vQa}, 6, v{vQa}
        v_bfe_u32 v{vQb}, v0, 4, 2
        v_lshl_add_u32 v{vQa}, v{vQb}, 4, v{vQa}
        v_lshl_add_u32 v{vQa}, v{vJ}, 10, v{vQa}
        v_add_u32 v{vQa}, s4, v{vQa}
        s_movk_i32 s33, 0x1000
        s_movk_i32 s34, 0x2000
        s_movk_i32 s35, 0x3000
        """)
        floads = [f"buffer_load_dwordx4 {r4(R1+4*k)}, v{vQa}, s[{SW}:{SW+3}], {'0' if k == 0 else f's{32+k}'} offen sc1" for k in range(4)]
        for ld in floads: a(ld)
        a("s_waitcnt vmcnt(0)")
        retry_loop("f", floads, [R1 + 4 * k for k in range(4)], vU)
        a(f"""
        v_pk_add_f32 {r2(R1)}, {r2(R1)}, {r2(R1+4)}
        v_pk_add_f32 {r2(R1+2)}, {r2(R1+2)}, {r2(R1+6)}
        v_pk_add_f32 {r2(R1+8)}, {r2(R1+8)}, {r2(R1+12)}
        v_pk_add_f32 {r2(R1+10)}, {r2(R1+10)}, {r2(R1+14)}
        v_pk_add_f32 {r2(R1)}, {r2(R1)}, {r2(R1+8)}
        v_pk_add_f32 {r2(R1+2)}, {r2(R1+2)}, {r2(R1+10)}
        """)
        for r in (1, 2, 4, 8):
            for i in range(4): a(f"v_add_f32_dpp v{R1+i}, v{R1+i}, v{R1+i} row_ror:{r} row_mask:0xf bank_mask:0xf")
        a(f"""
        v_lshrrev_b32 v{vU}, 4, v0
        v_lshlrev_b32 v{vU}, 4, v{vU}
        ds_write_b128 v{vU}, {r4(R1)} offset:{RD}
        s_waitcnt lgkmcnt(0)
        s_barrier
        s_cmp_lg_u32 s{sJ}, 0
        s_cbranch_scc1 L_fin
        s_mov_b64 exec, 15
        """)
        for jj in range(4): a(f"ds_read_b128 {r4(vT+4*jj)}, v{vV} offset:{RD+64*jj}")
        a(f"""
        s_mov_b32 s{SX}, s56
        s_mov_b32 s{SX+1}, s57
        s_lshl_b32 s4, s2, 5
        v_lshl_add_u32 v{vU}, v0, 3, s4
        s_waitcnt lgkmcnt(0)
        v_pk_add_f32 {r2(vT)}, {r2(vT)}, {r2(vT+4)}
        v_pk_add_f32 {r2(vT+2)}, {r2(vT+2)}, {r2(vT+6)}
        v_pk_add_f32 {r2(vT+8)}, {r2(vT+8)}, {r2(vT+12)}
        v_pk_add_f32 {r2(vT+10)}, {r2(vT+10)}, {r2(vT+14)}
        v_pk_add_f32 {r2(vT)}, {r2(vT)}, {r2(vT+8)}
        v_pk_add_f32 {r2(vT+2)}, {r2(vT+2)}, {r2(vT+10)}
        v_cvt_pk_bf16_f32 v{vT}, v{vT}, v{vT+1}
        v_cvt_pk_bf16_f32 v{vT+1}, v{vT+2}, v{vT+3}
        buffer_store_dwordx2 {r2(vT)}, v{vU}, s[{SX}:{SX+3}], 0 offen
        s_cmp_lg_u32 s2, 0
        s_cbranch_scc1 L_fin
        s_mov_b64 exec, 1
        v_mov_b32 v{vT+4}, s{sTAG}
        v_mov_b32 v{vT+5}, 0
        buffer_store_dword v{vT+4}, v{vT+5}, s[{SW}:{SW+3}], 0 offen sc1
        L_fin:
        """)
        if o["stamps"] and o["dbgst"]:
            self.nst = 7; self.stamp()
            a(f"""
            s_waitcnt lgkmcnt(0)
            s_mov_b64 exec, 1
            v_mov_b32 v4, 0
            s_not_b32 s4, s16
            v_mov_b32 v2, s4
            global_atomic_umax v4, v2, s[58:59]
            """)
            for j in range(8):
                a(f"""
                v_mov_b32 v{5+j}, s{16+2*j}
                global_atomic_umax v4, v{5+j}, s[58:59] offset:{4+4*j}
                """)
        elif o["stamps"]:
            self.nst = 7; self.stamp()
            a(f"""
            s_waitcnt lgkmcnt(0)
            s_lshl_b32 s4, s2, 2
            s_add_u32 s4, s4, s{sJ}
            s_lshl_b32 s4, s4, 6
            s_add_u32 s4, s4, {STAMP_OFF - o['wsoff']:#x}
            s_add_u32 s6, s60, s4
            s_addc_u32 s7, s61, 0
            s_mov_b64 exec, 1
            v_mov_b32 v4, 0
            """)
            for j in range(8):
                a(f"""
                v_mov_b32 v2, s{16+2*j}
                v_mov_b32 v3, s{17+2*j}
                global_store_dwordx2 v4, v[2:3], s[6:7] offset:{8*j}
                s_nop 1
                """)
        a("L_end:")
        a("s_endpgm")
        body = "\n".join(fix(self.l)) + "\n"
        head = open("cdna_kernels/" + KN + ".s.ref").read().split("; Override launch")[0]
        return head + f"""; @launch grid=(256,1,1) block=(256,1,1) lds={o['lds']}
.amdgcn_target "amdgcn-amd-amdhsa--gfx950"
.text
.globl {KN}_kernel
.p2align 8
.type {KN}_kernel,@function
{KN}_kernel:
""" + body + f""".section .rodata,"a"
.p2align 6
.amdhsa_kernel {KN}_kernel
  .amdhsa_next_free_vgpr 256
  .amdhsa_next_free_sgpr 102
  .amdhsa_accum_offset 256
  .amdhsa_group_segment_fixed_size 0
  .amdhsa_kernarg_size 104
  .amdhsa_user_sgpr_count 2
  .amdhsa_user_sgpr_kernarg_segment_ptr 1
  .amdhsa_system_sgpr_workgroup_id_x 1
.end_amdhsa_kernel
"""

if __name__ == "__main__":
    out = sys.argv[1]
    opt = {}
    for kv in sys.argv[2:]:
        k, v = kv.split("=")
        opt[k] = eval(v)
    open(out, "w").write(Gen(**opt).build())
```

```python
import sys, struct
from hazard import fix
KN = "gated_mix__sliding_block_cached__glu_gated_reglu__decode"
STAMP_OFF = 0x30000000

def f2u(x): return struct.unpack("<I", struct.pack("<f", x))[0]

class Gen:
    def __init__(self, **opt):
        self.o = dict(W=10, stamps=False, wsoff=0, qpoll_after=8, hpoll_after=3, R=36, round_scores=True,
                      prefetch=0, jitter=0, hold=0, dbgst=False, lds=90112, nt="nt", spin=20000)
        self.o.update(opt)
        self.l = []
        self.vm = []
        self.nl = 0
        self.nst = 0
    def a(self, s):
        for x in s.strip().split("\n"):
            x = x.strip()
            if not x: continue
            self.l.append(x if x.endswith(":") else "    " + x)
    def lab(self, p):
        self.nl += 1
        return f"L_{p}{self.nl}"
    def issue(self, label, s):
        self.a(s); self.vm.append(label)
    def wait(self, label):
        n = len(self.vm) - 1 - self.vm.index(label)
        assert n <= 63
        self.a(f"s_waitcnt vmcnt({n})")
    def stamp(self):
        if self.o["stamps"]:
            assert self.nst < 8
            r = 16 + 2 * self.nst
            self.a(f"s_memrealtime s[{r}:{r+1}]")
            self.nst += 1

    def build(self):
        o = self.o; a = self.a; nt = o["nt"]; W = o["W"]
        assert W <= 16
        QB, GB, OB, FB = 0x1000, 0x20000, 0xB0000, 0x100000
        R = o["R"]; CG = 144 // R
        LQ, LG, QL, MX, LS, GS, HP, HL, OL, OW, LF, RD = 0, 2048, 11264, 15360, 15488, 15616, 15744, 16512, 16576, 16640, 20736, 29952
        vL = 1; vM = [2, 3, 4, 5]; vSel = [6, 7, 8, 9]
        vQa, vQb, vGU, vK, vV, vP3, vP3b, vTM = 10, 11, 12, 13, 14, 15, 16, 17
        vXQ, vXQb, vXG, vGX, vGW = 18, 20, 22, 28, 30
        vS = 32; vBq = 48; vAcc = 52; vAD = 56; vAO = 64; vT = 72; vPoll = 92
        R1 = 100; R2 = 168; vU = 232
        vRS, vCH, vG, vOMG, vJ = 21, 96, 97, 98, 99
        dst = {}
        for i in range(5): dst[f"Q{i}"] = R1 + 4 * i
        for i in range(12): dst[f"G{i}"] = R1 + 20 + 4 * i
        for i in range(16): dst[f"K{i}"] = R2 + 4 * i; dst[f"V{i}"] = R1 + 4 * i
        for i in range(6): dst[f"D{i}"] = R2 + 4 * i; dst[f"O{i}"] = R2 + 24 + 4 * i
        big = [f"Q{i}" for i in range(5)] + [f"G{i}" for i in range(12)] + [f"K{i}" for i in range(16)] + \
              [f"V{i}" for i in range(16)] + [f"D{i}" for i in range(6)] + [f"O{i}" for i in range(6)]
        sTAG = 62; sJ = 3; sXCD, sG, sS = 8, 9, 10; sLIN = 12
        sKV = 13; sGU = 14; sC = 15
        SQ, SGU, SK, SV, SD, SO, SX, SGW, SW = 64, 68, 72, 76, 80, 84, 88, 92, 96
        def r4(v): return f"v[{v}:{v+3}]"
        def r2(v): return f"v[{v}:{v+1}]"
        self.ip = 0
        def issue_next():
            lb = big[self.ip]; self.ip += 1
            d = r4(dst[lb]); k = int(lb[1:]); c = lb[0]
            if c == "Q":
                if k == 0: self.issue(lb, f"buffer_load_dwordx4 {d}, v{vQa}, s[{SQ}:{SQ+3}], 0 offen {nt}")
                elif k < 4: self.issue(lb, f"buffer_load_dwordx4 {d}, v{vQa}, s[{SQ}:{SQ+3}], s{32+k} offen {nt}")
                else: self.issue(lb, f"buffer_load_dwordx4 {d}, v{vQb}, s[{SQ}:{SQ+3}], 0 offen {nt}")
            elif c == "G":
                if k == 0: a(f"s_mov_b32 s{sGU}, 0")
                else: a(f"s_addk_i32 s{sGU}, 9216")
                self.issue(lb, f"buffer_load_dwordx4 {d}, v{vGU}, s[{SGU}:{SGU+3}], s{sGU} offen {nt}")
            elif c in "KV":
                if k == 0: a(f"s_mov_b32 s{sKV}, 0")
                else: a(f"s_addk_i32 s{sKV}, 4096")
                sr, vo = (SK, vK) if c == "K" else (SV, vV)
                self.issue(lb, f"buffer_load_dwordx4 {d}, v{vo}, s[{sr}:{sr+3}], s{sKV} offen {nt}")
                if c == "K" and k == o["qpoll_after"]:
                    self.issue("QP", f"buffer_load_dwordx4 {r4(vPoll)}, v{vQa}, s[{SW}:{SW+3}], 0 offen sc1")
                if c == "V" and k == o["hpoll_after"]:
                    self.issue("HPL", f"buffer_load_dwordx4 {r4(vAO)}, v{vQb}, s[{SW}:{SW+3}], 0 offen sc1")
            else:
                sr = SD if c == "D" else SO
                vo, im = (vP3, k * 1152) if k < 4 else (vP3b, (k - 4) * 1152)
                self.issue(lb, f"buffer_load_dwordx4 {d}, v{vo}, s[{sr}:{sr+3}], 0 offen offset:{im} {nt}")
        def fill(upto_label, extra=0):
            idx = big.index(upto_label)
            while self.ip < len(big) and self.ip <= idx + W + extra:
                issue_next()
        def tagins(v):
            for i in range(4): a(f"v_and_or_b32 v{v+i}, v{v+i}, v{vTM}, s{sTAG}")
        def tagchk(vs, acc, first=True):
            for v in vs:
                for i in range(4):
                    if first: a(f"v_xor_b32 v{acc}, s{sTAG}, v{v+i}"); first = False
                    else: a(f"v_bitop3_b32 v{acc}, v{v+i}, s{sTAG}, v{acc} bitop3:0xbe")
            a(f"v_and_b32 v{acc}, 0xff, v{acc}")
        def retry_loop(name, loads, vs, acc, lanemask=None):
            Lok = self.lab(name + "ok"); Lre = self.lab(name + "re")
            def chk():
                tagchk(vs, acc)
                a(f"v_cmp_ne_u32 vcc, 0, v{acc}")
                if lanemask is not None:
                    a(f"s_and_b64 vcc, vcc, s[{lanemask}:{lanemask+1}]")
            chk()
            a(f"s_cbranch_vccz {Lok}")
            a(f"s_mov_b32 s7, {o['spin']}")
            a(f"{Lre}:")
            for ld in loads: a(ld)
            a("s_waitcnt vmcnt(0)")
            chk()
            a(f"s_cbranch_vccz {Lok}")
            a("s_sub_u32 s7, s7, 1")
            a("s_cmp_lg_u32 s7, 0")
            a(f"s_cbranch_scc1 {Lre}")
            a(f"{Lok}:")

        self.stamp()
        if o["hold"]: a("s_memrealtime s[16:17]")
        JIT = ""
        if o["jitter"]:
            JIT = f"""s_mul_i32 s4, s2, 0x9e3779b1
            s_lshr_b32 s4, s4, {32-o["jitter"]}
            L_jit:
            s_cmp_eq_u32 s4, 0
            s_cbranch_scc1 L_jitd
            s_sleep 40
            s_sub_u32 s4, s4, 1
            s_branch L_jit
            L_jitd:"""
        a(f"""
        s_cmp_ge_u32 s2, 0x100
        s_cbranch_scc1 L_end
        {JIT}
        s_load_dwordx16 s[36:51], s[0:1], 0
        s_load_dwordx8 s[52:59], s[0:1], 64
        s_load_dwordx2 s[60:61], s[0:1], 96
        s_and_b32 s{sXCD}, s2, 7
        s_bfe_u32 s{sG}, s2, 0x10003
        s_lshl1_add_u32 s{sG}, s{sXCD}, s{sG}
        s_lshr_b32 s{sS}, s2, 4
        s_lshr_b32 s11, s2, 6
        s_mul_i32 s4, s11, {144*8192}
        s_lshl_b32 s5, s{sG}, 9
        s_add_u32 s4, s4, s5
        s_and_b32 s5, s{sS}, 3
        s_lshl_b32 s5, s5, 7
        s_add_u32 s4, s4, s5
        v_lshrrev_b32 v{vT}, 3, v0
        v_and_b32 v{vT+1}, 7, v0
        v_lshlrev_b32 v{vT+1}, 4, v{vT+1}
        v_lshl_add_u32 v{vQa}, v{vT}, 15, v{vT+1}
        v_lshl_add_u32 v{vQb}, v{vT}, 13, v{vT+1}
        v_add_u32 v{vQb}, {128*8192}, v{vQb}
        s_mov_b32 s{SQ+2}, {143*8192+128}
        s_mov_b32 s{SQ+3}, 0x20000
        s_movk_i32 s33, 0x2000
        s_movk_i32 s34, 0x4000
        s_movk_i32 s35, 0x6000
        s_waitcnt lgkmcnt(0)
        s_add_u32 s{SQ}, s42, s4
        s_addc_u32 s{SQ+1}, s43, 0
        """)
        for i in range(5): issue_next()
        a(f"""
        s_add_u32 s60, s60, {o['wsoff']:#x}
        s_addc_u32 s61, s61, 0
        s_load_dword s{sTAG}, s[60:61], 0
        s_mov_b32 s{SX}, s36
        s_mov_b32 s{SX+1}, s37
        s_movk_i32 s{SX+2}, 1152
        s_mov_b32 s{SX+3}, 0x20000
        s_mul_i32 s5, s11, 288
        v_lshl_add_u32 v{vT+2}, v{vT}, 3, s5
        v_lshl_add_u32 v{vT+3}, v{vT}, 1, s5
        """)
        self.issue("XQa", f"buffer_load_dwordx2 {r2(vXQ)}, v{vT+2}, s[{SX}:{SX+3}], 0 offen")
        self.issue("XQb", f"buffer_load_ushort v{vXQb}, v{vT+3}, s[{SX}:{SX+3}], 0 offen offset:256")
        a(f"""
        s_bitcmp1_b32 s2, 3
        s_cselect_b32 s{SGU}, s50, s48
        s_cselect_b32 s{SGU+1}, s51, s49
        s_mul_i32 s4, s{sS}, {36*9216}
        s_mul_i32 s5, s{sXCD}, 1152
        s_add_u32 s4, s4, s5
        s_add_u32 s{SGU}, s{SGU}, s4
        s_addc_u32 s{SGU+1}, s{SGU+1}, 0
        s_mov_b32 s{SGU+2}, {35*9216+1152}
        s_mov_b32 s{SGU+3}, 0x20000
        v_mul_u32_u24 v{vRS}, 911, v0
        v_lshrrev_b32 v{vRS}, 16, v{vRS}
        v_mul_u32_u24 v{vCH}, 72, v{vRS}
        v_sub_u32 v{vCH}, v0, v{vCH}
        v_mul_u32_u24 v{vGU}, {12*9216}, v{vRS}
        v_lshl_add_u32 v{vGU}, v{vCH}, 4, v{vGU}
        s_mul_i32 s5, s{sS}, 72
        v_mul_u32_u24 v{vT+2}, 24, v{vRS}
        v_add_u32 v{vT+2}, s5, v{vT+2}
        """)
        self.issue("XGa", f"buffer_load_dwordx4 {r4(vXG)}, v{vT+2}, s[{SX}:{SX+3}], 0 offen")
        self.issue("XGb", f"buffer_load_dwordx2 {r2(vXG+4)}, v{vT+2}, s[{SX}:{SX+3}], 0 offen offset:16")
        for i in range(4): issue_next()
        a(f"""
        s_mov_b32 s{SGW}, s54
        s_mov_b32 s{SGW+1}, s55
        s_movk_i32 s{SGW+2}, 1152
        s_mov_b32 s{SGW+3}, 0x20000
        v_lshlrev_b32 v{vT+2}, 3, v0
        """)
        self.issue("GX", f"buffer_load_dwordx2 {r2(vGX)}, v{vT+2}, s[{SX}:{SX+3}], 0 offen")
        self.issue("GW", f"buffer_load_dwordx2 {r2(vGW)}, v{vT+2}, s[{SGW}:{SGW+3}], 0 offen")
        if o["prefetch"]:
            a(f"""
            s_getpc_b64 s[4:5]
            v_lshlrev_b32 v{vT+2}, 4, v0
            """)
            for i in range(o["prefetch"]):
                if i: a(f"v_add_u32 v{vT+2}, 4096, v{vT+2}")
                self.issue(f"PF{i}", f"global_load_dwordx4 {r4(vPoll)}, v{vT+2}, s[4:5]")
        a(f"""
        s_lshl_b32 s4, s{sG}, 24
        s_lshl_b32 s5, s{sS}, 16
        s_add_u32 s4, s4, s5
        s_add_u32 s4, s4, {61440*256}
        s_add_u32 s{SK}, s38, s4
        s_addc_u32 s{SK+1}, s39, 0
        s_mov_b32 s{SK+2}, 0x10000
        s_mov_b32 s{SK+3}, 0x20000
        s_add_u32 s{SV}, s40, s4
        s_addc_u32 s{SV+1}, s41, 0
        s_mov_b32 s{SV+2}, 0x10000
        s_mov_b32 s{SV+3}, 0x20000
        s_lshr_b32 s4, s2, 3
        s_lshl_b32 s{sLIN}, s{sXCD}, 5
        s_add_u32 s{sLIN}, s{sLIN}, s4
        s_mul_i32 s4, s{sLIN}, {18*1152}
        s_add_u32 s{SD}, s52, s4
        s_addc_u32 s{SD+1}, s53, 0
        s_movk_i32 s{SD+2}, {18*1152}
        s_mov_b32 s{SD+3}, 0x20000
        s_lshl_b32 s4, s{sG}, 4
        s_add_u32 s4, s4, s{sS}
        s_mul_i32 s4, s4, {16*1152}
        s_add_u32 s{SO}, s44, s4
        s_addc_u32 s{SO+1}, s45, 0
        s_movk_i32 s{SO+2}, {16*1152}
        s_mov_b32 s{SO+3}, 0x20000
        s_mov_b32 s{SW}, s60
        s_mov_b32 s{SW+1}, s61
        s_mov_b32 s{SW+2}, 0x200000
        s_mov_b32 s{SW+3}, 0x20000
        v_and_b32 v{vL}, 63, v0
        v_lshrrev_b32 v{vJ}, 6, v0
        v_lshlrev_b32 v{vV}, 4, v0
        v_readfirstlane_b32 s{sJ}, v{vJ}
        v_and_b32 v{vT}, 3, v0
        v_lshlrev_b32 v{vT}, 4, v{vT}
        v_bfe_u32 v{vT+1}, v0, 2, 2
        v_lshl_add_u32 v{vT}, v{vT+1}, 8, v{vT}
        v_bfe_u32 v{vT+1}, v0, 4, 2
        v_lshl_add_u32 v{vT}, v{vT+1}, 6, v{vT}
        v_lshl_add_u32 v{vK}, v{vJ}, 10, v{vT}
        v_mul_u32_u24 v{vP3}, {6*1152}, v{vRS}
        v_lshl_add_u32 v{vP3}, v{vCH}, 4, v{vP3}
        v_add_u32 v{vP3b}, 4608, v{vP3}
        v_mov_b32 v{vTM}, 0xffffff00
        v_and_b32 v{vT}, 1, v0
        v_lshlrev_b32 v{vT}, 4, v{vT}
        v_mov_b32 v{vT+1}, 0xffff
        v_lshlrev_b32 v{vT}, v{vT}, v{vT+1}
        v_bfe_u32 v{vT+1}, v0, 1, 2
        v_cmp_eq_u32 s[4:5], 0, v{vT+1}
        v_cmp_eq_u32 s[6:7], 1, v{vT+1}
        v_cndmask_b32 v{vM[0]}, 0, v{vT}, s[4:5]
        v_cndmask_b32 v{vM[1]}, 0, v{vT}, s[6:7]
        v_cmp_eq_u32 s[4:5], 2, v{vT+1}
        v_cmp_eq_u32 s[6:7], 3, v{vT+1}
        v_cndmask_b32 v{vM[2]}, 0, v{vT}, s[4:5]
        v_cndmask_b32 v{vM[3]}, 0, v{vT}, s[6:7]
        v_or_b32 v{vT}, v{vM[0]}, v{vM[2]}
        v_or_b32 v{vT+1}, v{vM[1]}, v{vM[3]}
        v_mov_b32 v{vT+2}, 0x0c0c0c0c
        s_mov_b32 s32, 0x01000100
        s_mov_b32 s63, 0x03020302
        v_bfi_b32 v{vSel[0]}, v{vT}, s32, v{vT+2}
        v_bfi_b32 v{vSel[1]}, v{vT+1}, s32, v{vT+2}
        v_bfi_b32 v{vSel[2]}, v{vT}, s63, v{vT+2}
        v_bfi_b32 v{vSel[3]}, v{vT+1}, s63, v{vT+2}
        """)
        a(f"""
        v_lshlrev_b32 v{vT}, 2, v{vL}
        v_and_b32 v{vT}, 0x7c, v{vT}
        v_mov_b32 v{vT+1}, 0
        ds_write_b32 v{vT}, v{vT+1} offset:{HL}
        """)
        fill("Q0", -1)
        self.stamp()
        self.wait("XQb")
        for t in range(5):
            src = vXQ + (t >> 1) if t < 4 else vXQb
            sel = "s63" if (t < 4 and t & 1) else "s32"
            a(f"v_perm_b32 v{vU}, v{src}, v{src}, {sel}")
            for j in range(4): a(f"v_and_b32 v{vT+4*t+j}, v{vU}, v{vM[j]}")
        for t in range(5):
            c = "0" if t == 0 else r4(vAcc)
            a(f"v_mfma_f32_16x16x32_bf16 {r4(vAcc)}, {r4(dst[f'Q{t}'])}, {r4(vT+4*t)}, {c}")
        fill("Q4")
        a(f"""
        v_bfe_u32 v{vU}, v0, 3, 1
        v_bfe_u32 v{vU+1}, v0, 5, 1
        v_cmp_eq_u32 vcc, v{vU}, v{vU+1}
        v_lshrrev_b32 v{vU}, 5, v0
        v_lshlrev_b32 v{vU}, 8, v{vU}
        v_bfe_u32 v{vU+1}, v0, 4, 1
        v_lshl_add_u32 v{vU}, v{vU+1}, 7, v{vU}
        v_and_b32 v{vU+1}, 7, v0
        v_lshl_add_u32 v{vU}, v{vU+1}, 2, v{vU}
        v_mov_b32 v{vU+1}, {QL}
        v_cndmask_b32 v{vU}, v{vU+1}, v{vU}, vcc
        """)
        for i in range(4): a(f"ds_write_b32 v{vU}, v{vAcc+i} offset:{LQ+32*i}")
        a(f"""
        s_waitcnt lgkmcnt(0)
        s_barrier
        s_add_u32 s{sTAG}, s{sTAG}, 1
        s_and_b32 s{sTAG}, s{sTAG}, 0xff
        """)
        Lq = self.lab("qpub")
        a(f"""
        s_cmp_lg_u32 s{sJ}, 0
        s_cbranch_scc1 {Lq}
        s_mov_b64 exec, 0xffff
        v_lshlrev_b32 v{vU}, 4, v{vL}
        """)
        for p in range(8): a(f"ds_read_b128 {r4(vT+4*p) if p < 5 else r4(vU+4+4*(p-5))}, v{vU} offset:{LQ+256*p}")
        a(f"""
        s_lshl_b32 s4, s{sG}, 12
        s_lshl_b32 s5, s{sS}, 8
        s_add_u32 s4, s4, s5
        s_add_u32 s4, s4, {QB}
        v_add_u32 v{vU}, s4, v{vU}
        s_waitcnt lgkmcnt(0)
        """)
        for p in range(1, 8):
            src = vT + 4 * p if p < 5 else vU + 4 + 4 * (p - 5)
            a(f"v_pk_add_f32 {r2(vT)}, {r2(vT)}, {r2(src)}")
            a(f"v_pk_add_f32 {r2(vT+2)}, {r2(vT+2)}, {r2(src+2)}")
        tagins(vT)
        a(f"""
        buffer_store_dwordx4 {r4(vT)}, v{vU}, s[{SW}:{SW+3}], 0 offen sc1
        s_mov_b64 exec, -1
        {Lq}:
        """)
        self.stamp()
        a(f"""
        s_lshl_b32 s4, s{sG}, 12
        s_add_u32 s4, s4, {QB}
        v_add_u32 v{vQa}, s4, v{vV}
        s_lshr_b32 s4, s2, 3
        s_mul_i32 s4, s4, 9
        s_lshr_b32 s4, s4, 1
        s_lshl_b32 s4, s4, 4
        s_mul_i32 s5, s{sXCD}, {32*2304}
        s_add_u32 s4, s4, s5
        s_mul_i32 s5, s{sJ}, {8*2304}
        s_add_u32 s4, s4, s5
        s_add_u32 s4, s4, {GB}
        v_and_b32 v{vU}, 7, v0
        v_mul_u32_u24 v{vU}, 2304, v{vU}
        v_lshrrev_b32 v{vU+1}, 3, v{vL}
        v_min_u32 v{vU+1}, 4, v{vU+1}
        v_lshl_add_u32 v{vU}, v{vU+1}, 4, v{vU}
        v_add_u32 v{vQb}, s4, v{vU}
        """)
        def flat_step(k, xsrc, data, acc, first):
            p = k & 1
            A = vU + 2 * (k & 1)
            a(f"v_perm_b32 v{A}, v{xsrc+(k>>1)}, v{xsrc+(k>>1)}, v{vSel[2*p]}")
            a(f"v_perm_b32 v{A+1}, v{xsrc+(k>>1)}, v{xsrc+(k>>1)}, v{vSel[2*p+1]}")
            return A
        def flat_mfma(A, data, acc, first):
            a(f"v_mfma_f32_4x4x4_16b_bf16 {r4(acc)}, {r2(A)}, {r2(data)}, {'0' if first else r4(acc)}")
            a(f"v_mfma_f32_4x4x4_16b_bf16 {r4(acc+4)}, {r2(A)}, {r2(data+2)}, {'0' if first else r4(acc+4)}")
        self.wait("XGb")
        for k in range(12):
            A = flat_step(k, vXG, None, None, None)
            self.wait(f"G{k}")
            flat_mfma(A, dst[f"G{k}"], vAD, k == 0)
            fill(f"G{k}")
        a(f"""
        v_lshlrev_b32 v{vT}, 16, v{vGX}
        v_and_b32 v{vT+1}, 0xffff0000, v{vGX}
        v_lshlrev_b32 v{vT+2}, 16, v{vGX+1}
        v_and_b32 v{vT+3}, 0xffff0000, v{vGX+1}
        v_lshlrev_b32 v{vT+4}, 16, v{vGW}
        v_and_b32 v{vT+5}, 0xffff0000, v{vGW}
        v_lshlrev_b32 v{vT+6}, 16, v{vGW+1}
        v_and_b32 v{vT+7}, 0xffff0000, v{vGW+1}
        v_pk_mul_f32 {r2(vT)}, {r2(vT)}, {r2(vT+4)}
        v_pk_mul_f32 {r2(vT+2)}, {r2(vT+2)}, {r2(vT+6)}
        v_cvt_pk_bf16_f32 v{vT}, v{vT}, v{vT+1}
        v_cvt_pk_bf16_f32 v{vT+2}, v{vT+2}, v{vT+3}
        v_and_b32 v{vT+1}, 0xffff0000, v{vT}
        v_lshlrev_b32 v{vT}, 16, v{vT}
        v_and_b32 v{vT+3}, 0xffff0000, v{vT+2}
        v_lshlrev_b32 v{vT+2}, 16, v{vT+2}
        v_pk_add_f32 {r2(vT)}, {r2(vT)}, {r2(vT+2)}
        v_add_f32 v{vT}, v{vT}, v{vT+1}
        """)
        a(f"""
        v_mul_u32_u24 v{vRS}, 2304, v{vRS}
        v_lshl_add_u32 v{vCH}, v{vCH}, 5, v{vRS}
        """)
        for r in (1, 2, 4, 8): a(f"v_add_f32_dpp v{vT}, v{vT}, v{vT} row_ror:{r} row_mask:0xf bank_mask:0xf")
        a(f"""
        ds_write_b128 v{vCH}, {r4(vAD)} offset:{LG}
        ds_write_b128 v{vCH}, {r4(vAD+4)} offset:{LG+16}
        v_lshrrev_b32 v{vT+1}, 4, v0
        v_lshlrev_b32 v{vT+1}, 2, v{vT+1}
        ds_write_b32 v{vT+1}, v{vT} offset:{GS}
        s_waitcnt lgkmcnt(0)
        s_barrier
        """)
        def flat_reduce(base, voff, Lskip):
            a(f"""
            v_cmp_gt_u32 vcc, 144, v0
            s_and_saveexec_b64 s[4:5], vcc
            s_cbranch_execz {Lskip}
            ds_read_b128 {r4(vT)}, v{vV} offset:{base}
            ds_read_b128 {r4(vT+4)}, v{vV} offset:{base+2304}
            ds_read_b128 {r4(vT+8)}, v{vV} offset:{base+4608}
            s_waitcnt lgkmcnt(1)
            v_pk_add_f32 {r2(vT)}, {r2(vT)}, {r2(vT+4)}
            v_pk_add_f32 {r2(vT+2)}, {r2(vT+2)}, {r2(vT+6)}
            s_waitcnt lgkmcnt(0)
            v_pk_add_f32 {r2(vT)}, {r2(vT)}, {r2(vT+8)}
            v_pk_add_f32 {r2(vT+2)}, {r2(vT+2)}, {r2(vT+10)}
            """)
            tagins(vT)
            a(f"""
            buffer_store_dwordx4 {r4(vT)}, v{voff}, s[{SW}:{SW+3}], 0 offen sc1
            {Lskip}:
            s_mov_b64 exec, s[4:5]
            """)
        a(f"""
        s_mul_i32 s6, s{sLIN}, 2304
        s_add_u32 s6, s6, {GB}
        v_add_u32 v{vU}, s6, v{vV}
        """)
        flat_reduce(LG, vU, self.lab("gpub"))
        self.stamp()
        a(f"""
        v_mov_b32 v{vU}, 0
        ds_read_b128 {r4(vT)}, v{vU} offset:{GS}
        ds_read_b128 {r4(vT+4)}, v{vU} offset:{GS+16}
        ds_read_b128 {r4(vT+8)}, v{vU} offset:{GS+32}
        s_waitcnt lgkmcnt(0)
        v_pk_add_f32 {r2(vT)}, {r2(vT)}, {r2(vT+2)}
        v_pk_add_f32 {r2(vT+4)}, {r2(vT+4)}, {r2(vT+6)}
        v_pk_add_f32 {r2(vT+8)}, {r2(vT+8)}, {r2(vT+10)}
        v_pk_add_f32 {r2(vT)}, {r2(vT)}, {r2(vT+4)}
        v_pk_add_f32 {r2(vT)}, {r2(vT)}, {r2(vT+8)}
        v_add_f32 v{vT}, v{vT}, v{vT+1}
        v_cvt_pk_bf16_f32 v{vT}, v{vT}, v{vT}
        v_lshlrev_b32 v{vT}, 16, v{vT}
        v_mul_f32 v{vT}, {f2u(-1.4426950408889634):#x}, v{vT}
        v_exp_f32 v{vT}, v{vT}
        v_add_f32 v{vT}, 1.0, v{vT}
        v_rcp_f32 v{vT}, v{vT}
        v_cvt_pk_bf16_f32 v{vT}, v{vT}, v{vT}
        v_lshlrev_b32 v{vG}, 16, v{vT}
        v_sub_f32 v{vT}, 1.0, v{vG}
        v_cvt_pk_bf16_f32 v{vT}, v{vT}, v{vT}
        v_lshlrev_b32 v{vOMG}, 16, v{vT}
        """)
        qa = o["qpoll_after"]
        for k in range(qa + 1):
            if f"K{k}" in self.vm and self.ip < len(big):
                self.wait(f"K{k}")
            fill(f"K{k}")
        self.wait("QP")
        retry_loop("q", [f"buffer_load_dwordx4 {r4(vPoll)}, v{vQa}, s[{SW}:{SW+3}], 0 offen sc1"], [vPoll], vU)
        a(f"""
        ds_write_b128 v{vV}, {r4(vPoll)} offset:{QL}
        v_bfe_u32 v{vU}, v0, 3, 1
        v_lshlrev_b32 v{vU}, 9, v{vU}
        v_bfe_u32 v{vU+1}, v0, 4, 2
        v_lshl_add_u32 v{vU}, v{vU+1}, 7, v{vU}
        v_and_b32 v{vU+1}, 3, v0
        v_lshl_add_u32 v{vU}, v{vU+1}, 5, v{vU}
        s_waitcnt lgkmcnt(0)
        s_barrier
        """)
        qd = [vT, vT + 8, vU + 8, vU + 16]
        for k in range(4):
            a(f"ds_read_b128 {r4(qd[k])}, v{vU} offset:{QL+1024*k}")
            a(f"ds_read_b128 {r4(qd[k]+4)}, v{vU} offset:{QL+1024*k+16}")
        a("s_waitcnt lgkmcnt(4)")
        for i in range(0, 8, 2): a(f"v_pk_add_f32 {r2(qd[0]+i)}, {r2(qd[0]+i)}, {r2(qd[1]+i)}")
        a("s_waitcnt lgkmcnt(0)")
        for i in range(0, 8, 2): a(f"v_pk_add_f32 {r2(qd[2]+i)}, {r2(qd[2]+i)}, {r2(qd[3]+i)}")
        for i in range(0, 8, 2): a(f"v_pk_add_f32 {r2(qd[0]+i)}, {r2(qd[0]+i)}, {r2(qd[2]+i)}")
        for i in range(4): a(f"v_cvt_pk_bf16_f32 v{vBq+i}, v{qd[0]+2*i}, v{qd[0]+2*i+1}")
        self.stamp()
        def qk_mfma(t):
            D = vT + 4 * (t % 4)
            a(f"v_mfma_f32_16x16x32_bf16 {r4(D)}, {r4(dst[f'K{t}'])}, {r4(vBq)}, 0")
        def qk_fin(t):
            D = vT + 4 * (t % 4)
            a(f"v_mov_b32_dpp v{vS+t}, v{D} quad_perm:[0,0,0,0] row_mask:0xf bank_mask:0xf")
            for u in range(1, 4):
                a(f"v_add_f32_dpp v{vS+t}, v{D+u}, v{vS+t} quad_perm:[{u},{u},{u},{u}] row_mask:0xf bank_mask:0xf")
        for t in range(16):
            if t > qa:
                self.wait(f"K{t}")
            qk_mfma(t)
            if t > qa: fill(f"K{t}")
            if t >= 2: qk_fin(t - 2)
        qk_fin(14); qk_fin(15)
        if o["round_scores"]:
            a(f"s_mov_b32 s{sC}, {f2u(128 ** -0.5):#x}")
            for t in range(0, 16, 2):
                a(f"""
                v_cvt_pk_bf16_f32 v{vT}, v{vS+t}, v{vS+t+1}
                v_lshlrev_b32 v{vS+t}, 16, v{vT}
                v_and_b32 v{vS+t+1}, 0xffff0000, v{vT}
                v_mul_f32 v{vS+t}, s{sC}, v{vS+t}
                v_mul_f32 v{vS+t+1}, s{sC}, v{vS+t+1}
                v_cvt_pk_bf16_f32 v{vT}, v{vS+t}, v{vS+t+1}
                v_lshlrev_b32 v{vS+t}, 16, v{vT}
                v_and_b32 v{vS+t+1}, 0xffff0000, v{vT}
                """)
            cexp = 1.4426950408889634
        else:
            cexp = 128 ** -0.5 * 1.4426950408889634
        a(f"s_mov_b32 s{sC}, {f2u(cexp):#x}")
        a(f"v_max3_f32 v{vT}, v{vS}, v{vS+1}, v{vS+2}")
        for t in range(3, 15, 2): a(f"v_max3_f32 v{vT}, v{vT}, v{vS+t}, v{vS+t+1}")
        a(f"v_max_f32 v{vT}, v{vT}, v{vS+15}")
        a(f"""
        v_bfe_u32 v{vU}, v0, 3, 1
        v_lshlrev_b32 v{vU}, 6, v{vU}
        v_lshrrev_b32 v{vU+1}, 4, v0
        v_lshl_add_u32 v{vK}, v{vU+1}, 2, v{vU}
        ds_write_b32 v{vK}, v{vT} offset:{MX}
        s_waitcnt lgkmcnt(0)
        s_barrier
        """)
        for i in range(4): a(f"ds_read_b128 {r4(vT+4*i)}, v{vU} offset:{MX+16*i}")
        a("s_waitcnt lgkmcnt(0)")
        a(f"v_max3_f32 v{vT}, v{vT}, v{vT+1}, v{vT+2}")
        for t in range(3, 15, 2): a(f"v_max3_f32 v{vT}, v{vT}, v{vT+t}, v{vT+t+1}")
        a(f"v_max_f32 v{vXQ}, v{vT}, v{vT+15}")
        a(f"v_and_b32 v{vXQ}, v{vXQ}, v{vTM}")
        a(f"v_mul_f32 v{vXQ+1}, s{sC}, v{vXQ}")
        for t in range(16): a(f"v_fma_f32 v{vS+t}, v{vS+t}, s{sC}, -v{vXQ+1}")
        for t in range(16): a(f"v_exp_f32 v{vS+t}, v{vS+t}")
        a(f"v_pk_add_f32 {r2(vT)}, {r2(vS)}, {r2(vS+2)}")
        for t in range(4, 16, 2): a(f"v_pk_add_f32 {r2(vT)}, {r2(vT)}, {r2(vS+t)}")
        a(f"v_add_f32 v{vT}, v{vT}, v{vT+1}")
        a(f"ds_write_b32 v{vK}, v{vT} offset:{LS}")
        for t in range(16): a(f"v_cvt_pk_bf16_f32 v{vS+t}, v{vS+t}, v{vS+t}")
        self.stamp()
        ha = o["hpoll_after"]
        for t in range(16):
            B = vT + 4 * (t % 2)
            for j in range(4): a(f"v_and_b32 v{B+j}, v{vS+t}, v{vM[j]}")
            self.wait(f"V{t}")
            a(f"v_mfma_f32_16x16x32_bf16 {r4(vAcc)}, {r4(dst[f'V{t}'])}, {r4(B)}, {'0' if t == 0 else r4(vAcc)}")
            fill(f"V{t}")
            if t == ha:
                self.wait("HPL")
                retry_loop("h", [f"buffer_load_dwordx4 {r4(vAO)}, v{vQb}, s[{SW}:{SW+3}], 0 offen sc1"], [vAO], vU)
                for i in range(4): a(f"v_add_f32_dpp v{vAO+i}, v{vAO+i}, v{vAO+i} quad_perm:[2,3,0,1] row_mask:0xf bank_mask:0xf")
                for i in range(4): a(f"v_add_f32_dpp v{vAO+i}, v{vAO+i}, v{vAO+i} row_shl:4 row_mask:0xf bank_mask:0xf")
                a(f"""
                v_and_b32 v{vU}, 7, v0
                v_cmp_gt_u32 vcc, 2, v{vU}
                v_mul_u32_u24 v{vU}, 96, v{vU}
                v_lshrrev_b32 v{vU+1}, 3, v{vL}
                v_min_u32 v{vU+1}, 5, v{vU+1}
                v_lshl_add_u32 v{vU}, v{vU+1}, 4, v{vU}
                s_mul_i32 s4, s{sJ}, 192
                s_add_u32 s4, s4, {HP}
                v_add_u32 v{vU}, s4, v{vU}
                v_mov_b32 v{vU+1}, {QL}
                v_cndmask_b32 v{vU}, v{vU+1}, v{vU}, vcc
                ds_write_b128 v{vU}, {r4(vAO)}
                s_waitcnt lgkmcnt(0)
                s_barrier
                """)
                Lh = self.lab("hfin")
                a(f"""
                s_cmp_lg_u32 s{sJ}, 1
                s_cbranch_scc1 {Lh}
                s_mov_b64 exec, 0x3ffff
                s_bfe_u32 s4, s2, 0x10003
                s_lshl_b32 s4, s4, 3
                v_lshl_add_u32 v{vU}, v{vL}, 2, s4
                """)
                for jj in range(4):
                    a(f"ds_read2_b32 {r2(vU+2+2*jj)}, v{vU} offset0:{(HP+192*jj)//4 - HP//4} offset1:{(192*jj+96)//4}".replace(f"v{vU} ", f"v{vU+1} "))
                idx = len(self.l) - 4
                self.l.insert(idx, f"    v_add_u32 v{vU+1}, {HP}, v{vU}")
                a(f"""
                s_waitcnt lgkmcnt(0)
                v_pk_add_f32 {r2(vU+2)}, {r2(vU+2)}, {r2(vU+4)}
                v_pk_add_f32 {r2(vU+6)}, {r2(vU+6)}, {r2(vU+8)}
                v_pk_add_f32 {r2(vU+2)}, {r2(vU+2)}, {r2(vU+6)}
                v_cvt_pk_bf16_f32 v{vU+2}, v{vU+2}, v{vU+3}
                v_and_b32 v{vU+3}, 0xffff0000, v{vU+2}
                v_lshlrev_b32 v{vU+2}, 16, v{vU+2}
                v_max_f32 v{vU+2}, 0, v{vU+2}
                v_mul_f32 v{vU+2}, v{vU+2}, v{vU+3}
                v_cvt_pk_bf16_f32 v{vU+2}, v{vU+2}, v{vU+2}
                v_lshlrev_b32 v{vU}, 1, v{vL}
                ds_write_b16 v{vU}, v{vU+2} offset:{HL}
                s_mov_b64 exec, -1
                {Lh}:
                """)
        a(f"""
        v_bfe_u32 v{vU}, v0, 3, 1
        v_lshlrev_b32 v{vU}, 9, v{vU}
        v_bfe_u32 v{vU+1}, v0, 4, 2
        v_lshl_add_u32 v{vU}, v{vU+1}, 7, v{vU}
        v_and_b32 v{vU+1}, 7, v0
        v_lshl_add_u32 v{vU}, v{vU+1}, 2, v{vU}
        v_lshl_add_u32 v{vU}, v{vJ}, 10, v{vU}
        """)
        for i in range(4): a(f"ds_write_b32 v{vU}, v{vAcc+i} offset:{OW+32*i}")
        a(f"""
        s_waitcnt lgkmcnt(0)
        s_barrier
        """)
        self.stamp()
        Lo1 = self.lab("opub")
        a(f"""
        s_lshl_b32 s6, s{sG}, 4
        s_cmp_lg_u32 s{sJ}, 0
        s_cbranch_scc1 {Lo1}
        """)
        for jj in range(4): a(f"ds_read_b128 {r4(vT+4*jj)}, v{vV} offset:{OW+1024*jj}")
        a(f"""
        v_bfe_u32 v{vU}, v0, 3, 1
        v_lshlrev_b32 v{vU}, 6, v{vU}
        """)
        for i in range(4): a(f"ds_read_b128 {r4(vU+4+4*i)}, v{vU} offset:{LS+16*i}")
        a(f"""
        s_add_u32 s4, s6, s{sS}
        s_mul_i32 s4, s4, 1152
        s_add_u32 s4, s4, {OB}
        v_add_u32 v{vU}, s4, v{vV}
        s_waitcnt lgkmcnt(4)
        v_pk_add_f32 {r2(vT)}, {r2(vT)}, {r2(vT+4)}
        v_pk_add_f32 {r2(vT+2)}, {r2(vT+2)}, {r2(vT+6)}
        v_pk_add_f32 {r2(vT+8)}, {r2(vT+8)}, {r2(vT+12)}
        v_pk_add_f32 {r2(vT+10)}, {r2(vT+10)}, {r2(vT+14)}
        v_pk_add_f32 {r2(vT)}, {r2(vT)}, {r2(vT+8)}
        v_pk_add_f32 {r2(vT+2)}, {r2(vT+2)}, {r2(vT+10)}
        """)
        tagins(vT)
        a(f"""
        buffer_store_dwordx4 {r4(vT)}, v{vU}, s[{SW}:{SW+3}], 0 offen sc1
        s_waitcnt lgkmcnt(0)
        """)
        for i in range(2, 16, 2): a(f"v_pk_add_f32 {r2(vU+4)}, {r2(vU+4)}, {r2(vU+4+i)}")
        a(f"""
        v_add_f32 v{vT+5}, v{vU+4}, v{vU+5}
        v_mov_b32 v{vT+4}, v{vXQ}
        v_mov_b32_dpp v{vT+6}, v{vXQ} row_shl:8 row_mask:0xf bank_mask:0xf
        v_mov_b32_dpp v{vT+7}, v{vT+5} row_shl:8 row_mask:0xf bank_mask:0xf
        """)
        tagins(vT + 4)
        a(f"""
        s_mov_b64 exec, 1
        buffer_store_dwordx4 {r4(vT+4)}, v{vU}, s[{SW}:{SW+3}], 0 offen offset:1024 sc1
        s_mov_b64 exec, -1
        {Lo1}:
        """)
        a(f"""
        s_mul_i32 s4, s6, 1152
        s_add_u32 s4, s4, {OB}
        v_and_b32 v{vQa}, 15, v0
        v_mul_u32_u24 v{vQa}, 1152, v{vQa}
        v_add_u32 v{vQa}, s4, v{vQa}
        v_bfe_u32 v{vQb}, v0, 4, 2
        v_lshl_add_u32 v{vQb}, s{sS}, 2, v{vQb}
        v_lshl_add_u32 v{vQb}, v{vQb}, 4, v{vQa}
        """)
        oloads = [f"buffer_load_dwordx4 {r4(vPoll)}, v{vQb}, s[{SW}:{SW+3}], 0 offen sc1",
                  f"buffer_load_dwordx4 {r4(vAcc)}, v{vQa}, s[{SW}:{SW+3}], 0 offen offset:1024 sc1"]
        a(f"""
        v_mul_u32_u24 v{vU}, 911, v0
        v_lshrrev_b32 v{vU}, 16, v{vU}
        v_mul_u32_u24 v{vRS}, 12, v{vU}
        v_add_u32 v{vU}, {HL}, v{vRS}
        ds_read2_b32 {r2(vXG)}, v{vU} offset0:0 offset1:1
        ds_read_b32 v{vXG+2}, v{vU} offset:8
        s_waitcnt lgkmcnt(0)
        """)
        while self.ip < len(big): issue_next()
        for k in range(6):
            A = flat_step(k, vXG, None, None, None)
            self.wait(f"D{k}")
            flat_mfma(A, dst[f"D{k}"], vAD, k == 0)
        Lo2 = self.lab("ocons")
        a(f"""
        s_cmp_lg_u32 s{sJ}, 1
        s_cbranch_scc1 {Lo2}
        """)
        for ld in oloads: a(ld)
        a("s_waitcnt vmcnt(0)")
        retry_loop("o", oloads, [vPoll, vAcc], vU)
        a(f"""
        s_cmp_ge_u32 s{sS}, 8
        s_cselect_b64 vcc, -1, 0
        v_cndmask_b32 v{vT}, v{vAcc}, v{vAcc+2}, vcc
        v_cndmask_b32 v{vT+1}, v{vAcc+1}, v{vAcc+3}, vcc
        v_and_b32 v{vT}, v{vT}, v{vTM}
        v_max_f32_dpp v{vT+2}, v{vT}, v{vT} row_ror:1 row_mask:0xf bank_mask:0xf
        """)
        for r in (2, 4, 8): a(f"v_max_f32_dpp v{vT+2}, v{vT+2}, v{vT+2} row_ror:{r} row_mask:0xf bank_mask:0xf")
        a(f"""
        v_sub_f32 v{vT}, v{vT}, v{vT+2}
        v_mul_f32 v{vT}, s{sC}, v{vT}
        v_exp_f32 v{vT}, v{vT}
        v_mul_f32 v{vT+1}, v{vT}, v{vT+1}
        """)
        for i in range(4): a(f"v_mul_f32 v{vPoll+i}, v{vT}, v{vPoll+i}")
        for r in (1, 2, 4, 8):
            a(f"v_add_f32_dpp v{vT+1}, v{vT+1}, v{vT+1} row_ror:{r} row_mask:0xf bank_mask:0xf")
            for i in range(4): a(f"v_add_f32_dpp v{vPoll+i}, v{vPoll+i}, v{vPoll+i} row_ror:{r} row_mask:0xf bank_mask:0xf")
        a(f"v_rcp_f32 v{vT+1}, v{vT+1}")
        for i in range(4): a(f"v_mul_f32 v{vPoll+i}, v{vT+1}, v{vPoll+i}")
        a(f"""
        v_cvt_pk_bf16_f32 v{vT+2}, v{vPoll}, v{vPoll+1}
        v_cvt_pk_bf16_f32 v{vT+3}, v{vPoll+2}, v{vPoll+3}
        v_lshrrev_b32 v{vU}, 4, v{vL}
        v_lshlrev_b32 v{vU}, 3, v{vU}
        ds_write_b64 v{vU}, {r2(vT+2)} offset:{OL}
        {Lo2}:
        """)
        for i in range(0, 8): a(f"v_mul_f32 v{vAD+i}, v{vOMG}, v{vAD+i}")
        a(f"""
        v_add_u32 v{vU+4}, {OL}, v{vRS}
        s_waitcnt lgkmcnt(0)
        s_barrier
        ds_read2_b32 {r2(vXG)}, v{vU+4} offset0:0 offset1:1
        ds_read_b32 v{vXG+2}, v{vU+4} offset:8
        """)
        a(f"""
        v_lshrrev_b32 v{vQa}, {CG.bit_length()-1}, v0
        v_mul_u32_u24 v{vQa}, {256*CG*16}, v{vQa}
        v_and_b32 v{vQb}, {CG-1}, v0
        v_lshl_add_u32 v{vQa}, v{vQb}, 4, v{vQa}
        s_mul_i32 s4, s2, {CG*16}
        s_add_u32 s4, s4, {FB}
        v_add_u32 v{vQa}, s4, v{vQa}
        s_waitcnt lgkmcnt(0)
        """)
        for k in range(6):
            A = flat_step(k, vXG, None, None, None)
            self.wait(f"O{k}")
            flat_mfma(A, dst[f"O{k}"], vAO, k == 0)
        for i in range(8): a(f"v_fma_f32 v{vAD+i}, v{vG}, v{vAO+i}, v{vAD+i}")
        a(f"""
        ds_write_b128 v{vCH}, {r4(vAD)} offset:{LF}
        ds_write_b128 v{vCH}, {r4(vAD+4)} offset:{LF+16}
        s_waitcnt lgkmcnt(0)
        s_barrier
        """)
        flat_reduce(LF, vQa, self.lab("fpub"))
        self.stamp() if self.nst < 7 else None
        a(f"""
        s_cmp_ge_u32 s2, {R}
        s_cbranch_scc1 L_fin
        """)
        assert CG == 4
        a(f"""
        s_mul_i32 s4, s2, {256*CG*16}
        s_add_u32 s4, s4, {FB}
        v_and_b32 v{vQa}, 15, v0
        v_lshlrev_b32 v{vQa}, 6, v{vQa}
        v_bfe_u32 v{vQb}, v0, 4, 2
        v_lshl_add_u32 v{vQa}, v{vQb}, 4, v{vQa}
        v_lshl_add_u32 v{vQa}, v{vJ}, 10, v{vQa}
        v_add_u32 v{vQa}, s4, v{vQa}
        s_movk_i32 s33, 0x1000
        s_movk_i32 s34, 0x2000
        s_movk_i32 s35, 0x3000
        """)
        floads = [f"buffer_load_dwordx4 {r4(R1+4*k)}, v{vQa}, s[{SW}:{SW+3}], {'0' if k == 0 else f's{32+k}'} offen sc1" for k in range(4)]
        for ld in floads: a(ld)
        a("s_waitcnt vmcnt(0)")
        retry_loop("f", floads, [R1 + 4 * k for k in range(4)], vU)
        a(f"""
        v_pk_add_f32 {r2(R1)}, {r2(R1)}, {r2(R1+4)}
        v_pk_add_f32 {r2(R1+2)}, {r2(R1+2)}, {r2(R1+6)}
        v_pk_add_f32 {r2(R1+8)}, {r2(R1+8)}, {r2(R1+12)}
        v_pk_add_f32 {r2(R1+10)}, {r2(R1+10)}, {r2(R1+14)}
        v_pk_add_f32 {r2(R1)}, {r2(R1)}, {r2(R1+8)}
        v_pk_add_f32 {r2(R1+2)}, {r2(R1+2)}, {r2(R1+10)}
        """)
        for r in (1, 2, 4, 8):
            for i in range(4): a(f"v_add_f32_dpp v{R1+i}, v{R1+i}, v{R1+i} row_ror:{r} row_mask:0xf bank_mask:0xf")
        a(f"""
        v_lshrrev_b32 v{vU}, 4, v0
        v_lshlrev_b32 v{vU}, 4, v{vU}
        ds_write_b128 v{vU}, {r4(R1)} offset:{RD}
        s_waitcnt lgkmcnt(0)
        s_barrier
        s_cmp_lg_u32 s{sJ}, 0
        s_cbranch_scc1 L_fin
        s_mov_b64 exec, 15
        """)
        for jj in range(4): a(f"ds_read_b128 {r4(vT+4*jj)}, v{vV} offset:{RD+64*jj}")
        a(f"""
        s_mov_b32 s{SX}, s56
        s_mov_b32 s{SX+1}, s57
        s_lshl_b32 s4, s2, 5
        v_lshl_add_u32 v{vU}, v0, 3, s4
        s_waitcnt lgkmcnt(0)
        v_pk_add_f32 {r2(vT)}, {r2(vT)}, {r2(vT+4)}
        v_pk_add_f32 {r2(vT+2)}, {r2(vT+2)}, {r2(vT+6)}
        v_pk_add_f32 {r2(vT+8)}, {r2(vT+8)}, {r2(vT+12)}
        v_pk_add_f32 {r2(vT+10)}, {r2(vT+10)}, {r2(vT+14)}
        v_pk_add_f32 {r2(vT)}, {r2(vT)}, {r2(vT+8)}
        v_pk_add_f32 {r2(vT+2)}, {r2(vT+2)}, {r2(vT+10)}
        v_cvt_pk_bf16_f32 v{vT}, v{vT}, v{vT+1}
        v_cvt_pk_bf16_f32 v{vT+1}, v{vT+2}, v{vT+3}
        buffer_store_dwordx2 {r2(vT)}, v{vU}, s[{SX}:{SX+3}], 0 offen
        s_cmp_lg_u32 s2, 0
        s_cbranch_scc1 L_fin
        s_mov_b64 exec, 1
        v_mov_b32 v{vT+4}, s{sTAG}
        v_mov_b32 v{vT+5}, 0
        buffer_store_dword v{vT+4}, v{vT+5}, s[{SW}:{SW+3}], 0 offen sc1
        L_fin:
        """)
        if o["stamps"] and o["dbgst"]:
            self.nst = 7; self.stamp()
            a(f"""
            s_waitcnt lgkmcnt(0)
            s_mov_b64 exec, 1
            v_mov_b32 v4, 0
            s_not_b32 s4, s16
            v_mov_b32 v2, s4
            global_atomic_umax v4, v2, s[58:59]
            """)
            for j in range(8):
                a(f"""
                v_mov_b32 v{5+j}, s{16+2*j}
                global_atomic_umax v4, v{5+j}, s[58:59] offset:{4+4*j}
                """)
        elif o["stamps"]:
            self.nst = 7; self.stamp()
            a(f"""
            s_waitcnt lgkmcnt(0)
            s_lshl_b32 s4, s2, 2
            s_add_u32 s4, s4, s{sJ}
            s_lshl_b32 s4, s4, 6
            s_add_u32 s4, s4, {STAMP_OFF - o['wsoff']:#x}
            s_add_u32 s6, s60, s4
            s_addc_u32 s7, s61, 0
            s_mov_b64 exec, 1
            v_mov_b32 v4, 0
            """)
            for j in range(8):
                a(f"""
                v_mov_b32 v2, s{16+2*j}
                v_mov_b32 v3, s{17+2*j}
                global_store_dwordx2 v4, v[2:3], s[6:7] offset:{8*j}
                s_nop 1
                """)
        if o["hold"]:
            a(f"""
            s_waitcnt lgkmcnt(0)
            L_hold:
            s_memrealtime s[4:5]
            s_waitcnt lgkmcnt(0)
            s_sub_u32 s4, s4, s16
            s_cmp_lt_u32 s4, {o["hold"]}
            s_cbranch_scc1 L_hold
            """)
        a("L_end:")
        a("s_endpgm")
        body = "\n".join(fix(self.l)) + "\n"
        head = open("cdna_kernels/" + KN + ".s.ref").read().split("; Override launch")[0]
        return head + f"""; @launch grid=(256,1,1) block=(256,1,1) lds={o['lds']}
.amdgcn_target "amdgcn-amd-amdhsa--gfx950"
.text
.globl {KN}_kernel
.p2align 8
.type {KN}_kernel,@function
{KN}_kernel:
""" + body + f""".section .rodata,"a"
.p2align 6
.amdhsa_kernel {KN}_kernel
  .amdhsa_next_free_vgpr 256
  .amdhsa_next_free_sgpr 102
  .amdhsa_accum_offset 256
  .amdhsa_group_segment_fixed_size 0
  .amdhsa_kernarg_size 104
  .amdhsa_user_sgpr_count 2
  .amdhsa_user_sgpr_kernarg_segment_ptr 1
  .amdhsa_system_sgpr_workgroup_id_x 1
.end_amdhsa_kernel
"""

if __name__ == "__main__":
    out = sys.argv[1]
    opt = {}
    for kv in sys.argv[2:]:
        k, v = kv.split("=")
        opt[k] = eval(v)
    open(out, "w").write(Gen(**opt).build())
```

```python
import sys, struct
from hazard import fix
KN = "gated_mix__sliding_block_cached__glu_gated_reglu__decode"
STAMP_OFF = 0x30000000

def f2u(x): return struct.unpack("<I", struct.pack("<f", x))[0]

class Gen:
    def __init__(self, **opt):
        self.o = dict(W=10, stamps=False, wsoff=0, qpoll_after=8, hpoll_after=3, R=36, round_scores=True,
                      prefetch=0, jitter=0, hold=0, amp=-1, dbgst=False, lds=90112, nt="nt", spin=20000)
        self.o.update(opt)
        self.l = []
        self.vm = []
        self.nl = 0
        self.nst = 0
    def a(self, s):
        for x in s.strip().split("\n"):
            x = x.strip()
            if not x: continue
            self.l.append(x if x.endswith(":") else "    " + x)
    def lab(self, p):
        self.nl += 1
        return f"L_{p}{self.nl}"
    def issue(self, label, s):
        self.a(s); self.vm.append(label)
    def wait(self, label):
        n = len(self.vm) - 1 - self.vm.index(label)
        assert n <= 63
        self.a(f"s_waitcnt vmcnt({n})")
    def stamp(self):
        if self.o["stamps"]:
            assert self.nst < 8
            r = 16 + 2 * self.nst
            self.a(f"s_memrealtime s[{r}:{r+1}]")
            self.nst += 1

    def build(self):
        o = self.o; a = self.a; nt = o["nt"]; W = o["W"]
        assert W <= 16
        QB, GB, OB, FB = 0x1000, 0x20000, 0xB0000, 0x100000
        R = o["R"]; CG = 144 // R
        LQ, LG, QL, MX, LS, GS, HP, HL, OL, OW, LF, RD = 0, 2048, 11264, 15360, 15488, 15616, 15744, 16512, 16576, 16640, 20736, 29952
        vL = 1; vM = [2, 3, 4, 5]; vSel = [6, 7, 8, 9]
        vQa, vQb, vGU, vK, vV, vP3, vP3b, vTM = 10, 11, 12, 13, 14, 15, 16, 17
        vXQ, vXQb, vXG, vGX, vGW = 18, 20, 22, 28, 30
        vS = 32; vBq = 48; vAcc = 52; vAD = 56; vAO = 64; vT = 72; vPoll = 92
        R1 = 100; R2 = 168; vU = 232
        vRS, vCH, vG, vOMG, vJ = 21, 96, 97, 98, 99
        dst = {}
        for i in range(5): dst[f"Q{i}"] = R1 + 4 * i
        for i in range(12): dst[f"G{i}"] = R1 + 20 + 4 * i
        for i in range(16): dst[f"K{i}"] = R2 + 4 * i; dst[f"V{i}"] = R1 + 4 * i
        for i in range(6): dst[f"D{i}"] = R2 + 4 * i; dst[f"O{i}"] = R2 + 24 + 4 * i
        big = [f"Q{i}" for i in range(5)] + [f"G{i}" for i in range(12)] + [f"K{i}" for i in range(16)] + \
              [f"V{i}" for i in range(16)] + [f"D{i}" for i in range(6)] + [f"O{i}" for i in range(6)]
        sTAG = 62; sJ = 3; sXCD, sG, sS = 8, 9, 10; sLIN = 12
        sKV = 13; sGU = 14; sC = 15
        SQ, SGU, SK, SV, SD, SO, SX, SGW, SW = 64, 68, 72, 76, 80, 84, 88, 92, 96
        def r4(v): return f"v[{v}:{v+3}]"
        def r2(v): return f"v[{v}:{v+1}]"
        self.ip = 0
        def issue_next():
            lb = big[self.ip]; self.ip += 1
            d = r4(dst[lb]); k = int(lb[1:]); c = lb[0]
            if c == "Q":
                if k == 0: self.issue(lb, f"buffer_load_dwordx4 {d}, v{vQa}, s[{SQ}:{SQ+3}], 0 offen {nt}")
                elif k < 4: self.issue(lb, f"buffer_load_dwordx4 {d}, v{vQa}, s[{SQ}:{SQ+3}], s{32+k} offen {nt}")
                else: self.issue(lb, f"buffer_load_dwordx4 {d}, v{vQb}, s[{SQ}:{SQ+3}], 0 offen {nt}")
            elif c == "G":
                if k == 0: a(f"s_mov_b32 s{sGU}, 0")
                else: a(f"s_addk_i32 s{sGU}, 9216")
                self.issue(lb, f"buffer_load_dwordx4 {d}, v{vGU}, s[{SGU}:{SGU+3}], s{sGU} offen {nt}")
            elif c in "KV":
                if k == 0: a(f"s_mov_b32 s{sKV}, 0")
                else: a(f"s_addk_i32 s{sKV}, 4096")
                sr, vo = (SK, vK) if c == "K" else (SV, vV)
                self.issue(lb, f"buffer_load_dwordx4 {d}, v{vo}, s[{sr}:{sr+3}], s{sKV} offen {nt}")
                if c == "K" and k == o["qpoll_after"]:
                    self.issue("QP", f"buffer_load_dwordx4 {r4(vPoll)}, v{vQa}, s[{SW}:{SW+3}], 0 offen sc1")
                if c == "V" and k == o["hpoll_after"]:
                    self.issue("HPL", f"buffer_load_dwordx4 {r4(vAO)}, v{vQb}, s[{SW}:{SW+3}], 0 offen sc1")
            else:
                sr = SD if c == "D" else SO
                vo, im = (vP3, k * 1152) if k < 4 else (vP3b, (k - 4) * 1152)
                self.issue(lb, f"buffer_load_dwordx4 {d}, v{vo}, s[{sr}:{sr+3}], 0 offen offset:{im} {nt}")
        def fill(upto_label, extra=0):
            idx = big.index(upto_label)
            while self.ip < len(big) and self.ip <= idx + W + extra:
                issue_next()
        def tagins(v):
            for i in range(4): a(f"v_and_or_b32 v{v+i}, v{v+i}, v{vTM}, s{sTAG}")
        def tagchk(vs, acc, first=True):
            for v in vs:
                for i in range(4):
                    if first: a(f"v_xor_b32 v{acc}, s{sTAG}, v{v+i}"); first = False
                    else: a(f"v_bitop3_b32 v{acc}, v{v+i}, s{sTAG}, v{acc} bitop3:0xbe")
            a(f"v_and_b32 v{acc}, 0xff, v{acc}")
        def retry_loop(name, loads, vs, acc, lanemask=None):
            Lok = self.lab(name + "ok"); Lre = self.lab(name + "re")
            def chk():
                tagchk(vs, acc)
                a(f"v_cmp_ne_u32 vcc, 0, v{acc}")
                if lanemask is not None:
                    a(f"s_and_b64 vcc, vcc, s[{lanemask}:{lanemask+1}]")
            chk()
            a(f"s_cbranch_vccz {Lok}")
            a(f"s_mov_b32 s7, {o['spin']}")
            a(f"{Lre}:")
            for ld in loads: a(ld)
            a("s_waitcnt vmcnt(0)")
            chk()
            a(f"s_cbranch_vccz {Lok}")
            a("s_sub_u32 s7, s7, 1")
            a("s_cmp_lg_u32 s7, 0")
            a(f"s_cbranch_scc1 {Lre}")
            a(f"{Lok}:")

        self.stamp()
        if o["hold"]: a("s_memrealtime s[16:17]")
        JIT = ""
        if o["jitter"]:
            JIT = f"""s_mul_i32 s4, s2, 0x9e3779b1
            s_lshr_b32 s4, s4, {32-o["jitter"]}
            L_jit:
            s_cmp_eq_u32 s4, 0
            s_cbranch_scc1 L_jitd
            s_sleep 40
            s_sub_u32 s4, s4, 1
            s_branch L_jit
            L_jitd:"""
        a(f"""
        s_cmp_ge_u32 s2, 0x100
        s_cbranch_scc1 L_end
        {JIT}
        s_load_dwordx16 s[36:51], s[0:1], 0
        s_load_dwordx8 s[52:59], s[0:1], 64
        s_load_dwordx2 s[60:61], s[0:1], 96
        s_and_b32 s{sXCD}, s2, 7
        s_bfe_u32 s{sG}, s2, 0x10003
        s_lshl1_add_u32 s{sG}, s{sXCD}, s{sG}
        s_lshr_b32 s{sS}, s2, 4
        s_lshr_b32 s11, s2, 6
        s_mul_i32 s4, s11, {144*8192}
        s_lshl_b32 s5, s{sG}, 9
        s_add_u32 s4, s4, s5
        s_and_b32 s5, s{sS}, 3
        s_lshl_b32 s5, s5, 7
        s_add_u32 s4, s4, s5
        v_lshrrev_b32 v{vT}, 3, v0
        v_and_b32 v{vT+1}, 7, v0
        v_lshlrev_b32 v{vT+1}, 4, v{vT+1}
        v_lshl_add_u32 v{vQa}, v{vT}, 15, v{vT+1}
        v_lshl_add_u32 v{vQb}, v{vT}, 13, v{vT+1}
        v_add_u32 v{vQb}, {128*8192}, v{vQb}
        s_mov_b32 s{SQ+2}, {143*8192+128}
        s_mov_b32 s{SQ+3}, 0x20000
        s_movk_i32 s33, 0x2000
        s_movk_i32 s34, 0x4000
        s_movk_i32 s35, 0x6000
        s_waitcnt lgkmcnt(0)
        s_add_u32 s{SQ}, s42, s4
        s_addc_u32 s{SQ+1}, s43, 0
        """)
        for i in range(5): issue_next()
        a(f"""
        s_add_u32 s60, s60, {o['wsoff']:#x}
        s_addc_u32 s61, s61, 0
        s_load_dword s{sTAG}, s[60:61], 0
        s_mov_b32 s{SX}, s36
        s_mov_b32 s{SX+1}, s37
        s_movk_i32 s{SX+2}, 1152
        s_mov_b32 s{SX+3}, 0x20000
        s_mul_i32 s5, s11, 288
        v_lshl_add_u32 v{vT+2}, v{vT}, 3, s5
        v_lshl_add_u32 v{vT+3}, v{vT}, 1, s5
        """)
        self.issue("XQa", f"buffer_load_dwordx2 {r2(vXQ)}, v{vT+2}, s[{SX}:{SX+3}], 0 offen")
        self.issue("XQb", f"buffer_load_ushort v{vXQb}, v{vT+3}, s[{SX}:{SX+3}], 0 offen offset:256")
        a(f"""
        s_bitcmp1_b32 s2, 3
        s_cselect_b32 s{SGU}, s50, s48
        s_cselect_b32 s{SGU+1}, s51, s49
        s_mul_i32 s4, s{sS}, {36*9216}
        s_mul_i32 s5, s{sXCD}, 1152
        s_add_u32 s4, s4, s5
        s_add_u32 s{SGU}, s{SGU}, s4
        s_addc_u32 s{SGU+1}, s{SGU+1}, 0
        s_mov_b32 s{SGU+2}, {35*9216+1152}
        s_mov_b32 s{SGU+3}, 0x20000
        v_mul_u32_u24 v{vRS}, 911, v0
        v_lshrrev_b32 v{vRS}, 16, v{vRS}
        v_mul_u32_u24 v{vCH}, 72, v{vRS}
        v_sub_u32 v{vCH}, v0, v{vCH}
        v_mul_u32_u24 v{vGU}, {12*9216}, v{vRS}
        v_lshl_add_u32 v{vGU}, v{vCH}, 4, v{vGU}
        s_mul_i32 s5, s{sS}, 72
        v_mul_u32_u24 v{vT+2}, 24, v{vRS}
        v_add_u32 v{vT+2}, s5, v{vT+2}
        """)
        self.issue("XGa", f"buffer_load_dwordx4 {r4(vXG)}, v{vT+2}, s[{SX}:{SX+3}], 0 offen")
        self.issue("XGb", f"buffer_load_dwordx2 {r2(vXG+4)}, v{vT+2}, s[{SX}:{SX+3}], 0 offen offset:16")
        for i in range(4): issue_next()
        a(f"""
        s_mov_b32 s{SGW}, s54
        s_mov_b32 s{SGW+1}, s55
        s_movk_i32 s{SGW+2}, 1152
        s_mov_b32 s{SGW+3}, 0x20000
        v_lshlrev_b32 v{vT+2}, 3, v0
        """)
        self.issue("GX", f"buffer_load_dwordx2 {r2(vGX)}, v{vT+2}, s[{SX}:{SX+3}], 0 offen")
        self.issue("GW", f"buffer_load_dwordx2 {r2(vGW)}, v{vT+2}, s[{SGW}:{SGW+3}], 0 offen")
        if o["prefetch"]:
            a(f"""
            s_getpc_b64 s[4:5]
            v_lshlrev_b32 v{vT+2}, 4, v0
            """)
            for i in range(o["prefetch"]):
                if i: a(f"v_add_u32 v{vT+2}, 4096, v{vT+2}")
                self.issue(f"PF{i}", f"global_load_dwordx4 {r4(vPoll)}, v{vT+2}, s[4:5]")
        a(f"""
        s_lshl_b32 s4, s{sG}, 24
        s_lshl_b32 s5, s{sS}, 16
        s_add_u32 s4, s4, s5
        s_add_u32 s4, s4, {61440*256}
        s_add_u32 s{SK}, s38, s4
        s_addc_u32 s{SK+1}, s39, 0
        s_mov_b32 s{SK+2}, 0x10000
        s_mov_b32 s{SK+3}, 0x20000
        s_add_u32 s{SV}, s40, s4
        s_addc_u32 s{SV+1}, s41, 0
        s_mov_b32 s{SV+2}, 0x10000
        s_mov_b32 s{SV+3}, 0x20000
        s_lshr_b32 s4, s2, 3
        s_lshl_b32 s{sLIN}, s{sXCD}, 5
        s_add_u32 s{sLIN}, s{sLIN}, s4
        s_mul_i32 s4, s{sLIN}, {18*1152}
        s_add_u32 s{SD}, s52, s4
        s_addc_u32 s{SD+1}, s53, 0
        s_movk_i32 s{SD+2}, {18*1152}
        s_mov_b32 s{SD+3}, 0x20000
        s_lshl_b32 s4, s{sG}, 4
        s_add_u32 s4, s4, s{sS}
        s_mul_i32 s4, s4, {16*1152}
        s_add_u32 s{SO}, s44, s4
        s_addc_u32 s{SO+1}, s45, 0
        s_movk_i32 s{SO+2}, {16*1152}
        s_mov_b32 s{SO+3}, 0x20000
        s_mov_b32 s{SW}, s60
        s_mov_b32 s{SW+1}, s61
        s_mov_b32 s{SW+2}, 0x200000
        s_mov_b32 s{SW+3}, 0x20000
        v_and_b32 v{vL}, 63, v0
        v_lshrrev_b32 v{vJ}, 6, v0
        v_lshlrev_b32 v{vV}, 4, v0
        v_readfirstlane_b32 s{sJ}, v{vJ}
        v_and_b32 v{vT}, 3, v0
        v_lshlrev_b32 v{vT}, 4, v{vT}
        v_bfe_u32 v{vT+1}, v0, 2, 2
        v_lshl_add_u32 v{vT}, v{vT+1}, 8, v{vT}
        v_bfe_u32 v{vT+1}, v0, 4, 2
        v_lshl_add_u32 v{vT}, v{vT+1}, 6, v{vT}
        v_lshl_add_u32 v{vK}, v{vJ}, 10, v{vT}
        v_mul_u32_u24 v{vP3}, {6*1152}, v{vRS}
        v_lshl_add_u32 v{vP3}, v{vCH}, 4, v{vP3}
        v_add_u32 v{vP3b}, 4608, v{vP3}
        v_mov_b32 v{vTM}, 0xffffff00
        v_and_b32 v{vT}, 1, v0
        v_lshlrev_b32 v{vT}, 4, v{vT}
        v_mov_b32 v{vT+1}, 0xffff
        v_lshlrev_b32 v{vT}, v{vT}, v{vT+1}
        v_bfe_u32 v{vT+1}, v0, 1, 2
        v_cmp_eq_u32 s[4:5], 0, v{vT+1}
        v_cmp_eq_u32 s[6:7], 1, v{vT+1}
        v_cndmask_b32 v{vM[0]}, 0, v{vT}, s[4:5]
        v_cndmask_b32 v{vM[1]}, 0, v{vT}, s[6:7]
        v_cmp_eq_u32 s[4:5], 2, v{vT+1}
        v_cmp_eq_u32 s[6:7], 3, v{vT+1}
        v_cndmask_b32 v{vM[2]}, 0, v{vT}, s[4:5]
        v_cndmask_b32 v{vM[3]}, 0, v{vT}, s[6:7]
        v_or_b32 v{vT}, v{vM[0]}, v{vM[2]}
        v_or_b32 v{vT+1}, v{vM[1]}, v{vM[3]}
        v_mov_b32 v{vT+2}, 0x0c0c0c0c
        s_mov_b32 s32, 0x01000100
        s_mov_b32 s63, 0x03020302
        v_bfi_b32 v{vSel[0]}, v{vT}, s32, v{vT+2}
        v_bfi_b32 v{vSel[1]}, v{vT+1}, s32, v{vT+2}
        v_bfi_b32 v{vSel[2]}, v{vT}, s63, v{vT+2}
        v_bfi_b32 v{vSel[3]}, v{vT+1}, s63, v{vT+2}
        """)
        a(f"""
        v_lshlrev_b32 v{vT}, 2, v{vL}
        v_and_b32 v{vT}, 0x7c, v{vT}
        v_mov_b32 v{vT+1}, 0
        ds_write_b32 v{vT}, v{vT+1} offset:{HL}
        """)
        fill("Q0", -1)
        self.stamp()
        self.wait("XQb")
        for t in range(5):
            src = vXQ + (t >> 1) if t < 4 else vXQb
            sel = "s63" if (t < 4 and t & 1) else "s32"
            a(f"v_perm_b32 v{vU}, v{src}, v{src}, {sel}")
            for j in range(4): a(f"v_and_b32 v{vT+4*t+j}, v{vU}, v{vM[j]}")
        for t in range(5):
            c = "0" if t == 0 else r4(vAcc)
            a(f"v_mfma_f32_16x16x32_bf16 {r4(vAcc)}, {r4(dst[f'Q{t}'])}, {r4(vT+4*t)}, {c}")
        fill("Q4")
        a(f"""
        v_bfe_u32 v{vU}, v0, 3, 1
        v_bfe_u32 v{vU+1}, v0, 5, 1
        v_cmp_eq_u32 vcc, v{vU}, v{vU+1}
        v_lshrrev_b32 v{vU}, 5, v0
        v_lshlrev_b32 v{vU}, 8, v{vU}
        v_bfe_u32 v{vU+1}, v0, 4, 1
        v_lshl_add_u32 v{vU}, v{vU+1}, 7, v{vU}
        v_and_b32 v{vU+1}, 7, v0
        v_lshl_add_u32 v{vU}, v{vU+1}, 2, v{vU}
        v_mov_b32 v{vU+1}, {QL}
        v_cndmask_b32 v{vU}, v{vU+1}, v{vU}, vcc
        """)
        for i in range(4): a(f"ds_write_b32 v{vU}, v{vAcc+i} offset:{LQ+32*i}")
        a(f"""
        s_waitcnt lgkmcnt(0)
        s_barrier
        s_add_u32 s{sTAG}, s{sTAG}, 1
        s_and_b32 s{sTAG}, s{sTAG}, 0xff
        """)
        Lq = self.lab("qpub")
        a(f"""
        s_cmp_lg_u32 s{sJ}, 0
        s_cbranch_scc1 {Lq}
        s_mov_b64 exec, 0xffff
        v_lshlrev_b32 v{vU}, 4, v{vL}
        """)
        for p in range(8): a(f"ds_read_b128 {r4(vT+4*p) if p < 5 else r4(vU+4+4*(p-5))}, v{vU} offset:{LQ+256*p}")
        a(f"""
        s_lshl_b32 s4, s{sG}, 12
        s_lshl_b32 s5, s{sS}, 8
        s_add_u32 s4, s4, s5
        s_add_u32 s4, s4, {QB}
        v_add_u32 v{vU}, s4, v{vU}
        s_waitcnt lgkmcnt(0)
        """)
        for p in range(1, 8):
            src = vT + 4 * p if p < 5 else vU + 4 + 4 * (p - 5)
            a(f"v_pk_add_f32 {r2(vT)}, {r2(vT)}, {r2(src)}")
            a(f"v_pk_add_f32 {r2(vT+2)}, {r2(vT+2)}, {r2(src+2)}")
        tagins(vT)
        a(f"""
        buffer_store_dwordx4 {r4(vT)}, v{vU}, s[{SW}:{SW+3}], 0 offen sc1
        s_mov_b64 exec, -1
        {Lq}:
        """)
        self.stamp()
        a(f"""
        s_lshl_b32 s4, s{sG}, 12
        s_add_u32 s4, s4, {QB}
        v_add_u32 v{vQa}, s4, v{vV}
        s_lshr_b32 s4, s2, 3
        s_mul_i32 s4, s4, 9
        s_lshr_b32 s4, s4, 1
        s_lshl_b32 s4, s4, 4
        s_mul_i32 s5, s{sXCD}, {32*2304}
        s_add_u32 s4, s4, s5
        s_mul_i32 s5, s{sJ}, {8*2304}
        s_add_u32 s4, s4, s5
        s_add_u32 s4, s4, {GB}
        v_and_b32 v{vU}, 7, v0
        v_mul_u32_u24 v{vU}, 2304, v{vU}
        v_lshrrev_b32 v{vU+1}, 3, v{vL}
        v_min_u32 v{vU+1}, 4, v{vU+1}
        v_lshl_add_u32 v{vU}, v{vU+1}, 4, v{vU}
        v_add_u32 v{vQb}, s4, v{vU}
        """)
        def flat_step(k, xsrc, data, acc, first):
            p = k & 1
            A = vU + 2 * (k & 1)
            a(f"v_perm_b32 v{A}, v{xsrc+(k>>1)}, v{xsrc+(k>>1)}, v{vSel[2*p]}")
            a(f"v_perm_b32 v{A+1}, v{xsrc+(k>>1)}, v{xsrc+(k>>1)}, v{vSel[2*p+1]}")
            return A
        def flat_mfma(A, data, acc, first):
            a(f"v_mfma_f32_4x4x4_16b_bf16 {r4(acc)}, {r2(A)}, {r2(data)}, {'0' if first else r4(acc)}")
            a(f"v_mfma_f32_4x4x4_16b_bf16 {r4(acc+4)}, {r2(A)}, {r2(data+2)}, {'0' if first else r4(acc+4)}")
        self.wait("XGb")
        for k in range(12):
            A = flat_step(k, vXG, None, None, None)
            self.wait(f"G{k}")
            flat_mfma(A, dst[f"G{k}"], vAD, k == 0)
            fill(f"G{k}")
        a(f"""
        v_lshlrev_b32 v{vT}, 16, v{vGX}
        v_and_b32 v{vT+1}, 0xffff0000, v{vGX}
        v_lshlrev_b32 v{vT+2}, 16, v{vGX+1}
        v_and_b32 v{vT+3}, 0xffff0000, v{vGX+1}
        v_lshlrev_b32 v{vT+4}, 16, v{vGW}
        v_and_b32 v{vT+5}, 0xffff0000, v{vGW}
        v_lshlrev_b32 v{vT+6}, 16, v{vGW+1}
        v_and_b32 v{vT+7}, 0xffff0000, v{vGW+1}
        v_pk_mul_f32 {r2(vT)}, {r2(vT)}, {r2(vT+4)}
        v_pk_mul_f32 {r2(vT+2)}, {r2(vT+2)}, {r2(vT+6)}
        v_cvt_pk_bf16_f32 v{vT}, v{vT}, v{vT+1}
        v_cvt_pk_bf16_f32 v{vT+2}, v{vT+2}, v{vT+3}
        v_and_b32 v{vT+1}, 0xffff0000, v{vT}
        v_lshlrev_b32 v{vT}, 16, v{vT}
        v_and_b32 v{vT+3}, 0xffff0000, v{vT+2}
        v_lshlrev_b32 v{vT+2}, 16, v{vT+2}
        v_pk_add_f32 {r2(vT)}, {r2(vT)}, {r2(vT+2)}
        v_add_f32 v{vT}, v{vT}, v{vT+1}
        """)
        a(f"""
        v_mul_u32_u24 v{vRS}, 2304, v{vRS}
        v_lshl_add_u32 v{vCH}, v{vCH}, 5, v{vRS}
        """)
        for r in (1, 2, 4, 8): a(f"v_add_f32_dpp v{vT}, v{vT}, v{vT} row_ror:{r} row_mask:0xf bank_mask:0xf")
        a(f"""
        ds_write_b128 v{vCH}, {r4(vAD)} offset:{LG}
        ds_write_b128 v{vCH}, {r4(vAD+4)} offset:{LG+16}
        v_lshrrev_b32 v{vT+1}, 4, v0
        v_lshlrev_b32 v{vT+1}, 2, v{vT+1}
        ds_write_b32 v{vT+1}, v{vT} offset:{GS}
        s_waitcnt lgkmcnt(0)
        s_barrier
        """)
        def flat_reduce(base, voff, Lskip):
            a(f"""
            v_cmp_gt_u32 vcc, 144, v0
            s_and_saveexec_b64 s[4:5], vcc
            s_cbranch_execz {Lskip}
            ds_read_b128 {r4(vT)}, v{vV} offset:{base}
            ds_read_b128 {r4(vT+4)}, v{vV} offset:{base+2304}
            ds_read_b128 {r4(vT+8)}, v{vV} offset:{base+4608}
            s_waitcnt lgkmcnt(1)
            v_pk_add_f32 {r2(vT)}, {r2(vT)}, {r2(vT+4)}
            v_pk_add_f32 {r2(vT+2)}, {r2(vT+2)}, {r2(vT+6)}
            s_waitcnt lgkmcnt(0)
            v_pk_add_f32 {r2(vT)}, {r2(vT)}, {r2(vT+8)}
            v_pk_add_f32 {r2(vT+2)}, {r2(vT+2)}, {r2(vT+10)}
            """)
            tagins(vT)
            a(f"""
            buffer_store_dwordx4 {r4(vT)}, v{voff}, s[{SW}:{SW+3}], 0 offen sc1
            {Lskip}:
            s_mov_b64 exec, s[4:5]
            """)
        a(f"""
        s_mul_i32 s6, s{sLIN}, 2304
        s_add_u32 s6, s6, {GB}
        v_add_u32 v{vU}, s6, v{vV}
        """)
        flat_reduce(LG, vU, self.lab("gpub"))
        self.stamp()
        a(f"""
        v_mov_b32 v{vU}, 0
        ds_read_b128 {r4(vT)}, v{vU} offset:{GS}
        ds_read_b128 {r4(vT+4)}, v{vU} offset:{GS+16}
        ds_read_b128 {r4(vT+8)}, v{vU} offset:{GS+32}
        s_waitcnt lgkmcnt(0)
        v_pk_add_f32 {r2(vT)}, {r2(vT)}, {r2(vT+2)}
        v_pk_add_f32 {r2(vT+4)}, {r2(vT+4)}, {r2(vT+6)}
        v_pk_add_f32 {r2(vT+8)}, {r2(vT+8)}, {r2(vT+10)}
        v_pk_add_f32 {r2(vT)}, {r2(vT)}, {r2(vT+4)}
        v_pk_add_f32 {r2(vT)}, {r2(vT)}, {r2(vT+8)}
        v_add_f32 v{vT}, v{vT}, v{vT+1}
        v_cvt_pk_bf16_f32 v{vT}, v{vT}, v{vT}
        v_lshlrev_b32 v{vT}, 16, v{vT}
        v_mul_f32 v{vT}, {f2u(-1.4426950408889634):#x}, v{vT}
        v_exp_f32 v{vT}, v{vT}
        v_add_f32 v{vT}, 1.0, v{vT}
        v_rcp_f32 v{vT}, v{vT}
        v_cvt_pk_bf16_f32 v{vT}, v{vT}, v{vT}
        v_lshlrev_b32 v{vG}, 16, v{vT}
        v_sub_f32 v{vT}, 1.0, v{vG}
        v_cvt_pk_bf16_f32 v{vT}, v{vT}, v{vT}
        v_lshlrev_b32 v{vOMG}, 16, v{vT}
        """)
        qa = o["qpoll_after"]
        for k in range(qa + 1):
            if f"K{k}" in self.vm and self.ip < len(big):
                self.wait(f"K{k}")
            fill(f"K{k}")
        self.wait("QP")
        retry_loop("q", [f"buffer_load_dwordx4 {r4(vPoll)}, v{vQa}, s[{SW}:{SW+3}], 0 offen sc1"], [vPoll], vU)
        a(f"""
        ds_write_b128 v{vV}, {r4(vPoll)} offset:{QL}
        v_bfe_u32 v{vU}, v0, 3, 1
        v_lshlrev_b32 v{vU}, 9, v{vU}
        v_bfe_u32 v{vU+1}, v0, 4, 2
        v_lshl_add_u32 v{vU}, v{vU+1}, 7, v{vU}
        v_and_b32 v{vU+1}, 3, v0
        v_lshl_add_u32 v{vU}, v{vU+1}, 5, v{vU}
        s_waitcnt lgkmcnt(0)
        s_barrier
        """)
        qd = [vT, vT + 8, vU + 8, vU + 16]
        for k in range(4):
            a(f"ds_read_b128 {r4(qd[k])}, v{vU} offset:{QL+1024*k}")
            a(f"ds_read_b128 {r4(qd[k]+4)}, v{vU} offset:{QL+1024*k+16}")
        a("s_waitcnt lgkmcnt(4)")
        for i in range(0, 8, 2): a(f"v_pk_add_f32 {r2(qd[0]+i)}, {r2(qd[0]+i)}, {r2(qd[1]+i)}")
        a("s_waitcnt lgkmcnt(0)")
        for i in range(0, 8, 2): a(f"v_pk_add_f32 {r2(qd[2]+i)}, {r2(qd[2]+i)}, {r2(qd[3]+i)}")
        for i in range(0, 8, 2): a(f"v_pk_add_f32 {r2(qd[0]+i)}, {r2(qd[0]+i)}, {r2(qd[2]+i)}")
        for i in range(4): a(f"v_cvt_pk_bf16_f32 v{vBq+i}, v{qd[0]+2*i}, v{qd[0]+2*i+1}")
        self.stamp()
        def qk_mfma(t):
            D = vT + 4 * (t % 4)
            a(f"v_mfma_f32_16x16x32_bf16 {r4(D)}, {r4(dst[f'K{t}'])}, {r4(vBq)}, 0")
        def qk_fin(t):
            D = vT + 4 * (t % 4)
            a(f"v_mov_b32_dpp v{vS+t}, v{D} quad_perm:[0,0,0,0] row_mask:0xf bank_mask:0xf")
            for u in range(1, 4):
                a(f"v_add_f32_dpp v{vS+t}, v{D+u}, v{vS+t} quad_perm:[{u},{u},{u},{u}] row_mask:0xf bank_mask:0xf")
        for t in range(16):
            if t > qa:
                self.wait(f"K{t}")
            qk_mfma(t)
            if t > qa: fill(f"K{t}")
            if t >= 2: qk_fin(t - 2)
        qk_fin(14); qk_fin(15)
        if o["round_scores"]:
            a(f"s_mov_b32 s{sC}, {f2u(128 ** -0.5):#x}")
            for t in range(0, 16, 2):
                a(f"""
                v_cvt_pk_bf16_f32 v{vT}, v{vS+t}, v{vS+t+1}
                v_lshlrev_b32 v{vS+t}, 16, v{vT}
                v_and_b32 v{vS+t+1}, 0xffff0000, v{vT}
                v_mul_f32 v{vS+t}, s{sC}, v{vS+t}
                v_mul_f32 v{vS+t+1}, s{sC}, v{vS+t+1}
                v_cvt_pk_bf16_f32 v{vT}, v{vS+t}, v{vS+t+1}
                v_lshlrev_b32 v{vS+t}, 16, v{vT}
                v_and_b32 v{vS+t+1}, 0xffff0000, v{vT}
                """)
            cexp = 1.4426950408889634
        else:
            cexp = 128 ** -0.5 * 1.4426950408889634
        a(f"s_mov_b32 s{sC}, {f2u(cexp):#x}")
        a(f"v_max3_f32 v{vT}, v{vS}, v{vS+1}, v{vS+2}")
        for t in range(3, 15, 2): a(f"v_max3_f32 v{vT}, v{vT}, v{vS+t}, v{vS+t+1}")
        a(f"v_max_f32 v{vT}, v{vT}, v{vS+15}")
        a(f"""
        v_bfe_u32 v{vU}, v0, 3, 1
        v_lshlrev_b32 v{vU}, 6, v{vU}
        v_lshrrev_b32 v{vU+1}, 4, v0
        v_lshl_add_u32 v{vK}, v{vU+1}, 2, v{vU}
        ds_write_b32 v{vK}, v{vT} offset:{MX}
        s_waitcnt lgkmcnt(0)
        s_barrier
        """)
        for i in range(4): a(f"ds_read_b128 {r4(vT+4*i)}, v{vU} offset:{MX+16*i}")
        a("s_waitcnt lgkmcnt(0)")
        a(f"v_max3_f32 v{vT}, v{vT}, v{vT+1}, v{vT+2}")
        for t in range(3, 15, 2): a(f"v_max3_f32 v{vT}, v{vT}, v{vT+t}, v{vT+t+1}")
        a(f"v_max_f32 v{vXQ}, v{vT}, v{vT+15}")
        a(f"v_and_b32 v{vXQ}, v{vXQ}, v{vTM}")
        a(f"v_mul_f32 v{vXQ+1}, s{sC}, v{vXQ}")
        for t in range(16): a(f"v_fma_f32 v{vS+t}, v{vS+t}, s{sC}, -v{vXQ+1}")
        for t in range(16): a(f"v_exp_f32 v{vS+t}, v{vS+t}")
        a(f"v_pk_add_f32 {r2(vT)}, {r2(vS)}, {r2(vS+2)}")
        for t in range(4, 16, 2): a(f"v_pk_add_f32 {r2(vT)}, {r2(vT)}, {r2(vS+t)}")
        a(f"v_add_f32 v{vT}, v{vT}, v{vT+1}")
        a(f"ds_write_b32 v{vK}, v{vT} offset:{LS}")
        for t in range(16): a(f"v_cvt_pk_bf16_f32 v{vS+t}, v{vS+t}, v{vS+t}")
        self.stamp()
        ha = o["hpoll_after"]
        for t in range(16):
            B = vT + 4 * (t % 2)
            for j in range(4): a(f"v_and_b32 v{B+j}, v{vS+t}, v{vM[j]}")
            self.wait(f"V{t}")
            a(f"v_mfma_f32_16x16x32_bf16 {r4(vAcc)}, {r4(dst[f'V{t}'])}, {r4(B)}, {'0' if t == 0 else r4(vAcc)}")
            fill(f"V{t}")
            if t == ha:
                self.wait("HPL")
                retry_loop("h", [f"buffer_load_dwordx4 {r4(vAO)}, v{vQb}, s[{SW}:{SW+3}], 0 offen sc1"], [vAO], vU)
                for i in range(4): a(f"v_add_f32_dpp v{vAO+i}, v{vAO+i}, v{vAO+i} quad_perm:[2,3,0,1] row_mask:0xf bank_mask:0xf")
                for i in range(4): a(f"v_add_f32_dpp v{vAO+i}, v{vAO+i}, v{vAO+i} row_shl:4 row_mask:0xf bank_mask:0xf")
                a(f"""
                v_and_b32 v{vU}, 7, v0
                v_cmp_gt_u32 vcc, 2, v{vU}
                v_mul_u32_u24 v{vU}, 96, v{vU}
                v_lshrrev_b32 v{vU+1}, 3, v{vL}
                v_min_u32 v{vU+1}, 5, v{vU+1}
                v_lshl_add_u32 v{vU}, v{vU+1}, 4, v{vU}
                s_mul_i32 s4, s{sJ}, 192
                s_add_u32 s4, s4, {HP}
                v_add_u32 v{vU}, s4, v{vU}
                v_mov_b32 v{vU+1}, {QL}
                v_cndmask_b32 v{vU}, v{vU+1}, v{vU}, vcc
                ds_write_b128 v{vU}, {r4(vAO)}
                s_waitcnt lgkmcnt(0)
                s_barrier
                """)
                Lh = self.lab("hfin")
                a(f"""
                s_cmp_lg_u32 s{sJ}, 1
                s_cbranch_scc1 {Lh}
                s_mov_b64 exec, 0x3ffff
                s_bfe_u32 s4, s2, 0x10003
                s_lshl_b32 s4, s4, 3
                v_lshl_add_u32 v{vU}, v{vL}, 2, s4
                """)
                for jj in range(4):
                    a(f"ds_read2_b32 {r2(vU+2+2*jj)}, v{vU} offset0:{(HP+192*jj)//4 - HP//4} offset1:{(192*jj+96)//4}".replace(f"v{vU} ", f"v{vU+1} "))
                idx = len(self.l) - 4
                self.l.insert(idx, f"    v_add_u32 v{vU+1}, {HP}, v{vU}")
                a(f"""
                s_waitcnt lgkmcnt(0)
                v_pk_add_f32 {r2(vU+2)}, {r2(vU+2)}, {r2(vU+4)}
                v_pk_add_f32 {r2(vU+6)}, {r2(vU+6)}, {r2(vU+8)}
                v_pk_add_f32 {r2(vU+2)}, {r2(vU+2)}, {r2(vU+6)}
                v_cvt_pk_bf16_f32 v{vU+2}, v{vU+2}, v{vU+3}
                v_and_b32 v{vU+3}, 0xffff0000, v{vU+2}
                v_lshlrev_b32 v{vU+2}, 16, v{vU+2}
                v_max_f32 v{vU+2}, 0, v{vU+2}
                v_mul_f32 v{vU+2}, v{vU+2}, v{vU+3}
                v_cvt_pk_bf16_f32 v{vU+2}, v{vU+2}, v{vU+2}
                v_lshlrev_b32 v{vU}, 1, v{vL}
                ds_write_b16 v{vU}, v{vU+2} offset:{HL}
                s_mov_b64 exec, -1
                {Lh}:
                """)
        a(f"""
        v_bfe_u32 v{vU}, v0, 3, 1
        v_lshlrev_b32 v{vU}, 9, v{vU}
        v_bfe_u32 v{vU+1}, v0, 4, 2
        v_lshl_add_u32 v{vU}, v{vU+1}, 7, v{vU}
        v_and_b32 v{vU+1}, 7, v0
        v_lshl_add_u32 v{vU}, v{vU+1}, 2, v{vU}
        v_lshl_add_u32 v{vU}, v{vJ}, 10, v{vU}
        """)
        for i in range(4): a(f"ds_write_b32 v{vU}, v{vAcc+i} offset:{OW+32*i}")
        a(f"""
        s_waitcnt lgkmcnt(0)
        s_barrier
        """)
        self.stamp()
        Lo1 = self.lab("opub")
        a(f"""
        s_lshl_b32 s6, s{sG}, 4
        s_cmp_lg_u32 s{sJ}, 0
        s_cbranch_scc1 {Lo1}
        """)
        for jj in range(4): a(f"ds_read_b128 {r4(vT+4*jj)}, v{vV} offset:{OW+1024*jj}")
        a(f"""
        v_bfe_u32 v{vU}, v0, 3, 1
        v_lshlrev_b32 v{vU}, 6, v{vU}
        """)
        for i in range(4): a(f"ds_read_b128 {r4(vU+4+4*i)}, v{vU} offset:{LS+16*i}")
        a(f"""
        s_add_u32 s4, s6, s{sS}
        s_mul_i32 s4, s4, 1152
        s_add_u32 s4, s4, {OB}
        v_add_u32 v{vU}, s4, v{vV}
        s_waitcnt lgkmcnt(4)
        v_pk_add_f32 {r2(vT)}, {r2(vT)}, {r2(vT+4)}
        v_pk_add_f32 {r2(vT+2)}, {r2(vT+2)}, {r2(vT+6)}
        v_pk_add_f32 {r2(vT+8)}, {r2(vT+8)}, {r2(vT+12)}
        v_pk_add_f32 {r2(vT+10)}, {r2(vT+10)}, {r2(vT+14)}
        v_pk_add_f32 {r2(vT)}, {r2(vT)}, {r2(vT+8)}
        v_pk_add_f32 {r2(vT+2)}, {r2(vT+2)}, {r2(vT+10)}
        """)
        tagins(vT)
        a(f"""
        buffer_store_dwordx4 {r4(vT)}, v{vU}, s[{SW}:{SW+3}], 0 offen sc1
        s_waitcnt lgkmcnt(0)
        """)
        for i in range(2, 16, 2): a(f"v_pk_add_f32 {r2(vU+4)}, {r2(vU+4)}, {r2(vU+4+i)}")
        a(f"""
        v_add_f32 v{vT+5}, v{vU+4}, v{vU+5}
        v_mov_b32 v{vT+4}, v{vXQ}
        v_mov_b32_dpp v{vT+6}, v{vXQ} row_shl:8 row_mask:0xf bank_mask:0xf
        v_mov_b32_dpp v{vT+7}, v{vT+5} row_shl:8 row_mask:0xf bank_mask:0xf
        """)
        tagins(vT + 4)
        a(f"""
        s_mov_b64 exec, 1
        buffer_store_dwordx4 {r4(vT+4)}, v{vU}, s[{SW}:{SW+3}], 0 offen offset:1024 sc1
        s_mov_b64 exec, -1
        {Lo1}:
        """)
        a(f"""
        s_mul_i32 s4, s6, 1152
        s_add_u32 s4, s4, {OB}
        v_and_b32 v{vQa}, 15, v0
        v_mul_u32_u24 v{vQa}, 1152, v{vQa}
        v_add_u32 v{vQa}, s4, v{vQa}
        v_bfe_u32 v{vQb}, v0, 4, 2
        v_lshl_add_u32 v{vQb}, s{sS}, 2, v{vQb}
        v_lshl_add_u32 v{vQb}, v{vQb}, 4, v{vQa}
        """)
        oloads = [f"buffer_load_dwordx4 {r4(vPoll)}, v{vQb}, s[{SW}:{SW+3}], 0 offen sc1",
                  f"buffer_load_dwordx4 {r4(vAcc)}, v{vQa}, s[{SW}:{SW+3}], 0 offen offset:1024 sc1"]
        a(f"""
        v_mul_u32_u24 v{vU}, 911, v0
        v_lshrrev_b32 v{vU}, 16, v{vU}
        v_mul_u32_u24 v{vRS}, 12, v{vU}
        v_add_u32 v{vU}, {HL}, v{vRS}
        ds_read2_b32 {r2(vXG)}, v{vU} offset0:0 offset1:1
        ds_read_b32 v{vXG+2}, v{vU} offset:8
        s_waitcnt lgkmcnt(0)
        """)
        while self.ip < len(big): issue_next()
        for k in range(6):
            A = flat_step(k, vXG, None, None, None)
            self.wait(f"D{k}")
            flat_mfma(A, dst[f"D{k}"], vAD, k == 0)
        Lo2 = self.lab("ocons")
        a(f"""
        s_cmp_lg_u32 s{sJ}, 1
        s_cbranch_scc1 {Lo2}
        """)
        for ld in oloads: a(ld)
        a("s_waitcnt vmcnt(0)")
        retry_loop("o", oloads, [vPoll, vAcc], vU)
        a(f"""
        s_cmp_ge_u32 s{sS}, 8
        s_cselect_b64 vcc, -1, 0
        v_cndmask_b32 v{vT}, v{vAcc}, v{vAcc+2}, vcc
        v_cndmask_b32 v{vT+1}, v{vAcc+1}, v{vAcc+3}, vcc
        v_and_b32 v{vT}, v{vT}, v{vTM}
        v_max_f32_dpp v{vT+2}, v{vT}, v{vT} row_ror:1 row_mask:0xf bank_mask:0xf
        """)
        for r in (2, 4, 8): a(f"v_max_f32_dpp v{vT+2}, v{vT+2}, v{vT+2} row_ror:{r} row_mask:0xf bank_mask:0xf")
        a(f"""
        v_sub_f32 v{vT}, v{vT}, v{vT+2}
        v_mul_f32 v{vT}, s{sC}, v{vT}
        v_exp_f32 v{vT}, v{vT}
        v_mul_f32 v{vT+1}, v{vT}, v{vT+1}
        """)
        for i in range(4): a(f"v_mul_f32 v{vPoll+i}, v{vT}, v{vPoll+i}")
        for r in (1, 2, 4, 8):
            a(f"v_add_f32_dpp v{vT+1}, v{vT+1}, v{vT+1} row_ror:{r} row_mask:0xf bank_mask:0xf")
            for i in range(4): a(f"v_add_f32_dpp v{vPoll+i}, v{vPoll+i}, v{vPoll+i} row_ror:{r} row_mask:0xf bank_mask:0xf")
        a(f"v_rcp_f32 v{vT+1}, v{vT+1}")
        for i in range(4): a(f"v_mul_f32 v{vPoll+i}, v{vT+1}, v{vPoll+i}")
        a(f"""
        v_cvt_pk_bf16_f32 v{vT+2}, v{vPoll}, v{vPoll+1}
        v_cvt_pk_bf16_f32 v{vT+3}, v{vPoll+2}, v{vPoll+3}
        v_lshrrev_b32 v{vU}, 4, v{vL}
        v_lshlrev_b32 v{vU}, 3, v{vU}
        ds_write_b64 v{vU}, {r2(vT+2)} offset:{OL}
        {Lo2}:
        """)
        for i in range(0, 8): a(f"v_mul_f32 v{vAD+i}, v{vOMG}, v{vAD+i}")
        a(f"""
        v_add_u32 v{vU+4}, {OL}, v{vRS}
        s_waitcnt lgkmcnt(0)
        s_barrier
        ds_read2_b32 {r2(vXG)}, v{vU+4} offset0:0 offset1:1
        ds_read_b32 v{vXG+2}, v{vU+4} offset:8
        """)
        a(f"""
        v_lshrrev_b32 v{vQa}, {CG.bit_length()-1}, v0
        v_mul_u32_u24 v{vQa}, {256*CG*16}, v{vQa}
        v_and_b32 v{vQb}, {CG-1}, v0
        v_lshl_add_u32 v{vQa}, v{vQb}, 4, v{vQa}
        s_mul_i32 s4, s2, {CG*16}
        s_add_u32 s4, s4, {FB}
        v_add_u32 v{vQa}, s4, v{vQa}
        s_waitcnt lgkmcnt(0)
        """)
        for k in range(6):
            A = flat_step(k, vXG, None, None, None)
            self.wait(f"O{k}")
            flat_mfma(A, dst[f"O{k}"], vAO, k == 0)
        for i in range(8): a(f"v_fma_f32 v{vAD+i}, v{vG}, v{vAO+i}, v{vAD+i}")
        a(f"""
        ds_write_b128 v{vCH}, {r4(vAD)} offset:{LF}
        ds_write_b128 v{vCH}, {r4(vAD+4)} offset:{LF+16}
        s_waitcnt lgkmcnt(0)
        s_barrier
        """)
        flat_reduce(LF, vQa, self.lab("fpub"))
        self.stamp() if self.nst < 7 else None
        a(f"""
        s_cmp_ge_u32 s2, {R}
        s_cbranch_scc1 L_fin
        """)
        assert CG == 4
        a(f"""
        s_mul_i32 s4, s2, {256*CG*16}
        s_add_u32 s4, s4, {FB}
        v_and_b32 v{vQa}, 15, v0
        v_lshlrev_b32 v{vQa}, 6, v{vQa}
        v_bfe_u32 v{vQb}, v0, 4, 2
        v_lshl_add_u32 v{vQa}, v{vQb}, 4, v{vQa}
        v_lshl_add_u32 v{vQa}, v{vJ}, 10, v{vQa}
        v_add_u32 v{vQa}, s4, v{vQa}
        s_movk_i32 s33, 0x1000
        s_movk_i32 s34, 0x2000
        s_movk_i32 s35, 0x3000
        """)
        floads = [f"buffer_load_dwordx4 {r4(R1+4*k)}, v{vQa}, s[{SW}:{SW+3}], {'0' if k == 0 else f's{32+k}'} offen sc1" for k in range(4)]
        for ld in floads: a(ld)
        a("s_waitcnt vmcnt(0)")
        retry_loop("f", floads, [R1 + 4 * k for k in range(4)], vU)
        a(f"""
        v_pk_add_f32 {r2(R1)}, {r2(R1)}, {r2(R1+4)}
        v_pk_add_f32 {r2(R1+2)}, {r2(R1+2)}, {r2(R1+6)}
        v_pk_add_f32 {r2(R1+8)}, {r2(R1+8)}, {r2(R1+12)}
        v_pk_add_f32 {r2(R1+10)}, {r2(R1+10)}, {r2(R1+14)}
        v_pk_add_f32 {r2(R1)}, {r2(R1)}, {r2(R1+8)}
        v_pk_add_f32 {r2(R1+2)}, {r2(R1+2)}, {r2(R1+10)}
        """)
        for r in (1, 2, 4, 8):
            for i in range(4): a(f"v_add_f32_dpp v{R1+i}, v{R1+i}, v{R1+i} row_ror:{r} row_mask:0xf bank_mask:0xf")
        a(f"""
        v_lshrrev_b32 v{vU}, 4, v0
        v_lshlrev_b32 v{vU}, 4, v{vU}
        ds_write_b128 v{vU}, {r4(R1)} offset:{RD}
        s_waitcnt lgkmcnt(0)
        s_barrier
        s_cmp_lg_u32 s{sJ}, 0
        s_cbranch_scc1 L_fin
        s_mov_b64 exec, 15
        """)
        for jj in range(4): a(f"ds_read_b128 {r4(vT+4*jj)}, v{vV} offset:{RD+64*jj}")
        a(f"""
        s_mov_b32 s{SX}, s56
        s_mov_b32 s{SX+1}, s57
        s_lshl_b32 s4, s2, 5
        v_lshl_add_u32 v{vU}, v0, 3, s4
        s_waitcnt lgkmcnt(0)
        v_pk_add_f32 {r2(vT)}, {r2(vT)}, {r2(vT+4)}
        v_pk_add_f32 {r2(vT+2)}, {r2(vT+2)}, {r2(vT+6)}
        v_pk_add_f32 {r2(vT+8)}, {r2(vT+8)}, {r2(vT+12)}
        v_pk_add_f32 {r2(vT+10)}, {r2(vT+10)}, {r2(vT+14)}
        v_pk_add_f32 {r2(vT)}, {r2(vT)}, {r2(vT+8)}
        v_pk_add_f32 {r2(vT+2)}, {r2(vT+2)}, {r2(vT+10)}
        v_cvt_pk_bf16_f32 v{vT}, v{vT}, v{vT+1}
        v_cvt_pk_bf16_f32 v{vT+1}, v{vT+2}, v{vT+3}
        buffer_store_dwordx2 {r2(vT)}, v{vU}, s[{SX}:{SX+3}], 0 offen
        s_cmp_lg_u32 s2, 0
        s_cbranch_scc1 L_fin
        s_mov_b64 exec, 1
        v_mov_b32 v{vT+4}, s{sTAG}
        v_mov_b32 v{vT+5}, 0
        buffer_store_dword v{vT+4}, v{vT+5}, s[{SW}:{SW+3}], 0 offen sc1
        L_fin:
        """)
        if o["amp"] >= 0:
            self.nst = 7; self.stamp()
            k = o["amp"]
            a(f"""
            s_waitcnt lgkmcnt(0)
            s_sub_u32 s6, s{16+2*k}, s16
            s_mul_i32 s6, s6, 10
            s_add_u32 s6, s6, 3000
            L_hold:
            s_memrealtime s[4:5]
            s_waitcnt lgkmcnt(0)
            s_sub_u32 s4, s4, s16
            s_cmp_lt_u32 s4, s6
            s_cbranch_scc1 L_hold
            """)
        elif o["stamps"] and o["dbgst"]:
            self.nst = 7; self.stamp()
            a(f"""
            s_waitcnt lgkmcnt(0)
            s_mov_b64 exec, 1
            v_mov_b32 v4, 0
            s_not_b32 s4, s16
            v_mov_b32 v2, s4
            global_atomic_umax v4, v2, s[58:59]
            """)
            for j in range(8):
                a(f"""
                v_mov_b32 v{5+j}, s{16+2*j}
                global_atomic_umax v4, v{5+j}, s[58:59] offset:{4+4*j}
                """)
        elif o["stamps"]:
            self.nst = 7; self.stamp()
            a(f"""
            s_waitcnt lgkmcnt(0)
            s_lshl_b32 s4, s2, 2
            s_add_u32 s4, s4, s{sJ}
            s_lshl_b32 s4, s4, 6
            s_add_u32 s4, s4, {STAMP_OFF - o['wsoff']:#x}
            s_add_u32 s6, s60, s4
            s_addc_u32 s7, s61, 0
            s_mov_b64 exec, 1
            v_mov_b32 v4, 0
            """)
            for j in range(8):
                a(f"""
                v_mov_b32 v2, s{16+2*j}
                v_mov_b32 v3, s{17+2*j}
                global_store_dwordx2 v4, v[2:3], s[6:7] offset:{8*j}
                s_nop 1
                """)
        if o["hold"]:
            a(f"""
            s_waitcnt lgkmcnt(0)
            L_hold:
            s_memrealtime s[4:5]
            s_waitcnt lgkmcnt(0)
            s_sub_u32 s4, s4, s16
            s_cmp_lt_u32 s4, {o["hold"]}
            s_cbranch_scc1 L_hold
            """)
        a("L_end:")
        a("s_endpgm")
        body = "\n".join(fix(self.l)) + "\n"
        head = open("cdna_kernels/" + KN + ".s.ref").read().split("; Override launch")[0]
        return head + f"""; @launch grid=(256,1,1) block=(256,1,1) lds={o['lds']}
.amdgcn_target "amdgcn-amd-amdhsa--gfx950"
.text
.globl {KN}_kernel
.p2align 8
.type {KN}_kernel,@function
{KN}_kernel:
""" + body + f""".section .rodata,"a"
.p2align 6
.amdhsa_kernel {KN}_kernel
  .amdhsa_next_free_vgpr 256
  .amdhsa_next_free_sgpr 102
  .amdhsa_accum_offset 256
  .amdhsa_group_segment_fixed_size 0
  .amdhsa_kernarg_size 104
  .amdhsa_user_sgpr_count 2
  .amdhsa_user_sgpr_kernarg_segment_ptr 1
  .amdhsa_system_sgpr_workgroup_id_x 1
.end_amdhsa_kernel
"""

if __name__ == "__main__":
    out = sys.argv[1]
    opt = {}
    for kv in sys.argv[2:]:
        k, v = kv.split("=")
        opt[k] = eval(v)
    open(out, "w").write(Gen(**opt).build())
```

```python
import sys, struct
from hazard import fix
KN = "gated_mix__sliding_block_cached__glu_gated_reglu__decode"
STAMP_OFF = 0x30000000
def f2u(x): return struct.unpack("<I", struct.pack("<f", x))[0]

class Gen:
    def __init__(self, **opt):
        self.o = dict(W=7, stamps=False, wsoff=0, qp=2, hp=3, R=36, round_scores=True, prefetch=3, jitter=0,
                      hold=0, amp=-1, lds=90112, nt="nt", spin=20000, pre_g=3, pre_q=2, pre_s=3, pre_h=1, Wt=6, fdepth=2)
        self.o.update(opt)
        self.l = []; self.vm = []; self.nl = 0; self.nst = 0; self.names = []
    def a(self, s):
        for x in s.strip().split("\n"):
            x = x.strip()
            if x: self.l.append(x if x.endswith(":") else "    " + x)
    def lab(self, p):
        self.nl += 1
        return f"L_{p}{self.nl}"
    def issue(self, label, s):
        self.a(s); self.vm.append(label)
    def wait(self, label):
        n = len(self.vm) - 1 - self.vm.index(label)
        assert n <= 63
        self.a(f"s_waitcnt vmcnt({n})")
    def sreg(self, k): return 16 + 2 * k if k < 8 else 36 + 2 * (k - 8)
    def stamp(self, name=""):
        if self.o["stamps"]:
            assert self.nst < 16
            r = self.sreg(self.nst)
            self.a(f"s_memrealtime s[{r}:{r+1}]")
            self.names.append(name); self.nst += 1

    def build(self):
        o = self.o; a = self.a; nt = o["nt"]; W = o["W"]
        QB, GB, OB, FB = 0x1000, 0x20000, 0xB0000, 0x100000
        R = o["R"]; CG = 144 // R
        LQ, LG, QL, MX, LS, GS, HP, HL, OL, OW, LF, RD = 0, 2048, 11264, 15360, 15488, 15616, 15744, 16512, 16576, 16640, 20736, 29952
        vL = 1; vM = [2, 3, 4, 5]; vSel = [6, 7, 8, 9]
        vQa, vQb, vGU, vK, vV, vP3, vP3b, vTM = 10, 11, 12, 13, 14, 15, 16, 17
        vXQ, vXQb, vXG, vGX, vGW = 18, 20, 22, 28, 30
        vS = 32; vBq = 48; vAcc = 52; vAD = 56; vAO = 64; vT = 72; vPoll = 92
        R1 = 100; R2 = 168; vU = 232
        vRS, vCH, vG, vOMG, vJ = 21, 96, 97, 98, 99
        dst = {}
        for i in range(5): dst[f"Q{i}"] = R1 + 4 * i
        for i in range(12): dst[f"G{i}"] = R1 + 20 + 4 * i
        for i in range(16): dst[f"K{i}"] = R2 + 4 * i; dst[f"V{i}"] = R1 + 4 * i
        for i in range(6): dst[f"D{i}"] = R2 + 4 * i; dst[f"O{i}"] = R2 + 24 + 4 * i
        big = [f"Q{i}" for i in range(5)] + [f"G{i}" for i in range(12)] + [f"K{i}" for i in range(16)] + \
              [f"V{i}" for i in range(16)] + [f"D{i}" for i in range(6)] + [f"O{i}" for i in range(6)]
        sTAG = 62; sJ = 3; sXCD, sG, sS = 8, 9, 10; sLIN = 12
        sKV = 13; sGU = 14; sC = 15
        SQ, SGU, SK, SV, SD, SO, SX, SGW, SW = 64, 68, 72, 76, 80, 84, 88, 92, 96
        r4 = lambda v: f"v[{v}:{v+3}]"
        r2 = lambda v: f"v[{v}:{v+1}]"
        DPP = "row_mask:0xf bank_mask:0xf"
        self.ip = 0; self.free_upto = len(big)
        def issue_next():
            lb = big[self.ip]; self.ip += 1
            d = r4(dst[lb]); k = int(lb[1:]); c = lb[0]
            if c == "V": assert self.gdone
            if c in "DO": assert self.kdone
            if c == "Q":
                if k == 0: self.issue(lb, f"buffer_load_dwordx4 {d}, v{vQa}, s[{SQ}:{SQ+3}], 0 offen {nt}")
                elif k < 4: self.issue(lb, f"buffer_load_dwordx4 {d}, v{vQa}, s[{SQ}:{SQ+3}], s{32+k} offen {nt}")
                else: self.issue(lb, f"buffer_load_dwordx4 {d}, v{vQb}, s[{SQ}:{SQ+3}], 0 offen {nt}")
            elif c == "G":
                if k == 0: a(f"s_mov_b32 s{sGU}, 0")
                else: a(f"s_addk_i32 s{sGU}, 9216")
                self.issue(lb, f"buffer_load_dwordx4 {d}, v{vGU}, s[{SGU}:{SGU+3}], s{sGU} offen {nt}")
            elif c in "KV":
                if k == 0: a(f"s_mov_b32 s{sKV}, 0")
                else: a(f"s_addk_i32 s{sKV}, 4096")
                sr, vo = (SK, vK) if c == "K" else (SV, vV)
                self.issue(lb, f"buffer_load_dwordx4 {d}, v{vo}, s[{sr}:{sr+3}], s{sKV} offen {nt}")
            else:
                sr = SD if c == "D" else SO
                vo, im = (vP3, k * 1152) if k < 4 else (vP3b, (k - 4) * 1152)
                self.issue(lb, f"buffer_load_dwordx4 {d}, v{vo}, s[{sr}:{sr+3}], 0 offen offset:{im} {nt}")
        self.gdone = self.kdone = False
        def fill(label, w=None):
            w = W if w is None else w
            idx = big.index(label)
            while self.ip < len(big) and self.ip <= idx + w: issue_next()
        def more(n):
            for _ in range(n):
                if self.ip < len(big): issue_next()
        def tagins(v):
            for i in range(4): a(f"v_and_or_b32 v{v+i}, v{v+i}, v{vTM}, s{sTAG}")
        def tagchk(vs, acc):
            first = True
            for v in vs:
                for i in range(4):
                    if first: a(f"v_xor_b32 v{acc}, s{sTAG}, v{v+i}"); first = False
                    else: a(f"v_bitop3_b32 v{acc}, v{v+i}, s{sTAG}, v{acc} bitop3:0xbe")
            a(f"v_and_b32 v{acc}, 0xff, v{acc}")
            a(f"v_cmp_ne_u32 vcc, 0, v{acc}")
        def retry_loop(name, loads, vs, acc):
            Lok = self.lab(name + "ok"); Lre = self.lab(name + "re")
            tagchk(vs, acc)
            a(f"s_mov_b32 s7, {o['spin']+1}")
            a(f"s_cbranch_vccz {Lok}")
            a(f"s_mov_b32 s7, {o['spin']}")
            a(f"{Lre}:")
            for ld in loads: a(ld)
            a("s_waitcnt vmcnt(0)")
            tagchk(vs, acc)
            a(f"s_cbranch_vccz {Lok}")
            a("s_sub_u32 s7, s7, 1")
            a("s_cmp_lg_u32 s7, 0")
            a(f"s_cbranch_scc1 {Lre}")
            a(f"{Lok}:")
            if o["stamps"] and o.get("cnt"):
                r = self.sreg(self.nst); self.names.append(name + "retry"); self.nst += 1
                a(f"s_sub_u32 s7, {o['spin']+1}, s7")
                a(f"s_mul_i32 s7, s7, 100")
                a(f"s_add_u32 s{r}, s16, s7")
                a(f"s_addc_u32 s{r+1}, s17, 0")
        def pipe_poll(name, mk, sets, acc, first_issued, fin):
            n = len(mk(sets[0])); D = len(sets)
            Lx = self.lab(name + "x"); Lre = self.lab(name + "re")
            Lmv = [self.lab(name + "mv") for _ in range(D)]
            for d in range(first_issued, D):
                for ld in mk(sets[d]): a(ld)
            a(f"s_mov_b32 s7, {o['spin']}")
            a(f"{Lre}:")
            for d in range(D):
                a(f"s_waitcnt vmcnt({n*(D-1)})")
                tagchk(sets[d], acc)
                a(f"s_cbranch_vccz {Lmv[d]}")
                for ld in mk(sets[d]): a(ld)
            a("s_sub_u32 s7, s7, 1")
            a("s_cmp_lg_u32 s7, 0")
            a(f"s_cbranch_scc1 {Lre}")
            for d in range(D - 1, -1, -1):
                a(f"{Lmv[d]}:")
                fin(sets[d])
                if d: a(f"s_branch {Lx}")
            a(f"{Lx}:")

        self.stamp("start")
        if o["hold"]: a("s_memrealtime s[16:17]")
        a(f"""
        s_load_dwordx16 s[36:51], s[0:1], 0
        s_cmpk_ge_u32 s2, 0x100
        s_cbranch_scc1 L_end
        """)
        if o["jitter"]:
            a(f"""s_mul_i32 s4, s2, 0x9e3779b1
            s_lshr_b32 s4, s4, {32-o["jitter"]}
            L_jit:
            s_cmp_eq_u32 s4, 0
            s_cbranch_scc1 L_jitd
            s_sleep 40
            s_sub_u32 s4, s4, 1
            s_branch L_jit
            L_jitd:""")
        a(f"""
        s_lshr_b32 s11, s2, 6
        s_mul_i32 s4, s11, {144*8192}
        s_and_b32 s5, s2, 63
        s_lshl_b32 s5, s5, 7
        s_add_u32 s4, s4, s5
        v_lshrrev_b32 v{vT}, 3, v0
        v_and_b32 v{vT+1}, 7, v0
        v_lshlrev_b32 v{vT+1}, 4, v{vT+1}
        v_lshl_add_u32 v{vQa}, v{vT}, 15, v{vT+1}
        s_mov_b32 s{SQ+2}, {143*8192+128}
        s_mov_b32 s{SQ+3}, 0x20000
        s_movk_i32 s33, 0x2000
        s_movk_i32 s34, 0x4000
        s_movk_i32 s35, 0x6000
        s_waitcnt lgkmcnt(0)
        s_add_u32 s{SQ}, s42, s4
        s_addc_u32 s{SQ+1}, s43, 0
        """)
        more(4)
        a(f"""
        s_load_dwordx8 s[52:59], s[0:1], 64
        s_load_dwordx2 s[60:61], s[0:1], 96
        v_lshl_add_u32 v{vQb}, v{vT}, 13, v{vT+1}
        v_add_u32 v{vQb}, {128*8192}, v{vQb}
        """)
        more(1)
        a(f"""
        s_and_b32 s{sXCD}, s2, 7
        s_lshr_b32 s6, s2, 4
        s_bitcmp1_b32 s2, 3
        s_cselect_b32 s{SGU}, s50, s48
        s_cselect_b32 s{SGU+1}, s51, s49
        s_mul_i32 s4, s6, {36*9216}
        s_mul_i32 s5, s{sXCD}, 1152
        s_add_u32 s4, s4, s5
        s_add_u32 s{SGU}, s{SGU}, s4
        s_addc_u32 s{SGU+1}, s{SGU+1}, 0
        s_mov_b32 s{SGU+2}, {35*9216+1152}
        s_mov_b32 s{SGU+3}, 0x20000
        v_mul_u32_u24 v{vRS}, 911, v0
        v_lshrrev_b32 v{vRS}, 16, v{vRS}
        v_mul_u32_u24 v{vCH}, 72, v{vRS}
        v_sub_u32 v{vCH}, v0, v{vCH}
        v_mul_u32_u24 v{vGU}, {12*9216}, v{vRS}
        v_lshl_add_u32 v{vGU}, v{vCH}, 4, v{vGU}
        s_mov_b32 s{SX}, s36
        s_mov_b32 s{SX+1}, s37
        s_movk_i32 s{SX+2}, 1152
        s_mov_b32 s{SX+3}, 0x20000
        s_mul_i32 s5, s11, 288
        v_lshl_add_u32 v{vT+2}, v{vT}, 3, s5
        v_lshl_add_u32 v{vT+3}, v{vT}, 1, s5
        """)
        self.issue("XQa", f"buffer_load_dwordx2 {r2(vXQ)}, v{vT+2}, s[{SX}:{SX+3}], 0 offen")
        self.issue("XQb", f"buffer_load_ushort v{vXQb}, v{vT+3}, s[{SX}:{SX+3}], 0 offen offset:256")
        more(2)
        a(f"""
        s_mul_i32 s5, s6, 72
        v_mul_u32_u24 v{vT+2}, 24, v{vRS}
        v_add_u32 v{vT+2}, s5, v{vT+2}
        """)
        self.issue("XGa", f"buffer_load_dwordx4 {r4(vXG)}, v{vT+2}, s[{SX}:{SX+3}], 0 offen")
        self.issue("XGb", f"buffer_load_dwordx2 {r2(vXG+4)}, v{vT+2}, s[{SX}:{SX+3}], 0 offen offset:16")
        if o["prefetch"]:
            a(f"""
            s_getpc_b64 s[4:5]
            s_lshr_b32 s7, s2, 3
            s_mul_i32 s7, s7, {128*o['prefetch']}
            v_and_b32 v{vT+2}, 63, v0
            v_lshl_add_u32 v{vT+2}, v{vT+2}, 7, s7
            s_mov_b64 exec, {(1 << o['prefetch']) - 1}
            """)
            self.issue("PF", f"global_load_dword v{vPoll}, v{vT+2}, s[4:5]")
            a("s_mov_b64 exec, -1")
        a(f"""
        s_waitcnt lgkmcnt(0)
        s_add_u32 s60, s60, {o['wsoff']:#x}
        s_addc_u32 s61, s61, 0
        s_load_dword s{sTAG}, s[60:61], 0
        s_mov_b32 s{SGW}, s54
        s_mov_b32 s{SGW+1}, s55
        s_movk_i32 s{SGW+2}, 1152
        s_mov_b32 s{SGW+3}, 0x20000
        v_lshlrev_b32 v{vT+2}, 3, v0
        """)
        self.issue("GX", f"buffer_load_dwordx2 {r2(vGX)}, v{vT+2}, s[{SX}:{SX+3}], 0 offen")
        self.issue("GW", f"buffer_load_dwordx2 {r2(vGW)}, v{vT+2}, s[{SGW}:{SGW+3}], 0 offen")
        more(1)
        a(f"""
        s_bfe_u32 s{sG}, s2, 0x40002
        s_and_b32 s{sS}, s2, 3
        s_lshl2_add_u32 s{sS}, s11, s{sS}
        s_lshl_b32 s4, s{sG}, 24
        s_lshl_b32 s5, s{sS}, 16
        s_add_u32 s4, s4, s5
        s_add_u32 s4, s4, {61440*256}
        s_add_u32 s{SK}, s38, s4
        s_addc_u32 s{SK+1}, s39, 0
        s_mov_b32 s{SK+2}, 0x10000
        s_mov_b32 s{SK+3}, 0x20000
        s_add_u32 s{SV}, s40, s4
        s_addc_u32 s{SV+1}, s41, 0
        s_mov_b32 s{SV+2}, 0x10000
        s_mov_b32 s{SV+3}, 0x20000
        s_lshr_b32 s4, s2, 3
        s_lshl_b32 s{sLIN}, s{sXCD}, 5
        s_add_u32 s{sLIN}, s{sLIN}, s4
        s_mul_i32 s4, s{sLIN}, {18*1152}
        s_add_u32 s{SD}, s52, s4
        s_addc_u32 s{SD+1}, s53, 0
        s_movk_i32 s{SD+2}, {18*1152}
        s_mov_b32 s{SD+3}, 0x20000
        s_lshl4_add_u32 s4, s{sG}, s{sS}
        s_mul_i32 s4, s4, {16*1152}
        s_add_u32 s{SO}, s44, s4
        s_addc_u32 s{SO+1}, s45, 0
        s_movk_i32 s{SO+2}, {16*1152}
        s_mov_b32 s{SO+3}, 0x20000
        s_mov_b32 s{SW}, s60
        s_mov_b32 s{SW+1}, s61
        s_mov_b32 s{SW+2}, 0x200000
        s_mov_b32 s{SW+3}, 0x20000
        v_and_b32 v{vL}, 63, v0
        v_lshrrev_b32 v{vJ}, 6, v0
        v_lshlrev_b32 v{vV}, 4, v0
        v_readfirstlane_b32 s{sJ}, v{vJ}
        v_and_b32 v{vT}, 3, v0
        v_lshlrev_b32 v{vT}, 4, v{vT}
        v_bfe_u32 v{vT+1}, v0, 2, 2
        v_lshl_add_u32 v{vT}, v{vT+1}, 8, v{vT}
        v_bfe_u32 v{vT+1}, v0, 4, 2
        v_lshl_add_u32 v{vT}, v{vT+1}, 6, v{vT}
        v_lshl_add_u32 v{vK}, v{vJ}, 10, v{vT}
        v_mul_u32_u24 v{vP3}, {6*1152}, v{vRS}
        v_lshl_add_u32 v{vP3}, v{vCH}, 4, v{vP3}
        v_add_u32 v{vP3b}, 4608, v{vP3}
        v_mov_b32 v{vTM}, 0xffffff00
        v_and_b32 v{vT}, 1, v0
        v_lshlrev_b32 v{vT}, 4, v{vT}
        v_mov_b32 v{vT+1}, 0xffff
        v_lshlrev_b32 v{vT}, v{vT}, v{vT+1}
        v_bfe_u32 v{vT+1}, v0, 1, 2
        v_cmp_eq_u32 s[4:5], 0, v{vT+1}
        v_cmp_eq_u32 s[6:7], 1, v{vT+1}
        v_cmp_eq_u32 vcc, 2, v{vT+1}
        v_cndmask_b32 v{vM[0]}, 0, v{vT}, s[4:5]
        v_cndmask_b32 v{vM[1]}, 0, v{vT}, s[6:7]
        v_cmp_eq_u32 s[6:7], 3, v{vT+1}
        v_cndmask_b32 v{vM[2]}, 0, v{vT}, vcc
        v_or_b32 v{vT+3}, v{vM[0]}, v{vM[2]}
        v_cndmask_b32 v{vM[3]}, 0, v{vT}, s[6:7]
        v_or_b32 v{vT+1}, v{vM[1]}, v{vM[3]}
        v_mov_b32 v{vT+2}, 0x0c0c0c0c
        s_mov_b32 s32, 0x01000100
        s_mov_b32 s63, 0x03020302
        v_bfi_b32 v{vSel[0]}, v{vT+3}, s32, v{vT+2}
        v_bfi_b32 v{vSel[1]}, v{vT+1}, s32, v{vT+2}
        v_bfi_b32 v{vSel[2]}, v{vT+3}, s63, v{vT+2}
        v_bfi_b32 v{vSel[3]}, v{vT+1}, s63, v{vT+2}
        v_lshlrev_b32 v{vT}, 2, v{vL}
        v_and_b32 v{vT}, 0x7c, v{vT}
        v_mov_b32 v{vT+1}, 0
        ds_write_b32 v{vT}, v{vT+1} offset:{HL}
        v_bfe_u32 v{vU+4}, v0, 3, 1
        v_bfe_u32 v{vU+5}, v0, 5, 1
        v_cmp_eq_u32 vcc, v{vU+4}, v{vU+5}
        v_lshrrev_b32 v{vU+4}, 5, v0
        v_lshlrev_b32 v{vU+4}, 8, v{vU+4}
        v_bfe_u32 v{vU+5}, v0, 4, 1
        v_lshl_add_u32 v{vU+4}, v{vU+5}, 7, v{vU+4}
        v_and_b32 v{vU+5}, 7, v0
        v_lshl_add_u32 v{vU+4}, v{vU+5}, 2, v{vU+4}
        v_mov_b32 v{vU+5}, {QL}
        v_cndmask_b32 v{vU+4}, v{vU+5}, v{vU+4}, vcc
        """)
        self.stamp("prol")
        self.wait("XQb")
        fill("Q4")
        for t in range(5):
            src = vXQ + (t >> 1) if t < 4 else vXQb
            sel = "s63" if (t < 4 and t & 1) else "s32"
            a(f"v_perm_b32 v{vU}, v{src}, v{src}, {sel}")
            for j in range(4): a(f"v_and_b32 v{vT+4*t+j}, v{vU}, v{vM[j]}")
        for t in range(5):
            a(f"v_mfma_f32_16x16x32_bf16 {r4(vAcc)}, {r4(dst[f'Q{t}'])}, {r4(vT+4*t)}, {'0' if t == 0 else r4(vAcc)}")
        a(f"""
        s_lshl_b32 s4, s{sG}, 12
        s_add_u32 s4, s4, {QB}
        v_add_u32 v{vQa}, s4, v{vV}
        s_lshr_b32 s4, s2, 3
        s_mul_i32 s4, s4, 9
        s_lshr_b32 s4, s4, 1
        s_lshl_b32 s4, s4, 4
        s_mul_i32 s5, s{sXCD}, {32*2304}
        s_add_u32 s4, s4, s5
        s_mul_i32 s5, s{sJ}, {8*2304}
        s_add_u32 s4, s4, s5
        s_add_u32 s4, s4, {GB}
        v_and_b32 v{vU}, 7, v0
        v_mul_u32_u24 v{vU}, 2304, v{vU}
        v_lshrrev_b32 v{vU+1}, 3, v{vL}
        v_min_u32 v{vU+1}, 4, v{vU+1}
        v_lshl_add_u32 v{vU}, v{vU+1}, 4, v{vU}
        v_add_u32 v{vQb}, s4, v{vU}
        """)
        for i in range(4): a(f"ds_write_b32 v{vU+4}, v{vAcc+i} offset:{LQ+32*i}")
        a(f"""
        s_waitcnt lgkmcnt(0)
        s_barrier
        s_add_u32 s{sTAG}, s{sTAG}, 1
        s_and_b32 s{sTAG}, s{sTAG}, 0xff
        """)
        Lq = self.lab("qpub")
        a(f"""
        s_cmp_lg_u32 s{sJ}, 3
        s_cbranch_scc1 {Lq}
        s_mov_b64 exec, 0xffff
        v_lshlrev_b32 v{vU}, 4, v{vL}
        """)
        for p in range(8): a(f"ds_read_b128 {r4(vT+4*p) if p < 5 else r4(vU+4+4*(p-5))}, v{vU} offset:{LQ+256*p}")
        a(f"""
        s_lshl_b32 s4, s{sG}, 12
        s_lshl_b32 s5, s{sS}, 8
        s_add_u32 s4, s4, s5
        s_add_u32 s4, s4, {QB}
        v_add_u32 v{vU}, s4, v{vU}
        s_waitcnt lgkmcnt(0)
        """)
        for p in range(1, 8):
            src = vT + 4 * p if p < 5 else vU + 4 + 4 * (p - 5)
            a(f"v_pk_add_f32 {r2(vT)}, {r2(vT)}, {r2(src)}")
            a(f"v_pk_add_f32 {r2(vT+2)}, {r2(vT+2)}, {r2(src+2)}")
        tagins(vT)
        a(f"""
        buffer_store_dwordx4 {r4(vT)}, v{vU}, s[{SW}:{SW+3}], 0 offen sc1
        s_mov_b64 exec, -1
        {Lq}:
        """)
        self.stamp("qpub")
        def flat_A(k, xsrc):
            p = k & 1; A = vU + 2 * p
            a(f"v_perm_b32 v{A}, v{xsrc+(k>>1)}, v{xsrc+(k>>1)}, v{vSel[2*p]}")
            a(f"v_perm_b32 v{A+1}, v{xsrc+(k>>1)}, v{xsrc+(k>>1)}, v{vSel[2*p+1]}")
            return A
        def flat_mfma(A, data, acc, first):
            a(f"v_mfma_f32_4x4x4_16b_bf16 {r4(acc)}, {r2(A)}, {r2(data)}, {'0' if first else r4(acc)}")
            a(f"v_mfma_f32_4x4x4_16b_bf16 {r4(acc+4)}, {r2(A)}, {r2(data+2)}, {'0' if first else r4(acc+4)}")
        self.wait("XGb")
        for k in range(12):
            A = flat_A(k, vXG)
            self.wait(f"G{k}")
            flat_mfma(A, dst[f"G{k}"], vAD, k == 0)
            fill(f"G{k}")
            if k == 4:
                assert self.vm.index("GW") < self.vm.index("G4")
                a(f"""
                v_lshlrev_b32 v{vT}, 16, v{vGX}
                v_and_b32 v{vT+1}, 0xffff0000, v{vGX}
                v_lshlrev_b32 v{vT+2}, 16, v{vGX+1}
                v_and_b32 v{vT+3}, 0xffff0000, v{vGX+1}
                v_lshlrev_b32 v{vT+4}, 16, v{vGW}
                v_and_b32 v{vT+5}, 0xffff0000, v{vGW}
                v_lshlrev_b32 v{vT+6}, 16, v{vGW+1}
                v_and_b32 v{vT+7}, 0xffff0000, v{vGW+1}
                v_pk_mul_f32 {r2(vT)}, {r2(vT)}, {r2(vT+4)}
                v_pk_mul_f32 {r2(vT+2)}, {r2(vT+2)}, {r2(vT+6)}
                v_cvt_pk_bf16_f32 v{vT}, v{vT}, v{vT+1}
                v_cvt_pk_bf16_f32 v{vT+2}, v{vT+2}, v{vT+3}
                v_and_b32 v{vT+1}, 0xffff0000, v{vT}
                v_lshlrev_b32 v{vT}, 16, v{vT}
                v_and_b32 v{vT+3}, 0xffff0000, v{vT+2}
                v_lshlrev_b32 v{vT+2}, 16, v{vT+2}
                v_pk_add_f32 {r2(vT)}, {r2(vT)}, {r2(vT+2)}
                v_add_f32 v{vT}, v{vT}, v{vT+1}
                v_mul_u32_u24 v{vRS}, 2304, v{vRS}
                v_lshl_add_u32 v{vCH}, v{vCH}, 5, v{vRS}
                """)
                for r in (1, 2, 4, 8): a(f"v_add_f32_dpp v{vT}, v{vT}, v{vT} row_ror:{r} {DPP}")
                a(f"""
                v_lshrrev_b32 v{vT+1}, 4, v0
                v_lshlrev_b32 v{vT+1}, 2, v{vT+1}
                ds_write_b32 v{vT+1}, v{vT} offset:{GS}
                s_mul_i32 s6, s{sLIN}, 2304
                s_add_u32 s6, s6, {GB}
                v_add_u32 v{vU+4}, s6, v{vV}
                """)
        self.gdone = True
        a(f"""
        ds_write_b128 v{vCH}, {r4(vAD)} offset:{LG}
        ds_write_b128 v{vCH}, {r4(vAD+4)} offset:{LG+16}
        s_waitcnt lgkmcnt(0)
        s_barrier
        """)
        def flat_reduce(base, voff, Lskip):
            a(f"""
            v_cmp_gt_u32 vcc, 144, v0
            s_and_saveexec_b64 s[4:5], vcc
            s_cbranch_execz {Lskip}
            ds_read_b128 {r4(vT)}, v{vV} offset:{base}
            ds_read_b128 {r4(vT+4)}, v{vV} offset:{base+2304}
            ds_read_b128 {r4(vT+8)}, v{vV} offset:{base+4608}
            s_waitcnt lgkmcnt(1)
            v_pk_add_f32 {r2(vT)}, {r2(vT)}, {r2(vT+4)}
            v_pk_add_f32 {r2(vT+2)}, {r2(vT+2)}, {r2(vT+6)}
            s_waitcnt lgkmcnt(0)
            v_pk_add_f32 {r2(vT)}, {r2(vT)}, {r2(vT+8)}
            v_pk_add_f32 {r2(vT+2)}, {r2(vT+2)}, {r2(vT+10)}
            """)
            tagins(vT)
            a(f"""
            buffer_store_dwordx4 {r4(vT)}, v{voff}, s[{SW}:{SW+3}], 0 offen sc1
            {Lskip}:
            s_mov_b64 exec, s[4:5]
            """)
        flat_reduce(LG, vU + 4, self.lab("gpub"))
        self.stamp("gpub")
        more(o["pre_g"])
        a(f"""
        v_mov_b32 v{vU}, 0
        ds_read_b128 {r4(vT+12)}, v{vU} offset:{GS}
        ds_read_b128 {r4(vT+4)}, v{vU} offset:{GS+16}
        ds_read_b128 {r4(vT+8)}, v{vU} offset:{GS+32}
        s_waitcnt lgkmcnt(0)
        v_pk_add_f32 {r2(vT+12)}, {r2(vT+12)}, {r2(vT+14)}
        v_pk_add_f32 {r2(vT+4)}, {r2(vT+4)}, {r2(vT+6)}
        v_pk_add_f32 {r2(vT+8)}, {r2(vT+8)}, {r2(vT+10)}
        v_pk_add_f32 {r2(vT+12)}, {r2(vT+12)}, {r2(vT+4)}
        v_pk_add_f32 {r2(vT+12)}, {r2(vT+12)}, {r2(vT+8)}
        v_add_f32 v{vU}, v{vT+12}, v{vT+13}
        v_cvt_pk_bf16_f32 v{vU}, v{vU}, v{vU}
        v_lshlrev_b32 v{vU}, 16, v{vU}
        v_mul_f32 v{vU}, {f2u(-1.4426950408889634):#x}, v{vU}
        v_exp_f32 v{vU}, v{vU}
        v_add_f32 v{vU}, 1.0, v{vU}
        v_rcp_f32 v{vU}, v{vU}
        v_cvt_pk_bf16_f32 v{vU}, v{vU}, v{vU}
        v_lshlrev_b32 v{vG}, 16, v{vU}
        v_sub_f32 v{vU}, 1.0, v{vG}
        v_cvt_pk_bf16_f32 v{vU}, v{vU}, v{vU}
        v_lshlrev_b32 v{vOMG}, 16, v{vU}
        """)
        qload = f"buffer_load_dwordx4 {r4(vPoll)}, v{vQa}, s[{SW}:{SW+3}], 0 offen sc1"
        for k in range(o["qp"] + 1):
            self.wait(f"K{k}"); fill(f"K{k}")
        self.issue("QP", qload)
        lastK = min(15, self.ip - 1 - big.index("K0"))
        for k in range(o["qp"] + 1, lastK + 1):
            self.wait(f"K{k}"); fill(f"K{k}")
        more(o["pre_q"])
        a(f"""
        v_bfe_u32 v{vU+1}, v0, 3, 1
        v_lshlrev_b32 v{vU+1}, 9, v{vU+1}
        v_bfe_u32 v{vU+2}, v0, 4, 2
        v_lshl_add_u32 v{vU+1}, v{vU+2}, 7, v{vU+1}
        v_and_b32 v{vU+2}, 3, v0
        v_lshl_add_u32 v{vU+1}, v{vU+2}, 5, v{vU+1}
        """)
        if o.get("st2"): self.stamp("preQP")
        self.wait("QP")
        if o.get("st2"): self.stamp("postQP")
        retry_loop("q", [qload], [vPoll], vU)
        a(f"""
        ds_write_b128 v{vV}, {r4(vPoll)} offset:{QL}
        s_waitcnt lgkmcnt(0)
        s_barrier
        """)
        qd = [vT, vT + 8, vU + 8, vU + 16]
        for k in range(4):
            a(f"ds_read_b128 {r4(qd[k])}, v{vU+1} offset:{QL+1024*k}")
            a(f"ds_read_b128 {r4(qd[k]+4)}, v{vU+1} offset:{QL+1024*k+16}")
        a("s_waitcnt lgkmcnt(4)")
        for i in range(0, 8, 2): a(f"v_pk_add_f32 {r2(qd[0]+i)}, {r2(qd[0]+i)}, {r2(qd[1]+i)}")
        a("s_waitcnt lgkmcnt(0)")
        for i in range(0, 8, 2): a(f"v_pk_add_f32 {r2(qd[2]+i)}, {r2(qd[2]+i)}, {r2(qd[3]+i)}")
        for i in range(0, 8, 2): a(f"v_pk_add_f32 {r2(qd[0]+i)}, {r2(qd[0]+i)}, {r2(qd[2]+i)}")
        for i in range(4): a(f"v_cvt_pk_bf16_f32 v{vBq+i}, v{qd[0]+2*i}, v{qd[0]+2*i+1}")
        self.stamp("qcons")
        if o["round_scores"]: a(f"s_mov_b32 s{sC}, {f2u(128 ** -0.5):#x}")
        def qk_fin(t):
            D = vT + 4 * (t % 4)
            a(f"v_mov_b32_dpp v{vS+t}, v{D} quad_perm:[0,0,0,0] {DPP}")
            for u in range(1, 4): a(f"v_add_f32_dpp v{vS+t}, v{D+u}, v{vS+t} quad_perm:[{u},{u},{u},{u}] {DPP}")
            if t & 1:
                t0 = t - 1
                if o["round_scores"]:
                    a(f"""
                    v_cvt_pk_bf16_f32 v{vU}, v{vS+t0}, v{vS+t0+1}
                    v_lshlrev_b32 v{vS+t0}, 16, v{vU}
                    v_and_b32 v{vS+t0+1}, 0xffff0000, v{vU}
                    v_mul_f32 v{vS+t0}, s{sC}, v{vS+t0}
                    v_mul_f32 v{vS+t0+1}, s{sC}, v{vS+t0+1}
                    v_cvt_pk_bf16_f32 v{vU}, v{vS+t0}, v{vS+t0+1}
                    v_lshlrev_b32 v{vS+t0}, 16, v{vU}
                    v_and_b32 v{vS+t0+1}, 0xffff0000, v{vU}
                    """)
                if t == 1: a(f"v_max_f32 v{vU+1}, v{vS}, v{vS+1}")
                else: a(f"v_max3_f32 v{vU+1}, v{vU+1}, v{vS+t0}, v{vS+t0+1}")
        for t in range(16):
            if t > lastK: self.wait(f"K{t}")
            D = vT + 4 * (t % 4)
            a(f"v_mfma_f32_16x16x32_bf16 {r4(D)}, {r4(dst[f'K{t}'])}, {r4(vBq)}, 0")
            if t == 15: self.kdone = True
            if t > lastK: fill(f"K{t}")
            if t >= 2: qk_fin(t - 2)
        more(o["pre_s"])
        a(f"""
        v_bfe_u32 v{vU+2}, v0, 3, 1
        v_lshlrev_b32 v{vU+2}, 6, v{vU+2}
        v_lshrrev_b32 v{vU+3}, 4, v0
        v_lshl_add_u32 v{vK}, v{vU+3}, 2, v{vU+2}
        """)
        qk_fin(14); qk_fin(15)
        cexp = 1.4426950408889634 if o["round_scores"] else 128 ** -0.5 * 1.4426950408889634
        a(f"""
        ds_write_b32 v{vK}, v{vU+1} offset:{MX}
        s_mov_b32 s{sC}, {f2u(cexp):#x}
        s_waitcnt lgkmcnt(0)
        s_barrier
        """)
        for i in range(4): a(f"ds_read_b128 {r4(vT+4*i)}, v{vU+2} offset:{MX+16*i}")
        a("s_waitcnt lgkmcnt(0)")
        a(f"v_max3_f32 v{vT}, v{vT}, v{vT+1}, v{vT+2}")
        for t in range(3, 15, 2): a(f"v_max3_f32 v{vT}, v{vT}, v{vT+t}, v{vT+t+1}")
        a(f"v_max_f32 v{vXQ}, v{vT}, v{vT+15}")
        a(f"v_and_b32 v{vXQ}, v{vXQ}, v{vTM}")
        a(f"v_mul_f32 v{vXQ+1}, s{sC}, v{vXQ}")
        for t in range(16): a(f"v_fma_f32 v{vS+t}, v{vS+t}, s{sC}, -v{vXQ+1}")
        for t in range(16): a(f"v_exp_f32 v{vS+t}, v{vS+t}")
        a(f"v_pk_add_f32 {r2(vT)}, {r2(vS)}, {r2(vS+2)}")
        for t in range(4, 16, 2): a(f"v_pk_add_f32 {r2(vT)}, {r2(vT)}, {r2(vS+t)}")
        a(f"v_add_f32 v{vT}, v{vT}, v{vT+1}")
        a(f"ds_write_b32 v{vK}, v{vT} offset:{LS}")
        self.stamp("smax")
        hload = f"buffer_load_dwordx4 {r4(vAO)}, v{vQb}, s[{SW}:{SW+3}], 0 offen sc1"
        self.issue("HPL", hload)
        hafter = min(15, self.ip - 1 - big.index("V0"))
        for t in range(16):
            B = vT + 4 * (t % 2)
            a(f"v_cvt_pk_bf16_f32 v{vU}, v{vS+t}, v{vS+t}")
            for j in range(4): a(f"v_and_b32 v{B+j}, v{vU}, v{vM[j]}")
            self.wait(f"V{t}")
            a(f"v_mfma_f32_16x16x32_bf16 {r4(vAcc)}, {r4(dst[f'V{t}'])}, {r4(B)}, {'0' if t == 0 else r4(vAcc)}")
            fill(f"V{t}", W if t < 15 - W + o["Wt"] or True and t + W <= 15 + o["Wt"] else 15 + o["Wt"] - t)
            if t == hafter:
                more(o["pre_h"]) if self.ip <= big.index("V15") + o["Wt"] else None
                a(f"""
                v_and_b32 v{vU+1}, 7, v0
                v_cmp_gt_u32 s[4:5], 2, v{vU+1}
                v_mul_u32_u24 v{vU+1}, 96, v{vU+1}
                v_lshrrev_b32 v{vU+2}, 3, v{vL}
                v_min_u32 v{vU+2}, 5, v{vU+2}
                v_lshl_add_u32 v{vU+1}, v{vU+2}, 4, v{vU+1}
                s_mul_i32 s6, s{sJ}, 192
                s_add_u32 s6, s6, {HP}
                v_add_u32 v{vU+1}, s6, v{vU+1}
                v_mov_b32 v{vU+2}, {QL}
                v_cndmask_b32 v{vU+1}, v{vU+2}, v{vU+1}, s[4:5]
                """)
                if o.get("st2"): self.stamp("preHP")
                self.wait("HPL")
                if o.get("st2"): self.stamp("postHP")
                retry_loop("h", [hload], [vAO], vU)
                for i in range(4): a(f"v_add_f32_dpp v{vAO+i}, v{vAO+i}, v{vAO+i} quad_perm:[2,3,0,1] {DPP}")
                for i in range(4): a(f"v_add_f32_dpp v{vAO+i}, v{vAO+i}, v{vAO+i} row_shl:4 {DPP}")
                a(f"""
                ds_write_b128 v{vU+1}, {r4(vAO)}
                s_waitcnt lgkmcnt(0)
                s_barrier
                """)
                Lh = self.lab("hfin"); Lm = self.lab("mlpub")
                a(f"""
                s_cmp_lg_u32 s{sJ}, 3
                s_cbranch_scc1 {Lh}
                s_mov_b64 exec, 0x3ffff
                s_bfe_u32 s4, s2, 0x10003
                s_lshl_b32 s4, s4, 3
                s_add_u32 s4, s4, {HP}
                v_lshl_add_u32 v{vU+1}, v{vL}, 2, s4
                """)
                for jj in range(4): a(f"ds_read2_b32 {r2(vU+2+2*jj)}, v{vU+1} offset0:{48*jj} offset1:{48*jj+24}")
                a(f"""
                s_waitcnt lgkmcnt(0)
                v_pk_add_f32 {r2(vU+2)}, {r2(vU+2)}, {r2(vU+4)}
                v_pk_add_f32 {r2(vU+6)}, {r2(vU+6)}, {r2(vU+8)}
                v_pk_add_f32 {r2(vU+2)}, {r2(vU+2)}, {r2(vU+6)}
                v_cvt_pk_bf16_f32 v{vU+2}, v{vU+2}, v{vU+3}
                v_and_b32 v{vU+3}, 0xffff0000, v{vU+2}
                v_lshlrev_b32 v{vU+2}, 16, v{vU+2}
                v_max_f32 v{vU+2}, 0, v{vU+2}
                v_mul_f32 v{vU+2}, v{vU+2}, v{vU+3}
                v_cvt_pk_bf16_f32 v{vU+2}, v{vU+2}, v{vU+2}
                v_lshlrev_b32 v{vU+1}, 1, v{vL}
                ds_write_b16 v{vU+1}, v{vU+2} offset:{HL}
                s_mov_b64 exec, -1
                {Lh}:
                s_lshl4_add_u32 s6, s{sG}, s{sS}
                s_mul_i32 s6, s6, 1152
                s_add_u32 s6, s6, {OB}
                v_add_u32 v{vGU}, s6, v{vV}
                s_cmp_lg_u32 s{sJ}, 2
                s_cbranch_scc1 {Lm}
                v_bfe_u32 v{vU+1}, v0, 3, 1
                v_lshlrev_b32 v{vU+1}, 6, v{vU+1}
                """)
                for i in range(4): a(f"ds_read_b128 {r4(vU+4+4*i)}, v{vU+1} offset:{LS+16*i}")
                a(f"v_mov_b32 v{vU+1}, s6")
                a("s_waitcnt lgkmcnt(0)")
                for i in range(2, 16, 2): a(f"v_pk_add_f32 {r2(vU+4)}, {r2(vU+4)}, {r2(vU+4+i)}")
                a(f"""
                v_add_f32 v{vU+5}, v{vU+4}, v{vU+5}
                v_mov_b32 v{vU+4}, v{vXQ}
                v_mov_b32_dpp v{vU+6}, v{vXQ} row_shl:8 {DPP}
                v_mov_b32_dpp v{vU+7}, v{vU+5} row_shl:8 {DPP}
                """)
                tagins(vU + 4)
                a(f"""
                s_mov_b64 exec, 1
                buffer_store_dwordx4 {r4(vU+4)}, v{vU+1}, s[{SW}:{SW+3}], 0 offen offset:1024 sc1
                s_mov_b64 exec, -1
                {Lm}:
                """)
                if o.get("st2"): self.stamp("hdone")
                a(f"""
                v_bfe_u32 v{vK}, v0, 3, 1
                v_lshlrev_b32 v{vK}, 9, v{vK}
                v_bfe_u32 v{vU+1}, v0, 4, 2
                v_lshl_add_u32 v{vK}, v{vU+1}, 7, v{vK}
                v_and_b32 v{vU+1}, 7, v0
                v_lshl_add_u32 v{vK}, v{vU+1}, 2, v{vK}
                v_lshl_add_u32 v{vK}, v{vJ}, 10, v{vK}
                s_mul_i32 s4, s{sG}, {16*1152}
                s_add_u32 s4, s4, {OB}
                v_and_b32 v{vQa}, 15, v0
                v_mul_u32_u24 v{vQa}, 1152, v{vQa}
                v_add_u32 v{vQa}, s4, v{vQa}
                v_bfe_u32 v{vQb}, v0, 4, 2
                v_lshl_add_u32 v{vQb}, s{sS}, 2, v{vQb}
                v_lshl_add_u32 v{vQb}, v{vQb}, 4, v{vQa}
                v_mul_u32_u24 v{vRS}, 911, v0
                v_lshrrev_b32 v{vRS}, 16, v{vRS}
                v_mul_u32_u24 v{vRS}, 12, v{vRS}
                v_add_u32 v{vRS}, {HL}, v{vRS}
                v_lshrrev_b32 v{vXQb}, {CG.bit_length()-1}, v0
                v_mul_u32_u24 v{vXQb}, {256*CG*16}, v{vXQb}
                v_and_b32 v{vU+1}, {CG-1}, v0
                v_lshl_add_u32 v{vXQb}, v{vU+1}, 4, v{vXQb}
                s_mul_i32 s4, s2, {CG*16}
                s_add_u32 s4, s4, {FB}
                v_add_u32 v{vXQb}, s4, v{vXQb}
                """)
        for i in range(4): a(f"ds_write_b32 v{vK}, v{vAcc+i} offset:{OW+32*i}")
        a(f"""
        s_waitcnt lgkmcnt(0)
        s_barrier
        """)
        self.stamp("pvdone")
        Lo1 = self.lab("opub")
        a(f"""
        s_cmp_lg_u32 s{sJ}, 0
        s_cbranch_scc1 {Lo1}
        """)
        for jj in range(4): a(f"ds_read_b128 {r4(vT+4*jj)}, v{vV} offset:{OW+1024*jj}")
        a(f"""
        s_waitcnt lgkmcnt(2)
        v_pk_add_f32 {r2(vT)}, {r2(vT)}, {r2(vT+4)}
        v_pk_add_f32 {r2(vT+2)}, {r2(vT+2)}, {r2(vT+6)}
        s_waitcnt lgkmcnt(0)
        v_pk_add_f32 {r2(vT+8)}, {r2(vT+8)}, {r2(vT+12)}
        v_pk_add_f32 {r2(vT+10)}, {r2(vT+10)}, {r2(vT+14)}
        v_pk_add_f32 {r2(vT)}, {r2(vT)}, {r2(vT+8)}
        v_pk_add_f32 {r2(vT+2)}, {r2(vT+2)}, {r2(vT+10)}
        """)
        tagins(vT)
        a(f"""
        buffer_store_dwordx4 {r4(vT)}, v{vGU}, s[{SW}:{SW+3}], 0 offen sc1
        {Lo1}:
        ds_read2_b32 {r2(vXG)}, v{vRS} offset0:0 offset1:1
        ds_read_b32 v{vXG+2}, v{vRS} offset:8
        s_waitcnt lgkmcnt(0)
        """)
        def omk(st): return [f"buffer_load_dwordx4 {r4(st[0])}, v{vQb}, s[{SW}:{SW+3}], 0 offen sc1",
                             f"buffer_load_dwordx4 {r4(st[1])}, v{vQa}, s[{SW}:{SW+3}], 0 offen offset:1024 sc1"]
        osets = [[R1, R1 + 4], [R1 + 8, R1 + 12]]
        polled = False
        for k in range(6):
            A = flat_A(k, vXG)
            self.wait(f"D{k}")
            flat_mfma(A, dst[f"D{k}"], vAD, k == 0)
            fill(f"D{k}", o["Wt"])
            if self.ip == len(big) and not polled:
                polled = True
                Lp = self.lab("opl")
                a(f"s_cmp_lg_u32 s{sJ}, 1"); a(f"s_cbranch_scc1 {Lp}")
                for ld in omk(osets[0]): a(ld)
                a(f"{Lp}:")
        assert polled
        (None if o.get("st2") else self.stamp("Ddone"))
        Lo2 = self.lab("ocons")
        a(f"""
        s_cmp_lg_u32 s{sJ}, 1
        s_cbranch_scc1 {Lo2}
        """)
        a(f"""
        s_cmp_ge_u32 s{sS}, 8
        s_cselect_b64 s[4:5], -1, 0
        """)
        def ofin(st):
            a(f"v_cndmask_b32 v{vT}, v{st[1]}, v{st[1]+2}, s[4:5]")
            a(f"v_cndmask_b32 v{vT+1}, v{st[1]+1}, v{st[1]+3}, s[4:5]")
            a(f"v_pk_mul_f32 {r2(vPoll)}, {r2(st[0])}, 1.0 op_sel_hi:[1,0]")
            a(f"v_pk_mul_f32 {r2(vPoll+2)}, {r2(st[0]+2)}, 1.0 op_sel_hi:[1,0]")
        pipe_poll("o", omk, osets, vU + 4, 1, ofin)
        (None if o.get("st2") else self.stamp("opollok"))
        a(f"""
        v_and_b32 v{vT}, v{vT}, v{vTM}
        v_max_f32_dpp v{vT+2}, v{vT}, v{vT} row_ror:1 {DPP}
        """)
        for r in (2, 4, 8): a(f"v_max_f32_dpp v{vT+2}, v{vT+2}, v{vT+2} row_ror:{r} {DPP}")
        a(f"""
        v_sub_f32 v{vT}, v{vT}, v{vT+2}
        v_mul_f32 v{vT}, s{sC}, v{vT}
        v_exp_f32 v{vT}, v{vT}
        v_mul_f32 v{vT+1}, v{vT}, v{vT+1}
        """)
        for i in range(4): a(f"v_mul_f32 v{vPoll+i}, v{vT}, v{vPoll+i}")
        for r in (1, 2, 4, 8):
            a(f"v_add_f32_dpp v{vT+1}, v{vT+1}, v{vT+1} row_ror:{r} {DPP}")
            for i in range(4): a(f"v_add_f32_dpp v{vPoll+i}, v{vPoll+i}, v{vPoll+i} row_ror:{r} {DPP}")
        a(f"v_rcp_f32 v{vT+1}, v{vT+1}")
        a(f"v_lshrrev_b32 v{vU+4}, 4, v{vL}")
        for i in range(4): a(f"v_mul_f32 v{vPoll+i}, v{vT+1}, v{vPoll+i}")
        a(f"""
        v_lshlrev_b32 v{vU+4}, 3, v{vU+4}
        v_cvt_pk_bf16_f32 v{vT+2}, v{vPoll}, v{vPoll+1}
        v_cvt_pk_bf16_f32 v{vT+3}, v{vPoll+2}, v{vPoll+3}
        ds_write_b64 v{vU+4}, {r2(vT+2)} offset:{OL}
        s_branch {Lo2}x
        {Lo2}:
        s_waitcnt vmcnt(0)
        {Lo2}x:
        """)
        for i in range(0, 8): a(f"v_mul_f32 v{vAD+i}, v{vOMG}, v{vAD+i}")
        a(f"""
        s_waitcnt lgkmcnt(0)
        s_barrier
        ds_read2_b32 {r2(vXG)}, v{vRS} offset0:{(OL-HL)//4} offset1:{(OL-HL)//4+1}
        ds_read_b32 v{vXG+2}, v{vRS} offset:{OL-HL+8}
        """)
        (None if o.get("st2") else self.stamp("B7"))
        a("s_waitcnt lgkmcnt(0)")
        for k in range(6):
            A = flat_A(k, vXG)
            flat_mfma(A, dst[f"O{k}"], vAO, k == 0)
        (None if o.get("st2") else self.stamp("Odone"))
        for i in range(8): a(f"v_fma_f32 v{vAD+i}, v{vG}, v{vAO+i}, v{vAD+i}")
        a(f"""
        ds_write_b128 v{vCH}, {r4(vAD)} offset:{LF}
        ds_write_b128 v{vCH}, {r4(vAD+4)} offset:{LF+16}
        s_waitcnt lgkmcnt(0)
        s_barrier
        """)
        flat_reduce(LF, vXQb, self.lab("fpub"))
        self.stamp("fpub")
        a(f"""
        s_cmpk_ge_u32 s2, {R}
        s_cbranch_scc1 L_fin
        s_mul_i32 s4, s2, {256*CG*16}
        s_add_u32 s4, s4, {FB}
        """)
        if CG == 4:
            a(f"""
            v_and_b32 v{vQa}, 15, v0
            v_lshlrev_b32 v{vQa}, 6, v{vQa}
            v_bfe_u32 v{vQb}, v0, 4, 2
            v_lshl_add_u32 v{vQa}, v{vQb}, 4, v{vQa}
            v_lshl_add_u32 v{vQa}, v{vJ}, 10, v{vQa}
            v_add_u32 v{vQa}, s4, v{vQa}
            """)
        elif CG == 2:
            a(f"""
            v_and_b32 v{vQa}, 15, v0
            v_lshlrev_b32 v{vQa}, 5, v{vQa}
            v_bfe_u32 v{vQb}, v0, 4, 1
            v_lshl_add_u32 v{vQa}, v{vQb}, 4, v{vQa}
            v_lshrrev_b32 v{vQb}, 5, v0
            v_lshl_add_u32 v{vQa}, v{vQb}, 9, v{vQa}
            v_add_u32 v{vQa}, s4, v{vQa}
            """)
        else:
            a(f"v_add_u32 v{vQa}, s4, v{vV}")
        a(f"""
        s_movk_i32 s33, 0x1000
        s_movk_i32 s34, 0x2000
        s_movk_i32 s35, 0x3000
        """)
        def fmk(st): return [f"buffer_load_dwordx4 {r4(st[k])}, v{vQa}, s[{SW}:{SW+3}], {'0' if k == 0 else f's{32+k}'} offen sc1" for k in range(CG)]
        fsets = [[R1 + 16 + 16 * d + 4 * k for k in range(CG)] for d in range(o["fdepth"])]
        F = vS
        def ffin(st):
            if CG == 4:
                a(f"""
                v_pk_add_f32 {r2(F)}, {r2(st[0])}, {r2(st[1])}
                v_pk_add_f32 {r2(F+2)}, {r2(st[0]+2)}, {r2(st[1]+2)}
                v_pk_add_f32 {r2(F+8)}, {r2(st[2])}, {r2(st[3])}
                v_pk_add_f32 {r2(F+10)}, {r2(st[2]+2)}, {r2(st[3]+2)}
                """)
            elif CG == 2:
                a(f"""
                v_pk_add_f32 {r2(F)}, {r2(st[0])}, {r2(st[1])}
                v_pk_add_f32 {r2(F+2)}, {r2(st[0]+2)}, {r2(st[1]+2)}
                """)
            else:
                for i in range(4): a(f"v_add_f32_dpp v{F+i}, v{st[0]+i}, v{st[0]+i} row_ror:1 {DPP}")
        pipe_poll("f", fmk, fsets, vU + 4, 0, ffin)
        (None if o.get("st2") else self.stamp("fpollok"))
        if CG == 4:
            a(f"""
            v_pk_add_f32 {r2(F)}, {r2(F)}, {r2(F+8)}
            v_pk_add_f32 {r2(F+2)}, {r2(F+2)}, {r2(F+10)}
            """)
        for r in (1, 2, 4, 8):
            if CG == 1 and r == 1: continue
            for i in range(4): a(f"v_add_f32_dpp v{F+i}, v{F+i}, v{F+i} row_ror:{r} {DPP}")
        a(f"""
        v_lshrrev_b32 v{vU}, 4, v0
        v_lshlrev_b32 v{vU}, 4, v{vU}
        ds_write_b128 v{vU}, {r4(F)} offset:{RD}
        s_mov_b32 s{SX}, s56
        s_mov_b32 s{SX+1}, s57
        s_mul_i32 s4, s2, {CG*8}
        v_lshl_add_u32 v{vU}, v0, 3, s4
        s_waitcnt lgkmcnt(0)
        s_barrier
        s_cmp_lg_u32 s{sJ}, 0
        s_cbranch_scc1 L_fin
        s_mov_b64 exec, 0xffff
        ds_read_b128 {r4(vT)}, v{vV} offset:{RD}
        s_waitcnt lgkmcnt(0)
        """)
        for r in (1, 2, 4, 8):
            if r >= CG:
                for i in range(4): a(f"v_add_f32_dpp v{vT+i}, v{vT+i}, v{vT+i} row_ror:{r} {DPP}")
        a(f"""
        v_cvt_pk_bf16_f32 v{vT}, v{vT}, v{vT+1}
        v_cvt_pk_bf16_f32 v{vT+1}, v{vT+2}, v{vT+3}
        s_mov_b64 exec, {(1 << CG) - 1}
        buffer_store_dwordx2 {r2(vT)}, v{vU}, s[{SX}:{SX+3}], 0 offen
        s_cmp_lg_u32 s2, 0
        s_cbranch_scc1 L_fin
        s_mov_b64 exec, 1
        v_mov_b32 v{vT+4}, s{sTAG}
        v_mov_b32 v{vT+5}, 0
        buffer_store_dword v{vT+4}, v{vT+5}, s[{SW}:{SW+3}], 0 offen sc1
        L_fin:
        """)
        if o["amp"] >= 0:
            self.stamp("end"); k = o["amp"]
            a(f"""
            s_waitcnt lgkmcnt(0)
            s_sub_u32 s6, s{self.sreg(k)}, s16
            s_min_u32 s6, s6, 3000
            s_mul_i32 s6, s6, 10
            s_add_u32 s6, s6, 3000
            L_hold:
            s_memrealtime s[4:5]
            s_waitcnt lgkmcnt(0)
            s_sub_u32 s4, s4, s16
            s_cmp_lt_u32 s4, s6
            s_cbranch_scc1 L_hold
            """)
        elif o["stamps"]:
            self.stamp("end")
            a(f"""
            s_waitcnt lgkmcnt(0)
            s_lshl_b32 s4, s2, 2
            s_add_u32 s4, s4, s{sJ}
            s_lshl_b32 s4, s4, 7
            s_add_u32 s4, s4, {STAMP_OFF:#x}
            s_add_u32 s6, s60, s4
            s_addc_u32 s7, s61, 0
            s_sub_u32 s6, s6, {o['wsoff']:#x}
            s_subb_u32 s7, s7, 0
            s_mov_b64 exec, 1
            v_mov_b32 v4, 0
            """)
            for j in range(self.nst):
                a(f"""
                v_mov_b32 v2, s{self.sreg(j)}
                v_mov_b32 v3, s{self.sreg(j)+1}
                global_store_dwordx2 v4, v[2:3], s[6:7] offset:{8*j}
                s_nop 1
                """)
        if o["hold"]:
            a(f"""
            s_waitcnt lgkmcnt(0)
            L_hold:
            s_memrealtime s[4:5]
            s_waitcnt lgkmcnt(0)
            s_sub_u32 s4, s4, s16
            s_cmp_lt_u32 s4, {o["hold"]}
            s_cbranch_scc1 L_hold
            """)
        a("L_end:")
        a("s_endpgm")
        body = "\n".join(fix(self.l)) + "\n"
        head = open("cdna_kernels/" + KN + ".s.ref").read().split("; Override launch")[0]
        if self.names: head += "; stamps: " + " ".join(self.names) + "\n"
        return head + f"""; @launch grid=(256,1,1) block=(256,1,1) lds={o['lds']}
.amdgcn_target "amdgcn-amd-amdhsa--gfx950"
.text
.globl {KN}_kernel
.p2align 8
.type {KN}_kernel,@function
{KN}_kernel:
""" + body + f""".section .rodata,"a"
.p2align 6
.amdhsa_kernel {KN}_kernel
  .amdhsa_next_free_vgpr 256
  .amdhsa_next_free_sgpr 102
  .amdhsa_accum_offset 256
  .amdhsa_group_segment_fixed_size 0
  .amdhsa_kernarg_size 104
  .amdhsa_user_sgpr_count 2
  .amdhsa_user_sgpr_kernarg_segment_ptr 1
  .amdhsa_system_sgpr_workgroup_id_x 1
.end_amdhsa_kernel
"""

if __name__ == "__main__":
    out = sys.argv[1]; opt = {}
    for kv in sys.argv[2:]:
        k, v = kv.split("="); opt[k] = eval(v)
    open(out, "w").write(Gen(**opt).build())
```

```python
import sys, struct
from hazard import fix
KN = "gated_mix__sliding_block_cached__glu_gated_reglu__decode"
STAMP_OFF = 0x30000000

def f2u(x): return struct.unpack("<I", struct.pack("<f", x))[0]

class Gen:
    def __init__(self, **opt):
        self.o = dict(W=10, stamps=False, wsoff=0, qpoll_after=8, hpoll_after=3, R=36, round_scores=True,
                      prefetch=0, jitter=0, hold=0, amp=-1, dbgst=False, lds=90112, nt="nt", spin=20000)
        self.o.update(opt)
        self.l = []
        self.vm = []
        self.nl = 0
        self.nst = 0
        self.names = []
    def a(self, s):
        for x in s.strip().split("\n"):
            x = x.strip()
            if not x: continue
            self.l.append(x if x.endswith(":") else "    " + x)
    def lab(self, p):
        self.nl += 1
        return f"L_{p}{self.nl}"
    def issue(self, label, s):
        self.a(s); self.vm.append(label)
    def wait(self, label):
        n = len(self.vm) - 1 - self.vm.index(label)
        assert n <= 63
        self.a(f"s_waitcnt vmcnt({n})")
    def sreg(self, k): return 16 + 2 * k if k < 8 else 36 + 2 * (k - 8)
    def stamp(self, name=""):
        if self.o["stamps"]:
            assert self.nst < 16
            r = self.sreg(self.nst)
            self.a(f"s_memrealtime s[{r}:{r+1}]")
            self.names.append(name)
            self.nst += 1

    def build(self):
        o = self.o; a = self.a; nt = o["nt"]; W = o["W"]
        assert W <= 16
        QB, GB, OB, FB = 0x1000, 0x20000, 0xB0000, 0x100000
        R = o["R"]; CG = 144 // R
        LQ, LG, QL, MX, LS, GS, HP, HL, OL, OW, LF, RD = 0, 2048, 11264, 15360, 15488, 15616, 15744, 16512, 16576, 16640, 20736, 29952
        vL = 1; vM = [2, 3, 4, 5]; vSel = [6, 7, 8, 9]
        vQa, vQb, vGU, vK, vV, vP3, vP3b, vTM = 10, 11, 12, 13, 14, 15, 16, 17
        vXQ, vXQb, vXG, vGX, vGW = 18, 20, 22, 28, 30
        vS = 32; vBq = 48; vAcc = 52; vAD = 56; vAO = 64; vT = 72; vPoll = 92
        R1 = 100; R2 = 168; vU = 232
        vRS, vCH, vG, vOMG, vJ = 21, 96, 97, 98, 99
        dst = {}
        for i in range(5): dst[f"Q{i}"] = R1 + 4 * i
        for i in range(12): dst[f"G{i}"] = R1 + 20 + 4 * i
        for i in range(16): dst[f"K{i}"] = R2 + 4 * i; dst[f"V{i}"] = R1 + 4 * i
        for i in range(6): dst[f"D{i}"] = R2 + 4 * i; dst[f"O{i}"] = R2 + 24 + 4 * i
        big = [f"Q{i}" for i in range(5)] + [f"G{i}" for i in range(12)] + [f"K{i}" for i in range(16)] + \
              [f"V{i}" for i in range(16)] + [f"D{i}" for i in range(6)] + [f"O{i}" for i in range(6)]
        sTAG = 62; sJ = 3; sXCD, sG, sS = 8, 9, 10; sLIN = 12
        sKV = 13; sGU = 14; sC = 15
        SQ, SGU, SK, SV, SD, SO, SX, SGW, SW = 64, 68, 72, 76, 80, 84, 88, 92, 96
        def r4(v): return f"v[{v}:{v+3}]"
        def r2(v): return f"v[{v}:{v+1}]"
        self.ip = 0
        def issue_next():
            lb = big[self.ip]; self.ip += 1
            d = r4(dst[lb]); k = int(lb[1:]); c = lb[0]
            if c == "Q":
                if k == 0: self.issue(lb, f"buffer_load_dwordx4 {d}, v{vQa}, s[{SQ}:{SQ+3}], 0 offen {nt}")
                elif k < 4: self.issue(lb, f"buffer_load_dwordx4 {d}, v{vQa}, s[{SQ}:{SQ+3}], s{32+k} offen {nt}")
                else: self.issue(lb, f"buffer_load_dwordx4 {d}, v{vQb}, s[{SQ}:{SQ+3}], 0 offen {nt}")
            elif c == "G":
                if k == 0: a(f"s_mov_b32 s{sGU}, 0")
                else: a(f"s_addk_i32 s{sGU}, 9216")
                self.issue(lb, f"buffer_load_dwordx4 {d}, v{vGU}, s[{SGU}:{SGU+3}], s{sGU} offen {nt}")
            elif c in "KV":
                if k == 0: a(f"s_mov_b32 s{sKV}, 0")
                else: a(f"s_addk_i32 s{sKV}, 4096")
                sr, vo = (SK, vK) if c == "K" else (SV, vV)
                self.issue(lb, f"buffer_load_dwordx4 {d}, v{vo}, s[{sr}:{sr+3}], s{sKV} offen {nt}")
                if c == "K" and k == o["qpoll_after"]:
                    self.issue("QP", f"buffer_load_dwordx4 {r4(vPoll)}, v{vQa}, s[{SW}:{SW+3}], 0 offen sc1")
                if c == "V" and k == o["hpoll_after"]:
                    self.issue("HPL", f"buffer_load_dwordx4 {r4(vAO)}, v{vQb}, s[{SW}:{SW+3}], 0 offen sc1")
            else:
                sr = SD if c == "D" else SO
                vo, im = (vP3, k * 1152) if k < 4 else (vP3b, (k - 4) * 1152)
                self.issue(lb, f"buffer_load_dwordx4 {d}, v{vo}, s[{sr}:{sr+3}], 0 offen offset:{im} {nt}")
        def fill(upto_label, extra=0):
            idx = big.index(upto_label)
            while self.ip < len(big) and self.ip <= idx + W + extra:
                issue_next()
        def tagins(v):
            for i in range(4): a(f"v_and_or_b32 v{v+i}, v{v+i}, v{vTM}, s{sTAG}")
        def tagchk(vs, acc, first=True):
            for v in vs:
                for i in range(4):
                    if first: a(f"v_xor_b32 v{acc}, s{sTAG}, v{v+i}"); first = False
                    else: a(f"v_bitop3_b32 v{acc}, v{v+i}, s{sTAG}, v{acc} bitop3:0xbe")
            a(f"v_and_b32 v{acc}, 0xff, v{acc}")
        def retry_loop(name, loads, vs, acc, lanemask=None):
            Lok = self.lab(name + "ok"); Lre = self.lab(name + "re")
            def chk():
                tagchk(vs, acc)
                a(f"v_cmp_ne_u32 vcc, 0, v{acc}")
                if lanemask is not None:
                    a(f"s_and_b64 vcc, vcc, s[{lanemask}:{lanemask+1}]")
            chk()
            a(f"s_cbranch_vccz {Lok}")
            a(f"s_mov_b32 s7, {o['spin']}")
            a(f"{Lre}:")
            for ld in loads: a(ld)
            a("s_waitcnt vmcnt(0)")
            chk()
            a(f"s_cbranch_vccz {Lok}")
            a("s_sub_u32 s7, s7, 1")
            a("s_cmp_lg_u32 s7, 0")
            a(f"s_cbranch_scc1 {Lre}")
            a(f"{Lok}:")

        self.stamp("start")
        if o["hold"]: a("s_memrealtime s[16:17]")
        JIT = ""
        if o["jitter"]:
            JIT = f"""s_mul_i32 s4, s2, 0x9e3779b1
            s_lshr_b32 s4, s4, {32-o["jitter"]}
            L_jit:
            s_cmp_eq_u32 s4, 0
            s_cbranch_scc1 L_jitd
            s_sleep 40
            s_sub_u32 s4, s4, 1
            s_branch L_jit
            L_jitd:"""
        a(f"""
        s_cmp_ge_u32 s2, 0x100
        s_cbranch_scc1 L_end
        {JIT}
        s_load_dwordx16 s[36:51], s[0:1], 0
        s_load_dwordx8 s[52:59], s[0:1], 64
        s_load_dwordx2 s[60:61], s[0:1], 96
        s_and_b32 s{sXCD}, s2, 7
        s_bfe_u32 s{sG}, s2, 0x10003
        s_lshl1_add_u32 s{sG}, s{sXCD}, s{sG}
        s_lshr_b32 s{sS}, s2, 4
        s_lshr_b32 s11, s2, 6
        s_mul_i32 s4, s11, {144*8192}
        s_lshl_b32 s5, s{sG}, 9
        s_add_u32 s4, s4, s5
        s_and_b32 s5, s{sS}, 3
        s_lshl_b32 s5, s5, 7
        s_add_u32 s4, s4, s5
        v_lshrrev_b32 v{vT}, 3, v0
        v_and_b32 v{vT+1}, 7, v0
        v_lshlrev_b32 v{vT+1}, 4, v{vT+1}
        v_lshl_add_u32 v{vQa}, v{vT}, 15, v{vT+1}
        v_lshl_add_u32 v{vQb}, v{vT}, 13, v{vT+1}
        v_add_u32 v{vQb}, {128*8192}, v{vQb}
        s_mov_b32 s{SQ+2}, {143*8192+128}
        s_mov_b32 s{SQ+3}, 0x20000
        s_movk_i32 s33, 0x2000
        s_movk_i32 s34, 0x4000
        s_movk_i32 s35, 0x6000
        s_waitcnt lgkmcnt(0)
        s_add_u32 s{SQ}, s42, s4
        s_addc_u32 s{SQ+1}, s43, 0
        """)
        for i in range(5): issue_next()
        a(f"""
        s_add_u32 s60, s60, {o['wsoff']:#x}
        s_addc_u32 s61, s61, 0
        s_load_dword s{sTAG}, s[60:61], 0
        s_mov_b32 s{SX}, s36
        s_mov_b32 s{SX+1}, s37
        s_movk_i32 s{SX+2}, 1152
        s_mov_b32 s{SX+3}, 0x20000
        s_mul_i32 s5, s11, 288
        v_lshl_add_u32 v{vT+2}, v{vT}, 3, s5
        v_lshl_add_u32 v{vT+3}, v{vT}, 1, s5
        """)
        self.issue("XQa", f"buffer_load_dwordx2 {r2(vXQ)}, v{vT+2}, s[{SX}:{SX+3}], 0 offen")
        self.issue("XQb", f"buffer_load_ushort v{vXQb}, v{vT+3}, s[{SX}:{SX+3}], 0 offen offset:256")
        a(f"""
        s_bitcmp1_b32 s2, 3
        s_cselect_b32 s{SGU}, s50, s48
        s_cselect_b32 s{SGU+1}, s51, s49
        s_mul_i32 s4, s{sS}, {36*9216}
        s_mul_i32 s5, s{sXCD}, 1152
        s_add_u32 s4, s4, s5
        s_add_u32 s{SGU}, s{SGU}, s4
        s_addc_u32 s{SGU+1}, s{SGU+1}, 0
        s_mov_b32 s{SGU+2}, {35*9216+1152}
        s_mov_b32 s{SGU+3}, 0x20000
        v_mul_u32_u24 v{vRS}, 911, v0
        v_lshrrev_b32 v{vRS}, 16, v{vRS}
        v_mul_u32_u24 v{vCH}, 72, v{vRS}
        v_sub_u32 v{vCH}, v0, v{vCH}
        v_mul_u32_u24 v{vGU}, {12*9216}, v{vRS}
        v_lshl_add_u32 v{vGU}, v{vCH}, 4, v{vGU}
        s_mul_i32 s5, s{sS}, 72
        v_mul_u32_u24 v{vT+2}, 24, v{vRS}
        v_add_u32 v{vT+2}, s5, v{vT+2}
        """)
        self.issue("XGa", f"buffer_load_dwordx4 {r4(vXG)}, v{vT+2}, s[{SX}:{SX+3}], 0 offen")
        self.issue("XGb", f"buffer_load_dwordx2 {r2(vXG+4)}, v{vT+2}, s[{SX}:{SX+3}], 0 offen offset:16")
        for i in range(4): issue_next()
        a(f"""
        s_mov_b32 s{SGW}, s54
        s_mov_b32 s{SGW+1}, s55
        s_movk_i32 s{SGW+2}, 1152
        s_mov_b32 s{SGW+3}, 0x20000
        v_lshlrev_b32 v{vT+2}, 3, v0
        """)
        self.issue("GX", f"buffer_load_dwordx2 {r2(vGX)}, v{vT+2}, s[{SX}:{SX+3}], 0 offen")
        self.issue("GW", f"buffer_load_dwordx2 {r2(vGW)}, v{vT+2}, s[{SGW}:{SGW+3}], 0 offen")
        if o["prefetch"]:
            a(f"""
            s_getpc_b64 s[4:5]
            v_lshlrev_b32 v{vT+2}, 4, v0
            """)
            for i in range(o["prefetch"]):
                if i: a(f"v_add_u32 v{vT+2}, 4096, v{vT+2}")
                self.issue(f"PF{i}", f"global_load_dwordx4 {r4(vPoll)}, v{vT+2}, s[4:5]")
        a(f"""
        s_lshl_b32 s4, s{sG}, 24
        s_lshl_b32 s5, s{sS}, 16
        s_add_u32 s4, s4, s5
        s_add_u32 s4, s4, {61440*256}
        s_add_u32 s{SK}, s38, s4
        s_addc_u32 s{SK+1}, s39, 0
        s_mov_b32 s{SK+2}, 0x10000
        s_mov_b32 s{SK+3}, 0x20000
        s_add_u32 s{SV}, s40, s4
        s_addc_u32 s{SV+1}, s41, 0
        s_mov_b32 s{SV+2}, 0x10000
        s_mov_b32 s{SV+3}, 0x20000
        s_lshr_b32 s4, s2, 3
        s_lshl_b32 s{sLIN}, s{sXCD}, 5
        s_add_u32 s{sLIN}, s{sLIN}, s4
        s_mul_i32 s4, s{sLIN}, {18*1152}
        s_add_u32 s{SD}, s52, s4
        s_addc_u32 s{SD+1}, s53, 0
        s_movk_i32 s{SD+2}, {18*1152}
        s_mov_b32 s{SD+3}, 0x20000
        s_lshl_b32 s4, s{sG}, 4
        s_add_u32 s4, s4, s{sS}
        s_mul_i32 s4, s4, {16*1152}
        s_add_u32 s{SO}, s44, s4
        s_addc_u32 s{SO+1}, s45, 0
        s_movk_i32 s{SO+2}, {16*1152}
        s_mov_b32 s{SO+3}, 0x20000
        s_mov_b32 s{SW}, s60
        s_mov_b32 s{SW+1}, s61
        s_mov_b32 s{SW+2}, 0x200000
        s_mov_b32 s{SW+3}, 0x20000
        v_and_b32 v{vL}, 63, v0
        v_lshrrev_b32 v{vJ}, 6, v0
        v_lshlrev_b32 v{vV}, 4, v0
        v_readfirstlane_b32 s{sJ}, v{vJ}
        v_and_b32 v{vT}, 3, v0
        v_lshlrev_b32 v{vT}, 4, v{vT}
        v_bfe_u32 v{vT+1}, v0, 2, 2
        v_lshl_add_u32 v{vT}, v{vT+1}, 8, v{vT}
        v_bfe_u32 v{vT+1}, v0, 4, 2
        v_lshl_add_u32 v{vT}, v{vT+1}, 6, v{vT}
        v_lshl_add_u32 v{vK}, v{vJ}, 10, v{vT}
        v_mul_u32_u24 v{vP3}, {6*1152}, v{vRS}
        v_lshl_add_u32 v{vP3}, v{vCH}, 4, v{vP3}
        v_add_u32 v{vP3b}, 4608, v{vP3}
        v_mov_b32 v{vTM}, 0xffffff00
        v_and_b32 v{vT}, 1, v0
        v_lshlrev_b32 v{vT}, 4, v{vT}
        v_mov_b32 v{vT+1}, 0xffff
        v_lshlrev_b32 v{vT}, v{vT}, v{vT+1}
        v_bfe_u32 v{vT+1}, v0, 1, 2
        v_cmp_eq_u32 s[4:5], 0, v{vT+1}
        v_cmp_eq_u32 s[6:7], 1, v{vT+1}
        v_cndmask_b32 v{vM[0]}, 0, v{vT}, s[4:5]
        v_cndmask_b32 v{vM[1]}, 0, v{vT}, s[6:7]
        v_cmp_eq_u32 s[4:5], 2, v{vT+1}
        v_cmp_eq_u32 s[6:7], 3, v{vT+1}
        v_cndmask_b32 v{vM[2]}, 0, v{vT}, s[4:5]
        v_cndmask_b32 v{vM[3]}, 0, v{vT}, s[6:7]
        v_or_b32 v{vT}, v{vM[0]}, v{vM[2]}
        v_or_b32 v{vT+1}, v{vM[1]}, v{vM[3]}
        v_mov_b32 v{vT+2}, 0x0c0c0c0c
        s_mov_b32 s32, 0x01000100
        s_mov_b32 s63, 0x03020302
        v_bfi_b32 v{vSel[0]}, v{vT}, s32, v{vT+2}
        v_bfi_b32 v{vSel[1]}, v{vT+1}, s32, v{vT+2}
        v_bfi_b32 v{vSel[2]}, v{vT}, s63, v{vT+2}
        v_bfi_b32 v{vSel[3]}, v{vT+1}, s63, v{vT+2}
        """)
        a(f"""
        v_lshlrev_b32 v{vT}, 2, v{vL}
        v_and_b32 v{vT}, 0x7c, v{vT}
        v_mov_b32 v{vT+1}, 0
        ds_write_b32 v{vT}, v{vT+1} offset:{HL}
        """)
        fill("Q0", -1)
        self.stamp("prol")
        self.wait("XQb")
        for t in range(5):
            src = vXQ + (t >> 1) if t < 4 else vXQb
            sel = "s63" if (t < 4 and t & 1) else "s32"
            a(f"v_perm_b32 v{vU}, v{src}, v{src}, {sel}")
            for j in range(4): a(f"v_and_b32 v{vT+4*t+j}, v{vU}, v{vM[j]}")
        for t in range(5):
            c = "0" if t == 0 else r4(vAcc)
            a(f"v_mfma_f32_16x16x32_bf16 {r4(vAcc)}, {r4(dst[f'Q{t}'])}, {r4(vT+4*t)}, {c}")
        fill("Q4")
        a(f"""
        v_bfe_u32 v{vU}, v0, 3, 1
        v_bfe_u32 v{vU+1}, v0, 5, 1
        v_cmp_eq_u32 vcc, v{vU}, v{vU+1}
        v_lshrrev_b32 v{vU}, 5, v0
        v_lshlrev_b32 v{vU}, 8, v{vU}
        v_bfe_u32 v{vU+1}, v0, 4, 1
        v_lshl_add_u32 v{vU}, v{vU+1}, 7, v{vU}
        v_and_b32 v{vU+1}, 7, v0
        v_lshl_add_u32 v{vU}, v{vU+1}, 2, v{vU}
        v_mov_b32 v{vU+1}, {QL}
        v_cndmask_b32 v{vU}, v{vU+1}, v{vU}, vcc
        """)
        for i in range(4): a(f"ds_write_b32 v{vU}, v{vAcc+i} offset:{LQ+32*i}")
        a(f"""
        s_waitcnt lgkmcnt(0)
        s_barrier
        s_add_u32 s{sTAG}, s{sTAG}, 1
        s_and_b32 s{sTAG}, s{sTAG}, 0xff
        """)
        Lq = self.lab("qpub")
        a(f"""
        s_cmp_lg_u32 s{sJ}, 0
        s_cbranch_scc1 {Lq}
        s_mov_b64 exec, 0xffff
        v_lshlrev_b32 v{vU}, 4, v{vL}
        """)
        for p in range(8): a(f"ds_read_b128 {r4(vT+4*p) if p < 5 else r4(vU+4+4*(p-5))}, v{vU} offset:{LQ+256*p}")
        a(f"""
        s_lshl_b32 s4, s{sG}, 12
        s_lshl_b32 s5, s{sS}, 8
        s_add_u32 s4, s4, s5
        s_add_u32 s4, s4, {QB}
        v_add_u32 v{vU}, s4, v{vU}
        s_waitcnt lgkmcnt(0)
        """)
        for p in range(1, 8):
            src = vT + 4 * p if p < 5 else vU + 4 + 4 * (p - 5)
            a(f"v_pk_add_f32 {r2(vT)}, {r2(vT)}, {r2(src)}")
            a(f"v_pk_add_f32 {r2(vT+2)}, {r2(vT+2)}, {r2(src+2)}")
        tagins(vT)
        a(f"""
        buffer_store_dwordx4 {r4(vT)}, v{vU}, s[{SW}:{SW+3}], 0 offen sc1
        s_mov_b64 exec, -1
        {Lq}:
        """)
        self.stamp("qpub")
        a(f"""
        s_lshl_b32 s4, s{sG}, 12
        s_add_u32 s4, s4, {QB}
        v_add_u32 v{vQa}, s4, v{vV}
        s_lshr_b32 s4, s2, 3
        s_mul_i32 s4, s4, 9
        s_lshr_b32 s4, s4, 1
        s_lshl_b32 s4, s4, 4
        s_mul_i32 s5, s{sXCD}, {32*2304}
        s_add_u32 s4, s4, s5
        s_mul_i32 s5, s{sJ}, {8*2304}
        s_add_u32 s4, s4, s5
        s_add_u32 s4, s4, {GB}
        v_and_b32 v{vU}, 7, v0
        v_mul_u32_u24 v{vU}, 2304, v{vU}
        v_lshrrev_b32 v{vU+1}, 3, v{vL}
        v_min_u32 v{vU+1}, 4, v{vU+1}
        v_lshl_add_u32 v{vU}, v{vU+1}, 4, v{vU}
        v_add_u32 v{vQb}, s4, v{vU}
        """)
        def flat_step(k, xsrc, data, acc, first):
            p = k & 1
            A = vU + 2 * (k & 1)
            a(f"v_perm_b32 v{A}, v{xsrc+(k>>1)}, v{xsrc+(k>>1)}, v{vSel[2*p]}")
            a(f"v_perm_b32 v{A+1}, v{xsrc+(k>>1)}, v{xsrc+(k>>1)}, v{vSel[2*p+1]}")
            return A
        def flat_mfma(A, data, acc, first):
            a(f"v_mfma_f32_4x4x4_16b_bf16 {r4(acc)}, {r2(A)}, {r2(data)}, {'0' if first else r4(acc)}")
            a(f"v_mfma_f32_4x4x4_16b_bf16 {r4(acc+4)}, {r2(A)}, {r2(data+2)}, {'0' if first else r4(acc+4)}")
        self.wait("XGb")
        for k in range(12):
            A = flat_step(k, vXG, None, None, None)
            self.wait(f"G{k}")
            flat_mfma(A, dst[f"G{k}"], vAD, k == 0)
            fill(f"G{k}")
        a(f"""
        v_lshlrev_b32 v{vT}, 16, v{vGX}
        v_and_b32 v{vT+1}, 0xffff0000, v{vGX}
        v_lshlrev_b32 v{vT+2}, 16, v{vGX+1}
        v_and_b32 v{vT+3}, 0xffff0000, v{vGX+1}
        v_lshlrev_b32 v{vT+4}, 16, v{vGW}
        v_and_b32 v{vT+5}, 0xffff0000, v{vGW}
        v_lshlrev_b32 v{vT+6}, 16, v{vGW+1}
        v_and_b32 v{vT+7}, 0xffff0000, v{vGW+1}
        v_pk_mul_f32 {r2(vT)}, {r2(vT)}, {r2(vT+4)}
        v_pk_mul_f32 {r2(vT+2)}, {r2(vT+2)}, {r2(vT+6)}
        v_cvt_pk_bf16_f32 v{vT}, v{vT}, v{vT+1}
        v_cvt_pk_bf16_f32 v{vT+2}, v{vT+2}, v{vT+3}
        v_and_b32 v{vT+1}, 0xffff0000, v{vT}
        v_lshlrev_b32 v{vT}, 16, v{vT}
        v_and_b32 v{vT+3}, 0xffff0000, v{vT+2}
        v_lshlrev_b32 v{vT+2}, 16, v{vT+2}
        v_pk_add_f32 {r2(vT)}, {r2(vT)}, {r2(vT+2)}
        v_add_f32 v{vT}, v{vT}, v{vT+1}
        """)
        a(f"""
        v_mul_u32_u24 v{vRS}, 2304, v{vRS}
        v_lshl_add_u32 v{vCH}, v{vCH}, 5, v{vRS}
        """)
        for r in (1, 2, 4, 8): a(f"v_add_f32_dpp v{vT}, v{vT}, v{vT} row_ror:{r} row_mask:0xf bank_mask:0xf")
        a(f"""
        ds_write_b128 v{vCH}, {r4(vAD)} offset:{LG}
        ds_write_b128 v{vCH}, {r4(vAD+4)} offset:{LG+16}
        v_lshrrev_b32 v{vT+1}, 4, v0
        v_lshlrev_b32 v{vT+1}, 2, v{vT+1}
        ds_write_b32 v{vT+1}, v{vT} offset:{GS}
        s_waitcnt lgkmcnt(0)
        s_barrier
        """)
        def flat_reduce(base, voff, Lskip):
            a(f"""
            v_cmp_gt_u32 vcc, 144, v0
            s_and_saveexec_b64 s[4:5], vcc
            s_cbranch_execz {Lskip}
            ds_read_b128 {r4(vT)}, v{vV} offset:{base}
            ds_read_b128 {r4(vT+4)}, v{vV} offset:{base+2304}
            ds_read_b128 {r4(vT+8)}, v{vV} offset:{base+4608}
            s_waitcnt lgkmcnt(1)
            v_pk_add_f32 {r2(vT)}, {r2(vT)}, {r2(vT+4)}
            v_pk_add_f32 {r2(vT+2)}, {r2(vT+2)}, {r2(vT+6)}
            s_waitcnt lgkmcnt(0)
            v_pk_add_f32 {r2(vT)}, {r2(vT)}, {r2(vT+8)}
            v_pk_add_f32 {r2(vT+2)}, {r2(vT+2)}, {r2(vT+10)}
            """)
            tagins(vT)
            a(f"""
            buffer_store_dwordx4 {r4(vT)}, v{voff}, s[{SW}:{SW+3}], 0 offen sc1
            {Lskip}:
            s_mov_b64 exec, s[4:5]
            """)
        a(f"""
        s_mul_i32 s6, s{sLIN}, 2304
        s_add_u32 s6, s6, {GB}
        v_add_u32 v{vU}, s6, v{vV}
        """)
        flat_reduce(LG, vU, self.lab("gpub"))
        self.stamp("gpub")
        a(f"""
        v_mov_b32 v{vU}, 0
        ds_read_b128 {r4(vT)}, v{vU} offset:{GS}
        ds_read_b128 {r4(vT+4)}, v{vU} offset:{GS+16}
        ds_read_b128 {r4(vT+8)}, v{vU} offset:{GS+32}
        s_waitcnt lgkmcnt(0)
        v_pk_add_f32 {r2(vT)}, {r2(vT)}, {r2(vT+2)}
        v_pk_add_f32 {r2(vT+4)}, {r2(vT+4)}, {r2(vT+6)}
        v_pk_add_f32 {r2(vT+8)}, {r2(vT+8)}, {r2(vT+10)}
        v_pk_add_f32 {r2(vT)}, {r2(vT)}, {r2(vT+4)}
        v_pk_add_f32 {r2(vT)}, {r2(vT)}, {r2(vT+8)}
        v_add_f32 v{vT}, v{vT}, v{vT+1}
        v_cvt_pk_bf16_f32 v{vT}, v{vT}, v{vT}
        v_lshlrev_b32 v{vT}, 16, v{vT}
        v_mul_f32 v{vT}, {f2u(-1.4426950408889634):#x}, v{vT}
        v_exp_f32 v{vT}, v{vT}
        v_add_f32 v{vT}, 1.0, v{vT}
        v_rcp_f32 v{vT}, v{vT}
        v_cvt_pk_bf16_f32 v{vT}, v{vT}, v{vT}
        v_lshlrev_b32 v{vG}, 16, v{vT}
        v_sub_f32 v{vT}, 1.0, v{vG}
        v_cvt_pk_bf16_f32 v{vT}, v{vT}, v{vT}
        v_lshlrev_b32 v{vOMG}, 16, v{vT}
        """)
        qa = o["qpoll_after"]
        for k in range(qa + 1):
            if f"K{k}" in self.vm and self.ip < len(big):
                self.wait(f"K{k}")
            fill(f"K{k}")
        self.wait("QP")
        retry_loop("q", [f"buffer_load_dwordx4 {r4(vPoll)}, v{vQa}, s[{SW}:{SW+3}], 0 offen sc1"], [vPoll], vU)
        a(f"""
        ds_write_b128 v{vV}, {r4(vPoll)} offset:{QL}
        v_bfe_u32 v{vU}, v0, 3, 1
        v_lshlrev_b32 v{vU}, 9, v{vU}
        v_bfe_u32 v{vU+1}, v0, 4, 2
        v_lshl_add_u32 v{vU}, v{vU+1}, 7, v{vU}
        v_and_b32 v{vU+1}, 3, v0
        v_lshl_add_u32 v{vU}, v{vU+1}, 5, v{vU}
        s_waitcnt lgkmcnt(0)
        s_barrier
        """)
        qd = [vT, vT + 8, vU + 8, vU + 16]
        for k in range(4):
            a(f"ds_read_b128 {r4(qd[k])}, v{vU} offset:{QL+1024*k}")
            a(f"ds_read_b128 {r4(qd[k]+4)}, v{vU} offset:{QL+1024*k+16}")
        a("s_waitcnt lgkmcnt(4)")
        for i in range(0, 8, 2): a(f"v_pk_add_f32 {r2(qd[0]+i)}, {r2(qd[0]+i)}, {r2(qd[1]+i)}")
        a("s_waitcnt lgkmcnt(0)")
        for i in range(0, 8, 2): a(f"v_pk_add_f32 {r2(qd[2]+i)}, {r2(qd[2]+i)}, {r2(qd[3]+i)}")
        for i in range(0, 8, 2): a(f"v_pk_add_f32 {r2(qd[0]+i)}, {r2(qd[0]+i)}, {r2(qd[2]+i)}")
        for i in range(4): a(f"v_cvt_pk_bf16_f32 v{vBq+i}, v{qd[0]+2*i}, v{qd[0]+2*i+1}")
        self.stamp("qcons")
        def qk_mfma(t):
            D = vT + 4 * (t % 4)
            a(f"v_mfma_f32_16x16x32_bf16 {r4(D)}, {r4(dst[f'K{t}'])}, {r4(vBq)}, 0")
        def qk_fin(t):
            D = vT + 4 * (t % 4)
            a(f"v_mov_b32_dpp v{vS+t}, v{D} quad_perm:[0,0,0,0] row_mask:0xf bank_mask:0xf")
            for u in range(1, 4):
                a(f"v_add_f32_dpp v{vS+t}, v{D+u}, v{vS+t} quad_perm:[{u},{u},{u},{u}] row_mask:0xf bank_mask:0xf")
        for t in range(16):
            if t > qa:
                self.wait(f"K{t}")
            qk_mfma(t)
            if t > qa: fill(f"K{t}")
            if t >= 2: qk_fin(t - 2)
        qk_fin(14); qk_fin(15)
        if o["round_scores"]:
            a(f"s_mov_b32 s{sC}, {f2u(128 ** -0.5):#x}")
            for t in range(0, 16, 2):
                a(f"""
                v_cvt_pk_bf16_f32 v{vT}, v{vS+t}, v{vS+t+1}
                v_lshlrev_b32 v{vS+t}, 16, v{vT}
                v_and_b32 v{vS+t+1}, 0xffff0000, v{vT}
                v_mul_f32 v{vS+t}, s{sC}, v{vS+t}
                v_mul_f32 v{vS+t+1}, s{sC}, v{vS+t+1}
                v_cvt_pk_bf16_f32 v{vT}, v{vS+t}, v{vS+t+1}
                v_lshlrev_b32 v{vS+t}, 16, v{vT}
                v_and_b32 v{vS+t+1}, 0xffff0000, v{vT}
                """)
            cexp = 1.4426950408889634
        else:
            cexp = 128 ** -0.5 * 1.4426950408889634
        a(f"s_mov_b32 s{sC}, {f2u(cexp):#x}")
        a(f"v_max3_f32 v{vT}, v{vS}, v{vS+1}, v{vS+2}")
        for t in range(3, 15, 2): a(f"v_max3_f32 v{vT}, v{vT}, v{vS+t}, v{vS+t+1}")
        a(f"v_max_f32 v{vT}, v{vT}, v{vS+15}")
        a(f"""
        v_bfe_u32 v{vU}, v0, 3, 1
        v_lshlrev_b32 v{vU}, 6, v{vU}
        v_lshrrev_b32 v{vU+1}, 4, v0
        v_lshl_add_u32 v{vK}, v{vU+1}, 2, v{vU}
        ds_write_b32 v{vK}, v{vT} offset:{MX}
        s_waitcnt lgkmcnt(0)
        s_barrier
        """)
        for i in range(4): a(f"ds_read_b128 {r4(vT+4*i)}, v{vU} offset:{MX+16*i}")
        a("s_waitcnt lgkmcnt(0)")
        a(f"v_max3_f32 v{vT}, v{vT}, v{vT+1}, v{vT+2}")
        for t in range(3, 15, 2): a(f"v_max3_f32 v{vT}, v{vT}, v{vT+t}, v{vT+t+1}")
        a(f"v_max_f32 v{vXQ}, v{vT}, v{vT+15}")
        a(f"v_and_b32 v{vXQ}, v{vXQ}, v{vTM}")
        a(f"v_mul_f32 v{vXQ+1}, s{sC}, v{vXQ}")
        for t in range(16): a(f"v_fma_f32 v{vS+t}, v{vS+t}, s{sC}, -v{vXQ+1}")
        for t in range(16): a(f"v_exp_f32 v{vS+t}, v{vS+t}")
        a(f"v_pk_add_f32 {r2(vT)}, {r2(vS)}, {r2(vS+2)}")
        for t in range(4, 16, 2): a(f"v_pk_add_f32 {r2(vT)}, {r2(vT)}, {r2(vS+t)}")
        a(f"v_add_f32 v{vT}, v{vT}, v{vT+1}")
        a(f"ds_write_b32 v{vK}, v{vT} offset:{LS}")
        for t in range(16): a(f"v_cvt_pk_bf16_f32 v{vS+t}, v{vS+t}, v{vS+t}")
        self.stamp("smax")
        ha = o["hpoll_after"]
        for t in range(16):
            B = vT + 4 * (t % 2)
            for j in range(4): a(f"v_and_b32 v{B+j}, v{vS+t}, v{vM[j]}")
            self.wait(f"V{t}")
            a(f"v_mfma_f32_16x16x32_bf16 {r4(vAcc)}, {r4(dst[f'V{t}'])}, {r4(B)}, {'0' if t == 0 else r4(vAcc)}")
            fill(f"V{t}")
            if t == ha:
                self.wait("HPL")
                retry_loop("h", [f"buffer_load_dwordx4 {r4(vAO)}, v{vQb}, s[{SW}:{SW+3}], 0 offen sc1"], [vAO], vU)
                for i in range(4): a(f"v_add_f32_dpp v{vAO+i}, v{vAO+i}, v{vAO+i} quad_perm:[2,3,0,1] row_mask:0xf bank_mask:0xf")
                for i in range(4): a(f"v_add_f32_dpp v{vAO+i}, v{vAO+i}, v{vAO+i} row_shl:4 row_mask:0xf bank_mask:0xf")
                a(f"""
                v_and_b32 v{vU}, 7, v0
                v_cmp_gt_u32 vcc, 2, v{vU}
                v_mul_u32_u24 v{vU}, 96, v{vU}
                v_lshrrev_b32 v{vU+1}, 3, v{vL}
                v_min_u32 v{vU+1}, 5, v{vU+1}
                v_lshl_add_u32 v{vU}, v{vU+1}, 4, v{vU}
                s_mul_i32 s4, s{sJ}, 192
                s_add_u32 s4, s4, {HP}
                v_add_u32 v{vU}, s4, v{vU}
                v_mov_b32 v{vU+1}, {QL}
                v_cndmask_b32 v{vU}, v{vU+1}, v{vU}, vcc
                ds_write_b128 v{vU}, {r4(vAO)}
                s_waitcnt lgkmcnt(0)
                s_barrier
                """)
                Lh = self.lab("hfin")
                a(f"""
                s_cmp_lg_u32 s{sJ}, 1
                s_cbranch_scc1 {Lh}
                s_mov_b64 exec, 0x3ffff
                s_bfe_u32 s4, s2, 0x10003
                s_lshl_b32 s4, s4, 3
                v_lshl_add_u32 v{vU}, v{vL}, 2, s4
                """)
                for jj in range(4):
                    a(f"ds_read2_b32 {r2(vU+2+2*jj)}, v{vU} offset0:{(HP+192*jj)//4 - HP//4} offset1:{(192*jj+96)//4}".replace(f"v{vU} ", f"v{vU+1} "))
                idx = len(self.l) - 4
                self.l.insert(idx, f"    v_add_u32 v{vU+1}, {HP}, v{vU}")
                a(f"""
                s_waitcnt lgkmcnt(0)
                v_pk_add_f32 {r2(vU+2)}, {r2(vU+2)}, {r2(vU+4)}
                v_pk_add_f32 {r2(vU+6)}, {r2(vU+6)}, {r2(vU+8)}
                v_pk_add_f32 {r2(vU+2)}, {r2(vU+2)}, {r2(vU+6)}
                v_cvt_pk_bf16_f32 v{vU+2}, v{vU+2}, v{vU+3}
                v_and_b32 v{vU+3}, 0xffff0000, v{vU+2}
                v_lshlrev_b32 v{vU+2}, 16, v{vU+2}
                v_max_f32 v{vU+2}, 0, v{vU+2}
                v_mul_f32 v{vU+2}, v{vU+2}, v{vU+3}
                v_cvt_pk_bf16_f32 v{vU+2}, v{vU+2}, v{vU+2}
                v_lshlrev_b32 v{vU}, 1, v{vL}
                ds_write_b16 v{vU}, v{vU+2} offset:{HL}
                s_mov_b64 exec, -1
                {Lh}:
                """)
        a(f"""
        v_bfe_u32 v{vU}, v0, 3, 1
        v_lshlrev_b32 v{vU}, 9, v{vU}
        v_bfe_u32 v{vU+1}, v0, 4, 2
        v_lshl_add_u32 v{vU}, v{vU+1}, 7, v{vU}
        v_and_b32 v{vU+1}, 7, v0
        v_lshl_add_u32 v{vU}, v{vU+1}, 2, v{vU}
        v_lshl_add_u32 v{vU}, v{vJ}, 10, v{vU}
        """)
        for i in range(4): a(f"ds_write_b32 v{vU}, v{vAcc+i} offset:{OW+32*i}")
        a(f"""
        s_waitcnt lgkmcnt(0)
        s_barrier
        """)
        self.stamp("pvdone")
        Lo1 = self.lab("opub")
        a(f"""
        s_lshl_b32 s6, s{sG}, 4
        s_cmp_lg_u32 s{sJ}, 0
        s_cbranch_scc1 {Lo1}
        """)
        for jj in range(4): a(f"ds_read_b128 {r4(vT+4*jj)}, v{vV} offset:{OW+1024*jj}")
        a(f"""
        v_bfe_u32 v{vU}, v0, 3, 1
        v_lshlrev_b32 v{vU}, 6, v{vU}
        """)
        for i in range(4): a(f"ds_read_b128 {r4(vU+4+4*i)}, v{vU} offset:{LS+16*i}")
        a(f"""
        s_add_u32 s4, s6, s{sS}
        s_mul_i32 s4, s4, 1152
        s_add_u32 s4, s4, {OB}
        v_add_u32 v{vU}, s4, v{vV}
        s_waitcnt lgkmcnt(4)
        v_pk_add_f32 {r2(vT)}, {r2(vT)}, {r2(vT+4)}
        v_pk_add_f32 {r2(vT+2)}, {r2(vT+2)}, {r2(vT+6)}
        v_pk_add_f32 {r2(vT+8)}, {r2(vT+8)}, {r2(vT+12)}
        v_pk_add_f32 {r2(vT+10)}, {r2(vT+10)}, {r2(vT+14)}
        v_pk_add_f32 {r2(vT)}, {r2(vT)}, {r2(vT+8)}
        v_pk_add_f32 {r2(vT+2)}, {r2(vT+2)}, {r2(vT+10)}
        """)
        tagins(vT)
        a(f"""
        buffer_store_dwordx4 {r4(vT)}, v{vU}, s[{SW}:{SW+3}], 0 offen sc1
        s_waitcnt lgkmcnt(0)
        """)
        for i in range(2, 16, 2): a(f"v_pk_add_f32 {r2(vU+4)}, {r2(vU+4)}, {r2(vU+4+i)}")
        a(f"""
        v_add_f32 v{vT+5}, v{vU+4}, v{vU+5}
        v_mov_b32 v{vT+4}, v{vXQ}
        v_mov_b32_dpp v{vT+6}, v{vXQ} row_shl:8 row_mask:0xf bank_mask:0xf
        v_mov_b32_dpp v{vT+7}, v{vT+5} row_shl:8 row_mask:0xf bank_mask:0xf
        """)
        tagins(vT + 4)
        a(f"""
        s_mov_b64 exec, 1
        buffer_store_dwordx4 {r4(vT+4)}, v{vU}, s[{SW}:{SW+3}], 0 offen offset:1024 sc1
        s_mov_b64 exec, -1
        {Lo1}:
        """)
        a(f"""
        s_mul_i32 s4, s6, 1152
        s_add_u32 s4, s4, {OB}
        v_and_b32 v{vQa}, 15, v0
        v_mul_u32_u24 v{vQa}, 1152, v{vQa}
        v_add_u32 v{vQa}, s4, v{vQa}
        v_bfe_u32 v{vQb}, v0, 4, 2
        v_lshl_add_u32 v{vQb}, s{sS}, 2, v{vQb}
        v_lshl_add_u32 v{vQb}, v{vQb}, 4, v{vQa}
        """)
        oloads = [f"buffer_load_dwordx4 {r4(vPoll)}, v{vQb}, s[{SW}:{SW+3}], 0 offen sc1",
                  f"buffer_load_dwordx4 {r4(vAcc)}, v{vQa}, s[{SW}:{SW+3}], 0 offen offset:1024 sc1"]
        a(f"""
        v_mul_u32_u24 v{vU}, 911, v0
        v_lshrrev_b32 v{vU}, 16, v{vU}
        v_mul_u32_u24 v{vRS}, 12, v{vU}
        v_add_u32 v{vU}, {HL}, v{vRS}
        ds_read2_b32 {r2(vXG)}, v{vU} offset0:0 offset1:1
        ds_read_b32 v{vXG+2}, v{vU} offset:8
        s_waitcnt lgkmcnt(0)
        """)
        while self.ip < len(big): issue_next()
        for k in range(6):
            A = flat_step(k, vXG, None, None, None)
            self.wait(f"D{k}")
            flat_mfma(A, dst[f"D{k}"], vAD, k == 0)
        self.stamp("Ddone")
        Lo2 = self.lab("ocons")
        a(f"""
        s_cmp_lg_u32 s{sJ}, 1
        s_cbranch_scc1 {Lo2}
        """)
        for ld in oloads: a(ld)
        a("s_waitcnt vmcnt(0)")
        retry_loop("o", oloads, [vPoll, vAcc], vU)
        self.stamp("opollok")
        a(f"""
        s_cmp_ge_u32 s{sS}, 8
        s_cselect_b64 vcc, -1, 0
        v_cndmask_b32 v{vT}, v{vAcc}, v{vAcc+2}, vcc
        v_cndmask_b32 v{vT+1}, v{vAcc+1}, v{vAcc+3}, vcc
        v_and_b32 v{vT}, v{vT}, v{vTM}
        v_max_f32_dpp v{vT+2}, v{vT}, v{vT} row_ror:1 row_mask:0xf bank_mask:0xf
        """)
        for r in (2, 4, 8): a(f"v_max_f32_dpp v{vT+2}, v{vT+2}, v{vT+2} row_ror:{r} row_mask:0xf bank_mask:0xf")
        a(f"""
        v_sub_f32 v{vT}, v{vT}, v{vT+2}
        v_mul_f32 v{vT}, s{sC}, v{vT}
        v_exp_f32 v{vT}, v{vT}
        v_mul_f32 v{vT+1}, v{vT}, v{vT+1}
        """)
        for i in range(4): a(f"v_mul_f32 v{vPoll+i}, v{vT}, v{vPoll+i}")
        for r in (1, 2, 4, 8):
            a(f"v_add_f32_dpp v{vT+1}, v{vT+1}, v{vT+1} row_ror:{r} row_mask:0xf bank_mask:0xf")
            for i in range(4): a(f"v_add_f32_dpp v{vPoll+i}, v{vPoll+i}, v{vPoll+i} row_ror:{r} row_mask:0xf bank_mask:0xf")
        a(f"v_rcp_f32 v{vT+1}, v{vT+1}")
        for i in range(4): a(f"v_mul_f32 v{vPoll+i}, v{vT+1}, v{vPoll+i}")
        a(f"""
        v_cvt_pk_bf16_f32 v{vT+2}, v{vPoll}, v{vPoll+1}
        v_cvt_pk_bf16_f32 v{vT+3}, v{vPoll+2}, v{vPoll+3}
        v_lshrrev_b32 v{vU}, 4, v{vL}
        v_lshlrev_b32 v{vU}, 3, v{vU}
        ds_write_b64 v{vU}, {r2(vT+2)} offset:{OL}
        {Lo2}:
        """)
        for i in range(0, 8): a(f"v_mul_f32 v{vAD+i}, v{vOMG}, v{vAD+i}")
        a(f"""
        v_add_u32 v{vU+4}, {OL}, v{vRS}
        s_waitcnt lgkmcnt(0)
        s_barrier
        ds_read2_b32 {r2(vXG)}, v{vU+4} offset0:0 offset1:1
        ds_read_b32 v{vXG+2}, v{vU+4} offset:8
        """)
        self.stamp("B7")
        a(f"""
        v_lshrrev_b32 v{vQa}, {CG.bit_length()-1}, v0
        v_mul_u32_u24 v{vQa}, {256*CG*16}, v{vQa}
        v_and_b32 v{vQb}, {CG-1}, v0
        v_lshl_add_u32 v{vQa}, v{vQb}, 4, v{vQa}
        s_mul_i32 s4, s2, {CG*16}
        s_add_u32 s4, s4, {FB}
        v_add_u32 v{vQa}, s4, v{vQa}
        s_waitcnt lgkmcnt(0)
        """)
        for k in range(6):
            A = flat_step(k, vXG, None, None, None)
            self.wait(f"O{k}")
            flat_mfma(A, dst[f"O{k}"], vAO, k == 0)
        self.stamp("Odone")
        for i in range(8): a(f"v_fma_f32 v{vAD+i}, v{vG}, v{vAO+i}, v{vAD+i}")
        a(f"""
        ds_write_b128 v{vCH}, {r4(vAD)} offset:{LF}
        ds_write_b128 v{vCH}, {r4(vAD+4)} offset:{LF+16}
        s_waitcnt lgkmcnt(0)
        s_barrier
        """)
        flat_reduce(LF, vQa, self.lab("fpub"))
        self.stamp("fpub")
        a(f"""
        s_cmp_ge_u32 s2, {R}
        s_cbranch_scc1 L_fin
        """)
        assert CG == 4
        a(f"""
        s_mul_i32 s4, s2, {256*CG*16}
        s_add_u32 s4, s4, {FB}
        v_and_b32 v{vQa}, 15, v0
        v_lshlrev_b32 v{vQa}, 6, v{vQa}
        v_bfe_u32 v{vQb}, v0, 4, 2
        v_lshl_add_u32 v{vQa}, v{vQb}, 4, v{vQa}
        v_lshl_add_u32 v{vQa}, v{vJ}, 10, v{vQa}
        v_add_u32 v{vQa}, s4, v{vQa}
        s_movk_i32 s33, 0x1000
        s_movk_i32 s34, 0x2000
        s_movk_i32 s35, 0x3000
        """)
        floads = [f"buffer_load_dwordx4 {r4(R1+4*k)}, v{vQa}, s[{SW}:{SW+3}], {'0' if k == 0 else f's{32+k}'} offen sc1" for k in range(4)]
        for ld in floads: a(ld)
        a("s_waitcnt vmcnt(0)")
        retry_loop("f", floads, [R1 + 4 * k for k in range(4)], vU)
        self.stamp("fpollok")
        a(f"""
        v_pk_add_f32 {r2(R1)}, {r2(R1)}, {r2(R1+4)}
        v_pk_add_f32 {r2(R1+2)}, {r2(R1+2)}, {r2(R1+6)}
        v_pk_add_f32 {r2(R1+8)}, {r2(R1+8)}, {r2(R1+12)}
        v_pk_add_f32 {r2(R1+10)}, {r2(R1+10)}, {r2(R1+14)}
        v_pk_add_f32 {r2(R1)}, {r2(R1)}, {r2(R1+8)}
        v_pk_add_f32 {r2(R1+2)}, {r2(R1+2)}, {r2(R1+10)}
        """)
        for r in (1, 2, 4, 8):
            for i in range(4): a(f"v_add_f32_dpp v{R1+i}, v{R1+i}, v{R1+i} row_ror:{r} row_mask:0xf bank_mask:0xf")
        a(f"""
        v_lshrrev_b32 v{vU}, 4, v0
        v_lshlrev_b32 v{vU}, 4, v{vU}
        ds_write_b128 v{vU}, {r4(R1)} offset:{RD}
        s_waitcnt lgkmcnt(0)
        s_barrier
        s_cmp_lg_u32 s{sJ}, 0
        s_cbranch_scc1 L_fin
        s_mov_b64 exec, 15
        """)
        for jj in range(4): a(f"ds_read_b128 {r4(vT+4*jj)}, v{vV} offset:{RD+64*jj}")
        a(f"""
        s_mov_b32 s{SX}, s56
        s_mov_b32 s{SX+1}, s57
        s_lshl_b32 s4, s2, 5
        v_lshl_add_u32 v{vU}, v0, 3, s4
        s_waitcnt lgkmcnt(0)
        v_pk_add_f32 {r2(vT)}, {r2(vT)}, {r2(vT+4)}
        v_pk_add_f32 {r2(vT+2)}, {r2(vT+2)}, {r2(vT+6)}
        v_pk_add_f32 {r2(vT+8)}, {r2(vT+8)}, {r2(vT+12)}
        v_pk_add_f32 {r2(vT+10)}, {r2(vT+10)}, {r2(vT+14)}
        v_pk_add_f32 {r2(vT)}, {r2(vT)}, {r2(vT+8)}
        v_pk_add_f32 {r2(vT+2)}, {r2(vT+2)}, {r2(vT+10)}
        v_cvt_pk_bf16_f32 v{vT}, v{vT}, v{vT+1}
        v_cvt_pk_bf16_f32 v{vT+1}, v{vT+2}, v{vT+3}
        buffer_store_dwordx2 {r2(vT)}, v{vU}, s[{SX}:{SX+3}], 0 offen
        s_cmp_lg_u32 s2, 0
        s_cbranch_scc1 L_fin
        s_mov_b64 exec, 1
        v_mov_b32 v{vT+4}, s{sTAG}
        v_mov_b32 v{vT+5}, 0
        buffer_store_dword v{vT+4}, v{vT+5}, s[{SW}:{SW+3}], 0 offen sc1
        L_fin:
        """)
        if o["amp"] >= 0:
            self.stamp("end")
            k = o["amp"]
            a(f"""
            s_waitcnt lgkmcnt(0)
            s_sub_u32 s6, s{self.sreg(k)}, s16
            s_mul_i32 s6, s6, 10
            s_add_u32 s6, s6, 3000
            L_hold:
            s_memrealtime s[4:5]
            s_waitcnt lgkmcnt(0)
            s_sub_u32 s4, s4, s16
            s_cmp_lt_u32 s4, s6
            s_cbranch_scc1 L_hold
            """)
        elif o["stamps"] and o["dbgst"]:
            self.stamp("end")
            a(f"""
            s_waitcnt lgkmcnt(0)
            s_mov_b64 exec, 1
            v_mov_b32 v4, 0
            s_not_b32 s4, s16
            v_mov_b32 v2, s4
            global_atomic_umax v4, v2, s[58:59]
            """)
            for j in range(8):
                a(f"""
                v_mov_b32 v{5+j}, s{16+2*j}
                global_atomic_umax v4, v{5+j}, s[58:59] offset:{4+4*j}
                """)
        elif o["stamps"]:
            self.stamp("end")
            a(f"""
            s_waitcnt lgkmcnt(0)
            s_lshl_b32 s4, s2, 2
            s_add_u32 s4, s4, s{sJ}
            s_lshl_b32 s4, s4, 7
            s_add_u32 s4, s4, {STAMP_OFF - o['wsoff']:#x}
            s_add_u32 s6, s60, s4
            s_addc_u32 s7, s61, 0
            s_mov_b64 exec, 1
            v_mov_b32 v4, 0
            """)
            for j in range(self.nst):
                a(f"""
                v_mov_b32 v2, s{self.sreg(j)}
                v_mov_b32 v3, s{self.sreg(j)+1}
                global_store_dwordx2 v4, v[2:3], s[6:7] offset:{8*j}
                s_nop 1
                """)
        if o["hold"]:
            a(f"""
            s_waitcnt lgkmcnt(0)
            L_hold:
            s_memrealtime s[4:5]
            s_waitcnt lgkmcnt(0)
            s_sub_u32 s4, s4, s16
            s_cmp_lt_u32 s4, {o["hold"]}
            s_cbranch_scc1 L_hold
            """)
        a("L_end:")
        a("s_endpgm")
        body = "\n".join(fix(self.l)) + "\n"
        head = open("cdna_kernels/" + KN + ".s.ref").read().split("; Override launch")[0]
        return head + f"""; @launch grid=(256,1,1) block=(256,1,1) lds={o['lds']}
.amdgcn_target "amdgcn-amd-amdhsa--gfx950"
.text
.globl {KN}_kernel
.p2align 8
.type {KN}_kernel,@function
{KN}_kernel:
""" + body + f""".section .rodata,"a"
.p2align 6
.amdhsa_kernel {KN}_kernel
  .amdhsa_next_free_vgpr 256
  .amdhsa_next_free_sgpr 102
  .amdhsa_accum_offset 256
  .amdhsa_group_segment_fixed_size 0
  .amdhsa_kernarg_size 104
  .amdhsa_user_sgpr_count 2
  .amdhsa_user_sgpr_kernarg_segment_ptr 1
  .amdhsa_system_sgpr_workgroup_id_x 1
.end_amdhsa_kernel
"""

if __name__ == "__main__":
    out = sys.argv[1]
    opt = {}
    for kv in sys.argv[2:]:
        k, v = kv.split("=")
        opt[k] = eval(v)
    g = Gen(**opt)
    txt = g.build()
    if g.names: txt = txt.replace("; @launch", "; stamps: " + " ".join(g.names) + "\n; @launch", 1)
    open(out, "w").write(txt)
```

```python
import sys, struct
from hazard import fix
KN = "gated_mix__sliding_block_cached__glu_gated_reglu__decode"
STAMP_OFF = 0x30000000
def f2u(x): return struct.unpack("<I", struct.pack("<f", x))[0]

class Gen:
    def __init__(self, **opt):
        self.o = dict(W=7, stamps=False, wsoff=0, qp=2, hp=3, CG=4, round_scores=True, prefetch=3, jitter=0,
                      hold=0, amp=-1, lds=90112, nt="nt", spin=20000, pre_g=2, pre_q=2, pre_s=3, Wt=7, fdepth=2, odepth=1,
                      cnt=0, post=8, osleep=0, fsleep=0, pre_qp=0, first='sc1', pt=0, ptf='', st3=0, early=1)
        for k in opt: assert k in self.o, k
        self.o.update(opt)
        self.l = []; self.vm = []; self.nl = 0; self.nst = 0; self.names = []
    def a(self, s):
        for x in s.strip().split("\n"):
            x = x.strip()
            if x: self.l.append(x if x.endswith(":") else "    " + x)
    def lab(self, p):
        self.nl += 1
        return f"L_{p}{self.nl}"
    def issue(self, label, s):
        self.a(s); self.vm.append(label)
    def wait(self, label):
        n = len(self.vm) - 1 - self.vm.index(label)
        assert n <= 63
        self.a(f"s_waitcnt vmcnt({n})")
    def sreg(self, k): return 16 + 2 * k if k < 8 else 36 + 2 * (k - 8)
    def stamp(self, name=""):
        if self.o["stamps"]:
            assert self.nst < 16
            r = self.sreg(self.nst)
            self.a(f"s_memrealtime s[{r}:{r+1}]")
            self.names.append(name); self.nst += 1

    def build(self):
        o = self.o; a = self.a; nt = o["nt"]; W = o["W"]
        RA, OB, FB = 0x1000, 0x50000, 0xA0000
        CG = o["CG"]; R = 144 // CG
        XL, P1, QL, MX, LS, GS, HP, HL, OL, OW, LF, RD, DUM = 0, 2560, 10752, 14848, 14976, 15104, 15232, 15616, 15744, 15872, 19968, 29184, 29696
        vL = 1; vM = [2, 3, 4, 5]; vSel = [6, 7, 8, 9]
        vQa, vQb, vGU, vK, vV, vPD, vPD2, vPO, vTM = 10, 11, 12, 13, 14, 15, 16, 18, 17
        vMx, vMc, vFA, vRS = 19, 20, 21, 22
        vX = 24
        vS = 32; vBq = 48; vAq = 52; vAg = 56; vAr = 60; vAD = 56; vAO = 64; vT = 72; vPoll = 92
        vCH, vG, vOMG, vJ = 96, 97, 98, 99
        R1 = 100; R2 = 164; vU = 228
        vAcc = vAq
        dst = {}
        for i in range(5): dst[f"Q{i}"] = R1 + 4 * i
        for i in range(9): dst[f"G{i}"] = R1 + 20 + 4 * i
        for i in range(2): dst[f"R{i}"] = R1 + 56 + 4 * i
        for i in range(16): dst[f"K{i}"] = R2 + 4 * i; dst[f"V{i}"] = R1 + 4 * i
        for i in range(6): dst[f"D{i}"] = R2 + 4 * i; dst[f"O{i}"] = R2 + 24 + 4 * i
        big = [f"Q{i}" for i in range(5)] + [f"G{i}" for i in range(9)] + ["R0", "R1"] + [f"K{i}" for i in range(16)] + \
              [f"V{i}" for i in range(16)] + [f"D{i}" for i in range(6)] + [f"O{i}" for i in range(6)]
        sTAG = 62; sJ = 3; sKQ, sG, sS, sC6 = 8, 9, 10, 11; s4608 = 12
        sKV = 13; sGU = 14; sC = 15
        SQ, SGU, SK, SV, SD, SO, SX, SR, SW = 64, 68, 72, 76, 80, 84, 88, 92, 96
        r4 = lambda v: f"v[{v}:{v+3}]"
        r2 = lambda v: f"v[{v}:{v+1}]"
        DPP = "row_mask:0xf bank_mask:0xf"
        self.ip = 0; self.gdone = self.kdone = False
        def issue_next():
            lb = big[self.ip]; self.ip += 1
            d = r4(dst[lb]); k = int(lb[1:]); c = lb[0]
            if c == "V": assert self.gdone
            if c in "DO": assert self.kdone
            if c == "Q":
                if k == 0: self.issue(lb, f"buffer_load_dwordx4 {d}, v{vQa}, s[{SQ}:{SQ+3}], 0 offen {nt}")
                elif k < 4: self.issue(lb, f"buffer_load_dwordx4 {d}, v{vQa}, s[{SQ}:{SQ+3}], s{32+k} offen {nt}")
                else: self.issue(lb, f"buffer_load_dwordx4 {d}, v{vQb}, s[{SQ}:{SQ+3}], 0 offen {nt}")
            elif c == "G":
                if k == 0: a(f"s_mov_b32 s{sGU}, 0")
                elif k < 8: a(f"s_addk_i32 s{sGU}, 9216")
                if k < 8: self.issue(lb, f"buffer_load_dwordx4 {d}, v{vGU}, s[{SGU}:{SGU+3}], s{sGU} offen {nt}")
                else: self.issue(lb, f"buffer_load_dwordx4 {d}, v{vPD}, s[{SGU}:{SGU+3}], 0 offen {nt}")
            elif c == "R":
                self.issue(lb, f"buffer_load_dwordx4 {d}, v{vPD2 if k == 0 else vPO}, s[{SR}:{SR+3}], 0 offen {nt}")
            elif c in "KV":
                if k == 0: a(f"s_mov_b32 s{sKV}, 0")
                else: a(f"s_addk_i32 s{sKV}, 4096")
                sr, vo = (SK, vK) if c == "K" else (SV, vV)
                self.issue(lb, f"buffer_load_dwordx4 {d}, v{vo}, s[{sr}:{sr+3}], s{sKV} offen {nt}")
            else:
                sr = SD if c == "D" else SO
                vo = vPO if c == "O" else (vPD if k < 2 else vPD2)
                so, im = ("0", k * 1152) if k < 4 else (f"s{s4608}", (k - 4) * 1152)
                if c == "O" and k >= 4: vo, so = vGU, "0"
                self.issue(lb, f"buffer_load_dwordx4 {d}, v{vo}, s[{sr}:{sr+3}], {so} offen offset:{im} {nt}")
        def fill(label, w=None):
            w = W if w is None else w
            idx = big.index(label)
            while self.ip < len(big) and self.ip <= idx + w: issue_next()
        def more(n):
            for _ in range(n):
                if self.ip < len(big): issue_next()
        def tagins(v):
            for i in range(4): a(f"v_and_or_b32 v{v+i}, v{v+i}, v{vTM}, s{sTAG}")
        def tagchk(vs, acc):
            first = True
            for v in vs:
                for i in range(4):
                    if first: a(f"v_xor_b32 v{acc}, s{sTAG}, v{v+i}"); first = False
                    else: a(f"v_bitop3_b32 v{acc}, v{v+i}, s{sTAG}, v{acc} bitop3:0xbe")
            a(f"v_and_b32 v{acc}, 0xff, v{acc}")
            a(f"v_cmp_ne_u32 vcc, 0, v{acc}")
        def retry_loop(name, loads, vs, acc):
            Lok = self.lab(name + "ok"); Lre = self.lab(name + "re")
            a(f"s_mov_b32 s7, {o['spin']}")
            a(f"{Lre}:")
            tagchk(vs, acc)
            a(f"s_cbranch_vccz {Lok}")
            for ld in loads: a(ld)
            a("s_waitcnt vmcnt(0)")
            a("s_sub_u32 s7, s7, 1")
            a("s_cmp_lg_u32 s7, 0")
            a(f"s_cbranch_scc1 {Lre}")
            a(f"{Lok}:")
            if o["stamps"] and o["cnt"]:
                r = self.sreg(self.nst); self.names.append(name + "retry"); self.nst += 1
                a(f"s_sub_u32 s7, {o['spin']}, s7"); a(f"s_mul_i32 s7, s7, 100")
                a(f"s_add_u32 s{r}, s16, s7"); a(f"s_addc_u32 s{r+1}, s17, 0")
        def pipe_poll(name, mk, sets, acc, first_issued, fin, slp=0):
            n = len(mk(sets[0])); D = len(sets)
            Lx = self.lab(name + "x"); Lre = self.lab(name + "re")
            Lmv = [self.lab(name + "mv") for _ in range(D)]
            for d in range(first_issued, D):
                for ld in mk(sets[d]): a(ld)
            a(f"s_mov_b32 s7, {o['spin']}")
            a(f"{Lre}:")
            for d in range(D):
                a(f"s_waitcnt vmcnt({n*(D-1)})")
                tagchk(sets[d], acc)
                a(f"s_cbranch_vccz {Lmv[d]}")
                if slp: a(f"s_sleep {slp}")
                for ld in mk(sets[d]): a(ld)
            a("s_sub_u32 s7, s7, 1")
            a("s_cmp_lg_u32 s7, 0")
            a(f"s_cbranch_scc1 {Lre}")
            for d in range(D - 1, -1, -1):
                a(f"{Lmv[d]}:")
                fin(sets[d])
                if d: a(f"s_branch {Lx}")
            a(f"{Lx}:")
        def pkadd(d, x, y):
            a(f"v_pk_add_f32 {r2(d)}, {r2(x)}, {r2(y)}"); a(f"v_pk_add_f32 {r2(d+2)}, {r2(x+2)}, {r2(y+2)}")

        self.stamp("start")
        if o["hold"]: a("s_memrealtime s[16:17]")
        a(f"""
        s_load_dwordx16 s[36:51], s[0:1], 0
        s_cmpk_ge_u32 s2, 0x100
        s_cbranch_scc1 L_end
        """)
        if o["jitter"]:
            a(f"""s_mul_i32 s4, s2, 0x9e3779b1
            s_lshr_b32 s4, s4, {32-o["jitter"]}
            L_jit:
            s_cmp_eq_u32 s4, 0
            s_cbranch_scc1 L_jitd
            s_sleep 40
            s_sub_u32 s4, s4, 1
            s_branch L_jit
            L_jitd:""")
        a(f"""
        s_lshr_b32 s{sKQ}, s2, 6
        s_mul_i32 s4, s{sKQ}, {144*8192}
        s_and_b32 s{sC6}, s2, 63
        s_lshl_b32 s5, s{sC6}, 7
        s_add_u32 s4, s4, s5
        v_lshrrev_b32 v{vT}, 3, v0
        v_and_b32 v{vT+1}, 7, v0
        v_lshlrev_b32 v{vT+1}, 4, v{vT+1}
        v_lshl_add_u32 v{vQa}, v{vT}, 15, v{vT+1}
        s_mov_b32 s{SQ+2}, {143*8192+128}
        s_mov_b32 s{SQ+3}, 0x20000
        s_movk_i32 s33, 0x2000
        s_movk_i32 s34, 0x4000
        s_movk_i32 s35, 0x6000
        s_waitcnt lgkmcnt(0)
        s_add_u32 s{SQ}, s42, s4
        s_addc_u32 s{SQ+1}, s43, 0
        """)
        if o["st3"]: self.stamp("karg")
        more(4)
        if o["st3"]: self.stamp("Q3iss")
        a(f"""
        s_load_dwordx8 s[52:59], s[0:1], 64
        s_load_dwordx2 s[60:61], s[0:1], 96
        v_lshl_add_u32 v{vQb}, v{vT}, 13, v{vT+1}
        v_add_u32 v{vQb}, {128*8192}, v{vQb}
        v_lshrrev_b32 v{vJ}, 6, v0
        v_lshlrev_b32 v{vV}, 4, v0
        v_readfirstlane_b32 s{sJ}, v{vJ}
        """)
        more(1)
        a(f"""
        s_mov_b32 s{SX}, s36
        s_mov_b32 s{SX+1}, s37
        s_movk_i32 s{SX+2}, 1152
        s_mov_b32 s{SX+3}, 0x20000
        """)
        self.issue("X", f"buffer_load_dwordx4 {r4(vX)}, v{vV}, s[{SX}:{SX+3}], 0 offen")
        a(f"""
        s_bitcmp1_b32 s{sJ}, 0
        s_cselect_b32 s{SGU}, s50, s48
        s_cselect_b32 s{SGU+1}, s51, s49
        s_lshr_b32 s6, s{sJ}, 1
        s_lshl1_add_u32 s6, s{sKQ}, s6
        s_mul_i32 s4, s6, {72*9216}
        s_add_u32 s4, s4, s5
        s_add_u32 s{SGU}, s{SGU}, s4
        s_addc_u32 s{SGU+1}, s{SGU+1}, 0
        s_mov_b32 s{SGU+2}, {71*9216+128}
        s_mov_b32 s{SGU+3}, 0x20000
        v_and_b32 v{vT+2}, 7, v{vT}
        v_mul_u32_u24 v{vGU}, {8*9216}, v{vT+2}
        v_add_u32 v{vGU}, v{vGU}, v{vT+1}
        """)
        more(2)
        a(f"""
        v_mul_u32_u24 v{vPD}, 9216, v{vT+2}
        v_add_u32 v{vPD}, v{vPD}, v{vT+1}
        v_add_u32 v{vPD}, {64*9216}, v{vPD}
        s_waitcnt lgkmcnt(0)
        s_mov_b32 s{SR}, s54
        s_mov_b32 s{SR+1}, s55
        s_movk_i32 s{SR+2}, 1152
        s_mov_b32 s{SR+3}, 0x20000
        """)
        self.issue("GW", f"buffer_load_dwordx4 {r4(vX+4)}, v{vV}, s[{SR}:{SR+3}], 0 offen")
        if o["prefetch"]:
            a(f"""
            s_getpc_b64 s[4:5]
            s_lshr_b32 s7, s2, 3
            s_mul_i32 s7, s7, {128*o['prefetch']}
            v_and_b32 v{vT+3}, 63, v0
            v_lshl_add_u32 v{vT+3}, v{vT+3}, 7, s7
            s_mov_b64 exec, {(1 << o['prefetch']) - 1}
            """)
            self.issue("PF", f"global_load_dword v{vMc}, v{vT+3}, s[4:5]")
            a("s_mov_b64 exec, -1")
        more(o["early"])
        a(f"""
        s_add_u32 s60, s60, {o['wsoff']:#x}
        s_addc_u32 s61, s61, 0
        s_load_dword s{sTAG}, s[60:61], 0
        s_bitcmp1_b32 s2, 3
        s_cselect_b32 s{SR}, s50, s48
        s_cselect_b32 s{SR+1}, s51, s49
        s_lshr_b32 s7, s2, 4
        s_mul_i32 s4, s7, {36*9216}
        s_and_b32 s5, s2, 7
        s_lshl_b32 s5, s5, 7
        s_add_u32 s4, s4, s5
        s_add_u32 s4, s4, 8192
        s_add_u32 s{SR}, s{SR}, s4
        s_addc_u32 s{SR+1}, s{SR+1}, 0
        s_mov_b32 s{SR+2}, {35*9216+128}
        v_mul_u32_u24 v{vPD2}, 9216, v{vT}
        v_add_u32 v{vPD2}, v{vPD2}, v{vT+1}
        v_add_u32 v{vPO}, {32*9216}, v{vPD2}
        s_lshr_b32 s{sG}, s{sC6}, 2
        s_and_b32 s{sS}, s2, 3
        s_lshl2_add_u32 s{sS}, s{sKQ}, s{sS}
        s_lshl_b32 s4, s{sG}, 24
        s_lshl_b32 s5, s{sS}, 16
        s_add_u32 s4, s4, s5
        s_add_u32 s4, s4, {61440*256}
        s_add_u32 s{SK}, s38, s4
        s_addc_u32 s{SK+1}, s39, 0
        s_mov_b32 s{SK+2}, 0x10000
        s_mov_b32 s{SK+3}, 0x20000
        s_add_u32 s{SV}, s40, s4
        s_addc_u32 s{SV+1}, s41, 0
        s_mov_b32 s{SV+2}, 0x10000
        s_mov_b32 s{SV+3}, 0x20000
        s_lshr_b32 s4, s2, 7
        s_mul_i32 s4, s4, 576
        s_add_u32 s{SD}, s52, s4
        s_addc_u32 s{SD+1}, s53, 0
        s_mov_b32 s{SD+2}, {4607*1152+576}
        s_mov_b32 s{SD+3}, 0x20000
        s_and_b32 s5, s{sS}, 7
        s_lshl3_add_u32 s5, s{sG}, s5
        s_mul_i32 s5, s5, {32*1152}
        s_add_u32 s4, s4, s5
        s_add_u32 s{SO}, s44, s4
        s_addc_u32 s{SO+1}, s45, 0
        s_mov_b32 s{SO+2}, {31*1152+576}
        s_mov_b32 s{SO+3}, 0x20000
        s_mov_b32 s{SW}, s60
        s_mov_b32 s{SW+1}, s61
        s_mov_b32 s{SW+2}, 0x100000
        s_mov_b32 s{SW+3}, 0x20000
        s_movk_i32 s{s4608}, 4608
        v_and_b32 v{vL}, 63, v0
        v_and_b32 v{vU}, 3, v0
        v_lshlrev_b32 v{vU}, 4, v{vU}
        v_bfe_u32 v{vU+1}, v0, 2, 2
        v_lshl_add_u32 v{vU}, v{vU+1}, 8, v{vU}
        v_bfe_u32 v{vU+1}, v0, 4, 2
        v_lshl_add_u32 v{vU}, v{vU+1}, 6, v{vU}
        v_lshl_add_u32 v{vK}, v{vJ}, 10, v{vU}
        v_mov_b32 v{vTM}, 0xffffff00
        v_and_b32 v{vU}, 1, v0
        v_lshlrev_b32 v{vU}, 4, v{vU}
        v_mov_b32 v{vU+1}, 0xffff
        v_lshlrev_b32 v{vU}, v{vU}, v{vU+1}
        v_bfe_u32 v{vU+1}, v0, 1, 2
        v_cmp_eq_u32 s[4:5], 0, v{vU+1}
        v_cmp_eq_u32 s[100:101], 1, v{vU+1}
        v_cmp_eq_u32 vcc, 2, v{vU+1}
        v_cndmask_b32 v{vM[0]}, 0, v{vU}, s[4:5]
        v_cndmask_b32 v{vM[1]}, 0, v{vU}, s[100:101]
        v_cmp_eq_u32 s[100:101], 3, v{vU+1}
        v_cndmask_b32 v{vM[2]}, 0, v{vU}, vcc
        v_or_b32 v{vU+3}, v{vM[0]}, v{vM[2]}
        v_cndmask_b32 v{vM[3]}, 0, v{vU}, s[100:101]
        v_or_b32 v{vU+1}, v{vM[1]}, v{vM[3]}
        v_mov_b32 v{vU+2}, 0x0c0c0c0c
        s_mov_b32 s32, 0x01000100
        s_mov_b32 s63, 0x03020302
        v_bfi_b32 v{vSel[0]}, v{vU+3}, s32, v{vU+2}
        v_bfi_b32 v{vSel[1]}, v{vU+1}, s32, v{vU+2}
        v_bfi_b32 v{vSel[2]}, v{vU+3}, s63, v{vU+2}
        v_bfi_b32 v{vSel[3]}, v{vU+1}, s63, v{vU+2}
        """)
        if o["pt"]:
            a(f"""
            s_lshl_b32 s4, s2, 10
            s_add_u32 s4, s4, {RA}
            s_lshl4_add_u32 s5, s{sG}, s{sS}
            s_mul_i32 s5, s5, 1152
            s_add_u32 s5, s5, {OB}
            s_cmp_eq_u32 s{sJ}, 1
            s_cselect_b32 s4, s5, s4
            s_and_b32 s5, s2, 127
            s_mul_i32 s5, s5, {CG*16}
            s_lshr_b32 s100, s2, 7
            s_lshl1_add_u32 s100, s100, s{sJ}
            s_sub_u32 s100, s100, 2
            s_mul_i32 s100, s100, {9*128*CG*16}
            s_add_u32 s5, s5, s100
            s_add_u32 s5, s5, {FB}
            s_cmp_ge_u32 s{sJ}, 2
            s_cselect_b32 s4, s5, s4
            s_cselect_b32 s5, {(128*CG*16).bit_length()-1}, 7
            v_lshlrev_b32 v{vU}, s5, v{vL}
            v_add_u32 v{vU}, s4, v{vU}
            s_mov_b64 exec, 0x1ff
            """)
            self.issue("PT", f"buffer_load_dword v{vMx}, v{vU}, s[{SW}:{SW+3}], 0 offen {o['ptf']}")
            a("s_mov_b64 exec, -1")
        a(f"""
        v_lshlrev_b32 v{vU}, 2, v{vL}
        v_mov_b32 v{vU+4}, 0
        v_mov_b32 v{vU+5}, 0
        v_mov_b32 v{vU+6}, 0
        v_mov_b32 v{vU+7}, 0
        ds_write_b32 v{vU}, v{vU+4} offset:{HL}
        ds_write_b32 v{vU}, v{vU+4} offset:{XL+2304}
        v_and_b32 v{vU+1}, 1, v{vJ}
        v_lshlrev_b32 v{vU+1}, 11, v{vU+1}
        v_lshl_add_u32 v{vU+1}, v{vL}, 4, v{vU+1}
        ds_write_b128 v{vU+1}, {r4(vU+4)} offset:{P1+2048+1024}
        """)
        a(f"""
        s_mul_i32 s4, s{sKQ}, 576
        v_lshl_add_u32 v{vU+8}, v{vT}, 4, s4
        v_lshl_add_u32 v{vU+9}, v{vT}, 2, s4
        s_mul_i32 s4, s6, 288
        v_lshl_add_u32 v{vU+10}, v{vT+2}, 5, s4
        v_lshl_add_u32 v{vU+11}, v{vT+2}, 2, s4
        s_mul_i32 s4, s7, 144
        v_lshl_add_u32 v{vU+12}, v{vT}, 2, s4
        v_bfe_u32 v{vU+4}, v0, 3, 1
        v_bfe_u32 v{vU+5}, v0, 5, 1
        v_cmp_eq_u32 vcc, v{vU+4}, v{vU+5}
        v_bfe_u32 v{vU+4}, v0, 4, 1
        v_lshlrev_b32 v{vU+4}, 7, v{vU+4}
        v_lshl_add_u32 v{vU+4}, v{vU+5}, 8, v{vU+4}
        v_lshrrev_b32 v{vU+5}, 2, v{vT+1}
        v_add_u32 v{vU+4}, v{vU+4}, v{vU+5}
        v_lshl_add_u32 v{vU+13}, v{vJ}, 9, v{vU+4}
        s_and_b32 s4, s{sJ}, 1
        s_lshl_b32 s4, s4, 11
        s_lshr_b32 s5, s{sJ}, 1
        s_lshl_b32 s5, s5, 9
        s_add_u32 s4, s4, s5
        s_add_u32 s4, s4, 2048
        v_add_u32 v{vU+14}, s4, v{vU+4}
        v_mov_b32 v{vU+5}, {DUM-P1}
        v_cndmask_b32 v{vU+13}, v{vU+5}, v{vU+13}, vcc
        v_cndmask_b32 v{vU+14}, v{vU+5}, v{vU+14}, vcc
        v_mov_b32 v{vU+5}, {DUM-P1-6144}
        v_lshl_add_u32 v{vU+15}, v{vJ}, 9, v{vU+4}
        v_cndmask_b32 v{vU+15}, v{vU+5}, v{vU+15}, vcc
        v_lshlrev_b32 v{vU+16}, 5, v0
        v_min_u32 v{vU+16}, 2304, v{vU+16}
        """)
        self.stamp("prol")
        if o["st3"]:
            self.wait("Q0"); self.stamp("Q0land")
        self.wait("X")
        if o["st3"]: self.stamp("Xland")
        for i in range(4):
            a(f"v_perm_b32 v{vT+2*i}, v{vX+i}, v{vX+i}, s32")
            a(f"v_perm_b32 v{vT+2*i+1}, v{vX+i}, v{vX+i}, s63")
        a(f"""
        ds_write_b128 v{vU+16}, {r4(vT)} offset:{XL}
        ds_write_b128 v{vU+16}, {r4(vT+4)} offset:{XL+16}
        """)
        fill("Q4")
        a(f"""
        s_waitcnt lgkmcnt(0)
        s_barrier
        ds_read_b128 {r4(vS)}, v{vU+8} offset:{XL}
        ds_read_b32 v{vS+4}, v{vU+9} offset:{XL+512}
        ds_read_b128 {r4(vS+8)}, v{vU+10} offset:{XL}
        ds_read_b128 {r4(vS+12)}, v{vU+10} offset:{XL+16}
        ds_read_b32 v{vS+5}, v{vU+11} offset:{XL+256}
        ds_read_b32 v{vS+6}, v{vU+12} offset:{XL}
        ds_read_b32 v{vS+7}, v{vU+12} offset:{XL+128}
        s_add_u32 s{sTAG}, s{sTAG}, 1
        s_and_b32 s{sTAG}, s{sTAG}, 0xff
        s_waitcnt lgkmcnt(5)
        """)
        nb = [0]
        def l8(lbl, xreg, acc, first, dowait=True):
            B = vT + 4 * (nb[0] % 4); nb[0] += 1
            for j in range(4): a(f"v_and_b32 v{B+j}, v{xreg}, v{vM[j]}")
            if dowait: self.wait(lbl)
            a(f"v_mfma_f32_16x16x32_bf16 {r4(acc)}, {r4(dst[lbl])}, {r4(B)}, {'0' if first else r4(acc)}")
        for t in range(5): l8(f"Q{t}", vS + t, vAq, t == 0, False)
        self.wait("GW")
        for i in range(4):
            a(f"""
            v_lshlrev_b32 v{vU}, 16, v{vX+i}
            v_and_b32 v{vU+1}, 0xffff0000, v{vX+i}
            v_lshlrev_b32 v{vU+2}, 16, v{vX+4+i}
            v_and_b32 v{vU+3}, 0xffff0000, v{vX+4+i}
            v_pk_mul_f32 {r2(vU)}, {r2(vU)}, {r2(vU+2)}
            v_cvt_pk_bf16_f32 v{vU}, v{vU}, v{vU+1}
            v_and_b32 v{vU+1}, 0xffff0000, v{vU}
            v_lshlrev_b32 v{vU}, 16, v{vU}
            """)
            if i == 0: a(f"v_pk_mul_f32 {r2(vU+4)}, {r2(vU)}, 1.0 op_sel_hi:[1,0]")
            else: a(f"v_pk_add_f32 {r2(vU+4)}, {r2(vU+4)}, {r2(vU)}")
        for i in range(4): a(f"ds_write_b32 v{vU+13}, v{vAq+i} offset:{P1+32*i}")
        a(f"v_add_f32 v{vU+4}, v{vU+4}, v{vU+5}")
        for r in (1, 2, 4, 8): a(f"v_add_f32_dpp v{vU+4}, v{vU+4}, v{vU+4} row_ror:{r} {DPP}")
        a(f"""
        v_lshrrev_b32 v{vU+1}, 4, v0
        v_lshlrev_b32 v{vU+1}, 2, v{vU+1}
        ds_write_b32 v{vU+1}, v{vU+4} offset:{GS}
        s_lshl_b32 s4, s2, 10
        s_add_u32 s4, s4, {RA}
        v_lshl_add_u32 v{vFA}, v{vL}, 4, s4
        s_waitcnt lgkmcnt(0)
        s_barrier
        """)
        def pubA(lo, hi, wave, name):
            L = self.lab(name)
            mask = ((1 << hi) - 1) ^ ((1 << lo) - 1)
            a(f"""
            s_cmp_lg_u32 s{sJ}, {wave}
            s_cbranch_scc1 {L}
            s_mov_b32 exec_lo, {mask & 0xffffffff:#x}
            s_mov_b32 exec_hi, {mask >> 32:#x}
            v_lshrrev_b32 v{vU}, 4, v{vL}
            v_lshlrev_b32 v{vU}, 11, v{vU}
            v_and_b32 v{vU+1}, 15, v{vL}
            v_lshl_add_u32 v{vU}, v{vU+1}, 4, v{vU}
            """)
            tg = [vAO, vAO + 4, vBq, vPoll, vU + 4, vU + 8, vU + 20, vU + 24]
            for p in range(8): a(f"ds_read_b128 {r4(tg[p])}, v{vU} offset:{P1+256*p}")
            a("s_waitcnt lgkmcnt(0)")
            for p in range(1, 8): pkadd(tg[0], tg[0], tg[p])
            tagins(tg[0])
            a(f"""
            buffer_store_dwordx4 {r4(tg[0])}, v{vFA}, s[{SW}:{SW+3}], 0 offen sc1
            s_mov_b64 exec, -1
            {L}:
            """)
        pubA(0, 16, 3, "qpub")
        self.stamp("qpub")
        more(o["pre_qp"])
        for k in range(9):
            l8(f"G{k}", vS + 8 + k if k < 8 else vS + 5, vAg, k == 0)
            fill(f"G{k}")
            if k == 2:
                a(f"""
                v_mov_b32 v{vU}, 0
                ds_read_b128 {r4(vU+4)}, v{vU} offset:{GS}
                ds_read_b32 v{vU+8}, v{vU} offset:{GS+16}
                s_waitcnt lgkmcnt(0)
                v_pk_add_f32 {r2(vU+4)}, {r2(vU+4)}, {r2(vU+6)}
                v_add_f32 v{vU}, v{vU+4}, v{vU+5}
                v_add_f32 v{vU}, v{vU}, v{vU+8}
                v_cvt_pk_bf16_f32 v{vU}, v{vU}, v{vU}
                v_lshlrev_b32 v{vU}, 16, v{vU}
                v_mul_f32 v{vU}, {f2u(-1.4426950408889634):#x}, v{vU}
                v_exp_f32 v{vU}, v{vU}
                v_add_f32 v{vU}, 1.0, v{vU}
                v_rcp_f32 v{vU}, v{vU}
                v_cvt_pk_bf16_f32 v{vU}, v{vU}, v{vU}
                v_lshlrev_b32 v{vG}, 16, v{vU}
                v_sub_f32 v{vU}, 1.0, v{vG}
                v_cvt_pk_bf16_f32 v{vU}, v{vU}, v{vU}
                v_lshlrev_b32 v{vOMG}, 16, v{vU}
                """)
            if k == 5:
                a(f"""
                s_lshl_b32 s4, s{sJ}, 16
                s_lshl_b32 s5, s{sG}, 12
                s_add_u32 s4, s4, s5
                s_add_u32 s4, s4, {RA}
                v_lshrrev_b32 v{vU}, 4, v{vL}
                v_lshlrev_b32 v{vU}, 10, v{vU}
                v_and_b32 v{vU+1}, 15, v{vL}
                v_lshl_add_u32 v{vU}, v{vU+1}, 4, v{vU}
                v_add_u32 v{vQa}, s4, v{vU}
                """)
        for k in range(2):
            l8(f"R{k}", vS + 6 + k, vAr, k == 0)
            if k == 1: self.gdone = True
            fill(f"R{k}")
        for i in range(4): a(f"ds_write_b32 v{vU+14}, v{vAg+i} offset:{P1+32*i}")
        a(f"""
        v_mul_u32_u24 v{vRS}, 1821, v0
        v_lshrrev_b32 v{vRS}, 16, v{vRS}
        v_mul_u32_u24 v{vCH}, 36, v{vRS}
        v_sub_u32 v{vCH}, v0, v{vCH}
        v_mul_u32_u24 v{vPO}, {6*1152}, v{vRS}
        v_lshl_add_u32 v{vPO}, v{vCH}, 4, v{vPO}
        v_add_u32 v{vGU}, 4608, v{vPO}
        """)
        for i in range(4): a(f"ds_write_b32 v{vU+15}, v{vAr+i} offset:{P1+6144+32*i}")
        a(f"""
        s_bfe_u32 s4, s2, 0x10006
        s_lshl1_add_u32 s4, s{sC6}, s4
        s_mul_i32 s4, s4, {32*1152}
        v_add_u32 v{vPD}, s4, v{vPO}
        s_and_b32 s5, s2, 127
        s_mul_i32 s5, s5, {4*1152}
        s_add_u32 s5, s5, {(4096-2)*1152}
        v_lshl_add_u32 v{vPD2}, v{vCH}, 4, s5
        v_cmp_gt_u32 vcc, 5, v{vRS}
        v_cmp_gt_u32 s[4:5], 6, v{vRS}
        v_bfrev_b32 v{vU}, -2
        v_cndmask_b32 v{vPD2}, v{vPD2}, v{vPD}, vcc
        v_cndmask_b32 v{vPD}, v{vU}, v{vPD}, s[4:5]
        v_cndmask_b32 v{vPD2}, v{vU}, v{vPD2}, s[4:5]
        v_mul_u32_u24 v{vU}, 1152, v{vRS}
        v_lshl_add_u32 v{vCH}, v{vCH}, 5, v{vU}
        v_mul_u32_u24 v{vRS}, 12, v{vRS}
        v_add_u32 v{vRS}, {HL}, v{vRS}
        s_waitcnt lgkmcnt(0)
        s_barrier
        """)
        pubA(16, 64, 2, "gpub")
        self.stamp("gpub")
        more(o["pre_g"])
        qload = f"buffer_load_dwordx4 {r4(vPoll)}, v{vQa}, s[{SW}:{SW+3}], 0 offen sc1"
        for k in range(o["qp"] + 1):
            self.wait(f"K{k}"); fill(f"K{k}")
        self.issue("QP", qload.replace("sc1", o["first"]))
        lastK = min(15, self.ip - 1 - big.index("K0"))
        for k in range(o["qp"] + 1, lastK + 1):
            self.wait(f"K{k}"); fill(f"K{k}")
        more(o["pre_q"])
        a(f"""
        v_bfe_u32 v{vU+1}, v0, 3, 1
        v_lshlrev_b32 v{vU+1}, 9, v{vU+1}
        v_bfe_u32 v{vU+2}, v0, 4, 2
        v_lshl_add_u32 v{vU+1}, v{vU+2}, 7, v{vU+1}
        v_and_b32 v{vU+2}, 3, v0
        v_lshl_add_u32 v{vU+1}, v{vU+2}, 5, v{vU+1}
        """)
        self.wait("QP")
        retry_loop("q", [qload], [vPoll], vU)
        a(f"""
        ds_write_b128 v{vV}, {r4(vPoll)} offset:{QL}
        s_waitcnt lgkmcnt(0)
        s_barrier
        """)
        qd = [vT, vT + 8, vU + 8, vU + 16]
        for k in range(4):
            a(f"ds_read_b128 {r4(qd[k])}, v{vU+1} offset:{QL+1024*k}")
            a(f"ds_read_b128 {r4(qd[k]+4)}, v{vU+1} offset:{QL+1024*k+16}")
        a("s_waitcnt lgkmcnt(4)")
        for i in range(0, 8, 2): a(f"v_pk_add_f32 {r2(qd[0]+i)}, {r2(qd[0]+i)}, {r2(qd[1]+i)}")
        a("s_waitcnt lgkmcnt(0)")
        for i in range(0, 8, 2): a(f"v_pk_add_f32 {r2(qd[2]+i)}, {r2(qd[2]+i)}, {r2(qd[3]+i)}")
        for i in range(0, 8, 2): a(f"v_pk_add_f32 {r2(qd[0]+i)}, {r2(qd[0]+i)}, {r2(qd[2]+i)}")
        for i in range(4): a(f"v_cvt_pk_bf16_f32 v{vBq+i}, v{qd[0]+2*i}, v{qd[0]+2*i+1}")
        self.stamp("qcons")
        if o["round_scores"]: a(f"s_mov_b32 s{sC}, {f2u(128 ** -0.5):#x}")
        def qk_fin(t):
            D = vT + 4 * (t % 4)
            a(f"v_mov_b32_dpp v{vS+t}, v{D} quad_perm:[0,0,0,0] {DPP}")
            for u in range(1, 4): a(f"v_add_f32_dpp v{vS+t}, v{D+u}, v{vS+t} quad_perm:[{u},{u},{u},{u}] {DPP}")
            if t & 1:
                t0 = t - 1
                if o["round_scores"]:
                    a(f"""
                    v_cvt_pk_bf16_f32 v{vU}, v{vS+t0}, v{vS+t0+1}
                    v_lshlrev_b32 v{vS+t0}, 16, v{vU}
                    v_and_b32 v{vS+t0+1}, 0xffff0000, v{vU}
                    v_mul_f32 v{vS+t0}, s{sC}, v{vS+t0}
                    v_mul_f32 v{vS+t0+1}, s{sC}, v{vS+t0+1}
                    v_cvt_pk_bf16_f32 v{vU}, v{vS+t0}, v{vS+t0+1}
                    v_lshlrev_b32 v{vS+t0}, 16, v{vU}
                    v_and_b32 v{vS+t0+1}, 0xffff0000, v{vU}
                    """)
                if t == 1: a(f"v_max_f32 v{vU+1}, v{vS}, v{vS+1}")
                else: a(f"v_max3_f32 v{vU+1}, v{vU+1}, v{vS+t0}, v{vS+t0+1}")
        for t in range(16):
            if t > lastK: self.wait(f"K{t}")
            D = vT + 4 * (t % 4)
            a(f"v_mfma_f32_16x16x32_bf16 {r4(D)}, {r4(dst[f'K{t}'])}, {r4(vBq)}, 0")
            if t == 15: self.kdone = True
            if t > lastK: fill(f"K{t}")
            if t >= 2: qk_fin(t - 2)
        more(o["pre_s"])
        a(f"""
        v_bfe_u32 v{vU+2}, v0, 3, 1
        v_lshlrev_b32 v{vU+2}, 6, v{vU+2}
        v_lshrrev_b32 v{vU+3}, 4, v0
        v_lshl_add_u32 v{vK}, v{vU+3}, 2, v{vU+2}
        """)
        qk_fin(14); qk_fin(15)
        cexp = 1.4426950408889634 if o["round_scores"] else 128 ** -0.5 * 1.4426950408889634
        a(f"""
        ds_write_b32 v{vK}, v{vU+1} offset:{MX}
        s_mov_b32 s{sC}, {f2u(cexp):#x}
        s_waitcnt lgkmcnt(0)
        s_barrier
        """)
        for i in range(4): a(f"ds_read_b128 {r4(vT+4*i)}, v{vU+2} offset:{MX+16*i}")
        a("s_waitcnt lgkmcnt(0)")
        a(f"v_max3_f32 v{vT}, v{vT}, v{vT+1}, v{vT+2}")
        for t in range(3, 15, 2): a(f"v_max3_f32 v{vT}, v{vT}, v{vT+t}, v{vT+t+1}")
        a(f"v_max_f32 v{vMx}, v{vT}, v{vT+15}")
        a(f"v_and_b32 v{vMx}, v{vMx}, v{vTM}")
        a(f"v_mul_f32 v{vMc}, s{sC}, v{vMx}")
        for t in range(16): a(f"v_fma_f32 v{vS+t}, v{vS+t}, s{sC}, -v{vMc}")
        for t in range(16): a(f"v_exp_f32 v{vS+t}, v{vS+t}")
        a(f"v_pk_add_f32 {r2(vT)}, {r2(vS)}, {r2(vS+2)}")
        for t in range(4, 16, 2): a(f"v_pk_add_f32 {r2(vT)}, {r2(vT)}, {r2(vS+t)}")
        a(f"v_add_f32 v{vT}, v{vT}, v{vT+1}")
        a(f"ds_write_b32 v{vK}, v{vT} offset:{LS}")
        self.stamp("smax")
        Lha = self.lab("haddr")
        hl = [f"buffer_load_dwordx4 {r4(vAO)}, v{vQa}, s[{SW}:{SW+3}], 0 offen sc1",
              f"buffer_load_dwordx4 {r4(vAO+4)}, v{vQb}, s[{SW}:{SW+3}], 0 offen sc1"]
        a(f"""
        s_cmp_lg_u32 s{sJ}, 3
        s_cbranch_scc1 {Lha}
        s_lshl_b32 s4, s{sC6}, 10
        s_bfe_u32 s5, s2, 0x10006
        s_lshl_b32 s5, s5, 7
        s_add_u32 s4, s4, s5
        s_add_u32 s4, s4, {RA+256}
        v_and_b32 v{vU}, 3, v0
        v_lshlrev_b32 v{vU}, 16, v{vU}
        v_bfe_u32 v{vU+1}, v0, 5, 1
        v_lshl_add_u32 v{vU}, v{vU+1}, 8, v{vU}
        v_bfe_u32 v{vU+1}, v0, 2, 3
        v_lshl_add_u32 v{vU}, v{vU+1}, 4, v{vU}
        v_add_u32 v{vQa}, s4, v{vU}
        s_bfe_u32 s4, s2, 0x30004
        s_lshl_b32 s4, s4, 10
        s_and_b32 s5, s2, 15
        s_lshl_b32 s5, s5, 4
        s_add_u32 s4, s4, s5
        s_add_u32 s4, s4, {RA+768}
        v_and_b32 v{vU}, 15, v0
        v_lshlrev_b32 v{vU}, 14, v{vU}
        v_bfe_u32 v{vU+1}, v0, 4, 1
        v_lshl_add_u32 v{vU}, v{vU+1}, 13, v{vU}
        v_add_u32 v{vQb}, s4, v{vU}
        {Lha}:
        """)
        hcheck = None
        for t in range(16):
            B = vT + 4 * (t % 2)
            a(f"v_cvt_pk_bf16_f32 v{vU}, v{vS+t}, v{vS+t}")
            for j in range(4): a(f"v_and_b32 v{B+j}, v{vU}, v{vM[j]}")
            self.wait(f"V{t}")
            a(f"v_mfma_f32_16x16x32_bf16 {r4(vAcc)}, {r4(dst[f'V{t}'])}, {r4(B)}, {'0' if t == 0 else r4(vAcc)}")
            fill(f"V{t}", min(W, 15 + o["Wt"] - t))
            if t == o["hp"]:
                L = self.lab("hiss")
                a(f"s_cmp_lg_u32 s{sJ}, 3"); a(f"s_cbranch_scc1 {L}")
                for ld in hl: a(ld.replace("sc1", o["first"]))
                a(f"{L}:")
                self.hmark = len(self.vm)
                hcheck = min(15, self.ip - big.index("V0"))
            if t == 3:
                a(f"""
                v_bfe_u32 v{vK}, v0, 3, 1
                v_lshlrev_b32 v{vK}, 9, v{vK}
                v_bfe_u32 v{vU+1}, v0, 4, 2
                v_lshl_add_u32 v{vK}, v{vU+1}, 7, v{vK}
                v_and_b32 v{vU+1}, 7, v0
                v_lshl_add_u32 v{vK}, v{vU+1}, 2, v{vK}
                v_lshl_add_u32 v{vK}, v{vJ}, 10, v{vK}
                s_lshl4_add_u32 s6, s{sG}, s{sS}
                s_mul_i32 s6, s6, 1152
                s_add_u32 s6, s6, {OB}
                v_lshl_add_u32 v{vX+4}, v{vL}, 4, s6
                s_mul_i32 s4, s{sG}, {16*1152}
                s_add_u32 s4, s4, {OB}
                v_and_b32 v{vX+5}, 15, v0
                v_mul_u32_u24 v{vX+5}, 1152, v{vX+5}
                v_add_u32 v{vX+5}, s4, v{vX+5}
                v_bfe_u32 v{vX+6}, v0, 4, 2
                s_and_b32 s4, s{sS}, 7
                v_lshl_add_u32 v{vX+6}, s4, 3, v{vX+6}
                v_lshl_add_u32 v{vX+6}, v{vX+6}, 4, v{vX+5}
                v_lshrrev_b32 v{vFA}, {CG.bit_length()-1}, v0
                v_mul_u32_u24 v{vFA}, {128*CG*16}, v{vFA}
                v_and_b32 v{vU+1}, {CG-1}, v0
                v_lshl_add_u32 v{vFA}, v{vU+1}, 4, v{vFA}
                s_and_b32 s4, s2, 127
                s_mul_i32 s4, s4, {CG*16}
                s_lshr_b32 s5, s2, 7
                s_mul_i32 s5, s5, {72*128*16}
                s_add_u32 s4, s4, s5
                s_add_u32 s4, s4, {FB}
                v_add_u32 v{vFA}, s4, v{vFA}
                """)
            if hcheck is not None and t == min(15, hcheck):
                hcheck = None
                Lh = self.lab("hfin")
                a(f"""
                s_cmp_lg_u32 s{sJ}, 3
                s_cbranch_scc1 {Lh}
                s_waitcnt vmcnt({len(self.vm) - self.hmark})
                """)
                retry_loop("h", hl, [vAO, vAO + 4], vU)
                for i in range(4): a(f"v_add_f32_dpp v{vAO+i}, v{vAO+i}, v{vAO+i} quad_perm:[1,0,3,2] {DPP}")
                for i in range(4): a(f"v_add_f32_dpp v{vAO+4+i}, v{vAO+4+i}, v{vAO+4+i} row_ror:1 {DPP}")
                for i in range(4): a(f"v_add_f32_dpp v{vAO+i}, v{vAO+i}, v{vAO+i} quad_perm:[2,3,0,1] {DPP}")
                for r in (2, 4, 8):
                    for i in range(4): a(f"v_add_f32_dpp v{vAO+4+i}, v{vAO+4+i}, v{vAO+4+i} row_ror:{r} {DPP}")
                a(f"""
                v_bfe_u32 v{vU+1}, v0, 5, 1
                v_mul_u32_u24 v{vU+1}, 192, v{vU+1}
                v_bfe_u32 v{vU+2}, v0, 2, 3
                v_lshl_add_u32 v{vU+1}, v{vU+2}, 4, v{vU+1}
                ds_write_b128 v{vU+1}, {r4(vAO)} offset:{HP}
                v_bfe_u32 v{vU+1}, v0, 4, 1
                v_mul_u32_u24 v{vU+1}, 192, v{vU+1}
                ds_write_b128 v{vU+1}, {r4(vAO+4)} offset:{HP+128}
                v_min_u32 v{vU+1}, 35, v{vL}
                v_lshlrev_b32 v{vU+2}, 2, v{vU+1}
                v_add_u32 v{vU+2}, {HP}, v{vU+2}
                s_waitcnt lgkmcnt(0)
                ds_read2_b32 {r2(vU+4)}, v{vU+2} offset0:0 offset1:48
                v_lshlrev_b32 v{vU+1}, 1, v{vU+1}
                s_waitcnt lgkmcnt(0)
                v_cvt_pk_bf16_f32 v{vU+4}, v{vU+4}, v{vU+5}
                v_and_b32 v{vU+5}, 0xffff0000, v{vU+4}
                v_lshlrev_b32 v{vU+4}, 16, v{vU+4}
                v_max_f32 v{vU+4}, 0, v{vU+4}
                v_mul_f32 v{vU+4}, v{vU+4}, v{vU+5}
                v_cvt_pk_bf16_f32 v{vU+4}, v{vU+4}, v{vU+4}
                ds_write_b16 v{vU+1}, v{vU+4} offset:{HL}
                {Lh}:
                """)
        assert hcheck is None
        for i in range(4): a(f"ds_write_b32 v{vK}, v{vAcc+i} offset:{OW+32*i}")
        a(f"""
        s_waitcnt lgkmcnt(0)
        s_barrier
        """)
        self.stamp("pvdone")
        Lo1 = self.lab("opub"); Lm = self.lab("mlpub")
        a(f"""
        s_cmp_lg_u32 s{sJ}, 0
        s_cbranch_scc1 {Lo1}
        """)
        for jj in range(4): a(f"ds_read_b128 {r4(vT+4*jj)}, v{vV} offset:{OW+1024*jj}")
        a("s_waitcnt lgkmcnt(2)")
        pkadd(vT, vT, vT + 4)
        a("s_waitcnt lgkmcnt(0)")
        pkadd(vT + 8, vT + 8, vT + 12); pkadd(vT, vT, vT + 8)
        tagins(vT)
        a(f"""
        buffer_store_dwordx4 {r4(vT)}, v{vX+4}, s[{SW}:{SW+3}], 0 offen sc1
        {Lo1}:
        s_cmp_lg_u32 s{sJ}, 2
        s_cbranch_scc1 {Lm}
        v_bfe_u32 v{vU+1}, v0, 3, 1
        v_lshlrev_b32 v{vU+1}, 6, v{vU+1}
        """)
        for i in range(4): a(f"ds_read_b128 {r4(vU+4+4*i)}, v{vU+1} offset:{LS+16*i}")
        a("s_waitcnt lgkmcnt(0)")
        pkadd(vU + 4, vU + 4, vU + 8); pkadd(vU + 12, vU + 12, vU + 16); pkadd(vU + 4, vU + 4, vU + 12)
        a(f"""
        v_pk_add_f32 {r2(vU+4)}, {r2(vU+4)}, {r2(vU+6)}
        v_add_f32 v{vU+5}, v{vU+4}, v{vU+5}
        v_mov_b32 v{vU+4}, v{vMx}
        v_mov_b32_dpp v{vU+6}, v{vMx} row_shl:8 {DPP}
        v_mov_b32_dpp v{vU+7}, v{vU+5} row_shl:8 {DPP}
        """)
        tagins(vU + 4)
        a(f"""
        s_mov_b64 exec, 1
        buffer_store_dwordx4 {r4(vU+4)}, v{vX+4}, s[{SW}:{SW+3}], 0 offen offset:1024 sc1
        s_mov_b64 exec, -1
        {Lm}:
        """)
        self.stamp("opub")
        a(f"""
        ds_read2_b32 {r2(vX)}, v{vRS} offset0:0 offset1:1
        ds_read_b32 v{vX+2}, v{vRS} offset:8
        s_waitcnt lgkmcnt(0)
        """)
        def flat_A(k, xsrc):
            p = k & 1; A = vU + 2 * p
            a(f"v_perm_b32 v{A}, v{xsrc+(k>>1)}, v{xsrc+(k>>1)}, v{vSel[2*p]}")
            a(f"v_perm_b32 v{A+1}, v{xsrc+(k>>1)}, v{xsrc+(k>>1)}, v{vSel[2*p+1]}")
            return A
        def flat_mfma(A, data, acc, first):
            a(f"v_mfma_f32_4x4x4_16b_bf16 {r4(acc)}, {r2(A)}, {r2(data)}, {'0' if first else r4(acc)}")
            a(f"v_mfma_f32_4x4x4_16b_bf16 {r4(acc+4)}, {r2(A)}, {r2(data+2)}, {'0' if first else r4(acc+4)}")
        def omk(st): return [f"buffer_load_dwordx4 {r4(st[0])}, v{vX+6}, s[{SW}:{SW+3}], 0 offen sc1",
                             f"buffer_load_dwordx4 {r4(st[1])}, v{vX+6}, s[{SW}:{SW+3}], 0 offen offset:64 sc1",
                             f"buffer_load_dwordx4 {r4(st[2])}, v{vX+5}, s[{SW}:{SW+3}], 0 offen offset:1024 sc1"]
        osets = [[R1 + 12 * d, R1 + 12 * d + 4, R1 + 12 * d + 8] for d in range(o["odepth"])]
        polled = False
        for k in range(-1, 6):
            if k >= 0:
                A = flat_A(k, vX)
                self.wait(f"D{k}")
                flat_mfma(A, dst[f"D{k}"], vAD, k == 0)
            fill(f"D{k}" if k >= 0 else "V15", o["post"])
            if self.ip == len(big) and not polled:
                polled = True
                Lp = self.lab("opl")
                a(f"s_cmp_lg_u32 s{sJ}, 1"); a(f"s_cbranch_scc1 {Lp}")
                for ld in omk(osets[0]): a(ld)
                a(f"{Lp}:")
        assert polled
        (None if o["st3"] else self.stamp("Ddone"))
        Lo2 = self.lab("ocons")
        a(f"""
        s_cmp_lg_u32 s{sJ}, 1
        s_cbranch_scc1 {Lo2}
        s_bitcmp1_b32 s{sS}, 2
        s_cselect_b64 s[4:5], -1, 0
        """)
        P = vS
        def ofin(st):
            a(f"v_cndmask_b32 v{vT}, v{st[2]}, v{st[2]+2}, s[4:5]")
            a(f"v_cndmask_b32 v{vT+1}, v{st[2]+1}, v{st[2]+3}, s[4:5]")
            for h in range(2):
                a(f"v_pk_mul_f32 {r2(P+4*h)}, {r2(st[h])}, 1.0 op_sel_hi:[1,0]")
                a(f"v_pk_mul_f32 {r2(P+4*h+2)}, {r2(st[h]+2)}, 1.0 op_sel_hi:[1,0]")
        pipe_poll("o", omk, osets, vU + 4, 1, ofin, o["osleep"])
        (None if o["st3"] else self.stamp("opollok"))
        a(f"""
        v_and_b32 v{vT}, v{vT}, v{vTM}
        v_max_f32_dpp v{vT+2}, v{vT}, v{vT} row_ror:1 {DPP}
        """)
        for r in (2, 4, 8): a(f"v_max_f32_dpp v{vT+2}, v{vT+2}, v{vT+2} row_ror:{r} {DPP}")
        a(f"""
        v_sub_f32 v{vT}, v{vT}, v{vT+2}
        v_mul_f32 v{vT}, s{sC}, v{vT}
        v_exp_f32 v{vT}, v{vT}
        v_mul_f32 v{vT+1}, v{vT}, v{vT+1}
        """)
        for i in range(0, 8, 2): a(f"v_pk_mul_f32 {r2(P+i)}, {r2(P+i)}, {r2(vT)} op_sel_hi:[1,0]")
        for r in (1, 2, 4, 8):
            a(f"v_add_f32_dpp v{vT+1}, v{vT+1}, v{vT+1} row_ror:{r} {DPP}")
            for i in range(8): a(f"v_add_f32_dpp v{P+i}, v{P+i}, v{P+i} row_ror:{r} {DPP}")
        a(f"v_rcp_f32 v{vT}, v{vT+1}")
        a(f"v_lshrrev_b32 v{vU+4}, 4, v{vL}")
        a(f"v_lshlrev_b32 v{vU+4}, 3, v{vU+4}")
        for i in range(0, 8, 2): a(f"v_pk_mul_f32 {r2(P+i)}, {r2(P+i)}, {r2(vT)} op_sel_hi:[1,0]")
        for i in range(4): a(f"v_cvt_pk_bf16_f32 v{vT+2+i}, v{P+2*i}, v{P+2*i+1}")
        a(f"""
        ds_write_b64 v{vU+4}, {r2(vT+2)} offset:{OL}
        ds_write_b64 v{vU+4}, {r2(vT+4)} offset:{OL+32}
        s_branch {Lo2}x
        {Lo2}:
        s_waitcnt vmcnt(0)
        {Lo2}x:
        """)
        for i in range(0, 8): a(f"v_mul_f32 v{vAD+i}, v{vOMG}, v{vAD+i}")
        a(f"""
        s_waitcnt lgkmcnt(0)
        s_barrier
        ds_read2_b32 {r2(vX)}, v{vRS} offset0:{(OL-HL)//4} offset1:{(OL-HL)//4+1}
        ds_read_b32 v{vX+2}, v{vRS} offset:{OL-HL+8}
        """)
        (None if o["st3"] else self.stamp("B7"))
        a("s_waitcnt lgkmcnt(0)")
        for k in range(6):
            A = flat_A(k, vX)
            flat_mfma(A, dst[f"O{k}"], vAO, k == 0)
        for i in range(8): a(f"v_fma_f32 v{vAD+i}, v{vG}, v{vAO+i}, v{vAD+i}")
        Lf = self.lab("fpub")
        a(f"""
        ds_write_b128 v{vCH}, {r4(vAD)} offset:{LF}
        ds_write_b128 v{vCH}, {r4(vAD+4)} offset:{LF+16}
        v_cmp_gt_u32 vcc, 72, v0
        s_waitcnt lgkmcnt(0)
        s_barrier
        s_and_saveexec_b64 s[4:5], vcc
        s_cbranch_execz {Lf}
        """)
        tg = [vT, vT + 4, vT + 8, vT + 12, vT + 16, vU + 4]
        for p in range(6): a(f"ds_read_b128 {r4(tg[p])}, v{vV} offset:{LF+1152*p}")
        a("s_waitcnt lgkmcnt(4)"); pkadd(tg[0], tg[0], tg[1])
        a("s_waitcnt lgkmcnt(2)"); pkadd(tg[2], tg[2], tg[3])
        a("s_waitcnt lgkmcnt(0)"); pkadd(tg[4], tg[4], tg[5]); pkadd(tg[0], tg[0], tg[2]); pkadd(tg[0], tg[0], tg[4])
        tagins(vT)
        a(f"""
        buffer_store_dwordx4 {r4(vT)}, v{vFA}, s[{SW}:{SW+3}], 0 offen sc1
        {Lf}:
        s_mov_b64 exec, s[4:5]
        """)
        self.stamp("fpub")
        NL = CG // 2
        a(f"""
        s_cmpk_ge_u32 s2, {R}
        s_cbranch_scc1 L_fin
        s_mul_i32 s4, s2, {128*CG*16}
        s_add_u32 s4, s4, {FB}
        """)
        if CG == 4:
            a(f"""
            v_and_b32 v{vQa}, 15, v0
            v_lshlrev_b32 v{vQa}, 6, v{vQa}
            v_bfe_u32 v{vQb}, v0, 4, 2
            v_lshl_add_u32 v{vQa}, v{vQb}, 4, v{vQa}
            v_lshl_add_u32 v{vQa}, v{vJ}, 10, v{vQa}
            v_add_u32 v{vQa}, s4, v{vQa}
            s_movk_i32 s33, 0x1000
            """)
            offs = [("0", 0), ("s33", 0)]
        elif CG == 2:
            a(f"""
            v_and_b32 v{vQa}, 15, v0
            v_lshlrev_b32 v{vQa}, 5, v{vQa}
            v_bfe_u32 v{vQb}, v0, 4, 1
            v_lshl_add_u32 v{vQa}, v{vQb}, 4, v{vQa}
            v_lshrrev_b32 v{vQb}, 5, v0
            v_lshl_add_u32 v{vQa}, v{vQb}, 9, v{vQa}
            v_add_u32 v{vQa}, s4, v{vQa}
            """)
            offs = [("0", 0)]
        else:
            a(f"""
            v_and_b32 v{vQa}, 15, v0
            v_lshlrev_b32 v{vQa}, 7, v{vQa}
            v_bfe_u32 v{vQb}, v0, 4, 2
            v_lshl_add_u32 v{vQa}, v{vQb}, 4, v{vQa}
            v_lshl_add_u32 v{vQa}, v{vJ}, 11, v{vQa}
            v_add_u32 v{vQa}, s4, v{vQa}
            s_movk_i32 s33, 0x2000
            """)
            offs = [("0", 0), ("s33", 0), ("0", 64), ("s33", 64)]
        def fmk(st): return [f"buffer_load_dwordx4 {r4(st[k])}, v{vQa}, s[{SW}:{SW+3}], {offs[k][0]} offen offset:{offs[k][1]} sc1" for k in range(NL)]
        fsets = [[R2 + 16 * d + 4 * k for k in range(NL)] for d in range(o["fdepth"])]
        F = vS
        NF = 8 if CG == 8 else 4
        def ffin(st):
            if CG == 4: pkadd(F, st[0], st[1])
            elif CG == 8: pkadd(F, st[0], st[1]); pkadd(F + 4, st[2], st[3])
            else:
                for i in range(4): a(f"v_add_f32_dpp v{F+i}, v{st[0]+i}, v{st[0]+i} row_ror:1 {DPP}")
        pipe_poll("f", fmk, fsets, vU + 4, 0, ffin, o["fsleep"])
        (None if o["st3"] else self.stamp("fpollok"))
        for r in (1, 2, 4, 8):
            if CG == 2 and r == 1: continue
            for i in range(NF): a(f"v_add_f32_dpp v{F+i}, v{F+i}, v{F+i} row_ror:{r} {DPP}")
        a(f"""
        v_lshrrev_b32 v{vU}, 4, v0
        v_lshlrev_b32 v{vU}, 4, v{vU}
        ds_write_b128 v{vU}, {r4(F)} offset:{RD}
        """)
        if CG == 8: a(f"ds_write_b128 v{vU}, {r4(F+4)} offset:{RD+256}")
        a(f"""
        s_mov_b32 s{SX}, s56
        s_mov_b32 s{SX+1}, s57
        s_mul_i32 s4, s2, {CG*8}
        """)
        if CG == 8:
            a(f"""
            v_and_b32 v{vU}, 3, v0
            v_lshrrev_b32 v{vU+1}, 4, v0
            v_lshl_add_u32 v{vU}, v{vU+1}, 2, v{vU}
            v_lshl_add_u32 v{vU}, v{vU}, 3, s4
            """)
        else:
            a(f"v_lshl_add_u32 v{vU}, v0, 3, s4")
        a(f"""
        s_waitcnt lgkmcnt(0)
        s_barrier
        s_cmp_lg_u32 s{sJ}, 0
        s_cbranch_scc1 L_fin
        s_mov_b64 exec, {'0xffffffff' if CG == 8 else '0xffff'}
        ds_read_b128 {r4(vT)}, v{vV} offset:{RD}
        s_waitcnt lgkmcnt(0)
        """)
        for r in (1, 2, 4, 8):
            if r >= min(CG, 4):
                for i in range(4): a(f"v_add_f32_dpp v{vT+i}, v{vT+i}, v{vT+i} row_ror:{r} {DPP}")
        a(f"""
        v_cvt_pk_bf16_f32 v{vT}, v{vT}, v{vT+1}
        v_cvt_pk_bf16_f32 v{vT+1}, v{vT+2}, v{vT+3}
        s_mov_b64 exec, {0xf000f if CG == 8 else (1 << CG) - 1:#x}
        buffer_store_dwordx2 {r2(vT)}, v{vU}, s[{SX}:{SX+3}], 0 offen
        s_cmp_lg_u32 s2, 0
        s_cbranch_scc1 L_fin
        s_mov_b64 exec, 1
        v_mov_b32 v{vT+4}, s{sTAG}
        v_mov_b32 v{vT+5}, 0
        buffer_store_dword v{vT+4}, v{vT+5}, s[{SW}:{SW+3}], 0 offen sc1
        L_fin:
        """)
        if o["amp"] >= 0:
            self.stamp("end"); k = o["amp"]
            a(f"""
            s_waitcnt lgkmcnt(0)
            s_sub_u32 s6, s{self.sreg(k)}, s16
            s_min_u32 s6, s6, 3000
            s_mul_i32 s6, s6, 10
            s_add_u32 s6, s6, 3000
            L_hold:
            s_memrealtime s[4:5]
            s_waitcnt lgkmcnt(0)
            s_sub_u32 s4, s4, s16
            s_cmp_lt_u32 s4, s6
            s_cbranch_scc1 L_hold
            """)
        elif o["stamps"]:
            self.stamp("end")
            a(f"""
            s_waitcnt lgkmcnt(0)
            s_lshl_b32 s4, s2, 2
            s_add_u32 s4, s4, s{sJ}
            s_lshl_b32 s4, s4, 7
            s_add_u32 s4, s4, {STAMP_OFF:#x}
            s_add_u32 s6, s60, s4
            s_addc_u32 s7, s61, 0
            s_sub_u32 s6, s6, {o['wsoff']:#x}
            s_subb_u32 s7, s7, 0
            s_mov_b64 exec, 1
            v_mov_b32 v4, 0
            """)
            for j in range(self.nst):
                a(f"""
                v_mov_b32 v2, s{self.sreg(j)}
                v_mov_b32 v3, s{self.sreg(j)+1}
                global_store_dwordx2 v4, v[2:3], s[6:7] offset:{8*j}
                s_nop 1
                """)
        if o["hold"]:
            a(f"""
            s_waitcnt lgkmcnt(0)
            L_hold:
            s_memrealtime s[4:5]
            s_waitcnt lgkmcnt(0)
            s_sub_u32 s4, s4, s16
            s_cmp_lt_u32 s4, {o["hold"]}
            s_cbranch_scc1 L_hold
            """)
        a("L_end:")
        a("s_endpgm")
        body = "\n".join(fix(self.l)) + "\n"
        head = open("cdna_kernels/" + KN + ".s.ref").read().split("; Override launch")[0]
        if self.names: head += "; stamps: " + " ".join(self.names) + "\n"
        return head + f"""; @launch grid=(256,1,1) block=(256,1,1) lds={o['lds']}
.amdgcn_target "amdgcn-amd-amdhsa--gfx950"
.text
.globl {KN}_kernel
.p2align 8
.type {KN}_kernel,@function
{KN}_kernel:
""" + body + f""".section .rodata,"a"
.p2align 6
.amdhsa_kernel {KN}_kernel
  .amdhsa_next_free_vgpr 256
  .amdhsa_next_free_sgpr 102
  .amdhsa_accum_offset 256
  .amdhsa_group_segment_fixed_size 0
  .amdhsa_kernarg_size 104
  .amdhsa_user_sgpr_count 2
  .amdhsa_user_sgpr_kernarg_segment_ptr 1
  .amdhsa_system_sgpr_workgroup_id_x 1
.end_amdhsa_kernel
"""

if __name__ == "__main__":
    out = sys.argv[1]; opt = {}
    for kv in sys.argv[2:]:
        k, v = kv.split("="); opt[k] = eval(v)
    open(out, "w").write(Gen(**opt).build())
```

```python
import sys, struct
from hazard import fix
KN = "gated_mix__sliding_block_cached__glu_gated_reglu__decode"
STAMP_OFF = 0x30000000
def f2u(x): return struct.unpack("<I", struct.pack("<f", x))[0]

class Gen:
    def __init__(self, **opt):
        self.o = dict(W=7, stamps=False, wsoff=0, qp=2, hp=3, CG=4, round_scores=True, prefetch=0, jitter=0,
                      hold=0, amp=-1, lds=90112, nt="nt", spin=20000, pre_g=2, pre_q=2, pre_s=3, Wt=7, fdepth=2, odepth=1,
                      cnt=0, post=8, osleep=0, fsleep=0, pre_qp=0, first='sc1', pt=0, ptf='', st3=0, early=3, skewm='')
        for k in opt: assert k in self.o, k
        self.o.update(opt)
        self.l = []; self.vm = []; self.nl = 0; self.nst = 0; self.names = []
    def a(self, s):
        for x in s.strip().split("\n"):
            x = x.strip()
            if x: self.l.append(x if x.endswith(":") else "    " + x)
    def lab(self, p):
        self.nl += 1
        return f"L_{p}{self.nl}"
    def issue(self, label, s):
        self.a(s); self.vm.append(label)
    def wait(self, label):
        n = len(self.vm) - 1 - self.vm.index(label)
        assert n <= 63
        self.a(f"s_waitcnt vmcnt({n})")
    def sreg(self, k): return 16 + 2 * k if k < 8 else 36 + 2 * (k - 8)
    def stamp(self, name=""):
        if self.o["stamps"]:
            assert self.nst < 16
            r = self.sreg(self.nst)
            self.a(f"s_memrealtime s[{r}:{r+1}]")
            self.names.append(name); self.nst += 1

    def build(self):
        o = self.o; a = self.a; nt = o["nt"]; W = o["W"]
        RA, OB, FB = 0x1000, 0x50000, 0xA0000
        CG = o["CG"]; R = 144 // CG
        XL, P1, QL, MX, LS, GS, HP, HL, OL, OW, LF, RD, DUM = 0, 2560, 10752, 14848, 14976, 15104, 15232, 15616, 15744, 15872, 19968, 29184, 29696
        vL = 1; vM = [2, 3, 4, 5]; vSel = [6, 7, 8, 9]
        vQa, vQb, vGU, vK, vV, vPD, vPD2, vPO, vTM = 10, 11, 12, 13, 14, 15, 16, 18, 17
        vMx, vMc, vFA, vRS = 19, 20, 21, 22
        vX = 24
        vS = 32; vBq = 48; vAq = 52; vAg = 56; vAr = 60; vAD = 56; vAO = 64; vT = 72; vPoll = 92
        vCH, vG, vOMG, vJ = 96, 97, 98, 99
        R1 = 100; R2 = 164; vU = 228
        vAcc = vAq
        dst = {}
        for i in range(5): dst[f"Q{i}"] = R1 + 4 * i
        for i in range(9): dst[f"G{i}"] = R1 + 20 + 4 * i
        for i in range(2): dst[f"R{i}"] = R1 + 56 + 4 * i
        for i in range(16): dst[f"K{i}"] = R2 + 4 * i; dst[f"V{i}"] = R1 + 4 * i
        for i in range(6): dst[f"D{i}"] = R2 + 4 * i; dst[f"O{i}"] = R2 + 24 + 4 * i
        big = [f"Q{i}" for i in range(5)] + [f"G{i}" for i in range(9)] + ["R0", "R1"] + [f"K{i}" for i in range(16)] + \
              [f"V{i}" for i in range(16)] + [f"D{i}" for i in range(6)] + [f"O{i}" for i in range(6)]
        sTAG = 62; sJ = 3; sKQ, sG, sS, sC6 = 8, 9, 10, 11; s4608 = 12
        sKV = 13; sGU = 14; sC = 15
        SQ, SGU, SK, SV, SD, SO, SX, SR, SW = 64, 68, 72, 76, 80, 84, 88, 92, 96
        r4 = lambda v: f"v[{v}:{v+3}]"
        r2 = lambda v: f"v[{v}:{v+1}]"
        DPP = "row_mask:0xf bank_mask:0xf"
        self.ip = 0; self.gdone = self.kdone = False
        def issue_next():
            lb = big[self.ip]; self.ip += 1
            d = r4(dst[lb]); k = int(lb[1:]); c = lb[0]
            if c == "V": assert self.gdone
            if c in "DO": assert self.kdone
            if c == "Q":
                if k == 0: self.issue(lb, f"buffer_load_dwordx4 {d}, v{vQa}, s[{SQ}:{SQ+3}], 0 offen {nt}")
                elif k < 4: self.issue(lb, f"buffer_load_dwordx4 {d}, v{vQa}, s[{SQ}:{SQ+3}], s{32+k} offen {nt}")
                else: self.issue(lb, f"buffer_load_dwordx4 {d}, v{vQb}, s[{SQ}:{SQ+3}], 0 offen {nt}")
            elif c == "G":
                if k == 0: a(f"s_mov_b32 s{sGU}, 0")
                elif k < 8: a(f"s_addk_i32 s{sGU}, 9216")
                if k < 8: self.issue(lb, f"buffer_load_dwordx4 {d}, v{vGU}, s[{SGU}:{SGU+3}], s{sGU} offen {nt}")
                else: self.issue(lb, f"buffer_load_dwordx4 {d}, v{vPD}, s[{SGU}:{SGU+3}], 0 offen {nt}")
            elif c == "R":
                self.issue(lb, f"buffer_load_dwordx4 {d}, v{vPD2 if k == 0 else vPO}, s[{SR}:{SR+3}], 0 offen {nt}")
            elif c in "KV":
                if k == 0: a(f"s_mov_b32 s{sKV}, 0")
                else: a(f"s_addk_i32 s{sKV}, 4096")
                sr, vo = (SK, vK) if c == "K" else (SV, vV)
                self.issue(lb, f"buffer_load_dwordx4 {d}, v{vo}, s[{sr}:{sr+3}], s{sKV} offen {nt}")
            else:
                sr = SD if c == "D" else SO
                vo = vPO if c == "O" else (vPD if k < 2 else vPD2)
                so, im = ("0", k * 1152) if k < 4 else (f"s{s4608}", (k - 4) * 1152)
                if c == "O" and k >= 4: vo, so = vGU, "0"
                self.issue(lb, f"buffer_load_dwordx4 {d}, v{vo}, s[{sr}:{sr+3}], {so} offen offset:{im} {nt}")
        def fill(label, w=None):
            w = W if w is None else w
            idx = big.index(label)
            while self.ip < len(big) and self.ip <= idx + w: issue_next()
        def more(n):
            for _ in range(n):
                if self.ip < len(big): issue_next()
        def tagins(v):
            for i in range(4): a(f"v_and_or_b32 v{v+i}, v{v+i}, v{vTM}, s{sTAG}")
        def tagchk(vs, acc):
            first = True
            for v in vs:
                for i in range(4):
                    if first: a(f"v_xor_b32 v{acc}, s{sTAG}, v{v+i}"); first = False
                    else: a(f"v_bitop3_b32 v{acc}, v{v+i}, s{sTAG}, v{acc} bitop3:0xbe")
            a(f"v_and_b32 v{acc}, 0xff, v{acc}")
            a(f"v_cmp_ne_u32 vcc, 0, v{acc}")
        def retry_loop(name, loads, vs, acc):
            Lok = self.lab(name + "ok"); Lre = self.lab(name + "re")
            a(f"s_mov_b32 s7, {o['spin']}")
            a(f"{Lre}:")
            tagchk(vs, acc)
            a(f"s_cbranch_vccz {Lok}")
            for ld in loads: a(ld)
            a("s_waitcnt vmcnt(0)")
            a("s_sub_u32 s7, s7, 1")
            a("s_cmp_lg_u32 s7, 0")
            a(f"s_cbranch_scc1 {Lre}")
            a(f"{Lok}:")
            if o["stamps"] and o["cnt"]:
                r = self.sreg(self.nst); self.names.append(name + "retry"); self.nst += 1
                a(f"s_sub_u32 s7, {o['spin']}, s7"); a(f"s_mul_i32 s7, s7, 100")
                a(f"s_add_u32 s{r}, s16, s7"); a(f"s_addc_u32 s{r+1}, s17, 0")
        def pipe_poll(name, mk, sets, acc, first_issued, fin, slp=0):
            n = len(mk(sets[0])); D = len(sets)
            Lx = self.lab(name + "x"); Lre = self.lab(name + "re")
            Lmv = [self.lab(name + "mv") for _ in range(D)]
            for d in range(first_issued, D):
                for ld in mk(sets[d]): a(ld)
            a(f"s_mov_b32 s7, {o['spin']}")
            a(f"{Lre}:")
            for d in range(D):
                a(f"s_waitcnt vmcnt({n*(D-1)})")
                tagchk(sets[d], acc)
                a(f"s_cbranch_vccz {Lmv[d]}")
                if slp: a(f"s_sleep {slp}")
                for ld in mk(sets[d]): a(ld)
            a("s_sub_u32 s7, s7, 1")
            a("s_cmp_lg_u32 s7, 0")
            a(f"s_cbranch_scc1 {Lre}")
            for d in range(D - 1, -1, -1):
                a(f"{Lmv[d]}:")
                fin(sets[d])
                if d: a(f"s_branch {Lx}")
            a(f"{Lx}:")
        def pkadd(d, x, y):
            a(f"v_pk_add_f32 {r2(d)}, {r2(x)}, {r2(y)}"); a(f"v_pk_add_f32 {r2(d+2)}, {r2(x+2)}, {r2(y+2)}")

        self.stamp("start")
        if o["hold"]: a("s_memrealtime s[16:17]")
        a(f"""
        s_load_dwordx16 s[36:51], s[0:1], 0
        s_cmpk_ge_u32 s2, 0x100
        s_cbranch_scc1 L_end
        """)
        if o["jitter"]:
            a(f"""s_mul_i32 s4, s2, 0x9e3779b1
            s_lshr_b32 s4, s4, {32-o["jitter"]}
            L_jit:
            s_cmp_eq_u32 s4, 0
            s_cbranch_scc1 L_jitd
            s_sleep 40
            s_sub_u32 s4, s4, 1
            s_branch L_jit
            L_jitd:""")
        a(f"""
        s_lshr_b32 s{sKQ}, s2, 6
        s_mul_i32 s4, s{sKQ}, {144*8192}
        s_and_b32 s{sC6}, s2, 63
        s_lshl_b32 s5, s{sC6}, 7
        s_add_u32 s4, s4, s5
        v_lshrrev_b32 v{vT}, 3, v0
        v_and_b32 v{vT+1}, 7, v0
        v_lshlrev_b32 v{vT+1}, 4, v{vT+1}
        v_lshl_add_u32 v{vQa}, v{vT}, 15, v{vT+1}
        s_mov_b32 s{SQ+2}, {143*8192+128}
        s_mov_b32 s{SQ+3}, 0x20000
        s_movk_i32 s33, 0x2000
        s_movk_i32 s34, 0x4000
        s_movk_i32 s35, 0x6000
        s_waitcnt lgkmcnt(0)
        s_add_u32 s{SQ}, s42, s4
        s_addc_u32 s{SQ+1}, s43, 0
        """)
        if o["st3"]: self.stamp("karg")
        more(4)
        if o["st3"]: self.stamp("Q3iss")
        a(f"""
        s_load_dwordx8 s[52:59], s[0:1], 64
        s_load_dwordx2 s[60:61], s[0:1], 96
        v_lshl_add_u32 v{vQb}, v{vT}, 13, v{vT+1}
        v_add_u32 v{vQb}, {128*8192}, v{vQb}
        v_lshrrev_b32 v{vJ}, 6, v0
        v_lshlrev_b32 v{vV}, 4, v0
        v_readfirstlane_b32 s{sJ}, v{vJ}
        """)
        more(1)
        a(f"""
        s_mov_b32 s{SX}, s36
        s_mov_b32 s{SX+1}, s37
        s_movk_i32 s{SX+2}, 1152
        s_mov_b32 s{SX+3}, 0x20000
        """)
        self.issue("X", f"buffer_load_dwordx4 {r4(vX)}, v{vV}, s[{SX}:{SX+3}], 0 offen")
        a(f"""
        s_bitcmp1_b32 s{sJ}, 0
        s_cselect_b32 s{SGU}, s50, s48
        s_cselect_b32 s{SGU+1}, s51, s49
        s_lshr_b32 s6, s{sJ}, 1
        s_lshl1_add_u32 s6, s{sKQ}, s6
        s_mul_i32 s4, s6, {72*9216}
        s_add_u32 s4, s4, s5
        s_add_u32 s{SGU}, s{SGU}, s4
        s_addc_u32 s{SGU+1}, s{SGU+1}, 0
        s_mov_b32 s{SGU+2}, {71*9216+128}
        s_mov_b32 s{SGU+3}, 0x20000
        v_and_b32 v{vT+2}, 7, v{vT}
        v_mul_u32_u24 v{vGU}, {8*9216}, v{vT+2}
        v_add_u32 v{vGU}, v{vGU}, v{vT+1}
        """)
        more(2)
        a(f"""
        v_mul_u32_u24 v{vPD}, 9216, v{vT+2}
        v_add_u32 v{vPD}, v{vPD}, v{vT+1}
        v_add_u32 v{vPD}, {64*9216}, v{vPD}
        s_waitcnt lgkmcnt(0)
        s_mov_b32 s{SR}, s54
        s_mov_b32 s{SR+1}, s55
        s_movk_i32 s{SR+2}, 1152
        s_mov_b32 s{SR+3}, 0x20000
        """)
        self.issue("GW", f"buffer_load_dwordx4 {r4(vX+4)}, v{vV}, s[{SR}:{SR+3}], 0 offen")
        if o["prefetch"]:
            a(f"""
            s_getpc_b64 s[4:5]
            s_lshr_b32 s7, s2, 3
            s_mul_i32 s7, s7, {128*o['prefetch']}
            v_and_b32 v{vT+3}, 63, v0
            v_lshl_add_u32 v{vT+3}, v{vT+3}, 7, s7
            s_mov_b64 exec, {(1 << o['prefetch']) - 1}
            """)
            self.issue("PF", f"global_load_dword v{vMc}, v{vT+3}, s[4:5]")
            a("s_mov_b64 exec, -1")
        more(o["early"])
        a(f"""
        s_add_u32 s60, s60, {o['wsoff']:#x}
        s_addc_u32 s61, s61, 0
        s_load_dword s{sTAG}, s[60:61], 0
        s_bitcmp1_b32 s2, 3
        s_cselect_b32 s{SR}, s50, s48
        s_cselect_b32 s{SR+1}, s51, s49
        s_lshr_b32 s7, s2, 4
        s_mul_i32 s4, s7, {36*9216}
        s_and_b32 s5, s2, 7
        s_lshl_b32 s5, s5, 7
        s_add_u32 s4, s4, s5
        s_add_u32 s4, s4, 8192
        s_add_u32 s{SR}, s{SR}, s4
        s_addc_u32 s{SR+1}, s{SR+1}, 0
        s_mov_b32 s{SR+2}, {35*9216+128}
        v_mul_u32_u24 v{vPD2}, 9216, v{vT}
        v_add_u32 v{vPD2}, v{vPD2}, v{vT+1}
        v_add_u32 v{vPO}, {32*9216}, v{vPD2}
        s_lshr_b32 s{sG}, s{sC6}, 2
        s_and_b32 s{sS}, s2, 3
        s_lshl2_add_u32 s{sS}, s{sKQ}, s{sS}
        s_lshl_b32 s4, s{sG}, 24
        s_lshl_b32 s5, s{sS}, 16
        s_add_u32 s4, s4, s5
        s_add_u32 s4, s4, {61440*256}
        s_add_u32 s{SK}, s38, s4
        s_addc_u32 s{SK+1}, s39, 0
        s_mov_b32 s{SK+2}, 0x10000
        s_mov_b32 s{SK+3}, 0x20000
        s_add_u32 s{SV}, s40, s4
        s_addc_u32 s{SV+1}, s41, 0
        s_mov_b32 s{SV+2}, 0x10000
        s_mov_b32 s{SV+3}, 0x20000
        s_lshr_b32 s4, s2, 7
        s_mul_i32 s4, s4, 576
        s_add_u32 s{SD}, s52, s4
        s_addc_u32 s{SD+1}, s53, 0
        s_mov_b32 s{SD+2}, {4607*1152+576}
        s_mov_b32 s{SD+3}, 0x20000
        s_and_b32 s5, s{sS}, 7
        s_lshl3_add_u32 s5, s{sG}, s5
        s_mul_i32 s5, s5, {32*1152}
        s_add_u32 s4, s4, s5
        s_add_u32 s{SO}, s44, s4
        s_addc_u32 s{SO+1}, s45, 0
        s_mov_b32 s{SO+2}, {31*1152+576}
        s_mov_b32 s{SO+3}, 0x20000
        s_mov_b32 s{SW}, s60
        s_mov_b32 s{SW+1}, s61
        s_mov_b32 s{SW+2}, 0x100000
        s_mov_b32 s{SW+3}, 0x20000
        s_movk_i32 s{s4608}, 4608
        v_and_b32 v{vL}, 63, v0
        v_and_b32 v{vU}, 3, v0
        v_lshlrev_b32 v{vU}, 4, v{vU}
        v_bfe_u32 v{vU+1}, v0, 2, 2
        v_lshl_add_u32 v{vU}, v{vU+1}, 8, v{vU}
        v_bfe_u32 v{vU+1}, v0, 4, 2
        v_lshl_add_u32 v{vU}, v{vU+1}, 6, v{vU}
        v_lshl_add_u32 v{vK}, v{vJ}, 10, v{vU}
        v_mov_b32 v{vTM}, 0xffffff00
        v_and_b32 v{vU}, 1, v0
        v_lshlrev_b32 v{vU}, 4, v{vU}
        v_mov_b32 v{vU+1}, 0xffff
        v_lshlrev_b32 v{vU}, v{vU}, v{vU+1}
        v_bfe_u32 v{vU+1}, v0, 1, 2
        v_cmp_eq_u32 s[4:5], 0, v{vU+1}
        v_cmp_eq_u32 s[100:101], 1, v{vU+1}
        v_cmp_eq_u32 vcc, 2, v{vU+1}
        v_cndmask_b32 v{vM[0]}, 0, v{vU}, s[4:5]
        v_cndmask_b32 v{vM[1]}, 0, v{vU}, s[100:101]
        v_cmp_eq_u32 s[100:101], 3, v{vU+1}
        v_cndmask_b32 v{vM[2]}, 0, v{vU}, vcc
        v_or_b32 v{vU+3}, v{vM[0]}, v{vM[2]}
        v_cndmask_b32 v{vM[3]}, 0, v{vU}, s[100:101]
        v_or_b32 v{vU+1}, v{vM[1]}, v{vM[3]}
        v_mov_b32 v{vU+2}, 0x0c0c0c0c
        s_mov_b32 s32, 0x01000100
        s_mov_b32 s63, 0x03020302
        v_bfi_b32 v{vSel[0]}, v{vU+3}, s32, v{vU+2}
        v_bfi_b32 v{vSel[1]}, v{vU+1}, s32, v{vU+2}
        v_bfi_b32 v{vSel[2]}, v{vU+3}, s63, v{vU+2}
        v_bfi_b32 v{vSel[3]}, v{vU+1}, s63, v{vU+2}
        """)
        if o["pt"]:
            a(f"""
            s_lshl_b32 s4, s2, 10
            s_add_u32 s4, s4, {RA}
            s_lshl4_add_u32 s5, s{sG}, s{sS}
            s_mul_i32 s5, s5, 1152
            s_add_u32 s5, s5, {OB}
            s_cmp_eq_u32 s{sJ}, 1
            s_cselect_b32 s4, s5, s4
            s_and_b32 s5, s2, 127
            s_mul_i32 s5, s5, {CG*16}
            s_lshr_b32 s100, s2, 7
            s_lshl1_add_u32 s100, s100, s{sJ}
            s_sub_u32 s100, s100, 2
            s_mul_i32 s100, s100, {9*128*CG*16}
            s_add_u32 s5, s5, s100
            s_add_u32 s5, s5, {FB}
            s_cmp_ge_u32 s{sJ}, 2
            s_cselect_b32 s4, s5, s4
            s_cselect_b32 s5, {(128*CG*16).bit_length()-1}, 7
            v_lshlrev_b32 v{vU}, s5, v{vL}
            v_add_u32 v{vU}, s4, v{vU}
            s_mov_b64 exec, 0x1ff
            """)
            self.issue("PT", f"buffer_load_dword v{vMx}, v{vU}, s[{SW}:{SW+3}], 0 offen {o['ptf']}")
            a("s_mov_b64 exec, -1")
        a(f"""
        v_lshlrev_b32 v{vU}, 2, v{vL}
        v_mov_b32 v{vU+4}, 0
        v_mov_b32 v{vU+5}, 0
        v_mov_b32 v{vU+6}, 0
        v_mov_b32 v{vU+7}, 0
        ds_write_b32 v{vU}, v{vU+4} offset:{HL}
        ds_write_b32 v{vU}, v{vU+4} offset:{XL+2304}
        v_and_b32 v{vU+1}, 1, v{vJ}
        v_lshlrev_b32 v{vU+1}, 11, v{vU+1}
        v_lshl_add_u32 v{vU+1}, v{vL}, 4, v{vU+1}
        ds_write_b128 v{vU+1}, {r4(vU+4)} offset:{P1+2048+1024}
        """)
        a(f"""
        s_mul_i32 s4, s{sKQ}, 576
        v_lshl_add_u32 v{vU+8}, v{vT}, 4, s4
        v_lshl_add_u32 v{vU+9}, v{vT}, 2, s4
        s_mul_i32 s4, s6, 288
        v_lshl_add_u32 v{vU+10}, v{vT+2}, 5, s4
        v_lshl_add_u32 v{vU+11}, v{vT+2}, 2, s4
        s_mul_i32 s4, s7, 144
        v_lshl_add_u32 v{vU+12}, v{vT}, 2, s4
        v_bfe_u32 v{vU+4}, v0, 3, 1
        v_bfe_u32 v{vU+5}, v0, 5, 1
        v_cmp_eq_u32 vcc, v{vU+4}, v{vU+5}
        v_bfe_u32 v{vU+4}, v0, 4, 1
        v_lshlrev_b32 v{vU+4}, 7, v{vU+4}
        v_lshl_add_u32 v{vU+4}, v{vU+5}, 8, v{vU+4}
        v_lshrrev_b32 v{vU+5}, 2, v{vT+1}
        v_add_u32 v{vU+4}, v{vU+4}, v{vU+5}
        v_lshl_add_u32 v{vU+13}, v{vJ}, 9, v{vU+4}
        s_and_b32 s4, s{sJ}, 1
        s_lshl_b32 s4, s4, 11
        s_lshr_b32 s5, s{sJ}, 1
        s_lshl_b32 s5, s5, 9
        s_add_u32 s4, s4, s5
        s_add_u32 s4, s4, 2048
        v_add_u32 v{vU+14}, s4, v{vU+4}
        v_mov_b32 v{vU+5}, {DUM-P1}
        v_cndmask_b32 v{vU+13}, v{vU+5}, v{vU+13}, vcc
        v_cndmask_b32 v{vU+14}, v{vU+5}, v{vU+14}, vcc
        v_mov_b32 v{vU+5}, {DUM-P1-6144}
        v_lshl_add_u32 v{vU+15}, v{vJ}, 9, v{vU+4}
        v_cndmask_b32 v{vU+15}, v{vU+5}, v{vU+15}, vcc
        v_lshlrev_b32 v{vU+16}, 5, v0
        v_min_u32 v{vU+16}, 2304, v{vU+16}
        """)
        if o["skewm"]:
            a(f"""
            s_waitcnt lgkmcnt(0)
            s_lshl_b32 s4, s2, 2
            s_add_u32 s4, s4, 0xF0000
            v_mov_b32 v{vBq}, s16
            v_mov_b32 v{vBq+1}, s4
            s_mov_b64 exec, 1
            """)
            self.issue("SK", f"buffer_store_dword v{vBq}, v{vBq+1}, s[{SW}:{SW+3}], 0 offen sc1")
            a("s_mov_b64 exec, -1")
        self.stamp("prol")
        if o["st3"]:
            self.wait("Q0"); self.stamp("Q0land")
        self.wait("X")
        if o["st3"]: self.stamp("Xland")
        for i in range(4):
            a(f"v_perm_b32 v{vT+2*i}, v{vX+i}, v{vX+i}, s32")
            a(f"v_perm_b32 v{vT+2*i+1}, v{vX+i}, v{vX+i}, s63")
        a(f"""
        ds_write_b128 v{vU+16}, {r4(vT)} offset:{XL}
        ds_write_b128 v{vU+16}, {r4(vT+4)} offset:{XL+16}
        """)
        fill("Q4")
        a(f"""
        s_waitcnt lgkmcnt(0)
        s_barrier
        ds_read_b128 {r4(vS)}, v{vU+8} offset:{XL}
        ds_read_b32 v{vS+4}, v{vU+9} offset:{XL+512}
        ds_read_b128 {r4(vS+8)}, v{vU+10} offset:{XL}
        ds_read_b128 {r4(vS+12)}, v{vU+10} offset:{XL+16}
        ds_read_b32 v{vS+5}, v{vU+11} offset:{XL+256}
        ds_read_b32 v{vS+6}, v{vU+12} offset:{XL}
        ds_read_b32 v{vS+7}, v{vU+12} offset:{XL+128}
        s_add_u32 s{sTAG}, s{sTAG}, 1
        s_and_b32 s{sTAG}, s{sTAG}, 0xff
        s_waitcnt lgkmcnt(5)
        """)
        nb = [0]
        def l8(lbl, xreg, acc, first, dowait=True):
            B = vT + 4 * (nb[0] % 4); nb[0] += 1
            for j in range(4): a(f"v_and_b32 v{B+j}, v{xreg}, v{vM[j]}")
            if dowait: self.wait(lbl)
            a(f"v_mfma_f32_16x16x32_bf16 {r4(acc)}, {r4(dst[lbl])}, {r4(B)}, {'0' if first else r4(acc)}")
        for t in range(5): l8(f"Q{t}", vS + t, vAq, t == 0, False)
        self.wait("GW")
        for i in range(4):
            a(f"""
            v_lshlrev_b32 v{vU}, 16, v{vX+i}
            v_and_b32 v{vU+1}, 0xffff0000, v{vX+i}
            v_lshlrev_b32 v{vU+2}, 16, v{vX+4+i}
            v_and_b32 v{vU+3}, 0xffff0000, v{vX+4+i}
            v_pk_mul_f32 {r2(vU)}, {r2(vU)}, {r2(vU+2)}
            v_cvt_pk_bf16_f32 v{vU}, v{vU}, v{vU+1}
            v_and_b32 v{vU+1}, 0xffff0000, v{vU}
            v_lshlrev_b32 v{vU}, 16, v{vU}
            """)
            if i == 0: a(f"v_pk_mul_f32 {r2(vU+4)}, {r2(vU)}, 1.0 op_sel_hi:[1,0]")
            else: a(f"v_pk_add_f32 {r2(vU+4)}, {r2(vU+4)}, {r2(vU)}")
        for i in range(4): a(f"ds_write_b32 v{vU+13}, v{vAq+i} offset:{P1+32*i}")
        a(f"v_add_f32 v{vU+4}, v{vU+4}, v{vU+5}")
        for r in (1, 2, 4, 8): a(f"v_add_f32_dpp v{vU+4}, v{vU+4}, v{vU+4} row_ror:{r} {DPP}")
        a(f"""
        v_lshrrev_b32 v{vU+1}, 4, v0
        v_lshlrev_b32 v{vU+1}, 2, v{vU+1}
        ds_write_b32 v{vU+1}, v{vU+4} offset:{GS}
        s_lshl_b32 s4, s2, 10
        s_add_u32 s4, s4, {RA}
        v_lshl_add_u32 v{vFA}, v{vL}, 4, s4
        s_waitcnt lgkmcnt(0)
        s_barrier
        """)
        def pubA(lo, hi, wave, name):
            L = self.lab(name)
            mask = ((1 << hi) - 1) ^ ((1 << lo) - 1)
            a(f"""
            s_cmp_lg_u32 s{sJ}, {wave}
            s_cbranch_scc1 {L}
            s_mov_b32 exec_lo, {mask & 0xffffffff:#x}
            s_mov_b32 exec_hi, {mask >> 32:#x}
            v_lshrrev_b32 v{vU}, 4, v{vL}
            v_lshlrev_b32 v{vU}, 11, v{vU}
            v_and_b32 v{vU+1}, 15, v{vL}
            v_lshl_add_u32 v{vU}, v{vU+1}, 4, v{vU}
            """)
            tg = [vAO, vAO + 4, vBq, vPoll, vU + 4, vU + 8, vU + 20, vU + 24]
            for p in range(8): a(f"ds_read_b128 {r4(tg[p])}, v{vU} offset:{P1+256*p}")
            a("s_waitcnt lgkmcnt(0)")
            for p in range(1, 8): pkadd(tg[0], tg[0], tg[p])
            tagins(tg[0])
            a(f"""
            buffer_store_dwordx4 {r4(tg[0])}, v{vFA}, s[{SW}:{SW+3}], 0 offen sc1
            s_mov_b64 exec, -1
            {L}:
            """)
        pubA(0, 16, 3, "qpub")
        self.stamp("qpub")
        more(o["pre_qp"])
        for k in range(9):
            l8(f"G{k}", vS + 8 + k if k < 8 else vS + 5, vAg, k == 0)
            fill(f"G{k}")
            if k == 2:
                a(f"""
                v_mov_b32 v{vU}, 0
                ds_read_b128 {r4(vU+4)}, v{vU} offset:{GS}
                ds_read_b32 v{vU+8}, v{vU} offset:{GS+16}
                s_waitcnt lgkmcnt(0)
                v_pk_add_f32 {r2(vU+4)}, {r2(vU+4)}, {r2(vU+6)}
                v_add_f32 v{vU}, v{vU+4}, v{vU+5}
                v_add_f32 v{vU}, v{vU}, v{vU+8}
                v_cvt_pk_bf16_f32 v{vU}, v{vU}, v{vU}
                v_lshlrev_b32 v{vU}, 16, v{vU}
                v_mul_f32 v{vU}, {f2u(-1.4426950408889634):#x}, v{vU}
                v_exp_f32 v{vU}, v{vU}
                v_add_f32 v{vU}, 1.0, v{vU}
                v_rcp_f32 v{vU}, v{vU}
                v_cvt_pk_bf16_f32 v{vU}, v{vU}, v{vU}
                v_lshlrev_b32 v{vG}, 16, v{vU}
                v_sub_f32 v{vU}, 1.0, v{vG}
                v_cvt_pk_bf16_f32 v{vU}, v{vU}, v{vU}
                v_lshlrev_b32 v{vOMG}, 16, v{vU}
                """)
            if k == 5:
                a(f"""
                s_lshl_b32 s4, s{sJ}, 16
                s_lshl_b32 s5, s{sG}, 12
                s_add_u32 s4, s4, s5
                s_add_u32 s4, s4, {RA}
                v_lshrrev_b32 v{vU}, 4, v{vL}
                v_lshlrev_b32 v{vU}, 10, v{vU}
                v_and_b32 v{vU+1}, 15, v{vL}
                v_lshl_add_u32 v{vU}, v{vU+1}, 4, v{vU}
                v_add_u32 v{vQa}, s4, v{vU}
                """)
        for k in range(2):
            l8(f"R{k}", vS + 6 + k, vAr, k == 0)
            if k == 1: self.gdone = True
            fill(f"R{k}")
        for i in range(4): a(f"ds_write_b32 v{vU+14}, v{vAg+i} offset:{P1+32*i}")
        a(f"""
        v_mul_u32_u24 v{vRS}, 1821, v0
        v_lshrrev_b32 v{vRS}, 16, v{vRS}
        v_mul_u32_u24 v{vCH}, 36, v{vRS}
        v_sub_u32 v{vCH}, v0, v{vCH}
        v_mul_u32_u24 v{vPO}, {6*1152}, v{vRS}
        v_lshl_add_u32 v{vPO}, v{vCH}, 4, v{vPO}
        v_add_u32 v{vGU}, 4608, v{vPO}
        """)
        for i in range(4): a(f"ds_write_b32 v{vU+15}, v{vAr+i} offset:{P1+6144+32*i}")
        a(f"""
        s_bfe_u32 s4, s2, 0x10006
        s_lshl1_add_u32 s4, s{sC6}, s4
        s_mul_i32 s4, s4, {32*1152}
        v_add_u32 v{vPD}, s4, v{vPO}
        s_and_b32 s5, s2, 127
        s_mul_i32 s5, s5, {4*1152}
        s_add_u32 s5, s5, {(4096-2)*1152}
        v_lshl_add_u32 v{vPD2}, v{vCH}, 4, s5
        v_cmp_gt_u32 vcc, 5, v{vRS}
        v_cmp_gt_u32 s[4:5], 6, v{vRS}
        v_bfrev_b32 v{vU}, -2
        v_cndmask_b32 v{vPD2}, v{vPD2}, v{vPD}, vcc
        v_cndmask_b32 v{vPD}, v{vU}, v{vPD}, s[4:5]
        v_cndmask_b32 v{vPD2}, v{vU}, v{vPD2}, s[4:5]
        v_mul_u32_u24 v{vU}, 1152, v{vRS}
        v_lshl_add_u32 v{vCH}, v{vCH}, 5, v{vU}
        v_mul_u32_u24 v{vRS}, 12, v{vRS}
        v_add_u32 v{vRS}, {HL}, v{vRS}
        s_waitcnt lgkmcnt(0)
        s_barrier
        """)
        pubA(16, 64, 2, "gpub")
        self.stamp("gpub")
        more(o["pre_g"])
        qload = f"buffer_load_dwordx4 {r4(vPoll)}, v{vQa}, s[{SW}:{SW+3}], 0 offen sc1"
        for k in range(o["qp"] + 1):
            self.wait(f"K{k}"); fill(f"K{k}")
        self.issue("QP", qload.replace("sc1", o["first"]))
        lastK = min(15, self.ip - 1 - big.index("K0"))
        for k in range(o["qp"] + 1, lastK + 1):
            self.wait(f"K{k}"); fill(f"K{k}")
        more(o["pre_q"])
        a(f"""
        v_bfe_u32 v{vU+1}, v0, 3, 1
        v_lshlrev_b32 v{vU+1}, 9, v{vU+1}
        v_bfe_u32 v{vU+2}, v0, 4, 2
        v_lshl_add_u32 v{vU+1}, v{vU+2}, 7, v{vU+1}
        v_and_b32 v{vU+2}, 3, v0
        v_lshl_add_u32 v{vU+1}, v{vU+2}, 5, v{vU+1}
        """)
        self.wait("QP")
        retry_loop("q", [qload], [vPoll], vU)
        a(f"""
        ds_write_b128 v{vV}, {r4(vPoll)} offset:{QL}
        s_waitcnt lgkmcnt(0)
        s_barrier
        """)
        qd = [vT, vT + 8, vU + 8, vU + 16]
        for k in range(4):
            a(f"ds_read_b128 {r4(qd[k])}, v{vU+1} offset:{QL+1024*k}")
            a(f"ds_read_b128 {r4(qd[k]+4)}, v{vU+1} offset:{QL+1024*k+16}")
        a("s_waitcnt lgkmcnt(4)")
        for i in range(0, 8, 2): a(f"v_pk_add_f32 {r2(qd[0]+i)}, {r2(qd[0]+i)}, {r2(qd[1]+i)}")
        a("s_waitcnt lgkmcnt(0)")
        for i in range(0, 8, 2): a(f"v_pk_add_f32 {r2(qd[2]+i)}, {r2(qd[2]+i)}, {r2(qd[3]+i)}")
        for i in range(0, 8, 2): a(f"v_pk_add_f32 {r2(qd[0]+i)}, {r2(qd[0]+i)}, {r2(qd[2]+i)}")
        for i in range(4): a(f"v_cvt_pk_bf16_f32 v{vBq+i}, v{qd[0]+2*i}, v{qd[0]+2*i+1}")
        self.stamp("qcons")
        if o["round_scores"]: a(f"s_mov_b32 s{sC}, {f2u(128 ** -0.5):#x}")
        def qk_fin(t):
            D = vT + 4 * (t % 4)
            a(f"v_mov_b32_dpp v{vS+t}, v{D} quad_perm:[0,0,0,0] {DPP}")
            for u in range(1, 4): a(f"v_add_f32_dpp v{vS+t}, v{D+u}, v{vS+t} quad_perm:[{u},{u},{u},{u}] {DPP}")
            if t & 1:
                t0 = t - 1
                if o["round_scores"]:
                    a(f"""
                    v_cvt_pk_bf16_f32 v{vU}, v{vS+t0}, v{vS+t0+1}
                    v_lshlrev_b32 v{vS+t0}, 16, v{vU}
                    v_and_b32 v{vS+t0+1}, 0xffff0000, v{vU}
                    v_mul_f32 v{vS+t0}, s{sC}, v{vS+t0}
                    v_mul_f32 v{vS+t0+1}, s{sC}, v{vS+t0+1}
                    v_cvt_pk_bf16_f32 v{vU}, v{vS+t0}, v{vS+t0+1}
                    v_lshlrev_b32 v{vS+t0}, 16, v{vU}
                    v_and_b32 v{vS+t0+1}, 0xffff0000, v{vU}
                    """)
                if t == 1: a(f"v_max_f32 v{vU+1}, v{vS}, v{vS+1}")
                else: a(f"v_max3_f32 v{vU+1}, v{vU+1}, v{vS+t0}, v{vS+t0+1}")
        for t in range(16):
            if t > lastK: self.wait(f"K{t}")
            D = vT + 4 * (t % 4)
            a(f"v_mfma_f32_16x16x32_bf16 {r4(D)}, {r4(dst[f'K{t}'])}, {r4(vBq)}, 0")
            if t == 15: self.kdone = True
            if t > lastK: fill(f"K{t}")
            if t >= 2: qk_fin(t - 2)
        more(o["pre_s"])
        a(f"""
        v_bfe_u32 v{vU+2}, v0, 3, 1
        v_lshlrev_b32 v{vU+2}, 6, v{vU+2}
        v_lshrrev_b32 v{vU+3}, 4, v0
        v_lshl_add_u32 v{vK}, v{vU+3}, 2, v{vU+2}
        """)
        qk_fin(14); qk_fin(15)
        cexp = 1.4426950408889634 if o["round_scores"] else 128 ** -0.5 * 1.4426950408889634
        a(f"""
        ds_write_b32 v{vK}, v{vU+1} offset:{MX}
        s_mov_b32 s{sC}, {f2u(cexp):#x}
        s_waitcnt lgkmcnt(0)
        s_barrier
        """)
        for i in range(4): a(f"ds_read_b128 {r4(vT+4*i)}, v{vU+2} offset:{MX+16*i}")
        a("s_waitcnt lgkmcnt(0)")
        a(f"v_max3_f32 v{vT}, v{vT}, v{vT+1}, v{vT+2}")
        for t in range(3, 15, 2): a(f"v_max3_f32 v{vT}, v{vT}, v{vT+t}, v{vT+t+1}")
        a(f"v_max_f32 v{vMx}, v{vT}, v{vT+15}")
        a(f"v_and_b32 v{vMx}, v{vMx}, v{vTM}")
        a(f"v_mul_f32 v{vMc}, s{sC}, v{vMx}")
        for t in range(16): a(f"v_fma_f32 v{vS+t}, v{vS+t}, s{sC}, -v{vMc}")
        for t in range(16): a(f"v_exp_f32 v{vS+t}, v{vS+t}")
        a(f"v_pk_add_f32 {r2(vT)}, {r2(vS)}, {r2(vS+2)}")
        for t in range(4, 16, 2): a(f"v_pk_add_f32 {r2(vT)}, {r2(vT)}, {r2(vS+t)}")
        a(f"v_add_f32 v{vT}, v{vT}, v{vT+1}")
        a(f"ds_write_b32 v{vK}, v{vT} offset:{LS}")
        self.stamp("smax")
        Lha = self.lab("haddr")
        hl = [f"buffer_load_dwordx4 {r4(vAO)}, v{vQa}, s[{SW}:{SW+3}], 0 offen sc1",
              f"buffer_load_dwordx4 {r4(vAO+4)}, v{vQb}, s[{SW}:{SW+3}], 0 offen sc1"]
        a(f"""
        s_cmp_lg_u32 s{sJ}, 3
        s_cbranch_scc1 {Lha}
        s_lshl_b32 s4, s{sC6}, 10
        s_bfe_u32 s5, s2, 0x10006
        s_lshl_b32 s5, s5, 7
        s_add_u32 s4, s4, s5
        s_add_u32 s4, s4, {RA+256}
        v_and_b32 v{vU}, 3, v0
        v_lshlrev_b32 v{vU}, 16, v{vU}
        v_bfe_u32 v{vU+1}, v0, 5, 1
        v_lshl_add_u32 v{vU}, v{vU+1}, 8, v{vU}
        v_bfe_u32 v{vU+1}, v0, 2, 3
        v_lshl_add_u32 v{vU}, v{vU+1}, 4, v{vU}
        v_add_u32 v{vQa}, s4, v{vU}
        s_bfe_u32 s4, s2, 0x30004
        s_lshl_b32 s4, s4, 10
        s_and_b32 s5, s2, 15
        s_lshl_b32 s5, s5, 4
        s_add_u32 s4, s4, s5
        s_add_u32 s4, s4, {RA+768}
        v_and_b32 v{vU}, 15, v0
        v_lshlrev_b32 v{vU}, 14, v{vU}
        v_bfe_u32 v{vU+1}, v0, 4, 1
        v_lshl_add_u32 v{vU}, v{vU+1}, 13, v{vU}
        v_add_u32 v{vQb}, s4, v{vU}
        {Lha}:
        """)
        hcheck = None
        for t in range(16):
            B = vT + 4 * (t % 2)
            a(f"v_cvt_pk_bf16_f32 v{vU}, v{vS+t}, v{vS+t}")
            for j in range(4): a(f"v_and_b32 v{B+j}, v{vU}, v{vM[j]}")
            self.wait(f"V{t}")
            a(f"v_mfma_f32_16x16x32_bf16 {r4(vAcc)}, {r4(dst[f'V{t}'])}, {r4(B)}, {'0' if t == 0 else r4(vAcc)}")
            fill(f"V{t}", min(W, 15 + o["Wt"] - t))
            if t == o["hp"]:
                L = self.lab("hiss")
                a(f"s_cmp_lg_u32 s{sJ}, 3"); a(f"s_cbranch_scc1 {L}")
                for ld in hl: a(ld.replace("sc1", o["first"]))
                a(f"{L}:")
                self.hmark = len(self.vm)
                hcheck = min(15, self.ip - big.index("V0"))
            if t == 3:
                a(f"""
                v_bfe_u32 v{vK}, v0, 3, 1
                v_lshlrev_b32 v{vK}, 9, v{vK}
                v_bfe_u32 v{vU+1}, v0, 4, 2
                v_lshl_add_u32 v{vK}, v{vU+1}, 7, v{vK}
                v_and_b32 v{vU+1}, 7, v0
                v_lshl_add_u32 v{vK}, v{vU+1}, 2, v{vK}
                v_lshl_add_u32 v{vK}, v{vJ}, 10, v{vK}
                s_lshl4_add_u32 s6, s{sG}, s{sS}
                s_mul_i32 s6, s6, 1152
                s_add_u32 s6, s6, {OB}
                v_lshl_add_u32 v{vX+4}, v{vL}, 4, s6
                s_mul_i32 s4, s{sG}, {16*1152}
                s_add_u32 s4, s4, {OB}
                v_and_b32 v{vX+5}, 15, v0
                v_mul_u32_u24 v{vX+5}, 1152, v{vX+5}
                v_add_u32 v{vX+5}, s4, v{vX+5}
                v_bfe_u32 v{vX+6}, v0, 4, 2
                s_and_b32 s4, s{sS}, 7
                v_lshl_add_u32 v{vX+6}, s4, 3, v{vX+6}
                v_lshl_add_u32 v{vX+6}, v{vX+6}, 4, v{vX+5}
                v_lshrrev_b32 v{vFA}, {CG.bit_length()-1}, v0
                v_mul_u32_u24 v{vFA}, {128*CG*16}, v{vFA}
                v_and_b32 v{vU+1}, {CG-1}, v0
                v_lshl_add_u32 v{vFA}, v{vU+1}, 4, v{vFA}
                s_and_b32 s4, s2, 127
                s_mul_i32 s4, s4, {CG*16}
                s_lshr_b32 s5, s2, 7
                s_mul_i32 s5, s5, {72*128*16}
                s_add_u32 s4, s4, s5
                s_add_u32 s4, s4, {FB}
                v_add_u32 v{vFA}, s4, v{vFA}
                """)
            if hcheck is not None and t == min(15, hcheck):
                hcheck = None
                Lh = self.lab("hfin")
                a(f"""
                s_cmp_lg_u32 s{sJ}, 3
                s_cbranch_scc1 {Lh}
                s_waitcnt vmcnt({len(self.vm) - self.hmark})
                """)
                retry_loop("h", hl, [vAO, vAO + 4], vU)
                for i in range(4): a(f"v_add_f32_dpp v{vAO+i}, v{vAO+i}, v{vAO+i} quad_perm:[1,0,3,2] {DPP}")
                for i in range(4): a(f"v_add_f32_dpp v{vAO+4+i}, v{vAO+4+i}, v{vAO+4+i} row_ror:1 {DPP}")
                for i in range(4): a(f"v_add_f32_dpp v{vAO+i}, v{vAO+i}, v{vAO+i} quad_perm:[2,3,0,1] {DPP}")
                for r in (2, 4, 8):
                    for i in range(4): a(f"v_add_f32_dpp v{vAO+4+i}, v{vAO+4+i}, v{vAO+4+i} row_ror:{r} {DPP}")
                a(f"""
                v_bfe_u32 v{vU+1}, v0, 5, 1
                v_mul_u32_u24 v{vU+1}, 192, v{vU+1}
                v_bfe_u32 v{vU+2}, v0, 2, 3
                v_lshl_add_u32 v{vU+1}, v{vU+2}, 4, v{vU+1}
                ds_write_b128 v{vU+1}, {r4(vAO)} offset:{HP}
                v_bfe_u32 v{vU+1}, v0, 4, 1
                v_mul_u32_u24 v{vU+1}, 192, v{vU+1}
                ds_write_b128 v{vU+1}, {r4(vAO+4)} offset:{HP+128}
                v_min_u32 v{vU+1}, 35, v{vL}
                v_lshlrev_b32 v{vU+2}, 2, v{vU+1}
                v_add_u32 v{vU+2}, {HP}, v{vU+2}
                s_waitcnt lgkmcnt(0)
                ds_read2_b32 {r2(vU+4)}, v{vU+2} offset0:0 offset1:48
                v_lshlrev_b32 v{vU+1}, 1, v{vU+1}
                s_waitcnt lgkmcnt(0)
                v_cvt_pk_bf16_f32 v{vU+4}, v{vU+4}, v{vU+5}
                v_and_b32 v{vU+5}, 0xffff0000, v{vU+4}
                v_lshlrev_b32 v{vU+4}, 16, v{vU+4}
                v_max_f32 v{vU+4}, 0, v{vU+4}
                v_mul_f32 v{vU+4}, v{vU+4}, v{vU+5}
                v_cvt_pk_bf16_f32 v{vU+4}, v{vU+4}, v{vU+4}
                ds_write_b16 v{vU+1}, v{vU+4} offset:{HL}
                {Lh}:
                """)
        assert hcheck is None
        for i in range(4): a(f"ds_write_b32 v{vK}, v{vAcc+i} offset:{OW+32*i}")
        a(f"""
        s_waitcnt lgkmcnt(0)
        s_barrier
        """)
        self.stamp("pvdone")
        Lo1 = self.lab("opub"); Lm = self.lab("mlpub")
        a(f"""
        s_cmp_lg_u32 s{sJ}, 0
        s_cbranch_scc1 {Lo1}
        """)
        for jj in range(4): a(f"ds_read_b128 {r4(vT+4*jj)}, v{vV} offset:{OW+1024*jj}")
        a("s_waitcnt lgkmcnt(2)")
        pkadd(vT, vT, vT + 4)
        a("s_waitcnt lgkmcnt(0)")
        pkadd(vT + 8, vT + 8, vT + 12); pkadd(vT, vT, vT + 8)
        tagins(vT)
        a(f"""
        buffer_store_dwordx4 {r4(vT)}, v{vX+4}, s[{SW}:{SW+3}], 0 offen sc1
        {Lo1}:
        s_cmp_lg_u32 s{sJ}, 2
        s_cbranch_scc1 {Lm}
        v_bfe_u32 v{vU+1}, v0, 3, 1
        v_lshlrev_b32 v{vU+1}, 6, v{vU+1}
        """)
        for i in range(4): a(f"ds_read_b128 {r4(vU+4+4*i)}, v{vU+1} offset:{LS+16*i}")
        a("s_waitcnt lgkmcnt(0)")
        pkadd(vU + 4, vU + 4, vU + 8); pkadd(vU + 12, vU + 12, vU + 16); pkadd(vU + 4, vU + 4, vU + 12)
        a(f"""
        v_pk_add_f32 {r2(vU+4)}, {r2(vU+4)}, {r2(vU+6)}
        v_add_f32 v{vU+5}, v{vU+4}, v{vU+5}
        v_mov_b32 v{vU+4}, v{vMx}
        v_mov_b32_dpp v{vU+6}, v{vMx} row_shl:8 {DPP}
        v_mov_b32_dpp v{vU+7}, v{vU+5} row_shl:8 {DPP}
        """)
        tagins(vU + 4)
        a(f"""
        s_mov_b64 exec, 1
        buffer_store_dwordx4 {r4(vU+4)}, v{vX+4}, s[{SW}:{SW+3}], 0 offen offset:1024 sc1
        s_mov_b64 exec, -1
        {Lm}:
        """)
        self.stamp("opub")
        a(f"""
        ds_read2_b32 {r2(vX)}, v{vRS} offset0:0 offset1:1
        ds_read_b32 v{vX+2}, v{vRS} offset:8
        s_waitcnt lgkmcnt(0)
        """)
        def flat_A(k, xsrc):
            p = k & 1; A = vU + 2 * p
            a(f"v_perm_b32 v{A}, v{xsrc+(k>>1)}, v{xsrc+(k>>1)}, v{vSel[2*p]}")
            a(f"v_perm_b32 v{A+1}, v{xsrc+(k>>1)}, v{xsrc+(k>>1)}, v{vSel[2*p+1]}")
            return A
        def flat_mfma(A, data, acc, first):
            a(f"v_mfma_f32_4x4x4_16b_bf16 {r4(acc)}, {r2(A)}, {r2(data)}, {'0' if first else r4(acc)}")
            a(f"v_mfma_f32_4x4x4_16b_bf16 {r4(acc+4)}, {r2(A)}, {r2(data+2)}, {'0' if first else r4(acc+4)}")
        def omk(st): return [f"buffer_load_dwordx4 {r4(st[0])}, v{vX+6}, s[{SW}:{SW+3}], 0 offen sc1",
                             f"buffer_load_dwordx4 {r4(st[1])}, v{vX+6}, s[{SW}:{SW+3}], 0 offen offset:64 sc1",
                             f"buffer_load_dwordx4 {r4(st[2])}, v{vX+5}, s[{SW}:{SW+3}], 0 offen offset:1024 sc1"]
        osets = [[R1 + 12 * d, R1 + 12 * d + 4, R1 + 12 * d + 8] for d in range(o["odepth"])]
        polled = False
        for k in range(-1, 6):
            if k >= 0:
                A = flat_A(k, vX)
                self.wait(f"D{k}")
                flat_mfma(A, dst[f"D{k}"], vAD, k == 0)
            fill(f"D{k}" if k >= 0 else "V15", o["post"])
            if self.ip == len(big) and not polled:
                polled = True
                Lp = self.lab("opl")
                a(f"s_cmp_lg_u32 s{sJ}, 1"); a(f"s_cbranch_scc1 {Lp}")
                for ld in omk(osets[0]): a(ld)
                a(f"{Lp}:")
        assert polled
        (None if o["st3"] else self.stamp("Ddone"))
        Lo2 = self.lab("ocons")
        a(f"""
        s_cmp_lg_u32 s{sJ}, 1
        s_cbranch_scc1 {Lo2}
        s_bitcmp1_b32 s{sS}, 2
        s_cselect_b64 s[4:5], -1, 0
        """)
        P = vS
        def ofin(st):
            a(f"v_cndmask_b32 v{vT}, v{st[2]}, v{st[2]+2}, s[4:5]")
            a(f"v_cndmask_b32 v{vT+1}, v{st[2]+1}, v{st[2]+3}, s[4:5]")
            for h in range(2):
                a(f"v_pk_mul_f32 {r2(P+4*h)}, {r2(st[h])}, 1.0 op_sel_hi:[1,0]")
                a(f"v_pk_mul_f32 {r2(P+4*h+2)}, {r2(st[h]+2)}, 1.0 op_sel_hi:[1,0]")
        pipe_poll("o", omk, osets, vU + 4, 1, ofin, o["osleep"])
        (None if o["st3"] else self.stamp("opollok"))
        a(f"""
        v_and_b32 v{vT}, v{vT}, v{vTM}
        v_max_f32_dpp v{vT+2}, v{vT}, v{vT} row_ror:1 {DPP}
        """)
        for r in (2, 4, 8): a(f"v_max_f32_dpp v{vT+2}, v{vT+2}, v{vT+2} row_ror:{r} {DPP}")
        a(f"""
        v_sub_f32 v{vT}, v{vT}, v{vT+2}
        v_mul_f32 v{vT}, s{sC}, v{vT}
        v_exp_f32 v{vT}, v{vT}
        v_mul_f32 v{vT+1}, v{vT}, v{vT+1}
        """)
        for i in range(0, 8, 2): a(f"v_pk_mul_f32 {r2(P+i)}, {r2(P+i)}, {r2(vT)} op_sel_hi:[1,0]")
        for r in (1, 2, 4, 8):
            a(f"v_add_f32_dpp v{vT+1}, v{vT+1}, v{vT+1} row_ror:{r} {DPP}")
            for i in range(8): a(f"v_add_f32_dpp v{P+i}, v{P+i}, v{P+i} row_ror:{r} {DPP}")
        a(f"v_rcp_f32 v{vT}, v{vT+1}")
        a(f"v_lshrrev_b32 v{vU+4}, 4, v{vL}")
        a(f"v_lshlrev_b32 v{vU+4}, 3, v{vU+4}")
        for i in range(0, 8, 2): a(f"v_pk_mul_f32 {r2(P+i)}, {r2(P+i)}, {r2(vT)} op_sel_hi:[1,0]")
        for i in range(4): a(f"v_cvt_pk_bf16_f32 v{vT+2+i}, v{P+2*i}, v{P+2*i+1}")
        a(f"""
        ds_write_b64 v{vU+4}, {r2(vT+2)} offset:{OL}
        ds_write_b64 v{vU+4}, {r2(vT+4)} offset:{OL+32}
        s_branch {Lo2}x
        {Lo2}:
        s_waitcnt vmcnt(0)
        {Lo2}x:
        """)
        for i in range(0, 8): a(f"v_mul_f32 v{vAD+i}, v{vOMG}, v{vAD+i}")
        a(f"""
        s_waitcnt lgkmcnt(0)
        s_barrier
        ds_read2_b32 {r2(vX)}, v{vRS} offset0:{(OL-HL)//4} offset1:{(OL-HL)//4+1}
        ds_read_b32 v{vX+2}, v{vRS} offset:{OL-HL+8}
        """)
        (None if o["st3"] else self.stamp("B7"))
        a("s_waitcnt lgkmcnt(0)")
        for k in range(6):
            A = flat_A(k, vX)
            flat_mfma(A, dst[f"O{k}"], vAO, k == 0)
        for i in range(8): a(f"v_fma_f32 v{vAD+i}, v{vG}, v{vAO+i}, v{vAD+i}")
        Lf = self.lab("fpub")
        a(f"""
        ds_write_b128 v{vCH}, {r4(vAD)} offset:{LF}
        ds_write_b128 v{vCH}, {r4(vAD+4)} offset:{LF+16}
        v_cmp_gt_u32 vcc, 72, v0
        s_waitcnt lgkmcnt(0)
        s_barrier
        s_and_saveexec_b64 s[4:5], vcc
        s_cbranch_execz {Lf}
        """)
        tg = [vT, vT + 4, vT + 8, vT + 12, vT + 16, vU + 4]
        for p in range(6): a(f"ds_read_b128 {r4(tg[p])}, v{vV} offset:{LF+1152*p}")
        a("s_waitcnt lgkmcnt(4)"); pkadd(tg[0], tg[0], tg[1])
        a("s_waitcnt lgkmcnt(2)"); pkadd(tg[2], tg[2], tg[3])
        a("s_waitcnt lgkmcnt(0)"); pkadd(tg[4], tg[4], tg[5]); pkadd(tg[0], tg[0], tg[2]); pkadd(tg[0], tg[0], tg[4])
        tagins(vT)
        a(f"""
        buffer_store_dwordx4 {r4(vT)}, v{vFA}, s[{SW}:{SW+3}], 0 offen sc1
        {Lf}:
        s_mov_b64 exec, s[4:5]
        """)
        self.stamp("fpub")
        NL = CG // 2
        a(f"""
        s_cmpk_ge_u32 s2, {R}
        s_cbranch_scc1 L_fin
        s_mul_i32 s4, s2, {128*CG*16}
        s_add_u32 s4, s4, {FB}
        """)
        if CG == 4:
            a(f"""
            v_and_b32 v{vQa}, 15, v0
            v_lshlrev_b32 v{vQa}, 6, v{vQa}
            v_bfe_u32 v{vQb}, v0, 4, 2
            v_lshl_add_u32 v{vQa}, v{vQb}, 4, v{vQa}
            v_lshl_add_u32 v{vQa}, v{vJ}, 10, v{vQa}
            v_add_u32 v{vQa}, s4, v{vQa}
            s_movk_i32 s33, 0x1000
            """)
            offs = [("0", 0), ("s33", 0)]
        elif CG == 2:
            a(f"""
            v_and_b32 v{vQa}, 15, v0
            v_lshlrev_b32 v{vQa}, 5, v{vQa}
            v_bfe_u32 v{vQb}, v0, 4, 1
            v_lshl_add_u32 v{vQa}, v{vQb}, 4, v{vQa}
            v_lshrrev_b32 v{vQb}, 5, v0
            v_lshl_add_u32 v{vQa}, v{vQb}, 9, v{vQa}
            v_add_u32 v{vQa}, s4, v{vQa}
            """)
            offs = [("0", 0)]
        else:
            a(f"""
            v_and_b32 v{vQa}, 15, v0
            v_lshlrev_b32 v{vQa}, 7, v{vQa}
            v_bfe_u32 v{vQb}, v0, 4, 2
            v_lshl_add_u32 v{vQa}, v{vQb}, 4, v{vQa}
            v_lshl_add_u32 v{vQa}, v{vJ}, 11, v{vQa}
            v_add_u32 v{vQa}, s4, v{vQa}
            s_movk_i32 s33, 0x2000
            """)
            offs = [("0", 0), ("s33", 0), ("0", 64), ("s33", 64)]
        def fmk(st): return [f"buffer_load_dwordx4 {r4(st[k])}, v{vQa}, s[{SW}:{SW+3}], {offs[k][0]} offen offset:{offs[k][1]} sc1" for k in range(NL)]
        fsets = [[R2 + 16 * d + 4 * k for k in range(NL)] for d in range(o["fdepth"])]
        F = vS
        NF = 8 if CG == 8 else 4
        def ffin(st):
            if CG == 4: pkadd(F, st[0], st[1])
            elif CG == 8: pkadd(F, st[0], st[1]); pkadd(F + 4, st[2], st[3])
            else:
                for i in range(4): a(f"v_add_f32_dpp v{F+i}, v{st[0]+i}, v{st[0]+i} row_ror:1 {DPP}")
        pipe_poll("f", fmk, fsets, vU + 4, 0, ffin, o["fsleep"])
        (None if o["st3"] else self.stamp("fpollok"))
        for r in (1, 2, 4, 8):
            if CG == 2 and r == 1: continue
            for i in range(NF): a(f"v_add_f32_dpp v{F+i}, v{F+i}, v{F+i} row_ror:{r} {DPP}")
        a(f"""
        v_lshrrev_b32 v{vU}, 4, v0
        v_lshlrev_b32 v{vU}, 4, v{vU}
        ds_write_b128 v{vU}, {r4(F)} offset:{RD}
        """)
        if CG == 8: a(f"ds_write_b128 v{vU}, {r4(F+4)} offset:{RD+256}")
        a(f"""
        s_mov_b32 s{SX}, s56
        s_mov_b32 s{SX+1}, s57
        s_mul_i32 s4, s2, {CG*8}
        """)
        if CG == 8:
            a(f"""
            v_and_b32 v{vU}, 3, v0
            v_lshrrev_b32 v{vU+1}, 4, v0
            v_lshl_add_u32 v{vU}, v{vU+1}, 2, v{vU}
            v_lshl_add_u32 v{vU}, v{vU}, 3, s4
            """)
        else:
            a(f"v_lshl_add_u32 v{vU}, v0, 3, s4")
        a(f"""
        s_waitcnt lgkmcnt(0)
        s_barrier
        s_cmp_lg_u32 s{sJ}, 0
        s_cbranch_scc1 L_fin
        s_mov_b64 exec, {'0xffffffff' if CG == 8 else '0xffff'}
        ds_read_b128 {r4(vT)}, v{vV} offset:{RD}
        s_waitcnt lgkmcnt(0)
        """)
        for r in (1, 2, 4, 8):
            if r >= min(CG, 4):
                for i in range(4): a(f"v_add_f32_dpp v{vT+i}, v{vT+i}, v{vT+i} row_ror:{r} {DPP}")
        a(f"""
        v_cvt_pk_bf16_f32 v{vT}, v{vT}, v{vT+1}
        v_cvt_pk_bf16_f32 v{vT+1}, v{vT+2}, v{vT+3}
        s_mov_b64 exec, {0xf000f if CG == 8 else (1 << CG) - 1:#x}
        buffer_store_dwordx2 {r2(vT)}, v{vU}, s[{SX}:{SX+3}], 0 offen
        s_cmp_lg_u32 s2, 0
        s_cbranch_scc1 L_fin
        s_mov_b64 exec, 1
        v_mov_b32 v{vT+4}, s{sTAG}
        v_mov_b32 v{vT+5}, 0
        buffer_store_dword v{vT+4}, v{vT+5}, s[{SW}:{SW+3}], 0 offen sc1
        L_fin:
        """)
        if o["skewm"]:
            a(f"""
            s_cmp_lg_u32 s2, 0
            s_cbranch_scc1 L_end
            s_cmp_lg_u32 s{sJ}, 0
            s_cbranch_scc1 L_end
            s_add_u32 s4, s60, 0xF0000
            s_addc_u32 s5, s61, 0
            s_load_dwordx8 s[64:71], s[4:5], 0 glc
            s_waitcnt lgkmcnt(0)
            """)
            for i in range(8): a(f"s_sub_u32 s{64+i}, s{64+i}, s16"); a(f"s_add_u32 s{64+i}, s{64+i}, 500")
            m = o["skewm"]
            if m == "late":
                a("s_add_u32 s6, s68, s69"); a("s_add_u32 s6, s6, s70"); a("s_add_u32 s6, s6, s71")
                a("s_sub_u32 s6, s6, s65"); a("s_sub_u32 s6, s6, s66"); a("s_sub_u32 s6, s6, s67"); a("s_sub_u32 s6, s6, s66")
                a("s_mul_i32 s6, s6, 5"); a("s_add_u32 s6, s6, 3000")
            else:
                a("s_min_u32 s72, s64, s65")
                for i in range(2, 8): a(f"s_min_u32 s72, s72, s{64+i}")
                if m == "max":
                    a("s_max_u32 s73, s64, s65")
                    for i in range(2, 8): a(f"s_max_u32 s73, s73, s{64+i}")
                else:
                    a(f"s_mov_b32 s73, s{64+int(m)}")
                a("s_sub_u32 s6, s73, s72"); a("s_mul_i32 s6, s6, 20"); a("s_add_u32 s6, s6, 3000")
            a(f"""
            s_min_u32 s6, s6, 20000
            L_hold:
            s_memrealtime s[4:5]
            s_waitcnt lgkmcnt(0)
            s_sub_u32 s4, s4, s16
            s_cmp_lt_u32 s4, s6
            s_cbranch_scc1 L_hold
            """)
        elif o["amp"] >= 0:
            self.stamp("end"); k = o["amp"]
            a(f"""
            s_waitcnt lgkmcnt(0)
            s_sub_u32 s6, s{self.sreg(k)}, s16
            s_min_u32 s6, s6, 3000
            s_mul_i32 s6, s6, 10
            s_add_u32 s6, s6, 3000
            L_hold:
            s_memrealtime s[4:5]
            s_waitcnt lgkmcnt(0)
            s_sub_u32 s4, s4, s16
            s_cmp_lt_u32 s4, s6
            s_cbranch_scc1 L_hold
            """)
        elif o["stamps"]:
            self.stamp("end")
            a(f"""
            s_waitcnt lgkmcnt(0)
            s_lshl_b32 s4, s2, 2
            s_add_u32 s4, s4, s{sJ}
            s_lshl_b32 s4, s4, 7
            s_add_u32 s4, s4, {STAMP_OFF:#x}
            s_add_u32 s6, s60, s4
            s_addc_u32 s7, s61, 0
            s_sub_u32 s6, s6, {o['wsoff']:#x}
            s_subb_u32 s7, s7, 0
            s_mov_b64 exec, 1
            v_mov_b32 v4, 0
            """)
            for j in range(self.nst):
                a(f"""
                v_mov_b32 v2, s{self.sreg(j)}
                v_mov_b32 v3, s{self.sreg(j)+1}
                global_store_dwordx2 v4, v[2:3], s[6:7] offset:{8*j}
                s_nop 1
                """)
        if o["hold"]:
            a(f"""
            s_waitcnt lgkmcnt(0)
            L_hold:
            s_memrealtime s[4:5]
            s_waitcnt lgkmcnt(0)
            s_sub_u32 s4, s4, s16
            s_cmp_lt_u32 s4, {o["hold"]}
            s_cbranch_scc1 L_hold
            """)
        a("L_end:")
        a("s_endpgm")
        body = "\n".join(fix(self.l)) + "\n"
        head = open("cdna_kernels/" + KN + ".s.ref").read().split("; Override launch")[0]
        if self.names: head += "; stamps: " + " ".join(self.names) + "\n"
        return head + f"""; @launch grid=(256,1,1) block=(256,1,1) lds={o['lds']}
.amdgcn_target "amdgcn-amd-amdhsa--gfx950"
.text
.globl {KN}_kernel
.p2align 8
.type {KN}_kernel,@function
{KN}_kernel:
""" + body + f""".section .rodata,"a"
.p2align 6
.amdhsa_kernel {KN}_kernel
  .amdhsa_next_free_vgpr 256
  .amdhsa_next_free_sgpr 102
  .amdhsa_accum_offset 256
  .amdhsa_group_segment_fixed_size 0
  .amdhsa_kernarg_size 104
  .amdhsa_user_sgpr_count 2
  .amdhsa_user_sgpr_kernarg_segment_ptr 1
  .amdhsa_system_sgpr_workgroup_id_x 1
.end_amdhsa_kernel
"""

if __name__ == "__main__":
    out = sys.argv[1]; opt = {}
    for kv in sys.argv[2:]:
        k, v = kv.split("="); opt[k] = eval(v)
    open(out, "w").write(Gen(**opt).build())
```

```python
import sys, struct
from hazard import fix
KN = "gated_mix__sliding_block_cached__glu_gated_reglu__decode"
STAMP_OFF = 0x30000000
def f2u(x): return struct.unpack("<I", struct.pack("<f", x))[0]

class Gen:
    def __init__(self, **opt):
        self.o = dict(W=7, stamps=False, wsoff=0x3fe00000, qp=2, hp=3, CG=4, round_scores=True, prefetch=0, jitter=0,
                      hold=0, amp=-1, lds=90112, nt="nt", spin=20000, pre_g=2, pre_q=2, pre_s=3, Wt=3, fdepth=2, odepth=1,
                      cnt=0, post=12, osleep=0, fsleep=0, pre_qp=0, first='sc1', pt=0, ptf='', st3=0, early=3, skewm='', adapt=11, flagrd=5, nearly=7, lpost=8, st4=0, atime=0, obar=1, opa=2)
        for k in opt: assert k in self.o, k
        self.o.update(opt)
        self.l = []; self.vm = []; self.nl = 0; self.nst = 0; self.names = []
    def a(self, s):
        for x in s.strip().split("\n"):
            x = x.strip()
            if x: self.l.append(x if x.endswith(":") else "    " + x)
    def lab(self, p):
        self.nl += 1
        return f"L_{p}{self.nl}"
    def issue(self, label, s):
        self.a(s); self.vm.append(label)
    def wait(self, label):
        n = len(self.vm) - 1 - self.vm.index(label)
        assert n <= 63
        self.a(f"s_waitcnt vmcnt({n})")
    def sreg(self, k): return 16 + 2 * k if k < 8 else 36 + 2 * (k - 8)
    def stamp(self, name=""):
        if self.o["stamps"]:
            assert self.nst < 16
            r = self.sreg(self.nst)
            self.a(f"s_memrealtime s[{r}:{r+1}]")
            self.names.append(name); self.nst += 1

    def build(self):
        o = self.o; a = self.a; nt = o["nt"]; W = o["W"]
        RA, OB, FB, MLB = 0x1000, 0x50000, 0xA0000, 0xF8000
        CG = o["CG"]; R = 144 // CG
        XL, P1, QL, MX, LS, GS, HP, HL, OL, OW, LF, RD, DUM = 0, 2560, 10752, 14848, 14976, 15104, 15232, 15616, 15744, 15872, 19968, 29184, 29696
        OLX = 30208
        vL = 1; vM = [2, 3, 4, 5]; vSel = [6, 7, 8, 9]
        vQa, vQb, vGU, vK, vV, vPD, vPD2, vPO, vTM = 10, 11, 12, 13, 14, 15, 16, 18, 17
        vMx, vMc, vFA, vRS = 19, 20, 21, 22
        vX = 24
        vS = 32; vBq = 48; vAq = 52; vAg = 56; vAr = 60; vAD = 56; vAO = 64; vT = 72; vPoll = 92
        vCH, vG, vOMG, vJ = 96, 97, 98, 99
        R1 = 100; R2 = 164; vU = 228
        vAcc = vAq
        dst = {}
        for i in range(5): dst[f"Q{i}"] = R1 + 4 * i
        for i in range(9): dst[f"G{i}"] = R1 + 20 + 4 * i
        for i in range(2): dst[f"R{i}"] = R1 + 56 + 4 * i
        for i in range(16): dst[f"K{i}"] = R2 + 4 * i; dst[f"V{i}"] = R1 + 4 * i
        for i in range(6): dst[f"D{i}"] = R2 + 4 * i; dst[f"O{i}"] = R2 + 24 + 4 * i
        big = [f"Q{i}" for i in range(5)] + [f"G{i}" for i in range(9)] + ["R0", "R1"] + [f"K{i}" for i in range(16)] + \
              [f"V{i}" for i in range(16)] + [f"D{i}" for i in range(6)] + [f"O{i}" for i in range(6)]
        sTAG = 62; sJ = 3; sKQ, sG, sS, sC6 = 8, 9, 10, 11; s4608 = 12
        sKV = 13; sGU = 14; sC = 15
        SQ, SGU, SK, SR, SD, SO, SX, SV, SW = 64, 68, 72, 76, 80, 84, 88, 92, 96
        sE, sLt = 34, 100
        r4 = lambda v: f"v[{v}:{v+3}]"
        r2 = lambda v: f"v[{v}:{v+1}]"
        DPP = "row_mask:0xf bank_mask:0xf"
        self.ip = 0; self.gdone = self.kdone = False
        def issue_next():
            lb = big[self.ip]; self.ip += 1
            d = r4(dst[lb]); k = int(lb[1:]); c = lb[0]
            if c == "V": assert self.gdone
            if c in "DO": assert self.kdone
            if c == "Q":
                if k == 0: self.issue(lb, f"buffer_load_dwordx4 {d}, v{vQa}, s[{SQ}:{SQ+3}], 0 offen {nt}")
                elif k < 4: self.issue(lb, f"buffer_load_dwordx4 {d}, v{vQa}, s[{SQ}:{SQ+3}], s{32+k} offen {nt}")
                else: self.issue(lb, f"buffer_load_dwordx4 {d}, v{vQb}, s[{SQ}:{SQ+3}], 0 offen {nt}")
            elif c == "G":
                if k == 0: a(f"s_mov_b32 s{sGU}, 0")
                elif k < 8: a(f"s_addk_i32 s{sGU}, 9216")
                if k < 8: self.issue(lb, f"buffer_load_dwordx4 {d}, v{vGU}, s[{SGU}:{SGU+3}], s{sGU} offen {nt}")
                else: self.issue(lb, f"buffer_load_dwordx4 {d}, v{vPD}, s[{SGU}:{SGU+3}], 0 offen {nt}")
            elif c == "R":
                self.issue(lb, f"buffer_load_dwordx4 {d}, v{vPD2 if k == 0 else vPO}, s[{SR}:{SR+3}], 0 offen {nt}")
            elif c in "KV":
                if k == 0: a(f"s_mov_b32 s{sKV}, 0")
                else: a(f"s_addk_i32 s{sKV}, 4096")
                sr, vo = (SK, vK) if c == "K" else (SV, vV)
                self.issue(lb, f"buffer_load_dwordx4 {d}, v{vo}, s[{sr}:{sr+3}], s{sKV} offen {nt}")
            else:
                sr = SD if c == "D" else SO
                vo = vPO if c == "O" else (vPD if k < 2 else vPD2)
                so, im = ("0", k * 1152) if k < 4 else (f"s{s4608}", (k - 4) * 1152)
                if c == "O" and k >= 4: vo, so = vGU, "0"
                self.issue(lb, f"buffer_load_dwordx4 {d}, v{vo}, s[{sr}:{sr+3}], {so} offen offset:{im} {nt}")
        def fill(label, w=None):
            w = W if w is None else w
            idx = big.index(label)
            while self.ip < len(big) and self.ip <= idx + w: issue_next()
        def more(n):
            for _ in range(n):
                if self.ip < len(big): issue_next()
        def tagins(v):
            for i in range(4): a(f"v_and_or_b32 v{v+i}, v{v+i}, v{vTM}, s{sTAG}")
        def tagchk(vs, acc, extra=0):
            first = True
            for v in vs:
                for i in range(4 + extra):
                    if first: a(f"v_xor_b32 v{acc}, s{sTAG}, v{v+i}"); first = False
                    else: a(f"v_bitop3_b32 v{acc}, v{v+i}, s{sTAG}, v{acc} bitop3:0xbe")
            a(f"v_and_b32 v{acc}, 0xff, v{acc}")
            a(f"v_cmp_ne_u32 vcc, 0, v{acc}")
        def retry_loop(name, loads, vs, acc):
            Lok = self.lab(name + "ok"); Lre = self.lab(name + "re")
            a(f"s_mov_b32 s7, {o['spin']}")
            a(f"{Lre}:")
            tagchk(vs, acc)
            a(f"s_cbranch_vccz {Lok}")
            for ld in loads: a(ld)
            a("s_waitcnt vmcnt(0)")
            a("s_sub_u32 s7, s7, 1")
            a("s_cmp_lg_u32 s7, 0")
            a(f"s_cbranch_scc1 {Lre}")
            a(f"{Lok}:")
            if o["stamps"] and o["cnt"] == 1:
                r = self.sreg(self.nst); self.names.append(name + "retry"); self.nst += 1
                a(f"s_sub_u32 s7, {o['spin']}, s7"); a(f"s_mul_i32 s7, s7, 100")
                a(f"s_add_u32 s{r}, s16, s7"); a(f"s_addc_u32 s{r+1}, s17, 0")
        def pipe_poll(name, mk, sets, acc, first_issued, fin, slp=0, extra=0):
            n = len(mk(sets[0])); D = len(sets)
            Lx = self.lab(name + "x"); Lre = self.lab(name + "re")
            Lmv = [self.lab(name + "mv") for _ in range(D)]
            for d in range(first_issued, D):
                for ld in mk(sets[d]): a(ld)
            a(f"s_mov_b32 s7, {o['spin']}")
            a(f"{Lre}:")
            for d in range(D):
                a(f"s_waitcnt vmcnt({n*(D-1)})")
                tagchk(sets[d], acc, extra)
                a(f"s_cbranch_vccz {Lmv[d]}")
                if slp: a(f"s_sleep {slp}")
                for ld in mk(sets[d]): a(ld)
            a("s_sub_u32 s7, s7, 1")
            a("s_cmp_lg_u32 s7, 0")
            a(f"s_cbranch_scc1 {Lre}")
            for d in range(D - 1, -1, -1):
                a(f"{Lmv[d]}:")
                fin(sets[d])
                if d: a(f"s_branch {Lx}")
            a(f"{Lx}:")
        def pkadd(d, x, y):
            a(f"v_pk_add_f32 {r2(d)}, {r2(x)}, {r2(y)}"); a(f"v_pk_add_f32 {r2(d+2)}, {r2(x+2)}, {r2(y+2)}")

        self.stamp("start")
        if o["hold"]: a("s_memrealtime s[16:17]")
        a(f"""
        s_load_dwordx16 s[36:51], s[0:1], 0
        s_cmpk_ge_u32 s2, 0x100
        s_cbranch_scc1 L_end
        """)
        if o["jitter"]:
            a(f"""s_mul_i32 s4, s2, 0x9e3779b1
            s_lshr_b32 s4, s4, {32-o["jitter"]}
            L_jit:
            s_cmp_eq_u32 s4, 0
            s_cbranch_scc1 L_jitd
            s_sleep 40
            s_sub_u32 s4, s4, 1
            s_branch L_jit
            L_jitd:""")
        a(f"""
        s_lshr_b32 s{sKQ}, s2, 6
        s_mul_i32 s4, s{sKQ}, {144*8192}
        s_and_b32 s{sC6}, s2, 63
        s_lshl_b32 s5, s{sC6}, 7
        s_add_u32 s4, s4, s5
        v_lshrrev_b32 v{vT}, 3, v0
        v_and_b32 v{vT+1}, 7, v0
        v_lshlrev_b32 v{vT+1}, 4, v{vT+1}
        v_lshl_add_u32 v{vQa}, v{vT}, 15, v{vT+1}
        s_mov_b32 s{SQ+2}, {143*8192+128}
        s_mov_b32 s{SQ+3}, 0x20000
        s_movk_i32 s33, 0x2000
        s_movk_i32 s34, 0x4000
        s_movk_i32 s35, 0x6000
        s_waitcnt lgkmcnt(0)
        s_add_u32 s{SQ}, s42, s4
        s_addc_u32 s{SQ+1}, s43, 0
        """)
        if o["st3"]: self.stamp("karg")
        more(4)
        if o["st3"]: self.stamp("Q3iss")
        a(f"""
        s_load_dwordx8 s[52:59], s[0:1], 64
        s_load_dwordx2 s[60:61], s[0:1], 96
        v_lshl_add_u32 v{vQb}, v{vT}, 13, v{vT+1}
        v_add_u32 v{vQb}, {128*8192}, v{vQb}
        v_lshrrev_b32 v{vJ}, 6, v0
        v_lshlrev_b32 v{vV}, 4, v0
        v_readfirstlane_b32 s{sJ}, v{vJ}
        """)
        more(1)
        a(f"""
        s_mov_b32 s{SX}, s36
        s_mov_b32 s{SX+1}, s37
        s_movk_i32 s{SX+2}, 1152
        s_mov_b32 s{SX+3}, 0x20000
        """)
        self.issue("X", f"buffer_load_dwordx4 {r4(vX)}, v{vV}, s[{SX}:{SX+3}], 0 offen")
        a(f"""
        s_bitcmp1_b32 s{sJ}, 0
        s_cselect_b32 s{SGU}, s50, s48
        s_cselect_b32 s{SGU+1}, s51, s49
        s_lshr_b32 s6, s{sJ}, 1
        s_lshl1_add_u32 s6, s{sKQ}, s6
        s_mul_i32 s4, s6, {72*9216}
        s_add_u32 s4, s4, s5
        s_add_u32 s{SGU}, s{SGU}, s4
        s_addc_u32 s{SGU+1}, s{SGU+1}, 0
        s_mov_b32 s{SGU+2}, {71*9216+128}
        s_mov_b32 s{SGU+3}, 0x20000
        v_and_b32 v{vT+2}, 7, v{vT}
        v_mul_u32_u24 v{vGU}, {8*9216}, v{vT+2}
        v_add_u32 v{vGU}, v{vGU}, v{vT+1}
        """)
        more(2)
        a(f"""
        v_mul_u32_u24 v{vPD}, 9216, v{vT+2}
        v_add_u32 v{vPD}, v{vPD}, v{vT+1}
        v_add_u32 v{vPD}, {64*9216}, v{vPD}
        s_waitcnt lgkmcnt(0)
        s_mov_b32 s{SR}, s54
        s_mov_b32 s{SR+1}, s55
        s_movk_i32 s{SR+2}, 1152
        s_mov_b32 s{SR+3}, 0x20000
        """)
        self.issue("GW", f"buffer_load_dwordx4 {r4(vX+4)}, v{vV}, s[{SR}:{SR+3}], 0 offen")
        if o["prefetch"]:
            a(f"""
            s_getpc_b64 s[4:5]
            s_lshr_b32 s7, s2, 3
            s_mul_i32 s7, s7, {128*o['prefetch']}
            v_and_b32 v{vT+3}, 63, v0
            v_lshl_add_u32 v{vT+3}, v{vT+3}, 7, s7
            s_mov_b64 exec, {(1 << o['prefetch']) - 1}
            """)
            self.issue("PF", f"global_load_dword v{vMc}, v{vT+3}, s[4:5]")
            a("s_mov_b64 exec, -1")
        more(o["early"])
        a(f"""
        s_add_u32 s60, s60, {o['wsoff']:#x}
        s_addc_u32 s61, s61, 0
        s_load_dword s{sTAG}, s[60:61], 0
        s_bitcmp1_b32 s2, 3
        s_cselect_b32 s{SR}, s50, s48
        s_cselect_b32 s{SR+1}, s51, s49
        s_lshr_b32 s7, s2, 4
        s_mul_i32 s4, s7, {36*9216}
        s_and_b32 s5, s2, 7
        s_lshl_b32 s5, s5, 7
        s_add_u32 s4, s4, s5
        s_add_u32 s4, s4, 8192
        s_add_u32 s{SR}, s{SR}, s4
        s_addc_u32 s{SR+1}, s{SR+1}, 0
        s_mov_b32 s{SR+2}, {35*9216+128}
        v_mul_u32_u24 v{vPD2}, 9216, v{vT}
        v_add_u32 v{vPD2}, v{vPD2}, v{vT+1}
        v_add_u32 v{vPO}, {32*9216}, v{vPD2}
        s_lshr_b32 s{sG}, s{sC6}, 2
        s_and_b32 s{sS}, s2, 3
        s_lshl2_add_u32 s{sS}, s{sKQ}, s{sS}
        s_lshl_b32 s4, s{sG}, 24
        s_lshl_b32 s5, s{sS}, 16
        s_add_u32 s4, s4, s5
        s_add_u32 s4, s4, {61440*256}
        s_add_u32 s{SK}, s38, s4
        s_addc_u32 s{SK+1}, s39, 0
        s_mov_b32 s{SK+2}, 0x10000
        s_mov_b32 s{SK+3}, 0x20000
        s_add_u32 s{SV}, s40, s4
        s_addc_u32 s{SV+1}, s41, 0
        s_mov_b32 s{SV+2}, 0x10000
        s_mov_b32 s{SV+3}, 0x20000
        s_lshr_b32 s4, s2, 7
        s_mul_i32 s4, s4, 576
        s_add_u32 s{SD}, s52, s4
        s_addc_u32 s{SD+1}, s53, 0
        s_mov_b32 s{SD+2}, {4607*1152+576}
        s_mov_b32 s{SD+3}, 0x20000
        s_and_b32 s5, s{sS}, 7
        s_lshl3_add_u32 s5, s{sG}, s5
        s_mul_i32 s5, s5, {32*1152}
        s_add_u32 s4, s4, s5
        s_add_u32 s{SO}, s44, s4
        s_addc_u32 s{SO+1}, s45, 0
        s_mov_b32 s{SO+2}, {31*1152+576}
        s_mov_b32 s{SO+3}, 0x20000
        s_mov_b32 s{SW}, s60
        s_mov_b32 s{SW+1}, s61
        s_mov_b32 s{SW+2}, 0x100000
        s_mov_b32 s{SW+3}, 0x20000
        s_movk_i32 s{s4608}, 4608
        v_and_b32 v{vL}, 63, v0
        v_and_b32 v{vU}, 3, v0
        v_lshlrev_b32 v{vU}, 4, v{vU}
        v_bfe_u32 v{vU+1}, v0, 2, 2
        v_lshl_add_u32 v{vU}, v{vU+1}, 8, v{vU}
        v_bfe_u32 v{vU+1}, v0, 4, 2
        v_lshl_add_u32 v{vU}, v{vU+1}, 6, v{vU}
        v_lshl_add_u32 v{vK}, v{vJ}, 10, v{vU}
        v_mov_b32 v{vTM}, 0xffffff00
        v_and_b32 v{vU}, 1, v0
        v_lshlrev_b32 v{vU}, 4, v{vU}
        v_mov_b32 v{vU+1}, 0xffff
        v_lshlrev_b32 v{vU}, v{vU}, v{vU+1}
        v_bfe_u32 v{vU+1}, v0, 1, 2
        v_cmp_eq_u32 s[4:5], 0, v{vU+1}
        v_cmp_eq_u32 s[100:101], 1, v{vU+1}
        v_cmp_eq_u32 vcc, 2, v{vU+1}
        v_cndmask_b32 v{vM[0]}, 0, v{vU}, s[4:5]
        v_cndmask_b32 v{vM[1]}, 0, v{vU}, s[100:101]
        v_cmp_eq_u32 s[100:101], 3, v{vU+1}
        v_cndmask_b32 v{vM[2]}, 0, v{vU}, vcc
        v_or_b32 v{vU+3}, v{vM[0]}, v{vM[2]}
        v_cndmask_b32 v{vM[3]}, 0, v{vU}, s[100:101]
        v_or_b32 v{vU+1}, v{vM[1]}, v{vM[3]}
        v_mov_b32 v{vU+2}, 0x0c0c0c0c
        s_mov_b32 s32, 0x01000100
        s_mov_b32 s63, 0x03020302
        v_bfi_b32 v{vSel[0]}, v{vU+3}, s32, v{vU+2}
        v_bfi_b32 v{vSel[1]}, v{vU+1}, s32, v{vU+2}
        v_bfi_b32 v{vSel[2]}, v{vU+3}, s63, v{vU+2}
        v_bfi_b32 v{vSel[3]}, v{vU+1}, s63, v{vU+2}
        """)
        if o["pt"]:
            a(f"""
            s_lshl_b32 s4, s2, 10
            s_add_u32 s4, s4, {RA}
            s_lshl4_add_u32 s5, s{sG}, s{sS}
            s_mul_i32 s5, s5, 1152
            s_add_u32 s5, s5, {OB}
            s_cmp_eq_u32 s{sJ}, 1
            s_cselect_b32 s4, s5, s4
            s_and_b32 s5, s2, 127
            s_mul_i32 s5, s5, {CG*16}
            s_lshr_b32 s100, s2, 7
            s_lshl1_add_u32 s100, s100, s{sJ}
            s_sub_u32 s100, s100, 2
            s_mul_i32 s100, s100, {9*128*CG*16}
            s_add_u32 s5, s5, s100
            s_add_u32 s5, s5, {FB}
            s_cmp_ge_u32 s{sJ}, 2
            s_cselect_b32 s4, s5, s4
            s_cselect_b32 s5, {(128*CG*16).bit_length()-1}, 7
            v_lshlrev_b32 v{vU}, s5, v{vL}
            v_add_u32 v{vU}, s4, v{vU}
            s_mov_b64 exec, 0x1ff
            """)
            self.issue("PT", f"buffer_load_dword v{vMx}, v{vU}, s[{SW}:{SW+3}], 0 offen {o['ptf']}")
            a("s_mov_b64 exec, -1")
        a(f"""
        v_lshlrev_b32 v{vU}, 2, v{vL}
        v_mov_b32 v{vU+4}, 0
        v_mov_b32 v{vU+5}, 0
        v_mov_b32 v{vU+6}, 0
        v_mov_b32 v{vU+7}, 0
        ds_write_b32 v{vU}, v{vU+4} offset:{HL}
        ds_write_b32 v{vU}, v{vU+4} offset:{XL+2304}
        v_lshlrev_b32 v{vU+1}, 3, v{vL}
        ds_write_b64 v{vU+1}, {r2(vU+4)} offset:{OLX+1024}
        v_and_b32 v{vU+1}, 1, v{vJ}
        v_lshlrev_b32 v{vU+1}, 11, v{vU+1}
        v_lshl_add_u32 v{vU+1}, v{vL}, 4, v{vU+1}
        ds_write_b128 v{vU+1}, {r4(vU+4)} offset:{P1+2048+1024}
        """)
        a(f"""
        s_mul_i32 s4, s{sKQ}, 576
        v_lshl_add_u32 v{vU+8}, v{vT}, 4, s4
        v_lshl_add_u32 v{vU+9}, v{vT}, 2, s4
        s_mul_i32 s4, s6, 288
        v_lshl_add_u32 v{vU+10}, v{vT+2}, 5, s4
        v_lshl_add_u32 v{vU+11}, v{vT+2}, 2, s4
        s_mul_i32 s4, s7, 144
        v_lshl_add_u32 v{vU+12}, v{vT}, 2, s4
        v_bfe_u32 v{vU+4}, v0, 3, 1
        v_bfe_u32 v{vU+5}, v0, 5, 1
        v_cmp_eq_u32 vcc, v{vU+4}, v{vU+5}
        v_bfe_u32 v{vU+4}, v0, 4, 1
        v_lshlrev_b32 v{vU+4}, 7, v{vU+4}
        v_lshl_add_u32 v{vU+4}, v{vU+5}, 8, v{vU+4}
        v_lshrrev_b32 v{vU+5}, 2, v{vT+1}
        v_add_u32 v{vU+4}, v{vU+4}, v{vU+5}
        v_lshl_add_u32 v{vU+13}, v{vJ}, 9, v{vU+4}
        s_and_b32 s4, s{sJ}, 1
        s_lshl_b32 s4, s4, 11
        s_lshr_b32 s5, s{sJ}, 1
        s_lshl_b32 s5, s5, 9
        s_add_u32 s4, s4, s5
        s_add_u32 s4, s4, 2048
        v_add_u32 v{vU+14}, s4, v{vU+4}
        v_mov_b32 v{vU+5}, {DUM-P1}
        v_cndmask_b32 v{vU+13}, v{vU+5}, v{vU+13}, vcc
        v_cndmask_b32 v{vU+14}, v{vU+5}, v{vU+14}, vcc
        v_mov_b32 v{vU+5}, {DUM-P1-6144}
        v_lshl_add_u32 v{vU+15}, v{vJ}, 9, v{vU+4}
        v_cndmask_b32 v{vU+15}, v{vU+5}, v{vU+15}, vcc
        v_lshlrev_b32 v{vU+16}, 5, v0
        v_min_u32 v{vU+16}, 2304, v{vU+16}
        """)
        if o["skewm"]:
            a(f"""
            s_waitcnt lgkmcnt(0)
            s_lshl_b32 s4, s2, 2
            s_add_u32 s4, s4, 0xF0000
            v_mov_b32 v{vBq}, s16
            v_mov_b32 v{vBq+1}, s4
            s_mov_b64 exec, 1
            """)
            self.issue("SK", f"buffer_store_dword v{vBq}, v{vBq+1}, s[{SW}:{SW+3}], 0 offen sc1")
            a("s_mov_b64 exec, -1")
        (None if o["st4"] else self.stamp("prol"))
        if o["st3"]:
            self.wait("Q0"); self.stamp("Q0land")
        self.wait("X")
        if o["st3"]: self.stamp("Xland")
        for i in range(4):
            a(f"v_perm_b32 v{vT+2*i}, v{vX+i}, v{vX+i}, s32")
            a(f"v_perm_b32 v{vT+2*i+1}, v{vX+i}, v{vX+i}, s63")
        a(f"""
        ds_write_b128 v{vU+16}, {r4(vT)} offset:{XL}
        ds_write_b128 v{vU+16}, {r4(vT+4)} offset:{XL+16}
        """)
        fill("Q4")
        a(f"""
        s_waitcnt lgkmcnt(0)
        s_barrier
        ds_read_b128 {r4(vS)}, v{vU+8} offset:{XL}
        ds_read_b32 v{vS+4}, v{vU+9} offset:{XL+512}
        ds_read_b128 {r4(vS+8)}, v{vU+10} offset:{XL}
        ds_read_b128 {r4(vS+12)}, v{vU+10} offset:{XL+16}
        ds_read_b32 v{vS+5}, v{vU+11} offset:{XL+256}
        ds_read_b32 v{vS+6}, v{vU+12} offset:{XL}
        ds_read_b32 v{vS+7}, v{vU+12} offset:{XL+128}
        s_add_u32 s{sTAG}, s{sTAG}, 1
        s_and_b32 s{sTAG}, s{sTAG}, 0xff
        s_waitcnt lgkmcnt(5)
        """)
        nb = [0]
        def l8(lbl, xreg, acc, first, dowait=True):
            B = vT + 4 * (nb[0] % 4); nb[0] += 1
            for j in range(4): a(f"v_and_b32 v{B+j}, v{xreg}, v{vM[j]}")
            if dowait: self.wait(lbl)
            a(f"v_mfma_f32_16x16x32_bf16 {r4(acc)}, {r4(dst[lbl])}, {r4(B)}, {'0' if first else r4(acc)}")
        for t in range(5): l8(f"Q{t}", vS + t, vAq, t == 0, False)
        self.wait("GW")
        for i in range(4):
            a(f"""
            v_lshlrev_b32 v{vU}, 16, v{vX+i}
            v_and_b32 v{vU+1}, 0xffff0000, v{vX+i}
            v_lshlrev_b32 v{vU+2}, 16, v{vX+4+i}
            v_and_b32 v{vU+3}, 0xffff0000, v{vX+4+i}
            v_pk_mul_f32 {r2(vU)}, {r2(vU)}, {r2(vU+2)}
            v_cvt_pk_bf16_f32 v{vU}, v{vU}, v{vU+1}
            v_and_b32 v{vU+1}, 0xffff0000, v{vU}
            v_lshlrev_b32 v{vU}, 16, v{vU}
            """)
            if i == 0: a(f"v_pk_mul_f32 {r2(vU+4)}, {r2(vU)}, 1.0 op_sel_hi:[1,0]")
            else: a(f"v_pk_add_f32 {r2(vU+4)}, {r2(vU+4)}, {r2(vU)}")
        for i in range(4): a(f"ds_write_b32 v{vU+13}, v{vAq+i} offset:{P1+32*i}")
        a(f"v_add_f32 v{vU+4}, v{vU+4}, v{vU+5}")
        for r in (1, 2, 4, 8): a(f"v_add_f32_dpp v{vU+4}, v{vU+4}, v{vU+4} row_ror:{r} {DPP}")
        a(f"""
        v_lshrrev_b32 v{vU+1}, 4, v0
        v_lshlrev_b32 v{vU+1}, 2, v{vU+1}
        ds_write_b32 v{vU+1}, v{vU+4} offset:{GS}
        s_lshl_b32 s4, s2, 10
        s_add_u32 s4, s4, {RA}
        v_lshl_add_u32 v{vFA}, v{vL}, 4, s4
        s_waitcnt lgkmcnt(0)
        s_barrier
        """)
        def pubA(lo, hi, wave, name):
            L = self.lab(name)
            mask = ((1 << hi) - 1) ^ ((1 << lo) - 1)
            a(f"""
            s_cmp_lg_u32 s{sJ}, {wave}
            s_cbranch_scc1 {L}
            s_mov_b32 exec_lo, {mask & 0xffffffff:#x}
            s_mov_b32 exec_hi, {mask >> 32:#x}
            v_lshrrev_b32 v{vU}, 4, v{vL}
            v_lshlrev_b32 v{vU}, 11, v{vU}
            v_and_b32 v{vU+1}, 15, v{vL}
            v_lshl_add_u32 v{vU}, v{vU+1}, 4, v{vU}
            """)
            tg = [vAO, vAO + 4, vBq, vPoll, vU + 4, vU + 8, vU + 20, vU + 24]
            for p in range(8): a(f"ds_read_b128 {r4(tg[p])}, v{vU} offset:{P1+256*p}")
            a("s_waitcnt lgkmcnt(0)")
            for p in range(1, 8): pkadd(tg[0], tg[0], tg[p])
            tagins(tg[0])
            a(f"""
            s_branch {L}s
            {L}:
            s_mov_b64 exec, 0
            {L}s:
            """)
            self.issue(name, f"buffer_store_dwordx4 {r4(tg[0])}, v{vFA}, s[{SW}:{SW+3}], 0 offen sc1")
            a("s_mov_b64 exec, -1")
        pubA(0, 16, 3, "qpub")
        (None if o["st4"] else self.stamp("qpub"))
        more(o["pre_qp"])
        for k in range(9):
            l8(f"G{k}", vS + 8 + k if k < 8 else vS + 5, vAg, k == 0)
            fill(f"G{k}")
            if k == 2:
                a(f"""
                v_mov_b32 v{vU}, 0
                ds_read_b128 {r4(vU+4)}, v{vU} offset:{GS}
                ds_read_b32 v{vU+8}, v{vU} offset:{GS+16}
                s_waitcnt lgkmcnt(0)
                v_pk_add_f32 {r2(vU+4)}, {r2(vU+4)}, {r2(vU+6)}
                v_add_f32 v{vU}, v{vU+4}, v{vU+5}
                v_add_f32 v{vU}, v{vU}, v{vU+8}
                v_cvt_pk_bf16_f32 v{vU}, v{vU}, v{vU}
                v_lshlrev_b32 v{vU}, 16, v{vU}
                v_mul_f32 v{vU}, {f2u(-1.4426950408889634):#x}, v{vU}
                v_exp_f32 v{vU}, v{vU}
                v_add_f32 v{vU}, 1.0, v{vU}
                v_rcp_f32 v{vU}, v{vU}
                v_cvt_pk_bf16_f32 v{vU}, v{vU}, v{vU}
                v_lshlrev_b32 v{vG}, 16, v{vU}
                v_sub_f32 v{vU}, 1.0, v{vG}
                v_cvt_pk_bf16_f32 v{vU}, v{vU}, v{vU}
                v_lshlrev_b32 v{vOMG}, 16, v{vU}
                """)
            if k == 5:
                a(f"""
                s_lshl_b32 s4, s{sJ}, 16
                s_lshl_b32 s5, s{sG}, 12
                s_add_u32 s4, s4, s5
                s_add_u32 s4, s4, {RA}
                v_lshrrev_b32 v{vU}, 4, v{vL}
                v_lshlrev_b32 v{vU}, 10, v{vU}
                v_and_b32 v{vU+1}, 15, v{vL}
                v_lshl_add_u32 v{vU}, v{vU+1}, 4, v{vU}
                v_add_u32 v{vQa}, s4, v{vU}
                """)
        for k in range(2):
            l8(f"R{k}", vS + 6 + k, vAr, k == 0)
            if k == 1: self.gdone = True
            fill(f"R{k}")
        for i in range(4): a(f"ds_write_b32 v{vU+14}, v{vAg+i} offset:{P1+32*i}")
        a(f"""
        v_mul_u32_u24 v{vRS}, 1821, v0
        v_lshrrev_b32 v{vRS}, 16, v{vRS}
        v_mul_u32_u24 v{vCH}, 36, v{vRS}
        v_sub_u32 v{vCH}, v0, v{vCH}
        v_mul_u32_u24 v{vPO}, {6*1152}, v{vRS}
        v_lshl_add_u32 v{vPO}, v{vCH}, 4, v{vPO}
        v_add_u32 v{vGU}, 4608, v{vPO}
        """)
        for i in range(4): a(f"ds_write_b32 v{vU+15}, v{vAr+i} offset:{P1+6144+32*i}")
        a(f"""
        s_bfe_u32 s4, s2, 0x10006
        s_lshl1_add_u32 s4, s{sC6}, s4
        s_mul_i32 s4, s4, {32*1152}
        v_add_u32 v{vPD}, s4, v{vPO}
        s_and_b32 s5, s2, 127
        s_mul_i32 s5, s5, {4*1152}
        s_add_u32 s5, s5, {(4096-2)*1152}
        v_lshl_add_u32 v{vPD2}, v{vCH}, 4, s5
        v_cmp_gt_u32 vcc, 5, v{vRS}
        v_cmp_gt_u32 s[4:5], 6, v{vRS}
        v_bfrev_b32 v{vU}, -2
        v_cndmask_b32 v{vPD2}, v{vPD2}, v{vPD}, vcc
        v_cndmask_b32 v{vPD}, v{vU}, v{vPD}, s[4:5]
        v_cndmask_b32 v{vPD2}, v{vU}, v{vPD2}, s[4:5]
        v_mul_u32_u24 v{vU}, 1152, v{vRS}
        v_lshl_add_u32 v{vCH}, v{vCH}, 5, v{vU}
        v_mul_u32_u24 v{vRS}, 12, v{vRS}
        v_add_u32 v{vRS}, {HL}, v{vRS}
        s_waitcnt lgkmcnt(0)
        s_barrier
        """)
        pubA(16, 64, 2, "gpub")
        (None if o["st4"] else self.stamp("gpub"))
        more(o["pre_g"])
        qload = f"buffer_load_dwordx4 {r4(vPoll)}, v{vQa}, s[{SW}:{SW+3}], 0 offen sc1"
        for k in range(o["qp"] + 1):
            self.wait(f"K{k}"); fill(f"K{k}")
        self.issue("QP", qload.replace("sc1", o["first"]))
        lastK = min(15, self.ip - 1 - big.index("K0"))
        for k in range(o["qp"] + 1, lastK + 1):
            self.wait(f"K{k}"); fill(f"K{k}")
        more(o["pre_q"])
        a(f"""
        v_bfe_u32 v{vU+1}, v0, 3, 1
        v_lshlrev_b32 v{vU+1}, 9, v{vU+1}
        v_bfe_u32 v{vU+2}, v0, 4, 2
        v_lshl_add_u32 v{vU+1}, v{vU+2}, 7, v{vU+1}
        v_and_b32 v{vU+2}, 3, v0
        v_lshl_add_u32 v{vU+1}, v{vU+2}, 5, v{vU+1}
        """)
        self.wait("QP")
        retry_loop("q", [qload], [vPoll], vU)
        a(f"""
        ds_write_b128 v{vV}, {r4(vPoll)} offset:{QL}
        s_waitcnt lgkmcnt(0)
        s_barrier
        """)
        qd = [vT, vT + 8, vU + 8, vU + 16]
        for k in range(4):
            a(f"ds_read_b128 {r4(qd[k])}, v{vU+1} offset:{QL+1024*k}")
            a(f"ds_read_b128 {r4(qd[k]+4)}, v{vU+1} offset:{QL+1024*k+16}")
        a("s_waitcnt lgkmcnt(4)")
        for i in range(0, 8, 2): a(f"v_pk_add_f32 {r2(qd[0]+i)}, {r2(qd[0]+i)}, {r2(qd[1]+i)}")
        a("s_waitcnt lgkmcnt(0)")
        for i in range(0, 8, 2): a(f"v_pk_add_f32 {r2(qd[2]+i)}, {r2(qd[2]+i)}, {r2(qd[3]+i)}")
        for i in range(0, 8, 2): a(f"v_pk_add_f32 {r2(qd[0]+i)}, {r2(qd[0]+i)}, {r2(qd[2]+i)}")
        for i in range(4): a(f"v_cvt_pk_bf16_f32 v{vBq+i}, v{qd[0]+2*i}, v{qd[0]+2*i+1}")
        (None if o["st4"] else self.stamp("qcons"))
        if o["round_scores"]: a(f"s_mov_b32 s{sC}, {f2u(128 ** -0.5):#x}")
        def qk_fin(t):
            D = vT + 4 * (t % 4)
            a(f"v_mov_b32_dpp v{vS+t}, v{D} quad_perm:[0,0,0,0] {DPP}")
            for u in range(1, 4): a(f"v_add_f32_dpp v{vS+t}, v{D+u}, v{vS+t} quad_perm:[{u},{u},{u},{u}] {DPP}")
            if t & 1:
                t0 = t - 1
                if o["round_scores"]:
                    a(f"""
                    v_cvt_pk_bf16_f32 v{vU}, v{vS+t0}, v{vS+t0+1}
                    v_lshlrev_b32 v{vS+t0}, 16, v{vU}
                    v_and_b32 v{vS+t0+1}, 0xffff0000, v{vU}
                    v_mul_f32 v{vS+t0}, s{sC}, v{vS+t0}
                    v_mul_f32 v{vS+t0+1}, s{sC}, v{vS+t0+1}
                    v_cvt_pk_bf16_f32 v{vU}, v{vS+t0}, v{vS+t0+1}
                    v_lshlrev_b32 v{vS+t0}, 16, v{vU}
                    v_and_b32 v{vS+t0+1}, 0xffff0000, v{vU}
                    """)
                if t == 1: a(f"v_max_f32 v{vU+1}, v{vS}, v{vS+1}")
                else: a(f"v_max3_f32 v{vU+1}, v{vU+1}, v{vS+t0}, v{vS+t0+1}")
        for t in range(16):
            if t > lastK: self.wait(f"K{t}")
            D = vT + 4 * (t % 4)
            a(f"v_mfma_f32_16x16x32_bf16 {r4(D)}, {r4(dst[f'K{t}'])}, {r4(vBq)}, 0")
            if t == 15: self.kdone = True
            if t > lastK: fill(f"K{t}")
            if t >= 2: qk_fin(t - 2)
        more(o["pre_s"])
        a(f"""
        v_bfe_u32 v{vU+2}, v0, 3, 1
        v_lshlrev_b32 v{vU+2}, 6, v{vU+2}
        v_lshrrev_b32 v{vU+3}, 4, v0
        v_lshl_add_u32 v{vK}, v{vU+3}, 2, v{vU+2}
        """)
        qk_fin(14); qk_fin(15)
        cexp = 1.4426950408889634 if o["round_scores"] else 128 ** -0.5 * 1.4426950408889634
        a(f"""
        ds_write_b32 v{vK}, v{vU+1} offset:{MX}
        s_mov_b32 s{sC}, {f2u(cexp):#x}
        s_waitcnt lgkmcnt(0)
        s_barrier
        """)
        for i in range(4): a(f"ds_read_b128 {r4(vT+4*i)}, v{vU+2} offset:{MX+16*i}")
        a("s_waitcnt lgkmcnt(0)")
        a(f"v_max3_f32 v{vT}, v{vT}, v{vT+1}, v{vT+2}")
        for t in range(3, 15, 2): a(f"v_max3_f32 v{vT}, v{vT}, v{vT+t}, v{vT+t+1}")
        a(f"v_max_f32 v{vMx}, v{vT}, v{vT+15}")
        a(f"v_and_b32 v{vMx}, v{vMx}, v{vTM}")
        a(f"v_mul_f32 v{vMc}, s{sC}, v{vMx}")
        for t in range(16): a(f"v_fma_f32 v{vS+t}, v{vS+t}, s{sC}, -v{vMc}")
        for t in range(16): a(f"v_exp_f32 v{vS+t}, v{vS+t}")
        a(f"v_pk_add_f32 {r2(vT)}, {r2(vS)}, {r2(vS+2)}")
        for t in range(4, 16, 2): a(f"v_pk_add_f32 {r2(vT)}, {r2(vT)}, {r2(vS+t)}")
        a(f"v_add_f32 v{vT}, v{vT}, v{vT+1}")
        a(f"ds_write_b32 v{vK}, v{vT} offset:{LS}")
        self.stamp("smax")
        Lha = self.lab("haddr")
        hl = [f"buffer_load_dwordx4 {r4(vAO)}, v{vQa}, s[{SW}:{SW+3}], 0 offen sc1",
              f"buffer_load_dwordx4 {r4(vAO+4)}, v{vQb}, s[{SW}:{SW+3}], 0 offen sc1"]
        a(f"""
        s_cmp_lg_u32 s{sJ}, 3
        s_cbranch_scc1 {Lha}
        s_lshl_b32 s4, s{sC6}, 10
        s_bfe_u32 s5, s2, 0x10006
        s_lshl_b32 s5, s5, 7
        s_add_u32 s4, s4, s5
        s_add_u32 s4, s4, {RA+256}
        v_and_b32 v{vU}, 3, v0
        v_lshlrev_b32 v{vU}, 16, v{vU}
        v_bfe_u32 v{vU+1}, v0, 5, 1
        v_lshl_add_u32 v{vU}, v{vU+1}, 8, v{vU}
        v_bfe_u32 v{vU+1}, v0, 2, 3
        v_lshl_add_u32 v{vU}, v{vU+1}, 4, v{vU}
        v_add_u32 v{vQa}, s4, v{vU}
        s_bfe_u32 s4, s2, 0x30004
        s_lshl_b32 s4, s4, 10
        s_and_b32 s5, s2, 15
        s_lshl_b32 s5, s5, 4
        s_add_u32 s4, s4, s5
        s_add_u32 s4, s4, {RA+768}
        v_and_b32 v{vU}, 15, v0
        v_lshlrev_b32 v{vU}, 14, v{vU}
        v_bfe_u32 v{vU+1}, v0, 4, 1
        v_lshl_add_u32 v{vU}, v{vU+1}, 13, v{vU}
        v_add_u32 v{vQb}, s4, v{vU}
        {Lha}:
        """)
        hcheck = None
        for t in range(16):
            B = vT + 4 * (t % 2)
            a(f"v_cvt_pk_bf16_f32 v{vU}, v{vS+t}, v{vS+t}")
            for j in range(4): a(f"v_and_b32 v{B+j}, v{vU}, v{vM[j]}")
            self.wait(f"V{t}")
            a(f"v_mfma_f32_16x16x32_bf16 {r4(vAcc)}, {r4(dst[f'V{t}'])}, {r4(B)}, {'0' if t == 0 else r4(vAcc)}")
            fill(f"V{t}", min(W, 15 + o["Wt"] - t))
            if o["st4"] and t in (1, 2, 5, 8, 9, 12): self.stamp(f"V{t}")
            if t == o["hp"]:
                a(f"s_cmp_eq_u32 s{sJ}, 3"); a("s_cselect_b64 exec, -1, 0")
                for i, ld in enumerate(hl): self.issue(f"H{i}", ld.replace("sc1", o["first"]))
                a("s_mov_b64 exec, -1")
                self.hmark = len(self.vm)
                hcheck = min(15, self.ip - big.index("V0"))
            if t == 3:
                a(f"""
                v_bfe_u32 v{vK}, v0, 3, 1
                v_lshlrev_b32 v{vK}, 9, v{vK}
                v_bfe_u32 v{vU+1}, v0, 4, 2
                v_lshl_add_u32 v{vK}, v{vU+1}, 7, v{vK}
                v_and_b32 v{vU+1}, 7, v0
                v_lshl_add_u32 v{vK}, v{vU+1}, 2, v{vK}
                v_lshl_add_u32 v{vK}, v{vJ}, 10, v{vK}
                s_lshl4_add_u32 s6, s{sG}, s{sS}
                s_mul_i32 s6, s6, 1152
                s_add_u32 s6, s6, {OB}
                v_lshl_add_u32 v{vX+4}, v{vL}, 4, s6
                s_mul_i32 s4, s{sG}, {16*1152}
                s_add_u32 s4, s4, {OB}
                v_and_b32 v{vX+5}, 15, v0
                v_mul_u32_u24 v{vX+5}, 1152, v{vX+5}
                v_add_u32 v{vX+5}, s4, v{vX+5}
                s_and_b32 s5, s{sS}, 7
                s_lshl_b32 s5, s5, 7
                s_lshr_b32 s4, s{sJ}, 1
                s_lshl_b32 s4, s4, 6
                s_add_u32 s4, s4, s5
                v_bfe_u32 v{vU+1}, v0, 4, 2
                v_lshl_add_u32 v{vX+6}, v{vU+1}, 4, v{vX+5}
                v_add_u32 v{vX+6}, s4, v{vX+6}
                s_bfe_u32 s4, s{sS}, 0x10002
                s_lshl_b32 s4, s4, 3
                v_add_u32 v{vX+5}, s4, v{vX+5}
                v_lshrrev_b32 v{vFA}, {CG.bit_length()-1}, v0
                v_mul_u32_u24 v{vFA}, {128*CG*16}, v{vFA}
                v_and_b32 v{vU+1}, {CG-1}, v0
                v_lshl_add_u32 v{vFA}, v{vU+1}, 4, v{vFA}
                s_and_b32 s4, s2, 127
                s_mul_i32 s4, s4, {CG*16}
                s_lshr_b32 s5, s2, 7
                s_mul_i32 s5, s5, {72*128*16}
                s_add_u32 s4, s4, s5
                s_add_u32 s4, s4, {FB}
                v_add_u32 v{vFA}, s4, v{vFA}
                """)
            if t == 4:
                a(f"""
                v_subrev_u32 v{vX+7}, {HL}, v{vRS}
                v_and_b32 v{vU+1}, 3, v0
                v_lshlrev_b32 v{vU+1}, 3, v{vU+1}
                v_lshl_add_u32 v{vX+7}, v{vX+7}, 4, v{vU+1}
                v_add_u32 v{vX+7}, {OLX}, v{vX+7}
                v_bfe_u32 v{vU+1}, v0, 2, 2
                s_mov_b32 s4, 0x02020202
                v_mul_lo_u32 v{vU+1}, v{vU+1}, s4
                v_add_u32 v{vU+1}, s32, v{vU+1}
                v_or_b32 v{vU+2}, v{vM[0]}, v{vM[2]}
                v_or_b32 v{vU+3}, v{vM[1]}, v{vM[3]}
                v_mov_b32 v{vU+4}, 0x0c0c0c0c
                v_bfi_b32 v{vBq+2}, v{vU+2}, v{vU+1}, v{vU+4}
                v_bfi_b32 v{vBq+3}, v{vU+3}, v{vU+1}, v{vU+4}
                s_lshr_b32 s5, s{sJ}, 1
                s_lshl_b32 s5, s5, 9
                s_add_u32 s5, s5, {OLX}
                v_lshl_add_u32 v{vX+3}, v{vL}, 3, s5
                """)
            if hcheck is not None and t == min(15, hcheck):
                hcheck = None
                Lh = self.lab("hfin")
                a(f"""
                s_cmp_lg_u32 s{sJ}, 3
                s_cbranch_scc1 {Lh}
                s_waitcnt vmcnt({len(self.vm) - self.hmark})
                """)
                retry_loop("h", hl, [vAO, vAO + 4], vU)
                for i in range(4): a(f"v_add_f32_dpp v{vAO+i}, v{vAO+i}, v{vAO+i} quad_perm:[1,0,3,2] {DPP}")
                for i in range(4): a(f"v_add_f32_dpp v{vAO+4+i}, v{vAO+4+i}, v{vAO+4+i} row_ror:1 {DPP}")
                for i in range(4): a(f"v_add_f32_dpp v{vAO+i}, v{vAO+i}, v{vAO+i} quad_perm:[2,3,0,1] {DPP}")
                for r in (2, 4, 8):
                    for i in range(4): a(f"v_add_f32_dpp v{vAO+4+i}, v{vAO+4+i}, v{vAO+4+i} row_ror:{r} {DPP}")
                a(f"""
                v_bfe_u32 v{vU+1}, v0, 5, 1
                v_mul_u32_u24 v{vU+1}, 192, v{vU+1}
                v_bfe_u32 v{vU+2}, v0, 2, 3
                v_lshl_add_u32 v{vU+1}, v{vU+2}, 4, v{vU+1}
                ds_write_b128 v{vU+1}, {r4(vAO)} offset:{HP}
                v_bfe_u32 v{vU+1}, v0, 4, 1
                v_mul_u32_u24 v{vU+1}, 192, v{vU+1}
                ds_write_b128 v{vU+1}, {r4(vAO+4)} offset:{HP+128}
                v_min_u32 v{vU+1}, 35, v{vL}
                v_lshlrev_b32 v{vU+2}, 2, v{vU+1}
                v_add_u32 v{vU+2}, {HP}, v{vU+2}
                s_waitcnt lgkmcnt(0)
                ds_read2_b32 {r2(vU+4)}, v{vU+2} offset0:0 offset1:48
                v_lshlrev_b32 v{vU+1}, 1, v{vU+1}
                s_waitcnt lgkmcnt(0)
                v_cvt_pk_bf16_f32 v{vU+4}, v{vU+4}, v{vU+5}
                v_and_b32 v{vU+5}, 0xffff0000, v{vU+4}
                v_lshlrev_b32 v{vU+4}, 16, v{vU+4}
                v_max_f32 v{vU+4}, 0, v{vU+4}
                v_mul_f32 v{vU+4}, v{vU+4}, v{vU+5}
                v_cvt_pk_bf16_f32 v{vU+4}, v{vU+4}, v{vU+4}
                ds_write_b16 v{vU+1}, v{vU+4} offset:{HL}
                {Lh}:
                """)
        assert hcheck is None
        for i in range(4): a(f"ds_write_b32 v{vK}, v{vAcc+i} offset:{OW+32*i}")
        a(f"""
        s_waitcnt lgkmcnt(0)
        s_barrier
        """)
        self.stamp("pvdone")
        Lo1 = self.lab("opub"); Lm = self.lab("mlpub")
        a(f"""
        s_cmp_eq_u32 s{sJ}, 2
        s_cbranch_scc1 {Lm}
        s_cmp_lg_u32 s{sJ}, 0
        s_cbranch_scc1 {Lo1}
        """)
        for jj in range(4): a(f"ds_read_b128 {r4(vT+4*jj)}, v{vV} offset:{OW+1024*jj}")
        a("s_waitcnt lgkmcnt(2)")
        pkadd(vT, vT, vT + 4)
        a("s_waitcnt lgkmcnt(0)")
        pkadd(vT + 8, vT + 8, vT + 12); pkadd(vT, vT, vT + 8)
        a(f"""
        s_branch {Lo1}t
        {Lm}:
        v_bfe_u32 v{vU+1}, v0, 3, 1
        v_lshlrev_b32 v{vU+1}, 6, v{vU+1}
        """)
        for i in range(4): a(f"ds_read_b128 {r4(vU+4+4*i)}, v{vU+1} offset:{LS+16*i}")
        a(f"v_add_u32 v{vX+4}, 1024, v{vX+4}")
        a("s_waitcnt lgkmcnt(0)")
        pkadd(vU + 4, vU + 4, vU + 8); pkadd(vU + 12, vU + 12, vU + 16); pkadd(vU + 4, vU + 4, vU + 12)
        a(f"""
        v_pk_add_f32 {r2(vU+4)}, {r2(vU+4)}, {r2(vU+6)}
        v_add_f32 v{vT+1}, v{vU+4}, v{vU+5}
        v_mov_b32 v{vT}, v{vMx}
        v_mov_b32_dpp v{vT+2}, v{vMx} row_shl:8 {DPP}
        v_mov_b32_dpp v{vT+3}, v{vT+1} row_shl:8 {DPP}
        s_mov_b64 exec, 1
        {Lo1}t:
        """)
        tagins(vT)
        a(f"""
        s_branch {Lo1}s
        {Lo1}:
        s_mov_b64 exec, 0
        {Lo1}s:
        """)
        self.issue("OP", f"buffer_store_dwordx4 {r4(vT)}, v{vX+4}, s[{SW}:{SW+3}], 0 offen sc1")
        a("s_mov_b64 exec, -1")
        if o["obar"]: a("s_barrier")
        (None if o["st4"] else self.stamp("opub"))
        fill("V15", o["post"])
        a(f"""
        ds_read2_b32 {r2(vX)}, v{vRS} offset0:0 offset1:1
        ds_read_b32 v{vX+2}, v{vRS} offset:8
        """)
        def flat_A(k, xsrc):
            p = k & 1; A = vU + 2 * p
            a(f"v_perm_b32 v{A}, v{xsrc+(k>>1)}, v{xsrc+(k>>1)}, v{vSel[2*p]}")
            a(f"v_perm_b32 v{A+1}, v{xsrc+(k>>1)}, v{xsrc+(k>>1)}, v{vSel[2*p+1]}")
            return A
        def flat_mfma(A, data, acc, first):
            a(f"v_mfma_f32_4x4x4_16b_bf16 {r4(acc)}, {r2(A)}, {r2(data)}, {'0' if first else r4(acc)}")
            a(f"v_mfma_f32_4x4x4_16b_bf16 {r4(acc+4)}, {r2(A)}, {r2(data+2)}, {'0' if first else r4(acc+4)}")
        def omk(st): return [f"buffer_load_dwordx4 {r4(st[0])}, v{vX+6}, s[{SW}:{SW+3}], 0 offen sc1",
                             f"buffer_load_dwordx2 {r2(st[0]+4)}, v{vX+5}, s[{SW}:{SW+3}], 0 offen offset:1024 sc1"]
        osets = [[R1 + 8 * d] for d in range(o["odepth"])]
        a("s_waitcnt lgkmcnt(0)")
        polled = False
        for k in range(6):
            A = flat_A(k, vX)
            self.wait(f"D{k}")
            flat_mfma(A, dst[f"D{k}"], vAD, k == 0)
            fill(f"D{k}", o["post"])
            if self.ip == len(big) and k >= o["opa"] and not polled:
                polled = True
                a(f"s_bitcmp1_b32 s{sJ}, 0"); a("s_cselect_b64 exec, -1, 0")
                for i, ld in enumerate(omk(osets[0])): self.issue(f"OPL{i}", ld)
                a("s_mov_b64 exec, -1")
        assert polled
        (None if o["st3"] else self.stamp("Ddone"))
        for i in range(0, 8): a(f"v_mul_f32 v{vAD+i}, v{vOMG}, v{vAD+i}")
        Lo2 = self.lab("ocons")
        a(f"""
        s_bitcmp0_b32 s{sJ}, 0
        s_cbranch_scc1 {Lo2}
        """)
        P = vS
        def ofin(st):
            a(f"v_and_b32 v{vBq}, v{st[0]+4}, v{vTM}")
            a(f"v_mov_b32 v{vBq+1}, v{st[0]+5}")
            a(f"v_pk_mul_f32 {r2(P)}, {r2(st[0])}, {r2(vG-1)} op_sel:[0,1] op_sel_hi:[1,1]")
            a(f"v_pk_mul_f32 {r2(P+2)}, {r2(st[0]+2)}, {r2(vG-1)} op_sel:[0,1] op_sel_hi:[1,1]")
        pipe_poll("o", omk, osets, vU + 4, 1, ofin, o["osleep"], extra=2)
        (None if o["st3"] else self.stamp("opollok"))
        a(f"v_max_f32_dpp v{vU+4}, v{vBq}, v{vBq} row_ror:1 {DPP}")
        for r in (2, 4, 8): a(f"v_max_f32_dpp v{vU+4}, v{vU+4}, v{vU+4} row_ror:{r} {DPP}")
        a(f"""
        v_sub_f32 v{vBq}, v{vBq}, v{vU+4}
        v_mul_f32 v{vBq}, s{sC}, v{vBq}
        v_exp_f32 v{vBq}, v{vBq}
        v_mul_f32 v{P+4}, v{vBq}, v{vBq+1}
        v_pk_mul_f32 {r2(P)}, {r2(P)}, {r2(vBq)} op_sel_hi:[1,0]
        v_pk_mul_f32 {r2(P+2)}, {r2(P+2)}, {r2(vBq)} op_sel_hi:[1,0]
        """)
        for r in (1, 2, 4, 8):
            for i in (4, 0, 1, 2, 3): a(f"v_add_f32_dpp v{P+i}, v{P+i}, v{P+i} row_ror:{r} {DPP}")
            if r == 8: self.l.insert(len(self.l) - 2, f"    v_rcp_f32 v{vBq}, v{P+4}")
        a(f"""
        v_pk_mul_f32 {r2(P)}, {r2(P)}, {r2(vBq)} op_sel_hi:[1,0]
        v_pk_mul_f32 {r2(P+2)}, {r2(P+2)}, {r2(vBq)} op_sel_hi:[1,0]
        v_cvt_pk_bf16_f32 v{P}, v{P}, v{P+1}
        v_cvt_pk_bf16_f32 v{P+1}, v{P+2}, v{P+3}
        v_perm_b32 v{P+2}, v{P+1}, v{P}, v{vBq+2}
        v_perm_b32 v{P+3}, v{P+1}, v{P}, v{vBq+3}
        ds_write_b64 v{vX+3}, {r2(P+2)}
        s_branch {Lo2}x
        {Lo2}:
        s_waitcnt vmcnt(0)
        {Lo2}x:
        v_cmp_gt_u32 vcc, 72, v0
        s_waitcnt lgkmcnt(0)
        s_barrier
        """)
        for k in range(3): a(f"ds_read2_b64 {r4(vT+4*k)}, v{vX+7} offset0:{8*k} offset1:{8*k+4}")
        (None if o["st3"] else self.stamp("B7"))
        for k in range(6):
            if k % 2 == 0: a(f"s_waitcnt lgkmcnt({0 if o['stamps'] else 2 - k // 2})")
            flat_mfma(vT + 2 * k, dst[f"O{k}"], vAD, False)
        Lf = self.lab("fpub")
        a(f"""
        ds_write_b128 v{vCH}, {r4(vAD)} offset:{LF}
        ds_write_b128 v{vCH}, {r4(vAD+4)} offset:{LF+16}
        s_waitcnt lgkmcnt(0)
        s_barrier
        s_and_saveexec_b64 s[4:5], vcc
        s_cbranch_execz {Lf}
        """)
        tg = [vT, vT + 4, vT + 8, vT + 12, vT + 16, vU + 4]
        for p in range(6): a(f"ds_read_b128 {r4(tg[p])}, v{vV} offset:{LF+1152*p}")
        a("s_waitcnt lgkmcnt(4)"); pkadd(tg[0], tg[0], tg[1])
        a("s_waitcnt lgkmcnt(2)"); pkadd(tg[2], tg[2], tg[3])
        a("s_waitcnt lgkmcnt(0)"); pkadd(tg[4], tg[4], tg[5]); pkadd(tg[0], tg[0], tg[2]); pkadd(tg[0], tg[0], tg[4])
        tagins(vT)
        a(f"""
        buffer_store_dwordx4 {r4(vT)}, v{vFA}, s[{SW}:{SW+3}], 0 offen sc1
        {Lf}:
        s_mov_b64 exec, s[4:5]
        """)
        self.stamp("fpub")
        NL = CG // 2
        a(f"""
        s_cmpk_ge_u32 s2, {R}
        s_cbranch_scc1 L_fin
        s_mul_i32 s4, s2, {128*CG*16}
        s_add_u32 s4, s4, {FB}
        """)
        if CG == 4:
            a(f"""
            v_and_b32 v{vQa}, 15, v0
            v_lshlrev_b32 v{vQa}, 6, v{vQa}
            v_bfe_u32 v{vQb}, v0, 4, 2
            v_lshl_add_u32 v{vQa}, v{vQb}, 4, v{vQa}
            v_lshl_add_u32 v{vQa}, v{vJ}, 10, v{vQa}
            v_add_u32 v{vQa}, s4, v{vQa}
            s_movk_i32 s33, 0x1000
            """)
            offs = [("0", 0), ("s33", 0)]
        elif CG == 2:
            a(f"""
            v_and_b32 v{vQa}, 15, v0
            v_lshlrev_b32 v{vQa}, 5, v{vQa}
            v_bfe_u32 v{vQb}, v0, 4, 1
            v_lshl_add_u32 v{vQa}, v{vQb}, 4, v{vQa}
            v_lshrrev_b32 v{vQb}, 5, v0
            v_lshl_add_u32 v{vQa}, v{vQb}, 9, v{vQa}
            v_add_u32 v{vQa}, s4, v{vQa}
            """)
            offs = [("0", 0)]
        else:
            a(f"""
            v_and_b32 v{vQa}, 15, v0
            v_lshlrev_b32 v{vQa}, 7, v{vQa}
            v_bfe_u32 v{vQb}, v0, 4, 2
            v_lshl_add_u32 v{vQa}, v{vQb}, 4, v{vQa}
            v_lshl_add_u32 v{vQa}, v{vJ}, 11, v{vQa}
            v_add_u32 v{vQa}, s4, v{vQa}
            s_movk_i32 s33, 0x2000
            """)
            offs = [("0", 0), ("s33", 0), ("0", 64), ("s33", 64)]
        def fmk(st): return [f"buffer_load_dwordx4 {r4(st[k])}, v{vQa}, s[{SW}:{SW+3}], {offs[k][0]} offen offset:{offs[k][1]} sc1" for k in range(NL)]
        fsets = [[R2 + 16 * d + 4 * k for k in range(NL)] for d in range(o["fdepth"])]
        F = vS
        NF = 8 if CG == 8 else 4
        def ffin(st):
            if CG == 4: pkadd(F, st[0], st[1])
            elif CG == 8: pkadd(F, st[0], st[1]); pkadd(F + 4, st[2], st[3])
            else:
                for i in range(4): a(f"v_add_f32_dpp v{F+i}, v{st[0]+i}, v{st[0]+i} row_ror:1 {DPP}")
        pipe_poll("f", fmk, fsets, vU + 4, 0, ffin, o["fsleep"])
        (None if o["st3"] else self.stamp("fpollok"))
        for r in (1, 2, 4, 8):
            if CG == 2 and r == 1: continue
            for i in range(NF): a(f"v_add_f32_dpp v{F+i}, v{F+i}, v{F+i} row_ror:{r} {DPP}")
        a(f"""
        v_lshrrev_b32 v{vU}, 4, v0
        v_lshlrev_b32 v{vU}, 4, v{vU}
        ds_write_b128 v{vU}, {r4(F)} offset:{RD}
        """)
        if CG == 8: a(f"ds_write_b128 v{vU}, {r4(F+4)} offset:{RD+256}")
        a(f"""
        s_mov_b32 s{SX}, s56
        s_mov_b32 s{SX+1}, s57
        s_mul_i32 s4, s2, {CG*8}
        """)
        if CG == 8:
            a(f"""
            v_and_b32 v{vU}, 3, v0
            v_lshrrev_b32 v{vU+1}, 4, v0
            v_lshl_add_u32 v{vU}, v{vU+1}, 2, v{vU}
            v_lshl_add_u32 v{vU}, v{vU}, 3, s4
            """)
        else:
            a(f"v_lshl_add_u32 v{vU}, v0, 3, s4")
        a(f"""
        s_waitcnt lgkmcnt(0)
        s_barrier
        s_cmp_lg_u32 s{sJ}, 0
        s_cbranch_scc1 L_fin
        s_mov_b64 exec, {'0xffffffff' if CG == 8 else '0xffff'}
        ds_read_b128 {r4(vT)}, v{vV} offset:{RD}
        s_waitcnt lgkmcnt(0)
        """)
        for r in (1, 2, 4, 8):
            if r >= min(CG, 4):
                for i in range(4): a(f"v_add_f32_dpp v{vT+i}, v{vT+i}, v{vT+i} row_ror:{r} {DPP}")
        a(f"""
        v_cvt_pk_bf16_f32 v{vT}, v{vT}, v{vT+1}
        v_cvt_pk_bf16_f32 v{vT+1}, v{vT+2}, v{vT+3}
        s_mov_b64 exec, {0xf000f if CG == 8 else (1 << CG) - 1:#x}
        buffer_store_dwordx2 {r2(vT)}, v{vU}, s[{SX}:{SX+3}], 0 offen
        s_cmp_lg_u32 s2, 0
        s_cbranch_scc1 L_fin
        s_mov_b64 exec, 1
        v_mov_b32 v{vT+4}, s{sTAG}
        v_mov_b32 v{vT+5}, 0
        buffer_store_dword v{vT+4}, v{vT+5}, s[{SW}:{SW+3}], 0 offen sc1
        L_fin:
        """)
        if o["skewm"]:
            a(f"""
            s_cmp_lg_u32 s2, 0
            s_cbranch_scc1 L_end
            s_cmp_lg_u32 s{sJ}, 0
            s_cbranch_scc1 L_end
            s_add_u32 s4, s60, 0xF0000
            s_addc_u32 s5, s61, 0
            s_load_dwordx8 s[64:71], s[4:5], 0 glc
            s_waitcnt lgkmcnt(0)
            """)
            for i in range(8): a(f"s_sub_u32 s{64+i}, s{64+i}, s16"); a(f"s_add_u32 s{64+i}, s{64+i}, 500")
            m = o["skewm"]
            if m == "late":
                a("s_add_u32 s6, s68, s69"); a("s_add_u32 s6, s6, s70"); a("s_add_u32 s6, s6, s71")
                a("s_sub_u32 s6, s6, s65"); a("s_sub_u32 s6, s6, s66"); a("s_sub_u32 s6, s6, s67"); a("s_sub_u32 s6, s6, s66")
                a("s_mul_i32 s6, s6, 5"); a("s_add_u32 s6, s6, 3000")
            else:
                a("s_min_u32 s72, s64, s65")
                for i in range(2, 8): a(f"s_min_u32 s72, s72, s{64+i}")
                if m == "max":
                    a("s_max_u32 s73, s64, s65")
                    for i in range(2, 8): a(f"s_max_u32 s73, s73, s{64+i}")
                else:
                    a(f"s_mov_b32 s73, s{64+int(m)}")
                a("s_sub_u32 s6, s73, s72"); a("s_mul_i32 s6, s6, 20"); a("s_add_u32 s6, s6, 3000")
            a(f"""
            s_min_u32 s6, s6, 20000
            L_hold:
            s_memrealtime s[4:5]
            s_waitcnt lgkmcnt(0)
            s_sub_u32 s4, s4, s16
            s_cmp_lt_u32 s4, s6
            s_cbranch_scc1 L_hold
            """)
        elif o["amp"] >= 0:
            self.stamp("end"); k = o["amp"]
            a(f"""
            s_waitcnt lgkmcnt(0)
            s_sub_u32 s6, s{self.sreg(k)}, s16
            s_min_u32 s6, s6, 3000
            s_mul_i32 s6, s6, 10
            s_add_u32 s6, s6, 3000
            L_hold:
            s_memrealtime s[4:5]
            s_waitcnt lgkmcnt(0)
            s_sub_u32 s4, s4, s16
            s_cmp_lt_u32 s4, s6
            s_cbranch_scc1 L_hold
            """)
        elif o["stamps"]:
            self.stamp("end")
            a(f"""
            s_waitcnt lgkmcnt(0)
            s_lshl_b32 s4, s2, 2
            s_add_u32 s4, s4, s{sJ}
            s_lshl_b32 s4, s4, 7
            s_add_u32 s4, s4, {STAMP_OFF:#x}
            s_add_u32 s6, s60, s4
            s_addc_u32 s7, s61, 0
            s_sub_u32 s6, s6, {o['wsoff']:#x}
            s_subb_u32 s7, s7, 0
            s_mov_b64 exec, 1
            v_mov_b32 v4, 0
            """)
            for j in range(self.nst):
                a(f"""
                v_mov_b32 v2, s{self.sreg(j)}
                v_mov_b32 v3, s{self.sreg(j)+1}
                global_store_dwordx2 v4, v[2:3], s[6:7] offset:{8*j}
                s_nop 1
                """)
        if o["hold"]:
            a(f"""
            s_waitcnt lgkmcnt(0)
            L_hold:
            s_memrealtime s[4:5]
            s_waitcnt lgkmcnt(0)
            s_sub_u32 s4, s4, s16
            s_cmp_lt_u32 s4, {o["hold"]}
            s_cbranch_scc1 L_hold
            """)
        a("L_end:")
        a("s_endpgm")
        cl = []
        for x in self.l:
            if cl and cl[-1].strip() == "s_mov_b64 exec, -1" and x.strip().startswith("s_mov_b64 exec,"): cl.pop()
            if len(cl) > 1 and cl[-2].strip() == "s_mov_b64 exec, -1" and cl[-1].strip().startswith("s_waitcnt vmcnt") and x.strip().startswith("s_mov_b64 exec,"):
                del cl[-2]
            cl.append(x)
        c2 = []
        for x in cl:
            c2.append(x)
        body = "\n".join(fix(c2)) + "\n"
        head = open("cdna_kernels/" + KN + ".s.ref").read().split("; Override launch")[0]
        if self.names: head += "; stamps: " + " ".join(self.names) + "\n"
        return head + f"""; @launch grid=(256,1,1) block=(256,1,1) lds={o['lds']}
.amdgcn_target "amdgcn-amd-amdhsa--gfx950"
.text
.globl {KN}_kernel
.p2align 8
.type {KN}_kernel,@function
{KN}_kernel:
""" + body + f""".section .rodata,"a"
.p2align 6
.amdhsa_kernel {KN}_kernel
  .amdhsa_next_free_vgpr 256
  .amdhsa_next_free_sgpr 102
  .amdhsa_accum_offset 256
  .amdhsa_group_segment_fixed_size 0
  .amdhsa_kernarg_size 104
  .amdhsa_user_sgpr_count 2
  .amdhsa_user_sgpr_kernarg_segment_ptr 1
  .amdhsa_system_sgpr_workgroup_id_x 1
.end_amdhsa_kernel
"""

if __name__ == "__main__":
    out = sys.argv[1]; opt = {}
    for kv in sys.argv[2:]:
        k, v = kv.split("="); opt[k] = eval(v)
    open(out, "w").write(Gen(**opt).build())
```

```python
import sys, struct
from hazard import fix
KN = "gated_mix__sliding_block_cached__glu_gated_reglu__decode"
STAMP_OFF = 0x30000000
def f2u(x): return struct.unpack("<I", struct.pack("<f", x))[0]

class Gen:
    def __init__(self, **opt):
        self.o = dict(W=7, stamps=False, wsoff=0x3fe00000, qp=2, hp=3, CG=4, round_scores=True, prefetch=0, jitter=0,
                      hold=0, amp=-1, lds=90112, nt="nt", spin=20000, pre_g=2, pre_q=2, pre_s=3, Wt=3, fdepth=1, odepth=1,
                      cnt=0, post=12, osleep=0, fsleep=0, pre_qp=0, first='sc1', pt=0, ptf='', st3=0, early=3, skewm='', adapt=11, flagrd=5, nearly=7, lpost=8, st4=0, atime=0, obar=1, opa=2, fsel=0, tlb=0, outf='')
        for k in opt: assert k in self.o, k
        self.o.update(opt)
        self.l = []; self.vm = []; self.nl = 0; self.nst = 0; self.names = []
    def a(self, s):
        for x in s.strip().split("\n"):
            x = x.strip()
            if x: self.l.append(x if x.endswith(":") else "    " + x)
    def lab(self, p):
        self.nl += 1
        return f"L_{p}{self.nl}"
    def issue(self, label, s):
        self.a(s); self.vm.append(label)
    def wait(self, label):
        n = len(self.vm) - 1 - self.vm.index(label)
        assert n <= 63
        self.a(f"s_waitcnt vmcnt({n})")
    def sreg(self, k): return 16 + 2 * k if k < 8 else 36 + 2 * (k - 8)
    def stamp(self, name=""):
        if self.o["stamps"]:
            assert self.nst < 16
            r = self.sreg(self.nst)
            self.a(f"s_memrealtime s[{r}:{r+1}]")
            self.names.append(name); self.nst += 1

    def build(self):
        o = self.o; a = self.a; nt = o["nt"]; W = o["W"]
        RA, OB, FB, MLB = 0x1000, 0x50000, 0xA0000, 0xF8000
        CG = o["CG"]; R = 144 // CG
        XL, P1, QL, MX, LS, GS, HP, HL, OL, OW, LF, RD, DUM = 0, 2560, 10752, 14848, 14976, 15104, 15232, 15616, 15744, 15872, 19968, 29184, 29696
        OLX = 30208
        vL = 1; vM = [2, 3, 4, 5]; vSel = [6, 7, 8, 9]
        vQa, vQb, vGU, vK, vV, vPD, vPD2, vPO, vTM = 10, 11, 12, 13, 14, 15, 16, 18, 17
        vMx, vMc, vFA, vRS = 19, 20, 21, 22
        vX = 24
        vS = 32; vBq = 48; vAq = 52; vAg = 56; vAr = 60; vAD = 56; vAO = 64; vT = 72; vPoll = 92
        vCH, vG, vOMG, vJ = 96, 97, 98, 99
        R1 = 100; R2 = 164; vU = 228
        vAcc = vAq
        dst = {}
        for i in range(5): dst[f"Q{i}"] = R1 + 4 * i
        for i in range(9): dst[f"G{i}"] = R1 + 20 + 4 * i
        for i in range(2): dst[f"R{i}"] = R1 + 56 + 4 * i
        for i in range(16): dst[f"K{i}"] = R2 + 4 * i; dst[f"V{i}"] = R1 + 4 * i
        for i in range(6): dst[f"D{i}"] = R2 + 4 * i; dst[f"O{i}"] = R2 + 24 + 4 * i
        big = [f"Q{i}" for i in range(5)] + [f"G{i}" for i in range(9)] + ["R0", "R1"] + [f"K{i}" for i in range(16)] + \
              [f"V{i}" for i in range(16)] + [f"D{i}" for i in range(6)] + [f"O{i}" for i in range(6)]
        sTAG = 62; sJ = 3; sKQ, sG, sS, sC6 = 8, 9, 10, 11; s4608 = 12
        sKV = 13; sGU = 14; sC = 15
        SQ, SGU, SK, SR, SD, SO, SX, SV, SW = 64, 68, 72, 76, 80, 84, 88, 92, 96
        sE, sLt = 34, 100
        r4 = lambda v: f"v[{v}:{v+3}]"
        r2 = lambda v: f"v[{v}:{v+1}]"
        DPP = "row_mask:0xf bank_mask:0xf"
        self.ip = 0; self.gdone = self.kdone = False
        def issue_next():
            lb = big[self.ip]; self.ip += 1
            d = r4(dst[lb]); k = int(lb[1:]); c = lb[0]
            if c == "V": assert self.gdone
            if c in "DO": assert self.kdone
            if c == "Q":
                if k == 0: self.issue(lb, f"buffer_load_dwordx4 {d}, v{vQa}, s[{SQ}:{SQ+3}], 0 offen {nt}")
                elif k < 4: self.issue(lb, f"buffer_load_dwordx4 {d}, v{vQa}, s[{SQ}:{SQ+3}], s{32+k} offen {nt}")
                else: self.issue(lb, f"buffer_load_dwordx4 {d}, v{vQb}, s[{SQ}:{SQ+3}], 0 offen {nt}")
            elif c == "G":
                if k == 0: a(f"s_mov_b32 s{sGU}, 0")
                elif k < 8: a(f"s_addk_i32 s{sGU}, 9216")
                if k < 8: self.issue(lb, f"buffer_load_dwordx4 {d}, v{vGU}, s[{SGU}:{SGU+3}], s{sGU} offen {nt}")
                else: self.issue(lb, f"buffer_load_dwordx4 {d}, v{vPD}, s[{SGU}:{SGU+3}], 0 offen {nt}")
            elif c == "R":
                self.issue(lb, f"buffer_load_dwordx4 {d}, v{vPD2 if k == 0 else vPO}, s[{SR}:{SR+3}], 0 offen {nt}")
            elif c in "KV":
                if k == 0: a(f"s_mov_b32 s{sKV}, 0")
                else: a(f"s_addk_i32 s{sKV}, 4096")
                sr, vo = (SK, vK) if c == "K" else (SV, vV)
                self.issue(lb, f"buffer_load_dwordx4 {d}, v{vo}, s[{sr}:{sr+3}], s{sKV} offen {nt}")
            else:
                sr = SD if c == "D" else SO
                vo = vPO if c == "O" else (vPD if k < 2 else vPD2)
                so, im = ("0", k * 1152) if k < 4 else (f"s{s4608}", (k - 4) * 1152)
                if c == "O" and k >= 4: vo, so = vGU, "0"
                self.issue(lb, f"buffer_load_dwordx4 {d}, v{vo}, s[{sr}:{sr+3}], {so} offen offset:{im} {nt}")
        def fill(label, w=None):
            w = W if w is None else w
            idx = big.index(label)
            while self.ip < len(big) and self.ip <= idx + w: issue_next()
        def more(n):
            for _ in range(n):
                if self.ip < len(big): issue_next()
        def tagins(v):
            for i in range(4): a(f"v_and_or_b32 v{v+i}, v{v+i}, v{vTM}, s{sTAG}")
        def tagchk(vs, acc, extra=0):
            first = True
            for v in vs:
                for i in range(4 + extra):
                    if first: a(f"v_xor_b32 v{acc}, s{sTAG}, v{v+i}"); first = False
                    else: a(f"v_bitop3_b32 v{acc}, v{v+i}, s{sTAG}, v{acc} bitop3:0xbe")
            a(f"v_and_b32 v{acc}, 0xff, v{acc}")
            a(f"v_cmp_ne_u32 vcc, 0, v{acc}")
        def retry_loop(name, loads, vs, acc):
            Lok = self.lab(name + "ok"); Lre = self.lab(name + "re")
            a(f"s_mov_b32 s7, {o['spin']}")
            a(f"{Lre}:")
            tagchk(vs, acc)
            a(f"s_cbranch_vccz {Lok}")
            for ld in loads: a(ld)
            a("s_waitcnt vmcnt(0)")
            a("s_sub_u32 s7, s7, 1")
            a("s_cmp_lg_u32 s7, 0")
            a(f"s_cbranch_scc1 {Lre}")
            a(f"{Lok}:")
            if o["stamps"] and o["cnt"] == 1:
                r = self.sreg(self.nst); self.names.append(name + "retry"); self.nst += 1
                a(f"s_sub_u32 s7, {o['spin']}, s7"); a(f"s_mul_i32 s7, s7, 100")
                a(f"s_add_u32 s{r}, s16, s7"); a(f"s_addc_u32 s{r+1}, s17, 0")
        def pipe_poll(name, mk, sets, acc, first_issued, fin, slp=0, extra=0):
            n = len(mk(sets[0])); D = len(sets)
            Lx = self.lab(name + "x"); Lre = self.lab(name + "re")
            Lmv = [self.lab(name + "mv") for _ in range(D)]
            for d in range(first_issued, D):
                for ld in mk(sets[d]): a(ld)
            a(f"s_mov_b32 s7, {o['spin']}")
            a(f"{Lre}:")
            for d in range(D):
                a(f"s_waitcnt vmcnt({n*(D-1)})")
                tagchk(sets[d], acc, extra)
                a(f"s_cbranch_vccz {Lmv[d]}")
                if slp: a(f"s_sleep {slp}")
                for ld in mk(sets[d]): a(ld)
            a("s_sub_u32 s7, s7, 1")
            a("s_cmp_lg_u32 s7, 0")
            a(f"s_cbranch_scc1 {Lre}")
            for d in range(D - 1, -1, -1):
                a(f"{Lmv[d]}:")
                fin(sets[d])
                if d: a(f"s_branch {Lx}")
            a(f"{Lx}:")
        def pkadd(d, x, y):
            a(f"v_pk_add_f32 {r2(d)}, {r2(x)}, {r2(y)}"); a(f"v_pk_add_f32 {r2(d+2)}, {r2(x+2)}, {r2(y+2)}")

        self.stamp("start")
        if o["hold"]: a("s_memrealtime s[16:17]")
        a(f"""
        s_load_dwordx16 s[36:51], s[0:1], 0
        s_cmpk_ge_u32 s2, 0x100
        s_cbranch_scc1 L_end
        """)
        if o["jitter"]:
            a(f"""s_mul_i32 s4, s2, 0x9e3779b1
            s_lshr_b32 s4, s4, {32-o["jitter"]}
            L_jit:
            s_cmp_eq_u32 s4, 0
            s_cbranch_scc1 L_jitd
            s_sleep 40
            s_sub_u32 s4, s4, 1
            s_branch L_jit
            L_jitd:""")
        a(f"""
        s_lshr_b32 s{sKQ}, s2, 6
        s_mul_i32 s4, s{sKQ}, {144*8192}
        s_and_b32 s{sC6}, s2, 63
        s_lshl_b32 s5, s{sC6}, 7
        s_add_u32 s4, s4, s5
        v_lshrrev_b32 v{vT}, 3, v0
        v_and_b32 v{vT+1}, 7, v0
        v_lshlrev_b32 v{vT+1}, 4, v{vT+1}
        v_lshl_add_u32 v{vQa}, v{vT}, 15, v{vT+1}
        s_mov_b32 s{SQ+2}, {143*8192+128}
        s_mov_b32 s{SQ+3}, 0x20000
        s_movk_i32 s33, 0x2000
        s_movk_i32 s34, 0x4000
        s_movk_i32 s35, 0x6000
        s_waitcnt lgkmcnt(0)
        s_add_u32 s{SQ}, s42, s4
        s_addc_u32 s{SQ+1}, s43, 0
        """)
        if o["st3"]: self.stamp("karg")
        more(4)
        if o["st3"]: self.stamp("Q3iss")
        a(f"""
        s_load_dwordx8 s[52:59], s[0:1], 64
        s_load_dwordx2 s[60:61], s[0:1], 96
        v_lshl_add_u32 v{vQb}, v{vT}, 13, v{vT+1}
        v_add_u32 v{vQb}, {128*8192}, v{vQb}
        v_lshrrev_b32 v{vJ}, 6, v0
        v_lshlrev_b32 v{vV}, 4, v0
        v_readfirstlane_b32 s{sJ}, v{vJ}
        """)
        more(1)
        a(f"""
        s_mov_b32 s{SX}, s36
        s_mov_b32 s{SX+1}, s37
        s_movk_i32 s{SX+2}, 1152
        s_mov_b32 s{SX+3}, 0x20000
        """)
        self.issue("X", f"buffer_load_dwordx4 {r4(vX)}, v{vV}, s[{SX}:{SX+3}], 0 offen")
        a(f"""
        s_bitcmp1_b32 s{sJ}, 0
        s_cselect_b32 s{SGU}, s50, s48
        s_cselect_b32 s{SGU+1}, s51, s49
        s_lshr_b32 s6, s{sJ}, 1
        s_lshl1_add_u32 s6, s{sKQ}, s6
        s_mul_i32 s4, s6, {72*9216}
        s_add_u32 s4, s4, s5
        s_add_u32 s{SGU}, s{SGU}, s4
        s_addc_u32 s{SGU+1}, s{SGU+1}, 0
        s_mov_b32 s{SGU+2}, {71*9216+128}
        s_mov_b32 s{SGU+3}, 0x20000
        v_and_b32 v{vT+2}, 7, v{vT}
        v_mul_u32_u24 v{vGU}, {8*9216}, v{vT+2}
        v_add_u32 v{vGU}, v{vGU}, v{vT+1}
        """)
        more(2)
        a(f"""
        v_mul_u32_u24 v{vPD}, 9216, v{vT+2}
        v_add_u32 v{vPD}, v{vPD}, v{vT+1}
        v_add_u32 v{vPD}, {64*9216}, v{vPD}
        s_waitcnt lgkmcnt(0)
        s_mov_b32 s{SR}, s54
        s_mov_b32 s{SR+1}, s55
        s_movk_i32 s{SR+2}, 1152
        s_mov_b32 s{SR+3}, 0x20000
        """)
        self.issue("GW", f"buffer_load_dwordx4 {r4(vX+4)}, v{vV}, s[{SR}:{SR+3}], 0 offen")
        if o["prefetch"]:
            a(f"""
            s_getpc_b64 s[4:5]
            s_lshr_b32 s7, s2, 3
            s_mul_i32 s7, s7, {128*o['prefetch']}
            v_and_b32 v{vT+3}, 63, v0
            v_lshl_add_u32 v{vT+3}, v{vT+3}, 7, s7
            s_mov_b64 exec, {(1 << o['prefetch']) - 1}
            """)
            self.issue("PF", f"global_load_dword v{vMc}, v{vT+3}, s[4:5]")
            a("s_mov_b64 exec, -1")
        more(o["early"])
        TLB = ""
        if o["tlb"]:
            TLB = f"""s_load_dword s33, s[{SK}:{SK+1}], 0
            s_load_dword s33, s[{SV}:{SV+1}], 0
            s_load_dword s33, s[{SO}:{SO+1}], 0
            s_load_dword s33, s[{SR}:{SR+1}], 0
            s_mul_i32 s4, s{sC6}, {64*1152}
            s_add_u32 s4, s52, s4
            s_addc_u32 s5, s53, 0
            s_load_dword s33, s[4:5], 0
            s_add_u32 s4, s52, {4300*1152}
            s_addc_u32 s5, s53, 0
            s_load_dword s33, s[4:5], 0"""
        a(f"""
        s_add_u32 s60, s60, {o['wsoff']:#x}
        s_addc_u32 s61, s61, 0
        s_load_dword s{sTAG}, s[60:61], 0
        s_bitcmp1_b32 s2, 3
        s_cselect_b32 s{SR}, s50, s48
        s_cselect_b32 s{SR+1}, s51, s49
        s_lshr_b32 s7, s2, 4
        s_mul_i32 s4, s7, {36*9216}
        s_and_b32 s5, s2, 7
        s_lshl_b32 s5, s5, 7
        s_add_u32 s4, s4, s5
        s_add_u32 s4, s4, 8192
        s_add_u32 s{SR}, s{SR}, s4
        s_addc_u32 s{SR+1}, s{SR+1}, 0
        s_mov_b32 s{SR+2}, {35*9216+128}
        v_mul_u32_u24 v{vPD2}, 9216, v{vT}
        v_add_u32 v{vPD2}, v{vPD2}, v{vT+1}
        v_add_u32 v{vPO}, {32*9216}, v{vPD2}
        s_lshr_b32 s{sG}, s{sC6}, 2
        s_and_b32 s{sS}, s2, 3
        s_lshl2_add_u32 s{sS}, s{sKQ}, s{sS}
        s_lshl_b32 s4, s{sG}, 24
        s_lshl_b32 s5, s{sS}, 16
        s_add_u32 s4, s4, s5
        s_add_u32 s4, s4, {61440*256}
        s_add_u32 s{SK}, s38, s4
        s_addc_u32 s{SK+1}, s39, 0
        s_mov_b32 s{SK+2}, 0x10000
        s_mov_b32 s{SK+3}, 0x20000
        s_add_u32 s{SV}, s40, s4
        s_addc_u32 s{SV+1}, s41, 0
        s_mov_b32 s{SV+2}, 0x10000
        s_mov_b32 s{SV+3}, 0x20000
        s_lshr_b32 s4, s2, 7
        s_mul_i32 s4, s4, 576
        s_add_u32 s{SD}, s52, s4
        s_addc_u32 s{SD+1}, s53, 0
        s_mov_b32 s{SD+2}, {4607*1152+576}
        s_mov_b32 s{SD+3}, 0x20000
        s_and_b32 s5, s{sS}, 7
        s_lshl3_add_u32 s5, s{sG}, s5
        s_mul_i32 s5, s5, {32*1152}
        s_add_u32 s4, s4, s5
        s_add_u32 s{SO}, s44, s4
        s_addc_u32 s{SO+1}, s45, 0
        s_mov_b32 s{SO+2}, {31*1152+576}
        s_mov_b32 s{SO+3}, 0x20000
        s_mov_b32 s{SW}, s60
        s_mov_b32 s{SW+1}, s61
        s_mov_b32 s{SW+2}, 0x100000
        s_mov_b32 s{SW+3}, 0x20000
        s_movk_i32 s{s4608}, 4608
        {TLB}
        v_and_b32 v{vL}, 63, v0
        v_and_b32 v{vU}, 3, v0
        v_lshlrev_b32 v{vU}, 4, v{vU}
        v_bfe_u32 v{vU+1}, v0, 2, 2
        v_lshl_add_u32 v{vU}, v{vU+1}, 8, v{vU}
        v_bfe_u32 v{vU+1}, v0, 4, 2
        v_lshl_add_u32 v{vU}, v{vU+1}, 6, v{vU}
        v_lshl_add_u32 v{vK}, v{vJ}, 10, v{vU}
        v_mov_b32 v{vTM}, 0xffffff00
        v_and_b32 v{vU}, 1, v0
        v_lshlrev_b32 v{vU}, 4, v{vU}
        v_mov_b32 v{vU+1}, 0xffff
        v_lshlrev_b32 v{vU}, v{vU}, v{vU+1}
        v_bfe_u32 v{vU+1}, v0, 1, 2
        v_cmp_eq_u32 s[4:5], 0, v{vU+1}
        v_cmp_eq_u32 s[100:101], 1, v{vU+1}
        v_cmp_eq_u32 vcc, 2, v{vU+1}
        v_cndmask_b32 v{vM[0]}, 0, v{vU}, s[4:5]
        v_cndmask_b32 v{vM[1]}, 0, v{vU}, s[100:101]
        v_cmp_eq_u32 s[100:101], 3, v{vU+1}
        v_cndmask_b32 v{vM[2]}, 0, v{vU}, vcc
        v_or_b32 v{vU+3}, v{vM[0]}, v{vM[2]}
        v_cndmask_b32 v{vM[3]}, 0, v{vU}, s[100:101]
        v_or_b32 v{vU+1}, v{vM[1]}, v{vM[3]}
        v_mov_b32 v{vU+2}, 0x0c0c0c0c
        s_mov_b32 s32, 0x01000100
        s_mov_b32 s63, 0x03020302
        v_bfi_b32 v{vSel[0]}, v{vU+3}, s32, v{vU+2}
        v_bfi_b32 v{vSel[1]}, v{vU+1}, s32, v{vU+2}
        v_bfi_b32 v{vSel[2]}, v{vU+3}, s63, v{vU+2}
        v_bfi_b32 v{vSel[3]}, v{vU+1}, s63, v{vU+2}
        """)
        if o["pt"]:
            a(f"""
            s_lshl_b32 s4, s2, 10
            s_add_u32 s4, s4, {RA}
            s_lshl4_add_u32 s5, s{sG}, s{sS}
            s_mul_i32 s5, s5, 1152
            s_add_u32 s5, s5, {OB}
            s_cmp_eq_u32 s{sJ}, 1
            s_cselect_b32 s4, s5, s4
            s_and_b32 s5, s2, 127
            s_mul_i32 s5, s5, {CG*16}
            s_lshr_b32 s100, s2, 7
            s_lshl1_add_u32 s100, s100, s{sJ}
            s_sub_u32 s100, s100, 2
            s_mul_i32 s100, s100, {9*128*CG*16}
            s_add_u32 s5, s5, s100
            s_add_u32 s5, s5, {FB}
            s_cmp_ge_u32 s{sJ}, 2
            s_cselect_b32 s4, s5, s4
            s_cselect_b32 s5, {(128*CG*16).bit_length()-1}, 7
            v_lshlrev_b32 v{vU}, s5, v{vL}
            v_add_u32 v{vU}, s4, v{vU}
            s_mov_b64 exec, 0x1ff
            """)
            self.issue("PT", f"buffer_load_dword v{vMx}, v{vU}, s[{SW}:{SW+3}], 0 offen {o['ptf']}")
            a("s_mov_b64 exec, -1")
        a(f"""
        v_lshlrev_b32 v{vU}, 2, v{vL}
        v_mov_b32 v{vU+4}, 0
        v_mov_b32 v{vU+5}, 0
        v_mov_b32 v{vU+6}, 0
        v_mov_b32 v{vU+7}, 0
        ds_write_b32 v{vU}, v{vU+4} offset:{HL}
        ds_write_b32 v{vU}, v{vU+4} offset:{XL+2304}
        v_lshlrev_b32 v{vU+1}, 3, v{vL}
        ds_write_b64 v{vU+1}, {r2(vU+4)} offset:{OLX+1024}
        v_and_b32 v{vU+1}, 1, v{vJ}
        v_lshlrev_b32 v{vU+1}, 11, v{vU+1}
        v_lshl_add_u32 v{vU+1}, v{vL}, 4, v{vU+1}
        ds_write_b128 v{vU+1}, {r4(vU+4)} offset:{P1+2048+1024}
        """)
        a(f"""
        s_mul_i32 s4, s{sKQ}, 576
        v_lshl_add_u32 v{vU+8}, v{vT}, 4, s4
        v_lshl_add_u32 v{vU+9}, v{vT}, 2, s4
        s_mul_i32 s4, s6, 288
        v_lshl_add_u32 v{vU+10}, v{vT+2}, 5, s4
        v_lshl_add_u32 v{vU+11}, v{vT+2}, 2, s4
        s_mul_i32 s4, s7, 144
        v_lshl_add_u32 v{vU+12}, v{vT}, 2, s4
        v_bfe_u32 v{vU+4}, v0, 3, 1
        v_bfe_u32 v{vU+5}, v0, 5, 1
        v_cmp_eq_u32 vcc, v{vU+4}, v{vU+5}
        v_bfe_u32 v{vU+4}, v0, 4, 1
        v_lshlrev_b32 v{vU+4}, 7, v{vU+4}
        v_lshl_add_u32 v{vU+4}, v{vU+5}, 8, v{vU+4}
        v_lshrrev_b32 v{vU+5}, 2, v{vT+1}
        v_add_u32 v{vU+4}, v{vU+4}, v{vU+5}
        v_lshl_add_u32 v{vU+13}, v{vJ}, 9, v{vU+4}
        s_and_b32 s4, s{sJ}, 1
        s_lshl_b32 s4, s4, 11
        s_lshr_b32 s5, s{sJ}, 1
        s_lshl_b32 s5, s5, 9
        s_add_u32 s4, s4, s5
        s_add_u32 s4, s4, 2048
        v_add_u32 v{vU+14}, s4, v{vU+4}
        v_mov_b32 v{vU+5}, {DUM-P1}
        v_cndmask_b32 v{vU+13}, v{vU+5}, v{vU+13}, vcc
        v_cndmask_b32 v{vU+14}, v{vU+5}, v{vU+14}, vcc
        v_mov_b32 v{vU+5}, {DUM-P1-6144}
        v_lshl_add_u32 v{vU+15}, v{vJ}, 9, v{vU+4}
        v_cndmask_b32 v{vU+15}, v{vU+5}, v{vU+15}, vcc
        v_lshlrev_b32 v{vU+16}, 5, v0
        v_min_u32 v{vU+16}, 2304, v{vU+16}
        """)
        if o["skewm"]:
            a(f"""
            s_waitcnt lgkmcnt(0)
            s_lshl_b32 s4, s2, 2
            s_add_u32 s4, s4, 0xF0000
            v_mov_b32 v{vBq}, s16
            v_mov_b32 v{vBq+1}, s4
            s_mov_b64 exec, 1
            """)
            self.issue("SK", f"buffer_store_dword v{vBq}, v{vBq+1}, s[{SW}:{SW+3}], 0 offen sc1")
            a("s_mov_b64 exec, -1")
        (None if o["st4"] else self.stamp("prol"))
        if o["st3"]:
            self.wait("Q0"); self.stamp("Q0land")
        self.wait("X")
        if o["st3"]: self.stamp("Xland")
        for i in range(4):
            a(f"v_perm_b32 v{vT+2*i}, v{vX+i}, v{vX+i}, s32")
            a(f"v_perm_b32 v{vT+2*i+1}, v{vX+i}, v{vX+i}, s63")
        a(f"""
        ds_write_b128 v{vU+16}, {r4(vT)} offset:{XL}
        ds_write_b128 v{vU+16}, {r4(vT+4)} offset:{XL+16}
        """)
        fill("Q4")
        a(f"""
        s_waitcnt lgkmcnt(0)
        s_barrier
        ds_read_b128 {r4(vS)}, v{vU+8} offset:{XL}
        ds_read_b32 v{vS+4}, v{vU+9} offset:{XL+512}
        ds_read_b128 {r4(vS+8)}, v{vU+10} offset:{XL}
        ds_read_b128 {r4(vS+12)}, v{vU+10} offset:{XL+16}
        ds_read_b32 v{vS+5}, v{vU+11} offset:{XL+256}
        ds_read_b32 v{vS+6}, v{vU+12} offset:{XL}
        ds_read_b32 v{vS+7}, v{vU+12} offset:{XL+128}
        s_add_u32 s{sTAG}, s{sTAG}, 1
        s_and_b32 s{sTAG}, s{sTAG}, 0xff
        s_waitcnt lgkmcnt(5)
        """)
        nb = [0]
        def l8(lbl, xreg, acc, first, dowait=True):
            B = vT + 4 * (nb[0] % 4); nb[0] += 1
            for j in range(4): a(f"v_and_b32 v{B+j}, v{xreg}, v{vM[j]}")
            if dowait: self.wait(lbl)
            a(f"v_mfma_f32_16x16x32_bf16 {r4(acc)}, {r4(dst[lbl])}, {r4(B)}, {'0' if first else r4(acc)}")
        for t in range(5): l8(f"Q{t}", vS + t, vAq, t == 0, False)
        self.wait("GW")
        for i in range(4):
            a(f"""
            v_lshlrev_b32 v{vU}, 16, v{vX+i}
            v_and_b32 v{vU+1}, 0xffff0000, v{vX+i}
            v_lshlrev_b32 v{vU+2}, 16, v{vX+4+i}
            v_and_b32 v{vU+3}, 0xffff0000, v{vX+4+i}
            v_pk_mul_f32 {r2(vU)}, {r2(vU)}, {r2(vU+2)}
            v_cvt_pk_bf16_f32 v{vU}, v{vU}, v{vU+1}
            v_and_b32 v{vU+1}, 0xffff0000, v{vU}
            v_lshlrev_b32 v{vU}, 16, v{vU}
            """)
            if i == 0: a(f"v_pk_mul_f32 {r2(vU+4)}, {r2(vU)}, 1.0 op_sel_hi:[1,0]")
            else: a(f"v_pk_add_f32 {r2(vU+4)}, {r2(vU+4)}, {r2(vU)}")
        for i in range(4): a(f"ds_write_b32 v{vU+13}, v{vAq+i} offset:{P1+32*i}")
        a(f"v_add_f32 v{vU+4}, v{vU+4}, v{vU+5}")
        for r in (1, 2, 4, 8): a(f"v_add_f32_dpp v{vU+4}, v{vU+4}, v{vU+4} row_ror:{r} {DPP}")
        a(f"""
        v_lshrrev_b32 v{vU+1}, 4, v0
        v_lshlrev_b32 v{vU+1}, 2, v{vU+1}
        ds_write_b32 v{vU+1}, v{vU+4} offset:{GS}
        s_lshl_b32 s4, s2, 10
        s_add_u32 s4, s4, {RA}
        v_lshl_add_u32 v{vFA}, v{vL}, 4, s4
        s_waitcnt lgkmcnt(0)
        s_barrier
        """)
        def pubA(lo, hi, wave, name):
            L = self.lab(name)
            mask = ((1 << hi) - 1) ^ ((1 << lo) - 1)
            a(f"""
            s_cmp_lg_u32 s{sJ}, {wave}
            s_cbranch_scc1 {L}
            s_mov_b32 exec_lo, {mask & 0xffffffff:#x}
            s_mov_b32 exec_hi, {mask >> 32:#x}
            v_lshrrev_b32 v{vU}, 4, v{vL}
            v_lshlrev_b32 v{vU}, 11, v{vU}
            v_and_b32 v{vU+1}, 15, v{vL}
            v_lshl_add_u32 v{vU}, v{vU+1}, 4, v{vU}
            """)
            tg = [vAO, vAO + 4, vBq, vPoll, vU + 4, vU + 8, vU + 20, vU + 24]
            for p in range(8): a(f"ds_read_b128 {r4(tg[p])}, v{vU} offset:{P1+256*p}")
            a("s_waitcnt lgkmcnt(0)")
            for p in range(1, 8): pkadd(tg[0], tg[0], tg[p])
            tagins(tg[0])
            a(f"""
            s_branch {L}s
            {L}:
            s_mov_b64 exec, 0
            {L}s:
            """)
            self.issue(name, f"buffer_store_dwordx4 {r4(tg[0])}, v{vFA}, s[{SW}:{SW+3}], 0 offen sc1")
            a("s_mov_b64 exec, -1")
        pubA(0, 16, 3, "qpub")
        (None if o["st4"] else self.stamp("qpub"))
        more(o["pre_qp"])
        for k in range(9):
            l8(f"G{k}", vS + 8 + k if k < 8 else vS + 5, vAg, k == 0)
            fill(f"G{k}")
            if k == 2:
                a(f"""
                v_mov_b32 v{vU}, 0
                ds_read_b128 {r4(vU+4)}, v{vU} offset:{GS}
                ds_read_b32 v{vU+8}, v{vU} offset:{GS+16}
                s_waitcnt lgkmcnt(0)
                v_pk_add_f32 {r2(vU+4)}, {r2(vU+4)}, {r2(vU+6)}
                v_add_f32 v{vU}, v{vU+4}, v{vU+5}
                v_add_f32 v{vU}, v{vU}, v{vU+8}
                v_cvt_pk_bf16_f32 v{vU}, v{vU}, v{vU}
                v_lshlrev_b32 v{vU}, 16, v{vU}
                v_mul_f32 v{vU}, {f2u(-1.4426950408889634):#x}, v{vU}
                v_exp_f32 v{vU}, v{vU}
                v_add_f32 v{vU}, 1.0, v{vU}
                v_rcp_f32 v{vU}, v{vU}
                v_cvt_pk_bf16_f32 v{vU}, v{vU}, v{vU}
                v_lshlrev_b32 v{vG}, 16, v{vU}
                v_sub_f32 v{vU}, 1.0, v{vG}
                v_cvt_pk_bf16_f32 v{vU}, v{vU}, v{vU}
                v_lshlrev_b32 v{vOMG}, 16, v{vU}
                """)
            if k == 5:
                a(f"""
                s_lshl_b32 s4, s{sJ}, 16
                s_lshl_b32 s5, s{sG}, 12
                s_add_u32 s4, s4, s5
                s_add_u32 s4, s4, {RA}
                v_lshrrev_b32 v{vU}, 4, v{vL}
                v_lshlrev_b32 v{vU}, 10, v{vU}
                v_and_b32 v{vU+1}, 15, v{vL}
                v_lshl_add_u32 v{vU}, v{vU+1}, 4, v{vU}
                v_add_u32 v{vQa}, s4, v{vU}
                """)
        for k in range(2):
            l8(f"R{k}", vS + 6 + k, vAr, k == 0)
            if k == 1: self.gdone = True
            fill(f"R{k}")
        for i in range(4): a(f"ds_write_b32 v{vU+14}, v{vAg+i} offset:{P1+32*i}")
        a(f"""
        v_mul_u32_u24 v{vRS}, 1821, v0
        v_lshrrev_b32 v{vRS}, 16, v{vRS}
        v_mul_u32_u24 v{vCH}, 36, v{vRS}
        v_sub_u32 v{vCH}, v0, v{vCH}
        v_mul_u32_u24 v{vPO}, {6*1152}, v{vRS}
        v_lshl_add_u32 v{vPO}, v{vCH}, 4, v{vPO}
        v_add_u32 v{vGU}, 4608, v{vPO}
        """)
        for i in range(4): a(f"ds_write_b32 v{vU+15}, v{vAr+i} offset:{P1+6144+32*i}")
        a(f"""
        s_bfe_u32 s4, s2, 0x10006
        s_lshl1_add_u32 s4, s{sC6}, s4
        s_mul_i32 s4, s4, {32*1152}
        v_add_u32 v{vPD}, s4, v{vPO}
        s_and_b32 s5, s2, 127
        s_mul_i32 s5, s5, {4*1152}
        s_add_u32 s5, s5, {(4096-2)*1152}
        v_lshl_add_u32 v{vPD2}, v{vCH}, 4, s5
        v_cmp_gt_u32 vcc, 5, v{vRS}
        v_cmp_gt_u32 s[4:5], 6, v{vRS}
        v_bfrev_b32 v{vU}, -2
        v_cndmask_b32 v{vPD2}, v{vPD2}, v{vPD}, vcc
        v_cndmask_b32 v{vPD}, v{vU}, v{vPD}, s[4:5]
        v_cndmask_b32 v{vPD2}, v{vU}, v{vPD2}, s[4:5]
        v_mul_u32_u24 v{vU}, 1152, v{vRS}
        v_lshl_add_u32 v{vCH}, v{vCH}, 5, v{vU}
        v_mul_u32_u24 v{vRS}, 12, v{vRS}
        v_add_u32 v{vRS}, {HL}, v{vRS}
        s_waitcnt lgkmcnt(0)
        s_barrier
        """)
        pubA(16, 64, 2, "gpub")
        (None if o["st4"] else self.stamp("gpub"))
        more(o["pre_g"])
        qload = f"buffer_load_dwordx4 {r4(vPoll)}, v{vQa}, s[{SW}:{SW+3}], 0 offen sc1"
        for k in range(o["qp"] + 1):
            self.wait(f"K{k}"); fill(f"K{k}")
        self.issue("QP", qload.replace("sc1", o["first"]))
        lastK = min(15, self.ip - 1 - big.index("K0"))
        for k in range(o["qp"] + 1, lastK + 1):
            self.wait(f"K{k}"); fill(f"K{k}")
        more(o["pre_q"])
        a(f"""
        v_bfe_u32 v{vU+1}, v0, 3, 1
        v_lshlrev_b32 v{vU+1}, 9, v{vU+1}
        v_bfe_u32 v{vU+2}, v0, 4, 2
        v_lshl_add_u32 v{vU+1}, v{vU+2}, 7, v{vU+1}
        v_and_b32 v{vU+2}, 3, v0
        v_lshl_add_u32 v{vU+1}, v{vU+2}, 5, v{vU+1}
        """)
        self.wait("QP")
        retry_loop("q", [qload], [vPoll], vU)
        a(f"""
        ds_write_b128 v{vV}, {r4(vPoll)} offset:{QL}
        s_waitcnt lgkmcnt(0)
        s_barrier
        """)
        qd = [vT, vT + 8, vU + 8, vU + 16]
        for k in range(4):
            a(f"ds_read_b128 {r4(qd[k])}, v{vU+1} offset:{QL+1024*k}")
            a(f"ds_read_b128 {r4(qd[k]+4)}, v{vU+1} offset:{QL+1024*k+16}")
        a("s_waitcnt lgkmcnt(4)")
        for i in range(0, 8, 2): a(f"v_pk_add_f32 {r2(qd[0]+i)}, {r2(qd[0]+i)}, {r2(qd[1]+i)}")
        a("s_waitcnt lgkmcnt(0)")
        for i in range(0, 8, 2): a(f"v_pk_add_f32 {r2(qd[2]+i)}, {r2(qd[2]+i)}, {r2(qd[3]+i)}")
        for i in range(0, 8, 2): a(f"v_pk_add_f32 {r2(qd[0]+i)}, {r2(qd[0]+i)}, {r2(qd[2]+i)}")
        for i in range(4): a(f"v_cvt_pk_bf16_f32 v{vBq+i}, v{qd[0]+2*i}, v{qd[0]+2*i+1}")
        (None if o["st4"] else self.stamp("qcons"))
        if o["round_scores"]: a(f"s_mov_b32 s{sC}, {f2u(128 ** -0.5):#x}")
        def qk_fin(t):
            D = vT + 4 * (t % 4)
            a(f"v_mov_b32_dpp v{vS+t}, v{D} quad_perm:[0,0,0,0] {DPP}")
            for u in range(1, 4): a(f"v_add_f32_dpp v{vS+t}, v{D+u}, v{vS+t} quad_perm:[{u},{u},{u},{u}] {DPP}")
            if t & 1:
                t0 = t - 1
                if o["round_scores"]:
                    a(f"""
                    v_cvt_pk_bf16_f32 v{vU}, v{vS+t0}, v{vS+t0+1}
                    v_lshlrev_b32 v{vS+t0}, 16, v{vU}
                    v_and_b32 v{vS+t0+1}, 0xffff0000, v{vU}
                    v_mul_f32 v{vS+t0}, s{sC}, v{vS+t0}
                    v_mul_f32 v{vS+t0+1}, s{sC}, v{vS+t0+1}
                    v_cvt_pk_bf16_f32 v{vU}, v{vS+t0}, v{vS+t0+1}
                    v_lshlrev_b32 v{vS+t0}, 16, v{vU}
                    v_and_b32 v{vS+t0+1}, 0xffff0000, v{vU}
                    """)
                if t == 1: a(f"v_max_f32 v{vU+1}, v{vS}, v{vS+1}")
                else: a(f"v_max3_f32 v{vU+1}, v{vU+1}, v{vS+t0}, v{vS+t0+1}")
        for t in range(16):
            if t > lastK: self.wait(f"K{t}")
            D = vT + 4 * (t % 4)
            a(f"v_mfma_f32_16x16x32_bf16 {r4(D)}, {r4(dst[f'K{t}'])}, {r4(vBq)}, 0")
            if t == 15: self.kdone = True
            if t > lastK: fill(f"K{t}")
            if t >= 2: qk_fin(t - 2)
        more(o["pre_s"])
        a(f"""
        v_bfe_u32 v{vU+2}, v0, 3, 1
        v_lshlrev_b32 v{vU+2}, 6, v{vU+2}
        v_lshrrev_b32 v{vU+3}, 4, v0
        v_lshl_add_u32 v{vK}, v{vU+3}, 2, v{vU+2}
        """)
        qk_fin(14); qk_fin(15)
        cexp = 1.4426950408889634 if o["round_scores"] else 128 ** -0.5 * 1.4426950408889634
        a(f"""
        ds_write_b32 v{vK}, v{vU+1} offset:{MX}
        s_mov_b32 s{sC}, {f2u(cexp):#x}
        s_waitcnt lgkmcnt(0)
        s_barrier
        """)
        for i in range(4): a(f"ds_read_b128 {r4(vT+4*i)}, v{vU+2} offset:{MX+16*i}")
        a("s_waitcnt lgkmcnt(0)")
        a(f"v_max3_f32 v{vT}, v{vT}, v{vT+1}, v{vT+2}")
        for t in range(3, 15, 2): a(f"v_max3_f32 v{vT}, v{vT}, v{vT+t}, v{vT+t+1}")
        a(f"v_max_f32 v{vMx}, v{vT}, v{vT+15}")
        a(f"v_and_b32 v{vMx}, v{vMx}, v{vTM}")
        a(f"v_mul_f32 v{vMc}, s{sC}, v{vMx}")
        for t in range(16): a(f"v_fma_f32 v{vS+t}, v{vS+t}, s{sC}, -v{vMc}")
        for t in range(16): a(f"v_exp_f32 v{vS+t}, v{vS+t}")
        a(f"v_pk_add_f32 {r2(vT)}, {r2(vS)}, {r2(vS+2)}")
        for t in range(4, 16, 2): a(f"v_pk_add_f32 {r2(vT)}, {r2(vT)}, {r2(vS+t)}")
        a(f"v_add_f32 v{vT}, v{vT}, v{vT+1}")
        a(f"ds_write_b32 v{vK}, v{vT} offset:{LS}")
        self.stamp("smax")
        Lha = self.lab("haddr")
        hl = [f"buffer_load_dwordx4 {r4(vAO)}, v{vQa}, s[{SW}:{SW+3}], 0 offen sc1",
              f"buffer_load_dwordx4 {r4(vAO+4)}, v{vQb}, s[{SW}:{SW+3}], 0 offen sc1"]
        a(f"""
        s_cmp_lg_u32 s{sJ}, 3
        s_cbranch_scc1 {Lha}
        s_lshl_b32 s4, s{sC6}, 10
        s_bfe_u32 s5, s2, 0x10006
        s_lshl_b32 s5, s5, 7
        s_add_u32 s4, s4, s5
        s_add_u32 s4, s4, {RA+256}
        v_and_b32 v{vU}, 3, v0
        v_lshlrev_b32 v{vU}, 16, v{vU}
        v_bfe_u32 v{vU+1}, v0, 5, 1
        v_lshl_add_u32 v{vU}, v{vU+1}, 8, v{vU}
        v_bfe_u32 v{vU+1}, v0, 2, 3
        v_lshl_add_u32 v{vU}, v{vU+1}, 4, v{vU}
        v_add_u32 v{vQa}, s4, v{vU}
        s_bfe_u32 s4, s2, 0x30004
        s_lshl_b32 s4, s4, 10
        s_and_b32 s5, s2, 15
        s_lshl_b32 s5, s5, 4
        s_add_u32 s4, s4, s5
        s_add_u32 s4, s4, {RA+768}
        v_and_b32 v{vU}, 15, v0
        v_lshlrev_b32 v{vU}, 14, v{vU}
        v_bfe_u32 v{vU+1}, v0, 4, 1
        v_lshl_add_u32 v{vU}, v{vU+1}, 13, v{vU}
        v_add_u32 v{vQb}, s4, v{vU}
        {Lha}:
        """)
        hcheck = None
        for t in range(16):
            B = vT + 4 * (t % 2)
            a(f"v_cvt_pk_bf16_f32 v{vU}, v{vS+t}, v{vS+t}")
            for j in range(4): a(f"v_and_b32 v{B+j}, v{vU}, v{vM[j]}")
            self.wait(f"V{t}")
            a(f"v_mfma_f32_16x16x32_bf16 {r4(vAcc)}, {r4(dst[f'V{t}'])}, {r4(B)}, {'0' if t == 0 else r4(vAcc)}")
            fill(f"V{t}", min(W, 15 + o["Wt"] - t))
            if o["st4"] and t in (1, 2, 5, 8, 9, 12): self.stamp(f"V{t}")
            if t == o["hp"]:
                a(f"s_cmp_eq_u32 s{sJ}, 3"); a("s_cselect_b64 exec, -1, 0")
                for i, ld in enumerate(hl): self.issue(f"H{i}", ld.replace("sc1", o["first"]))
                a("s_mov_b64 exec, -1")
                self.hmark = len(self.vm)
                hcheck = min(15, self.ip - big.index("V0"))
            if t == 3:
                a(f"""
                v_bfe_u32 v{vK}, v0, 3, 1
                v_lshlrev_b32 v{vK}, 9, v{vK}
                v_bfe_u32 v{vU+1}, v0, 4, 2
                v_lshl_add_u32 v{vK}, v{vU+1}, 7, v{vK}
                v_and_b32 v{vU+1}, 7, v0
                v_lshl_add_u32 v{vK}, v{vU+1}, 2, v{vK}
                v_lshl_add_u32 v{vK}, v{vJ}, 10, v{vK}
                s_lshl4_add_u32 s6, s{sG}, s{sS}
                s_mul_i32 s6, s6, 1152
                s_add_u32 s6, s6, {OB}
                v_lshl_add_u32 v{vX+4}, v{vL}, 4, s6
                s_mul_i32 s4, s{sG}, {16*1152}
                s_add_u32 s4, s4, {OB}
                v_and_b32 v{vX+5}, 15, v0
                v_mul_u32_u24 v{vX+5}, 1152, v{vX+5}
                v_add_u32 v{vX+5}, s4, v{vX+5}
                s_and_b32 s5, s{sS}, 7
                s_lshl_b32 s5, s5, 7
                s_lshr_b32 s4, s{sJ}, 1
                s_lshl_b32 s4, s4, 6
                s_add_u32 s4, s4, s5
                v_bfe_u32 v{vU+1}, v0, 4, 2
                v_lshl_add_u32 v{vX+6}, v{vU+1}, 4, v{vX+5}
                v_add_u32 v{vX+6}, s4, v{vX+6}
                s_bfe_u32 s4, s{sS}, 0x10002
                s_lshl_b32 s4, s4, 3
                v_add_u32 v{vX+5}, s4, v{vX+5}
                v_lshrrev_b32 v{vFA}, {CG.bit_length()-1}, v0
                v_mul_u32_u24 v{vFA}, {128*CG*16}, v{vFA}
                v_and_b32 v{vU+1}, {CG-1}, v0
                v_lshl_add_u32 v{vFA}, v{vU+1}, 4, v{vFA}
                s_and_b32 s4, s2, 127
                s_mul_i32 s4, s4, {CG*16}
                s_lshr_b32 s5, s2, 7
                s_mul_i32 s5, s5, {72*128*16}
                s_add_u32 s4, s4, s5
                s_add_u32 s4, s4, {FB}
                v_add_u32 v{vFA}, s4, v{vFA}
                """)
            if t == 4:
                a(f"""
                v_subrev_u32 v{vX+7}, {HL}, v{vRS}
                v_and_b32 v{vU+1}, 3, v0
                v_lshlrev_b32 v{vU+1}, 3, v{vU+1}
                v_lshl_add_u32 v{vX+7}, v{vX+7}, 4, v{vU+1}
                v_add_u32 v{vX+7}, {OLX}, v{vX+7}
                v_bfe_u32 v{vU+1}, v0, 2, 2
                s_mov_b32 s4, 0x02020202
                v_mul_lo_u32 v{vU+1}, v{vU+1}, s4
                v_add_u32 v{vU+1}, s32, v{vU+1}
                v_or_b32 v{vU+2}, v{vM[0]}, v{vM[2]}
                v_or_b32 v{vU+3}, v{vM[1]}, v{vM[3]}
                v_mov_b32 v{vU+4}, 0x0c0c0c0c
                v_bfi_b32 v{vBq+2}, v{vU+2}, v{vU+1}, v{vU+4}
                v_bfi_b32 v{vBq+3}, v{vU+3}, v{vU+1}, v{vU+4}
                s_lshr_b32 s5, s{sJ}, 1
                s_lshl_b32 s5, s5, 9
                s_add_u32 s5, s5, {OLX}
                v_lshl_add_u32 v{vX+3}, v{vL}, 3, s5
                """)
            if hcheck is not None and t == min(15, hcheck):
                hcheck = None
                Lh = self.lab("hfin")
                a(f"""
                s_cmp_lg_u32 s{sJ}, 3
                s_cbranch_scc1 {Lh}
                s_waitcnt vmcnt({len(self.vm) - self.hmark})
                """)
                retry_loop("h", hl, [vAO, vAO + 4], vU)
                for i in range(4): a(f"v_add_f32_dpp v{vAO+i}, v{vAO+i}, v{vAO+i} quad_perm:[1,0,3,2] {DPP}")
                for i in range(4): a(f"v_add_f32_dpp v{vAO+4+i}, v{vAO+4+i}, v{vAO+4+i} row_ror:1 {DPP}")
                for i in range(4): a(f"v_add_f32_dpp v{vAO+i}, v{vAO+i}, v{vAO+i} quad_perm:[2,3,0,1] {DPP}")
                for r in (2, 4, 8):
                    for i in range(4): a(f"v_add_f32_dpp v{vAO+4+i}, v{vAO+4+i}, v{vAO+4+i} row_ror:{r} {DPP}")
                a(f"""
                v_bfe_u32 v{vU+1}, v0, 5, 1
                v_mul_u32_u24 v{vU+1}, 192, v{vU+1}
                v_bfe_u32 v{vU+2}, v0, 2, 3
                v_lshl_add_u32 v{vU+1}, v{vU+2}, 4, v{vU+1}
                ds_write_b128 v{vU+1}, {r4(vAO)} offset:{HP}
                v_bfe_u32 v{vU+1}, v0, 4, 1
                v_mul_u32_u24 v{vU+1}, 192, v{vU+1}
                ds_write_b128 v{vU+1}, {r4(vAO+4)} offset:{HP+128}
                v_min_u32 v{vU+1}, 35, v{vL}
                v_lshlrev_b32 v{vU+2}, 2, v{vU+1}
                v_add_u32 v{vU+2}, {HP}, v{vU+2}
                s_waitcnt lgkmcnt(0)
                ds_read2_b32 {r2(vU+4)}, v{vU+2} offset0:0 offset1:48
                v_lshlrev_b32 v{vU+1}, 1, v{vU+1}
                s_waitcnt lgkmcnt(0)
                v_cvt_pk_bf16_f32 v{vU+4}, v{vU+4}, v{vU+5}
                v_and_b32 v{vU+5}, 0xffff0000, v{vU+4}
                v_lshlrev_b32 v{vU+4}, 16, v{vU+4}
                v_max_f32 v{vU+4}, 0, v{vU+4}
                v_mul_f32 v{vU+4}, v{vU+4}, v{vU+5}
                v_cvt_pk_bf16_f32 v{vU+4}, v{vU+4}, v{vU+4}
                ds_write_b16 v{vU+1}, v{vU+4} offset:{HL}
                {Lh}:
                """)
        assert hcheck is None
        for i in range(4): a(f"ds_write_b32 v{vK}, v{vAcc+i} offset:{OW+32*i}")
        a(f"""
        s_waitcnt lgkmcnt(0)
        s_barrier
        """)
        self.stamp("pvdone")
        Lo1 = self.lab("opub"); Lm = self.lab("mlpub")
        a(f"""
        s_cmp_eq_u32 s{sJ}, 2
        s_cbranch_scc1 {Lm}
        s_cmp_lg_u32 s{sJ}, 0
        s_cbranch_scc1 {Lo1}
        """)
        for jj in range(4): a(f"ds_read_b128 {r4(vT+4*jj)}, v{vV} offset:{OW+1024*jj}")
        a("s_waitcnt lgkmcnt(2)")
        pkadd(vT, vT, vT + 4)
        a("s_waitcnt lgkmcnt(0)")
        pkadd(vT + 8, vT + 8, vT + 12); pkadd(vT, vT, vT + 8)
        a(f"""
        s_branch {Lo1}t
        {Lm}:
        v_bfe_u32 v{vU+1}, v0, 3, 1
        v_lshlrev_b32 v{vU+1}, 6, v{vU+1}
        """)
        for i in range(4): a(f"ds_read_b128 {r4(vU+4+4*i)}, v{vU+1} offset:{LS+16*i}")
        a(f"v_add_u32 v{vX+4}, 1024, v{vX+4}")
        a("s_waitcnt lgkmcnt(0)")
        pkadd(vU + 4, vU + 4, vU + 8); pkadd(vU + 12, vU + 12, vU + 16); pkadd(vU + 4, vU + 4, vU + 12)
        a(f"""
        v_pk_add_f32 {r2(vU+4)}, {r2(vU+4)}, {r2(vU+6)}
        v_add_f32 v{vT+1}, v{vU+4}, v{vU+5}
        v_mov_b32 v{vT}, v{vMx}
        v_mov_b32_dpp v{vT+2}, v{vMx} row_shl:8 {DPP}
        v_mov_b32_dpp v{vT+3}, v{vT+1} row_shl:8 {DPP}
        s_mov_b64 exec, 1
        {Lo1}t:
        """)
        tagins(vT)
        a(f"""
        s_branch {Lo1}s
        {Lo1}:
        s_mov_b64 exec, 0
        {Lo1}s:
        """)
        self.issue("OP", f"buffer_store_dwordx4 {r4(vT)}, v{vX+4}, s[{SW}:{SW+3}], 0 offen sc1")
        a("s_mov_b64 exec, -1")
        if o["obar"]: a("s_barrier")
        (None if o["st4"] else self.stamp("opub"))
        fill("V15", o["post"])
        a(f"""
        ds_read2_b32 {r2(vX)}, v{vRS} offset0:0 offset1:1
        ds_read_b32 v{vX+2}, v{vRS} offset:8
        """)
        def flat_A(k, xsrc):
            p = k & 1; A = vU + 2 * p
            a(f"v_perm_b32 v{A}, v{xsrc+(k>>1)}, v{xsrc+(k>>1)}, v{vSel[2*p]}")
            a(f"v_perm_b32 v{A+1}, v{xsrc+(k>>1)}, v{xsrc+(k>>1)}, v{vSel[2*p+1]}")
            return A
        def flat_mfma(A, data, acc, first):
            a(f"v_mfma_f32_4x4x4_16b_bf16 {r4(acc)}, {r2(A)}, {r2(data)}, {'0' if first else r4(acc)}")
            a(f"v_mfma_f32_4x4x4_16b_bf16 {r4(acc+4)}, {r2(A)}, {r2(data+2)}, {'0' if first else r4(acc+4)}")
        def omk(st): return [f"buffer_load_dwordx4 {r4(st[0])}, v{vX+6}, s[{SW}:{SW+3}], 0 offen sc1",
                             f"buffer_load_dwordx2 {r2(st[0]+4)}, v{vX+5}, s[{SW}:{SW+3}], 0 offen offset:1024 sc1"]
        osets = [[R1 + 8 * d] for d in range(o["odepth"])]
        a("s_waitcnt lgkmcnt(0)")
        polled = False
        for k in range(6):
            A = flat_A(k, vX)
            self.wait(f"D{k}")
            flat_mfma(A, dst[f"D{k}"], vAD, k == 0)
            fill(f"D{k}", o["post"])
            if self.ip == len(big) and k >= o["opa"] and not polled:
                polled = True
                a(f"s_bitcmp1_b32 s{sJ}, 0"); a("s_cselect_b64 exec, -1, 0")
                for i, ld in enumerate(omk(osets[0])): self.issue(f"OPL{i}", ld)
                a("s_mov_b64 exec, -1")
        assert polled
        (None if o["st3"] else self.stamp("Ddone"))
        for i in range(0, 8): a(f"v_mul_f32 v{vAD+i}, v{vOMG}, v{vAD+i}")
        Lo2 = self.lab("ocons")
        a(f"""
        s_bitcmp0_b32 s{sJ}, 0
        s_cbranch_scc1 {Lo2}
        """)
        P = vS
        def ofin(st):
            a(f"v_and_b32 v{vBq}, v{st[0]+4}, v{vTM}")
            a(f"v_mov_b32 v{vBq+1}, v{st[0]+5}")
            a(f"v_pk_mul_f32 {r2(P)}, {r2(st[0])}, {r2(vG-1)} op_sel:[0,1] op_sel_hi:[1,1]")
            a(f"v_pk_mul_f32 {r2(P+2)}, {r2(st[0]+2)}, {r2(vG-1)} op_sel:[0,1] op_sel_hi:[1,1]")
        pipe_poll("o", omk, osets, vU + 4, 1, ofin, o["osleep"], extra=2)
        (None if o["st3"] else self.stamp("opollok"))
        a(f"v_max_f32_dpp v{vU+4}, v{vBq}, v{vBq} row_ror:1 {DPP}")
        for r in (2, 4, 8): a(f"v_max_f32_dpp v{vU+4}, v{vU+4}, v{vU+4} row_ror:{r} {DPP}")
        a(f"""
        v_sub_f32 v{vBq}, v{vBq}, v{vU+4}
        v_mul_f32 v{vBq}, s{sC}, v{vBq}
        v_exp_f32 v{vBq}, v{vBq}
        v_mul_f32 v{P+4}, v{vBq}, v{vBq+1}
        v_pk_mul_f32 {r2(P)}, {r2(P)}, {r2(vBq)} op_sel_hi:[1,0]
        v_pk_mul_f32 {r2(P+2)}, {r2(P+2)}, {r2(vBq)} op_sel_hi:[1,0]
        """)
        for r in (1, 2, 4, 8):
            for i in (4, 0, 1, 2, 3): a(f"v_add_f32_dpp v{P+i}, v{P+i}, v{P+i} row_ror:{r} {DPP}")
            if r == 8: self.l.insert(len(self.l) - 2, f"    v_rcp_f32 v{vBq}, v{P+4}")
        a(f"""
        v_pk_mul_f32 {r2(P)}, {r2(P)}, {r2(vBq)} op_sel_hi:[1,0]
        v_pk_mul_f32 {r2(P+2)}, {r2(P+2)}, {r2(vBq)} op_sel_hi:[1,0]
        v_cvt_pk_bf16_f32 v{P}, v{P}, v{P+1}
        v_cvt_pk_bf16_f32 v{P+1}, v{P+2}, v{P+3}
        v_perm_b32 v{P+2}, v{P+1}, v{P}, v{vBq+2}
        v_perm_b32 v{P+3}, v{P+1}, v{P}, v{vBq+3}
        ds_write_b64 v{vX+3}, {r2(P+2)}
        s_branch {Lo2}x
        {Lo2}:
        s_waitcnt vmcnt(0)
        {Lo2}x:
        v_cmp_gt_u32 vcc, 72, v0
        s_waitcnt lgkmcnt(0)
        s_barrier
        """)
        for k in range(3): a(f"ds_read2_b64 {r4(vT+4*k)}, v{vX+7} offset0:{8*k} offset1:{8*k+4}")
        (None if o["st3"] else self.stamp("B7"))
        for k in range(6):
            if k % 2 == 0: a(f"s_waitcnt lgkmcnt({0 if o['stamps'] else 2 - k // 2})")
            flat_mfma(vT + 2 * k, dst[f"O{k}"], vAD, False)
        Lf = self.lab("fpub")
        a(f"""
        ds_write_b128 v{vCH}, {r4(vAD)} offset:{LF}
        ds_write_b128 v{vCH}, {r4(vAD+4)} offset:{LF+16}
        s_waitcnt lgkmcnt(0)
        s_barrier
        s_and_saveexec_b64 s[4:5], vcc
        s_cbranch_execz {Lf}
        """)
        tg = [vT, vT + 4, vT + 8, vT + 12, vT + 16, vU + 4]
        for p in range(6): a(f"ds_read_b128 {r4(tg[p])}, v{vV} offset:{LF+1152*p}")
        a("s_waitcnt lgkmcnt(4)"); pkadd(tg[0], tg[0], tg[1])
        a("s_waitcnt lgkmcnt(2)"); pkadd(tg[2], tg[2], tg[3])
        a("s_waitcnt lgkmcnt(0)"); pkadd(tg[4], tg[4], tg[5]); pkadd(tg[0], tg[0], tg[2]); pkadd(tg[0], tg[0], tg[4])
        tagins(vT)
        a(f"""
        buffer_store_dwordx4 {r4(vT)}, v{vFA}, s[{SW}:{SW+3}], 0 offen sc1
        {Lf}:
        s_mov_b64 exec, s[4:5]
        """)
        self.stamp("fpub")
        NL = CG // 2
        a(f"""
        s_cmpk_ge_u32 s2, {R}
        s_cbranch_scc1 L_fin
        s_mul_i32 s4, s2, {128*CG*16}
        s_add_u32 s4, s4, {FB}
        """)
        if CG == 4:
            a(f"""
            v_and_b32 v{vQa}, 15, v0
            v_lshlrev_b32 v{vQa}, 6, v{vQa}
            v_bfe_u32 v{vQb}, v0, 4, 2
            v_lshl_add_u32 v{vQa}, v{vQb}, 4, v{vQa}
            v_lshl_add_u32 v{vQa}, v{vJ}, 10, v{vQa}
            v_add_u32 v{vQa}, s4, v{vQa}
            s_movk_i32 s33, 0x1000
            """)
            offs = [("0", 0), ("s33", 0)]
        elif CG == 2:
            a(f"""
            v_and_b32 v{vQa}, 15, v0
            v_lshlrev_b32 v{vQa}, 5, v{vQa}
            v_bfe_u32 v{vQb}, v0, 4, 1
            v_lshl_add_u32 v{vQa}, v{vQb}, 4, v{vQa}
            v_lshrrev_b32 v{vQb}, 5, v0
            v_lshl_add_u32 v{vQa}, v{vQb}, 9, v{vQa}
            v_add_u32 v{vQa}, s4, v{vQa}
            """)
            offs = [("0", 0)]
        else:
            a(f"""
            v_and_b32 v{vQa}, 15, v0
            v_lshlrev_b32 v{vQa}, 7, v{vQa}
            v_bfe_u32 v{vQb}, v0, 4, 2
            v_lshl_add_u32 v{vQa}, v{vQb}, 4, v{vQa}
            v_lshl_add_u32 v{vQa}, v{vJ}, 11, v{vQa}
            v_add_u32 v{vQa}, s4, v{vQa}
            s_movk_i32 s33, 0x2000
            """)
            offs = [("0", 0), ("s33", 0), ("0", 64), ("s33", 64)]
        def fmk(st): return [f"buffer_load_dwordx4 {r4(st[k])}, v{vQa}, s[{SW}:{SW+3}], {offs[k][0]} offen offset:{offs[k][1]} sc1" for k in range(NL)]
        fsets = [[R2 + 16 * d + 4 * k for k in range(NL)] for d in range(o["fdepth"])]
        F = vS
        NF = 8 if CG == 8 else 4
        def ffin(st):
            if CG == 4: pkadd(F, st[0], st[1])
            elif CG == 8: pkadd(F, st[0], st[1]); pkadd(F + 4, st[2], st[3])
            else:
                for i in range(4): a(f"v_add_f32_dpp v{F+i}, v{st[0]+i}, v{st[0]+i} row_ror:1 {DPP}")
        if o["fsel"]:
            assert CG == 4
            for k in range(2): a(fmk(fsets[0])[k])
            D = o["fdepth"]
            for k in range(2):
                mk1 = lambda st, k=k: [f"buffer_load_dwordx4 {r4(st[0])}, v{vQa}, s[{SW}:{SW+3}], {offs[k][0]} offen offset:{offs[k][1]} sc1"]
                Lq = self.lab("fq")
                a(f"s_waitcnt vmcnt({1 - k})" if k == 0 else "s_nop 0")
                sets1 = [[R2 + 32 + 16 * k + 4 * d] for d in range(D)]
                if k == 1: a("s_waitcnt vmcnt(%d)" % 0) if False else None
                tagchk([fsets[0][k]], vU + 4)
                a(f"s_cbranch_vccz {Lq}")
                def fin1(st, k=k):
                    a(f"v_pk_mul_f32 {r2(fsets[0][k])}, {r2(st[0])}, 1.0 op_sel_hi:[1,0]")
                    a(f"v_pk_mul_f32 {r2(fsets[0][k]+2)}, {r2(st[0]+2)}, 1.0 op_sel_hi:[1,0]")
                pipe_poll(f"f{k}", mk1, sets1, vU + 4, 0, fin1, o["fsleep"])
                if k == 0:
                    a(f"s_branch {Lq}b"); a(f"{Lq}:"); a("s_waitcnt vmcnt(0)"); a(f"{Lq}b:")
                else: a(f"{Lq}:")
            ffin(fsets[0])
        else:
            pipe_poll("f", fmk, fsets, vU + 4, 0, ffin, o["fsleep"])
        (None if o["st3"] else self.stamp("fpollok"))
        for r in (1, 2, 4, 8):
            if CG == 2 and r == 1: continue
            for i in range(NF): a(f"v_add_f32_dpp v{F+i}, v{F+i}, v{F+i} row_ror:{r} {DPP}")
        a(f"""
        v_lshrrev_b32 v{vU}, 4, v0
        v_lshlrev_b32 v{vU}, 4, v{vU}
        ds_write_b128 v{vU}, {r4(F)} offset:{RD}
        """)
        if CG == 8: a(f"ds_write_b128 v{vU}, {r4(F+4)} offset:{RD+256}")
        a(f"""
        s_mov_b32 s{SX}, s56
        s_mov_b32 s{SX+1}, s57
        s_mul_i32 s4, s2, {CG*8}
        """)
        if CG == 8:
            a(f"""
            v_and_b32 v{vU}, 3, v0
            v_lshrrev_b32 v{vU+1}, 4, v0
            v_lshl_add_u32 v{vU}, v{vU+1}, 2, v{vU}
            v_lshl_add_u32 v{vU}, v{vU}, 3, s4
            """)
        else:
            a(f"v_lshl_add_u32 v{vU}, v0, 3, s4")
        a(f"""
        s_waitcnt lgkmcnt(0)
        s_barrier
        s_cmp_lg_u32 s{sJ}, 0
        s_cbranch_scc1 L_fin
        s_mov_b64 exec, {'0xffffffff' if CG == 8 else '0xffff'}
        ds_read_b128 {r4(vT)}, v{vV} offset:{RD}
        s_waitcnt lgkmcnt(0)
        """)
        for r in (1, 2, 4, 8):
            if r >= min(CG, 4):
                for i in range(4): a(f"v_add_f32_dpp v{vT+i}, v{vT+i}, v{vT+i} row_ror:{r} {DPP}")
        a(f"""
        v_cvt_pk_bf16_f32 v{vT}, v{vT}, v{vT+1}
        v_cvt_pk_bf16_f32 v{vT+1}, v{vT+2}, v{vT+3}
        s_mov_b64 exec, {0xf000f if CG == 8 else (1 << CG) - 1:#x}
        buffer_store_dwordx2 {r2(vT)}, v{vU}, s[{SX}:{SX+3}], 0 offen {o['outf']}
        s_cmp_lg_u32 s2, 0
        s_cbranch_scc1 L_fin
        s_mov_b64 exec, 1
        v_mov_b32 v{vT+4}, s{sTAG}
        v_mov_b32 v{vT+5}, 0
        buffer_store_dword v{vT+4}, v{vT+5}, s[{SW}:{SW+3}], 0 offen sc1
        L_fin:
        """)
        if o["skewm"]:
            a(f"""
            s_cmp_lg_u32 s2, 0
            s_cbranch_scc1 L_end
            s_cmp_lg_u32 s{sJ}, 0
            s_cbranch_scc1 L_end
            s_add_u32 s4, s60, 0xF0000
            s_addc_u32 s5, s61, 0
            s_load_dwordx8 s[64:71], s[4:5], 0 glc
            s_waitcnt lgkmcnt(0)
            """)
            for i in range(8): a(f"s_sub_u32 s{64+i}, s{64+i}, s16"); a(f"s_add_u32 s{64+i}, s{64+i}, 500")
            m = o["skewm"]
            if m == "late":
                a("s_add_u32 s6, s68, s69"); a("s_add_u32 s6, s6, s70"); a("s_add_u32 s6, s6, s71")
                a("s_sub_u32 s6, s6, s65"); a("s_sub_u32 s6, s6, s66"); a("s_sub_u32 s6, s6, s67"); a("s_sub_u32 s6, s6, s66")
                a("s_mul_i32 s6, s6, 5"); a("s_add_u32 s6, s6, 3000")
            else:
                a("s_min_u32 s72, s64, s65")
                for i in range(2, 8): a(f"s_min_u32 s72, s72, s{64+i}")
                if m == "max":
                    a("s_max_u32 s73, s64, s65")
                    for i in range(2, 8): a(f"s_max_u32 s73, s73, s{64+i}")
                else:
                    a(f"s_mov_b32 s73, s{64+int(m)}")
                a("s_sub_u32 s6, s73, s72"); a("s_mul_i32 s6, s6, 20"); a("s_add_u32 s6, s6, 3000")
            a(f"""
            s_min_u32 s6, s6, 20000
            L_hold:
            s_memrealtime s[4:5]
            s_waitcnt lgkmcnt(0)
            s_sub_u32 s4, s4, s16
            s_cmp_lt_u32 s4, s6
            s_cbranch_scc1 L_hold
            """)
        elif o["amp"] >= 0:
            self.stamp("end"); k = o["amp"]
            a(f"""
            s_waitcnt lgkmcnt(0)
            s_sub_u32 s6, s{self.sreg(k)}, s16
            s_min_u32 s6, s6, 3000
            s_mul_i32 s6, s6, 10
            s_add_u32 s6, s6, 3000
            L_hold:
            s_memrealtime s[4:5]
            s_waitcnt lgkmcnt(0)
            s_sub_u32 s4, s4, s16
            s_cmp_lt_u32 s4, s6
            s_cbranch_scc1 L_hold
            """)
        elif o["stamps"]:
            self.stamp("end")
            a(f"""
            s_waitcnt lgkmcnt(0)
            s_lshl_b32 s4, s2, 2
            s_add_u32 s4, s4, s{sJ}
            s_lshl_b32 s4, s4, 7
            s_add_u32 s4, s4, {STAMP_OFF:#x}
            s_add_u32 s6, s60, s4
            s_addc_u32 s7, s61, 0
            s_sub_u32 s6, s6, {o['wsoff']:#x}
            s_subb_u32 s7, s7, 0
            s_mov_b64 exec, 1
            v_mov_b32 v4, 0
            """)
            for j in range(self.nst):
                a(f"""
                v_mov_b32 v2, s{self.sreg(j)}
                v_mov_b32 v3, s{self.sreg(j)+1}
                global_store_dwordx2 v4, v[2:3], s[6:7] offset:{8*j}
                s_nop 1
                """)
        if o["hold"]:
            a(f"""
            s_waitcnt lgkmcnt(0)
            L_hold:
            s_memrealtime s[4:5]
            s_waitcnt lgkmcnt(0)
            s_sub_u32 s4, s4, s16
            s_cmp_lt_u32 s4, {o["hold"]}
            s_cbranch_scc1 L_hold
            """)
        a("L_end:")
        a("s_endpgm")
        cl = []
        for x in self.l:
            if cl and cl[-1].strip() == "s_mov_b64 exec, -1" and x.strip().startswith("s_mov_b64 exec,"): cl.pop()
            if len(cl) > 1 and cl[-2].strip() == "s_mov_b64 exec, -1" and cl[-1].strip().startswith("s_waitcnt vmcnt") and x.strip().startswith("s_mov_b64 exec,"):
                del cl[-2]
            cl.append(x)
        c2 = []
        for x in cl:
            c2.append(x)
        body = "\n".join(fix(c2)) + "\n"
        head = open("cdna_kernels/" + KN + ".s.ref").read().split("; Override launch")[0]
        if self.names: head += "; stamps: " + " ".join(self.names) + "\n"
        return head + f"""; @launch grid=(256,1,1) block=(256,1,1) lds={o['lds']}
.amdgcn_target "amdgcn-amd-amdhsa--gfx950"
.text
.globl {KN}_kernel
.p2align 8
.type {KN}_kernel,@function
{KN}_kernel:
""" + body + f""".section .rodata,"a"
.p2align 6
.amdhsa_kernel {KN}_kernel
  .amdhsa_next_free_vgpr 256
  .amdhsa_next_free_sgpr 102
  .amdhsa_accum_offset 256
  .amdhsa_group_segment_fixed_size 0
  .amdhsa_kernarg_size 104
  .amdhsa_user_sgpr_count 2
  .amdhsa_user_sgpr_kernarg_segment_ptr 1
  .amdhsa_system_sgpr_workgroup_id_x 1
.end_amdhsa_kernel
"""

if __name__ == "__main__":
    out = sys.argv[1]; opt = {}
    for kv in sys.argv[2:]:
        k, v = kv.split("="); opt[k] = eval(v)
    open(out, "w").write(Gen(**opt).build())
```

```python
import sys, struct
from hazard import fix
KN = "gated_mix__sliding_block_cached__glu_gated_reglu__decode"
STAMP_OFF = 0x30000000
def f2u(x): return struct.unpack("<I", struct.pack("<f", x))[0]

class Gen:
    def __init__(self, **opt):
        self.o = dict(W=8, stamps=False, wsoff=0x3fe00000, qp=2, hp=1, CG=4, round_scores=True, prefetch=0, jitter=0,
                      hold=0, amp=-1, lds=90112, nt="nt", spin=20000, pre_g=2, pre_q=2, pre_s=3, Wt=4, fdepth=1, odepth=1,
                      cnt=0, post=12, osleep=0, fsleep=0, pre_qp=0, first='sc1', pt=0, ptf='', st3=0, early=3, skewm='', adapt=11, flagrd=5, nearly=7, lpost=8, st4=0, atime=0, obar=1, opa=2, fsel=0, tlb=0, outf='', rot=1, mix=1)
        for k in opt: assert k in self.o, k
        self.o.update(opt)
        self.l = []; self.vm = []; self.nl = 0; self.nst = 0; self.names = []
    def a(self, s):
        for x in s.strip().split("\n"):
            x = x.strip()
            if x: self.l.append(x if x.endswith(":") else "    " + x)
    def lab(self, p):
        self.nl += 1
        return f"L_{p}{self.nl}"
    def issue(self, label, s):
        self.a(s); self.vm.append(label)
    def wait(self, label):
        n = len(self.vm) - 1 - self.vm.index(label)
        assert n <= 63
        self.a(f"s_waitcnt vmcnt({n})")
    def sreg(self, k): return 16 + 2 * k if k < 8 else 36 + 2 * (k - 8)
    def stamp(self, name=""):
        if self.o["stamps"]:
            assert self.nst < 16
            r = self.sreg(self.nst)
            self.a(f"s_memrealtime s[{r}:{r+1}]")
            self.names.append(name); self.nst += 1

    def build(self):
        o = self.o; a = self.a; nt = o["nt"]; W = o["W"]
        RA, OB, FB, MLB = 0x1000, 0x50000, 0xA0000, 0xF8000
        CG = o["CG"]; R = 144 // CG
        XL, P1, QL, MX, LS, GS, HP, HL, OL, OW, LF, RD, DUM = 0, 2560, 10752, 14848, 14976, 15104, 15232, 15616, 15744, 15872, 19968, 29184, 29696
        OLX = 30208
        vL = 1; vM = [2, 3, 4, 5]; vSel = [6, 7, 8, 9]
        vQa, vQb, vGU, vK, vV, vPD, vPD2, vPO, vTM = 10, 11, 12, 13, 14, 15, 16, 18, 17
        vMx, vMc, vFA, vRS = 19, 20, 21, 22
        vX = 24
        vS = 32; vBq = 48; vAq = 52; vAg = 56; vAr = 60; vAD = 56; vAO = 64; vT = 72; vPoll = 92
        vCH, vG, vOMG, vJ = 96, 97, 98, 99
        R1 = 100; R2 = 164; vU = 228
        vAcc = vAq
        dst = {}
        for i in range(5): dst[f"Q{i}"] = R1 + 4 * i
        for i in range(9): dst[f"G{i}"] = R1 + 20 + 4 * i
        for i in range(2): dst[f"R{i}"] = R1 + 56 + 4 * i
        for i in range(16): dst[f"K{i}"] = R2 + 4 * i; dst[f"V{i}"] = R1 + 4 * i
        for i in range(6): dst[f"D{i}"] = R2 + 4 * i; dst[f"O{i}"] = R2 + 24 + 4 * i
        big = [f"Q{i}" for i in range(5)] + [f"G{i}" for i in range(9)] + ["R0", "R1"] + [f"K{i}" for i in range(16)] + \
              [f"V{i}" for i in range(16)] + [f"D{i}" for i in range(6)] + [f"O{i}" for i in range(6)]
        sTAG = 62; sJ = 3; sKQ, sG, sS, sC6 = 8, 9, 10, 11; s4608 = 12
        sKV = 13; sGU = 14; sC = 15
        SQ, SGU, SK, SR, SD, SO, SX, SV, SW = 64, 68, 72, 76, 80, 84, 88, 92, 96
        sE, sLt = 34, 100
        r4 = lambda v: f"v[{v}:{v+3}]"
        r2 = lambda v: f"v[{v}:{v+1}]"
        DPP = "row_mask:0xf bank_mask:0xf"
        self.ip = 0; self.gdone = self.kdone = False
        def issue_next():
            lb = big[self.ip]; self.ip += 1
            d = r4(dst[lb]); k = int(lb[1:]); c = lb[0]
            if c == "V": assert self.gdone
            if c in "DO": assert self.kdone
            if c == "Q":
                if k == 0: self.issue(lb, f"buffer_load_dwordx4 {d}, v{vQa}, s[{SQ}:{SQ+3}], 0 offen {nt}")
                elif k < 4: self.issue(lb, f"buffer_load_dwordx4 {d}, v{vQa}, s[{SQ}:{SQ+3}], s{32+k} offen {nt}")
                else: self.issue(lb, f"buffer_load_dwordx4 {d}, v{vQb}, s[{SQ}:{SQ+3}], 0 offen {nt}")
            elif c == "G":
                if k == 0: a(f"s_mov_b32 s{sGU}, 0")
                elif k < 8: a(f"s_addk_i32 s{sGU}, 9216")
                if k < 8: self.issue(lb, f"buffer_load_dwordx4 {d}, v{vGU}, s[{SGU}:{SGU+3}], s{sGU} offen {nt}")
                else: self.issue(lb, f"buffer_load_dwordx4 {d}, v{vPD}, s[{SGU}:{SGU+3}], 0 offen {nt}")
            elif c == "R":
                self.issue(lb, f"buffer_load_dwordx4 {d}, v{vPD2 if k == 0 else vPO}, s[{SR}:{SR+3}], 0 offen {nt}")
            elif c in "KV":
                if k == 0: a(f"s_lshl_b32 s{sKV}, s{sG}, 12" if o["rot"] else f"s_mov_b32 s{sKV}, 0")
                else:
                    a(f"s_addk_i32 s{sKV}, 4096")
                    if o["rot"]: a(f"s_bitset0_b32 s{sKV}, 16")
                sr, vo = (SK, vK) if c == "K" else (SV, vV)
                self.issue(lb, f"buffer_load_dwordx4 {d}, v{vo}, s[{sr}:{sr+3}], s{sKV} offen {nt}")
            else:
                sr = SD if c == "D" else SO
                vo = vPO if c == "O" else (vPD if k < 2 else vPD2)
                so, im = ("0", k * 1152) if k < 4 else (f"s{s4608}", (k - 4) * 1152)
                if c == "O" and k >= 4: vo, so = vGU, "0"
                self.issue(lb, f"buffer_load_dwordx4 {d}, v{vo}, s[{sr}:{sr+3}], {so} offen offset:{im} {nt}")
        def fill(label, w=None):
            w = W if w is None else w
            idx = big.index(label)
            while self.ip < len(big) and self.ip <= idx + w: issue_next()
        def more(n):
            for _ in range(n):
                if self.ip < len(big): issue_next()
        def tagins(v):
            for i in range(4): a(f"v_and_or_b32 v{v+i}, v{v+i}, v{vTM}, s{sTAG}")
        def tagchk(vs, acc, extra=0):
            first = True
            for v in vs:
                for i in range(4 + extra):
                    if first: a(f"v_xor_b32 v{acc}, s{sTAG}, v{v+i}"); first = False
                    else: a(f"v_bitop3_b32 v{acc}, v{v+i}, s{sTAG}, v{acc} bitop3:0xbe")
            a(f"v_and_b32 v{acc}, 0xff, v{acc}")
            a(f"v_cmp_ne_u32 vcc, 0, v{acc}")
        def retry_loop(name, loads, vs, acc):
            Lok = self.lab(name + "ok"); Lre = self.lab(name + "re")
            a(f"s_mov_b32 s7, {o['spin']}")
            a(f"{Lre}:")
            tagchk(vs, acc)
            a(f"s_cbranch_vccz {Lok}")
            for ld in loads: a(ld)
            a("s_waitcnt vmcnt(0)")
            a("s_sub_u32 s7, s7, 1")
            a("s_cmp_lg_u32 s7, 0")
            a(f"s_cbranch_scc1 {Lre}")
            a(f"{Lok}:")
            if o["stamps"] and o["cnt"] == 1:
                r = self.sreg(self.nst); self.names.append(name + "retry"); self.nst += 1
                a(f"s_sub_u32 s7, {o['spin']}, s7"); a(f"s_mul_i32 s7, s7, 100")
                a(f"s_add_u32 s{r}, s16, s7"); a(f"s_addc_u32 s{r+1}, s17, 0")
        def pipe_poll(name, mk, sets, acc, first_issued, fin, slp=0, extra=0):
            n = len(mk(sets[0])); D = len(sets)
            Lx = self.lab(name + "x"); Lre = self.lab(name + "re")
            Lmv = [self.lab(name + "mv") for _ in range(D)]
            for d in range(first_issued, D):
                for ld in mk(sets[d]): a(ld)
            a(f"s_mov_b32 s7, {o['spin']}")
            a(f"{Lre}:")
            for d in range(D):
                a(f"s_waitcnt vmcnt({n*(D-1)})")
                tagchk(sets[d], acc, extra)
                a(f"s_cbranch_vccz {Lmv[d]}")
                if slp: a(f"s_sleep {slp}")
                for ld in mk(sets[d]): a(ld)
            a("s_sub_u32 s7, s7, 1")
            a("s_cmp_lg_u32 s7, 0")
            a(f"s_cbranch_scc1 {Lre}")
            for d in range(D - 1, -1, -1):
                a(f"{Lmv[d]}:")
                fin(sets[d])
                if d: a(f"s_branch {Lx}")
            a(f"{Lx}:")
        def pkadd(d, x, y):
            a(f"v_pk_add_f32 {r2(d)}, {r2(x)}, {r2(y)}"); a(f"v_pk_add_f32 {r2(d+2)}, {r2(x+2)}, {r2(y+2)}")

        self.stamp("start")
        if o["hold"]: a("s_memrealtime s[16:17]")
        a(f"""
        s_load_dwordx16 s[36:51], s[0:1], 0
        s_cmpk_ge_u32 s2, 0x100
        s_cbranch_scc1 L_end
        """)
        if o["jitter"]:
            a(f"""s_mul_i32 s4, s2, 0x9e3779b1
            s_lshr_b32 s4, s4, {32-o["jitter"]}
            L_jit:
            s_cmp_eq_u32 s4, 0
            s_cbranch_scc1 L_jitd
            s_sleep 40
            s_sub_u32 s4, s4, 1
            s_branch L_jit
            L_jitd:""")
        a(f"""
        s_lshr_b32 s{sKQ}, s2, 6
        s_mul_i32 s4, s{sKQ}, {144*8192}
        s_and_b32 s{sC6}, s2, 63
        s_lshl_b32 s5, s{sC6}, 7
        s_add_u32 s4, s4, s5
        v_lshrrev_b32 v{vT}, 3, v0
        v_and_b32 v{vT+1}, 7, v0
        v_lshlrev_b32 v{vT+1}, 4, v{vT+1}
        v_lshl_add_u32 v{vQa}, v{vT}, 15, v{vT+1}
        s_mov_b32 s{SQ+2}, {143*8192+128}
        s_mov_b32 s{SQ+3}, 0x20000
        s_movk_i32 s33, 0x2000
        s_movk_i32 s34, 0x4000
        s_movk_i32 s35, 0x6000
        s_waitcnt lgkmcnt(0)
        s_add_u32 s{SQ}, s42, s4
        s_addc_u32 s{SQ+1}, s43, 0
        """)
        if o["st3"]: self.stamp("karg")
        more(4)
        if o["st3"]: self.stamp("Q3iss")
        a(f"""
        s_load_dwordx8 s[52:59], s[0:1], 64
        s_load_dwordx2 s[60:61], s[0:1], 96
        v_lshl_add_u32 v{vQb}, v{vT}, 13, v{vT+1}
        v_add_u32 v{vQb}, {128*8192}, v{vQb}
        v_lshrrev_b32 v{vJ}, 6, v0
        v_lshlrev_b32 v{vV}, 4, v0
        v_readfirstlane_b32 s{sJ}, v{vJ}
        """)
        more(1)
        a(f"""
        s_mov_b32 s{SX}, s36
        s_mov_b32 s{SX+1}, s37
        s_movk_i32 s{SX+2}, 1152
        s_mov_b32 s{SX+3}, 0x20000
        """)
        self.issue("X", f"buffer_load_dwordx4 {r4(vX)}, v{vV}, s[{SX}:{SX+3}], 0 offen")
        MIXG = f"s_xor_b32 s5, s{sC6}, s7\ns_lshl_b32 s5, s5, 7" if o["mix"] else ""
        a(f"""
        s_bitcmp1_b32 s{sJ}, 0
        s_cselect_b32 s{SGU}, s50, s48
        s_cselect_b32 s{SGU+1}, s51, s49
        s_cselect_b32 s7, 2, 1
        s_lshr_b32 s6, s{sJ}, 1
        s_lshl1_add_u32 s6, s{sKQ}, s6
        s_mul_i32 s4, s6, {72*9216}
        {MIXG}
        s_add_u32 s4, s4, s5
        s_add_u32 s{SGU}, s{SGU}, s4
        s_addc_u32 s{SGU+1}, s{SGU+1}, 0
        s_mov_b32 s{SGU+2}, {71*9216+128}
        s_mov_b32 s{SGU+3}, 0x20000
        v_and_b32 v{vT+2}, 7, v{vT}
        v_mul_u32_u24 v{vGU}, {8*9216}, v{vT+2}
        v_add_u32 v{vGU}, v{vGU}, v{vT+1}
        """)
        more(2)
        a(f"""
        v_mul_u32_u24 v{vPD}, 9216, v{vT+2}
        v_add_u32 v{vPD}, v{vPD}, v{vT+1}
        v_add_u32 v{vPD}, {64*9216}, v{vPD}
        s_waitcnt lgkmcnt(0)
        s_mov_b32 s{SR}, s54
        s_mov_b32 s{SR+1}, s55
        s_movk_i32 s{SR+2}, 1152
        s_mov_b32 s{SR+3}, 0x20000
        """)
        self.issue("GW", f"buffer_load_dwordx4 {r4(vX+4)}, v{vV}, s[{SR}:{SR+3}], 0 offen")
        if o["prefetch"]:
            a(f"""
            s_getpc_b64 s[4:5]
            s_lshr_b32 s7, s2, 3
            s_mul_i32 s7, s7, {128*o['prefetch']}
            v_and_b32 v{vT+3}, 63, v0
            v_lshl_add_u32 v{vT+3}, v{vT+3}, 7, s7
            s_mov_b64 exec, {(1 << o['prefetch']) - 1}
            """)
            self.issue("PF", f"global_load_dword v{vMc}, v{vT+3}, s[4:5]")
            a("s_mov_b64 exec, -1")
        more(o["early"])
        TLB = ""
        if o["tlb"]:
            TLB = f"""s_load_dword s33, s[{SK}:{SK+1}], 0
            s_load_dword s33, s[{SV}:{SV+1}], 0
            s_load_dword s33, s[{SO}:{SO+1}], 0
            s_load_dword s33, s[{SR}:{SR+1}], 0
            s_mul_i32 s4, s{sC6}, {64*1152}
            s_add_u32 s4, s52, s4
            s_addc_u32 s5, s53, 0
            s_load_dword s33, s[4:5], 0
            s_add_u32 s4, s52, {4300*1152}
            s_addc_u32 s5, s53, 0
            s_load_dword s33, s[4:5], 0"""
        a(f"""
        s_add_u32 s60, s60, {o['wsoff']:#x}
        s_addc_u32 s61, s61, 0
        s_load_dword s{sTAG}, s[60:61], 0
        s_bitcmp1_b32 s2, 3
        s_cselect_b32 s{SR}, s50, s48
        s_cselect_b32 s{SR+1}, s51, s49
        s_lshr_b32 s7, s2, 4
        s_mul_i32 s4, s7, {36*9216}
        s_and_b32 s5, s2, 7
        {"s_xor_b32 s5, s5, 4" if o["mix"] else ""}
        s_lshl_b32 s5, s5, 7
        s_add_u32 s4, s4, s5
        s_add_u32 s4, s4, 8192
        s_add_u32 s{SR}, s{SR}, s4
        s_addc_u32 s{SR+1}, s{SR+1}, 0
        s_mov_b32 s{SR+2}, {35*9216+128}
        v_mul_u32_u24 v{vPD2}, 9216, v{vT}
        v_add_u32 v{vPD2}, v{vPD2}, v{vT+1}
        v_add_u32 v{vPO}, {32*9216}, v{vPD2}
        s_lshr_b32 s{sG}, s{sC6}, 2
        s_and_b32 s{sS}, s2, 3
        s_lshl2_add_u32 s{sS}, s{sKQ}, s{sS}
        s_lshl_b32 s4, s{sG}, 24
        s_lshl_b32 s5, s{sS}, 16
        s_add_u32 s4, s4, s5
        s_add_u32 s4, s4, {61440*256}
        s_add_u32 s{SK}, s38, s4
        s_addc_u32 s{SK+1}, s39, 0
        s_mov_b32 s{SK+2}, 0x10000
        s_mov_b32 s{SK+3}, 0x20000
        s_add_u32 s{SV}, s40, s4
        s_addc_u32 s{SV+1}, s41, 0
        s_mov_b32 s{SV+2}, 0x10000
        s_mov_b32 s{SV+3}, 0x20000
        s_lshr_b32 s4, s2, 7
        s_mul_i32 s4, s4, 576
        s_add_u32 s{SD}, s52, s4
        s_addc_u32 s{SD+1}, s53, 0
        s_mov_b32 s{SD+2}, {4607*1152+576}
        s_mov_b32 s{SD+3}, 0x20000
        s_and_b32 s5, s{sS}, 7
        s_lshl3_add_u32 s5, s{sG}, s5
        s_mul_i32 s5, s5, {32*1152}
        s_add_u32 s4, s4, s5
        s_add_u32 s{SO}, s44, s4
        s_addc_u32 s{SO+1}, s45, 0
        s_mov_b32 s{SO+2}, {31*1152+576}
        s_mov_b32 s{SO+3}, 0x20000
        s_mov_b32 s{SW}, s60
        s_mov_b32 s{SW+1}, s61
        s_mov_b32 s{SW+2}, 0x100000
        s_mov_b32 s{SW+3}, 0x20000
        s_movk_i32 s{s4608}, 4608
        {TLB}
        v_and_b32 v{vL}, 63, v0
        v_and_b32 v{vU}, 3, v0
        v_lshlrev_b32 v{vU}, 4, v{vU}
        v_bfe_u32 v{vU+1}, v0, 2, 2
        v_lshl_add_u32 v{vU}, v{vU+1}, 8, v{vU}
        v_bfe_u32 v{vU+1}, v0, 4, 2
        v_lshl_add_u32 v{vU}, v{vU+1}, 6, v{vU}
        v_lshl_add_u32 v{vK}, v{vJ}, 10, v{vU}
        v_mov_b32 v{vTM}, 0xffffff00
        v_and_b32 v{vU}, 1, v0
        v_lshlrev_b32 v{vU}, 4, v{vU}
        v_mov_b32 v{vU+1}, 0xffff
        v_lshlrev_b32 v{vU}, v{vU}, v{vU+1}
        v_bfe_u32 v{vU+1}, v0, 1, 2
        v_cmp_eq_u32 s[4:5], 0, v{vU+1}
        v_cmp_eq_u32 s[100:101], 1, v{vU+1}
        v_cmp_eq_u32 vcc, 2, v{vU+1}
        v_cndmask_b32 v{vM[0]}, 0, v{vU}, s[4:5]
        v_cndmask_b32 v{vM[1]}, 0, v{vU}, s[100:101]
        v_cmp_eq_u32 s[100:101], 3, v{vU+1}
        v_cndmask_b32 v{vM[2]}, 0, v{vU}, vcc
        v_or_b32 v{vU+3}, v{vM[0]}, v{vM[2]}
        v_cndmask_b32 v{vM[3]}, 0, v{vU}, s[100:101]
        v_or_b32 v{vU+1}, v{vM[1]}, v{vM[3]}
        v_mov_b32 v{vU+2}, 0x0c0c0c0c
        s_mov_b32 s32, 0x01000100
        s_mov_b32 s63, 0x03020302
        v_bfi_b32 v{vSel[0]}, v{vU+3}, s32, v{vU+2}
        v_bfi_b32 v{vSel[1]}, v{vU+1}, s32, v{vU+2}
        v_bfi_b32 v{vSel[2]}, v{vU+3}, s63, v{vU+2}
        v_bfi_b32 v{vSel[3]}, v{vU+1}, s63, v{vU+2}
        """)
        if o["pt"]:
            a(f"""
            s_lshl_b32 s4, s2, 10
            s_add_u32 s4, s4, {RA}
            s_lshl4_add_u32 s5, s{sG}, s{sS}
            s_mul_i32 s5, s5, 1152
            s_add_u32 s5, s5, {OB}
            s_cmp_eq_u32 s{sJ}, 1
            s_cselect_b32 s4, s5, s4
            s_and_b32 s5, s2, 127
            s_mul_i32 s5, s5, {CG*16}
            s_lshr_b32 s100, s2, 7
            s_lshl1_add_u32 s100, s100, s{sJ}
            s_sub_u32 s100, s100, 2
            s_mul_i32 s100, s100, {9*128*CG*16}
            s_add_u32 s5, s5, s100
            s_add_u32 s5, s5, {FB}
            s_cmp_ge_u32 s{sJ}, 2
            s_cselect_b32 s4, s5, s4
            s_cselect_b32 s5, {(128*CG*16).bit_length()-1}, 7
            v_lshlrev_b32 v{vU}, s5, v{vL}
            v_add_u32 v{vU}, s4, v{vU}
            s_mov_b64 exec, 0x1ff
            """)
            self.issue("PT", f"buffer_load_dword v{vMx}, v{vU}, s[{SW}:{SW+3}], 0 offen {o['ptf']}")
            a("s_mov_b64 exec, -1")
        a(f"""
        v_lshlrev_b32 v{vU}, 2, v{vL}
        v_mov_b32 v{vU+4}, 0
        v_mov_b32 v{vU+5}, 0
        v_mov_b32 v{vU+6}, 0
        v_mov_b32 v{vU+7}, 0
        ds_write_b32 v{vU}, v{vU+4} offset:{HL}
        ds_write_b32 v{vU}, v{vU+4} offset:{XL+2304}
        v_lshlrev_b32 v{vU+1}, 3, v{vL}
        ds_write_b64 v{vU+1}, {r2(vU+4)} offset:{OLX+1024}
        v_and_b32 v{vU+1}, 1, v{vJ}
        v_lshlrev_b32 v{vU+1}, 11, v{vU+1}
        v_lshl_add_u32 v{vU+1}, v{vL}, 4, v{vU+1}
        ds_write_b128 v{vU+1}, {r4(vU+4)} offset:{P1+2048+1024}
        """)
        a(f"""
        s_mul_i32 s4, s{sKQ}, 576
        v_lshl_add_u32 v{vU+8}, v{vT}, 4, s4
        v_lshl_add_u32 v{vU+9}, v{vT}, 2, s4
        s_mul_i32 s4, s6, 288
        v_lshl_add_u32 v{vU+10}, v{vT+2}, 5, s4
        v_lshl_add_u32 v{vU+11}, v{vT+2}, 2, s4
        s_mul_i32 s4, s7, 144
        v_lshl_add_u32 v{vU+12}, v{vT}, 2, s4
        v_bfe_u32 v{vU+4}, v0, 3, 1
        v_bfe_u32 v{vU+5}, v0, 5, 1
        v_cmp_eq_u32 vcc, v{vU+4}, v{vU+5}
        v_bfe_u32 v{vU+4}, v0, 4, 1
        v_lshlrev_b32 v{vU+4}, 7, v{vU+4}
        v_lshl_add_u32 v{vU+4}, v{vU+5}, 8, v{vU+4}
        v_lshrrev_b32 v{vU+5}, 2, v{vT+1}
        v_add_u32 v{vU+4}, v{vU+4}, v{vU+5}
        v_lshl_add_u32 v{vU+13}, v{vJ}, 9, v{vU+4}
        s_and_b32 s4, s{sJ}, 1
        s_lshl_b32 s4, s4, 11
        s_lshr_b32 s5, s{sJ}, 1
        s_lshl_b32 s5, s5, 9
        s_add_u32 s4, s4, s5
        s_add_u32 s4, s4, 2048
        v_add_u32 v{vU+14}, s4, v{vU+4}
        v_mov_b32 v{vU+5}, {DUM-P1}
        v_cndmask_b32 v{vU+13}, v{vU+5}, v{vU+13}, vcc
        v_cndmask_b32 v{vU+14}, v{vU+5}, v{vU+14}, vcc
        v_mov_b32 v{vU+5}, {DUM-P1-6144}
        v_lshl_add_u32 v{vU+15}, v{vJ}, 9, v{vU+4}
        v_cndmask_b32 v{vU+15}, v{vU+5}, v{vU+15}, vcc
        v_lshlrev_b32 v{vU+16}, 5, v0
        v_min_u32 v{vU+16}, 2304, v{vU+16}
        """)
        if o["skewm"]:
            a(f"""
            s_waitcnt lgkmcnt(0)
            s_lshl_b32 s4, s2, 2
            s_add_u32 s4, s4, 0xF0000
            v_mov_b32 v{vBq}, s16
            v_mov_b32 v{vBq+1}, s4
            s_mov_b64 exec, 1
            """)
            self.issue("SK", f"buffer_store_dword v{vBq}, v{vBq+1}, s[{SW}:{SW+3}], 0 offen sc1")
            a("s_mov_b64 exec, -1")
        (None if o["st4"] else self.stamp("prol"))
        if o["st3"]:
            self.wait("Q0"); self.stamp("Q0land")
        self.wait("X")
        if o["st3"]: self.stamp("Xland")
        for i in range(4):
            a(f"v_perm_b32 v{vT+2*i}, v{vX+i}, v{vX+i}, s32")
            a(f"v_perm_b32 v{vT+2*i+1}, v{vX+i}, v{vX+i}, s63")
        a(f"""
        ds_write_b128 v{vU+16}, {r4(vT)} offset:{XL}
        ds_write_b128 v{vU+16}, {r4(vT+4)} offset:{XL+16}
        """)
        fill("Q4")
        a(f"""
        s_waitcnt lgkmcnt(0)
        s_barrier
        ds_read_b128 {r4(vS)}, v{vU+8} offset:{XL}
        ds_read_b32 v{vS+4}, v{vU+9} offset:{XL+512}
        ds_read_b128 {r4(vS+8)}, v{vU+10} offset:{XL}
        ds_read_b128 {r4(vS+12)}, v{vU+10} offset:{XL+16}
        ds_read_b32 v{vS+5}, v{vU+11} offset:{XL+256}
        ds_read_b32 v{vS+6}, v{vU+12} offset:{XL}
        ds_read_b32 v{vS+7}, v{vU+12} offset:{XL+128}
        s_add_u32 s{sTAG}, s{sTAG}, 1
        s_and_b32 s{sTAG}, s{sTAG}, 0xff
        s_waitcnt lgkmcnt(5)
        """)
        nb = [0]
        def l8(lbl, xreg, acc, first, dowait=True):
            B = vT + 4 * (nb[0] % 4); nb[0] += 1
            for j in range(4): a(f"v_and_b32 v{B+j}, v{xreg}, v{vM[j]}")
            if dowait: self.wait(lbl)
            a(f"v_mfma_f32_16x16x32_bf16 {r4(acc)}, {r4(dst[lbl])}, {r4(B)}, {'0' if first else r4(acc)}")
        for t in range(5): l8(f"Q{t}", vS + t, vAq, t == 0, False)
        self.wait("GW")
        for i in range(4):
            a(f"""
            v_lshlrev_b32 v{vU}, 16, v{vX+i}
            v_and_b32 v{vU+1}, 0xffff0000, v{vX+i}
            v_lshlrev_b32 v{vU+2}, 16, v{vX+4+i}
            v_and_b32 v{vU+3}, 0xffff0000, v{vX+4+i}
            v_pk_mul_f32 {r2(vU)}, {r2(vU)}, {r2(vU+2)}
            v_cvt_pk_bf16_f32 v{vU}, v{vU}, v{vU+1}
            v_and_b32 v{vU+1}, 0xffff0000, v{vU}
            v_lshlrev_b32 v{vU}, 16, v{vU}
            """)
            if i == 0: a(f"v_pk_mul_f32 {r2(vU+4)}, {r2(vU)}, 1.0 op_sel_hi:[1,0]")
            else: a(f"v_pk_add_f32 {r2(vU+4)}, {r2(vU+4)}, {r2(vU)}")
        for i in range(4): a(f"ds_write_b32 v{vU+13}, v{vAq+i} offset:{P1+32*i}")
        a(f"v_add_f32 v{vU+4}, v{vU+4}, v{vU+5}")
        for r in (1, 2, 4, 8): a(f"v_add_f32_dpp v{vU+4}, v{vU+4}, v{vU+4} row_ror:{r} {DPP}")
        a(f"""
        v_lshrrev_b32 v{vU+1}, 4, v0
        v_lshlrev_b32 v{vU+1}, 2, v{vU+1}
        ds_write_b32 v{vU+1}, v{vU+4} offset:{GS}
        s_lshl_b32 s4, s2, 10
        s_add_u32 s4, s4, {RA}
        v_lshl_add_u32 v{vFA}, v{vL}, 4, s4
        s_waitcnt lgkmcnt(0)
        s_barrier
        """)
        def pubA(lo, hi, wave, name):
            L = self.lab(name)
            mask = ((1 << hi) - 1) ^ ((1 << lo) - 1)
            a(f"""
            s_cmp_lg_u32 s{sJ}, {wave}
            s_cbranch_scc1 {L}
            s_mov_b32 exec_lo, {mask & 0xffffffff:#x}
            s_mov_b32 exec_hi, {mask >> 32:#x}
            v_lshrrev_b32 v{vU}, 4, v{vL}
            v_lshlrev_b32 v{vU}, 11, v{vU}
            v_and_b32 v{vU+1}, 15, v{vL}
            v_lshl_add_u32 v{vU}, v{vU+1}, 4, v{vU}
            """)
            tg = [vAO, vAO + 4, vBq, vPoll, vU + 4, vU + 8, vU + 20, vU + 24]
            for p in range(8): a(f"ds_read_b128 {r4(tg[p])}, v{vU} offset:{P1+256*p}")
            a("s_waitcnt lgkmcnt(0)")
            for p in range(1, 8): pkadd(tg[0], tg[0], tg[p])
            tagins(tg[0])
            a(f"""
            s_branch {L}s
            {L}:
            s_mov_b64 exec, 0
            {L}s:
            """)
            self.issue(name, f"buffer_store_dwordx4 {r4(tg[0])}, v{vFA}, s[{SW}:{SW+3}], 0 offen sc1")
            a("s_mov_b64 exec, -1")
        pubA(0, 16, 3, "qpub")
        (None if o["st4"] else self.stamp("qpub"))
        more(o["pre_qp"])
        for k in range(9):
            l8(f"G{k}", vS + 8 + k if k < 8 else vS + 5, vAg, k == 0)
            fill(f"G{k}")
            if k == 2:
                a(f"""
                v_mov_b32 v{vU}, 0
                ds_read_b128 {r4(vU+4)}, v{vU} offset:{GS}
                ds_read_b32 v{vU+8}, v{vU} offset:{GS+16}
                s_waitcnt lgkmcnt(0)
                v_pk_add_f32 {r2(vU+4)}, {r2(vU+4)}, {r2(vU+6)}
                v_add_f32 v{vU}, v{vU+4}, v{vU+5}
                v_add_f32 v{vU}, v{vU}, v{vU+8}
                v_cvt_pk_bf16_f32 v{vU}, v{vU}, v{vU}
                v_lshlrev_b32 v{vU}, 16, v{vU}
                v_mul_f32 v{vU}, {f2u(-1.4426950408889634):#x}, v{vU}
                v_exp_f32 v{vU}, v{vU}
                v_add_f32 v{vU}, 1.0, v{vU}
                v_rcp_f32 v{vU}, v{vU}
                v_cvt_pk_bf16_f32 v{vU}, v{vU}, v{vU}
                v_lshlrev_b32 v{vG}, 16, v{vU}
                v_sub_f32 v{vU}, 1.0, v{vG}
                v_cvt_pk_bf16_f32 v{vU}, v{vU}, v{vU}
                v_lshlrev_b32 v{vOMG}, 16, v{vU}
                """)
            if k == 5:
                a(f"""
                s_lshl_b32 s4, s{sJ}, 16
                s_lshl_b32 s5, s{sG}, 12
                s_add_u32 s4, s4, s5
                s_add_u32 s4, s4, {RA}
                v_lshrrev_b32 v{vU}, 4, v{vL}
                v_lshlrev_b32 v{vU}, 10, v{vU}
                v_and_b32 v{vU+1}, 15, v{vL}
                v_lshl_add_u32 v{vU}, v{vU+1}, 4, v{vU}
                v_add_u32 v{vQa}, s4, v{vU}
                """)
        for k in range(2):
            l8(f"R{k}", vS + 6 + k, vAr, k == 0)
            if k == 1: self.gdone = True
            fill(f"R{k}")
        for i in range(4): a(f"ds_write_b32 v{vU+14}, v{vAg+i} offset:{P1+32*i}")
        a(f"""
        v_mul_u32_u24 v{vRS}, 1821, v0
        v_lshrrev_b32 v{vRS}, 16, v{vRS}
        v_mul_u32_u24 v{vCH}, 36, v{vRS}
        v_sub_u32 v{vCH}, v0, v{vCH}
        v_mul_u32_u24 v{vPO}, {6*1152}, v{vRS}
        v_lshl_add_u32 v{vPO}, v{vCH}, 4, v{vPO}
        v_add_u32 v{vGU}, 4608, v{vPO}
        """)
        for i in range(4): a(f"ds_write_b32 v{vU+15}, v{vAr+i} offset:{P1+6144+32*i}")
        a(f"""
        s_bfe_u32 s4, s2, 0x10006
        s_lshl1_add_u32 s4, s{sC6}, s4
        s_mul_i32 s4, s4, {32*1152}
        v_add_u32 v{vPD}, s4, v{vPO}
        s_and_b32 s5, s2, 127
        s_mul_i32 s5, s5, {4*1152}
        s_add_u32 s5, s5, {(4096-2)*1152}
        v_lshl_add_u32 v{vPD2}, v{vCH}, 4, s5
        v_cmp_gt_u32 vcc, 5, v{vRS}
        v_cmp_gt_u32 s[4:5], 6, v{vRS}
        v_bfrev_b32 v{vU}, -2
        v_cndmask_b32 v{vPD2}, v{vPD2}, v{vPD}, vcc
        v_cndmask_b32 v{vPD}, v{vU}, v{vPD}, s[4:5]
        v_cndmask_b32 v{vPD2}, v{vU}, v{vPD2}, s[4:5]
        v_mul_u32_u24 v{vU}, 1152, v{vRS}
        v_lshl_add_u32 v{vCH}, v{vCH}, 5, v{vU}
        v_mul_u32_u24 v{vRS}, 12, v{vRS}
        v_add_u32 v{vRS}, {HL}, v{vRS}
        s_waitcnt lgkmcnt(0)
        s_barrier
        """)
        pubA(16, 64, 2, "gpub")
        (None if o["st4"] else self.stamp("gpub"))
        more(o["pre_g"])
        qload = f"buffer_load_dwordx4 {r4(vPoll)}, v{vQa}, s[{SW}:{SW+3}], 0 offen sc1"
        for k in range(o["qp"] + 1):
            self.wait(f"K{k}"); fill(f"K{k}")
        self.issue("QP", qload.replace("sc1", o["first"]))
        lastK = min(15, self.ip - 1 - big.index("K0"))
        for k in range(o["qp"] + 1, lastK + 1):
            self.wait(f"K{k}"); fill(f"K{k}")
        more(o["pre_q"])
        a(f"""
        v_bfe_u32 v{vU+1}, v0, 3, 1
        v_lshlrev_b32 v{vU+1}, 9, v{vU+1}
        v_bfe_u32 v{vU+2}, v0, 4, 2
        v_lshl_add_u32 v{vU+1}, v{vU+2}, 7, v{vU+1}
        v_and_b32 v{vU+2}, 3, v0
        v_lshl_add_u32 v{vU+1}, v{vU+2}, 5, v{vU+1}
        """)
        self.wait("QP")
        retry_loop("q", [qload], [vPoll], vU)
        a(f"""
        ds_write_b128 v{vV}, {r4(vPoll)} offset:{QL}
        s_waitcnt lgkmcnt(0)
        s_barrier
        """)
        qd = [vT, vT + 8, vU + 8, vU + 16]
        for k in range(4):
            a(f"ds_read_b128 {r4(qd[k])}, v{vU+1} offset:{QL+1024*k}")
            a(f"ds_read_b128 {r4(qd[k]+4)}, v{vU+1} offset:{QL+1024*k+16}")
        a("s_waitcnt lgkmcnt(4)")
        for i in range(0, 8, 2): a(f"v_pk_add_f32 {r2(qd[0]+i)}, {r2(qd[0]+i)}, {r2(qd[1]+i)}")
        a("s_waitcnt lgkmcnt(0)")
        for i in range(0, 8, 2): a(f"v_pk_add_f32 {r2(qd[2]+i)}, {r2(qd[2]+i)}, {r2(qd[3]+i)}")
        for i in range(0, 8, 2): a(f"v_pk_add_f32 {r2(qd[0]+i)}, {r2(qd[0]+i)}, {r2(qd[2]+i)}")
        for i in range(4): a(f"v_cvt_pk_bf16_f32 v{vBq+i}, v{qd[0]+2*i}, v{qd[0]+2*i+1}")
        (None if o["st4"] else self.stamp("qcons"))
        if o["round_scores"]: a(f"s_mov_b32 s{sC}, {f2u(128 ** -0.5):#x}")
        def qk_fin(t):
            D = vT + 4 * (t % 4)
            a(f"v_mov_b32_dpp v{vS+t}, v{D} quad_perm:[0,0,0,0] {DPP}")
            for u in range(1, 4): a(f"v_add_f32_dpp v{vS+t}, v{D+u}, v{vS+t} quad_perm:[{u},{u},{u},{u}] {DPP}")
            if t & 1:
                t0 = t - 1
                if o["round_scores"]:
                    a(f"""
                    v_cvt_pk_bf16_f32 v{vU}, v{vS+t0}, v{vS+t0+1}
                    v_lshlrev_b32 v{vS+t0}, 16, v{vU}
                    v_and_b32 v{vS+t0+1}, 0xffff0000, v{vU}
                    v_mul_f32 v{vS+t0}, s{sC}, v{vS+t0}
                    v_mul_f32 v{vS+t0+1}, s{sC}, v{vS+t0+1}
                    v_cvt_pk_bf16_f32 v{vU}, v{vS+t0}, v{vS+t0+1}
                    v_lshlrev_b32 v{vS+t0}, 16, v{vU}
                    v_and_b32 v{vS+t0+1}, 0xffff0000, v{vU}
                    """)
                if t == 1: a(f"v_max_f32 v{vU+1}, v{vS}, v{vS+1}")
                else: a(f"v_max3_f32 v{vU+1}, v{vU+1}, v{vS+t0}, v{vS+t0+1}")
        for t in range(16):
            if t > lastK: self.wait(f"K{t}")
            D = vT + 4 * (t % 4)
            a(f"v_mfma_f32_16x16x32_bf16 {r4(D)}, {r4(dst[f'K{t}'])}, {r4(vBq)}, 0")
            if t == 15: self.kdone = True
            if t > lastK: fill(f"K{t}")
            if t >= 2: qk_fin(t - 2)
        more(o["pre_s"])
        a(f"""
        v_bfe_u32 v{vU+2}, v0, 3, 1
        v_lshlrev_b32 v{vU+2}, 6, v{vU+2}
        v_lshrrev_b32 v{vU+3}, 4, v0
        v_lshl_add_u32 v{vK}, v{vU+3}, 2, v{vU+2}
        """)
        qk_fin(14); qk_fin(15)
        cexp = 1.4426950408889634 if o["round_scores"] else 128 ** -0.5 * 1.4426950408889634
        a(f"""
        ds_write_b32 v{vK}, v{vU+1} offset:{MX}
        s_mov_b32 s{sC}, {f2u(cexp):#x}
        s_waitcnt lgkmcnt(0)
        s_barrier
        """)
        for i in range(4): a(f"ds_read_b128 {r4(vT+4*i)}, v{vU+2} offset:{MX+16*i}")
        a("s_waitcnt lgkmcnt(0)")
        a(f"v_max3_f32 v{vT}, v{vT}, v{vT+1}, v{vT+2}")
        for t in range(3, 15, 2): a(f"v_max3_f32 v{vT}, v{vT}, v{vT+t}, v{vT+t+1}")
        a(f"v_max_f32 v{vMx}, v{vT}, v{vT+15}")
        a(f"v_and_b32 v{vMx}, v{vMx}, v{vTM}")
        a(f"v_mul_f32 v{vMc}, s{sC}, v{vMx}")
        for t in range(16): a(f"v_fma_f32 v{vS+t}, v{vS+t}, s{sC}, -v{vMc}")
        for t in range(16): a(f"v_exp_f32 v{vS+t}, v{vS+t}")
        a(f"v_pk_add_f32 {r2(vT)}, {r2(vS)}, {r2(vS+2)}")
        for t in range(4, 16, 2): a(f"v_pk_add_f32 {r2(vT)}, {r2(vT)}, {r2(vS+t)}")
        a(f"v_add_f32 v{vT}, v{vT}, v{vT+1}")
        a(f"ds_write_b32 v{vK}, v{vT} offset:{LS}")
        self.stamp("smax")
        Lha = self.lab("haddr")
        hl = [f"buffer_load_dwordx4 {r4(vAO)}, v{vQa}, s[{SW}:{SW+3}], 0 offen sc1",
              f"buffer_load_dwordx4 {r4(vAO+4)}, v{vQb}, s[{SW}:{SW+3}], 0 offen sc1"]
        a(f"""
        s_cmp_lg_u32 s{sJ}, 3
        s_cbranch_scc1 {Lha}
        s_bfe_u32 s4, s2, 0x10006
        s_lshl_b32 s4, s4, 7
        s_add_u32 s4, s4, {RA+256}
        v_and_b32 v{vU}, 3, v0
        v_lshlrev_b32 v{vU}, 16, v{vU}
        v_bfe_u32 v{vU+1}, v0, 5, 1
        v_lshl_add_u32 v{vU}, v{vU+1}, 8, v{vU}
        v_add_u32 v{vU+1}, 1, v{vU+1}
        {"" if o["mix"] else f"v_mov_b32 v{vU+1}, 0"}
        v_xor_b32 v{vU+1}, s{sC6}, v{vU+1}
        v_lshl_add_u32 v{vU}, v{vU+1}, 10, v{vU}
        v_bfe_u32 v{vU+1}, v0, 2, 3
        v_lshl_add_u32 v{vU}, v{vU+1}, 4, v{vU}
        v_add_u32 v{vQa}, s4, v{vU}
        s_bfe_u32 s4, s2, 0x30004
        {"s_xor_b32 s4, s4, 4" if o["mix"] else ""}
        s_lshl_b32 s4, s4, 10
        s_and_b32 s5, s2, 15
        s_lshl_b32 s5, s5, 4
        s_add_u32 s4, s4, s5
        s_add_u32 s4, s4, {RA+768}
        v_and_b32 v{vU}, 15, v0
        v_lshlrev_b32 v{vU}, 14, v{vU}
        v_bfe_u32 v{vU+1}, v0, 4, 1
        v_lshl_add_u32 v{vU}, v{vU+1}, 13, v{vU}
        v_add_u32 v{vQb}, s4, v{vU}
        {Lha}:
        """)
        hcheck = None
        for t in range(16):
            B = vT + 4 * (t % 2)
            a(f"v_cvt_pk_bf16_f32 v{vU}, v{vS+t}, v{vS+t}")
            for j in range(4): a(f"v_and_b32 v{B+j}, v{vU}, v{vM[j]}")
            self.wait(f"V{t}")
            a(f"v_mfma_f32_16x16x32_bf16 {r4(vAcc)}, {r4(dst[f'V{t}'])}, {r4(B)}, {'0' if t == 0 else r4(vAcc)}")
            fill(f"V{t}", min(W, 15 + o["Wt"] - t))
            if o["st4"] and t in (1, 2, 5, 8, 9, 12): self.stamp(f"V{t}")
            if t == o["hp"]:
                a(f"s_cmp_eq_u32 s{sJ}, 3"); a("s_cselect_b64 exec, -1, 0")
                for i, ld in enumerate(hl): self.issue(f"H{i}", ld.replace("sc1", o["first"]))
                a("s_mov_b64 exec, -1")
                self.hmark = len(self.vm)
                hcheck = min(15, self.ip - big.index("V0"))
            if t == 3:
                a(f"""
                v_bfe_u32 v{vK}, v0, 3, 1
                v_lshlrev_b32 v{vK}, 9, v{vK}
                v_bfe_u32 v{vU+1}, v0, 4, 2
                v_lshl_add_u32 v{vK}, v{vU+1}, 7, v{vK}
                v_and_b32 v{vU+1}, 7, v0
                v_lshl_add_u32 v{vK}, v{vU+1}, 2, v{vK}
                v_lshl_add_u32 v{vK}, v{vJ}, 10, v{vK}
                s_lshl4_add_u32 s6, s{sG}, s{sS}
                s_mul_i32 s6, s6, 1152
                s_add_u32 s6, s6, {OB}
                v_lshl_add_u32 v{vX+4}, v{vL}, 4, s6
                s_mul_i32 s4, s{sG}, {16*1152}
                s_add_u32 s4, s4, {OB}
                v_and_b32 v{vX+5}, 15, v0
                v_mul_u32_u24 v{vX+5}, 1152, v{vX+5}
                v_add_u32 v{vX+5}, s4, v{vX+5}
                s_and_b32 s5, s{sS}, 7
                s_lshl_b32 s5, s5, 7
                s_lshr_b32 s4, s{sJ}, 1
                s_lshl_b32 s4, s4, 6
                s_add_u32 s4, s4, s5
                v_bfe_u32 v{vU+1}, v0, 4, 2
                v_lshl_add_u32 v{vX+6}, v{vU+1}, 4, v{vX+5}
                v_add_u32 v{vX+6}, s4, v{vX+6}
                s_bfe_u32 s4, s{sS}, 0x10002
                s_lshl_b32 s4, s4, 3
                v_add_u32 v{vX+5}, s4, v{vX+5}
                v_lshrrev_b32 v{vFA}, {CG.bit_length()-1}, v0
                v_mul_u32_u24 v{vFA}, {128*CG*16}, v{vFA}
                v_and_b32 v{vU+1}, {CG-1}, v0
                v_lshl_add_u32 v{vFA}, v{vU+1}, 4, v{vFA}
                s_and_b32 s4, s2, 127
                s_mul_i32 s4, s4, {CG*16}
                s_lshr_b32 s5, s2, 7
                s_mul_i32 s5, s5, {72*128*16}
                s_add_u32 s4, s4, s5
                s_add_u32 s4, s4, {FB}
                v_add_u32 v{vFA}, s4, v{vFA}
                """)
            if t == 4:
                a(f"""
                v_subrev_u32 v{vX+7}, {HL}, v{vRS}
                v_and_b32 v{vU+1}, 3, v0
                v_lshlrev_b32 v{vU+1}, 3, v{vU+1}
                v_lshl_add_u32 v{vX+7}, v{vX+7}, 4, v{vU+1}
                v_add_u32 v{vX+7}, {OLX}, v{vX+7}
                v_bfe_u32 v{vU+1}, v0, 2, 2
                s_mov_b32 s4, 0x02020202
                v_mul_lo_u32 v{vU+1}, v{vU+1}, s4
                v_add_u32 v{vU+1}, s32, v{vU+1}
                v_or_b32 v{vU+2}, v{vM[0]}, v{vM[2]}
                v_or_b32 v{vU+3}, v{vM[1]}, v{vM[3]}
                v_mov_b32 v{vU+4}, 0x0c0c0c0c
                v_bfi_b32 v{vBq+2}, v{vU+2}, v{vU+1}, v{vU+4}
                v_bfi_b32 v{vBq+3}, v{vU+3}, v{vU+1}, v{vU+4}
                s_lshr_b32 s5, s{sJ}, 1
                s_lshl_b32 s5, s5, 9
                s_add_u32 s5, s5, {OLX}
                v_lshl_add_u32 v{vX+3}, v{vL}, 3, s5
                """)
            if hcheck is not None and t == min(15, hcheck):
                hcheck = None
                Lh = self.lab("hfin")
                a(f"""
                s_cmp_lg_u32 s{sJ}, 3
                s_cbranch_scc1 {Lh}
                s_waitcnt vmcnt({len(self.vm) - self.hmark})
                """)
                retry_loop("h", hl, [vAO, vAO + 4], vU)
                for i in range(4): a(f"v_add_f32_dpp v{vAO+i}, v{vAO+i}, v{vAO+i} quad_perm:[1,0,3,2] {DPP}")
                for i in range(4): a(f"v_add_f32_dpp v{vAO+4+i}, v{vAO+4+i}, v{vAO+4+i} row_ror:1 {DPP}")
                for i in range(4): a(f"v_add_f32_dpp v{vAO+i}, v{vAO+i}, v{vAO+i} quad_perm:[2,3,0,1] {DPP}")
                for r in (2, 4, 8):
                    for i in range(4): a(f"v_add_f32_dpp v{vAO+4+i}, v{vAO+4+i}, v{vAO+4+i} row_ror:{r} {DPP}")
                a(f"""
                v_bfe_u32 v{vU+1}, v0, 5, 1
                v_mul_u32_u24 v{vU+1}, 192, v{vU+1}
                v_bfe_u32 v{vU+2}, v0, 2, 3
                v_lshl_add_u32 v{vU+1}, v{vU+2}, 4, v{vU+1}
                ds_write_b128 v{vU+1}, {r4(vAO)} offset:{HP}
                v_bfe_u32 v{vU+1}, v0, 4, 1
                v_mul_u32_u24 v{vU+1}, 192, v{vU+1}
                ds_write_b128 v{vU+1}, {r4(vAO+4)} offset:{HP+128}
                v_min_u32 v{vU+1}, 35, v{vL}
                v_lshlrev_b32 v{vU+2}, 2, v{vU+1}
                v_add_u32 v{vU+2}, {HP}, v{vU+2}
                s_waitcnt lgkmcnt(0)
                ds_read2_b32 {r2(vU+4)}, v{vU+2} offset0:0 offset1:48
                v_lshlrev_b32 v{vU+1}, 1, v{vU+1}
                s_waitcnt lgkmcnt(0)
                v_cvt_pk_bf16_f32 v{vU+4}, v{vU+4}, v{vU+5}
                v_and_b32 v{vU+5}, 0xffff0000, v{vU+4}
                v_lshlrev_b32 v{vU+4}, 16, v{vU+4}
                v_max_f32 v{vU+4}, 0, v{vU+4}
                v_mul_f32 v{vU+4}, v{vU+4}, v{vU+5}
                v_cvt_pk_bf16_f32 v{vU+4}, v{vU+4}, v{vU+4}
                ds_write_b16 v{vU+1}, v{vU+4} offset:{HL}
                {Lh}:
                """)
        assert hcheck is None
        for i in range(4): a(f"ds_write_b32 v{vK}, v{vAcc+i} offset:{OW+32*i}")
        a(f"""
        s_waitcnt lgkmcnt(0)
        s_barrier
        """)
        self.stamp("pvdone")
        Lo1 = self.lab("opub"); Lm = self.lab("mlpub")
        a(f"""
        s_cmp_eq_u32 s{sJ}, 2
        s_cbranch_scc1 {Lm}
        s_cmp_lg_u32 s{sJ}, 0
        s_cbranch_scc1 {Lo1}
        """)
        for jj in range(4): a(f"ds_read_b128 {r4(vT+4*jj)}, v{vV} offset:{OW+1024*jj}")
        a("s_waitcnt lgkmcnt(2)")
        pkadd(vT, vT, vT + 4)
        a("s_waitcnt lgkmcnt(0)")
        pkadd(vT + 8, vT + 8, vT + 12); pkadd(vT, vT, vT + 8)
        a(f"""
        s_branch {Lo1}t
        {Lm}:
        v_bfe_u32 v{vU+1}, v0, 3, 1
        v_lshlrev_b32 v{vU+1}, 6, v{vU+1}
        """)
        for i in range(4): a(f"ds_read_b128 {r4(vU+4+4*i)}, v{vU+1} offset:{LS+16*i}")
        a(f"v_add_u32 v{vX+4}, 1024, v{vX+4}")
        a("s_waitcnt lgkmcnt(0)")
        pkadd(vU + 4, vU + 4, vU + 8); pkadd(vU + 12, vU + 12, vU + 16); pkadd(vU + 4, vU + 4, vU + 12)
        a(f"""
        v_pk_add_f32 {r2(vU+4)}, {r2(vU+4)}, {r2(vU+6)}
        v_add_f32 v{vT+1}, v{vU+4}, v{vU+5}
        v_mov_b32 v{vT}, v{vMx}
        v_mov_b32_dpp v{vT+2}, v{vMx} row_shl:8 {DPP}
        v_mov_b32_dpp v{vT+3}, v{vT+1} row_shl:8 {DPP}
        s_mov_b64 exec, 1
        {Lo1}t:
        """)
        tagins(vT)
        a(f"""
        s_branch {Lo1}s
        {Lo1}:
        s_mov_b64 exec, 0
        {Lo1}s:
        """)
        self.issue("OP", f"buffer_store_dwordx4 {r4(vT)}, v{vX+4}, s[{SW}:{SW+3}], 0 offen sc1")
        a("s_mov_b64 exec, -1")
        if o["obar"]: a("s_barrier")
        (None if o["st4"] else self.stamp("opub"))
        fill("V15", o["post"])
        a(f"""
        ds_read2_b32 {r2(vX)}, v{vRS} offset0:0 offset1:1
        ds_read_b32 v{vX+2}, v{vRS} offset:8
        """)
        def flat_A(k, xsrc):
            p = k & 1; A = vU + 2 * p
            a(f"v_perm_b32 v{A}, v{xsrc+(k>>1)}, v{xsrc+(k>>1)}, v{vSel[2*p]}")
            a(f"v_perm_b32 v{A+1}, v{xsrc+(k>>1)}, v{xsrc+(k>>1)}, v{vSel[2*p+1]}")
            return A
        def flat_mfma(A, data, acc, first):
            a(f"v_mfma_f32_4x4x4_16b_bf16 {r4(acc)}, {r2(A)}, {r2(data)}, {'0' if first else r4(acc)}")
            a(f"v_mfma_f32_4x4x4_16b_bf16 {r4(acc+4)}, {r2(A)}, {r2(data+2)}, {'0' if first else r4(acc+4)}")
        def omk(st): return [f"buffer_load_dwordx4 {r4(st[0])}, v{vX+6}, s[{SW}:{SW+3}], 0 offen sc1",
                             f"buffer_load_dwordx2 {r2(st[0]+4)}, v{vX+5}, s[{SW}:{SW+3}], 0 offen offset:1024 sc1"]
        osets = [[R1 + 8 * d] for d in range(o["odepth"])]
        a("s_waitcnt lgkmcnt(0)")
        polled = False
        for k in range(6):
            A = flat_A(k, vX)
            self.wait(f"D{k}")
            flat_mfma(A, dst[f"D{k}"], vAD, k == 0)
            fill(f"D{k}", o["post"])
            if self.ip == len(big) and k >= o["opa"] and not polled:
                polled = True
                a(f"s_bitcmp1_b32 s{sJ}, 0"); a("s_cselect_b64 exec, -1, 0")
                for i, ld in enumerate(omk(osets[0])): self.issue(f"OPL{i}", ld)
                a("s_mov_b64 exec, -1")
        assert polled
        (None if o["st3"] else self.stamp("Ddone"))
        for i in range(0, 8): a(f"v_mul_f32 v{vAD+i}, v{vOMG}, v{vAD+i}")
        Lo2 = self.lab("ocons")
        a(f"""
        s_bitcmp0_b32 s{sJ}, 0
        s_cbranch_scc1 {Lo2}
        """)
        P = vS
        def ofin(st):
            a(f"v_and_b32 v{vBq}, v{st[0]+4}, v{vTM}")
            a(f"v_mov_b32 v{vBq+1}, v{st[0]+5}")
            a(f"v_pk_mul_f32 {r2(P)}, {r2(st[0])}, {r2(vG-1)} op_sel:[0,1] op_sel_hi:[1,1]")
            a(f"v_pk_mul_f32 {r2(P+2)}, {r2(st[0]+2)}, {r2(vG-1)} op_sel:[0,1] op_sel_hi:[1,1]")
        pipe_poll("o", omk, osets, vU + 4, 1, ofin, o["osleep"], extra=2)
        (None if o["st3"] else self.stamp("opollok"))
        a(f"v_max_f32_dpp v{vU+4}, v{vBq}, v{vBq} row_ror:1 {DPP}")
        for r in (2, 4, 8): a(f"v_max_f32_dpp v{vU+4}, v{vU+4}, v{vU+4} row_ror:{r} {DPP}")
        a(f"""
        v_sub_f32 v{vBq}, v{vBq}, v{vU+4}
        v_mul_f32 v{vBq}, s{sC}, v{vBq}
        v_exp_f32 v{vBq}, v{vBq}
        v_mul_f32 v{P+4}, v{vBq}, v{vBq+1}
        v_pk_mul_f32 {r2(P)}, {r2(P)}, {r2(vBq)} op_sel_hi:[1,0]
        v_pk_mul_f32 {r2(P+2)}, {r2(P+2)}, {r2(vBq)} op_sel_hi:[1,0]
        """)
        for r in (1, 2, 4, 8):
            for i in (4, 0, 1, 2, 3): a(f"v_add_f32_dpp v{P+i}, v{P+i}, v{P+i} row_ror:{r} {DPP}")
            if r == 8: self.l.insert(len(self.l) - 2, f"    v_rcp_f32 v{vBq}, v{P+4}")
        a(f"""
        v_pk_mul_f32 {r2(P)}, {r2(P)}, {r2(vBq)} op_sel_hi:[1,0]
        v_pk_mul_f32 {r2(P+2)}, {r2(P+2)}, {r2(vBq)} op_sel_hi:[1,0]
        v_cvt_pk_bf16_f32 v{P}, v{P}, v{P+1}
        v_cvt_pk_bf16_f32 v{P+1}, v{P+2}, v{P+3}
        v_perm_b32 v{P+2}, v{P+1}, v{P}, v{vBq+2}
        v_perm_b32 v{P+3}, v{P+1}, v{P}, v{vBq+3}
        ds_write_b64 v{vX+3}, {r2(P+2)}
        s_branch {Lo2}x
        {Lo2}:
        s_waitcnt vmcnt(0)
        {Lo2}x:
        v_cmp_gt_u32 vcc, 72, v0
        s_waitcnt lgkmcnt(0)
        s_barrier
        """)
        for k in range(3): a(f"ds_read2_b64 {r4(vT+4*k)}, v{vX+7} offset0:{8*k} offset1:{8*k+4}")
        (None if o["st3"] else self.stamp("B7"))
        for k in range(6):
            if k % 2 == 0: a(f"s_waitcnt lgkmcnt({0 if o['stamps'] else 2 - k // 2})")
            flat_mfma(vT + 2 * k, dst[f"O{k}"], vAD, False)
        Lf = self.lab("fpub")
        a(f"""
        ds_write_b128 v{vCH}, {r4(vAD)} offset:{LF}
        ds_write_b128 v{vCH}, {r4(vAD+4)} offset:{LF+16}
        s_waitcnt lgkmcnt(0)
        s_barrier
        s_and_saveexec_b64 s[4:5], vcc
        s_cbranch_execz {Lf}
        """)
        tg = [vT, vT + 4, vT + 8, vT + 12, vT + 16, vU + 4]
        for p in range(6): a(f"ds_read_b128 {r4(tg[p])}, v{vV} offset:{LF+1152*p}")
        a("s_waitcnt lgkmcnt(4)"); pkadd(tg[0], tg[0], tg[1])
        a("s_waitcnt lgkmcnt(2)"); pkadd(tg[2], tg[2], tg[3])
        a("s_waitcnt lgkmcnt(0)"); pkadd(tg[4], tg[4], tg[5]); pkadd(tg[0], tg[0], tg[2]); pkadd(tg[0], tg[0], tg[4])
        tagins(vT)
        a(f"""
        buffer_store_dwordx4 {r4(vT)}, v{vFA}, s[{SW}:{SW+3}], 0 offen sc1
        {Lf}:
        s_mov_b64 exec, s[4:5]
        """)
        self.stamp("fpub")
        NL = CG // 2
        a(f"""
        s_cmpk_ge_u32 s2, {R}
        s_cbranch_scc1 L_fin
        s_mul_i32 s4, s2, {128*CG*16}
        s_add_u32 s4, s4, {FB}
        """)
        if CG == 4:
            a(f"""
            v_and_b32 v{vQa}, 15, v0
            v_lshlrev_b32 v{vQa}, 6, v{vQa}
            v_bfe_u32 v{vQb}, v0, 4, 2
            v_lshl_add_u32 v{vQa}, v{vQb}, 4, v{vQa}
            v_lshl_add_u32 v{vQa}, v{vJ}, 10, v{vQa}
            v_add_u32 v{vQa}, s4, v{vQa}
            s_movk_i32 s33, 0x1000
            """)
            offs = [("0", 0), ("s33", 0)]
        elif CG == 2:
            a(f"""
            v_and_b32 v{vQa}, 15, v0
            v_lshlrev_b32 v{vQa}, 5, v{vQa}
            v_bfe_u32 v{vQb}, v0, 4, 1
            v_lshl_add_u32 v{vQa}, v{vQb}, 4, v{vQa}
            v_lshrrev_b32 v{vQb}, 5, v0
            v_lshl_add_u32 v{vQa}, v{vQb}, 9, v{vQa}
            v_add_u32 v{vQa}, s4, v{vQa}
            """)
            offs = [("0", 0)]
        else:
            a(f"""
            v_and_b32 v{vQa}, 15, v0
            v_lshlrev_b32 v{vQa}, 7, v{vQa}
            v_bfe_u32 v{vQb}, v0, 4, 2
            v_lshl_add_u32 v{vQa}, v{vQb}, 4, v{vQa}
            v_lshl_add_u32 v{vQa}, v{vJ}, 11, v{vQa}
            v_add_u32 v{vQa}, s4, v{vQa}
            s_movk_i32 s33, 0x2000
            """)
            offs = [("0", 0), ("s33", 0), ("0", 64), ("s33", 64)]
        def fmk(st): return [f"buffer_load_dwordx4 {r4(st[k])}, v{vQa}, s[{SW}:{SW+3}], {offs[k][0]} offen offset:{offs[k][1]} sc1" for k in range(NL)]
        fsets = [[R2 + 16 * d + 4 * k for k in range(NL)] for d in range(o["fdepth"])]
        F = vS
        NF = 8 if CG == 8 else 4
        def ffin(st):
            if CG == 4: pkadd(F, st[0], st[1])
            elif CG == 8: pkadd(F, st[0], st[1]); pkadd(F + 4, st[2], st[3])
            else:
                for i in range(4): a(f"v_add_f32_dpp v{F+i}, v{st[0]+i}, v{st[0]+i} row_ror:1 {DPP}")
        if o["fsel"]:
            assert CG == 4
            for k in range(2): a(fmk(fsets[0])[k])
            D = o["fdepth"]
            for k in range(2):
                mk1 = lambda st, k=k: [f"buffer_load_dwordx4 {r4(st[0])}, v{vQa}, s[{SW}:{SW+3}], {offs[k][0]} offen offset:{offs[k][1]} sc1"]
                Lq = self.lab("fq")
                a(f"s_waitcnt vmcnt({1 - k})" if k == 0 else "s_nop 0")
                sets1 = [[R2 + 32 + 16 * k + 4 * d] for d in range(D)]
                if k == 1: a("s_waitcnt vmcnt(%d)" % 0) if False else None
                tagchk([fsets[0][k]], vU + 4)
                a(f"s_cbranch_vccz {Lq}")
                def fin1(st, k=k):
                    a(f"v_pk_mul_f32 {r2(fsets[0][k])}, {r2(st[0])}, 1.0 op_sel_hi:[1,0]")
                    a(f"v_pk_mul_f32 {r2(fsets[0][k]+2)}, {r2(st[0]+2)}, 1.0 op_sel_hi:[1,0]")
                pipe_poll(f"f{k}", mk1, sets1, vU + 4, 0, fin1, o["fsleep"])
                if k == 0:
                    a(f"s_branch {Lq}b"); a(f"{Lq}:"); a("s_waitcnt vmcnt(0)"); a(f"{Lq}b:")
                else: a(f"{Lq}:")
            ffin(fsets[0])
        else:
            pipe_poll("f", fmk, fsets, vU + 4, 0, ffin, o["fsleep"])
        (None if o["st3"] else self.stamp("fpollok"))
        for r in (1, 2, 4, 8):
            if CG == 2 and r == 1: continue
            for i in range(NF): a(f"v_add_f32_dpp v{F+i}, v{F+i}, v{F+i} row_ror:{r} {DPP}")
        a(f"""
        v_lshrrev_b32 v{vU}, 4, v0
        v_lshlrev_b32 v{vU}, 4, v{vU}
        ds_write_b128 v{vU}, {r4(F)} offset:{RD}
        """)
        if CG == 8: a(f"ds_write_b128 v{vU}, {r4(F+4)} offset:{RD+256}")
        a(f"""
        s_mov_b32 s{SX}, s56
        s_mov_b32 s{SX+1}, s57
        s_mul_i32 s4, s2, {CG*8}
        """)
        if CG == 8:
            a(f"""
            v_and_b32 v{vU}, 3, v0
            v_lshrrev_b32 v{vU+1}, 4, v0
            v_lshl_add_u32 v{vU}, v{vU+1}, 2, v{vU}
            v_lshl_add_u32 v{vU}, v{vU}, 3, s4
            """)
        else:
            a(f"v_lshl_add_u32 v{vU}, v0, 3, s4")
        a(f"""
        s_waitcnt lgkmcnt(0)
        s_barrier
        s_cmp_lg_u32 s{sJ}, 0
        s_cbranch_scc1 L_fin
        s_mov_b64 exec, {'0xffffffff' if CG == 8 else '0xffff'}
        ds_read_b128 {r4(vT)}, v{vV} offset:{RD}
        s_waitcnt lgkmcnt(0)
        """)
        for r in (1, 2, 4, 8):
            if r >= min(CG, 4):
                for i in range(4): a(f"v_add_f32_dpp v{vT+i}, v{vT+i}, v{vT+i} row_ror:{r} {DPP}")
        a(f"""
        v_cvt_pk_bf16_f32 v{vT}, v{vT}, v{vT+1}
        v_cvt_pk_bf16_f32 v{vT+1}, v{vT+2}, v{vT+3}
        s_mov_b64 exec, {0xf000f if CG == 8 else (1 << CG) - 1:#x}
        buffer_store_dwordx2 {r2(vT)}, v{vU}, s[{SX}:{SX+3}], 0 offen {o['outf']}
        s_cmp_lg_u32 s2, 0
        s_cbranch_scc1 L_fin
        s_mov_b64 exec, 1
        v_mov_b32 v{vT+4}, s{sTAG}
        v_mov_b32 v{vT+5}, 0
        buffer_store_dword v{vT+4}, v{vT+5}, s[{SW}:{SW+3}], 0 offen sc1
        L_fin:
        """)
        if o["skewm"]:
            a(f"""
            s_cmp_lg_u32 s2, 0
            s_cbranch_scc1 L_end
            s_cmp_lg_u32 s{sJ}, 0
            s_cbranch_scc1 L_end
            s_add_u32 s4, s60, 0xF0000
            s_addc_u32 s5, s61, 0
            s_load_dwordx8 s[64:71], s[4:5], 0 glc
            s_waitcnt lgkmcnt(0)
            """)
            for i in range(8): a(f"s_sub_u32 s{64+i}, s{64+i}, s16"); a(f"s_add_u32 s{64+i}, s{64+i}, 500")
            m = o["skewm"]
            if m == "late":
                a("s_add_u32 s6, s68, s69"); a("s_add_u32 s6, s6, s70"); a("s_add_u32 s6, s6, s71")
                a("s_sub_u32 s6, s6, s65"); a("s_sub_u32 s6, s6, s66"); a("s_sub_u32 s6, s6, s67"); a("s_sub_u32 s6, s6, s66")
                a("s_mul_i32 s6, s6, 5"); a("s_add_u32 s6, s6, 3000")
            else:
                a("s_min_u32 s72, s64, s65")
                for i in range(2, 8): a(f"s_min_u32 s72, s72, s{64+i}")
                if m == "max":
                    a("s_max_u32 s73, s64, s65")
                    for i in range(2, 8): a(f"s_max_u32 s73, s73, s{64+i}")
                else:
                    a(f"s_mov_b32 s73, s{64+int(m)}")
                a("s_sub_u32 s6, s73, s72"); a("s_mul_i32 s6, s6, 20"); a("s_add_u32 s6, s6, 3000")
            a(f"""
            s_min_u32 s6, s6, 20000
            L_hold:
            s_memrealtime s[4:5]
            s_waitcnt lgkmcnt(0)
            s_sub_u32 s4, s4, s16
            s_cmp_lt_u32 s4, s6
            s_cbranch_scc1 L_hold
            """)
        elif o["amp"] >= 0:
            self.stamp("end"); k = o["amp"]
            a(f"""
            s_waitcnt lgkmcnt(0)
            s_sub_u32 s6, s{self.sreg(k)}, s16
            s_min_u32 s6, s6, 3000
            s_mul_i32 s6, s6, 10
            s_add_u32 s6, s6, 3000
            L_hold:
            s_memrealtime s[4:5]
            s_waitcnt lgkmcnt(0)
            s_sub_u32 s4, s4, s16
            s_cmp_lt_u32 s4, s6
            s_cbranch_scc1 L_hold
            """)
        elif o["stamps"]:
            self.stamp("end")
            a(f"""
            s_waitcnt lgkmcnt(0)
            s_lshl_b32 s4, s2, 2
            s_add_u32 s4, s4, s{sJ}
            s_lshl_b32 s4, s4, 7
            s_add_u32 s4, s4, {STAMP_OFF:#x}
            s_add_u32 s6, s60, s4
            s_addc_u32 s7, s61, 0
            s_sub_u32 s6, s6, {o['wsoff']:#x}
            s_subb_u32 s7, s7, 0
            s_mov_b64 exec, 1
            v_mov_b32 v4, 0
            """)
            for j in range(self.nst):
                a(f"""
                v_mov_b32 v2, s{self.sreg(j)}
                v_mov_b32 v3, s{self.sreg(j)+1}
                global_store_dwordx2 v4, v[2:3], s[6:7] offset:{8*j}
                s_nop 1
                """)
        if o["hold"]:
            a(f"""
            s_waitcnt lgkmcnt(0)
            L_hold:
            s_memrealtime s[4:5]
            s_waitcnt lgkmcnt(0)
            s_sub_u32 s4, s4, s16
            s_cmp_lt_u32 s4, {o["hold"]}
            s_cbranch_scc1 L_hold
            """)
        a("L_end:")
        a("s_endpgm")
        cl = []
        for x in self.l:
            if cl and cl[-1].strip() == "s_mov_b64 exec, -1" and x.strip().startswith("s_mov_b64 exec,"): cl.pop()
            if len(cl) > 1 and cl[-2].strip() == "s_mov_b64 exec, -1" and cl[-1].strip().startswith("s_waitcnt vmcnt") and x.strip().startswith("s_mov_b64 exec,"):
                del cl[-2]
            cl.append(x)
        c2 = []
        for x in cl:
            c2.append(x)
        body = "\n".join(fix(c2)) + "\n"
        head = open("cdna_kernels/" + KN + ".s.ref").read().split("; Override launch")[0]
        if self.names: head += "; stamps: " + " ".join(self.names) + "\n"
        return head + f"""; @launch grid=(256,1,1) block=(256,1,1) lds={o['lds']}
.amdgcn_target "amdgcn-amd-amdhsa--gfx950"
.text
.globl {KN}_kernel
.p2align 8
.type {KN}_kernel,@function
{KN}_kernel:
""" + body + f""".section .rodata,"a"
.p2align 6
.amdhsa_kernel {KN}_kernel
  .amdhsa_next_free_vgpr 256
  .amdhsa_next_free_sgpr 102
  .amdhsa_accum_offset 256
  .amdhsa_group_segment_fixed_size 0
  .amdhsa_kernarg_size 104
  .amdhsa_user_sgpr_count 2
  .amdhsa_user_sgpr_kernarg_segment_ptr 1
  .amdhsa_system_sgpr_workgroup_id_x 1
.end_amdhsa_kernel
"""

if __name__ == "__main__":
    out = sys.argv[1]; opt = {}
    for kv in sys.argv[2:]:
        k, v = kv.split("="); opt[k] = eval(v)
    open(out, "w").write(Gen(**opt).build())
```

```python
import sys, struct
from hazard import fix
KN = "gated_mix__sliding_block_cached__glu_gated_reglu__decode"
STAMP_OFF = 0x30000000
def f2u(x): return struct.unpack("<I", struct.pack("<f", x))[0]

class Gen:
    def __init__(self, **opt):
        self.o = dict(W=8, stamps=False, wsoff=0x3fe00000, qp=2, hp=6, CG=4, round_scores=True, prefetch=0, jitter=0,
                      hold=0, amp=-1, lds=90112, nt="nt", spin=20000, pre_g=2, pre_q=2, pre_s=3, Wt=6, fdepth=1, odepth=1,
                      cnt=0, post=12, osleep=0, fsleep=0, pre_qp=0, first='sc1', pt=0, ptf='', st3=0, early=3, skewm='', adapt=11, flagrd=5, nearly=7, lpost=8, st4=0, atime=0, obar=1, opa=0, fsel=0, tlb=0, outf='', rot=1, mix=1, hlate=1)
        for k in opt: assert k in self.o, k
        self.o.update(opt)
        self.l = []; self.vm = []; self.nl = 0; self.nst = 0; self.names = []
    def a(self, s):
        for x in s.strip().split("\n"):
            x = x.strip()
            if x: self.l.append(x if x.endswith(":") else "    " + x)
    def lab(self, p):
        self.nl += 1
        return f"L_{p}{self.nl}"
    def issue(self, label, s):
        self.a(s); self.vm.append(label)
    def wait(self, label):
        n = len(self.vm) - 1 - self.vm.index(label)
        assert n <= 63
        self.a(f"s_waitcnt vmcnt({n})")
    def sreg(self, k): return 16 + 2 * k if k < 8 else 36 + 2 * (k - 8)
    def stamp(self, name=""):
        if self.o["stamps"]:
            assert self.nst < 16
            r = self.sreg(self.nst)
            self.a(f"s_memrealtime s[{r}:{r+1}]")
            self.names.append(name); self.nst += 1

    def build(self):
        o = self.o; a = self.a; nt = o["nt"]; W = o["W"]
        RA, OB, FB, MLB = 0x1000, 0x50000, 0xA0000, 0xF8000
        CG = o["CG"]; R = 144 // CG
        XL, P1, QL, MX, LS, GS, HP, HL, OL, OW, LF, RD, DUM = 0, 2560, 10752, 14848, 14976, 15104, 15232, 15616, 15744, 15872, 19968, 29184, 29696
        OLX = 30208; XF = 31744
        vL = 1; vM = [2, 3, 4, 5]; vSel = [6, 7, 8, 9]
        vQa, vQb, vGU, vK, vV, vPD, vPD2, vPO, vTM = 10, 11, 12, 13, 14, 15, 16, 18, 17
        vMx, vMc, vFA, vRS = 19, 20, 21, 22
        vX = 24
        vS = 32; vBq = 48; vAq = 52; vAg = 56; vAr = 60; vAD = 56; vAO = 64; vT = 72; vPoll = 92
        vCH, vG, vOMG, vJ = 96, 97, 98, 99
        R1 = 100; R2 = 164; vU = 228
        vAcc = vAq
        dst = {}
        for i in range(5): dst[f"Q{i}"] = R1 + 4 * i
        for i in range(9): dst[f"G{i}"] = R1 + 20 + 4 * i
        for i in range(2): dst[f"R{i}"] = R1 + 56 + 4 * i
        for i in range(16): dst[f"K{i}"] = R2 + 4 * i; dst[f"V{i}"] = R1 + 4 * i
        for i in range(6): dst[f"D{i}"] = R2 + 4 * i; dst[f"O{i}"] = R2 + 24 + 4 * i
        big = [f"Q{i}" for i in range(5)] + [f"G{i}" for i in range(9)] + ["R0", "R1"] + [f"K{i}" for i in range(16)] + \
              [f"V{i}" for i in range(16)] + [f"D{i}" for i in range(6)] + [f"O{i}" for i in range(6)]
        sTAG = 62; sJ = 3; sKQ, sG, sS, sC6 = 8, 9, 10, 11; s4608 = 12
        sKV = 13; sGU = 14; sC = 15
        SQ, SGU, SK, SR, SD, SO, SX, SV, SW = 64, 68, 72, 76, 80, 84, 88, 92, 96
        sPL = 34; sXE = 100; XB = 0xF9000
        r4 = lambda v: f"v[{v}:{v+3}]"
        r2 = lambda v: f"v[{v}:{v+1}]"
        DPP = "row_mask:0xf bank_mask:0xf"
        self.ip = 0; self.gdone = self.kdone = False
        def issue_next():
            lb = big[self.ip]; self.ip += 1
            d = r4(dst[lb]); k = int(lb[1:]); c = lb[0]
            if c == "V": assert self.gdone
            if c in "DO": assert self.kdone
            if c == "Q":
                if k == 0: self.issue(lb, f"buffer_load_dwordx4 {d}, v{vQa}, s[{SQ}:{SQ+3}], 0 offen {nt}")
                elif k < 4: self.issue(lb, f"buffer_load_dwordx4 {d}, v{vQa}, s[{SQ}:{SQ+3}], s{32+k} offen {nt}")
                else: self.issue(lb, f"buffer_load_dwordx4 {d}, v{vQb}, s[{SQ}:{SQ+3}], 0 offen {nt}")
            elif c == "G":
                if k == 0: a(f"s_mov_b32 s{sGU}, 0")
                elif k < 8: a(f"s_addk_i32 s{sGU}, 9216")
                if k < 8: self.issue(lb, f"buffer_load_dwordx4 {d}, v{vGU}, s[{SGU}:{SGU+3}], s{sGU} offen {nt}")
                else: self.issue(lb, f"buffer_load_dwordx4 {d}, v{vPD}, s[{SGU}:{SGU+3}], 0 offen {nt}")
            elif c == "R":
                self.issue(lb, f"buffer_load_dwordx4 {d}, v{vPD2 if k == 0 else vPO}, s[{SR}:{SR+3}], 0 offen {nt}")
            elif c in "KV":
                if k == 0: a(f"s_lshl_b32 s{sKV}, s{sG}, 12" if o["rot"] else f"s_mov_b32 s{sKV}, 0")
                else:
                    a(f"s_addk_i32 s{sKV}, 4096")
                    if o["rot"]: a(f"s_bitset0_b32 s{sKV}, 16")
                sr, vo = (SK, vK) if c == "K" else (SV, vV)
                self.issue(lb, f"buffer_load_dwordx4 {d}, v{vo}, s[{sr}:{sr+3}], s{sKV} offen {nt}")
            else:
                sr = SD if c == "D" else SO
                vo = vPO if c == "O" else (vPD if k < 2 else vPD2)
                so, im = ("0", k * 1152) if k < 4 else (f"s{s4608}", (k - 4) * 1152)
                if c == "O" and k >= 4: vo, so = vGU, "0"
                self.issue(lb, f"buffer_load_dwordx4 {d}, v{vo}, s[{sr}:{sr+3}], {so} offen offset:{im} {nt}")
        def fill(label, w=None):
            w = W if w is None else w
            idx = big.index(label)
            while self.ip < len(big) and self.ip <= idx + w: issue_next()
        def more(n):
            for _ in range(n):
                if self.ip < len(big): issue_next()
        def tagins(v):
            for i in range(4): a(f"v_and_or_b32 v{v+i}, v{v+i}, v{vTM}, s{sTAG}")
        def tagchk(vs, acc, extra=0):
            first = True
            for v in vs:
                for i in range(4 + extra):
                    if first: a(f"v_xor_b32 v{acc}, s{sTAG}, v{v+i}"); first = False
                    else: a(f"v_bitop3_b32 v{acc}, v{v+i}, s{sTAG}, v{acc} bitop3:0xbe")
            a(f"v_and_b32 v{acc}, 0xff, v{acc}")
            a(f"v_cmp_ne_u32 vcc, 0, v{acc}")
        def retry_loop(name, loads, vs, acc):
            Lok = self.lab(name + "ok"); Lre = self.lab(name + "re")
            a(f"s_mov_b32 s7, {o['spin']}")
            a(f"{Lre}:")
            tagchk(vs, acc)
            a(f"s_cbranch_vccz {Lok}")
            for ld in loads: a(ld)
            a("s_waitcnt vmcnt(0)")
            a("s_sub_u32 s7, s7, 1")
            a("s_cmp_lg_u32 s7, 0")
            a(f"s_cbranch_scc1 {Lre}")
            a(f"{Lok}:")
            if o["stamps"] and o["cnt"] == 1:
                r = self.sreg(self.nst); self.names.append(name + "retry"); self.nst += 1
                a(f"s_sub_u32 s7, {o['spin']}, s7"); a(f"s_mul_i32 s7, s7, 100")
                a(f"s_add_u32 s{r}, s16, s7"); a(f"s_addc_u32 s{r+1}, s17, 0")
        def pipe_poll(name, mk, sets, acc, first_issued, fin, slp=0, extra=0):
            n = len(mk(sets[0])); D = len(sets)
            Lx = self.lab(name + "x"); Lre = self.lab(name + "re")
            Lmv = [self.lab(name + "mv") for _ in range(D)]
            for d in range(first_issued, D):
                for ld in mk(sets[d]): a(ld)
            a(f"s_mov_b32 s7, {o['spin']}")
            a(f"{Lre}:")
            for d in range(D):
                a(f"s_waitcnt vmcnt({n*(D-1)})")
                tagchk(sets[d], acc, extra)
                a(f"s_cbranch_vccz {Lmv[d]}")
                if slp: a(f"s_sleep {slp}")
                for ld in mk(sets[d]): a(ld)
            a("s_sub_u32 s7, s7, 1")
            a("s_cmp_lg_u32 s7, 0")
            a(f"s_cbranch_scc1 {Lre}")
            for d in range(D - 1, -1, -1):
                a(f"{Lmv[d]}:")
                fin(sets[d])
                if d: a(f"s_branch {Lx}")
            a(f"{Lx}:")
        def dual(name, st, local):
            if local:
                a("s_mov_b64 s[4:5], exec")
                a(f"s_and_b64 exec, s[4:5], s[{sPL}:{sPL+1}]")
                self.issue(name + "p", st)
                a(f"s_andn2_b64 exec, s[4:5], s[{sPL}:{sPL+1}]")
            self.issue(name, st + " sc1")
            a("s_mov_b64 exec, -1")
        def pkadd(d, x, y):
            a(f"v_pk_add_f32 {r2(d)}, {r2(x)}, {r2(y)}"); a(f"v_pk_add_f32 {r2(d+2)}, {r2(x+2)}, {r2(y+2)}")

        self.stamp("start")
        if o["hold"]: a("s_memrealtime s[16:17]")
        a(f"""
        s_load_dwordx16 s[36:51], s[0:1], 0
        s_cmpk_ge_u32 s2, 0x100
        s_cbranch_scc1 L_end
        """)
        if o["jitter"]:
            a(f"""s_mul_i32 s4, s2, 0x9e3779b1
            s_lshr_b32 s4, s4, {32-o["jitter"]}
            L_jit:
            s_cmp_eq_u32 s4, 0
            s_cbranch_scc1 L_jitd
            s_sleep 40
            s_sub_u32 s4, s4, 1
            s_branch L_jit
            L_jitd:""")
        if o["stamps"]: a("s_mov_b32 s101, s2")
        a(f"""
        s_lshr_b32 s{sKQ}, s2, 6
        s_mul_i32 s4, s{sKQ}, {144*8192}
        s_and_b32 s5, s2, 7
        s_bfe_u32 s6, s2, 0x30003
        s_lshl3_add_u32 s{sC6}, s5, s6
        s_lshl_b32 s5, s{sC6}, 7
        s_add_u32 s4, s4, s5
        v_lshrrev_b32 v{vT}, 3, v0
        v_and_b32 v{vT+1}, 7, v0
        v_lshlrev_b32 v{vT+1}, 4, v{vT+1}
        v_lshl_add_u32 v{vQa}, v{vT}, 15, v{vT+1}
        s_mov_b32 s{SQ+2}, {143*8192+128}
        s_mov_b32 s{SQ+3}, 0x20000
        s_movk_i32 s33, 0x2000
        s_movk_i32 s34, 0x4000
        s_movk_i32 s35, 0x6000
        s_waitcnt lgkmcnt(0)
        s_add_u32 s{SQ}, s42, s4
        s_addc_u32 s{SQ+1}, s43, 0
        """)
        if o["st3"]: self.stamp("karg")
        more(4)
        if o["st3"]: self.stamp("Q3iss")
        a(f"""
        s_load_dwordx8 s[52:59], s[0:1], 64
        s_load_dwordx2 s[60:61], s[0:1], 96
        s_lshl_b32 s2, s{sKQ}, 6
        s_add_u32 s2, s2, s{sC6}
        v_lshl_add_u32 v{vQb}, v{vT}, 13, v{vT+1}
        v_add_u32 v{vQb}, {128*8192}, v{vQb}
        v_lshrrev_b32 v{vJ}, 6, v0
        v_lshlrev_b32 v{vV}, 4, v0
        v_readfirstlane_b32 s{sJ}, v{vJ}
        """)
        more(1)
        a(f"""
        s_mov_b32 s{SX}, s36
        s_mov_b32 s{SX+1}, s37
        s_movk_i32 s{SX+2}, 1152
        s_mov_b32 s{SX+3}, 0x20000
        """)
        self.issue("X", f"buffer_load_dwordx4 {r4(vX)}, v{vV}, s[{SX}:{SX+3}], 0 offen")
        MIXG = f"s_xor_b32 s5, s{sC6}, s7\ns_lshl_b32 s5, s5, 7" if o["mix"] else ""
        a(f"""
        s_bitcmp1_b32 s{sJ}, 0
        s_cselect_b32 s{SGU}, s50, s48
        s_cselect_b32 s{SGU+1}, s51, s49
        s_cselect_b32 s7, 2, 1
        s_lshr_b32 s6, s{sJ}, 1
        s_lshl1_add_u32 s6, s{sKQ}, s6
        s_mul_i32 s4, s6, {72*9216}
        {MIXG}
        s_add_u32 s4, s4, s5
        s_add_u32 s{SGU}, s{SGU}, s4
        s_addc_u32 s{SGU+1}, s{SGU+1}, 0
        s_mov_b32 s{SGU+2}, {71*9216+128}
        s_mov_b32 s{SGU+3}, 0x20000
        v_and_b32 v{vT+2}, 7, v{vT}
        v_mul_u32_u24 v{vGU}, {8*9216}, v{vT+2}
        v_add_u32 v{vGU}, v{vGU}, v{vT+1}
        """)
        more(2)
        a(f"""
        v_mul_u32_u24 v{vPD}, 9216, v{vT+2}
        v_add_u32 v{vPD}, v{vPD}, v{vT+1}
        v_add_u32 v{vPD}, {64*9216}, v{vPD}
        s_waitcnt lgkmcnt(0)
        s_mov_b32 s{SR}, s54
        s_mov_b32 s{SR+1}, s55
        s_movk_i32 s{SR+2}, 1152
        s_mov_b32 s{SR+3}, 0x20000
        """)
        self.issue("GW", f"buffer_load_dwordx4 {r4(vX+4)}, v{vV}, s[{SR}:{SR+3}], 0 offen")
        if o["prefetch"]:
            a(f"""
            s_getpc_b64 s[4:5]
            s_lshr_b32 s7, s2, 3
            s_mul_i32 s7, s7, {128*o['prefetch']}
            v_and_b32 v{vT+3}, 63, v0
            v_lshl_add_u32 v{vT+3}, v{vT+3}, 7, s7
            s_mov_b64 exec, {(1 << o['prefetch']) - 1}
            """)
            self.issue("PF", f"global_load_dword v{vMc}, v{vT+3}, s[4:5]")
            a("s_mov_b64 exec, -1")
        more(o["early"])
        TLB = ""
        if o["tlb"]:
            TLB = f"""s_load_dword s33, s[{SK}:{SK+1}], 0
            s_load_dword s33, s[{SV}:{SV+1}], 0
            s_load_dword s33, s[{SO}:{SO+1}], 0
            s_load_dword s33, s[{SR}:{SR+1}], 0
            s_mul_i32 s4, s{sC6}, {64*1152}
            s_add_u32 s4, s52, s4
            s_addc_u32 s5, s53, 0
            s_load_dword s33, s[4:5], 0
            s_add_u32 s4, s52, {4300*1152}
            s_addc_u32 s5, s53, 0
            s_load_dword s33, s[4:5], 0"""
        a(f"""
        s_add_u32 s60, s60, {o['wsoff']:#x}
        s_addc_u32 s61, s61, 0
        s_load_dword s{sTAG}, s[60:61], 0
        s_bitcmp1_b32 s2, 0
        s_cselect_b32 s{SR}, s50, s48
        s_cselect_b32 s{SR+1}, s51, s49
        s_bfe_u32 s7, s2, 0x20001
        s_lshl2_add_u32 s7, s{sKQ}, s7
        s_mul_i32 s4, s7, {36*9216}
        s_lshr_b32 s5, s{sC6}, 3
        s_lshl_b32 s5, s5, 7
        s_add_u32 s4, s4, s5
        s_add_u32 s4, s4, 8192
        s_add_u32 s{SR}, s{SR}, s4
        s_addc_u32 s{SR+1}, s{SR+1}, 0
        s_mov_b32 s{SR+2}, {35*9216+128}
        v_mul_u32_u24 v{vPD2}, 9216, v{vT}
        v_add_u32 v{vPD2}, v{vPD2}, v{vT+1}
        v_add_u32 v{vPO}, {32*9216}, v{vPD2}
        s_lshr_b32 s{sG}, s{sC6}, 2
        s_and_b32 s{sS}, s2, 3
        s_lshl2_add_u32 s{sS}, s{sKQ}, s{sS}
        s_lshl_b32 s4, s{sG}, 24
        s_lshl_b32 s5, s{sS}, 16
        s_add_u32 s4, s4, s5
        s_add_u32 s4, s4, {61440*256}
        s_add_u32 s{SK}, s38, s4
        s_addc_u32 s{SK+1}, s39, 0
        s_mov_b32 s{SK+2}, 0x10000
        s_mov_b32 s{SK+3}, 0x20000
        s_add_u32 s{SV}, s40, s4
        s_addc_u32 s{SV+1}, s41, 0
        s_mov_b32 s{SV+2}, 0x10000
        s_mov_b32 s{SV+3}, 0x20000
        s_lshr_b32 s4, s2, 7
        s_mul_i32 s4, s4, 576
        s_add_u32 s{SD}, s52, s4
        s_addc_u32 s{SD+1}, s53, 0
        s_mov_b32 s{SD+2}, {4607*1152+576}
        s_mov_b32 s{SD+3}, 0x20000
        s_and_b32 s5, s{sS}, 7
        s_lshl3_add_u32 s5, s{sG}, s5
        s_mul_i32 s5, s5, {32*1152}
        s_add_u32 s4, s4, s5
        s_add_u32 s{SO}, s44, s4
        s_addc_u32 s{SO+1}, s45, 0
        s_mov_b32 s{SO+2}, {31*1152+576}
        s_mov_b32 s{SO+3}, 0x20000
        s_mov_b32 s{SW}, s60
        s_mov_b32 s{SW+1}, s61
        s_mov_b32 s{SW+2}, 0x100000
        s_mov_b32 s{SW+3}, 0x20000
        s_movk_i32 s{s4608}, 4608
        {TLB}
        v_and_b32 v{vL}, 63, v0
        v_and_b32 v{vU}, 3, v0
        v_lshlrev_b32 v{vU}, 4, v{vU}
        v_bfe_u32 v{vU+1}, v0, 2, 2
        v_lshl_add_u32 v{vU}, v{vU+1}, 8, v{vU}
        v_bfe_u32 v{vU+1}, v0, 4, 2
        v_lshl_add_u32 v{vU}, v{vU+1}, 6, v{vU}
        v_lshl_add_u32 v{vK}, v{vJ}, 10, v{vU}
        v_mov_b32 v{vTM}, 0xffffff00
        v_and_b32 v{vU}, 1, v0
        v_lshlrev_b32 v{vU}, 4, v{vU}
        v_mov_b32 v{vU+1}, 0xffff
        v_lshlrev_b32 v{vU}, v{vU}, v{vU+1}
        v_bfe_u32 v{vU+1}, v0, 1, 2
        v_cmp_eq_u32 s[4:5], 0, v{vU+1}
        v_cmp_eq_u32 s[36:37], 1, v{vU+1}
        v_cmp_eq_u32 vcc, 2, v{vU+1}
        v_cndmask_b32 v{vM[0]}, 0, v{vU}, s[4:5]
        v_cndmask_b32 v{vM[1]}, 0, v{vU}, s[36:37]
        v_cmp_eq_u32 s[36:37], 3, v{vU+1}
        v_cndmask_b32 v{vM[2]}, 0, v{vU}, vcc
        v_or_b32 v{vU+3}, v{vM[0]}, v{vM[2]}
        v_cndmask_b32 v{vM[3]}, 0, v{vU}, s[36:37]
        v_or_b32 v{vU+1}, v{vM[1]}, v{vM[3]}
        v_mov_b32 v{vU+2}, 0x0c0c0c0c
        s_mov_b32 s32, 0x01000100
        s_mov_b32 s63, 0x03020302
        v_bfi_b32 v{vSel[0]}, v{vU+3}, s32, v{vU+2}
        v_bfi_b32 v{vSel[1]}, v{vU+1}, s32, v{vU+2}
        v_bfi_b32 v{vSel[2]}, v{vU+3}, s63, v{vU+2}
        v_bfi_b32 v{vSel[3]}, v{vU+1}, s63, v{vU+2}
        """)
        if o["pt"]:
            a(f"""
            s_lshl_b32 s4, s2, 10
            s_add_u32 s4, s4, {RA}
            s_lshl4_add_u32 s5, s{sG}, s{sS}
            s_mul_i32 s5, s5, 1152
            s_add_u32 s5, s5, {OB}
            s_cmp_eq_u32 s{sJ}, 1
            s_cselect_b32 s4, s5, s4
            s_and_b32 s5, s2, 127
            s_mul_i32 s5, s5, {CG*16}
            s_lshr_b32 s100, s2, 7
            s_lshl1_add_u32 s100, s100, s{sJ}
            s_sub_u32 s100, s100, 2
            s_mul_i32 s100, s100, {9*128*CG*16}
            s_add_u32 s5, s5, s100
            s_add_u32 s5, s5, {FB}
            s_cmp_ge_u32 s{sJ}, 2
            s_cselect_b32 s4, s5, s4
            s_cselect_b32 s5, {(128*CG*16).bit_length()-1}, 7
            v_lshlrev_b32 v{vU}, s5, v{vL}
            v_add_u32 v{vU}, s4, v{vU}
            s_mov_b64 exec, 0x1ff
            """)
            self.issue("PT", f"buffer_load_dword v{vMx}, v{vU}, s[{SW}:{SW+3}], 0 offen {o['ptf']}")
            a("s_mov_b64 exec, -1")
        a(f"""
        v_lshlrev_b32 v{vU}, 2, v{vL}
        v_mov_b32 v{vU+4}, 0
        v_mov_b32 v{vU+5}, 0
        v_mov_b32 v{vU+6}, 0
        v_mov_b32 v{vU+7}, 0
        ds_write_b32 v{vU}, v{vU+4} offset:{HL}
        ds_write_b32 v{vU}, v{vU+4} offset:{XL+2304}
        v_lshlrev_b32 v{vU+1}, 3, v{vL}
        ds_write_b64 v{vU+1}, {r2(vU+4)} offset:{OLX+1024}
        v_and_b32 v{vU+1}, 1, v{vJ}
        v_lshlrev_b32 v{vU+1}, 11, v{vU+1}
        v_lshl_add_u32 v{vU+1}, v{vL}, 4, v{vU+1}
        ds_write_b128 v{vU+1}, {r4(vU+4)} offset:{P1+2048+1024}
        """)
        a(f"""
        s_mul_i32 s4, s{sKQ}, 576
        v_lshl_add_u32 v{vU+8}, v{vT}, 4, s4
        v_lshl_add_u32 v{vU+9}, v{vT}, 2, s4
        s_mul_i32 s4, s6, 288
        v_lshl_add_u32 v{vU+10}, v{vT+2}, 5, s4
        v_lshl_add_u32 v{vU+11}, v{vT+2}, 2, s4
        s_mul_i32 s4, s7, 144
        v_lshl_add_u32 v{vU+12}, v{vT}, 2, s4
        v_bfe_u32 v{vU+4}, v0, 3, 1
        v_bfe_u32 v{vU+5}, v0, 5, 1
        v_cmp_eq_u32 vcc, v{vU+4}, v{vU+5}
        v_bfe_u32 v{vU+4}, v0, 4, 1
        v_lshlrev_b32 v{vU+4}, 7, v{vU+4}
        v_lshl_add_u32 v{vU+4}, v{vU+5}, 8, v{vU+4}
        v_lshrrev_b32 v{vU+5}, 2, v{vT+1}
        v_add_u32 v{vU+4}, v{vU+4}, v{vU+5}
        v_lshl_add_u32 v{vU+13}, v{vJ}, 9, v{vU+4}
        s_and_b32 s4, s{sJ}, 1
        s_lshl_b32 s4, s4, 11
        s_lshr_b32 s5, s{sJ}, 1
        s_lshl_b32 s5, s5, 9
        s_add_u32 s4, s4, s5
        s_add_u32 s4, s4, 2048
        v_add_u32 v{vU+14}, s4, v{vU+4}
        v_mov_b32 v{vU+5}, {DUM-P1}
        v_cndmask_b32 v{vU+13}, v{vU+5}, v{vU+13}, vcc
        v_cndmask_b32 v{vU+14}, v{vU+5}, v{vU+14}, vcc
        v_mov_b32 v{vU+5}, {DUM-P1-6144}
        v_lshl_add_u32 v{vU+15}, v{vJ}, 9, v{vU+4}
        v_cndmask_b32 v{vU+15}, v{vU+5}, v{vU+15}, vcc
        v_lshlrev_b32 v{vU+16}, 5, v0
        v_min_u32 v{vU+16}, 2304, v{vU+16}
        """)
        if o["skewm"]:
            a(f"""
            s_waitcnt lgkmcnt(0)
            s_lshl_b32 s4, s2, 2
            s_add_u32 s4, s4, 0xF0000
            v_mov_b32 v{vBq}, s16
            v_mov_b32 v{vBq+1}, s4
            s_mov_b64 exec, 1
            """)
            self.issue("SK", f"buffer_store_dword v{vBq}, v{vBq+1}, s[{SW}:{SW+3}], 0 offen sc1")
            a("s_mov_b64 exec, -1")
        (None if o["st4"] else self.stamp("prol"))
        if o["st3"]:
            self.wait("Q0"); self.stamp("Q0land")
        self.wait("X")
        if o["st3"]: self.stamp("Xland")
        for i in range(4):
            a(f"v_perm_b32 v{vT+2*i}, v{vX+i}, v{vX+i}, s32")
            a(f"v_perm_b32 v{vT+2*i+1}, v{vX+i}, v{vX+i}, s63")
        a(f"""
        ds_write_b128 v{vU+16}, {r4(vT)} offset:{XL}
        ds_write_b128 v{vU+16}, {r4(vT+4)} offset:{XL+16}
        """)
        fill("Q4")
        a(f"""
        s_waitcnt lgkmcnt(0)
        s_barrier
        ds_read_b128 {r4(vS)}, v{vU+8} offset:{XL}
        ds_read_b32 v{vS+4}, v{vU+9} offset:{XL+512}
        ds_read_b128 {r4(vS+8)}, v{vU+10} offset:{XL}
        ds_read_b128 {r4(vS+12)}, v{vU+10} offset:{XL+16}
        ds_read_b32 v{vS+5}, v{vU+11} offset:{XL+256}
        ds_read_b32 v{vS+6}, v{vU+12} offset:{XL}
        ds_read_b32 v{vS+7}, v{vU+12} offset:{XL+128}
        s_add_u32 s{sTAG}, s{sTAG}, 1
        s_and_b32 s{sTAG}, s{sTAG}, 0xff
        s_getreg_b32 s{sXE}, hwreg(HW_REG_XCC_ID, 0, 4)
        s_lshl_b32 s{sXE}, s{sXE}, 8
        s_add_u32 s{sXE}, s{sXE}, s{sTAG}
        s_waitcnt lgkmcnt(5)
        """)
        nb = [0]
        def l8(lbl, xreg, acc, first, dowait=True):
            B = vT + 4 * (nb[0] % 4); nb[0] += 1
            for j in range(4): a(f"v_and_b32 v{B+j}, v{xreg}, v{vM[j]}")
            if dowait: self.wait(lbl)
            a(f"v_mfma_f32_16x16x32_bf16 {r4(acc)}, {r4(dst[lbl])}, {r4(B)}, {'0' if first else r4(acc)}")
        for t in range(5): l8(f"Q{t}", vS + t, vAq, t == 0, False)
        self.wait("GW")
        for i in range(4):
            a(f"""
            v_lshlrev_b32 v{vU}, 16, v{vX+i}
            v_and_b32 v{vU+1}, 0xffff0000, v{vX+i}
            v_lshlrev_b32 v{vU+2}, 16, v{vX+4+i}
            v_and_b32 v{vU+3}, 0xffff0000, v{vX+4+i}
            v_pk_mul_f32 {r2(vU)}, {r2(vU)}, {r2(vU+2)}
            v_cvt_pk_bf16_f32 v{vU}, v{vU}, v{vU+1}
            v_and_b32 v{vU+1}, 0xffff0000, v{vU}
            v_lshlrev_b32 v{vU}, 16, v{vU}
            """)
            if i == 0: a(f"v_pk_mul_f32 {r2(vU+4)}, {r2(vU)}, 1.0 op_sel_hi:[1,0]")
            else: a(f"v_pk_add_f32 {r2(vU+4)}, {r2(vU+4)}, {r2(vU)}")
        for i in range(4): a(f"ds_write_b32 v{vU+13}, v{vAq+i} offset:{P1+32*i}")
        a(f"v_add_f32 v{vU+4}, v{vU+4}, v{vU+5}")
        for r in (1, 2, 4, 8): a(f"v_add_f32_dpp v{vU+4}, v{vU+4}, v{vU+4} row_ror:{r} {DPP}")
        a(f"""
        v_lshrrev_b32 v{vU+1}, 4, v0
        v_lshlrev_b32 v{vU+1}, 2, v{vU+1}
        ds_write_b32 v{vU+1}, v{vU+4} offset:{GS}
        s_lshl_b32 s4, s2, 10
        s_add_u32 s4, s4, {RA}
        v_lshl_add_u32 v{vFA}, v{vL}, 4, s4
        s_waitcnt lgkmcnt(0)
        s_barrier
        """)
        def pubA(lo, hi, wave, name, tg=None):
            L = self.lab(name)
            mask = ((1 << hi) - 1) ^ ((1 << lo) - 1)
            a(f"""
            s_cmp_lg_u32 s{sJ}, {wave}
            s_cbranch_scc1 {L}
            s_mov_b32 exec_lo, {mask & 0xffffffff:#x}
            s_mov_b32 exec_hi, {mask >> 32:#x}
            v_lshrrev_b32 v{vU}, 4, v{vL}
            v_lshlrev_b32 v{vU}, 11, v{vU}
            v_and_b32 v{vU+1}, 15, v{vL}
            v_lshl_add_u32 v{vU}, v{vU+1}, 4, v{vU}
            """)
            tg = tg or [vAO, vAO + 4, vBq, vPoll, vU + 4, vU + 8, vU + 20, vU + 24]
            for p in range(8): a(f"ds_read_b128 {r4(tg[p])}, v{vU} offset:{P1+256*p}")
            a("s_waitcnt lgkmcnt(0)")
            for p in range(1, 8): pkadd(tg[0], tg[0], tg[p])
            tagins(tg[0])
            if name == "qpub":
                a(f"v_and_b32 v{tg[0]}, 0xfffff000, v{tg[0]}"); a(f"v_or_b32 v{tg[0]}, s{sXE}, v{tg[0]}")
            a(f"""
            s_branch {L}s
            {L}:
            s_mov_b64 exec, 0
            {L}s:
            """)
            dual(name, f"buffer_store_dwordx4 {r4(tg[0])}, v{vFA}, s[{SW}:{SW+3}], 0 offen", name == "gpub")
        pubA(0, 16, 3, "qpub")
        (None if o["st4"] else self.stamp("qpub"))
        more(o["pre_qp"])
        for k in range(9):
            l8(f"G{k}", vS + 8 + k if k < 8 else vS + 5, vAg, k == 0)
            fill(f"G{k}")
            if k == 2:
                a(f"""
                v_mov_b32 v{vU}, 0
                ds_read_b128 {r4(vU+4)}, v{vU} offset:{GS}
                ds_read_b32 v{vU+8}, v{vU} offset:{GS+16}
                s_waitcnt lgkmcnt(0)
                v_pk_add_f32 {r2(vU+4)}, {r2(vU+4)}, {r2(vU+6)}
                v_add_f32 v{vU}, v{vU+4}, v{vU+5}
                v_add_f32 v{vU}, v{vU}, v{vU+8}
                v_cvt_pk_bf16_f32 v{vU}, v{vU}, v{vU}
                v_lshlrev_b32 v{vU}, 16, v{vU}
                v_mul_f32 v{vU}, {f2u(-1.4426950408889634):#x}, v{vU}
                v_exp_f32 v{vU}, v{vU}
                v_add_f32 v{vU}, 1.0, v{vU}
                v_rcp_f32 v{vU}, v{vU}
                v_cvt_pk_bf16_f32 v{vU}, v{vU}, v{vU}
                v_lshlrev_b32 v{vG}, 16, v{vU}
                v_sub_f32 v{vU}, 1.0, v{vG}
                v_cvt_pk_bf16_f32 v{vU}, v{vU}, v{vU}
                v_lshlrev_b32 v{vOMG}, 16, v{vU}
                """)
            if k == 5:
                a(f"""
                s_lshl_b32 s4, s{sJ}, 16
                s_lshl_b32 s5, s{sG}, 12
                s_add_u32 s4, s4, s5
                s_add_u32 s4, s4, {RA}
                v_lshrrev_b32 v{vU}, 4, v{vL}
                v_lshlrev_b32 v{vU}, 10, v{vU}
                v_and_b32 v{vU+1}, 15, v{vL}
                v_lshl_add_u32 v{vU}, v{vU+1}, 4, v{vU}
                v_add_u32 v{vQa}, s4, v{vU}
                s_xor_b32 s5, s{sG}, 1
                s_lshl_b32 s5, s5, 12
                s_add_u32 s5, s5, {RA}
                v_bfe_u32 v{vU}, v0, 2, 2
                v_lshlrev_b32 v{vU}, 16, v{vU}
                v_and_b32 v{vU+1}, 3, v0
                v_lshl_add_u32 v{vU}, v{vU+1}, 10, v{vU}
                v_add_u32 v{vQb}, s5, v{vU}
                """)
        for k in range(2):
            l8(f"R{k}", vS + 6 + k, vAr, k == 0)
            if k == 1: self.gdone = True
            fill(f"R{k}")
        for i in range(4): a(f"ds_write_b32 v{vU+14}, v{vAg+i} offset:{P1+32*i}")
        a(f"""
        v_mul_u32_u24 v{vRS}, 1821, v0
        v_lshrrev_b32 v{vRS}, 16, v{vRS}
        v_mul_u32_u24 v{vCH}, 36, v{vRS}
        v_sub_u32 v{vCH}, v0, v{vCH}
        v_mul_u32_u24 v{vPO}, {6*1152}, v{vRS}
        v_lshl_add_u32 v{vPO}, v{vCH}, 4, v{vPO}
        v_add_u32 v{vGU}, 4608, v{vPO}
        """)
        for i in range(4): a(f"ds_write_b32 v{vU+15}, v{vAr+i} offset:{P1+6144+32*i}")
        a(f"""
        s_bfe_u32 s4, s2, 0x10006
        s_lshl1_add_u32 s4, s{sC6}, s4
        s_mul_i32 s4, s4, {32*1152}
        v_add_u32 v{vPD}, s4, v{vPO}
        s_lshr_b32 s5, s{sC6}, 3
        s_lshl_b32 s5, s5, 4
        s_and_b32 s6, s{sC6}, 7
        s_add_u32 s5, s5, s6
        s_bfe_u32 s6, s2, 0x10006
        s_lshl3_add_u32 s5, s6, s5
        s_mul_i32 s5, s5, {4*1152}
        s_add_u32 s5, s5, {(4096-2)*1152}
        v_lshl_add_u32 v{vPD2}, v{vCH}, 4, s5
        v_cmp_gt_u32 vcc, 5, v{vRS}
        v_cmp_gt_u32 s[4:5], 6, v{vRS}
        v_bfrev_b32 v{vU}, -2
        v_cndmask_b32 v{vPD2}, v{vPD2}, v{vPD}, vcc
        v_cndmask_b32 v{vPD}, v{vU}, v{vPD}, s[4:5]
        v_cndmask_b32 v{vPD2}, v{vU}, v{vPD2}, s[4:5]
        v_mul_u32_u24 v{vU}, 1152, v{vRS}
        v_lshl_add_u32 v{vCH}, v{vCH}, 5, v{vU}
        v_mul_u32_u24 v{vRS}, 12, v{vRS}
        v_add_u32 v{vRS}, {HL}, v{vRS}
        """)
        (None if o["st4"] else self.stamp("gpub"))
        more(o["pre_g"])
        qload = f"buffer_load_dwordx4 {r4(vPoll)}, v{vQa}, s[{SW}:{SW+3}], 0 offen sc1"
        for k in range(o["qp"] + 1):
            self.wait(f"K{k}"); fill(f"K{k}")
        a(f"s_cmp_eq_u32 s{sJ}, 0"); a("s_cselect_b64 exec, 0xffff, 0")
        self.issue("QP2", f"buffer_load_dwordx4 {r4(vAO)}, v{vQb}, s[{SW}:{SW+3}], 0 offen sc1")
        a("s_mov_b64 exec, -1")
        self.issue("QP", qload.replace("sc1", o["first"]))
        lastK = min(15, self.ip - 1 - big.index("K0"))
        for k in range(o["qp"] + 1, lastK + 1):
            self.wait(f"K{k}"); fill(f"K{k}")
        more(o["pre_q"])
        a(f"""
        v_bfe_u32 v{vU+1}, v0, 3, 1
        v_lshlrev_b32 v{vU+1}, 9, v{vU+1}
        v_bfe_u32 v{vU+2}, v0, 4, 2
        v_lshl_add_u32 v{vU+1}, v{vU+2}, 7, v{vU+1}
        v_and_b32 v{vU+2}, 3, v0
        v_lshl_add_u32 v{vU+1}, v{vU+2}, 5, v{vU+1}
        """)
        self.wait("QP")
        retry_loop("q", [qload], [vPoll], vU)
        a(f"""
        ds_write_b128 v{vV}, {r4(vPoll)} offset:{QL}
        v_cmp_gt_u32 vcc, 16, v0
        v_xor_b32 v{vU}, s{sXE}, v{vPoll}
        v_xor_b32 v{vU+2}, s{sTAG}, v{vAO+1}
        v_bitop3_b32 v{vU+2}, v{vAO+2}, s{sTAG}, v{vU+2} bitop3:0xbe
        v_bitop3_b32 v{vU+2}, v{vAO+3}, s{sTAG}, v{vU+2} bitop3:0xbe
        v_and_b32 v{vU+2}, 0xff, v{vU+2}
        v_bitop3_b32 v{vU+2}, v{vAO}, s{sXE}, v{vU+2} bitop3:0xbe
        v_cndmask_b32 v{vU+2}, 0, v{vU+2}, vcc
        v_or_b32 v{vU}, v{vU}, v{vU+2}
        v_and_b32 v{vU}, 0xfff, v{vU}
        v_cmp_ne_u32 vcc, 0, v{vU}
        v_lshlrev_b32 v{vU+2}, 2, v{vJ}
        s_cmp_lg_u64 vcc, 0
        s_cselect_b32 s4, 1, 0
        v_mov_b32 v{vU}, s4
        ds_write_b32 v{vU+2}, v{vU} offset:{XF}
        v_mov_b32 v{vU+2}, 0
        s_waitcnt lgkmcnt(0)
        s_barrier
        ds_read_b128 {r4(vAO)}, v{vU+2} offset:{XF}
        """)
        qd = [vT, vT + 8, vU + 8, vU + 16]
        for k in range(4):
            a(f"ds_read_b128 {r4(qd[k])}, v{vU+1} offset:{QL+1024*k}")
            a(f"ds_read_b128 {r4(qd[k]+4)}, v{vU+1} offset:{QL+1024*k+16}")
        a("s_waitcnt lgkmcnt(4)")
        a(f"v_or3_b32 v{vAO}, v{vAO}, v{vAO+1}, v{vAO+2}")
        a(f"v_or_b32 v{vAO}, v{vAO}, v{vAO+3}")
        for i in range(0, 8, 2): a(f"v_pk_add_f32 {r2(qd[0]+i)}, {r2(qd[0]+i)}, {r2(qd[1]+i)}")
        a(f"v_cmp_eq_u32 s[{sPL}:{sPL+1}], 0, v{vAO}")
        a("s_waitcnt lgkmcnt(0)")
        for i in range(0, 8, 2): a(f"v_pk_add_f32 {r2(qd[2]+i)}, {r2(qd[2]+i)}, {r2(qd[3]+i)}")
        for i in range(0, 8, 2): a(f"v_pk_add_f32 {r2(qd[0]+i)}, {r2(qd[0]+i)}, {r2(qd[2]+i)}")
        for i in range(4): a(f"v_cvt_pk_bf16_f32 v{vBq+i}, v{qd[0]+2*i}, v{qd[0]+2*i+1}")
        pubA(16, 64, 2, "gpub", [vAO, vAO + 4, vT, vT + 4, vT + 8, vT + 12, vU + 4, vU + 8])
        if o["stamps"] and o["cnt"] == 3:
            r = self.sreg(self.nst); self.names.append("xretry"); self.nst += 1
            a(f"s_and_b32 s4, s{sPL}, 100"); a(f"s_add_u32 s{r}, s16, s4"); a(f"s_addc_u32 s{r+1}, s17, 0")
        (None if o["st4"] else self.stamp("qcons"))
        if o["round_scores"]: a(f"s_mov_b32 s{sC}, {f2u(128 ** -0.5):#x}")
        def qk_fin(t):
            D = vT + 4 * (t % 4)
            a(f"v_mov_b32_dpp v{vS+t}, v{D} quad_perm:[0,0,0,0] {DPP}")
            for u in range(1, 4): a(f"v_add_f32_dpp v{vS+t}, v{D+u}, v{vS+t} quad_perm:[{u},{u},{u},{u}] {DPP}")
            if t & 1:
                t0 = t - 1
                if o["round_scores"]:
                    a(f"""
                    v_cvt_pk_bf16_f32 v{vU}, v{vS+t0}, v{vS+t0+1}
                    v_lshlrev_b32 v{vS+t0}, 16, v{vU}
                    v_and_b32 v{vS+t0+1}, 0xffff0000, v{vU}
                    v_mul_f32 v{vS+t0}, s{sC}, v{vS+t0}
                    v_mul_f32 v{vS+t0+1}, s{sC}, v{vS+t0+1}
                    v_cvt_pk_bf16_f32 v{vU}, v{vS+t0}, v{vS+t0+1}
                    v_lshlrev_b32 v{vS+t0}, 16, v{vU}
                    v_and_b32 v{vS+t0+1}, 0xffff0000, v{vU}
                    """)
                if t == 1: a(f"v_max_f32 v{vU+1}, v{vS}, v{vS+1}")
                else: a(f"v_max3_f32 v{vU+1}, v{vU+1}, v{vS+t0}, v{vS+t0+1}")
        for t in range(16):
            if t > lastK: self.wait(f"K{t}")
            D = vT + 4 * (t % 4)
            a(f"v_mfma_f32_16x16x32_bf16 {r4(D)}, {r4(dst[f'K{t}'])}, {r4(vBq)}, 0")
            if t == 15: self.kdone = True
            if t > lastK: fill(f"K{t}")
            if t >= 2: qk_fin(t - 2)
        more(o["pre_s"])
        a(f"""
        v_bfe_u32 v{vU+2}, v0, 3, 1
        v_lshlrev_b32 v{vU+2}, 6, v{vU+2}
        v_lshrrev_b32 v{vU+3}, 4, v0
        v_lshl_add_u32 v{vK}, v{vU+3}, 2, v{vU+2}
        """)
        qk_fin(14); qk_fin(15)
        cexp = 1.4426950408889634 if o["round_scores"] else 128 ** -0.5 * 1.4426950408889634
        a(f"""
        ds_write_b32 v{vK}, v{vU+1} offset:{MX}
        s_mov_b32 s{sC}, {f2u(cexp):#x}
        s_waitcnt lgkmcnt(0)
        s_barrier
        """)
        for i in range(4): a(f"ds_read_b128 {r4(vT+4*i)}, v{vU+2} offset:{MX+16*i}")
        a("s_waitcnt lgkmcnt(0)")
        a(f"v_max3_f32 v{vT}, v{vT}, v{vT+1}, v{vT+2}")
        for t in range(3, 15, 2): a(f"v_max3_f32 v{vT}, v{vT}, v{vT+t}, v{vT+t+1}")
        a(f"v_max_f32 v{vMx}, v{vT}, v{vT+15}")
        a(f"v_and_b32 v{vMx}, v{vMx}, v{vTM}")
        a(f"v_mul_f32 v{vMc}, s{sC}, v{vMx}")
        for t in range(16): a(f"v_fma_f32 v{vS+t}, v{vS+t}, s{sC}, -v{vMc}")
        for t in range(16): a(f"v_exp_f32 v{vS+t}, v{vS+t}")
        a(f"v_pk_add_f32 {r2(vT)}, {r2(vS)}, {r2(vS+2)}")
        for t in range(4, 16, 2): a(f"v_pk_add_f32 {r2(vT)}, {r2(vT)}, {r2(vS+t)}")
        a(f"v_add_f32 v{vT}, v{vT}, v{vT+1}")
        a(f"ds_write_b32 v{vK}, v{vT} offset:{LS}")
        self.stamp("smax")
        Lha = self.lab("haddr")
        hl = [f"buffer_load_dwordx4 {r4(vAO)}, v{vQa}, s[{SW}:{SW+3}], 0 offen sc1",
              f"buffer_load_dwordx4 {r4(vAO+4)}, v{vQb}, s[{SW}:{SW+3}], 0 offen sc1"]
        a(f"""
        s_cmp_lg_u32 s{sJ}, 3
        s_cbranch_scc1 {Lha}
        s_bfe_u32 s4, s2, 0x10006
        s_lshl_b32 s4, s4, 7
        s_add_u32 s4, s4, {RA+256}
        v_and_b32 v{vU}, 3, v0
        v_lshlrev_b32 v{vU}, 16, v{vU}
        v_bfe_u32 v{vU+1}, v0, 5, 1
        v_lshl_add_u32 v{vU}, v{vU+1}, 8, v{vU}
        v_add_u32 v{vU+1}, 1, v{vU+1}
        {"" if o["mix"] else f"v_mov_b32 v{vU+1}, 0"}
        v_xor_b32 v{vU+1}, s{sC6}, v{vU+1}
        v_lshl_add_u32 v{vU}, v{vU+1}, 10, v{vU}
        v_bfe_u32 v{vU+1}, v0, 2, 3
        v_lshl_add_u32 v{vU}, v{vU+1}, 4, v{vU}
        v_add_u32 v{vQa}, s4, v{vU}
        s_and_b32 s4, s{sC6}, 0x38
        s_lshl_b32 s4, s4, 10
        s_and_b32 s5, s{sC6}, 7
        s_bfe_u32 s6, s2, 0x10006
        s_lshl3_add_u32 s5, s6, s5
        s_lshl_b32 s5, s5, 4
        s_add_u32 s4, s4, s5
        s_add_u32 s4, s4, {RA+768}
        v_bfe_u32 v{vU}, v0, 2, 2
        v_lshlrev_b32 v{vU}, 16, v{vU}
        v_and_b32 v{vU+1}, 3, v0
        v_lshl_add_u32 v{vU}, v{vU+1}, 11, v{vU}
        v_bfe_u32 v{vU+1}, v0, 4, 1
        v_lshl_add_u32 v{vU}, v{vU+1}, 10, v{vU}
        v_add_u32 v{vQb}, s4, v{vU}
        {Lha}:
        """)
        def hfin():
            Lh = self.lab("hfin")
            a(f"""
            s_cmp_lg_u32 s{sJ}, 3
            s_cbranch_scc1 {Lh}
            s_waitcnt vmcnt({len(self.vm) - self.hmark})
            """)
            retry_loop("h", hl, [vAO, vAO + 4], vU)
            for i in range(4): a(f"v_add_f32_dpp v{vAO+i}, v{vAO+i}, v{vAO+i} quad_perm:[1,0,3,2] {DPP}")
            for i in range(4): a(f"v_add_f32_dpp v{vAO+4+i}, v{vAO+4+i}, v{vAO+4+i} row_ror:1 {DPP}")
            for i in range(4): a(f"v_add_f32_dpp v{vAO+i}, v{vAO+i}, v{vAO+i} quad_perm:[2,3,0,1] {DPP}")
            for r in (2, 4, 8):
                for i in range(4): a(f"v_add_f32_dpp v{vAO+4+i}, v{vAO+4+i}, v{vAO+4+i} row_ror:{r} {DPP}")
            a(f"""
            v_bfe_u32 v{vU+1}, v0, 5, 1
            v_mul_u32_u24 v{vU+1}, 192, v{vU+1}
            v_bfe_u32 v{vU+2}, v0, 2, 3
            v_lshl_add_u32 v{vU+1}, v{vU+2}, 4, v{vU+1}
            ds_write_b128 v{vU+1}, {r4(vAO)} offset:{HP}
            v_bfe_u32 v{vU+1}, v0, 4, 1
            v_mul_u32_u24 v{vU+1}, 192, v{vU+1}
            ds_write_b128 v{vU+1}, {r4(vAO+4)} offset:{HP+128}
            v_min_u32 v{vU+1}, 35, v{vL}
            v_lshlrev_b32 v{vU+2}, 2, v{vU+1}
            v_add_u32 v{vU+2}, {HP}, v{vU+2}
            s_waitcnt lgkmcnt(0)
            ds_read2_b32 {r2(vU+4)}, v{vU+2} offset0:0 offset1:48
            v_lshlrev_b32 v{vU+1}, 1, v{vU+1}
            s_waitcnt lgkmcnt(0)
            v_cvt_pk_bf16_f32 v{vU+4}, v{vU+4}, v{vU+5}
            v_and_b32 v{vU+5}, 0xffff0000, v{vU+4}
            v_lshlrev_b32 v{vU+4}, 16, v{vU+4}
            v_max_f32 v{vU+4}, 0, v{vU+4}
            v_mul_f32 v{vU+4}, v{vU+4}, v{vU+5}
            v_cvt_pk_bf16_f32 v{vU+4}, v{vU+4}, v{vU+4}
            ds_write_b16 v{vU+1}, v{vU+4} offset:{HL}
            {Lh}:
            """)
        hcheck = None
        for t in range(16):
            B = vT + 4 * (t % 2)
            a(f"v_cvt_pk_bf16_f32 v{vU}, v{vS+t}, v{vS+t}")
            for j in range(4): a(f"v_and_b32 v{B+j}, v{vU}, v{vM[j]}")
            self.wait(f"V{t}")
            a(f"v_mfma_f32_16x16x32_bf16 {r4(vAcc)}, {r4(dst[f'V{t}'])}, {r4(B)}, {'0' if t == 0 else r4(vAcc)}")
            fill(f"V{t}", min(W, 15 + o["Wt"] - t))
            if o["st4"] and t in (1, 2, 5, 8, 9, 12): self.stamp(f"V{t}")
            if t == o["hp"]:
                a(f"s_cmp_eq_u32 s{sJ}, 3"); a("s_cselect_b64 exec, -1, 0")
                for i, ld in enumerate(hl): self.issue(f"H{i}", ld.replace("sc1", o["first"]))
                a("s_mov_b64 exec, -1")
                self.hmark = len(self.vm)
                hcheck = min(15, self.ip - big.index("V0"))
            if t == 3:
                a(f"""
                v_bfe_u32 v{vK}, v0, 3, 1
                v_lshlrev_b32 v{vK}, 9, v{vK}
                v_bfe_u32 v{vU+1}, v0, 4, 2
                v_lshl_add_u32 v{vK}, v{vU+1}, 7, v{vK}
                v_and_b32 v{vU+1}, 7, v0
                v_lshl_add_u32 v{vK}, v{vU+1}, 2, v{vK}
                v_lshl_add_u32 v{vK}, v{vJ}, 10, v{vK}
                s_lshl4_add_u32 s6, s{sG}, s{sS}
                s_mul_i32 s6, s6, 1152
                s_add_u32 s6, s6, {OB}
                v_lshl_add_u32 v{vX+4}, v{vL}, 4, s6
                s_mul_i32 s4, s{sG}, {16*1152}
                s_add_u32 s4, s4, {OB}
                v_and_b32 v{vX+5}, 15, v0
                v_mul_u32_u24 v{vX+5}, 1152, v{vX+5}
                v_add_u32 v{vX+5}, s4, v{vX+5}
                s_and_b32 s5, s{sS}, 7
                s_lshl_b32 s5, s5, 7
                s_lshr_b32 s4, s{sJ}, 1
                s_lshl_b32 s4, s4, 6
                s_add_u32 s4, s4, s5
                v_bfe_u32 v{vU+1}, v0, 4, 2
                v_lshl_add_u32 v{vX+6}, v{vU+1}, 4, v{vX+5}
                v_add_u32 v{vX+6}, s4, v{vX+6}
                s_bfe_u32 s4, s{sS}, 0x10002
                s_lshl_b32 s4, s4, 3
                v_add_u32 v{vX+5}, s4, v{vX+5}
                v_lshrrev_b32 v{vFA}, {CG.bit_length()-1}, v0
                v_mul_u32_u24 v{vFA}, {128*CG*16}, v{vFA}
                v_and_b32 v{vU+1}, {CG-1}, v0
                v_lshl_add_u32 v{vFA}, v{vU+1}, 4, v{vFA}
                s_and_b32 s4, s2, 127
                s_mul_i32 s4, s4, {CG*16}
                s_lshr_b32 s5, s2, 7
                s_mul_i32 s5, s5, {72*128*16}
                s_add_u32 s4, s4, s5
                s_add_u32 s4, s4, {FB}
                v_add_u32 v{vFA}, s4, v{vFA}
                """)
            if t == 4:
                a(f"""
                v_subrev_u32 v{vX+7}, {HL}, v{vRS}
                v_and_b32 v{vU+1}, 3, v0
                v_lshlrev_b32 v{vU+1}, 3, v{vU+1}
                v_lshl_add_u32 v{vX+7}, v{vX+7}, 4, v{vU+1}
                v_add_u32 v{vX+7}, {OLX}, v{vX+7}
                v_bfe_u32 v{vU+1}, v0, 2, 2
                s_mov_b32 s4, 0x02020202
                v_mul_lo_u32 v{vU+1}, v{vU+1}, s4
                v_add_u32 v{vU+1}, s32, v{vU+1}
                v_or_b32 v{vU+2}, v{vM[0]}, v{vM[2]}
                v_or_b32 v{vU+3}, v{vM[1]}, v{vM[3]}
                v_mov_b32 v{vU+4}, 0x0c0c0c0c
                v_bfi_b32 v{vBq+2}, v{vU+2}, v{vU+1}, v{vU+4}
                v_bfi_b32 v{vBq+3}, v{vU+3}, v{vU+1}, v{vU+4}
                s_lshr_b32 s5, s{sJ}, 1
                s_lshl_b32 s5, s5, 9
                s_add_u32 s5, s5, {OLX}
                v_lshl_add_u32 v{vX+3}, v{vL}, 3, s5
                """)
            if hcheck is not None and t == min(15, hcheck):
                hcheck = None
                if not o["hlate"]: hfin()
        assert hcheck is None
        for i in range(4): a(f"ds_write_b32 v{vK}, v{vAcc+i} offset:{OW+32*i}")
        a(f"""
        s_waitcnt lgkmcnt(0)
        s_barrier
        """)
        self.stamp("pvdone")
        if o["hlate"]:
            hfin(); assert o["obar"]
        Lo1 = self.lab("opub"); Lm = self.lab("mlpub")
        a(f"""
        s_cmp_eq_u32 s{sJ}, 2
        s_cbranch_scc1 {Lm}
        s_cmp_lg_u32 s{sJ}, 0
        s_cbranch_scc1 {Lo1}
        """)
        for jj in range(4): a(f"ds_read_b128 {r4(vT+4*jj)}, v{vV} offset:{OW+1024*jj}")
        a("s_waitcnt lgkmcnt(2)")
        pkadd(vT, vT, vT + 4)
        a("s_waitcnt lgkmcnt(0)")
        pkadd(vT + 8, vT + 8, vT + 12); pkadd(vT, vT, vT + 8)
        a(f"""
        s_branch {Lo1}t
        {Lm}:
        v_bfe_u32 v{vU+1}, v0, 3, 1
        v_lshlrev_b32 v{vU+1}, 6, v{vU+1}
        """)
        for i in range(4): a(f"ds_read_b128 {r4(vU+4+4*i)}, v{vU+1} offset:{LS+16*i}")
        a(f"v_add_u32 v{vX+4}, 1024, v{vX+4}")
        a("s_waitcnt lgkmcnt(0)")
        pkadd(vU + 4, vU + 4, vU + 8); pkadd(vU + 12, vU + 12, vU + 16); pkadd(vU + 4, vU + 4, vU + 12)
        a(f"""
        v_pk_add_f32 {r2(vU+4)}, {r2(vU+4)}, {r2(vU+6)}
        v_add_f32 v{vT+1}, v{vU+4}, v{vU+5}
        v_mov_b32 v{vT}, v{vMx}
        v_mov_b32_dpp v{vT+2}, v{vMx} row_shl:8 {DPP}
        v_mov_b32_dpp v{vT+3}, v{vT+1} row_shl:8 {DPP}
        s_mov_b64 exec, 1
        {Lo1}t:
        """)
        tagins(vT)
        a(f"""
        s_branch {Lo1}s
        {Lo1}:
        s_mov_b64 exec, 0
        {Lo1}s:
        """)
        dual("OP", f"buffer_store_dwordx4 {r4(vT)}, v{vX+4}, s[{SW}:{SW+3}], 0 offen", True)
        if o["obar"]: a("s_waitcnt lgkmcnt(0)"); a("s_barrier")
        (None if o["st4"] else self.stamp("opub"))
        fill("V15", o["post"])
        a(f"""
        ds_read2_b32 {r2(vX)}, v{vRS} offset0:0 offset1:1
        ds_read_b32 v{vX+2}, v{vRS} offset:8
        """)
        def flat_A(k, xsrc):
            p = k & 1; A = vU + 2 * p
            a(f"v_perm_b32 v{A}, v{xsrc+(k>>1)}, v{xsrc+(k>>1)}, v{vSel[2*p]}")
            a(f"v_perm_b32 v{A+1}, v{xsrc+(k>>1)}, v{xsrc+(k>>1)}, v{vSel[2*p+1]}")
            return A
        def flat_mfma(A, data, acc, first):
            a(f"v_mfma_f32_4x4x4_16b_bf16 {r4(acc)}, {r2(A)}, {r2(data)}, {'0' if first else r4(acc)}")
            a(f"v_mfma_f32_4x4x4_16b_bf16 {r4(acc+4)}, {r2(A)}, {r2(data+2)}, {'0' if first else r4(acc+4)}")
        def omk(st): return [f"buffer_load_dwordx4 {r4(st[0])}, v{vX+6}, s[{SW}:{SW+3}], 0 offen sc1",
                             f"buffer_load_dwordx2 {r2(st[0]+4)}, v{vX+5}, s[{SW}:{SW+3}], 0 offen offset:1024 sc1"]
        osets = [[R1 + 8 * d] for d in range(o["odepth"])]
        a("s_waitcnt lgkmcnt(0)")
        polled = False
        for k in range(6):
            A = flat_A(k, vX)
            self.wait(f"D{k}")
            flat_mfma(A, dst[f"D{k}"], vAD, k == 0)
            fill(f"D{k}", o["post"])
            if self.ip == len(big) and k >= o["opa"] and not polled:
                polled = True
                a(f"s_bitcmp1_b32 s{sJ}, 0"); a("s_cselect_b64 exec, -1, 0")
                for i, ld in enumerate(omk(osets[0])): self.issue(f"OPL{i}", ld)
                a("s_mov_b64 exec, -1")
        assert polled
        (None if o["st3"] else self.stamp("Ddone"))
        for i in range(0, 8): a(f"v_mul_f32 v{vAD+i}, v{vOMG}, v{vAD+i}")
        Lo2 = self.lab("ocons")
        a(f"""
        s_bitcmp0_b32 s{sJ}, 0
        s_cbranch_scc1 {Lo2}
        """)
        P = vS
        def ofin(st):
            a(f"v_and_b32 v{vBq}, v{st[0]+4}, v{vTM}")
            a(f"v_mov_b32 v{vBq+1}, v{st[0]+5}")
            a(f"v_pk_mul_f32 {r2(P)}, {r2(st[0])}, {r2(vG-1)} op_sel:[0,1] op_sel_hi:[1,1]")
            a(f"v_pk_mul_f32 {r2(P+2)}, {r2(st[0]+2)}, {r2(vG-1)} op_sel:[0,1] op_sel_hi:[1,1]")
        pipe_poll("o", omk, osets, vU + 4, 1, ofin, o["osleep"], extra=2)
        (None if o["st3"] else self.stamp("opollok"))
        a(f"v_max_f32_dpp v{vU+4}, v{vBq}, v{vBq} row_ror:1 {DPP}")
        for r in (2, 4, 8): a(f"v_max_f32_dpp v{vU+4}, v{vU+4}, v{vU+4} row_ror:{r} {DPP}")
        a(f"""
        v_sub_f32 v{vBq}, v{vBq}, v{vU+4}
        v_mul_f32 v{vBq}, s{sC}, v{vBq}
        v_exp_f32 v{vBq}, v{vBq}
        v_mul_f32 v{P+4}, v{vBq}, v{vBq+1}
        v_pk_mul_f32 {r2(P)}, {r2(P)}, {r2(vBq)} op_sel_hi:[1,0]
        v_pk_mul_f32 {r2(P+2)}, {r2(P+2)}, {r2(vBq)} op_sel_hi:[1,0]
        """)
        for r in (1, 2, 4, 8):
            for i in (4, 0, 1, 2, 3): a(f"v_add_f32_dpp v{P+i}, v{P+i}, v{P+i} row_ror:{r} {DPP}")
            if r == 8: self.l.insert(len(self.l) - 2, f"    v_rcp_f32 v{vBq}, v{P+4}")
        a(f"""
        v_pk_mul_f32 {r2(P)}, {r2(P)}, {r2(vBq)} op_sel_hi:[1,0]
        v_pk_mul_f32 {r2(P+2)}, {r2(P+2)}, {r2(vBq)} op_sel_hi:[1,0]
        v_cvt_pk_bf16_f32 v{P}, v{P}, v{P+1}
        v_cvt_pk_bf16_f32 v{P+1}, v{P+2}, v{P+3}
        v_perm_b32 v{P+2}, v{P+1}, v{P}, v{vBq+2}
        v_perm_b32 v{P+3}, v{P+1}, v{P}, v{vBq+3}
        ds_write_b64 v{vX+3}, {r2(P+2)}
        s_branch {Lo2}x
        {Lo2}:
        s_waitcnt vmcnt(0)
        {Lo2}x:
        v_cmp_gt_u32 vcc, 72, v0
        s_waitcnt lgkmcnt(0)
        s_barrier
        """)
        for k in range(3): a(f"ds_read2_b64 {r4(vT+4*k)}, v{vX+7} offset0:{8*k} offset1:{8*k+4}")
        (None if o["st3"] else self.stamp("B7"))
        for k in range(6):
            if k % 2 == 0: a(f"s_waitcnt lgkmcnt({0 if o['stamps'] else 2 - k // 2})")
            flat_mfma(vT + 2 * k, dst[f"O{k}"], vAD, False)
        Lf = self.lab("fpub")
        a(f"""
        ds_write_b128 v{vCH}, {r4(vAD)} offset:{LF}
        ds_write_b128 v{vCH}, {r4(vAD+4)} offset:{LF+16}
        s_waitcnt lgkmcnt(0)
        s_barrier
        s_and_saveexec_b64 s[4:5], vcc
        s_cbranch_execz {Lf}
        """)
        tg = [vT, vT + 4, vT + 8, vT + 12, vT + 16, vU + 4]
        for p in range(6): a(f"ds_read_b128 {r4(tg[p])}, v{vV} offset:{LF+1152*p}")
        a("s_waitcnt lgkmcnt(4)"); pkadd(tg[0], tg[0], tg[1])
        a("s_waitcnt lgkmcnt(2)"); pkadd(tg[2], tg[2], tg[3])
        a("s_waitcnt lgkmcnt(0)"); pkadd(tg[4], tg[4], tg[5]); pkadd(tg[0], tg[0], tg[2]); pkadd(tg[0], tg[0], tg[4])
        tagins(vT)
        a(f"""
        buffer_store_dwordx4 {r4(vT)}, v{vFA}, s[{SW}:{SW+3}], 0 offen sc1
        {Lf}:
        s_mov_b64 exec, s[4:5]
        """)
        self.stamp("fpub")
        NL = CG // 2
        a(f"""
        s_cmpk_ge_u32 s2, {R}
        s_cbranch_scc1 L_fin
        s_mul_i32 s4, s2, {128*CG*16}
        s_add_u32 s4, s4, {FB}
        """)
        if CG == 4:
            a(f"""
            v_and_b32 v{vQa}, 15, v0
            v_lshlrev_b32 v{vQa}, 6, v{vQa}
            v_bfe_u32 v{vQb}, v0, 4, 2
            v_lshl_add_u32 v{vQa}, v{vQb}, 4, v{vQa}
            v_lshl_add_u32 v{vQa}, v{vJ}, 10, v{vQa}
            v_add_u32 v{vQa}, s4, v{vQa}
            s_movk_i32 s33, 0x1000
            """)
            offs = [("0", 0), ("s33", 0)]
        elif CG == 2:
            a(f"""
            v_and_b32 v{vQa}, 15, v0
            v_lshlrev_b32 v{vQa}, 5, v{vQa}
            v_bfe_u32 v{vQb}, v0, 4, 1
            v_lshl_add_u32 v{vQa}, v{vQb}, 4, v{vQa}
            v_lshrrev_b32 v{vQb}, 5, v0
            v_lshl_add_u32 v{vQa}, v{vQb}, 9, v{vQa}
            v_add_u32 v{vQa}, s4, v{vQa}
            """)
            offs = [("0", 0)]
        else:
            a(f"""
            v_and_b32 v{vQa}, 15, v0
            v_lshlrev_b32 v{vQa}, 7, v{vQa}
            v_bfe_u32 v{vQb}, v0, 4, 2
            v_lshl_add_u32 v{vQa}, v{vQb}, 4, v{vQa}
            v_lshl_add_u32 v{vQa}, v{vJ}, 11, v{vQa}
            v_add_u32 v{vQa}, s4, v{vQa}
            s_movk_i32 s33, 0x2000
            """)
            offs = [("0", 0), ("s33", 0), ("0", 64), ("s33", 64)]
        def fmk(st): return [f"buffer_load_dwordx4 {r4(st[k])}, v{vQa}, s[{SW}:{SW+3}], {offs[k][0]} offen offset:{offs[k][1]} sc1" for k in range(NL)]
        fsets = [[R2 + 16 * d + 4 * k for k in range(NL)] for d in range(o["fdepth"])]
        F = vS
        NF = 8 if CG == 8 else 4
        def ffin(st):
            if CG == 4: pkadd(F, st[0], st[1])
            elif CG == 8: pkadd(F, st[0], st[1]); pkadd(F + 4, st[2], st[3])
            else:
                for i in range(4): a(f"v_add_f32_dpp v{F+i}, v{st[0]+i}, v{st[0]+i} row_ror:1 {DPP}")
        if o["fsel"]:
            assert CG == 4
            for k in range(2): a(fmk(fsets[0])[k])
            D = o["fdepth"]
            for k in range(2):
                mk1 = lambda st, k=k: [f"buffer_load_dwordx4 {r4(st[0])}, v{vQa}, s[{SW}:{SW+3}], {offs[k][0]} offen offset:{offs[k][1]} sc1"]
                Lq = self.lab("fq")
                a(f"s_waitcnt vmcnt({1 - k})" if k == 0 else "s_nop 0")
                sets1 = [[R2 + 32 + 16 * k + 4 * d] for d in range(D)]
                if k == 1: a("s_waitcnt vmcnt(%d)" % 0) if False else None
                tagchk([fsets[0][k]], vU + 4)
                a(f"s_cbranch_vccz {Lq}")
                def fin1(st, k=k):
                    a(f"v_pk_mul_f32 {r2(fsets[0][k])}, {r2(st[0])}, 1.0 op_sel_hi:[1,0]")
                    a(f"v_pk_mul_f32 {r2(fsets[0][k]+2)}, {r2(st[0]+2)}, 1.0 op_sel_hi:[1,0]")
                pipe_poll(f"f{k}", mk1, sets1, vU + 4, 0, fin1, o["fsleep"])
                if k == 0:
                    a(f"s_branch {Lq}b"); a(f"{Lq}:"); a("s_waitcnt vmcnt(0)"); a(f"{Lq}b:")
                else: a(f"{Lq}:")
            ffin(fsets[0])
        else:
            pipe_poll("f", fmk, fsets, vU + 4, 0, ffin, o["fsleep"])
        (None if o["st3"] else self.stamp("fpollok"))
        for r in (1, 2, 4, 8):
            if CG == 2 and r == 1: continue
            for i in range(NF): a(f"v_add_f32_dpp v{F+i}, v{F+i}, v{F+i} row_ror:{r} {DPP}")
        a(f"""
        v_lshrrev_b32 v{vU}, 4, v0
        v_lshlrev_b32 v{vU}, 4, v{vU}
        ds_write_b128 v{vU}, {r4(F)} offset:{RD}
        """)
        if CG == 8: a(f"ds_write_b128 v{vU}, {r4(F+4)} offset:{RD+256}")
        a(f"""
        s_mov_b32 s{SX}, s56
        s_mov_b32 s{SX+1}, s57
        s_mul_i32 s4, s2, {CG*8}
        """)
        if CG == 8:
            a(f"""
            v_and_b32 v{vU}, 3, v0
            v_lshrrev_b32 v{vU+1}, 4, v0
            v_lshl_add_u32 v{vU}, v{vU+1}, 2, v{vU}
            v_lshl_add_u32 v{vU}, v{vU}, 3, s4
            """)
        else:
            a(f"v_lshl_add_u32 v{vU}, v0, 3, s4")
        a(f"""
        s_waitcnt lgkmcnt(0)
        s_barrier
        s_cmp_lg_u32 s{sJ}, 0
        s_cbranch_scc1 L_fin
        s_mov_b64 exec, {'0xffffffff' if CG == 8 else '0xffff'}
        ds_read_b128 {r4(vT)}, v{vV} offset:{RD}
        s_waitcnt lgkmcnt(0)
        """)
        for r in (1, 2, 4, 8):
            if r >= min(CG, 4):
                for i in range(4): a(f"v_add_f32_dpp v{vT+i}, v{vT+i}, v{vT+i} row_ror:{r} {DPP}")
        a(f"""
        v_cvt_pk_bf16_f32 v{vT}, v{vT}, v{vT+1}
        v_cvt_pk_bf16_f32 v{vT+1}, v{vT+2}, v{vT+3}
        s_mov_b64 exec, {0xf000f if CG == 8 else (1 << CG) - 1:#x}
        buffer_store_dwordx2 {r2(vT)}, v{vU}, s[{SX}:{SX+3}], 0 offen {o['outf']}
        s_cmp_lg_u32 s2, 0
        s_cbranch_scc1 L_fin
        s_mov_b64 exec, 1
        v_mov_b32 v{vT+4}, s{sTAG}
        v_mov_b32 v{vT+5}, 0
        buffer_store_dword v{vT+4}, v{vT+5}, s[{SW}:{SW+3}], 0 offen sc1
        L_fin:
        """)
        if o["skewm"]:
            a(f"""
            s_cmp_lg_u32 s2, 0
            s_cbranch_scc1 L_end
            s_cmp_lg_u32 s{sJ}, 0
            s_cbranch_scc1 L_end
            s_add_u32 s4, s60, 0xF0000
            s_addc_u32 s5, s61, 0
            s_load_dwordx8 s[64:71], s[4:5], 0 glc
            s_waitcnt lgkmcnt(0)
            """)
            for i in range(8): a(f"s_sub_u32 s{64+i}, s{64+i}, s16"); a(f"s_add_u32 s{64+i}, s{64+i}, 500")
            m = o["skewm"]
            if m == "late":
                a("s_add_u32 s6, s68, s69"); a("s_add_u32 s6, s6, s70"); a("s_add_u32 s6, s6, s71")
                a("s_sub_u32 s6, s6, s65"); a("s_sub_u32 s6, s6, s66"); a("s_sub_u32 s6, s6, s67"); a("s_sub_u32 s6, s6, s66")
                a("s_mul_i32 s6, s6, 5"); a("s_add_u32 s6, s6, 3000")
            else:
                a("s_min_u32 s72, s64, s65")
                for i in range(2, 8): a(f"s_min_u32 s72, s72, s{64+i}")
                if m == "max":
                    a("s_max_u32 s73, s64, s65")
                    for i in range(2, 8): a(f"s_max_u32 s73, s73, s{64+i}")
                else:
                    a(f"s_mov_b32 s73, s{64+int(m)}")
                a("s_sub_u32 s6, s73, s72"); a("s_mul_i32 s6, s6, 20"); a("s_add_u32 s6, s6, 3000")
            a(f"""
            s_min_u32 s6, s6, 20000
            L_hold:
            s_memrealtime s[4:5]
            s_waitcnt lgkmcnt(0)
            s_sub_u32 s4, s4, s16
            s_cmp_lt_u32 s4, s6
            s_cbranch_scc1 L_hold
            """)
        elif o["amp"] >= 0:
            self.stamp("end"); k = o["amp"]
            a(f"""
            s_waitcnt lgkmcnt(0)
            s_sub_u32 s6, s{self.sreg(k)}, s16
            s_min_u32 s6, s6, 3000
            s_mul_i32 s6, s6, 10
            s_add_u32 s6, s6, 3000
            L_hold:
            s_memrealtime s[4:5]
            s_waitcnt lgkmcnt(0)
            s_sub_u32 s4, s4, s16
            s_cmp_lt_u32 s4, s6
            s_cbranch_scc1 L_hold
            """)
        elif o["stamps"]:
            self.stamp("end")
            a(f"""
            s_waitcnt lgkmcnt(0)
            s_lshl_b32 s4, s101, 2
            s_add_u32 s4, s4, s{sJ}
            s_lshl_b32 s4, s4, 7
            s_add_u32 s4, s4, {STAMP_OFF:#x}
            s_add_u32 s6, s60, s4
            s_addc_u32 s7, s61, 0
            s_sub_u32 s6, s6, {o['wsoff']:#x}
            s_subb_u32 s7, s7, 0
            s_mov_b64 exec, 1
            v_mov_b32 v4, 0
            """)
            for j in range(self.nst):
                a(f"""
                v_mov_b32 v2, s{self.sreg(j)}
                v_mov_b32 v3, s{self.sreg(j)+1}
                global_store_dwordx2 v4, v[2:3], s[6:7] offset:{8*j}
                s_nop 1
                """)
        if o["hold"]:
            a(f"""
            s_waitcnt lgkmcnt(0)
            L_hold:
            s_memrealtime s[4:5]
            s_waitcnt lgkmcnt(0)
            s_sub_u32 s4, s4, s16
            s_cmp_lt_u32 s4, {o["hold"]}
            s_cbranch_scc1 L_hold
            """)
        a("L_end:")
        a("s_endpgm")
        cl = []
        for x in self.l:
            if cl and cl[-1].strip() == "s_mov_b64 exec, -1" and x.strip().startswith("s_mov_b64 exec,"): cl.pop()
            if len(cl) > 1 and cl[-2].strip() == "s_mov_b64 exec, -1" and cl[-1].strip().startswith("s_waitcnt vmcnt") and x.strip().startswith("s_mov_b64 exec,"):
                del cl[-2]
            cl.append(x)
        c2 = []
        for x in cl:
            c2.append(x)
        body = "\n".join(fix(c2)) + "\n"
        head = open("cdna_kernels/" + KN + ".s.ref").read().split("; Override launch")[0]
        if self.names: head += "; stamps: " + " ".join(self.names) + "\n"
        return head + f"""; @launch grid=(256,1,1) block=(256,1,1) lds={o['lds']}
.amdgcn_target "amdgcn-amd-amdhsa--gfx950"
.text
.globl {KN}_kernel
.p2align 8
.type {KN}_kernel,@function
{KN}_kernel:
""" + body + f""".section .rodata,"a"
.p2align 6
.amdhsa_kernel {KN}_kernel
  .amdhsa_next_free_vgpr 256
  .amdhsa_next_free_sgpr 102
  .amdhsa_accum_offset 256
  .amdhsa_group_segment_fixed_size 0
  .amdhsa_kernarg_size 104
  .amdhsa_user_sgpr_count 2
  .amdhsa_user_sgpr_kernarg_segment_ptr 1
  .amdhsa_system_sgpr_workgroup_id_x 1
.end_amdhsa_kernel
"""

if __name__ == "__main__":
    out = sys.argv[1]; opt = {}
    for kv in sys.argv[2:]:
        k, v = kv.split("="); opt[k] = eval(v)
    open(out, "w").write(Gen(**opt).build())
```

```python
import sys, struct
from hazard import fix
KN = "gated_mix__sliding_block_cached__glu_gated_reglu__decode"
STAMP_OFF = 0x30000000
def f2u(x): return struct.unpack("<I", struct.pack("<f", x))[0]

class Gen:
    def __init__(self, **opt):
        self.o = dict(W=9, stamps=False, wsoff=0x3fe00000, qp=2, hp=4, CG=4, round_scores=True, prefetch=0, jitter=0,
                      hold=0, amp=-1, lds=90112, nt="nt", spin=20000, pre_g=2, pre_q=2, pre_s=3, Wt=7, fdepth=1, odepth=1,
                      cnt=0, post=12, osleep=0, fsleep=0, pre_qp=0, first='sc1', pt=0, ptf='', st3=0, early=3, skewm='', adapt=11, flagrd=5, nearly=7, lpost=8, st4=0, atime=0, obar=1, opa=0, fsel=0, tlb=0, outf='', rot=1, mix=1, hlate=0, fx=1, oearly=1, pts=1, epf='', od=1, rorig=1, xs=0, cpf=0)
        for k in opt: assert k in self.o, k
        self.o.update(opt)
        self.l = []; self.vm = []; self.nl = 0; self.nst = 0; self.names = []
    def a(self, s):
        for x in s.strip().split("\n"):
            x = x.strip()
            if x: self.l.append(x if x.endswith(":") else "    " + x)
    def lab(self, p):
        self.nl += 1
        return f"L_{p}{self.nl}"
    def issue(self, label, s):
        self.a(s); self.vm.append(label)
    def wait(self, label):
        n = len(self.vm) - 1 - self.vm.index(label)
        assert n <= 63
        self.a(f"s_waitcnt vmcnt({n})")
    def sreg(self, k): return 16 + 2 * k if k < 8 else 36 + 2 * (k - 8)
    def stamp(self, name=""):
        if self.o["stamps"]:
            assert self.nst < 16
            r = self.sreg(self.nst)
            self.a(f"s_memrealtime s[{r}:{r+1}]")
            self.names.append(name); self.nst += 1

    def build(self):
        o = self.o; a = self.a; nt = o["nt"]; W = o["W"]
        RA, OB, FB, MLB = 0x1000, 0x50000, 0xA0000, 0xF8000
        CG = o["CG"]; R = 144 // CG
        XL, P1, QL, MX, LS, GS, HP, HL, OL, OW, LF, RD, DUM = 0, 2560, 10752, 14848, 14976, 15104, 15232, 15616, 15744, 15872, 19968, 29184, 29696
        OLX = 30208; XF = 31744
        vL = 1; vM = [2, 3, 4, 5]; vSel = [6, 7, 8, 9]
        vQa, vQb, vGU, vK, vV, vPD, vPD2, vPO, vTM = 10, 11, 12, 13, 14, 15, 16, 18, 17
        vMx, vMc, vFA, vRS = 19, 20, 21, 22
        vX = 24
        vS = 32; vBq = 48; vAq = 52; vAg = 56; vAr = 60; vAD = 56; vAO = 64; vT = 72; vPoll = 92
        vCH, vG, vOMG, vJ = 96, 97, 98, 99
        R1 = 100; R2 = 164; vU = 228
        vAcc = vAq
        dst = {}
        for i in range(5): dst[f"Q{i}"] = R1 + 4 * i
        for i in range(9): dst[f"G{i}"] = R1 + 20 + 4 * i
        for i in range(2): dst[f"R{i}"] = R1 + 56 + 4 * i
        for i in range(16): dst[f"K{i}"] = R2 + 4 * i; dst[f"V{i}"] = R1 + 4 * i
        for i in range(6): dst[f"D{i}"] = R2 + 4 * i; dst[f"O{i}"] = R2 + 24 + 4 * i
        big = [f"Q{i}" for i in range(5)] + [f"G{i}" for i in range(9)] + ["R0", "R1"] + [f"K{i}" for i in range(16)] + \
              [f"V{i}" for i in range(16)] + [f"D{i}" for i in range(6)] + [f"O{i}" for i in range(6)]
        sTAG = 62; sJ = 3; sKQ, sG, sS, sC6 = 8, 9, 10, 11; s4608 = 12
        sKV = 13; sGU = 14; sC = 15
        SQ, SGU, SK, SR, SD, SO, SX, SV, SW = 64, 68, 72, 76, 80, 84, 88, 92, 96
        sPL = 34; sXE = 100; XB = 0xF9000
        r4 = lambda v: f"v[{v}:{v+3}]"
        r2 = lambda v: f"v[{v}:{v+1}]"
        DPP = "row_mask:0xf bank_mask:0xf"
        self.ip = 0; self.gdone = self.kdone = False
        def issue_next():
            lb = big[self.ip]; self.ip += 1
            d = r4(dst[lb]); k = int(lb[1:]); c = lb[0]
            if c == "V": assert self.gdone
            if c in "DO": assert self.kdone
            if c == "Q":
                if k == 0: self.issue(lb, f"buffer_load_dwordx4 {d}, v{vQa}, s[{SQ}:{SQ+3}], 0 offen {nt}")
                elif k < 4: self.issue(lb, f"buffer_load_dwordx4 {d}, v{vQa}, s[{SQ}:{SQ+3}], s{32+k} offen {nt}")
                else: self.issue(lb, f"buffer_load_dwordx4 {d}, v{vQb}, s[{SQ}:{SQ+3}], 0 offen {nt}")
            elif c == "G":
                if k == 0: a(f"s_mov_b32 s{sGU}, 0")
                elif k < 8: a(f"s_addk_i32 s{sGU}, 9216")
                if k < 8: self.issue(lb, f"buffer_load_dwordx4 {d}, v{vGU}, s[{SGU}:{SGU+3}], s{sGU} offen {nt}")
                else: self.issue(lb, f"buffer_load_dwordx4 {d}, v{vPD}, s[{SGU}:{SGU+3}], 0 offen {nt}")
            elif c == "R":
                self.issue(lb, f"buffer_load_dwordx4 {d}, v{vPD2 if k == 0 else vPO}, s[{SR}:{SR+3}], 0 offen {nt}")
            elif c in "KV":
                if k == 0: a(f"s_lshl_b32 s{sKV}, s{sG}, 12" if o["rot"] else f"s_mov_b32 s{sKV}, 0")
                else:
                    a(f"s_addk_i32 s{sKV}, 4096")
                    if o["rot"]: a(f"s_bitset0_b32 s{sKV}, 16")
                sr, vo = (SK, vK) if c == "K" else (SV, vV)
                self.issue(lb, f"buffer_load_dwordx4 {d}, v{vo}, s[{sr}:{sr+3}], s{sKV} offen {nt}")
            else:
                sr = SD if c == "D" else SO
                vo = vPO if c == "O" else (vPD if k < 2 else vPD2)
                so, im = ("0", k * 1152) if k < 4 else (f"s{s4608}", (k - 4) * 1152)
                if c == "O" and k >= 4: vo, so = vGU, "0"
                self.issue(lb, f"buffer_load_dwordx4 {d}, v{vo}, s[{sr}:{sr+3}], {so} offen offset:{im} {nt}")
        def fill(label, w=None):
            w = W if w is None else w
            idx = big.index(label)
            while self.ip < len(big) and self.ip <= idx + w: issue_next()
        def more(n):
            for _ in range(n):
                if self.ip < len(big): issue_next()
        def tagins(v):
            for i in range(4): a(f"v_and_or_b32 v{v+i}, v{v+i}, v{vTM}, s{sTAG}")
        def tagchk(vs, acc, extra=0):
            first = True
            for v in vs:
                for i in range(4 + extra):
                    if first: a(f"v_xor_b32 v{acc}, s{sTAG}, v{v+i}"); first = False
                    else: a(f"v_bitop3_b32 v{acc}, v{v+i}, s{sTAG}, v{acc} bitop3:0xbe")
            a(f"v_and_b32 v{acc}, 0xff, v{acc}")
            a(f"v_cmp_ne_u32 vcc, 0, v{acc}")
        def retry_loop(name, loads, vs, acc):
            Lok = self.lab(name + "ok"); Lre = self.lab(name + "re")
            a(f"s_mov_b32 s7, {o['spin']}")
            a(f"{Lre}:")
            tagchk(vs, acc)
            a(f"s_cbranch_vccz {Lok}")
            for ld in loads: a(ld)
            a("s_waitcnt vmcnt(0)")
            a("s_sub_u32 s7, s7, 1")
            a("s_cmp_lg_u32 s7, 0")
            a(f"s_cbranch_scc1 {Lre}")
            a(f"{Lok}:")
            if o["stamps"] and o["cnt"] == 1:
                r = self.sreg(self.nst); self.names.append(name + "retry"); self.nst += 1
                a(f"s_sub_u32 s7, {o['spin']}, s7"); a(f"s_mul_i32 s7, s7, 100")
                a(f"s_add_u32 s{r}, s16, s7"); a(f"s_addc_u32 s{r+1}, s17, 0")
        def pipe_poll(name, mk, sets, acc, first_issued, fin, slp=0, extra=0):
            n = len(mk(sets[0])); D = len(sets)
            Lx = self.lab(name + "x"); Lre = self.lab(name + "re")
            Lmv = [self.lab(name + "mv") for _ in range(D)]
            for d in range(first_issued, D):
                for ld in mk(sets[d]): a(ld)
            a(f"s_mov_b32 s7, {o['spin']}")
            a(f"{Lre}:")
            for d in range(D):
                a(f"s_waitcnt vmcnt({n*(D-1)})")
                tagchk(sets[d], acc, extra)
                a(f"s_cbranch_vccz {Lmv[d]}")
                if slp: a(f"s_sleep {slp}")
                for ld in mk(sets[d]): a(ld)
            a("s_sub_u32 s7, s7, 1")
            a("s_cmp_lg_u32 s7, 0")
            a(f"s_cbranch_scc1 {Lre}")
            for d in range(D - 1, -1, -1):
                a(f"{Lmv[d]}:")
                fin(sets[d])
                if d: a(f"s_branch {Lx}")
            a(f"{Lx}:")
        def dual(name, st, local):
            if local:
                a("s_mov_b64 s[4:5], exec")
                a(f"s_and_b64 exec, s[4:5], s[{sPL}:{sPL+1}]")
                self.issue(name + "p", st)
                a(f"s_andn2_b64 exec, s[4:5], s[{sPL}:{sPL+1}]")
            self.issue(name, st + " sc1")
            a("s_mov_b64 exec, -1")
        def sel_poll(name, pieces, acc, depth):
            Lx = self.lab(name + "x"); Lre = self.lab(name + "re")
            n = sum(len(p[0]) for p in pieces)
            for _ in range(depth - 1):
                for p in pieces:
                    for ld in p[0]: a(ld)
            a(f"s_mov_b32 s7, {o['spin']}")
            a(f"{Lre}:")
            a(f"s_waitcnt vmcnt({n * (depth - 1)})")
            for i, p in enumerate(pieces):
                first = True
                for v in range(p[1], p[1] + p[2]):
                    if first: a(f"v_xor_b32 v{acc+i}, s{sTAG}, v{v}"); first = False
                    else: a(f"v_bitop3_b32 v{acc+i}, v{v}, s{sTAG}, v{acc+i} bitop3:0xbe")
                a(f"v_and_b32 v{acc+i}, 0xff, v{acc+i}")
            for i, p in enumerate(pieces): a(f"v_cmp_ne_u32 s[{64+2*i}:{65+2*i}], 0, v{acc+i}")
            if len(pieces) == 1: a("s_cmp_lg_u64 s[64:65], 0")
            else:
                a("s_or_b64 s[4:5], s[64:65], s[66:67]")
                for i in range(2, len(pieces)): a(f"s_or_b64 s[4:5], s[4:5], s[{64+2*i}:{65+2*i}]")
            a(f"s_cbranch_scc0 {Lx}")
            if o["xs"]: a(f"s_sleep {o['xs']}")
            for i, p in enumerate(pieces):
                a(f"s_mov_b64 exec, s[{64+2*i}:{65+2*i}]")
                for ld in p[0]: a(ld)
            a("s_mov_b64 exec, -1")
            a("s_sub_u32 s7, s7, 1")
            a("s_cmp_lg_u32 s7, 0")
            a(f"s_cbranch_scc1 {Lre}")
            a(f"{Lx}:")
        def pkadd(d, x, y):
            a(f"v_pk_add_f32 {r2(d)}, {r2(x)}, {r2(y)}"); a(f"v_pk_add_f32 {r2(d+2)}, {r2(x+2)}, {r2(y+2)}")

        self.stamp("start")
        if o["hold"]: a("s_memrealtime s[16:17]")
        a(f"""
        s_load_dwordx16 s[36:51], s[0:1], 0
        s_cmpk_ge_u32 s2, 0x100
        s_cbranch_scc1 L_end
        """)
        if o["jitter"]:
            a(f"""s_mul_i32 s4, s2, 0x9e3779b1
            s_lshr_b32 s4, s4, {32-o["jitter"]}
            L_jit:
            s_cmp_eq_u32 s4, 0
            s_cbranch_scc1 L_jitd
            s_sleep 40
            s_sub_u32 s4, s4, 1
            s_branch L_jit
            L_jitd:""")
        a("s_mov_b32 s101, s2")
        a(f"""
        s_lshr_b32 s{sKQ}, s2, 6
        s_mul_i32 s4, s{sKQ}, {144*8192}
        s_and_b32 s5, s2, 7
        s_bfe_u32 s6, s2, 0x30003
        s_lshl3_add_u32 s{sC6}, s5, s6
        s_lshl_b32 s5, s{sC6}, 7
        s_add_u32 s4, s4, s5
        v_lshrrev_b32 v{vT}, 3, v0
        v_and_b32 v{vT+1}, 7, v0
        v_lshlrev_b32 v{vT+1}, 4, v{vT+1}
        v_lshl_add_u32 v{vQa}, v{vT}, 15, v{vT+1}
        s_mov_b32 s{SQ+2}, {143*8192+128}
        s_mov_b32 s{SQ+3}, 0x20000
        s_movk_i32 s33, 0x2000
        s_movk_i32 s34, 0x4000
        s_movk_i32 s35, 0x6000
        s_waitcnt lgkmcnt(0)
        s_add_u32 s{SQ}, s42, s4
        s_addc_u32 s{SQ+1}, s43, 0
        """)
        if o["st3"]: self.stamp("karg")
        more(4)
        if o["st3"]: self.stamp("Q3iss")
        a(f"""
        s_load_dwordx8 s[52:59], s[0:1], 64
        s_load_dwordx2 s[60:61], s[0:1], 96
        s_lshl_b32 s2, s{sKQ}, 6
        s_add_u32 s2, s2, s{sC6}
        v_lshl_add_u32 v{vQb}, v{vT}, 13, v{vT+1}
        v_add_u32 v{vQb}, {128*8192}, v{vQb}
        v_lshrrev_b32 v{vJ}, 6, v0
        v_lshlrev_b32 v{vV}, 4, v0
        v_readfirstlane_b32 s{sJ}, v{vJ}
        """)
        more(1)
        a(f"""
        s_mov_b32 s{SX}, s36
        s_mov_b32 s{SX+1}, s37
        s_movk_i32 s{SX+2}, 1152
        s_mov_b32 s{SX+3}, 0x20000
        """)
        self.issue("X", f"buffer_load_dwordx4 {r4(vX)}, v{vV}, s[{SX}:{SX+3}], 0 offen")
        MIXG = f"s_xor_b32 s5, s{sC6}, s7\ns_lshl_b32 s5, s5, 7" if o["mix"] else ""
        a(f"""
        s_bitcmp1_b32 s{sJ}, 0
        s_cselect_b32 s{SGU}, s50, s48
        s_cselect_b32 s{SGU+1}, s51, s49
        s_cselect_b32 s7, 2, 1
        s_lshr_b32 s6, s{sJ}, 1
        s_lshl1_add_u32 s6, s{sKQ}, s6
        s_mul_i32 s4, s6, {72*9216}
        {MIXG}
        s_add_u32 s4, s4, s5
        s_add_u32 s{SGU}, s{SGU}, s4
        s_addc_u32 s{SGU+1}, s{SGU+1}, 0
        s_mov_b32 s{SGU+2}, {71*9216+128}
        s_mov_b32 s{SGU+3}, 0x20000
        v_and_b32 v{vT+2}, 7, v{vT}
        v_mul_u32_u24 v{vGU}, {8*9216}, v{vT+2}
        v_add_u32 v{vGU}, v{vGU}, v{vT+1}
        """)
        more(2)
        a(f"""
        v_mul_u32_u24 v{vPD}, 9216, v{vT+2}
        v_add_u32 v{vPD}, v{vPD}, v{vT+1}
        v_add_u32 v{vPD}, {64*9216}, v{vPD}
        s_waitcnt lgkmcnt(0)
        s_mov_b32 s{SR}, s54
        s_mov_b32 s{SR+1}, s55
        s_movk_i32 s{SR+2}, 1152
        s_mov_b32 s{SR+3}, 0x20000
        """)
        self.issue("GW", f"buffer_load_dwordx4 {r4(vX+4)}, v{vV}, s[{SR}:{SR+3}], 0 offen")
        if o["prefetch"]:
            a(f"""
            s_getpc_b64 s[4:5]
            s_lshr_b32 s7, s2, 3
            s_mul_i32 s7, s7, {128*o['prefetch']}
            v_and_b32 v{vT+3}, 63, v0
            v_lshl_add_u32 v{vT+3}, v{vT+3}, 7, s7
            s_mov_b64 exec, {(1 << o['prefetch']) - 1}
            """)
            self.issue("PF", f"global_load_dword v{vMc}, v{vT+3}, s[4:5]")
            a("s_mov_b64 exec, -1")
        more(o["early"])
        TLB = ""
        if o["tlb"]:
            TLB = f"""s_load_dword s33, s[{SK}:{SK+1}], 0
            s_load_dword s33, s[{SV}:{SV+1}], 0
            s_load_dword s33, s[{SO}:{SO+1}], 0
            s_load_dword s33, s[{SR}:{SR+1}], 0
            s_mul_i32 s4, s{sC6}, {64*1152}
            s_add_u32 s4, s52, s4
            s_addc_u32 s5, s53, 0
            s_load_dword s33, s[4:5], 0
            s_add_u32 s4, s52, {4300*1152}
            s_addc_u32 s5, s53, 0
            s_load_dword s33, s[4:5], 0"""
        a(f"""
        s_add_u32 s60, s60, {o['wsoff']:#x}
        s_addc_u32 s61, s61, 0
        s_load_dword s{sTAG}, s[60:61], 0
        s_bitcmp1_b32 s2, 0
        s_cselect_b32 s{SR}, s50, s48
        s_cselect_b32 s{SR+1}, s51, s49
        s_bfe_u32 s7, s2, 0x20001
        s_lshl2_add_u32 s7, s{sKQ}, s7
        s_mul_i32 s4, s7, {36*9216}
        s_lshr_b32 s5, s{sC6}, 3
        s_lshl_b32 s5, s5, 7
        s_add_u32 s4, s4, s5
        s_add_u32 s4, s4, 8192
        s_add_u32 s{SR}, s{SR}, s4
        s_addc_u32 s{SR+1}, s{SR+1}, 0
        s_mov_b32 s{SR+2}, {35*9216+128}
        v_mul_u32_u24 v{vPD2}, 9216, v{vT}
        v_add_u32 v{vPD2}, v{vPD2}, v{vT+1}
        v_add_u32 v{vPO}, {32*9216}, v{vPD2}
        s_lshr_b32 s{sG}, s{sC6}, 2
        s_and_b32 s{sS}, s2, 3
        s_lshl2_add_u32 s{sS}, s{sKQ}, s{sS}
        s_lshl_b32 s4, s{sG}, 24
        s_lshl_b32 s5, s{sS}, 16
        s_add_u32 s4, s4, s5
        s_add_u32 s4, s4, {61440*256}
        s_add_u32 s{SK}, s38, s4
        s_addc_u32 s{SK+1}, s39, 0
        s_mov_b32 s{SK+2}, 0x10000
        s_mov_b32 s{SK+3}, 0x20000
        s_add_u32 s{SV}, s40, s4
        s_addc_u32 s{SV+1}, s41, 0
        s_mov_b32 s{SV+2}, 0x10000
        s_mov_b32 s{SV+3}, 0x20000
        s_lshr_b32 s4, s2, 7
        s_mul_i32 s4, s4, 576
        s_add_u32 s{SD}, s52, s4
        s_addc_u32 s{SD+1}, s53, 0
        s_mov_b32 s{SD+2}, {4607*1152+576}
        s_mov_b32 s{SD+3}, 0x20000
        s_and_b32 s5, s{sS}, 7
        s_lshl3_add_u32 s5, s{sG}, s5
        s_mul_i32 s5, s5, {32*1152}
        s_add_u32 s4, s4, s5
        s_add_u32 s{SO}, s44, s4
        s_addc_u32 s{SO+1}, s45, 0
        s_mov_b32 s{SO+2}, {31*1152+576}
        s_mov_b32 s{SO+3}, 0x20000
        s_mov_b32 s{SW}, s60
        s_mov_b32 s{SW+1}, s61
        s_mov_b32 s{SW+2}, 0x100000
        s_mov_b32 s{SW+3}, 0x20000
        s_movk_i32 s{s4608}, 4608
        {TLB}
        v_and_b32 v{vL}, 63, v0
        v_and_b32 v{vU}, 3, v0
        v_lshlrev_b32 v{vU}, 4, v{vU}
        v_bfe_u32 v{vU+1}, v0, 2, 2
        v_lshl_add_u32 v{vU}, v{vU+1}, 8, v{vU}
        v_bfe_u32 v{vU+1}, v0, 4, 2
        v_lshl_add_u32 v{vU}, v{vU+1}, 6, v{vU}
        v_lshl_add_u32 v{vK}, v{vJ}, 10, v{vU}
        v_mov_b32 v{vTM}, 0xffffff00
        v_and_b32 v{vU}, 1, v0
        v_lshlrev_b32 v{vU}, 4, v{vU}
        v_mov_b32 v{vU+1}, 0xffff
        v_lshlrev_b32 v{vU}, v{vU}, v{vU+1}
        v_bfe_u32 v{vU+1}, v0, 1, 2
        v_cmp_eq_u32 s[4:5], 0, v{vU+1}
        v_cmp_eq_u32 s[36:37], 1, v{vU+1}
        v_cmp_eq_u32 vcc, 2, v{vU+1}
        v_cndmask_b32 v{vM[0]}, 0, v{vU}, s[4:5]
        v_cndmask_b32 v{vM[1]}, 0, v{vU}, s[36:37]
        v_cmp_eq_u32 s[36:37], 3, v{vU+1}
        v_cndmask_b32 v{vM[2]}, 0, v{vU}, vcc
        v_or_b32 v{vU+3}, v{vM[0]}, v{vM[2]}
        v_cndmask_b32 v{vM[3]}, 0, v{vU}, s[36:37]
        v_or_b32 v{vU+1}, v{vM[1]}, v{vM[3]}
        v_mov_b32 v{vU+2}, 0x0c0c0c0c
        s_mov_b32 s32, 0x01000100
        s_mov_b32 s63, 0x03020302
        v_bfi_b32 v{vSel[0]}, v{vU+3}, s32, v{vU+2}
        v_bfi_b32 v{vSel[1]}, v{vU+1}, s32, v{vU+2}
        v_bfi_b32 v{vSel[2]}, v{vU+3}, s63, v{vU+2}
        v_bfi_b32 v{vSel[3]}, v{vU+1}, s63, v{vU+2}
        """)
        if o["pt"]:
            a(f"""
            s_lshl_b32 s4, s2, 10
            s_add_u32 s4, s4, {RA}
            s_lshl4_add_u32 s5, s{sG}, s{sS}
            s_mul_i32 s5, s5, 1152
            s_add_u32 s5, s5, {OB}
            s_cmp_eq_u32 s{sJ}, 1
            s_cselect_b32 s4, s5, s4
            s_and_b32 s5, s2, 127
            s_mul_i32 s5, s5, {CG*16}
            s_lshr_b32 s100, s2, 7
            s_lshl1_add_u32 s100, s100, s{sJ}
            s_sub_u32 s100, s100, 2
            s_mul_i32 s100, s100, {9*128*CG*16}
            s_add_u32 s5, s5, s100
            s_add_u32 s5, s5, {FB}
            s_cmp_ge_u32 s{sJ}, 2
            s_cselect_b32 s4, s5, s4
            s_cselect_b32 s5, {(128*CG*16).bit_length()-1}, 7
            v_lshlrev_b32 v{vU}, s5, v{vL}
            v_add_u32 v{vU}, s4, v{vU}
            s_mov_b64 exec, 0x1ff
            """)
            self.issue("PT", f"buffer_load_dword v{vMx}, v{vU}, s[{SW}:{SW+3}], 0 offen {o['ptf']}")
            a("s_mov_b64 exec, -1")
        a(f"""
        v_lshlrev_b32 v{vU}, 2, v{vL}
        v_mov_b32 v{vU+4}, 0
        v_mov_b32 v{vU+5}, 0
        v_mov_b32 v{vU+6}, 0
        v_mov_b32 v{vU+7}, 0
        ds_write_b32 v{vU}, v{vU+4} offset:{HL}
        ds_write_b32 v{vU}, v{vU+4} offset:{XL+2304}
        v_lshlrev_b32 v{vU+1}, 3, v{vL}
        ds_write_b64 v{vU+1}, {r2(vU+4)} offset:{OLX+1024}
        v_and_b32 v{vU+1}, 1, v{vJ}
        v_lshlrev_b32 v{vU+1}, 11, v{vU+1}
        v_lshl_add_u32 v{vU+1}, v{vL}, 4, v{vU+1}
        ds_write_b128 v{vU+1}, {r4(vU+4)} offset:{P1+2048+1024}
        """)
        a(f"""
        s_mul_i32 s4, s{sKQ}, 576
        v_lshl_add_u32 v{vU+8}, v{vT}, 4, s4
        v_lshl_add_u32 v{vU+9}, v{vT}, 2, s4
        s_mul_i32 s4, s6, 288
        v_lshl_add_u32 v{vU+10}, v{vT+2}, 5, s4
        v_lshl_add_u32 v{vU+11}, v{vT+2}, 2, s4
        s_mul_i32 s4, s7, 144
        v_lshl_add_u32 v{vU+12}, v{vT}, 2, s4
        v_bfe_u32 v{vU+4}, v0, 3, 1
        v_bfe_u32 v{vU+5}, v0, 5, 1
        v_cmp_eq_u32 vcc, v{vU+4}, v{vU+5}
        v_bfe_u32 v{vU+4}, v0, 4, 1
        v_lshlrev_b32 v{vU+4}, 7, v{vU+4}
        v_lshl_add_u32 v{vU+4}, v{vU+5}, 8, v{vU+4}
        v_lshrrev_b32 v{vU+5}, 2, v{vT+1}
        v_add_u32 v{vU+4}, v{vU+4}, v{vU+5}
        v_lshl_add_u32 v{vU+13}, v{vJ}, 9, v{vU+4}
        s_and_b32 s4, s{sJ}, 1
        s_lshl_b32 s4, s4, 11
        s_lshr_b32 s5, s{sJ}, 1
        s_lshl_b32 s5, s5, 9
        s_add_u32 s4, s4, s5
        s_add_u32 s4, s4, 2048
        v_add_u32 v{vU+14}, s4, v{vU+4}
        v_mov_b32 v{vU+5}, {DUM-P1}
        v_cndmask_b32 v{vU+13}, v{vU+5}, v{vU+13}, vcc
        v_cndmask_b32 v{vU+14}, v{vU+5}, v{vU+14}, vcc
        v_mov_b32 v{vU+5}, {DUM-P1-6144}
        v_lshl_add_u32 v{vU+15}, v{vJ}, 9, v{vU+4}
        v_cndmask_b32 v{vU+15}, v{vU+5}, v{vU+15}, vcc
        v_lshlrev_b32 v{vU+16}, 5, v0
        v_min_u32 v{vU+16}, 2304, v{vU+16}
        """)
        if o["skewm"]:
            a(f"""
            s_waitcnt lgkmcnt(0)
            s_lshl_b32 s4, s2, 2
            s_add_u32 s4, s4, 0xF0000
            v_mov_b32 v{vBq}, s16
            v_mov_b32 v{vBq+1}, s4
            s_mov_b64 exec, 1
            """)
            self.issue("SK", f"buffer_store_dword v{vBq}, v{vBq+1}, s[{SW}:{SW+3}], 0 offen sc1")
            a("s_mov_b64 exec, -1")
        (None if o["st4"] else self.stamp("prol"))
        if o["st3"]:
            self.wait("Q0"); self.stamp("Q0land")
        self.wait("X")
        if o["st3"]: self.stamp("Xland")
        for i in range(4):
            a(f"v_perm_b32 v{vT+2*i}, v{vX+i}, v{vX+i}, s32")
            a(f"v_perm_b32 v{vT+2*i+1}, v{vX+i}, v{vX+i}, s63")
        a(f"""
        ds_write_b128 v{vU+16}, {r4(vT)} offset:{XL}
        ds_write_b128 v{vU+16}, {r4(vT+4)} offset:{XL+16}
        """)
        fill("Q4")
        a(f"""
        s_waitcnt lgkmcnt(0)
        s_barrier
        ds_read_b128 {r4(vS)}, v{vU+8} offset:{XL}
        ds_read_b32 v{vS+4}, v{vU+9} offset:{XL+512}
        ds_read_b128 {r4(vS+8)}, v{vU+10} offset:{XL}
        ds_read_b128 {r4(vS+12)}, v{vU+10} offset:{XL+16}
        ds_read_b32 v{vS+5}, v{vU+11} offset:{XL+256}
        ds_read_b32 v{vS+6}, v{vU+12} offset:{XL}
        ds_read_b32 v{vS+7}, v{vU+12} offset:{XL+128}
        s_add_u32 s{sTAG}, s{sTAG}, 1
        s_and_b32 s{sTAG}, s{sTAG}, 0xff
        s_getreg_b32 s{sXE}, hwreg(HW_REG_XCC_ID, 0, 4)
        s_lshl_b32 s{sXE}, s{sXE}, 8
        s_add_u32 s{sXE}, s{sXE}, s{sTAG}
        s_waitcnt lgkmcnt(5)
        """)
        nb = [0]
        def l8(lbl, xreg, acc, first, dowait=True):
            B = vT + 4 * (nb[0] % 4); nb[0] += 1
            for j in range(4): a(f"v_and_b32 v{B+j}, v{xreg}, v{vM[j]}")
            if dowait: self.wait(lbl)
            a(f"v_mfma_f32_16x16x32_bf16 {r4(acc)}, {r4(dst[lbl])}, {r4(B)}, {'0' if first else r4(acc)}")
        for t in range(5): l8(f"Q{t}", vS + t, vAq, t == 0, False)
        self.wait("GW")
        for i in range(4):
            a(f"""
            v_lshlrev_b32 v{vU}, 16, v{vX+i}
            v_and_b32 v{vU+1}, 0xffff0000, v{vX+i}
            v_lshlrev_b32 v{vU+2}, 16, v{vX+4+i}
            v_and_b32 v{vU+3}, 0xffff0000, v{vX+4+i}
            v_pk_mul_f32 {r2(vU)}, {r2(vU)}, {r2(vU+2)}
            v_cvt_pk_bf16_f32 v{vU}, v{vU}, v{vU+1}
            v_and_b32 v{vU+1}, 0xffff0000, v{vU}
            v_lshlrev_b32 v{vU}, 16, v{vU}
            """)
            if i == 0: a(f"v_pk_mul_f32 {r2(vU+4)}, {r2(vU)}, 1.0 op_sel_hi:[1,0]")
            else: a(f"v_pk_add_f32 {r2(vU+4)}, {r2(vU+4)}, {r2(vU)}")
        for i in range(4): a(f"ds_write_b32 v{vU+13}, v{vAq+i} offset:{P1+32*i}")
        a(f"v_add_f32 v{vU+4}, v{vU+4}, v{vU+5}")
        for r in (1, 2, 4, 8): a(f"v_add_f32_dpp v{vU+4}, v{vU+4}, v{vU+4} row_ror:{r} {DPP}")
        a(f"""
        v_lshrrev_b32 v{vU+1}, 4, v0
        v_lshlrev_b32 v{vU+1}, 2, v{vU+1}
        ds_write_b32 v{vU+1}, v{vU+4} offset:{GS}
        s_lshl_b32 s4, s2, 10
        s_add_u32 s4, s4, {RA}
        v_lshl_add_u32 v{vFA}, v{vL}, 4, s4
        s_waitcnt lgkmcnt(0)
        s_barrier
        """)
        def pubA(lo, hi, wave, name, tg=None):
            L = self.lab(name)
            mask = ((1 << hi) - 1) ^ ((1 << lo) - 1)
            a(f"""
            s_cmp_lg_u32 s{sJ}, {wave}
            s_cbranch_scc1 {L}
            s_mov_b32 exec_lo, {mask & 0xffffffff:#x}
            s_mov_b32 exec_hi, {mask >> 32:#x}
            v_lshrrev_b32 v{vU}, 4, v{vL}
            v_lshlrev_b32 v{vU}, 11, v{vU}
            v_and_b32 v{vU+1}, 15, v{vL}
            v_lshl_add_u32 v{vU}, v{vU+1}, 4, v{vU}
            """)
            tg = tg or [vAO, vAO + 4, vBq, vPoll, vU + 4, vU + 8, vU + 20, vU + 24]
            for p in range(8): a(f"ds_read_b128 {r4(tg[p])}, v{vU} offset:{P1+256*p}")
            a("s_waitcnt lgkmcnt(0)")
            for p in range(1, 8): pkadd(tg[0], tg[0], tg[p])
            tagins(tg[0])
            if name == "qpub":
                a(f"v_and_b32 v{tg[0]}, 0xfffff000, v{tg[0]}"); a(f"v_or_b32 v{tg[0]}, s{sXE}, v{tg[0]}")
            a(f"""
            s_branch {L}s
            {L}:
            s_mov_b64 exec, 0
            {L}s:
            """)
            dual(name, f"buffer_store_dwordx4 {r4(tg[0])}, v{vFA}, s[{SW}:{SW+3}], 0 offen", name == "gpub")
        pubA(0, 16, 3, "qpub")
        (None if o["st4"] else self.stamp("qpub"))
        more(o["pre_qp"])
        for k in range(9):
            l8(f"G{k}", vS + 8 + k if k < 8 else vS + 5, vAg, k == 0)
            fill(f"G{k}")
            if k == 2:
                a(f"""
                v_mov_b32 v{vU}, 0
                ds_read_b128 {r4(vU+4)}, v{vU} offset:{GS}
                ds_read_b32 v{vU+8}, v{vU} offset:{GS+16}
                s_waitcnt lgkmcnt(0)
                v_pk_add_f32 {r2(vU+4)}, {r2(vU+4)}, {r2(vU+6)}
                v_add_f32 v{vU}, v{vU+4}, v{vU+5}
                v_add_f32 v{vU}, v{vU}, v{vU+8}
                v_cvt_pk_bf16_f32 v{vU}, v{vU}, v{vU}
                v_lshlrev_b32 v{vU}, 16, v{vU}
                v_mul_f32 v{vU}, {f2u(-1.4426950408889634):#x}, v{vU}
                v_exp_f32 v{vU}, v{vU}
                v_add_f32 v{vU}, 1.0, v{vU}
                v_rcp_f32 v{vU}, v{vU}
                v_cvt_pk_bf16_f32 v{vU}, v{vU}, v{vU}
                v_lshlrev_b32 v{vG}, 16, v{vU}
                v_sub_f32 v{vU}, 1.0, v{vG}
                v_cvt_pk_bf16_f32 v{vU}, v{vU}, v{vU}
                v_lshlrev_b32 v{vOMG}, 16, v{vU}
                """)
            if k == 5:
                a(f"""
                s_lshl_b32 s4, s{sJ}, 16
                s_lshl_b32 s5, s{sG}, 12
                s_add_u32 s4, s4, s5
                s_add_u32 s4, s4, {RA}
                v_lshrrev_b32 v{vU}, 4, v{vL}
                v_lshlrev_b32 v{vU}, 10, v{vU}
                v_and_b32 v{vU+1}, 15, v{vL}
                v_lshl_add_u32 v{vU}, v{vU+1}, 4, v{vU}
                v_add_u32 v{vQa}, s4, v{vU}
                s_xor_b32 s5, s{sG}, 1
                s_lshl_b32 s5, s5, 12
                s_add_u32 s5, s5, {RA}
                v_bfe_u32 v{vU}, v0, 2, 2
                v_lshlrev_b32 v{vU}, 16, v{vU}
                v_and_b32 v{vU+1}, 3, v0
                v_lshl_add_u32 v{vU}, v{vU+1}, 10, v{vU}
                v_add_u32 v{vQb}, s5, v{vU}
                """)
        for k in range(2):
            l8(f"R{k}", vS + 6 + k, vAr, k == 0)
            if k == 1: self.gdone = True
            fill(f"R{k}")
        for i in range(4): a(f"ds_write_b32 v{vU+14}, v{vAg+i} offset:{P1+32*i}")
        a(f"""
        v_mul_u32_u24 v{vRS}, 1821, v0
        v_lshrrev_b32 v{vRS}, 16, v{vRS}
        v_mul_u32_u24 v{vCH}, 36, v{vRS}
        v_sub_u32 v{vCH}, v0, v{vCH}
        v_mul_u32_u24 v{vPO}, {6*1152}, v{vRS}
        v_lshl_add_u32 v{vPO}, v{vCH}, 4, v{vPO}
        v_add_u32 v{vGU}, 4608, v{vPO}
        """)
        for i in range(4): a(f"ds_write_b32 v{vU+15}, v{vAr+i} offset:{P1+6144+32*i}")
        a(f"""
        s_bfe_u32 s4, s2, 0x10006
        s_lshl1_add_u32 s4, s{sC6}, s4
        s_mul_i32 s4, s4, {32*1152}
        v_add_u32 v{vPD}, s4, v{vPO}
        s_lshr_b32 s5, s{sC6}, 3
        s_lshl_b32 s5, s5, 4
        s_and_b32 s6, s{sC6}, 7
        s_add_u32 s5, s5, s6
        s_bfe_u32 s6, s2, 0x10006
        s_lshl3_add_u32 s5, s6, s5
        s_mul_i32 s5, s5, {4*1152}
        s_add_u32 s5, s5, {(4096-2)*1152}
        v_lshl_add_u32 v{vPD2}, v{vCH}, 4, s5
        v_cmp_gt_u32 vcc, 5, v{vRS}
        v_cmp_gt_u32 s[4:5], 6, v{vRS}
        v_bfrev_b32 v{vU}, -2
        v_cndmask_b32 v{vPD2}, v{vPD2}, v{vPD}, vcc
        v_cndmask_b32 v{vPD}, v{vU}, v{vPD}, s[4:5]
        v_cndmask_b32 v{vPD2}, v{vU}, v{vPD2}, s[4:5]
        v_mul_u32_u24 v{vU}, 1152, v{vRS}
        v_lshl_add_u32 v{vCH}, v{vCH}, 5, v{vU}
        v_mul_u32_u24 v{vRS}, 12, v{vRS}
        v_add_u32 v{vRS}, {HL}, v{vRS}
        """)
        (None if o["st4"] else self.stamp("gpub"))
        more(o["pre_g"])
        if o["pts"]:
            a(f"""
            s_lshr_b32 s4, s2, 7
            s_mul_i32 s4, s4, {72 // CG}
            s_mul_i32 s5, s{sJ}, {(72 // CG + 3) // 4}
            s_add_u32 s4, s4, s5
            s_mul_i32 s4, s4, {128 * CG * 16}
            s_and_b32 s5, s2, 127
            s_mul_i32 s5, s5, {CG * 16}
            s_add_u32 s4, s4, s5
            s_add_u32 s4, s4, {FB}
            s_add_u32 s4, s60, s4
            s_addc_u32 s5, s61, 0
            """)
            for i in range((72 // CG + 3) // 4): a(f"s_load_dword s33, s[4:5], {128*CG*16*i} {'glc' if o['pts'] == 2 else ''}")
        if o["cpf"]:
            a(f"""
            s_getpc_b64 s[4:5]
            s_lshr_b32 s6, s101, 3
            s_lshl2_add_u32 s6, s6, s{sJ}
            s_lshl_b32 s6, s6, 6
            s_add_u32 s4, s4, s6
            s_addc_u32 s5, s5, 0
            s_load_dword s33, s[4:5], 0
            """)
        qload = f"buffer_load_dwordx4 {r4(vPoll)}, v{vQa}, s[{SW}:{SW+3}], 0 offen sc1"
        for k in range(o["qp"] + 1):
            self.wait(f"K{k}"); fill(f"K{k}")
        a(f"s_cmp_eq_u32 s{sJ}, 0"); a("s_cselect_b64 exec, 0xffff, 0")
        self.issue("QP2", f"buffer_load_dwordx4 {r4(vAO)}, v{vQb}, s[{SW}:{SW+3}], 0 offen sc1")
        a("s_mov_b64 exec, -1")
        self.issue("QP", qload.replace("sc1", o["first"]))
        lastK = min(15, self.ip - 1 - big.index("K0"))
        for k in range(o["qp"] + 1, lastK + 1):
            self.wait(f"K{k}"); fill(f"K{k}")
        more(o["pre_q"])
        a(f"""
        v_bfe_u32 v{vU+1}, v0, 3, 1
        v_lshlrev_b32 v{vU+1}, 9, v{vU+1}
        v_bfe_u32 v{vU+2}, v0, 4, 2
        v_lshl_add_u32 v{vU+1}, v{vU+2}, 7, v{vU+1}
        v_and_b32 v{vU+2}, 3, v0
        v_lshl_add_u32 v{vU+1}, v{vU+2}, 5, v{vU+1}
        """)
        self.wait("QP")
        retry_loop("q", [qload], [vPoll], vU)
        a(f"""
        ds_write_b128 v{vV}, {r4(vPoll)} offset:{QL}
        v_cmp_gt_u32 vcc, 16, v0
        v_xor_b32 v{vU}, s{sXE}, v{vPoll}
        v_xor_b32 v{vU+2}, s{sTAG}, v{vAO+1}
        v_bitop3_b32 v{vU+2}, v{vAO+2}, s{sTAG}, v{vU+2} bitop3:0xbe
        v_bitop3_b32 v{vU+2}, v{vAO+3}, s{sTAG}, v{vU+2} bitop3:0xbe
        v_and_b32 v{vU+2}, 0xff, v{vU+2}
        v_bitop3_b32 v{vU+2}, v{vAO}, s{sXE}, v{vU+2} bitop3:0xbe
        v_cndmask_b32 v{vU+2}, 0, v{vU+2}, vcc
        v_or_b32 v{vU}, v{vU}, v{vU+2}
        v_and_b32 v{vU}, 0xfff, v{vU}
        v_cmp_ne_u32 vcc, 0, v{vU}
        v_lshlrev_b32 v{vU+2}, 2, v{vJ}
        s_cmp_lg_u64 vcc, 0
        s_cselect_b32 s4, 1, 0
        v_mov_b32 v{vU}, s4
        ds_write_b32 v{vU+2}, v{vU} offset:{XF}
        v_mov_b32 v{vU+2}, 0
        s_waitcnt lgkmcnt(0)
        s_barrier
        ds_read_b128 {r4(vAO)}, v{vU+2} offset:{XF}
        """)
        qd = [vT, vT + 8, vU + 8, vU + 16]
        for k in range(4):
            a(f"ds_read_b128 {r4(qd[k])}, v{vU+1} offset:{QL+1024*k}")
            a(f"ds_read_b128 {r4(qd[k]+4)}, v{vU+1} offset:{QL+1024*k+16}")
        a("s_waitcnt lgkmcnt(4)")
        a(f"v_or3_b32 v{vAO}, v{vAO}, v{vAO+1}, v{vAO+2}")
        a(f"v_or_b32 v{vAO}, v{vAO}, v{vAO+3}")
        for i in range(0, 8, 2): a(f"v_pk_add_f32 {r2(qd[0]+i)}, {r2(qd[0]+i)}, {r2(qd[1]+i)}")
        a(f"v_cmp_eq_u32 s[{sPL}:{sPL+1}], 0, v{vAO}")
        a("s_waitcnt lgkmcnt(0)")
        for i in range(0, 8, 2): a(f"v_pk_add_f32 {r2(qd[2]+i)}, {r2(qd[2]+i)}, {r2(qd[3]+i)}")
        for i in range(0, 8, 2): a(f"v_pk_add_f32 {r2(qd[0]+i)}, {r2(qd[0]+i)}, {r2(qd[2]+i)}")
        for i in range(4): a(f"v_cvt_pk_bf16_f32 v{vBq+i}, v{qd[0]+2*i}, v{qd[0]+2*i+1}")
        pubA(16, 64, 2, "gpub", [vAO, vAO + 4, vT, vT + 4, vT + 8, vT + 12, vU + 4, vU + 8])
        if o["stamps"] and o["cnt"] == 3:
            r = self.sreg(self.nst); self.names.append("xretry"); self.nst += 1
            a(f"s_and_b32 s4, s{sPL}, 100"); a(f"s_add_u32 s{r}, s16, s4"); a(f"s_addc_u32 s{r+1}, s17, 0")
        (None if o["st4"] else self.stamp("qcons"))
        if o["round_scores"]: a(f"s_mov_b32 s{sC}, {f2u(128 ** -0.5):#x}")
        def qk_fin(t):
            D = vT + 4 * (t % 4)
            a(f"v_mov_b32_dpp v{vS+t}, v{D} quad_perm:[0,0,0,0] {DPP}")
            for u in range(1, 4): a(f"v_add_f32_dpp v{vS+t}, v{D+u}, v{vS+t} quad_perm:[{u},{u},{u},{u}] {DPP}")
            if t & 1:
                t0 = t - 1
                if o["round_scores"]:
                    a(f"""
                    v_cvt_pk_bf16_f32 v{vU}, v{vS+t0}, v{vS+t0+1}
                    v_lshlrev_b32 v{vS+t0}, 16, v{vU}
                    v_and_b32 v{vS+t0+1}, 0xffff0000, v{vU}
                    v_mul_f32 v{vS+t0}, s{sC}, v{vS+t0}
                    v_mul_f32 v{vS+t0+1}, s{sC}, v{vS+t0+1}
                    v_cvt_pk_bf16_f32 v{vU}, v{vS+t0}, v{vS+t0+1}
                    v_lshlrev_b32 v{vS+t0}, 16, v{vU}
                    v_and_b32 v{vS+t0+1}, 0xffff0000, v{vU}
                    """)
                if t == 1: a(f"v_max_f32 v{vU+1}, v{vS}, v{vS+1}")
                else: a(f"v_max3_f32 v{vU+1}, v{vU+1}, v{vS+t0}, v{vS+t0+1}")
        for t in range(16):
            if t > lastK: self.wait(f"K{t}")
            D = vT + 4 * (t % 4)
            a(f"v_mfma_f32_16x16x32_bf16 {r4(D)}, {r4(dst[f'K{t}'])}, {r4(vBq)}, 0")
            if t == 15: self.kdone = True
            if t > lastK: fill(f"K{t}")
            if t >= 2: qk_fin(t - 2)
        more(o["pre_s"])
        a(f"""
        v_bfe_u32 v{vU+2}, v0, 3, 1
        v_lshlrev_b32 v{vU+2}, 6, v{vU+2}
        v_lshrrev_b32 v{vU+3}, 4, v0
        v_lshl_add_u32 v{vK}, v{vU+3}, 2, v{vU+2}
        """)
        qk_fin(14); qk_fin(15)
        cexp = 1.4426950408889634 if o["round_scores"] else 128 ** -0.5 * 1.4426950408889634
        a(f"""
        ds_write_b32 v{vK}, v{vU+1} offset:{MX}
        s_mov_b32 s{sC}, {f2u(cexp):#x}
        s_waitcnt lgkmcnt(0)
        s_barrier
        """)
        for i in range(4): a(f"ds_read_b128 {r4(vT+4*i)}, v{vU+2} offset:{MX+16*i}")
        a("s_waitcnt lgkmcnt(0)")
        a(f"v_max3_f32 v{vT}, v{vT}, v{vT+1}, v{vT+2}")
        for t in range(3, 15, 2): a(f"v_max3_f32 v{vT}, v{vT}, v{vT+t}, v{vT+t+1}")
        a(f"v_max_f32 v{vMx}, v{vT}, v{vT+15}")
        a(f"v_and_b32 v{vMx}, v{vMx}, v{vTM}")
        a(f"v_mul_f32 v{vMc}, s{sC}, v{vMx}")
        for t in range(16): a(f"v_fma_f32 v{vS+t}, v{vS+t}, s{sC}, -v{vMc}")
        for t in range(16): a(f"v_exp_f32 v{vS+t}, v{vS+t}")
        a(f"v_pk_add_f32 {r2(vT)}, {r2(vS)}, {r2(vS+2)}")
        for t in range(4, 16, 2): a(f"v_pk_add_f32 {r2(vT)}, {r2(vT)}, {r2(vS+t)}")
        a(f"v_add_f32 v{vT}, v{vT}, v{vT+1}")
        a(f"ds_write_b32 v{vK}, v{vT} offset:{LS}")
        self.stamp("smax")
        Lha = self.lab("haddr")
        hl = [f"buffer_load_dwordx4 {r4(vAO)}, v{vQa}, s[{SW}:{SW+3}], 0 offen sc1",
              f"buffer_load_dwordx4 {r4(vAO+4)}, v{vQb}, s[{SW}:{SW+3}], 0 offen sc1"]
        a(f"""
        s_cmp_lg_u32 s{sJ}, 3
        s_cbranch_scc1 {Lha}
        s_bfe_u32 s4, s2, 0x10006
        s_lshl_b32 s4, s4, 7
        s_add_u32 s4, s4, {RA+256}
        v_and_b32 v{vU}, 3, v0
        v_lshlrev_b32 v{vU}, 16, v{vU}
        v_bfe_u32 v{vU+1}, v0, 5, 1
        v_lshl_add_u32 v{vU}, v{vU+1}, 8, v{vU}
        v_add_u32 v{vU+1}, 1, v{vU+1}
        {"" if o["mix"] else f"v_mov_b32 v{vU+1}, 0"}
        v_xor_b32 v{vU+1}, s{sC6}, v{vU+1}
        v_lshl_add_u32 v{vU}, v{vU+1}, 10, v{vU}
        v_bfe_u32 v{vU+1}, v0, 2, 3
        v_lshl_add_u32 v{vU}, v{vU+1}, 4, v{vU}
        v_add_u32 v{vQa}, s4, v{vU}
        s_and_b32 s4, s{sC6}, 0x38
        s_lshl_b32 s4, s4, 10
        s_and_b32 s5, s{sC6}, 7
        s_bfe_u32 s6, s2, 0x10006
        s_lshl3_add_u32 s5, s6, s5
        s_lshl_b32 s5, s5, 4
        s_add_u32 s4, s4, s5
        s_add_u32 s4, s4, {RA+768}
        v_bfe_u32 v{vU}, v0, 2, 2
        v_lshlrev_b32 v{vU}, 16, v{vU}
        v_and_b32 v{vU+1}, 3, v0
        v_lshl_add_u32 v{vU}, v{vU+1}, 11, v{vU}
        v_bfe_u32 v{vU+1}, v0, 4, 1
        v_lshl_add_u32 v{vU}, v{vU+1}, 10, v{vU}
        v_add_u32 v{vQb}, s4, v{vU}
        {Lha}:
        """)
        def hfin():
            Lh = self.lab("hfin")
            a(f"""
            s_cmp_lg_u32 s{sJ}, 3
            s_cbranch_scc1 {Lh}
            s_waitcnt vmcnt({len(self.vm) - self.hmark})
            """)
            retry_loop("h", hl, [vAO, vAO + 4], vU)
            for i in range(4): a(f"v_add_f32_dpp v{vAO+i}, v{vAO+i}, v{vAO+i} quad_perm:[1,0,3,2] {DPP}")
            for i in range(4): a(f"v_add_f32_dpp v{vAO+4+i}, v{vAO+4+i}, v{vAO+4+i} row_ror:1 {DPP}")
            for i in range(4): a(f"v_add_f32_dpp v{vAO+i}, v{vAO+i}, v{vAO+i} quad_perm:[2,3,0,1] {DPP}")
            for r in (2, 4, 8):
                for i in range(4): a(f"v_add_f32_dpp v{vAO+4+i}, v{vAO+4+i}, v{vAO+4+i} row_ror:{r} {DPP}")
            a(f"""
            v_bfe_u32 v{vU+1}, v0, 5, 1
            v_mul_u32_u24 v{vU+1}, 192, v{vU+1}
            v_bfe_u32 v{vU+2}, v0, 2, 3
            v_lshl_add_u32 v{vU+1}, v{vU+2}, 4, v{vU+1}
            ds_write_b128 v{vU+1}, {r4(vAO)} offset:{HP}
            v_bfe_u32 v{vU+1}, v0, 4, 1
            v_mul_u32_u24 v{vU+1}, 192, v{vU+1}
            ds_write_b128 v{vU+1}, {r4(vAO+4)} offset:{HP+128}
            v_min_u32 v{vU+1}, 35, v{vL}
            v_lshlrev_b32 v{vU+2}, 2, v{vU+1}
            v_add_u32 v{vU+2}, {HP}, v{vU+2}
            s_waitcnt lgkmcnt(0)
            ds_read2_b32 {r2(vU+4)}, v{vU+2} offset0:0 offset1:48
            v_lshlrev_b32 v{vU+1}, 1, v{vU+1}
            s_waitcnt lgkmcnt(0)
            v_cvt_pk_bf16_f32 v{vU+4}, v{vU+4}, v{vU+5}
            v_and_b32 v{vU+5}, 0xffff0000, v{vU+4}
            v_lshlrev_b32 v{vU+4}, 16, v{vU+4}
            v_max_f32 v{vU+4}, 0, v{vU+4}
            v_mul_f32 v{vU+4}, v{vU+4}, v{vU+5}
            v_cvt_pk_bf16_f32 v{vU+4}, v{vU+4}, v{vU+4}
            ds_write_b16 v{vU+1}, v{vU+4} offset:{HL}
            {Lh}:
            """)
        hcheck = None
        for t in range(16):
            B = vT + 4 * (t % 2)
            a(f"v_cvt_pk_bf16_f32 v{vU}, v{vS+t}, v{vS+t}")
            for j in range(4): a(f"v_and_b32 v{B+j}, v{vU}, v{vM[j]}")
            self.wait(f"V{t}")
            a(f"v_mfma_f32_16x16x32_bf16 {r4(vAcc)}, {r4(dst[f'V{t}'])}, {r4(B)}, {'0' if t == 0 else r4(vAcc)}")
            fill(f"V{t}", min(W, 15 + o["Wt"] - t))
            if o["st4"] and t in (1, 2, 5, 8, 9, 12): self.stamp(f"V{t}")
            if t == o["hp"]:
                a(f"s_cmp_eq_u32 s{sJ}, 3"); a("s_cselect_b64 exec, -1, 0")
                for i, ld in enumerate(hl): self.issue(f"H{i}", ld.replace("sc1", o["first"]))
                a("s_mov_b64 exec, -1")
                self.hmark = len(self.vm)
                hcheck = min(15, self.ip - big.index("V0"))
            if t == 3:
                a(f"""
                v_bfe_u32 v{vK}, v0, 3, 1
                v_lshlrev_b32 v{vK}, 9, v{vK}
                v_bfe_u32 v{vU+1}, v0, 4, 2
                v_lshl_add_u32 v{vK}, v{vU+1}, 7, v{vK}
                v_and_b32 v{vU+1}, 7, v0
                v_lshl_add_u32 v{vK}, v{vU+1}, 2, v{vK}
                v_lshl_add_u32 v{vK}, v{vJ}, 10, v{vK}
                s_lshl4_add_u32 s6, s{sG}, s{sS}
                s_mul_i32 s6, s6, 1152
                s_add_u32 s6, s6, {OB}
                v_lshl_add_u32 v{vX+4}, v{vL}, 4, s6
                s_mul_i32 s4, s{sG}, {16*1152}
                s_add_u32 s4, s4, {OB}
                v_and_b32 v{vX+5}, 15, v0
                v_mul_u32_u24 v{vX+5}, 1152, v{vX+5}
                v_add_u32 v{vX+5}, s4, v{vX+5}
                s_and_b32 s5, s{sS}, 7
                s_lshl_b32 s5, s5, 7
                s_lshr_b32 s4, s{sJ}, 1
                s_lshl_b32 s4, s4, 6
                s_add_u32 s4, s4, s5
                v_bfe_u32 v{vU+1}, v0, 4, 2
                v_lshl_add_u32 v{vX+6}, v{vU+1}, 4, v{vX+5}
                v_add_u32 v{vX+6}, s4, v{vX+6}
                s_bfe_u32 s4, s{sS}, 0x10002
                s_lshl_b32 s4, s4, 3
                v_add_u32 v{vX+5}, s4, v{vX+5}
                v_lshrrev_b32 v{vFA}, {CG.bit_length()-1}, v0
                v_mul_u32_u24 v{vFA}, {128*CG*16}, v{vFA}
                v_and_b32 v{vU+1}, {CG-1}, v0
                v_lshl_add_u32 v{vFA}, v{vU+1}, 4, v{vFA}
                s_and_b32 s4, s2, 127
                s_mul_i32 s4, s4, {CG*16}
                s_lshr_b32 s5, s2, 7
                s_mul_i32 s5, s5, {72*128*16}
                s_add_u32 s4, s4, s5
                s_add_u32 s4, s4, {FB}
                v_add_u32 v{vFA}, s4, v{vFA}
                """)
            if t == 4:
                a(f"""
                v_subrev_u32 v{vX+7}, {HL}, v{vRS}
                v_and_b32 v{vU+1}, 3, v0
                v_lshlrev_b32 v{vU+1}, 3, v{vU+1}
                v_lshl_add_u32 v{vX+7}, v{vX+7}, 4, v{vU+1}
                v_add_u32 v{vX+7}, {OLX}, v{vX+7}
                v_bfe_u32 v{vU+1}, v0, 2, 2
                s_mov_b32 s4, 0x02020202
                v_mul_lo_u32 v{vU+1}, v{vU+1}, s4
                v_add_u32 v{vU+1}, s32, v{vU+1}
                v_or_b32 v{vU+2}, v{vM[0]}, v{vM[2]}
                v_or_b32 v{vU+3}, v{vM[1]}, v{vM[3]}
                v_mov_b32 v{vU+4}, 0x0c0c0c0c
                v_bfi_b32 v{vBq+2}, v{vU+2}, v{vU+1}, v{vU+4}
                v_bfi_b32 v{vBq+3}, v{vU+3}, v{vU+1}, v{vU+4}
                s_lshr_b32 s5, s{sJ}, 1
                s_lshl_b32 s5, s5, 9
                s_add_u32 s5, s5, {OLX}
                v_lshl_add_u32 v{vX+3}, v{vL}, 3, s5
                """)
            if hcheck is not None and t == min(15, hcheck):
                hcheck = None
                if not o["hlate"]: hfin()
        assert hcheck is None
        for i in range(4): a(f"ds_write_b32 v{vK}, v{vAcc+i} offset:{OW+32*i}")
        a(f"""
        s_waitcnt lgkmcnt(0)
        s_barrier
        """)
        self.stamp("pvdone")
        if o["hlate"]:
            hfin(); assert o["obar"]
        Lo1 = self.lab("opub"); Lm = self.lab("mlpub")
        a(f"""
        s_cmp_eq_u32 s{sJ}, 2
        s_cbranch_scc1 {Lm}
        s_cmp_lg_u32 s{sJ}, 0
        s_cbranch_scc1 {Lo1}
        """)
        for jj in range(4): a(f"ds_read_b128 {r4(vT+4*jj)}, v{vV} offset:{OW+1024*jj}")
        a("s_waitcnt lgkmcnt(2)")
        pkadd(vT, vT, vT + 4)
        a("s_waitcnt lgkmcnt(0)")
        pkadd(vT + 8, vT + 8, vT + 12); pkadd(vT, vT, vT + 8)
        a(f"""
        s_branch {Lo1}t
        {Lm}:
        v_bfe_u32 v{vU+1}, v0, 3, 1
        v_lshlrev_b32 v{vU+1}, 6, v{vU+1}
        """)
        for i in range(4): a(f"ds_read_b128 {r4(vU+4+4*i)}, v{vU+1} offset:{LS+16*i}")
        a(f"v_add_u32 v{vX+4}, 1024, v{vX+4}")
        a("s_waitcnt lgkmcnt(0)")
        pkadd(vU + 4, vU + 4, vU + 8); pkadd(vU + 12, vU + 12, vU + 16); pkadd(vU + 4, vU + 4, vU + 12)
        a(f"""
        v_pk_add_f32 {r2(vU+4)}, {r2(vU+4)}, {r2(vU+6)}
        v_add_f32 v{vT+1}, v{vU+4}, v{vU+5}
        v_mov_b32 v{vT}, v{vMx}
        v_mov_b32_dpp v{vT+2}, v{vMx} row_shl:8 {DPP}
        v_mov_b32_dpp v{vT+3}, v{vT+1} row_shl:8 {DPP}
        s_mov_b64 exec, 1
        {Lo1}t:
        """)
        tagins(vT)
        a(f"""
        s_branch {Lo1}s
        {Lo1}:
        s_mov_b64 exec, 0
        {Lo1}s:
        """)
        dual("OP", f"buffer_store_dwordx4 {r4(vT)}, v{vX+4}, s[{SW}:{SW+3}], 0 offen", True)
        if o["obar"]: a("s_waitcnt lgkmcnt(0)"); a("s_barrier")
        (None if o["st4"] else self.stamp("opub"))
        def omk(st): return [f"buffer_load_dwordx4 {r4(st[0])}, v{vX+6}, s[{SW}:{SW+3}], 0 offen sc1",
                             f"buffer_load_dwordx2 {r2(st[0]+4)}, v{vX+5}, s[{SW}:{SW+3}], 0 offen offset:1024 sc1"]
        osets = [[R1 + 8 * d] for d in range(o["odepth"])]
        polled = False
        if o["oearly"]:
            polled = True
            a(f"s_bitcmp1_b32 s{sJ}, 0"); a("s_cselect_b64 exec, -1, 0")
            for i, ld in enumerate(omk(osets[0])): self.issue(f"OPL{i}", ld)
            a("s_mov_b64 exec, -1")
        fill("V15", o["post"])
        a(f"""
        ds_read2_b32 {r2(vX)}, v{vRS} offset0:0 offset1:1
        ds_read_b32 v{vX+2}, v{vRS} offset:8
        """)
        def flat_A(k, xsrc):
            p = k & 1; A = vU + 2 * p
            a(f"v_perm_b32 v{A}, v{xsrc+(k>>1)}, v{xsrc+(k>>1)}, v{vSel[2*p]}")
            a(f"v_perm_b32 v{A+1}, v{xsrc+(k>>1)}, v{xsrc+(k>>1)}, v{vSel[2*p+1]}")
            return A
        def flat_mfma(A, data, acc, first):
            a(f"v_mfma_f32_4x4x4_16b_bf16 {r4(acc)}, {r2(A)}, {r2(data)}, {'0' if first else r4(acc)}")
            a(f"v_mfma_f32_4x4x4_16b_bf16 {r4(acc+4)}, {r2(A)}, {r2(data+2)}, {'0' if first else r4(acc+4)}")
        a("s_waitcnt lgkmcnt(0)")
        for k in range(6):
            A = flat_A(k, vX)
            self.wait(f"D{k}")
            flat_mfma(A, dst[f"D{k}"], vAD, k == 0)
            fill(f"D{k}", o["post"])
            if self.ip == len(big) and k >= o["opa"] and not polled:
                polled = True
                a(f"s_bitcmp1_b32 s{sJ}, 0"); a("s_cselect_b64 exec, -1, 0")
                for i, ld in enumerate(omk(osets[0])): self.issue(f"OPL{i}", ld)
                a("s_mov_b64 exec, -1")
        assert polled
        (None if o["st3"] else self.stamp("Ddone"))
        for i in range(0, 8): a(f"v_mul_f32 v{vAD+i}, v{vOMG}, v{vAD+i}")
        Lo2 = self.lab("ocons")
        a(f"""
        s_bitcmp0_b32 s{sJ}, 0
        s_cbranch_scc1 {Lo2}
        """)
        P = vS
        def ofin(st):
            a(f"v_and_b32 v{vBq}, v{st[0]+4}, v{vTM}")
            a(f"v_mov_b32 v{vBq+1}, v{st[0]+5}")
            a(f"v_pk_mul_f32 {r2(P)}, {r2(st[0])}, {r2(vG-1)} op_sel:[0,1] op_sel_hi:[1,1]")
            a(f"v_pk_mul_f32 {r2(P+2)}, {r2(st[0]+2)}, {r2(vG-1)} op_sel:[0,1] op_sel_hi:[1,1]")
        if o["oearly"]:
            assert o["odepth"] == 1
            Lx = self.lab("oex"); Lre = self.lab("oere"); OD = o["od"]
            self.wait("OPL1")
            tagchk(osets[0], vU + 4, 2)
            a(f"s_cbranch_vccz {Lx}d")
            for _ in range(OD - 1):
                for ld in omk(osets[0]): a(ld)
            a(f"s_mov_b32 s7, {o['spin']}")
            a(f"{Lre}:")
            for ld in omk(osets[0]): a(ld)
            a(f"s_waitcnt vmcnt({2*(OD-1)})")
            tagchk(osets[0], vU + 4, 2)
            a(f"s_cbranch_vccz {Lx}")
            a("s_sub_u32 s7, s7, 1"); a("s_cmp_lg_u32 s7, 0"); a(f"s_cbranch_scc1 {Lre}")
            a(f"s_branch {Lx}")
            a(f"{Lx}d:")
            if OD > 1:
                a("s_mov_b64 exec, 0")
                for _ in range(OD - 1):
                    for ld in omk(osets[0]): a(ld)
                a("s_mov_b64 exec, -1")
            a(f"{Lx}:")
            ofin(osets[0])
        else:
            pipe_poll("o", omk, osets, vU + 4, 1, ofin, o["osleep"], extra=2)
        (None if o["st3"] else self.stamp("opollok"))
        a(f"v_max_f32_dpp v{vU+4}, v{vBq}, v{vBq} row_ror:1 {DPP}")
        for r in (2, 4, 8): a(f"v_max_f32_dpp v{vU+4}, v{vU+4}, v{vU+4} row_ror:{r} {DPP}")
        a(f"""
        v_sub_f32 v{vBq}, v{vBq}, v{vU+4}
        v_mul_f32 v{vBq}, s{sC}, v{vBq}
        v_exp_f32 v{vBq}, v{vBq}
        v_mul_f32 v{P+4}, v{vBq}, v{vBq+1}
        v_pk_mul_f32 {r2(P)}, {r2(P)}, {r2(vBq)} op_sel_hi:[1,0]
        v_pk_mul_f32 {r2(P+2)}, {r2(P+2)}, {r2(vBq)} op_sel_hi:[1,0]
        """)
        for r in (1, 2, 4, 8):
            for i in (4, 0, 1, 2, 3): a(f"v_add_f32_dpp v{P+i}, v{P+i}, v{P+i} row_ror:{r} {DPP}")
            if r == 8: self.l.insert(len(self.l) - 2, f"    v_rcp_f32 v{vBq}, v{P+4}")
        a(f"""
        v_pk_mul_f32 {r2(P)}, {r2(P)}, {r2(vBq)} op_sel_hi:[1,0]
        v_pk_mul_f32 {r2(P+2)}, {r2(P+2)}, {r2(vBq)} op_sel_hi:[1,0]
        v_cvt_pk_bf16_f32 v{P}, v{P}, v{P+1}
        v_cvt_pk_bf16_f32 v{P+1}, v{P+2}, v{P+3}
        v_perm_b32 v{P+2}, v{P+1}, v{P}, v{vBq+2}
        v_perm_b32 v{P+3}, v{P+1}, v{P}, v{vBq+3}
        ds_write_b64 v{vX+3}, {r2(P+2)}
        s_branch {Lo2}x
        {Lo2}:
        """)
        if o["od"] > 1:
            a("s_mov_b64 exec, 0")
            for i in range(o["od"] - 1):
                for j, ld in enumerate(omk(osets[0])): self.issue(f"ODM{i}{j}", ld)
            a("s_mov_b64 exec, -1")
        a(f"""
        {Lo2}x:
        v_cmp_gt_u32 vcc, 72, v0
        s_waitcnt lgkmcnt(0)
        s_barrier
        """)
        for k in range(3): a(f"ds_read2_b64 {r4(vT+4*k)}, v{vX+7} offset0:{8*k} offset1:{8*k+4}")
        (None if o["st3"] else self.stamp("B7"))
        for k in range(6):
            if k % 2 == 0: a(f"s_waitcnt lgkmcnt({0 if o['stamps'] else 2 - k // 2})")
            self.wait(f"O{k}")
            flat_mfma(vT + 2 * k, dst[f"O{k}"], vAD, False)
        Lf = self.lab("fpub")
        a(f"""
        ds_write_b128 v{vCH}, {r4(vAD)} offset:{LF}
        ds_write_b128 v{vCH}, {r4(vAD+4)} offset:{LF+16}
        s_waitcnt lgkmcnt(0)
        s_barrier
        s_and_saveexec_b64 s[4:5], vcc
        s_cbranch_execz {Lf}
        """)
        tg = [vT, vT + 4, vT + 8, vT + 12, vT + 16, vU + 4]
        for p in range(6): a(f"ds_read_b128 {r4(tg[p])}, v{vV} offset:{LF+1152*p}")
        a("s_waitcnt lgkmcnt(4)"); pkadd(tg[0], tg[0], tg[1])
        a("s_waitcnt lgkmcnt(2)"); pkadd(tg[2], tg[2], tg[3])
        a("s_waitcnt lgkmcnt(0)"); pkadd(tg[4], tg[4], tg[5]); pkadd(tg[0], tg[0], tg[2]); pkadd(tg[0], tg[0], tg[4])
        tagins(vT)
        a(f"""
        buffer_store_dwordx4 {r4(vT)}, v{vFA}, s[{SW}:{SW+3}], 0 offen sc1
        {Lf}:
        s_mov_b64 exec, s[4:5]
        """)
        self.stamp("fpub")
        NL = CG // 2
        if o["rorig"]: a("s_mov_b32 s2, s101")
        a(f"""
        s_cmpk_ge_u32 s2, {R}
        s_cbranch_scc1 L_fin
        s_mul_i32 s4, s2, {128*CG*16}
        s_add_u32 s4, s4, {FB}
        """)
        if CG == 4:
            a(f"""
            v_and_b32 v{vQa}, 15, v0
            v_lshlrev_b32 v{vQa}, 6, v{vQa}
            v_bfe_u32 v{vQb}, v0, 4, 2
            v_lshl_add_u32 v{vQa}, v{vQb}, 4, v{vQa}
            v_lshl_add_u32 v{vQa}, v{vJ}, 10, v{vQa}
            v_add_u32 v{vQa}, s4, v{vQa}
            s_movk_i32 s33, 0x1000
            """)
            offs = [("0", 0), ("s33", 0)]
        elif CG == 2:
            a(f"""
            v_and_b32 v{vQa}, 15, v0
            v_lshlrev_b32 v{vQa}, 5, v{vQa}
            v_bfe_u32 v{vQb}, v0, 4, 1
            v_lshl_add_u32 v{vQa}, v{vQb}, 4, v{vQa}
            v_lshrrev_b32 v{vQb}, 5, v0
            v_lshl_add_u32 v{vQa}, v{vQb}, 9, v{vQa}
            v_add_u32 v{vQa}, s4, v{vQa}
            """)
            offs = [("0", 0)]
        else:
            a(f"""
            v_and_b32 v{vQa}, 15, v0
            v_lshlrev_b32 v{vQa}, 7, v{vQa}
            v_bfe_u32 v{vQb}, v0, 4, 2
            v_lshl_add_u32 v{vQa}, v{vQb}, 4, v{vQa}
            v_lshl_add_u32 v{vQa}, v{vJ}, 11, v{vQa}
            v_add_u32 v{vQa}, s4, v{vQa}
            s_movk_i32 s33, 0x2000
            """)
            offs = [("0", 0), ("s33", 0), ("0", 64), ("s33", 64)]
        def fmk(st): return [f"buffer_load_dwordx4 {r4(st[k])}, v{vQa}, s[{SW}:{SW+3}], {offs[k][0]} offen offset:{offs[k][1]} sc1" for k in range(NL)]
        fsets = [[R2 + 16 * d + 4 * k for k in range(NL)] for d in range(o["fdepth"])]
        F = vS
        NF = 8 if CG == 8 else 4
        def ffin(st):
            if CG == 4: pkadd(F, st[0], st[1])
            elif CG == 8: pkadd(F, st[0], st[1]); pkadd(F + 4, st[2], st[3])
            else:
                for i in range(4): a(f"v_add_f32_dpp v{F+i}, v{st[0]+i}, v{st[0]+i} row_ror:1 {DPP}")
        if o["fx"]:
            lds_ = fmk(fsets[0])
            for ld in lds_: a(ld)
            a(f"""
            v_lshrrev_b32 v{vU}, 4, v0
            v_lshlrev_b32 v{vU}, 4, v{vU}
            s_mov_b32 s{SX}, s56
            s_mov_b32 s{SX+1}, s57
            s_mul_i32 s4, s2, {CG*8}
            v_mov_b32 v{vU+2}, s{sTAG}
            v_mov_b32 v{vU+3}, 0
            """)
            if CG == 8:
                a(f"""
                v_and_b32 v{vU+1}, 3, v0
                v_lshrrev_b32 v{vU+10}, 4, v0
                v_lshl_add_u32 v{vU+1}, v{vU+10}, 2, v{vU+1}
                v_lshl_add_u32 v{vU+1}, v{vU+1}, 3, s4
                """)
            else:
                a(f"v_lshl_add_u32 v{vU+1}, v0, 3, s4")
            pass
            sel_poll("f", [([lds_[k]], fsets[0][k], 4) for k in range(NL)], vU + 4, o["fx"])
            ffin(fsets[0])
        elif True:
            assert False, "only fx path maintained"
        elif o["fsel"]:
            assert CG == 4
            for k in range(2): a(fmk(fsets[0])[k])
            D = o["fdepth"]
            for k in range(2):
                mk1 = lambda st, k=k: [f"buffer_load_dwordx4 {r4(st[0])}, v{vQa}, s[{SW}:{SW+3}], {offs[k][0]} offen offset:{offs[k][1]} sc1"]
                Lq = self.lab("fq")
                a(f"s_waitcnt vmcnt({1 - k})" if k == 0 else "s_nop 0")
                sets1 = [[R2 + 32 + 16 * k + 4 * d] for d in range(D)]
                if k == 1: a("s_waitcnt vmcnt(%d)" % 0) if False else None
                tagchk([fsets[0][k]], vU + 4)
                a(f"s_cbranch_vccz {Lq}")
                def fin1(st, k=k):
                    a(f"v_pk_mul_f32 {r2(fsets[0][k])}, {r2(st[0])}, 1.0 op_sel_hi:[1,0]")
                    a(f"v_pk_mul_f32 {r2(fsets[0][k]+2)}, {r2(st[0]+2)}, 1.0 op_sel_hi:[1,0]")
                pipe_poll(f"f{k}", mk1, sets1, vU + 4, 0, fin1, o["fsleep"])
                if k == 0:
                    a(f"s_branch {Lq}b"); a(f"{Lq}:"); a("s_waitcnt vmcnt(0)"); a(f"{Lq}b:")
                else: a(f"{Lq}:")
            ffin(fsets[0])
        else:
            pipe_poll("f", fmk, fsets, vU + 4, 0, ffin, o["fsleep"])
        (None if o["st3"] else self.stamp("fpollok"))
        for r in (1, 2, 4, 8):
            if CG == 2 and r == 1: continue
            for i in range(NF): a(f"v_add_f32_dpp v{F+i}, v{F+i}, v{F+i} row_ror:{r} {DPP}")
        a(f"ds_write_b128 v{vU}, {r4(F)} offset:{RD}")
        if CG == 8: a(f"ds_write_b128 v{vU}, {r4(F+4)} offset:{RD+256}")
        a(f"""
        s_waitcnt lgkmcnt(0)
        s_barrier
        s_cmp_lg_u32 s{sJ}, 0
        s_cbranch_scc1 L_fin
        s_mov_b64 exec, {'0xffffffff' if CG == 8 else '0xffff'}
        ds_read_b128 {r4(vT)}, v{vV} offset:{RD}
        s_waitcnt lgkmcnt(0)
        """)
        for r in (1, 2, 4, 8):
            if r >= min(CG, 4):
                for i in range(4): a(f"v_add_f32_dpp v{vT+i}, v{vT+i}, v{vT+i} row_ror:{r} {DPP}")
        a(f"""
        v_cvt_pk_bf16_f32 v{vT}, v{vT}, v{vT+1}
        v_cvt_pk_bf16_f32 v{vT+1}, v{vT+2}, v{vT+3}
        s_mov_b64 exec, {0xf000f if CG == 8 else (1 << CG) - 1:#x}
        buffer_store_dwordx2 {r2(vT)}, v{vU+1}, s[{SX}:{SX+3}], 0 offen {o['outf']}
        s_cmp_lg_u32 s2, 0
        s_cbranch_scc1 L_fin
        s_mov_b64 exec, 1
        buffer_store_dword v{vU+2}, v{vU+3}, s[{SW}:{SW+3}], 0 offen {o['epf']}
        L_fin:
        """)
        if o["skewm"]:
            a(f"""
            s_cmp_lg_u32 s2, 0
            s_cbranch_scc1 L_end
            s_cmp_lg_u32 s{sJ}, 0
            s_cbranch_scc1 L_end
            s_add_u32 s4, s60, 0xF0000
            s_addc_u32 s5, s61, 0
            s_load_dwordx8 s[64:71], s[4:5], 0 glc
            s_waitcnt lgkmcnt(0)
            """)
            for i in range(8): a(f"s_sub_u32 s{64+i}, s{64+i}, s16"); a(f"s_add_u32 s{64+i}, s{64+i}, 500")
            m = o["skewm"]
            if m == "late":
                a("s_add_u32 s6, s68, s69"); a("s_add_u32 s6, s6, s70"); a("s_add_u32 s6, s6, s71")
                a("s_sub_u32 s6, s6, s65"); a("s_sub_u32 s6, s6, s66"); a("s_sub_u32 s6, s6, s67"); a("s_sub_u32 s6, s6, s66")
                a("s_mul_i32 s6, s6, 5"); a("s_add_u32 s6, s6, 3000")
            else:
                a("s_min_u32 s72, s64, s65")
                for i in range(2, 8): a(f"s_min_u32 s72, s72, s{64+i}")
                if m == "max":
                    a("s_max_u32 s73, s64, s65")
                    for i in range(2, 8): a(f"s_max_u32 s73, s73, s{64+i}")
                else:
                    a(f"s_mov_b32 s73, s{64+int(m)}")
                a("s_sub_u32 s6, s73, s72"); a("s_mul_i32 s6, s6, 20"); a("s_add_u32 s6, s6, 3000")
            a(f"""
            s_min_u32 s6, s6, 20000
            L_hold:
            s_memrealtime s[4:5]
            s_waitcnt lgkmcnt(0)
            s_sub_u32 s4, s4, s16
            s_cmp_lt_u32 s4, s6
            s_cbranch_scc1 L_hold
            """)
        elif o["amp"] >= 0:
            self.stamp("end"); k = o["amp"]
            a(f"""
            s_waitcnt lgkmcnt(0)
            s_sub_u32 s6, s{self.sreg(k)}, s16
            s_min_u32 s6, s6, 3000
            s_mul_i32 s6, s6, 10
            s_add_u32 s6, s6, 3000
            L_hold:
            s_memrealtime s[4:5]
            s_waitcnt lgkmcnt(0)
            s_sub_u32 s4, s4, s16
            s_cmp_lt_u32 s4, s6
            s_cbranch_scc1 L_hold
            """)
        elif o["stamps"]:
            self.stamp("end")
            a(f"""
            s_waitcnt lgkmcnt(0)
            s_lshl_b32 s4, s101, 2
            s_add_u32 s4, s4, s{sJ}
            s_lshl_b32 s4, s4, 7
            s_add_u32 s4, s4, {STAMP_OFF:#x}
            s_add_u32 s6, s60, s4
            s_addc_u32 s7, s61, 0
            s_sub_u32 s6, s6, {o['wsoff']:#x}
            s_subb_u32 s7, s7, 0
            s_mov_b64 exec, 1
            v_mov_b32 v4, 0
            """)
            for j in range(self.nst):
                a(f"""
                v_mov_b32 v2, s{self.sreg(j)}
                v_mov_b32 v3, s{self.sreg(j)+1}
                global_store_dwordx2 v4, v[2:3], s[6:7] offset:{8*j}
                s_nop 1
                """)
        if o["hold"]:
            a(f"""
            s_waitcnt lgkmcnt(0)
            L_hold:
            s_memrealtime s[4:5]
            s_waitcnt lgkmcnt(0)
            s_sub_u32 s4, s4, s16
            s_cmp_lt_u32 s4, {o["hold"]}
            s_cbranch_scc1 L_hold
            """)
        a("L_end:")
        a("s_endpgm")
        cl = []
        for x in self.l:
            if cl and cl[-1].strip() == "s_mov_b64 exec, -1" and x.strip().startswith("s_mov_b64 exec,"): cl.pop()
            if len(cl) > 1 and cl[-2].strip() == "s_mov_b64 exec, -1" and cl[-1].strip().startswith("s_waitcnt vmcnt") and x.strip().startswith("s_mov_b64 exec,"):
                del cl[-2]
            cl.append(x)
        c2 = []
        for x in cl:
            c2.append(x)
        body = "\n".join(fix(c2)) + "\n"
        head = open("cdna_kernels/" + KN + ".s.ref").read().split("; Override launch")[0]
        if self.names: head += "; stamps: " + " ".join(self.names) + "\n"
        return head + f"""; @launch grid=(256,1,1) block=(256,1,1) lds={o['lds']}
.amdgcn_target "amdgcn-amd-amdhsa--gfx950"
.text
.globl {KN}_kernel
.p2align 8
.type {KN}_kernel,@function
{KN}_kernel:
""" + body + f""".section .rodata,"a"
.p2align 6
.amdhsa_kernel {KN}_kernel
  .amdhsa_next_free_vgpr 256
  .amdhsa_next_free_sgpr 102
  .amdhsa_accum_offset 256
  .amdhsa_group_segment_fixed_size 0
  .amdhsa_kernarg_size 104
  .amdhsa_user_sgpr_count 2
  .amdhsa_user_sgpr_kernarg_segment_ptr 1
  .amdhsa_system_sgpr_workgroup_id_x 1
.end_amdhsa_kernel
"""

if __name__ == "__main__":
    out = sys.argv[1]; opt = {}
    for kv in sys.argv[2:]:
        k, v = kv.split("="); opt[k] = eval(v)
    open(out, "w").write(Gen(**opt).build())
```

```python
import sys, struct
from hazard import fix
KN = "gated_mix__sliding_block_cached__glu_gated_reglu__decode"
STAMP_OFF = 0x30000000
def f2u(x): return struct.unpack("<I", struct.pack("<f", x))[0]

class Gen:
    def __init__(self, **opt):
        self.o = dict(W=9, stamps=False, wsoff=0, qp=2, hp=5, CG=4, round_scores=True, prefetch=0, jitter=0,
                      hold=0, amp=-1, lds=32768, nt="nt", spin=20000, pre_g=2, pre_q=2, pre_s=3, Wt=7, fdepth=1, odepth=1,
                      cnt=0, post=12, osleep=0, fsleep=0, pre_qp=0, first='sc1', pt=0, ptf='', st3=0, early=3, skewm='', adapt=11, flagrd=5, nearly=7, lpost=8, st4=0, atime=0, obar=1, opa=0, fsel=0, tlb=0, outf='', rot=1, mix=1, hlate=1, fx=1, oearly=1, pts=1, epf='', od=1, rorig=1, xs=0, cpf=0, osel=1, dlate=0, ampx=-1)
        for k in opt: assert k in self.o, k
        self.o.update(opt)
        self.l = []; self.vm = []; self.nl = 0; self.nst = 0; self.names = []
    def a(self, s):
        for x in s.strip().split("\n"):
            x = x.strip()
            if x: self.l.append(x if x.endswith(":") else "    " + x)
    def lab(self, p):
        self.nl += 1
        return f"L_{p}{self.nl}"
    def issue(self, label, s):
        self.a(s); self.vm.append(label)
    def wait(self, label):
        n = len(self.vm) - 1 - self.vm.index(label)
        assert n <= 63
        self.a(f"s_waitcnt vmcnt({n})")
    def sreg(self, k): return 16 + 2 * k if k < 8 else 36 + 2 * (k - 8)
    def stamp(self, name=""):
        if self.o["stamps"]:
            assert self.nst < 16
            r = self.sreg(self.nst)
            self.a(f"s_memrealtime s[{r}:{r+1}]")
            self.names.append(name); self.nst += 1

    def build(self):
        o = self.o; a = self.a; nt = o["nt"]; W = o["W"]
        RA, OB, FB, MLB = 0x1000, 0x50000, 0xA0000, 0xF8000
        CG = o["CG"]; R = 144 // CG
        XL, P1, QL, MX, LS, GS, HP, HL, OL, OW, LF, RD, DUM = 0, 2560, 10752, 14848, 14976, 15104, 15232, 15616, 15744, 15872, 19968, 29184, 29696
        OLX = 30208; XF = 31744
        vL = 1; vM = [2, 3, 4, 5]; vSel = [6, 7, 8, 9]
        vQa, vQb, vGU, vK, vV, vPD, vPD2, vPO, vTM = 10, 11, 12, 13, 14, 15, 16, 18, 17
        vMx, vMc, vFA, vRS = 19, 20, 21, 22
        vX = 24
        vS = 32; vBq = 48; vAq = 52; vAg = 56; vAr = 60; vAD = 56; vAO = 64; vT = 72; vPoll = 92
        vCH, vG, vOMG, vJ = 96, 97, 98, 99
        R1 = 100; R2 = 164; vU = 228
        vAcc = vAq
        dst = {}
        for i in range(5): dst[f"Q{i}"] = R1 + 4 * i
        for i in range(9): dst[f"G{i}"] = R1 + 20 + 4 * i
        for i in range(2): dst[f"R{i}"] = R1 + 56 + 4 * i
        for i in range(16): dst[f"K{i}"] = R2 + 4 * i; dst[f"V{i}"] = R1 + 4 * i
        for i in range(6): dst[f"D{i}"] = R2 + 4 * i; dst[f"O{i}"] = R2 + 24 + 4 * i
        big = [f"Q{i}" for i in range(5)] + [f"G{i}" for i in range(9)] + ["R0", "R1"] + [f"K{i}" for i in range(16)] + \
              [f"V{i}" for i in range(16)] + [f"D{i}" for i in range(6)] + [f"O{i}" for i in range(6)]
        sTAG = 62; sJ = 3; sKQ, sG, sS, sC6 = 8, 9, 10, 11; s4608 = 12
        sKV = 13; sGU = 14; sC = 15
        SQ, SGU, SK, SR, SD, SO, SX, SV, SW = 64, 68, 72, 76, 80, 84, 88, 92, 96
        sPL = 34; sXE = 100; XB = 0xF9000
        r4 = lambda v: f"v[{v}:{v+3}]"
        r2 = lambda v: f"v[{v}:{v+1}]"
        DPP = "row_mask:0xf bank_mask:0xf"
        self.ip = 0; self.gdone = self.kdone = False
        def issue_next():
            lb = big[self.ip]; self.ip += 1
            d = r4(dst[lb]); k = int(lb[1:]); c = lb[0]
            if c == "V": assert self.gdone
            if c in "DO": assert self.kdone
            if c == "Q":
                if k == 0: self.issue(lb, f"buffer_load_dwordx4 {d}, v{vQa}, s[{SQ}:{SQ+3}], 0 offen {nt}")
                elif k < 4: self.issue(lb, f"buffer_load_dwordx4 {d}, v{vQa}, s[{SQ}:{SQ+3}], s{32+k} offen {nt}")
                else: self.issue(lb, f"buffer_load_dwordx4 {d}, v{vQb}, s[{SQ}:{SQ+3}], 0 offen {nt}")
            elif c == "G":
                if k == 0: a(f"s_mov_b32 s{sGU}, 0")
                elif k < 8: a(f"s_addk_i32 s{sGU}, 9216")
                if k < 8: self.issue(lb, f"buffer_load_dwordx4 {d}, v{vGU}, s[{SGU}:{SGU+3}], s{sGU} offen {nt}")
                else: self.issue(lb, f"buffer_load_dwordx4 {d}, v{vPD}, s[{SGU}:{SGU+3}], 0 offen {nt}")
            elif c == "R":
                self.issue(lb, f"buffer_load_dwordx4 {d}, v{vPD2 if k == 0 else vPO}, s[{SR}:{SR+3}], 0 offen {nt}")
            elif c in "KV":
                if k == 0: a(f"s_lshl_b32 s{sKV}, s{sG}, 12" if o["rot"] else f"s_mov_b32 s{sKV}, 0")
                else:
                    a(f"s_addk_i32 s{sKV}, 4096")
                    if o["rot"]: a(f"s_bitset0_b32 s{sKV}, 16")
                sr, vo = (SK, vK) if c == "K" else (SV, vV)
                self.issue(lb, f"buffer_load_dwordx4 {d}, v{vo}, s[{sr}:{sr+3}], s{sKV} offen {nt}")
            else:
                sr = SD if c == "D" else SO
                vo = vPO if c == "O" else (vPD if k < 2 else vPD2)
                so, im = ("0", k * 1152) if k < 4 else (f"s{s4608}", (k - 4) * 1152)
                if c == "O" and k >= 4: vo, so = vGU, "0"
                self.issue(lb, f"buffer_load_dwordx4 {d}, v{vo}, s[{sr}:{sr+3}], {so} offen offset:{im} {nt}")
        def fill(label, w=None):
            w = W if w is None else w
            idx = big.index(label)
            while self.ip < len(big) and self.ip <= idx + w: issue_next()
        def more(n):
            for _ in range(n):
                if self.ip < len(big): issue_next()
        def tagins(v):
            for i in range(4): a(f"v_and_or_b32 v{v+i}, v{v+i}, v{vTM}, s{sTAG}")
        def tagchk(vs, acc, extra=0):
            first = True
            for v in vs:
                for i in range(4 + extra):
                    if first: a(f"v_xor_b32 v{acc}, s{sTAG}, v{v+i}"); first = False
                    else: a(f"v_bitop3_b32 v{acc}, v{v+i}, s{sTAG}, v{acc} bitop3:0xbe")
            a(f"v_and_b32 v{acc}, 0xff, v{acc}")
            a(f"v_cmp_ne_u32 vcc, 0, v{acc}")
        def retry_loop(name, loads, vs, acc):
            Lok = self.lab(name + "ok"); Lre = self.lab(name + "re")
            a(f"s_mov_b32 s7, {o['spin']}")
            a(f"{Lre}:")
            tagchk(vs, acc)
            a(f"s_cbranch_vccz {Lok}")
            for ld in loads: a(ld)
            a("s_waitcnt vmcnt(0)")
            a("s_sub_u32 s7, s7, 1")
            a("s_cmp_lg_u32 s7, 0")
            a(f"s_cbranch_scc1 {Lre}")
            a(f"{Lok}:")
            if o["stamps"] and o["cnt"] == 1:
                r = self.sreg(self.nst); self.names.append(name + "retry"); self.nst += 1
                a(f"s_sub_u32 s7, {o['spin']}, s7"); a(f"s_mul_i32 s7, s7, 100")
                a(f"s_add_u32 s{r}, s16, s7"); a(f"s_addc_u32 s{r+1}, s17, 0")
        def pipe_poll(name, mk, sets, acc, first_issued, fin, slp=0, extra=0):
            n = len(mk(sets[0])); D = len(sets)
            Lx = self.lab(name + "x"); Lre = self.lab(name + "re")
            Lmv = [self.lab(name + "mv") for _ in range(D)]
            for d in range(first_issued, D):
                for ld in mk(sets[d]): a(ld)
            a(f"s_mov_b32 s7, {o['spin']}")
            a(f"{Lre}:")
            for d in range(D):
                a(f"s_waitcnt vmcnt({n*(D-1)})")
                tagchk(sets[d], acc, extra)
                a(f"s_cbranch_vccz {Lmv[d]}")
                if slp: a(f"s_sleep {slp}")
                for ld in mk(sets[d]): a(ld)
            a("s_sub_u32 s7, s7, 1")
            a("s_cmp_lg_u32 s7, 0")
            a(f"s_cbranch_scc1 {Lre}")
            for d in range(D - 1, -1, -1):
                a(f"{Lmv[d]}:")
                fin(sets[d])
                if d: a(f"s_branch {Lx}")
            a(f"{Lx}:")
        def dual(name, st, local):
            if local:
                a("s_mov_b64 s[4:5], exec")
                a(f"s_and_b64 exec, s[4:5], s[{sPL}:{sPL+1}]")
                self.issue(name + "p", st)
                a(f"s_andn2_b64 exec, s[4:5], s[{sPL}:{sPL+1}]")
            self.issue(name, st + " sc1")
            a("s_mov_b64 exec, -1")
        def sel_poll(name, pieces, acc, depth):
            Lx = self.lab(name + "x"); Lre = self.lab(name + "re")
            n = sum(len(p[0]) for p in pieces)
            for _ in range(depth - 1):
                for p in pieces:
                    for ld in p[0]: a(ld)
            a(f"s_mov_b32 s7, {o['spin']}")
            a(f"{Lre}:")
            a(f"s_waitcnt vmcnt({n * (depth - 1)})")
            for i, p in enumerate(pieces):
                first = True
                for v in range(p[1], p[1] + p[2]):
                    if first: a(f"v_xor_b32 v{acc+i}, s{sTAG}, v{v}"); first = False
                    else: a(f"v_bitop3_b32 v{acc+i}, v{v}, s{sTAG}, v{acc+i} bitop3:0xbe")
                a(f"v_and_b32 v{acc+i}, 0xff, v{acc+i}")
            for i, p in enumerate(pieces): a(f"v_cmp_ne_u32 s[{64+2*i}:{65+2*i}], 0, v{acc+i}")
            if len(pieces) == 1: a("s_cmp_lg_u64 s[64:65], 0")
            else:
                a("s_or_b64 s[4:5], s[64:65], s[66:67]")
                for i in range(2, len(pieces)): a(f"s_or_b64 s[4:5], s[4:5], s[{64+2*i}:{65+2*i}]")
            a(f"s_cbranch_scc0 {Lx}")
            if o["xs"]: a(f"s_sleep {o['xs']}")
            for i, p in enumerate(pieces):
                a(f"s_mov_b64 exec, s[{64+2*i}:{65+2*i}]")
                for ld in p[0]: a(ld)
            a("s_mov_b64 exec, -1")
            a("s_sub_u32 s7, s7, 1")
            a("s_cmp_lg_u32 s7, 0")
            a(f"s_cbranch_scc1 {Lre}")
            a(f"{Lx}:")
        def pkadd(d, x, y):
            a(f"v_pk_add_f32 {r2(d)}, {r2(x)}, {r2(y)}"); a(f"v_pk_add_f32 {r2(d+2)}, {r2(x+2)}, {r2(y+2)}")

        self.stamp("start")
        if o["hold"]: a("s_memrealtime s[16:17]")
        a(f"""
        s_load_dwordx16 s[36:51], s[0:1], 0
        s_cmpk_ge_u32 s2, 0x100
        s_cbranch_scc1 L_end
        """)
        if o["jitter"]:
            a(f"""s_mul_i32 s4, s2, 0x9e3779b1
            s_lshr_b32 s4, s4, {32-o["jitter"]}
            L_jit:
            s_cmp_eq_u32 s4, 0
            s_cbranch_scc1 L_jitd
            s_sleep 40
            s_sub_u32 s4, s4, 1
            s_branch L_jit
            L_jitd:""")
        a("s_mov_b32 s101, s2")
        a(f"""
        s_lshr_b32 s{sKQ}, s2, 6
        s_mul_i32 s4, s{sKQ}, {144*8192}
        s_and_b32 s5, s2, 7
        s_bfe_u32 s6, s2, 0x30003
        s_lshl3_add_u32 s{sC6}, s5, s6
        s_lshl_b32 s5, s{sC6}, 7
        s_add_u32 s4, s4, s5
        v_lshrrev_b32 v{vT}, 3, v0
        v_and_b32 v{vT+1}, 7, v0
        v_lshlrev_b32 v{vT+1}, 4, v{vT+1}
        v_lshl_add_u32 v{vQa}, v{vT}, 15, v{vT+1}
        s_mov_b32 s{SQ+2}, {143*8192+128}
        s_mov_b32 s{SQ+3}, 0x20000
        s_movk_i32 s33, 0x2000
        s_movk_i32 s34, 0x4000
        s_movk_i32 s35, 0x6000
        s_waitcnt lgkmcnt(0)
        s_add_u32 s{SQ}, s42, s4
        s_addc_u32 s{SQ+1}, s43, 0
        """)
        if o["st3"]: self.stamp("karg")
        more(4)
        if o["st3"]: self.stamp("Q3iss")
        a(f"""
        s_load_dwordx8 s[52:59], s[0:1], 64
        s_load_dwordx2 s[60:61], s[0:1], 96
        s_lshl_b32 s2, s{sKQ}, 6
        s_add_u32 s2, s2, s{sC6}
        v_lshl_add_u32 v{vQb}, v{vT}, 13, v{vT+1}
        v_add_u32 v{vQb}, {128*8192}, v{vQb}
        v_lshrrev_b32 v{vJ}, 6, v0
        v_lshlrev_b32 v{vV}, 4, v0
        v_readfirstlane_b32 s{sJ}, v{vJ}
        """)
        more(1)
        a(f"""
        s_mov_b32 s{SX}, s36
        s_mov_b32 s{SX+1}, s37
        s_movk_i32 s{SX+2}, 1152
        s_mov_b32 s{SX+3}, 0x20000
        """)
        self.issue("X", f"buffer_load_dwordx4 {r4(vX)}, v{vV}, s[{SX}:{SX+3}], 0 offen")
        MIXG = f"s_xor_b32 s5, s{sC6}, s7\ns_lshl_b32 s5, s5, 7" if o["mix"] else ""
        a(f"""
        s_bitcmp1_b32 s{sJ}, 0
        s_cselect_b32 s{SGU}, s50, s48
        s_cselect_b32 s{SGU+1}, s51, s49
        s_cselect_b32 s7, 2, 1
        s_lshr_b32 s6, s{sJ}, 1
        s_lshl1_add_u32 s6, s{sKQ}, s6
        s_mul_i32 s4, s6, {72*9216}
        {MIXG}
        s_add_u32 s4, s4, s5
        s_add_u32 s{SGU}, s{SGU}, s4
        s_addc_u32 s{SGU+1}, s{SGU+1}, 0
        s_mov_b32 s{SGU+2}, {71*9216+128}
        s_mov_b32 s{SGU+3}, 0x20000
        v_and_b32 v{vT+2}, 7, v{vT}
        v_mul_u32_u24 v{vGU}, {8*9216}, v{vT+2}
        v_add_u32 v{vGU}, v{vGU}, v{vT+1}
        """)
        more(2)
        a(f"""
        v_mul_u32_u24 v{vPD}, 9216, v{vT+2}
        v_add_u32 v{vPD}, v{vPD}, v{vT+1}
        v_add_u32 v{vPD}, {64*9216}, v{vPD}
        s_waitcnt lgkmcnt(0)
        s_mov_b32 s{SR}, s54
        s_mov_b32 s{SR+1}, s55
        s_movk_i32 s{SR+2}, 1152
        s_mov_b32 s{SR+3}, 0x20000
        """)
        self.issue("GW", f"buffer_load_dwordx4 {r4(vX+4)}, v{vV}, s[{SR}:{SR+3}], 0 offen")
        if o["prefetch"]:
            a(f"""
            s_getpc_b64 s[4:5]
            s_lshr_b32 s7, s2, 3
            s_mul_i32 s7, s7, {128*o['prefetch']}
            v_and_b32 v{vT+3}, 63, v0
            v_lshl_add_u32 v{vT+3}, v{vT+3}, 7, s7
            s_mov_b64 exec, {(1 << o['prefetch']) - 1}
            """)
            self.issue("PF", f"global_load_dword v{vMc}, v{vT+3}, s[4:5]")
            a("s_mov_b64 exec, -1")
        more(o["early"])
        TLB = ""
        if o["tlb"]:
            TLB = f"""s_load_dword s33, s[{SK}:{SK+1}], 0
            s_load_dword s33, s[{SV}:{SV+1}], 0
            s_load_dword s33, s[{SO}:{SO+1}], 0
            s_load_dword s33, s[{SR}:{SR+1}], 0
            s_mul_i32 s4, s{sC6}, {64*1152}
            s_add_u32 s4, s52, s4
            s_addc_u32 s5, s53, 0
            s_load_dword s33, s[4:5], 0
            s_add_u32 s4, s52, {4300*1152}
            s_addc_u32 s5, s53, 0
            s_load_dword s33, s[4:5], 0"""
        a(f"""
        s_add_u32 s60, s60, {o['wsoff']:#x}
        s_addc_u32 s61, s61, 0
        s_load_dword s{sTAG}, s[60:61], 0
        s_bitcmp1_b32 s2, 0
        s_cselect_b32 s{SR}, s50, s48
        s_cselect_b32 s{SR+1}, s51, s49
        s_bfe_u32 s7, s2, 0x20001
        s_lshl2_add_u32 s7, s{sKQ}, s7
        s_mul_i32 s4, s7, {36*9216}
        s_lshr_b32 s5, s{sC6}, 3
        s_lshl_b32 s5, s5, 7
        s_add_u32 s4, s4, s5
        s_add_u32 s4, s4, 8192
        s_add_u32 s{SR}, s{SR}, s4
        s_addc_u32 s{SR+1}, s{SR+1}, 0
        s_mov_b32 s{SR+2}, {35*9216+128}
        v_mul_u32_u24 v{vPD2}, 9216, v{vT}
        v_add_u32 v{vPD2}, v{vPD2}, v{vT+1}
        v_add_u32 v{vPO}, {32*9216}, v{vPD2}
        s_lshr_b32 s{sG}, s{sC6}, 2
        s_and_b32 s{sS}, s2, 3
        s_lshl2_add_u32 s{sS}, s{sKQ}, s{sS}
        s_lshl_b32 s4, s{sG}, 24
        s_lshl_b32 s5, s{sS}, 16
        s_add_u32 s4, s4, s5
        s_add_u32 s4, s4, {61440*256}
        s_add_u32 s{SK}, s38, s4
        s_addc_u32 s{SK+1}, s39, 0
        s_mov_b32 s{SK+2}, 0x10000
        s_mov_b32 s{SK+3}, 0x20000
        s_add_u32 s{SV}, s40, s4
        s_addc_u32 s{SV+1}, s41, 0
        s_mov_b32 s{SV+2}, 0x10000
        s_mov_b32 s{SV+3}, 0x20000
        s_lshr_b32 s4, s2, 7
        s_mul_i32 s4, s4, 576
        s_add_u32 s{SD}, s52, s4
        s_addc_u32 s{SD+1}, s53, 0
        s_mov_b32 s{SD+2}, {4607*1152+576}
        s_mov_b32 s{SD+3}, 0x20000
        s_and_b32 s5, s{sS}, 7
        s_lshl3_add_u32 s5, s{sG}, s5
        s_mul_i32 s5, s5, {32*1152}
        s_add_u32 s4, s4, s5
        s_add_u32 s{SO}, s44, s4
        s_addc_u32 s{SO+1}, s45, 0
        s_mov_b32 s{SO+2}, {31*1152+576}
        s_mov_b32 s{SO+3}, 0x20000
        s_mov_b32 s{SW}, s60
        s_mov_b32 s{SW+1}, s61
        s_mov_b32 s{SW+2}, 0x100000
        s_mov_b32 s{SW+3}, 0x20000
        s_movk_i32 s{s4608}, 4608
        {TLB}
        v_and_b32 v{vL}, 63, v0
        v_and_b32 v{vU}, 3, v0
        v_lshlrev_b32 v{vU}, 4, v{vU}
        v_bfe_u32 v{vU+1}, v0, 2, 2
        v_lshl_add_u32 v{vU}, v{vU+1}, 8, v{vU}
        v_bfe_u32 v{vU+1}, v0, 4, 2
        v_lshl_add_u32 v{vU}, v{vU+1}, 6, v{vU}
        v_lshl_add_u32 v{vK}, v{vJ}, 10, v{vU}
        v_mov_b32 v{vTM}, 0xffffff00
        v_and_b32 v{vU}, 1, v0
        v_lshlrev_b32 v{vU}, 4, v{vU}
        v_mov_b32 v{vU+1}, 0xffff
        v_lshlrev_b32 v{vU}, v{vU}, v{vU+1}
        v_bfe_u32 v{vU+1}, v0, 1, 2
        v_cmp_eq_u32 s[4:5], 0, v{vU+1}
        v_cmp_eq_u32 s[36:37], 1, v{vU+1}
        v_cmp_eq_u32 vcc, 2, v{vU+1}
        v_cndmask_b32 v{vM[0]}, 0, v{vU}, s[4:5]
        v_cndmask_b32 v{vM[1]}, 0, v{vU}, s[36:37]
        v_cmp_eq_u32 s[36:37], 3, v{vU+1}
        v_cndmask_b32 v{vM[2]}, 0, v{vU}, vcc
        v_or_b32 v{vU+3}, v{vM[0]}, v{vM[2]}
        v_cndmask_b32 v{vM[3]}, 0, v{vU}, s[36:37]
        v_or_b32 v{vU+1}, v{vM[1]}, v{vM[3]}
        v_mov_b32 v{vU+2}, 0x0c0c0c0c
        s_mov_b32 s32, 0x01000100
        s_mov_b32 s63, 0x03020302
        v_bfi_b32 v{vSel[0]}, v{vU+3}, s32, v{vU+2}
        v_bfi_b32 v{vSel[1]}, v{vU+1}, s32, v{vU+2}
        v_bfi_b32 v{vSel[2]}, v{vU+3}, s63, v{vU+2}
        v_bfi_b32 v{vSel[3]}, v{vU+1}, s63, v{vU+2}
        """)
        if o["pt"]:
            a(f"""
            s_lshl_b32 s4, s2, 10
            s_add_u32 s4, s4, {RA}
            s_lshl4_add_u32 s5, s{sG}, s{sS}
            s_mul_i32 s5, s5, 1152
            s_add_u32 s5, s5, {OB}
            s_cmp_eq_u32 s{sJ}, 1
            s_cselect_b32 s4, s5, s4
            s_and_b32 s5, s2, 127
            s_mul_i32 s5, s5, {CG*16}
            s_lshr_b32 s100, s2, 7
            s_lshl1_add_u32 s100, s100, s{sJ}
            s_sub_u32 s100, s100, 2
            s_mul_i32 s100, s100, {9*128*CG*16}
            s_add_u32 s5, s5, s100
            s_add_u32 s5, s5, {FB}
            s_cmp_ge_u32 s{sJ}, 2
            s_cselect_b32 s4, s5, s4
            s_cselect_b32 s5, {(128*CG*16).bit_length()-1}, 7
            v_lshlrev_b32 v{vU}, s5, v{vL}
            v_add_u32 v{vU}, s4, v{vU}
            s_mov_b64 exec, 0x1ff
            """)
            self.issue("PT", f"buffer_load_dword v{vMx}, v{vU}, s[{SW}:{SW+3}], 0 offen {o['ptf']}")
            a("s_mov_b64 exec, -1")
        a(f"""
        v_lshlrev_b32 v{vU}, 2, v{vL}
        v_mov_b32 v{vU+4}, 0
        v_mov_b32 v{vU+5}, 0
        v_mov_b32 v{vU+6}, 0
        v_mov_b32 v{vU+7}, 0
        ds_write_b32 v{vU}, v{vU+4} offset:{HL}
        ds_write_b32 v{vU}, v{vU+4} offset:{XL+2304}
        v_lshlrev_b32 v{vU+1}, 3, v{vL}
        ds_write_b64 v{vU+1}, {r2(vU+4)} offset:{OLX+1024}
        v_and_b32 v{vU+1}, 1, v{vJ}
        v_lshlrev_b32 v{vU+1}, 11, v{vU+1}
        v_lshl_add_u32 v{vU+1}, v{vL}, 4, v{vU+1}
        ds_write_b128 v{vU+1}, {r4(vU+4)} offset:{P1+2048+1024}
        """)
        a(f"""
        s_mul_i32 s4, s{sKQ}, 576
        v_lshl_add_u32 v{vU+8}, v{vT}, 4, s4
        v_lshl_add_u32 v{vU+9}, v{vT}, 2, s4
        s_mul_i32 s4, s6, 288
        v_lshl_add_u32 v{vU+10}, v{vT+2}, 5, s4
        v_lshl_add_u32 v{vU+11}, v{vT+2}, 2, s4
        s_mul_i32 s4, s7, 144
        v_lshl_add_u32 v{vU+12}, v{vT}, 2, s4
        v_bfe_u32 v{vU+4}, v0, 3, 1
        v_bfe_u32 v{vU+5}, v0, 5, 1
        v_cmp_eq_u32 vcc, v{vU+4}, v{vU+5}
        v_bfe_u32 v{vU+4}, v0, 4, 1
        v_lshlrev_b32 v{vU+4}, 7, v{vU+4}
        v_lshl_add_u32 v{vU+4}, v{vU+5}, 8, v{vU+4}
        v_lshrrev_b32 v{vU+5}, 2, v{vT+1}
        v_add_u32 v{vU+4}, v{vU+4}, v{vU+5}
        v_lshl_add_u32 v{vU+13}, v{vJ}, 9, v{vU+4}
        s_and_b32 s4, s{sJ}, 1
        s_lshl_b32 s4, s4, 11
        s_lshr_b32 s5, s{sJ}, 1
        s_lshl_b32 s5, s5, 9
        s_add_u32 s4, s4, s5
        s_add_u32 s4, s4, 2048
        v_add_u32 v{vU+14}, s4, v{vU+4}
        v_mov_b32 v{vU+5}, {DUM-P1}
        v_cndmask_b32 v{vU+13}, v{vU+5}, v{vU+13}, vcc
        v_cndmask_b32 v{vU+14}, v{vU+5}, v{vU+14}, vcc
        v_mov_b32 v{vU+5}, {DUM-P1-6144}
        v_lshl_add_u32 v{vU+15}, v{vJ}, 9, v{vU+4}
        v_cndmask_b32 v{vU+15}, v{vU+5}, v{vU+15}, vcc
        v_lshlrev_b32 v{vU+16}, 5, v0
        v_min_u32 v{vU+16}, 2304, v{vU+16}
        """)
        if o["skewm"]:
            a(f"""
            s_waitcnt lgkmcnt(0)
            s_lshl_b32 s4, s2, 2
            s_add_u32 s4, s4, 0xF0000
            v_mov_b32 v{vBq}, s16
            v_mov_b32 v{vBq+1}, s4
            s_mov_b64 exec, 1
            """)
            self.issue("SK", f"buffer_store_dword v{vBq}, v{vBq+1}, s[{SW}:{SW+3}], 0 offen sc1")
            a("s_mov_b64 exec, -1")
        (None if o["st4"] else self.stamp("prol"))
        if o["st3"]:
            self.wait("Q0"); self.stamp("Q0land")
        self.wait("X")
        if o["st3"]: self.stamp("Xland")
        for i in range(4):
            a(f"v_perm_b32 v{vT+2*i}, v{vX+i}, v{vX+i}, s32")
            a(f"v_perm_b32 v{vT+2*i+1}, v{vX+i}, v{vX+i}, s63")
        a(f"""
        ds_write_b128 v{vU+16}, {r4(vT)} offset:{XL}
        ds_write_b128 v{vU+16}, {r4(vT+4)} offset:{XL+16}
        """)
        fill("Q4")
        a(f"""
        s_waitcnt lgkmcnt(0)
        s_barrier
        ds_read_b128 {r4(vS)}, v{vU+8} offset:{XL}
        ds_read_b32 v{vS+4}, v{vU+9} offset:{XL+512}
        ds_read_b128 {r4(vS+8)}, v{vU+10} offset:{XL}
        ds_read_b128 {r4(vS+12)}, v{vU+10} offset:{XL+16}
        ds_read_b32 v{vS+5}, v{vU+11} offset:{XL+256}
        ds_read_b32 v{vS+6}, v{vU+12} offset:{XL}
        ds_read_b32 v{vS+7}, v{vU+12} offset:{XL+128}
        s_add_u32 s{sTAG}, s{sTAG}, 1
        s_and_b32 s{sTAG}, s{sTAG}, 0xff
        s_getreg_b32 s{sXE}, hwreg(HW_REG_XCC_ID, 0, 4)
        s_lshl_b32 s{sXE}, s{sXE}, 8
        s_add_u32 s{sXE}, s{sXE}, s{sTAG}
        s_waitcnt lgkmcnt(5)
        """)
        nb = [0]
        def l8(lbl, xreg, acc, first, dowait=True):
            B = vT + 4 * (nb[0] % 4); nb[0] += 1
            for j in range(4): a(f"v_and_b32 v{B+j}, v{xreg}, v{vM[j]}")
            if dowait: self.wait(lbl)
            a(f"v_mfma_f32_16x16x32_bf16 {r4(acc)}, {r4(dst[lbl])}, {r4(B)}, {'0' if first else r4(acc)}")
        for t in range(5): l8(f"Q{t}", vS + t, vAq, t == 0, False)
        self.wait("GW")
        for i in range(4):
            a(f"""
            v_lshlrev_b32 v{vU}, 16, v{vX+i}
            v_and_b32 v{vU+1}, 0xffff0000, v{vX+i}
            v_lshlrev_b32 v{vU+2}, 16, v{vX+4+i}
            v_and_b32 v{vU+3}, 0xffff0000, v{vX+4+i}
            v_pk_mul_f32 {r2(vU)}, {r2(vU)}, {r2(vU+2)}
            v_cvt_pk_bf16_f32 v{vU}, v{vU}, v{vU+1}
            v_and_b32 v{vU+1}, 0xffff0000, v{vU}
            v_lshlrev_b32 v{vU}, 16, v{vU}
            """)
            if i == 0: a(f"v_pk_mul_f32 {r2(vU+4)}, {r2(vU)}, 1.0 op_sel_hi:[1,0]")
            else: a(f"v_pk_add_f32 {r2(vU+4)}, {r2(vU+4)}, {r2(vU)}")
        for i in range(4): a(f"ds_write_b32 v{vU+13}, v{vAq+i} offset:{P1+32*i}")
        a(f"v_add_f32 v{vU+4}, v{vU+4}, v{vU+5}")
        for r in (1, 2, 4, 8): a(f"v_add_f32_dpp v{vU+4}, v{vU+4}, v{vU+4} row_ror:{r} {DPP}")
        a(f"""
        v_lshrrev_b32 v{vU+1}, 4, v0
        v_lshlrev_b32 v{vU+1}, 2, v{vU+1}
        ds_write_b32 v{vU+1}, v{vU+4} offset:{GS}
        s_lshl_b32 s4, s2, 10
        s_add_u32 s4, s4, {RA}
        v_lshl_add_u32 v{vFA}, v{vL}, 4, s4
        s_waitcnt lgkmcnt(0)
        s_barrier
        """)
        def pubA(lo, hi, wave, name, tg=None):
            L = self.lab(name)
            mask = ((1 << hi) - 1) ^ ((1 << lo) - 1)
            a(f"""
            s_cmp_lg_u32 s{sJ}, {wave}
            s_cbranch_scc1 {L}
            s_mov_b32 exec_lo, {mask & 0xffffffff:#x}
            s_mov_b32 exec_hi, {mask >> 32:#x}
            v_lshrrev_b32 v{vU}, 4, v{vL}
            v_lshlrev_b32 v{vU}, 11, v{vU}
            v_and_b32 v{vU+1}, 15, v{vL}
            v_lshl_add_u32 v{vU}, v{vU+1}, 4, v{vU}
            """)
            tg = tg or [vAO, vAO + 4, vBq, vPoll, vU + 4, vU + 8, vU + 20, vU + 24]
            for p in range(8): a(f"ds_read_b128 {r4(tg[p])}, v{vU} offset:{P1+256*p}")
            a("s_waitcnt lgkmcnt(0)")
            for p in range(1, 8): pkadd(tg[0], tg[0], tg[p])
            tagins(tg[0])
            if name == "qpub":
                a(f"v_and_b32 v{tg[0]}, 0xfffff000, v{tg[0]}"); a(f"v_or_b32 v{tg[0]}, s{sXE}, v{tg[0]}")
            a(f"""
            s_branch {L}s
            {L}:
            s_mov_b64 exec, 0
            {L}s:
            """)
            dual(name, f"buffer_store_dwordx4 {r4(tg[0])}, v{vFA}, s[{SW}:{SW+3}], 0 offen", name == "gpub")
        pubA(0, 16, 3, "qpub")
        (None if o["st4"] else self.stamp("qpub"))
        more(o["pre_qp"])
        for k in range(9):
            l8(f"G{k}", vS + 8 + k if k < 8 else vS + 5, vAg, k == 0)
            fill(f"G{k}")
            if k == 2:
                a(f"""
                v_mov_b32 v{vU}, 0
                ds_read_b128 {r4(vU+4)}, v{vU} offset:{GS}
                ds_read_b32 v{vU+8}, v{vU} offset:{GS+16}
                s_waitcnt lgkmcnt(0)
                v_pk_add_f32 {r2(vU+4)}, {r2(vU+4)}, {r2(vU+6)}
                v_add_f32 v{vU}, v{vU+4}, v{vU+5}
                v_add_f32 v{vU}, v{vU}, v{vU+8}
                v_cvt_pk_bf16_f32 v{vU}, v{vU}, v{vU}
                v_lshlrev_b32 v{vU}, 16, v{vU}
                v_mul_f32 v{vU}, {f2u(-1.4426950408889634):#x}, v{vU}
                v_exp_f32 v{vU}, v{vU}
                v_add_f32 v{vU}, 1.0, v{vU}
                v_rcp_f32 v{vU}, v{vU}
                v_cvt_pk_bf16_f32 v{vU}, v{vU}, v{vU}
                v_lshlrev_b32 v{vG}, 16, v{vU}
                v_sub_f32 v{vU}, 1.0, v{vG}
                v_cvt_pk_bf16_f32 v{vU}, v{vU}, v{vU}
                v_lshlrev_b32 v{vOMG}, 16, v{vU}
                """)
            if k == 5:
                a(f"""
                s_lshl_b32 s4, s{sJ}, 16
                s_lshl_b32 s5, s{sG}, 12
                s_add_u32 s4, s4, s5
                s_add_u32 s4, s4, {RA}
                v_lshrrev_b32 v{vU}, 4, v{vL}
                v_lshlrev_b32 v{vU}, 10, v{vU}
                v_and_b32 v{vU+1}, 15, v{vL}
                v_lshl_add_u32 v{vU}, v{vU+1}, 4, v{vU}
                v_add_u32 v{vQa}, s4, v{vU}
                s_xor_b32 s5, s{sG}, 1
                s_lshl_b32 s5, s5, 12
                s_add_u32 s5, s5, {RA}
                v_bfe_u32 v{vU}, v0, 2, 2
                v_lshlrev_b32 v{vU}, 16, v{vU}
                v_and_b32 v{vU+1}, 3, v0
                v_lshl_add_u32 v{vU}, v{vU+1}, 10, v{vU}
                v_add_u32 v{vQb}, s5, v{vU}
                """)
        for k in range(2):
            l8(f"R{k}", vS + 6 + k, vAr, k == 0)
            if k == 1: self.gdone = True
            fill(f"R{k}")
        for i in range(4): a(f"ds_write_b32 v{vU+14}, v{vAg+i} offset:{P1+32*i}")
        a(f"""
        v_mul_u32_u24 v{vRS}, 1821, v0
        v_lshrrev_b32 v{vRS}, 16, v{vRS}
        v_mul_u32_u24 v{vCH}, 36, v{vRS}
        v_sub_u32 v{vCH}, v0, v{vCH}
        v_mul_u32_u24 v{vPO}, {6*1152}, v{vRS}
        v_lshl_add_u32 v{vPO}, v{vCH}, 4, v{vPO}
        v_add_u32 v{vGU}, 4608, v{vPO}
        """)
        for i in range(4): a(f"ds_write_b32 v{vU+15}, v{vAr+i} offset:{P1+6144+32*i}")
        a(f"""
        s_bfe_u32 s4, s2, 0x10006
        s_lshl1_add_u32 s4, s{sC6}, s4
        s_mul_i32 s4, s4, {32*1152}
        v_add_u32 v{vPD}, s4, v{vPO}
        s_lshr_b32 s5, s{sC6}, 3
        s_lshl_b32 s5, s5, 4
        s_and_b32 s6, s{sC6}, 7
        s_add_u32 s5, s5, s6
        s_bfe_u32 s6, s2, 0x10006
        s_lshl3_add_u32 s5, s6, s5
        s_mul_i32 s5, s5, {4*1152}
        s_add_u32 s5, s5, {(4096-2)*1152}
        v_lshl_add_u32 v{vPD2}, v{vCH}, 4, s5
        v_cmp_gt_u32 vcc, 5, v{vRS}
        v_cmp_gt_u32 s[4:5], 6, v{vRS}
        v_bfrev_b32 v{vU}, -2
        v_cndmask_b32 v{vPD2}, v{vPD2}, v{vPD}, vcc
        v_cndmask_b32 v{vPD}, v{vU}, v{vPD}, s[4:5]
        v_cndmask_b32 v{vPD2}, v{vU}, v{vPD2}, s[4:5]
        v_mul_u32_u24 v{vU}, 1152, v{vRS}
        v_lshl_add_u32 v{vCH}, v{vCH}, 5, v{vU}
        v_mul_u32_u24 v{vRS}, 12, v{vRS}
        v_add_u32 v{vRS}, {HL}, v{vRS}
        """)
        (None if o["st4"] else self.stamp("gpub"))
        more(o["pre_g"])
        if o["pts"]:
            a(f"""
            s_lshr_b32 s4, s2, 7
            s_mul_i32 s4, s4, {72 // CG}
            s_mul_i32 s5, s{sJ}, {(72 // CG + 3) // 4}
            s_add_u32 s4, s4, s5
            s_mul_i32 s4, s4, {128 * CG * 16}
            s_and_b32 s5, s2, 127
            s_mul_i32 s5, s5, {CG * 16}
            s_add_u32 s4, s4, s5
            s_add_u32 s4, s4, {FB}
            s_add_u32 s4, s60, s4
            s_addc_u32 s5, s61, 0
            """)
            for i in range((72 // CG + 3) // 4): a(f"s_load_dword s33, s[4:5], {128*CG*16*i} {'glc' if o['pts'] == 2 else ''}")
        if o["cpf"]:
            a(f"""
            s_getpc_b64 s[4:5]
            s_lshr_b32 s6, s101, 3
            s_lshl2_add_u32 s6, s6, s{sJ}
            s_lshl_b32 s6, s6, 6
            s_add_u32 s4, s4, s6
            s_addc_u32 s5, s5, 0
            s_load_dword s33, s[4:5], 0
            """)
        qload = f"buffer_load_dwordx4 {r4(vPoll)}, v{vQa}, s[{SW}:{SW+3}], 0 offen sc1"
        for k in range(o["qp"] + 1):
            self.wait(f"K{k}"); fill(f"K{k}")
        a(f"s_cmp_eq_u32 s{sJ}, 0"); a("s_cselect_b64 exec, 0xffff, 0")
        self.issue("QP2", f"buffer_load_dwordx4 {r4(vAO)}, v{vQb}, s[{SW}:{SW+3}], 0 offen sc1")
        a("s_mov_b64 exec, -1")
        self.issue("QP", qload.replace("sc1", o["first"]))
        lastK = min(15, self.ip - 1 - big.index("K0"))
        for k in range(o["qp"] + 1, lastK + 1):
            self.wait(f"K{k}"); fill(f"K{k}")
        more(o["pre_q"])
        a(f"""
        v_bfe_u32 v{vU+1}, v0, 3, 1
        v_lshlrev_b32 v{vU+1}, 9, v{vU+1}
        v_bfe_u32 v{vU+2}, v0, 4, 2
        v_lshl_add_u32 v{vU+1}, v{vU+2}, 7, v{vU+1}
        v_and_b32 v{vU+2}, 3, v0
        v_lshl_add_u32 v{vU+1}, v{vU+2}, 5, v{vU+1}
        """)
        self.wait("QP")
        retry_loop("q", [qload], [vPoll], vU)
        a(f"""
        ds_write_b128 v{vV}, {r4(vPoll)} offset:{QL}
        v_cmp_gt_u32 vcc, 16, v0
        v_xor_b32 v{vU}, s{sXE}, v{vPoll}
        v_xor_b32 v{vU+2}, s{sTAG}, v{vAO+1}
        v_bitop3_b32 v{vU+2}, v{vAO+2}, s{sTAG}, v{vU+2} bitop3:0xbe
        v_bitop3_b32 v{vU+2}, v{vAO+3}, s{sTAG}, v{vU+2} bitop3:0xbe
        v_and_b32 v{vU+2}, 0xff, v{vU+2}
        v_bitop3_b32 v{vU+2}, v{vAO}, s{sXE}, v{vU+2} bitop3:0xbe
        v_cndmask_b32 v{vU+2}, 0, v{vU+2}, vcc
        v_or_b32 v{vU}, v{vU}, v{vU+2}
        v_and_b32 v{vU}, 0xfff, v{vU}
        v_cmp_ne_u32 vcc, 0, v{vU}
        v_lshlrev_b32 v{vU+2}, 2, v{vJ}
        s_cmp_lg_u64 vcc, 0
        s_cselect_b32 s4, 1, 0
        v_mov_b32 v{vU}, s4
        ds_write_b32 v{vU+2}, v{vU} offset:{XF}
        v_mov_b32 v{vU+2}, 0
        s_waitcnt lgkmcnt(0)
        s_barrier
        ds_read_b128 {r4(vAO)}, v{vU+2} offset:{XF}
        """)
        qd = [vT, vT + 8, vU + 8, vU + 16]
        for k in range(4):
            a(f"ds_read_b128 {r4(qd[k])}, v{vU+1} offset:{QL+1024*k}")
            a(f"ds_read_b128 {r4(qd[k]+4)}, v{vU+1} offset:{QL+1024*k+16}")
        a("s_waitcnt lgkmcnt(4)")
        a(f"v_or3_b32 v{vAO}, v{vAO}, v{vAO+1}, v{vAO+2}")
        a(f"v_or_b32 v{vAO}, v{vAO}, v{vAO+3}")
        for i in range(0, 8, 2): a(f"v_pk_add_f32 {r2(qd[0]+i)}, {r2(qd[0]+i)}, {r2(qd[1]+i)}")
        a(f"v_cmp_eq_u32 s[{sPL}:{sPL+1}], 0, v{vAO}")
        a("s_waitcnt lgkmcnt(0)")
        for i in range(0, 8, 2): a(f"v_pk_add_f32 {r2(qd[2]+i)}, {r2(qd[2]+i)}, {r2(qd[3]+i)}")
        for i in range(0, 8, 2): a(f"v_pk_add_f32 {r2(qd[0]+i)}, {r2(qd[0]+i)}, {r2(qd[2]+i)}")
        for i in range(4): a(f"v_cvt_pk_bf16_f32 v{vBq+i}, v{qd[0]+2*i}, v{qd[0]+2*i+1}")
        pubA(16, 64, 2, "gpub", [vAO, vAO + 4, vT, vT + 4, vT + 8, vT + 12, vU + 4, vU + 8])
        if o["stamps"] and o["cnt"] == 3:
            r = self.sreg(self.nst); self.names.append("xretry"); self.nst += 1
            a(f"s_and_b32 s4, s{sPL}, 100"); a(f"s_add_u32 s{r}, s16, s4"); a(f"s_addc_u32 s{r+1}, s17, 0")
        (None if o["st4"] else self.stamp("qcons"))
        if o["round_scores"]: a(f"s_mov_b32 s{sC}, {f2u(128 ** -0.5):#x}")
        def qk_fin(t):
            D = vT + 4 * (t % 4)
            a(f"v_mov_b32_dpp v{vS+t}, v{D} quad_perm:[0,0,0,0] {DPP}")
            for u in range(1, 4): a(f"v_add_f32_dpp v{vS+t}, v{D+u}, v{vS+t} quad_perm:[{u},{u},{u},{u}] {DPP}")
            if t & 1:
                t0 = t - 1
                if o["round_scores"]:
                    a(f"""
                    v_cvt_pk_bf16_f32 v{vU}, v{vS+t0}, v{vS+t0+1}
                    v_lshlrev_b32 v{vS+t0}, 16, v{vU}
                    v_and_b32 v{vS+t0+1}, 0xffff0000, v{vU}
                    v_mul_f32 v{vS+t0}, s{sC}, v{vS+t0}
                    v_mul_f32 v{vS+t0+1}, s{sC}, v{vS+t0+1}
                    v_cvt_pk_bf16_f32 v{vU}, v{vS+t0}, v{vS+t0+1}
                    v_lshlrev_b32 v{vS+t0}, 16, v{vU}
                    v_and_b32 v{vS+t0+1}, 0xffff0000, v{vU}
                    """)
                if t == 1: a(f"v_max_f32 v{vU+1}, v{vS}, v{vS+1}")
                else: a(f"v_max3_f32 v{vU+1}, v{vU+1}, v{vS+t0}, v{vS+t0+1}")
        for t in range(16):
            if t > lastK: self.wait(f"K{t}")
            D = vT + 4 * (t % 4)
            a(f"v_mfma_f32_16x16x32_bf16 {r4(D)}, {r4(dst[f'K{t}'])}, {r4(vBq)}, 0")
            if t == 15: self.kdone = True
            if t > lastK: fill(f"K{t}")
            if t >= 2: qk_fin(t - 2)
        more(o["pre_s"])
        a(f"""
        v_bfe_u32 v{vU+2}, v0, 3, 1
        v_lshlrev_b32 v{vU+2}, 6, v{vU+2}
        v_lshrrev_b32 v{vU+3}, 4, v0
        v_lshl_add_u32 v{vK}, v{vU+3}, 2, v{vU+2}
        """)
        qk_fin(14); qk_fin(15)
        cexp = 1.4426950408889634 if o["round_scores"] else 128 ** -0.5 * 1.4426950408889634
        a(f"""
        ds_write_b32 v{vK}, v{vU+1} offset:{MX}
        s_mov_b32 s{sC}, {f2u(cexp):#x}
        s_waitcnt lgkmcnt(0)
        s_barrier
        """)
        for i in range(4): a(f"ds_read_b128 {r4(vT+4*i)}, v{vU+2} offset:{MX+16*i}")
        a("s_waitcnt lgkmcnt(0)")
        a(f"v_max3_f32 v{vT}, v{vT}, v{vT+1}, v{vT+2}")
        for t in range(3, 15, 2): a(f"v_max3_f32 v{vT}, v{vT}, v{vT+t}, v{vT+t+1}")
        a(f"v_max_f32 v{vMx}, v{vT}, v{vT+15}")
        a(f"v_and_b32 v{vMx}, v{vMx}, v{vTM}")
        a(f"v_mul_f32 v{vMc}, s{sC}, v{vMx}")
        for t in range(16): a(f"v_fma_f32 v{vS+t}, v{vS+t}, s{sC}, -v{vMc}")
        for t in range(16): a(f"v_exp_f32 v{vS+t}, v{vS+t}")
        a(f"v_pk_add_f32 {r2(vT)}, {r2(vS)}, {r2(vS+2)}")
        for t in range(4, 16, 2): a(f"v_pk_add_f32 {r2(vT)}, {r2(vT)}, {r2(vS+t)}")
        a(f"v_add_f32 v{vT}, v{vT}, v{vT+1}")
        a(f"ds_write_b32 v{vK}, v{vT} offset:{LS}")
        self.stamp("smax")
        Lha = self.lab("haddr")
        hl = [f"buffer_load_dwordx4 {r4(vAO)}, v{vQa}, s[{SW}:{SW+3}], 0 offen sc1",
              f"buffer_load_dwordx4 {r4(vAO+4)}, v{vQb}, s[{SW}:{SW+3}], 0 offen sc1"]
        a(f"""
        s_cmp_lg_u32 s{sJ}, 3
        s_cbranch_scc1 {Lha}
        s_bfe_u32 s4, s2, 0x10006
        s_lshl_b32 s4, s4, 7
        s_add_u32 s4, s4, {RA+256}
        v_and_b32 v{vU}, 3, v0
        v_lshlrev_b32 v{vU}, 16, v{vU}
        v_bfe_u32 v{vU+1}, v0, 5, 1
        v_lshl_add_u32 v{vU}, v{vU+1}, 8, v{vU}
        v_add_u32 v{vU+1}, 1, v{vU+1}
        {"" if o["mix"] else f"v_mov_b32 v{vU+1}, 0"}
        v_xor_b32 v{vU+1}, s{sC6}, v{vU+1}
        v_lshl_add_u32 v{vU}, v{vU+1}, 10, v{vU}
        v_bfe_u32 v{vU+1}, v0, 2, 3
        v_lshl_add_u32 v{vU}, v{vU+1}, 4, v{vU}
        v_add_u32 v{vQa}, s4, v{vU}
        s_and_b32 s4, s{sC6}, 0x38
        s_lshl_b32 s4, s4, 10
        s_and_b32 s5, s{sC6}, 7
        s_bfe_u32 s6, s2, 0x10006
        s_lshl3_add_u32 s5, s6, s5
        s_lshl_b32 s5, s5, 4
        s_add_u32 s4, s4, s5
        s_add_u32 s4, s4, {RA+768}
        v_bfe_u32 v{vU}, v0, 2, 2
        v_lshlrev_b32 v{vU}, 16, v{vU}
        v_and_b32 v{vU+1}, 3, v0
        v_lshl_add_u32 v{vU}, v{vU+1}, 11, v{vU}
        v_bfe_u32 v{vU+1}, v0, 4, 1
        v_lshl_add_u32 v{vU}, v{vU+1}, 10, v{vU}
        v_add_u32 v{vQb}, s4, v{vU}
        {Lha}:
        """)
        def hfin():
            Lh = self.lab("hfin")
            a(f"""
            s_cmp_lg_u32 s{sJ}, 3
            s_cbranch_scc1 {Lh}
            s_waitcnt vmcnt({len(self.vm) - self.hmark})
            """)
            retry_loop("h", hl, [vAO, vAO + 4], vU)
            for i in range(4): a(f"v_add_f32_dpp v{vAO+i}, v{vAO+i}, v{vAO+i} quad_perm:[1,0,3,2] {DPP}")
            for i in range(4): a(f"v_add_f32_dpp v{vAO+4+i}, v{vAO+4+i}, v{vAO+4+i} row_ror:1 {DPP}")
            for i in range(4): a(f"v_add_f32_dpp v{vAO+i}, v{vAO+i}, v{vAO+i} quad_perm:[2,3,0,1] {DPP}")
            for r in (2, 4, 8):
                for i in range(4): a(f"v_add_f32_dpp v{vAO+4+i}, v{vAO+4+i}, v{vAO+4+i} row_ror:{r} {DPP}")
            a(f"""
            v_bfe_u32 v{vU+1}, v0, 5, 1
            v_mul_u32_u24 v{vU+1}, 192, v{vU+1}
            v_bfe_u32 v{vU+2}, v0, 2, 3
            v_lshl_add_u32 v{vU+1}, v{vU+2}, 4, v{vU+1}
            ds_write_b128 v{vU+1}, {r4(vAO)} offset:{HP}
            v_bfe_u32 v{vU+1}, v0, 4, 1
            v_mul_u32_u24 v{vU+1}, 192, v{vU+1}
            ds_write_b128 v{vU+1}, {r4(vAO+4)} offset:{HP+128}
            v_min_u32 v{vU+1}, 35, v{vL}
            v_lshlrev_b32 v{vU+2}, 2, v{vU+1}
            v_add_u32 v{vU+2}, {HP}, v{vU+2}
            s_waitcnt lgkmcnt(0)
            ds_read2_b32 {r2(vU+4)}, v{vU+2} offset0:0 offset1:48
            v_lshlrev_b32 v{vU+1}, 1, v{vU+1}
            s_waitcnt lgkmcnt(0)
            v_cvt_pk_bf16_f32 v{vU+4}, v{vU+4}, v{vU+5}
            v_and_b32 v{vU+5}, 0xffff0000, v{vU+4}
            v_lshlrev_b32 v{vU+4}, 16, v{vU+4}
            v_max_f32 v{vU+4}, 0, v{vU+4}
            v_mul_f32 v{vU+4}, v{vU+4}, v{vU+5}
            v_cvt_pk_bf16_f32 v{vU+4}, v{vU+4}, v{vU+4}
            ds_write_b16 v{vU+1}, v{vU+4} offset:{HL}
            {Lh}:
            """)
        hcheck = None
        for t in range(16):
            B = vT + 4 * (t % 2)
            a(f"v_cvt_pk_bf16_f32 v{vU}, v{vS+t}, v{vS+t}")
            for j in range(4): a(f"v_and_b32 v{B+j}, v{vU}, v{vM[j]}")
            self.wait(f"V{t}")
            a(f"v_mfma_f32_16x16x32_bf16 {r4(vAcc)}, {r4(dst[f'V{t}'])}, {r4(B)}, {'0' if t == 0 else r4(vAcc)}")
            fill(f"V{t}", min(W, 15 + o["Wt"] - t))
            if o["st4"] and t in (1, 2, 5, 8, 9, 12): self.stamp(f"V{t}")
            if t == o["hp"]:
                a(f"s_cmp_eq_u32 s{sJ}, 3"); a("s_cselect_b64 exec, -1, 0")
                for i, ld in enumerate(hl): self.issue(f"H{i}", ld.replace("sc1", o["first"]))
                a("s_mov_b64 exec, -1")
                self.hmark = len(self.vm)
                hcheck = min(15, self.ip - big.index("V0"))
            if t == 3:
                a(f"""
                v_bfe_u32 v{vK}, v0, 3, 1
                v_lshlrev_b32 v{vK}, 9, v{vK}
                v_bfe_u32 v{vU+1}, v0, 4, 2
                v_lshl_add_u32 v{vK}, v{vU+1}, 7, v{vK}
                v_and_b32 v{vU+1}, 7, v0
                v_lshl_add_u32 v{vK}, v{vU+1}, 2, v{vK}
                v_lshl_add_u32 v{vK}, v{vJ}, 10, v{vK}
                s_lshl4_add_u32 s6, s{sG}, s{sS}
                s_mul_i32 s6, s6, 1152
                s_add_u32 s6, s6, {OB}
                v_lshl_add_u32 v{vX+4}, v{vL}, 4, s6
                s_mul_i32 s4, s{sG}, {16*1152}
                s_add_u32 s4, s4, {OB}
                v_and_b32 v{vX+5}, 15, v0
                v_mul_u32_u24 v{vX+5}, 1152, v{vX+5}
                v_add_u32 v{vX+5}, s4, v{vX+5}
                s_and_b32 s5, s{sS}, 7
                s_lshl_b32 s5, s5, 7
                s_lshr_b32 s4, s{sJ}, 1
                s_lshl_b32 s4, s4, 6
                s_add_u32 s4, s4, s5
                v_bfe_u32 v{vU+1}, v0, 4, 2
                v_lshl_add_u32 v{vX+6}, v{vU+1}, 4, v{vX+5}
                v_add_u32 v{vX+6}, s4, v{vX+6}
                s_bfe_u32 s4, s{sS}, 0x10002
                s_lshl_b32 s4, s4, 3
                v_add_u32 v{vX+5}, s4, v{vX+5}
                v_lshrrev_b32 v{vFA}, {CG.bit_length()-1}, v0
                v_mul_u32_u24 v{vFA}, {128*CG*16}, v{vFA}
                v_and_b32 v{vU+1}, {CG-1}, v0
                v_lshl_add_u32 v{vFA}, v{vU+1}, 4, v{vFA}
                s_and_b32 s4, s2, 127
                s_mul_i32 s4, s4, {CG*16}
                s_lshr_b32 s5, s2, 7
                s_mul_i32 s5, s5, {72*128*16}
                s_add_u32 s4, s4, s5
                s_add_u32 s4, s4, {FB}
                v_add_u32 v{vFA}, s4, v{vFA}
                """)
            if t == 4:
                a(f"""
                v_subrev_u32 v{vX+7}, {HL}, v{vRS}
                v_and_b32 v{vU+1}, 3, v0
                v_lshlrev_b32 v{vU+1}, 3, v{vU+1}
                v_lshl_add_u32 v{vX+7}, v{vX+7}, 4, v{vU+1}
                v_add_u32 v{vX+7}, {OLX}, v{vX+7}
                v_bfe_u32 v{vU+1}, v0, 2, 2
                s_mov_b32 s4, 0x02020202
                v_mul_lo_u32 v{vU+1}, v{vU+1}, s4
                v_add_u32 v{vU+1}, s32, v{vU+1}
                v_or_b32 v{vU+2}, v{vM[0]}, v{vM[2]}
                v_or_b32 v{vU+3}, v{vM[1]}, v{vM[3]}
                v_mov_b32 v{vU+4}, 0x0c0c0c0c
                v_bfi_b32 v{vBq+2}, v{vU+2}, v{vU+1}, v{vU+4}
                v_bfi_b32 v{vBq+3}, v{vU+3}, v{vU+1}, v{vU+4}
                s_lshr_b32 s5, s{sJ}, 1
                s_lshl_b32 s5, s5, 9
                s_add_u32 s5, s5, {OLX}
                v_lshl_add_u32 v{vX+3}, v{vL}, 3, s5
                """)
            if hcheck is not None and t == min(15, hcheck):
                hcheck = None
                if not o["hlate"]: hfin()
        assert hcheck is None
        for i in range(4): a(f"ds_write_b32 v{vK}, v{vAcc+i} offset:{OW+32*i}")
        a(f"""
        s_waitcnt lgkmcnt(0)
        s_barrier
        """)
        self.stamp("pvdone")
        if o["hlate"]:
            hfin(); assert o["obar"]
        Lo1 = self.lab("opub"); Lm = self.lab("mlpub")
        a(f"""
        s_cmp_eq_u32 s{sJ}, 2
        s_cbranch_scc1 {Lm}
        s_cmp_lg_u32 s{sJ}, 0
        s_cbranch_scc1 {Lo1}
        """)
        for jj in range(4): a(f"ds_read_b128 {r4(vT+4*jj)}, v{vV} offset:{OW+1024*jj}")
        a("s_waitcnt lgkmcnt(2)")
        pkadd(vT, vT, vT + 4)
        a("s_waitcnt lgkmcnt(0)")
        pkadd(vT + 8, vT + 8, vT + 12); pkadd(vT, vT, vT + 8)
        a(f"""
        s_branch {Lo1}t
        {Lm}:
        v_bfe_u32 v{vU+1}, v0, 3, 1
        v_lshlrev_b32 v{vU+1}, 6, v{vU+1}
        """)
        for i in range(4): a(f"ds_read_b128 {r4(vU+4+4*i)}, v{vU+1} offset:{LS+16*i}")
        a(f"v_add_u32 v{vX+4}, 1024, v{vX+4}")
        a("s_waitcnt lgkmcnt(0)")
        pkadd(vU + 4, vU + 4, vU + 8); pkadd(vU + 12, vU + 12, vU + 16); pkadd(vU + 4, vU + 4, vU + 12)
        a(f"""
        v_pk_add_f32 {r2(vU+4)}, {r2(vU+4)}, {r2(vU+6)}
        v_add_f32 v{vT+1}, v{vU+4}, v{vU+5}
        v_mov_b32 v{vT}, v{vMx}
        v_mov_b32_dpp v{vT+2}, v{vMx} row_shl:8 {DPP}
        v_mov_b32_dpp v{vT+3}, v{vT+1} row_shl:8 {DPP}
        s_mov_b64 exec, 1
        {Lo1}t:
        """)
        tagins(vT)
        a(f"""
        s_branch {Lo1}s
        {Lo1}:
        s_mov_b64 exec, 0
        {Lo1}s:
        """)
        dual("OP", f"buffer_store_dwordx4 {r4(vT)}, v{vX+4}, s[{SW}:{SW+3}], 0 offen", True)
        if o["obar"]: a("s_waitcnt lgkmcnt(0)"); a("s_barrier")
        (None if o["st4"] else self.stamp("opub"))
        def omk(st): return [f"buffer_load_dwordx4 {r4(st[0])}, v{vX+6}, s[{SW}:{SW+3}], 0 offen sc1",
                             f"buffer_load_dwordx2 {r2(st[0]+4)}, v{vX+5}, s[{SW}:{SW+3}], 0 offen offset:1024 sc1"]
        osets = [[R1 + 8 * d] for d in range(o["odepth"])]
        polled = False
        if o["oearly"]:
            polled = True
            a(f"s_bitcmp1_b32 s{sJ}, 0"); a("s_cselect_b64 exec, -1, 0")
            for i, ld in enumerate(omk(osets[0])): self.issue(f"OPL{i}", ld)
            a("s_mov_b64 exec, -1")
        fill("V15", o["post"])
        a(f"""
        ds_read2_b32 {r2(vX)}, v{vRS} offset0:0 offset1:1
        ds_read_b32 v{vX+2}, v{vRS} offset:8
        """)
        def flat_A(k, xsrc):
            p = k & 1; A = vU + 2 * p
            a(f"v_perm_b32 v{A}, v{xsrc+(k>>1)}, v{xsrc+(k>>1)}, v{vSel[2*p]}")
            a(f"v_perm_b32 v{A+1}, v{xsrc+(k>>1)}, v{xsrc+(k>>1)}, v{vSel[2*p+1]}")
            return A
        def flat_mfma(A, data, acc, first):
            a(f"v_mfma_f32_4x4x4_16b_bf16 {r4(acc)}, {r2(A)}, {r2(data)}, {'0' if first else r4(acc)}")
            a(f"v_mfma_f32_4x4x4_16b_bf16 {r4(acc+4)}, {r2(A)}, {r2(data+2)}, {'0' if first else r4(acc+4)}")
        vDA = vU + 8
        if o["dlate"]:
            a("s_waitcnt lgkmcnt(0)")
            assert self.ip == len(big) and polled
            for k in range(6):
                p = k & 1
                a(f"v_perm_b32 v{vDA+2*k}, v{vX+(k>>1)}, v{vX+(k>>1)}, v{vSel[2*p]}")
                a(f"v_perm_b32 v{vDA+2*k+1}, v{vX+(k>>1)}, v{vX+(k>>1)}, v{vSel[2*p+1]}")
        else:
            a("s_waitcnt lgkmcnt(0)")
            for k in range(6):
                A = flat_A(k, vX)
                self.wait(f"D{k}")
                flat_mfma(A, dst[f"D{k}"], vAD, k == 0)
                fill(f"D{k}", o["post"])
                if self.ip == len(big) and k >= o["opa"] and not polled:
                    polled = True
                    a(f"s_bitcmp1_b32 s{sJ}, 0"); a("s_cselect_b64 exec, -1, 0")
                    for i, ld in enumerate(omk(osets[0])): self.issue(f"OPL{i}", ld)
                    a("s_mov_b64 exec, -1")
            assert polled
            (None if o["st3"] else self.stamp("Ddone"))
            for i in range(0, 8): a(f"v_mul_f32 v{vAD+i}, v{vOMG}, v{vAD+i}")
        Lo2 = self.lab("ocons")
        a(f"""
        s_bitcmp0_b32 s{sJ}, 0
        s_cbranch_scc1 {Lo2}
        """)
        P = vS
        def ofin(st):
            a(f"v_and_b32 v{vBq}, v{st[0]+4}, v{vTM}")
            a(f"v_mov_b32 v{vBq+1}, v{st[0]+5}")
            a(f"v_pk_mul_f32 {r2(P)}, {r2(st[0])}, {r2(vG-1)} op_sel:[0,1] op_sel_hi:[1,1]")
            a(f"v_pk_mul_f32 {r2(P+2)}, {r2(st[0]+2)}, {r2(vG-1)} op_sel:[0,1] op_sel_hi:[1,1]")
        if o["oearly"]:
            assert o["odepth"] == 1
            Lx = self.lab("oex"); Lre = self.lab("oere"); OD = o["od"]
            self.wait("OPL1")
            tagchk(osets[0], vU + 4, 2)
            a(f"s_cbranch_vccz {Lx}d")
            if o["osel"] and OD > 1: a("s_mov_b64 exec, vcc")
            for _ in range(OD - 1):
                for ld in omk(osets[0]): a(ld)
            a(f"s_mov_b32 s7, {o['spin']}")
            a(f"{Lre}:")
            if o["osel"]: a("s_mov_b64 exec, vcc")
            for ld in omk(osets[0]): a(ld)
            if o["osel"]: a("s_mov_b64 exec, -1")
            a(f"s_waitcnt vmcnt({2*(OD-1)})")
            tagchk(osets[0], vU + 4, 2)
            a(f"s_cbranch_vccz {Lx}")
            a("s_sub_u32 s7, s7, 1"); a("s_cmp_lg_u32 s7, 0"); a(f"s_cbranch_scc1 {Lre}")
            a(f"s_branch {Lx}")
            a(f"{Lx}d:")
            if OD > 1:
                a("s_mov_b64 exec, 0")
                for _ in range(OD - 1):
                    for ld in omk(osets[0]): a(ld)
                a("s_mov_b64 exec, -1")
            a(f"{Lx}:")
            ofin(osets[0])
        else:
            pipe_poll("o", omk, osets, vU + 4, 1, ofin, o["osleep"], extra=2)
        (None if o["st3"] else self.stamp("opollok"))
        a(f"v_max_f32_dpp v{vU+4}, v{vBq}, v{vBq} row_ror:1 {DPP}")
        for r in (2, 4, 8): a(f"v_max_f32_dpp v{vU+4}, v{vU+4}, v{vU+4} row_ror:{r} {DPP}")
        a(f"""
        v_sub_f32 v{vBq}, v{vBq}, v{vU+4}
        v_mul_f32 v{vBq}, s{sC}, v{vBq}
        v_exp_f32 v{vBq}, v{vBq}
        v_mul_f32 v{P+4}, v{vBq}, v{vBq+1}
        v_pk_mul_f32 {r2(P)}, {r2(P)}, {r2(vBq)} op_sel_hi:[1,0]
        v_pk_mul_f32 {r2(P+2)}, {r2(P+2)}, {r2(vBq)} op_sel_hi:[1,0]
        """)
        for r in (1, 2, 4, 8):
            for i in (4, 0, 1, 2, 3): a(f"v_add_f32_dpp v{P+i}, v{P+i}, v{P+i} row_ror:{r} {DPP}")
            if r == 8: self.l.insert(len(self.l) - 2, f"    v_rcp_f32 v{vBq}, v{P+4}")
        a(f"""
        v_pk_mul_f32 {r2(P)}, {r2(P)}, {r2(vBq)} op_sel_hi:[1,0]
        v_pk_mul_f32 {r2(P+2)}, {r2(P+2)}, {r2(vBq)} op_sel_hi:[1,0]
        v_cvt_pk_bf16_f32 v{P}, v{P}, v{P+1}
        v_cvt_pk_bf16_f32 v{P+1}, v{P+2}, v{P+3}
        v_perm_b32 v{P+2}, v{P+1}, v{P}, v{vBq+2}
        v_perm_b32 v{P+3}, v{P+1}, v{P}, v{vBq+3}
        ds_write_b64 v{vX+3}, {r2(P+2)}
        s_branch {Lo2}x
        {Lo2}:
        """)
        if o["od"] > 1:
            a("s_mov_b64 exec, 0")
            for i in range(o["od"] - 1):
                for j, ld in enumerate(omk(osets[0])): self.issue(f"ODM{i}{j}", ld)
            a("s_mov_b64 exec, -1")
        a(f"""
        {Lo2}x:
        v_cmp_gt_u32 vcc, 72, v0
        s_waitcnt lgkmcnt(0)
        s_barrier
        """)
        for k in range(3): a(f"ds_read2_b64 {r4(vT+4*k)}, v{vX+7} offset0:{8*k} offset1:{8*k+4}")
        (None if o["st3"] else self.stamp("B7"))
        if o["dlate"]:
            for k in range(6):
                self.wait(f"D{k}")
                flat_mfma(vDA + 2 * k, dst[f"D{k}"], vAD, k == 0)
            (None if o["st3"] else self.stamp("Ddone"))
            for k in range(6):
                if k % 2 == 0: a(f"s_waitcnt lgkmcnt({0 if o['stamps'] else 2 - k // 2})")
                self.wait(f"O{k}")
                flat_mfma(vT + 2 * k, dst[f"O{k}"], vAO, k == 0)
                if k == 3:
                    for i in range(0, 8, 2): a(f"v_pk_mul_f32 {r2(vAD+i)}, {r2(vAD+i)}, {r2(vOMG)} op_sel_hi:[1,0]")
            for i in range(0, 8, 2): a(f"v_pk_add_f32 {r2(vAD+i)}, {r2(vAD+i)}, {r2(vAO+i)}")
        else:
            for k in range(6):
                if k % 2 == 0: a(f"s_waitcnt lgkmcnt({0 if o['stamps'] else 2 - k // 2})")
                self.wait(f"O{k}")
                flat_mfma(vT + 2 * k, dst[f"O{k}"], vAD, False)
        Lf = self.lab("fpub")
        a(f"""
        ds_write_b128 v{vCH}, {r4(vAD)} offset:{LF}
        ds_write_b128 v{vCH}, {r4(vAD+4)} offset:{LF+16}
        s_waitcnt lgkmcnt(0)
        s_barrier
        s_and_saveexec_b64 s[4:5], vcc
        s_cbranch_execz {Lf}
        """)
        tg = [vT, vT + 4, vT + 8, vT + 12, vT + 16, vU + 4]
        for p in range(6): a(f"ds_read_b128 {r4(tg[p])}, v{vV} offset:{LF+1152*p}")
        a("s_waitcnt lgkmcnt(4)"); pkadd(tg[0], tg[0], tg[1])
        a("s_waitcnt lgkmcnt(2)"); pkadd(tg[2], tg[2], tg[3])
        a("s_waitcnt lgkmcnt(0)"); pkadd(tg[4], tg[4], tg[5]); pkadd(tg[0], tg[0], tg[2]); pkadd(tg[0], tg[0], tg[4])
        tagins(vT)
        a(f"""
        buffer_store_dwordx4 {r4(vT)}, v{vFA}, s[{SW}:{SW+3}], 0 offen sc1
        {Lf}:
        s_mov_b64 exec, s[4:5]
        """)
        self.stamp("fpub")
        NL = CG // 2
        if o["rorig"]: a("s_mov_b32 s2, s101")
        a(f"""
        s_cmpk_ge_u32 s2, {R}
        s_cbranch_scc1 L_fin
        s_mul_i32 s4, s2, {128*CG*16}
        s_add_u32 s4, s4, {FB}
        """)
        if CG == 4:
            a(f"""
            v_and_b32 v{vQa}, 15, v0
            v_lshlrev_b32 v{vQa}, 6, v{vQa}
            v_bfe_u32 v{vQb}, v0, 4, 2
            v_lshl_add_u32 v{vQa}, v{vQb}, 4, v{vQa}
            v_lshl_add_u32 v{vQa}, v{vJ}, 10, v{vQa}
            v_add_u32 v{vQa}, s4, v{vQa}
            s_movk_i32 s33, 0x1000
            """)
            offs = [("0", 0), ("s33", 0)]
        elif CG == 2:
            a(f"""
            v_and_b32 v{vQa}, 15, v0
            v_lshlrev_b32 v{vQa}, 5, v{vQa}
            v_bfe_u32 v{vQb}, v0, 4, 1
            v_lshl_add_u32 v{vQa}, v{vQb}, 4, v{vQa}
            v_lshrrev_b32 v{vQb}, 5, v0
            v_lshl_add_u32 v{vQa}, v{vQb}, 9, v{vQa}
            v_add_u32 v{vQa}, s4, v{vQa}
            """)
            offs = [("0", 0)]
        else:
            a(f"""
            v_and_b32 v{vQa}, 15, v0
            v_lshlrev_b32 v{vQa}, 7, v{vQa}
            v_bfe_u32 v{vQb}, v0, 4, 2
            v_lshl_add_u32 v{vQa}, v{vQb}, 4, v{vQa}
            v_lshl_add_u32 v{vQa}, v{vJ}, 11, v{vQa}
            v_add_u32 v{vQa}, s4, v{vQa}
            s_movk_i32 s33, 0x2000
            """)
            offs = [("0", 0), ("s33", 0), ("0", 64), ("s33", 64)]
        def fmk(st): return [f"buffer_load_dwordx4 {r4(st[k])}, v{vQa}, s[{SW}:{SW+3}], {offs[k][0]} offen offset:{offs[k][1]} sc1" for k in range(NL)]
        fsets = [[R2 + 16 * d + 4 * k for k in range(NL)] for d in range(o["fdepth"])]
        F = vS
        NF = 8 if CG == 8 else 4
        def ffin(st):
            if CG == 4: pkadd(F, st[0], st[1])
            elif CG == 8: pkadd(F, st[0], st[1]); pkadd(F + 4, st[2], st[3])
            else:
                for i in range(4): a(f"v_add_f32_dpp v{F+i}, v{st[0]+i}, v{st[0]+i} row_ror:1 {DPP}")
        if o["fx"]:
            lds_ = fmk(fsets[0])
            for ld in lds_: a(ld)
            a(f"""
            v_lshrrev_b32 v{vU}, 4, v0
            v_lshlrev_b32 v{vU}, 4, v{vU}
            s_mov_b32 s{SX}, s56
            s_mov_b32 s{SX+1}, s57
            s_mul_i32 s4, s2, {CG*8}
            v_mov_b32 v{vU+2}, s{sTAG}
            v_mov_b32 v{vU+3}, 0
            """)
            if CG == 8:
                a(f"""
                v_and_b32 v{vU+1}, 3, v0
                v_lshrrev_b32 v{vU+10}, 4, v0
                v_lshl_add_u32 v{vU+1}, v{vU+10}, 2, v{vU+1}
                v_lshl_add_u32 v{vU+1}, v{vU+1}, 3, s4
                """)
            else:
                a(f"v_lshl_add_u32 v{vU+1}, v0, 3, s4")
            pass
            sel_poll("f", [([lds_[k]], fsets[0][k], 4) for k in range(NL)], vU + 4, o["fx"])
            ffin(fsets[0])
        elif True:
            assert False, "only fx path maintained"
        elif o["fsel"]:
            assert CG == 4
            for k in range(2): a(fmk(fsets[0])[k])
            D = o["fdepth"]
            for k in range(2):
                mk1 = lambda st, k=k: [f"buffer_load_dwordx4 {r4(st[0])}, v{vQa}, s[{SW}:{SW+3}], {offs[k][0]} offen offset:{offs[k][1]} sc1"]
                Lq = self.lab("fq")
                a(f"s_waitcnt vmcnt({1 - k})" if k == 0 else "s_nop 0")
                sets1 = [[R2 + 32 + 16 * k + 4 * d] for d in range(D)]
                if k == 1: a("s_waitcnt vmcnt(%d)" % 0) if False else None
                tagchk([fsets[0][k]], vU + 4)
                a(f"s_cbranch_vccz {Lq}")
                def fin1(st, k=k):
                    a(f"v_pk_mul_f32 {r2(fsets[0][k])}, {r2(st[0])}, 1.0 op_sel_hi:[1,0]")
                    a(f"v_pk_mul_f32 {r2(fsets[0][k]+2)}, {r2(st[0]+2)}, 1.0 op_sel_hi:[1,0]")
                pipe_poll(f"f{k}", mk1, sets1, vU + 4, 0, fin1, o["fsleep"])
                if k == 0:
                    a(f"s_branch {Lq}b"); a(f"{Lq}:"); a("s_waitcnt vmcnt(0)"); a(f"{Lq}b:")
                else: a(f"{Lq}:")
            ffin(fsets[0])
        else:
            pipe_poll("f", fmk, fsets, vU + 4, 0, ffin, o["fsleep"])
        (None if o["st3"] else self.stamp("fpollok"))
        for r in (1, 2, 4, 8):
            if CG == 2 and r == 1: continue
            for i in range(NF): a(f"v_add_f32_dpp v{F+i}, v{F+i}, v{F+i} row_ror:{r} {DPP}")
        a(f"ds_write_b128 v{vU}, {r4(F)} offset:{RD}")
        if CG == 8: a(f"ds_write_b128 v{vU}, {r4(F+4)} offset:{RD+256}")
        a(f"""
        s_waitcnt lgkmcnt(0)
        s_barrier
        s_cmp_lg_u32 s{sJ}, 0
        s_cbranch_scc1 L_fin
        s_mov_b64 exec, {'0xffffffff' if CG == 8 else '0xffff'}
        ds_read_b128 {r4(vT)}, v{vV} offset:{RD}
        s_waitcnt lgkmcnt(0)
        """)
        for r in (1, 2, 4, 8):
            if r >= min(CG, 4):
                for i in range(4): a(f"v_add_f32_dpp v{vT+i}, v{vT+i}, v{vT+i} row_ror:{r} {DPP}")
        a(f"""
        v_cvt_pk_bf16_f32 v{vT}, v{vT}, v{vT+1}
        v_cvt_pk_bf16_f32 v{vT+1}, v{vT+2}, v{vT+3}
        s_mov_b64 exec, {0xf000f if CG == 8 else (1 << CG) - 1:#x}
        buffer_store_dwordx2 {r2(vT)}, v{vU+1}, s[{SX}:{SX+3}], 0 offen {o['outf']}
        s_cmp_lg_u32 s2, 0
        s_cbranch_scc1 L_fin
        s_mov_b64 exec, 1
        buffer_store_dword v{vU+2}, v{vU+3}, s[{SW}:{SW+3}], 0 offen {o['epf']}
        L_fin:
        """)
        if o["skewm"]:
            a(f"""
            s_cmp_lg_u32 s2, 0
            s_cbranch_scc1 L_end
            s_cmp_lg_u32 s{sJ}, 0
            s_cbranch_scc1 L_end
            s_add_u32 s4, s60, 0xF0000
            s_addc_u32 s5, s61, 0
            s_load_dwordx8 s[64:71], s[4:5], 0 glc
            s_waitcnt lgkmcnt(0)
            """)
            for i in range(8): a(f"s_sub_u32 s{64+i}, s{64+i}, s16"); a(f"s_add_u32 s{64+i}, s{64+i}, 500")
            m = o["skewm"]
            if m == "late":
                a("s_add_u32 s6, s68, s69"); a("s_add_u32 s6, s6, s70"); a("s_add_u32 s6, s6, s71")
                a("s_sub_u32 s6, s6, s65"); a("s_sub_u32 s6, s6, s66"); a("s_sub_u32 s6, s6, s67"); a("s_sub_u32 s6, s6, s66")
                a("s_mul_i32 s6, s6, 5"); a("s_add_u32 s6, s6, 3000")
            else:
                a("s_min_u32 s72, s64, s65")
                for i in range(2, 8): a(f"s_min_u32 s72, s72, s{64+i}")
                if m == "max":
                    a("s_max_u32 s73, s64, s65")
                    for i in range(2, 8): a(f"s_max_u32 s73, s73, s{64+i}")
                else:
                    a(f"s_mov_b32 s73, s{64+int(m)}")
                a("s_sub_u32 s6, s73, s72"); a("s_mul_i32 s6, s6, 20"); a("s_add_u32 s6, s6, 3000")
            a(f"""
            s_min_u32 s6, s6, 20000
            L_hold:
            s_memrealtime s[4:5]
            s_waitcnt lgkmcnt(0)
            s_sub_u32 s4, s4, s16
            s_cmp_lt_u32 s4, s6
            s_cbranch_scc1 L_hold
            """)
        elif o["amp"] >= 0:
            self.stamp("end"); k = o["amp"]
            if o["ampx"] >= 0:
                a("s_bfe_u32 s4, s101, 0x10002"); a(f"s_cmp_lg_u32 s4, {o['ampx']}"); a("s_cbranch_scc1 L_end")
            a(f"""
            s_waitcnt lgkmcnt(0)
            s_sub_u32 s6, s{self.sreg(k)}, s16
            s_min_u32 s6, s6, 3000
            s_mul_i32 s6, s6, 10
            s_add_u32 s6, s6, 3000
            L_hold:
            s_memrealtime s[4:5]
            s_waitcnt lgkmcnt(0)
            s_sub_u32 s4, s4, s16
            s_cmp_lt_u32 s4, s6
            s_cbranch_scc1 L_hold
            """)
        elif o["stamps"]:
            self.stamp("end")
            a(f"""
            s_waitcnt lgkmcnt(0)
            s_lshl_b32 s4, s101, 2
            s_add_u32 s4, s4, s{sJ}
            s_lshl_b32 s4, s4, 7
            s_add_u32 s4, s4, {STAMP_OFF:#x}
            s_add_u32 s6, s60, s4
            s_addc_u32 s7, s61, 0
            s_sub_u32 s6, s6, {o['wsoff']:#x}
            s_subb_u32 s7, s7, 0
            s_mov_b64 exec, 1
            v_mov_b32 v4, 0
            """)
            for j in range(self.nst):
                a(f"""
                v_mov_b32 v2, s{self.sreg(j)}
                v_mov_b32 v3, s{self.sreg(j)+1}
                global_store_dwordx2 v4, v[2:3], s[6:7] offset:{8*j}
                s_nop 1
                """)
        if o["hold"]:
            a(f"""
            s_waitcnt lgkmcnt(0)
            L_hold:
            s_memrealtime s[4:5]
            s_waitcnt lgkmcnt(0)
            s_sub_u32 s4, s4, s16
            s_cmp_lt_u32 s4, {o["hold"]}
            s_cbranch_scc1 L_hold
            """)
        a("L_end:")
        a("s_endpgm")
        cl = []
        for x in self.l:
            if cl and cl[-1].strip() == "s_mov_b64 exec, -1" and x.strip().startswith("s_mov_b64 exec,"): cl.pop()
            if len(cl) > 1 and cl[-2].strip() == "s_mov_b64 exec, -1" and cl[-1].strip().startswith("s_waitcnt vmcnt") and x.strip().startswith("s_mov_b64 exec,"):
                del cl[-2]
            cl.append(x)
        c2 = []
        for x in cl:
            c2.append(x)
        body = "\n".join(fix(c2)) + "\n"
        head = open("cdna_kernels/" + KN + ".s.ref").read().split("; Override launch")[0]
        if self.names: head += "; stamps: " + " ".join(self.names) + "\n"
        return head + f"""; @launch grid=(256,1,1) block=(256,1,1) lds={o['lds']}
.amdgcn_target "amdgcn-amd-amdhsa--gfx950"
.text
.globl {KN}_kernel
.p2align 8
.type {KN}_kernel,@function
{KN}_kernel:
""" + body + f""".section .rodata,"a"
.p2align 6
.amdhsa_kernel {KN}_kernel
  .amdhsa_next_free_vgpr 256
  .amdhsa_next_free_sgpr 102
  .amdhsa_accum_offset 256
  .amdhsa_group_segment_fixed_size 0
  .amdhsa_kernarg_size 104
  .amdhsa_user_sgpr_count 2
  .amdhsa_user_sgpr_kernarg_segment_ptr 1
  .amdhsa_system_sgpr_workgroup_id_x 1
.end_amdhsa_kernel
"""

if __name__ == "__main__":
    out = sys.argv[1]; opt = {}
    for kv in sys.argv[2:]:
        k, v = kv.split("="); opt[k] = eval(v)
    open(out, "w").write(Gen(**opt).build())
```

```python
import sys, struct
from hazard import fix
KN = "gated_mix__sliding_block_cached__glu_gated_reglu__decode"
STAMP_OFF = 0x30000000
def f2u(x): return struct.unpack("<I", struct.pack("<f", x))[0]

class Gen:
    def __init__(self, **opt):
        self.o = dict(W=9, stamps=False, wsoff=0, qp=2, hp=5, CG=4, round_scores=True, prefetch=0, jitter=0,
                      hold=0, amp=-1, lds=90112, nt="nt", spin=20000, pre_g=2, pre_q=2, pre_s=3, Wt=7, fdepth=1, odepth=1,
                      cnt=0, post=12, osleep=0, fsleep=0, pre_qp=0, first='sc1', pt=0, ptf='', st3=0, early=3, skewm='', adapt=11, flagrd=5, nearly=7, lpost=8, st4=0, atime=0, obar=1, opa=0, fsel=0, tlb=0, outf='', rot=1, mix=1, hlate=1, fx=1, oearly=1, pts=1, epf='', od=1, rorig=1, xs=0, cpf=0, osel=1, dlate=0, ampx=-1, tb=10)
        for k in opt: assert k in self.o, k
        self.o.update(opt)
        self.l = []; self.vm = []; self.nl = 0; self.nst = 0; self.names = []
    def a(self, s):
        for x in s.strip().split("\n"):
            x = x.strip()
            if x: self.l.append(x if x.endswith(":") else "    " + x)
    def lab(self, p):
        self.nl += 1
        return f"L_{p}{self.nl}"
    def issue(self, label, s):
        self.a(s); self.vm.append(label)
    def wait(self, label):
        n = len(self.vm) - 1 - self.vm.index(label)
        assert n <= 63
        self.a(f"s_waitcnt vmcnt({n})")
    def sreg(self, k): return 16 + 2 * k if k < 8 else 36 + 2 * (k - 8)
    def stamp(self, name=""):
        if self.o["stamps"]:
            assert self.nst < 16
            r = self.sreg(self.nst)
            self.a(f"s_memrealtime s[{r}:{r+1}]")
            self.names.append(name); self.nst += 1

    def build(self):
        o = self.o; a = self.a; nt = o["nt"]; W = o["W"]
        RA, OB, FB, MLB = 0x1000, 0x50000, 0xA0000, 0xF8000
        CG = o["CG"]; R = 144 // CG
        XL, P1, QL, MX, LS, GS, HP, HL, OL, OW, LF, RD, DUM = 0, 2560, 10752, 14848, 14976, 15104, 15232, 15616, 15744, 15872, 19968, 29184, 29696
        OLX = 30208; XF = 31744
        vL = 1; vM = [2, 3, 4, 5]; vSel = [6, 7, 8, 9]
        vQa, vQb, vGU, vK, vV, vPD, vPD2, vPO, vTM = 10, 11, 12, 13, 14, 15, 16, 18, 17
        vMx, vMc, vFA, vRS = 19, 20, 21, 22
        vX = 24
        vS = 32; vBq = 48; vAq = 52; vAg = 56; vAr = 60; vAD = 56; vAO = 64; vT = 72; vPoll = 92
        vCH, vG, vOMG, vJ = 96, 97, 98, 99
        R1 = 100; R2 = 164; vU = 228
        vAcc = vAq
        dst = {}
        for i in range(5): dst[f"Q{i}"] = R1 + 4 * i
        for i in range(9): dst[f"G{i}"] = R1 + 20 + 4 * i
        for i in range(2): dst[f"R{i}"] = R1 + 56 + 4 * i
        for i in range(16): dst[f"K{i}"] = R2 + 4 * i; dst[f"V{i}"] = R1 + 4 * i
        for i in range(6): dst[f"D{i}"] = R2 + 4 * i; dst[f"O{i}"] = R2 + 24 + 4 * i
        big = [f"Q{i}" for i in range(5)] + [f"G{i}" for i in range(9)] + ["R0", "R1"] + [f"K{i}" for i in range(16)] + \
              [f"V{i}" for i in range(16)] + [f"D{i}" for i in range(6)] + [f"O{i}" for i in range(6)]
        sTAG = 62; sJ = 3; sKQ, sG, sS, sC6 = 8, 9, 10, 11; s4608 = 12
        sKV = 13; sGU = 14; sC = 15
        SQ, SGU, SK, SR, SD, SO, SX, SV, SW = 64, 68, 72, 76, 80, 84, 88, 92, 96
        sPL = 34; sXE = 100; XB = 0xF9000
        r4 = lambda v: f"v[{v}:{v+3}]"
        r2 = lambda v: f"v[{v}:{v+1}]"
        DPP = "row_mask:0xf bank_mask:0xf"
        self.ip = 0; self.gdone = self.kdone = False
        def issue_next():
            lb = big[self.ip]; self.ip += 1
            d = r4(dst[lb]); k = int(lb[1:]); c = lb[0]
            if c == "V": assert self.gdone
            if c in "DO": assert self.kdone
            if c == "Q":
                if k == 0: self.issue(lb, f"buffer_load_dwordx4 {d}, v{vQa}, s[{SQ}:{SQ+3}], 0 offen {nt}")
                elif k < 4: self.issue(lb, f"buffer_load_dwordx4 {d}, v{vQa}, s[{SQ}:{SQ+3}], s{32+k} offen {nt}")
                else: self.issue(lb, f"buffer_load_dwordx4 {d}, v{vQb}, s[{SQ}:{SQ+3}], 0 offen {nt}")
            elif c == "G":
                if k == 0: a(f"s_mov_b32 s{sGU}, 0")
                elif k < 8: a(f"s_addk_i32 s{sGU}, 9216")
                if k < 8: self.issue(lb, f"buffer_load_dwordx4 {d}, v{vGU}, s[{SGU}:{SGU+3}], s{sGU} offen {nt}")
                else: self.issue(lb, f"buffer_load_dwordx4 {d}, v{vPD}, s[{SGU}:{SGU+3}], 0 offen {nt}")
            elif c == "R":
                self.issue(lb, f"buffer_load_dwordx4 {d}, v{vPD2 if k == 0 else vPO}, s[{SR}:{SR+3}], 0 offen {nt}")
            elif c in "KV":
                if k == 0: a(f"s_lshl_b32 s{sKV}, s{sG}, 12" if o["rot"] else f"s_mov_b32 s{sKV}, 0")
                else:
                    a(f"s_addk_i32 s{sKV}, 4096")
                    if o["rot"]: a(f"s_bitset0_b32 s{sKV}, 16")
                sr, vo = (SK, vK) if c == "K" else (SV, vV)
                self.issue(lb, f"buffer_load_dwordx4 {d}, v{vo}, s[{sr}:{sr+3}], s{sKV} offen {nt}")
            else:
                sr = SD if c == "D" else SO
                vo = vPO if c == "O" else (vPD if k < 2 else vPD2)
                so, im = ("0", k * 1152) if k < 4 else (f"s{s4608}", (k - 4) * 1152)
                if c == "O" and k >= 4: vo, so = vGU, "0"
                self.issue(lb, f"buffer_load_dwordx4 {d}, v{vo}, s[{sr}:{sr+3}], {so} offen offset:{im} {nt}")
        def fill(label, w=None):
            w = W if w is None else w
            idx = big.index(label)
            while self.ip < len(big) and self.ip <= idx + w: issue_next()
        def more(n):
            for _ in range(n):
                if self.ip < len(big): issue_next()
        sT2 = 63; TB = o["tb"]; TM2 = (1 << TB) - 1
        def tagins(v, wide=False):
            for i in range(4): a(f"v_and_or_b32 v{v+i}, v{v+i}, v{vTM}, s{sT2 if wide else sTAG}")
        def tagchk(vs, acc, extra=0, wide=False):
            first = True; st = sT2 if wide else sTAG
            for v in vs:
                for i in range(4 + extra):
                    if first: a(f"v_xor_b32 v{acc}, s{st}, v{v+i}"); first = False
                    else: a(f"v_bitop3_b32 v{acc}, v{v+i}, s{st}, v{acc} bitop3:0xbe")
            a(f"v_and_b32 v{acc}, {TM2 if wide else 0xff:#x}, v{acc}")
            a(f"v_cmp_ne_u32 vcc, 0, v{acc}")
        def retry_loop(name, loads, vs, acc):
            Lok = self.lab(name + "ok"); Lre = self.lab(name + "re")
            a(f"s_mov_b32 s7, {o['spin']}")
            a(f"{Lre}:")
            tagchk(vs, acc)
            a(f"s_cbranch_vccz {Lok}")
            for ld in loads: a(ld)
            a("s_waitcnt vmcnt(0)")
            a("s_sub_u32 s7, s7, 1")
            a("s_cmp_lg_u32 s7, 0")
            a(f"s_cbranch_scc1 {Lre}")
            a(f"{Lok}:")
            if o["stamps"] and o["cnt"] == 1:
                r = self.sreg(self.nst); self.names.append(name + "retry"); self.nst += 1
                a(f"s_sub_u32 s7, {o['spin']}, s7"); a(f"s_mul_i32 s7, s7, 100")
                a(f"s_add_u32 s{r}, s16, s7"); a(f"s_addc_u32 s{r+1}, s17, 0")
        def pipe_poll(name, mk, sets, acc, first_issued, fin, slp=0, extra=0):
            n = len(mk(sets[0])); D = len(sets)
            Lx = self.lab(name + "x"); Lre = self.lab(name + "re")
            Lmv = [self.lab(name + "mv") for _ in range(D)]
            for d in range(first_issued, D):
                for ld in mk(sets[d]): a(ld)
            a(f"s_mov_b32 s7, {o['spin']}")
            a(f"{Lre}:")
            for d in range(D):
                a(f"s_waitcnt vmcnt({n*(D-1)})")
                tagchk(sets[d], acc, extra)
                a(f"s_cbranch_vccz {Lmv[d]}")
                if slp: a(f"s_sleep {slp}")
                for ld in mk(sets[d]): a(ld)
            a("s_sub_u32 s7, s7, 1")
            a("s_cmp_lg_u32 s7, 0")
            a(f"s_cbranch_scc1 {Lre}")
            for d in range(D - 1, -1, -1):
                a(f"{Lmv[d]}:")
                fin(sets[d])
                if d: a(f"s_branch {Lx}")
            a(f"{Lx}:")
        def dual(name, st, local):
            if local:
                a("s_mov_b64 s[4:5], exec")
                a(f"s_and_b64 exec, s[4:5], s[{sPL}:{sPL+1}]")
                self.issue(name + "p", st)
                a(f"s_andn2_b64 exec, s[4:5], s[{sPL}:{sPL+1}]")
            self.issue(name, st + " sc1")
            a("s_mov_b64 exec, -1")
        def sel_poll(name, pieces, acc, depth):
            Lx = self.lab(name + "x"); Lre = self.lab(name + "re")
            n = sum(len(p[0]) for p in pieces)
            for _ in range(depth - 1):
                for p in pieces:
                    for ld in p[0]: a(ld)
            a(f"s_mov_b32 s7, {o['spin']}")
            a(f"{Lre}:")
            a(f"s_waitcnt vmcnt({n * (depth - 1)})")
            for i, p in enumerate(pieces):
                first = True
                for v in range(p[1], p[1] + p[2]):
                    if first: a(f"v_xor_b32 v{acc+i}, s{sT2}, v{v}"); first = False
                    else: a(f"v_bitop3_b32 v{acc+i}, v{v}, s{sT2}, v{acc+i} bitop3:0xbe")
                a(f"v_and_b32 v{acc+i}, {TM2:#x}, v{acc+i}")
            for i, p in enumerate(pieces): a(f"v_cmp_ne_u32 s[{64+2*i}:{65+2*i}], 0, v{acc+i}")
            if len(pieces) == 1: a("s_cmp_lg_u64 s[64:65], 0")
            else:
                a("s_or_b64 s[4:5], s[64:65], s[66:67]")
                for i in range(2, len(pieces)): a(f"s_or_b64 s[4:5], s[4:5], s[{64+2*i}:{65+2*i}]")
            a(f"s_cbranch_scc0 {Lx}")
            if o["xs"]: a(f"s_sleep {o['xs']}")
            for i, p in enumerate(pieces):
                a(f"s_mov_b64 exec, s[{64+2*i}:{65+2*i}]")
                for ld in p[0]: a(ld)
            a("s_mov_b64 exec, -1")
            a("s_sub_u32 s7, s7, 1")
            a("s_cmp_lg_u32 s7, 0")
            a(f"s_cbranch_scc1 {Lre}")
            a(f"{Lx}:")
        def pkadd(d, x, y):
            a(f"v_pk_add_f32 {r2(d)}, {r2(x)}, {r2(y)}"); a(f"v_pk_add_f32 {r2(d+2)}, {r2(x+2)}, {r2(y+2)}")

        self.stamp("start")
        if o["hold"]: a("s_memrealtime s[16:17]")
        a(f"""
        s_load_dwordx16 s[36:51], s[0:1], 0
        s_cmpk_ge_u32 s2, 0x100
        s_cbranch_scc1 L_end
        """)
        if o["jitter"]:
            a(f"""s_mul_i32 s4, s2, 0x9e3779b1
            s_lshr_b32 s4, s4, {32-o["jitter"]}
            L_jit:
            s_cmp_eq_u32 s4, 0
            s_cbranch_scc1 L_jitd
            s_sleep 40
            s_sub_u32 s4, s4, 1
            s_branch L_jit
            L_jitd:""")
        a("s_mov_b32 s101, s2")
        a(f"""
        s_lshr_b32 s{sKQ}, s2, 6
        s_mul_i32 s4, s{sKQ}, {144*8192}
        s_and_b32 s5, s2, 7
        s_bfe_u32 s6, s2, 0x30003
        s_lshl3_add_u32 s{sC6}, s5, s6
        s_lshl_b32 s5, s{sC6}, 7
        s_add_u32 s4, s4, s5
        v_lshrrev_b32 v{vT}, 3, v0
        v_and_b32 v{vT+1}, 7, v0
        v_lshlrev_b32 v{vT+1}, 4, v{vT+1}
        v_lshl_add_u32 v{vQa}, v{vT}, 15, v{vT+1}
        s_mov_b32 s{SQ+2}, {143*8192+128}
        s_mov_b32 s{SQ+3}, 0x20000
        s_movk_i32 s33, 0x2000
        s_movk_i32 s34, 0x4000
        s_movk_i32 s35, 0x6000
        s_waitcnt lgkmcnt(0)
        s_add_u32 s{SQ}, s42, s4
        s_addc_u32 s{SQ+1}, s43, 0
        """)
        if o["st3"]: self.stamp("karg")
        more(4)
        if o["st3"]: self.stamp("Q3iss")
        a(f"""
        s_load_dwordx8 s[52:59], s[0:1], 64
        s_load_dwordx2 s[60:61], s[0:1], 96
        s_lshl_b32 s2, s{sKQ}, 6
        s_add_u32 s2, s2, s{sC6}
        v_lshl_add_u32 v{vQb}, v{vT}, 13, v{vT+1}
        v_add_u32 v{vQb}, {128*8192}, v{vQb}
        v_lshrrev_b32 v{vJ}, 6, v0
        v_lshlrev_b32 v{vV}, 4, v0
        v_readfirstlane_b32 s{sJ}, v{vJ}
        """)
        more(1)
        a(f"""
        s_mov_b32 s{SX}, s36
        s_mov_b32 s{SX+1}, s37
        s_movk_i32 s{SX+2}, 1152
        s_mov_b32 s{SX+3}, 0x20000
        """)
        self.issue("X", f"buffer_load_dwordx4 {r4(vX)}, v{vV}, s[{SX}:{SX+3}], 0 offen")
        MIXG = f"s_xor_b32 s5, s{sC6}, s7\ns_lshl_b32 s5, s5, 7" if o["mix"] else ""
        a(f"""
        s_bitcmp1_b32 s{sJ}, 0
        s_cselect_b32 s{SGU}, s50, s48
        s_cselect_b32 s{SGU+1}, s51, s49
        s_cselect_b32 s7, 2, 1
        s_lshr_b32 s6, s{sJ}, 1
        s_lshl1_add_u32 s6, s{sKQ}, s6
        s_mul_i32 s4, s6, {72*9216}
        {MIXG}
        s_add_u32 s4, s4, s5
        s_add_u32 s{SGU}, s{SGU}, s4
        s_addc_u32 s{SGU+1}, s{SGU+1}, 0
        s_mov_b32 s{SGU+2}, {71*9216+128}
        s_mov_b32 s{SGU+3}, 0x20000
        v_and_b32 v{vT+2}, 7, v{vT}
        v_mul_u32_u24 v{vGU}, {8*9216}, v{vT+2}
        v_add_u32 v{vGU}, v{vGU}, v{vT+1}
        """)
        more(2)
        a(f"""
        v_mul_u32_u24 v{vPD}, 9216, v{vT+2}
        v_add_u32 v{vPD}, v{vPD}, v{vT+1}
        v_add_u32 v{vPD}, {64*9216}, v{vPD}
        s_waitcnt lgkmcnt(0)
        s_mov_b32 s{SR}, s54
        s_mov_b32 s{SR+1}, s55
        s_movk_i32 s{SR+2}, 1152
        s_mov_b32 s{SR+3}, 0x20000
        """)
        self.issue("GW", f"buffer_load_dwordx4 {r4(vX+4)}, v{vV}, s[{SR}:{SR+3}], 0 offen")
        if o["prefetch"]:
            a(f"""
            s_getpc_b64 s[4:5]
            s_lshr_b32 s7, s2, 3
            s_mul_i32 s7, s7, {128*o['prefetch']}
            v_and_b32 v{vT+3}, 63, v0
            v_lshl_add_u32 v{vT+3}, v{vT+3}, 7, s7
            s_mov_b64 exec, {(1 << o['prefetch']) - 1}
            """)
            self.issue("PF", f"global_load_dword v{vMc}, v{vT+3}, s[4:5]")
            a("s_mov_b64 exec, -1")
        more(o["early"])
        TLB = ""
        if o["tlb"]:
            TLB = f"""s_load_dword s33, s[{SK}:{SK+1}], 0
            s_load_dword s33, s[{SV}:{SV+1}], 0
            s_load_dword s33, s[{SO}:{SO+1}], 0
            s_load_dword s33, s[{SR}:{SR+1}], 0
            s_mul_i32 s4, s{sC6}, {64*1152}
            s_add_u32 s4, s52, s4
            s_addc_u32 s5, s53, 0
            s_load_dword s33, s[4:5], 0
            s_add_u32 s4, s52, {4300*1152}
            s_addc_u32 s5, s53, 0
            s_load_dword s33, s[4:5], 0"""
        a(f"""
        s_add_u32 s60, s60, {o['wsoff']:#x}
        s_addc_u32 s61, s61, 0
        s_load_dword s{sTAG}, s[60:61], 0
        s_bitcmp1_b32 s2, 0
        s_cselect_b32 s{SR}, s50, s48
        s_cselect_b32 s{SR+1}, s51, s49
        s_bfe_u32 s7, s2, 0x20001
        s_lshl2_add_u32 s7, s{sKQ}, s7
        s_mul_i32 s4, s7, {36*9216}
        s_lshr_b32 s5, s{sC6}, 3
        s_lshl_b32 s5, s5, 7
        s_add_u32 s4, s4, s5
        s_add_u32 s4, s4, 8192
        s_add_u32 s{SR}, s{SR}, s4
        s_addc_u32 s{SR+1}, s{SR+1}, 0
        s_mov_b32 s{SR+2}, {35*9216+128}
        v_mul_u32_u24 v{vPD2}, 9216, v{vT}
        v_add_u32 v{vPD2}, v{vPD2}, v{vT+1}
        v_add_u32 v{vPO}, {32*9216}, v{vPD2}
        s_lshr_b32 s{sG}, s{sC6}, 2
        s_and_b32 s{sS}, s2, 3
        s_lshl2_add_u32 s{sS}, s{sKQ}, s{sS}
        s_lshl_b32 s4, s{sG}, 24
        s_lshl_b32 s5, s{sS}, 16
        s_add_u32 s4, s4, s5
        s_add_u32 s4, s4, {61440*256}
        s_add_u32 s{SK}, s38, s4
        s_addc_u32 s{SK+1}, s39, 0
        s_mov_b32 s{SK+2}, 0x10000
        s_mov_b32 s{SK+3}, 0x20000
        s_add_u32 s{SV}, s40, s4
        s_addc_u32 s{SV+1}, s41, 0
        s_mov_b32 s{SV+2}, 0x10000
        s_mov_b32 s{SV+3}, 0x20000
        s_lshr_b32 s4, s2, 7
        s_mul_i32 s4, s4, 576
        s_add_u32 s{SD}, s52, s4
        s_addc_u32 s{SD+1}, s53, 0
        s_mov_b32 s{SD+2}, {4607*1152+576}
        s_mov_b32 s{SD+3}, 0x20000
        s_and_b32 s5, s{sS}, 7
        s_lshl3_add_u32 s5, s{sG}, s5
        s_mul_i32 s5, s5, {32*1152}
        s_add_u32 s4, s4, s5
        s_add_u32 s{SO}, s44, s4
        s_addc_u32 s{SO+1}, s45, 0
        s_mov_b32 s{SO+2}, {31*1152+576}
        s_mov_b32 s{SO+3}, 0x20000
        s_mov_b32 s{SW}, s60
        s_mov_b32 s{SW+1}, s61
        s_mov_b32 s{SW+2}, 0x100000
        s_mov_b32 s{SW+3}, 0x20000
        s_movk_i32 s{s4608}, 4608
        {TLB}
        v_and_b32 v{vL}, 63, v0
        v_and_b32 v{vU}, 3, v0
        v_lshlrev_b32 v{vU}, 4, v{vU}
        v_bfe_u32 v{vU+1}, v0, 2, 2
        v_lshl_add_u32 v{vU}, v{vU+1}, 8, v{vU}
        v_bfe_u32 v{vU+1}, v0, 4, 2
        v_lshl_add_u32 v{vU}, v{vU+1}, 6, v{vU}
        v_lshl_add_u32 v{vK}, v{vJ}, 10, v{vU}
        v_mov_b32 v{vTM}, 0xffffff00
        v_and_b32 v{vU}, 1, v0
        v_lshlrev_b32 v{vU}, 4, v{vU}
        v_mov_b32 v{vU+1}, 0xffff
        v_lshlrev_b32 v{vU}, v{vU}, v{vU+1}
        v_bfe_u32 v{vU+1}, v0, 1, 2
        v_cmp_eq_u32 s[4:5], 0, v{vU+1}
        v_cmp_eq_u32 s[36:37], 1, v{vU+1}
        v_cmp_eq_u32 vcc, 2, v{vU+1}
        v_cndmask_b32 v{vM[0]}, 0, v{vU}, s[4:5]
        v_cndmask_b32 v{vM[1]}, 0, v{vU}, s[36:37]
        v_cmp_eq_u32 s[36:37], 3, v{vU+1}
        v_cndmask_b32 v{vM[2]}, 0, v{vU}, vcc
        v_or_b32 v{vU+3}, v{vM[0]}, v{vM[2]}
        v_cndmask_b32 v{vM[3]}, 0, v{vU}, s[36:37]
        v_or_b32 v{vU+1}, v{vM[1]}, v{vM[3]}
        v_mov_b32 v{vU+2}, 0x0c0c0c0c
        s_mov_b32 s32, 0x01000100
        s_mov_b32 s63, 0x03020302
        v_bfi_b32 v{vSel[0]}, v{vU+3}, s32, v{vU+2}
        v_bfi_b32 v{vSel[1]}, v{vU+1}, s32, v{vU+2}
        v_bfi_b32 v{vSel[2]}, v{vU+3}, s63, v{vU+2}
        v_bfi_b32 v{vSel[3]}, v{vU+1}, s63, v{vU+2}
        """)
        if o["pt"]:
            a(f"""
            s_lshl_b32 s4, s2, 10
            s_add_u32 s4, s4, {RA}
            s_lshl4_add_u32 s5, s{sG}, s{sS}
            s_mul_i32 s5, s5, 1152
            s_add_u32 s5, s5, {OB}
            s_cmp_eq_u32 s{sJ}, 1
            s_cselect_b32 s4, s5, s4
            s_and_b32 s5, s2, 127
            s_mul_i32 s5, s5, {CG*16}
            s_lshr_b32 s100, s2, 7
            s_lshl1_add_u32 s100, s100, s{sJ}
            s_sub_u32 s100, s100, 2
            s_mul_i32 s100, s100, {9*128*CG*16}
            s_add_u32 s5, s5, s100
            s_add_u32 s5, s5, {FB}
            s_cmp_ge_u32 s{sJ}, 2
            s_cselect_b32 s4, s5, s4
            s_cselect_b32 s5, {(128*CG*16).bit_length()-1}, 7
            v_lshlrev_b32 v{vU}, s5, v{vL}
            v_add_u32 v{vU}, s4, v{vU}
            s_mov_b64 exec, 0x1ff
            """)
            self.issue("PT", f"buffer_load_dword v{vMx}, v{vU}, s[{SW}:{SW+3}], 0 offen {o['ptf']}")
            a("s_mov_b64 exec, -1")
        a(f"""
        v_lshlrev_b32 v{vU}, 2, v{vL}
        v_mov_b32 v{vU+4}, 0
        v_mov_b32 v{vU+5}, 0
        v_mov_b32 v{vU+6}, 0
        v_mov_b32 v{vU+7}, 0
        ds_write_b32 v{vU}, v{vU+4} offset:{HL}
        ds_write_b32 v{vU}, v{vU+4} offset:{XL+2304}
        v_lshlrev_b32 v{vU+1}, 3, v{vL}
        ds_write_b64 v{vU+1}, {r2(vU+4)} offset:{OLX+1024}
        v_and_b32 v{vU+1}, 1, v{vJ}
        v_lshlrev_b32 v{vU+1}, 11, v{vU+1}
        v_lshl_add_u32 v{vU+1}, v{vL}, 4, v{vU+1}
        ds_write_b128 v{vU+1}, {r4(vU+4)} offset:{P1+2048+1024}
        """)
        a(f"""
        s_mul_i32 s4, s{sKQ}, 576
        v_lshl_add_u32 v{vU+8}, v{vT}, 4, s4
        v_lshl_add_u32 v{vU+9}, v{vT}, 2, s4
        s_mul_i32 s4, s6, 288
        v_lshl_add_u32 v{vU+10}, v{vT+2}, 5, s4
        v_lshl_add_u32 v{vU+11}, v{vT+2}, 2, s4
        s_mul_i32 s4, s7, 144
        v_lshl_add_u32 v{vU+12}, v{vT}, 2, s4
        v_bfe_u32 v{vU+4}, v0, 3, 1
        v_bfe_u32 v{vU+5}, v0, 5, 1
        v_cmp_eq_u32 vcc, v{vU+4}, v{vU+5}
        v_bfe_u32 v{vU+4}, v0, 4, 1
        v_lshlrev_b32 v{vU+4}, 7, v{vU+4}
        v_lshl_add_u32 v{vU+4}, v{vU+5}, 8, v{vU+4}
        v_lshrrev_b32 v{vU+5}, 2, v{vT+1}
        v_add_u32 v{vU+4}, v{vU+4}, v{vU+5}
        v_lshl_add_u32 v{vU+13}, v{vJ}, 9, v{vU+4}
        s_and_b32 s4, s{sJ}, 1
        s_lshl_b32 s4, s4, 11
        s_lshr_b32 s5, s{sJ}, 1
        s_lshl_b32 s5, s5, 9
        s_add_u32 s4, s4, s5
        s_add_u32 s4, s4, 2048
        v_add_u32 v{vU+14}, s4, v{vU+4}
        v_mov_b32 v{vU+5}, {DUM-P1}
        v_cndmask_b32 v{vU+13}, v{vU+5}, v{vU+13}, vcc
        v_cndmask_b32 v{vU+14}, v{vU+5}, v{vU+14}, vcc
        v_mov_b32 v{vU+5}, {DUM-P1-6144}
        v_lshl_add_u32 v{vU+15}, v{vJ}, 9, v{vU+4}
        v_cndmask_b32 v{vU+15}, v{vU+5}, v{vU+15}, vcc
        v_lshlrev_b32 v{vU+16}, 5, v0
        v_min_u32 v{vU+16}, 2304, v{vU+16}
        """)
        if o["skewm"]:
            a(f"""
            s_waitcnt lgkmcnt(0)
            s_lshl_b32 s4, s2, 2
            s_add_u32 s4, s4, 0xF0000
            v_mov_b32 v{vBq}, s16
            v_mov_b32 v{vBq+1}, s4
            s_mov_b64 exec, 1
            """)
            self.issue("SK", f"buffer_store_dword v{vBq}, v{vBq+1}, s[{SW}:{SW+3}], 0 offen sc1")
            a("s_mov_b64 exec, -1")
        (None if o["st4"] else self.stamp("prol"))
        if o["st3"]:
            self.wait("Q0"); self.stamp("Q0land")
        self.wait("X")
        if o["st3"]: self.stamp("Xland")
        for i in range(4):
            a(f"v_perm_b32 v{vT+2*i}, v{vX+i}, v{vX+i}, s32")
            a(f"v_perm_b32 v{vT+2*i+1}, v{vX+i}, v{vX+i}, s63")
        a(f"""
        ds_write_b128 v{vU+16}, {r4(vT)} offset:{XL}
        ds_write_b128 v{vU+16}, {r4(vT+4)} offset:{XL+16}
        """)
        fill("Q4")
        a(f"""
        s_waitcnt lgkmcnt(0)
        s_barrier
        ds_read_b128 {r4(vS)}, v{vU+8} offset:{XL}
        ds_read_b32 v{vS+4}, v{vU+9} offset:{XL+512}
        ds_read_b128 {r4(vS+8)}, v{vU+10} offset:{XL}
        ds_read_b128 {r4(vS+12)}, v{vU+10} offset:{XL+16}
        ds_read_b32 v{vS+5}, v{vU+11} offset:{XL+256}
        ds_read_b32 v{vS+6}, v{vU+12} offset:{XL}
        ds_read_b32 v{vS+7}, v{vU+12} offset:{XL+128}
        s_add_u32 s{sTAG}, s{sTAG}, 1
        s_and_b32 s{sT2}, s{sTAG}, {TM2:#x}
        s_and_b32 s{sTAG}, s{sTAG}, 0xff
        s_getreg_b32 s{sXE}, hwreg(HW_REG_XCC_ID, 0, 4)
        s_lshl_b32 s{sXE}, s{sXE}, 8
        s_add_u32 s{sXE}, s{sXE}, s{sTAG}
        s_waitcnt lgkmcnt(5)
        """)
        nb = [0]
        def l8(lbl, xreg, acc, first, dowait=True):
            B = vT + 4 * (nb[0] % 4); nb[0] += 1
            for j in range(4): a(f"v_and_b32 v{B+j}, v{xreg}, v{vM[j]}")
            if dowait: self.wait(lbl)
            a(f"v_mfma_f32_16x16x32_bf16 {r4(acc)}, {r4(dst[lbl])}, {r4(B)}, {'0' if first else r4(acc)}")
        for t in range(5): l8(f"Q{t}", vS + t, vAq, t == 0, False)
        self.wait("GW")
        for i in range(4):
            a(f"""
            v_lshlrev_b32 v{vU}, 16, v{vX+i}
            v_and_b32 v{vU+1}, 0xffff0000, v{vX+i}
            v_lshlrev_b32 v{vU+2}, 16, v{vX+4+i}
            v_and_b32 v{vU+3}, 0xffff0000, v{vX+4+i}
            v_pk_mul_f32 {r2(vU)}, {r2(vU)}, {r2(vU+2)}
            v_cvt_pk_bf16_f32 v{vU}, v{vU}, v{vU+1}
            v_and_b32 v{vU+1}, 0xffff0000, v{vU}
            v_lshlrev_b32 v{vU}, 16, v{vU}
            """)
            if i == 0: a(f"v_pk_mul_f32 {r2(vU+4)}, {r2(vU)}, 1.0 op_sel_hi:[1,0]")
            else: a(f"v_pk_add_f32 {r2(vU+4)}, {r2(vU+4)}, {r2(vU)}")
        for i in range(4): a(f"ds_write_b32 v{vU+13}, v{vAq+i} offset:{P1+32*i}")
        a(f"v_add_f32 v{vU+4}, v{vU+4}, v{vU+5}")
        for r in (1, 2, 4, 8): a(f"v_add_f32_dpp v{vU+4}, v{vU+4}, v{vU+4} row_ror:{r} {DPP}")
        a(f"""
        v_lshrrev_b32 v{vU+1}, 4, v0
        v_lshlrev_b32 v{vU+1}, 2, v{vU+1}
        ds_write_b32 v{vU+1}, v{vU+4} offset:{GS}
        s_lshl_b32 s4, s2, 10
        s_add_u32 s4, s4, {RA}
        v_lshl_add_u32 v{vFA}, v{vL}, 4, s4
        s_waitcnt lgkmcnt(0)
        s_barrier
        """)
        def pubA(lo, hi, wave, name, tg=None):
            L = self.lab(name)
            mask = ((1 << hi) - 1) ^ ((1 << lo) - 1)
            a(f"""
            s_cmp_lg_u32 s{sJ}, {wave}
            s_cbranch_scc1 {L}
            s_mov_b32 exec_lo, {mask & 0xffffffff:#x}
            s_mov_b32 exec_hi, {mask >> 32:#x}
            v_lshrrev_b32 v{vU}, 4, v{vL}
            v_lshlrev_b32 v{vU}, 11, v{vU}
            v_and_b32 v{vU+1}, 15, v{vL}
            v_lshl_add_u32 v{vU}, v{vU+1}, 4, v{vU}
            """)
            tg = tg or [vAO, vAO + 4, vBq, vPoll, vU + 4, vU + 8, vU + 20, vU + 24]
            for p in range(8): a(f"ds_read_b128 {r4(tg[p])}, v{vU} offset:{P1+256*p}")
            a("s_waitcnt lgkmcnt(0)")
            for p in range(1, 8): pkadd(tg[0], tg[0], tg[p])
            tagins(tg[0])
            if name == "qpub":
                a(f"v_and_b32 v{tg[0]}, 0xfffff000, v{tg[0]}"); a(f"v_or_b32 v{tg[0]}, s{sXE}, v{tg[0]}")
            a(f"""
            s_branch {L}s
            {L}:
            s_mov_b64 exec, 0
            {L}s:
            """)
            dual(name, f"buffer_store_dwordx4 {r4(tg[0])}, v{vFA}, s[{SW}:{SW+3}], 0 offen", name == "gpub")
        pubA(0, 16, 3, "qpub")
        (None if o["st4"] else self.stamp("qpub"))
        more(o["pre_qp"])
        for k in range(9):
            l8(f"G{k}", vS + 8 + k if k < 8 else vS + 5, vAg, k == 0)
            fill(f"G{k}")
            if k == 2:
                a(f"""
                v_mov_b32 v{vU}, 0
                ds_read_b128 {r4(vU+4)}, v{vU} offset:{GS}
                ds_read_b32 v{vU+8}, v{vU} offset:{GS+16}
                s_waitcnt lgkmcnt(0)
                v_pk_add_f32 {r2(vU+4)}, {r2(vU+4)}, {r2(vU+6)}
                v_add_f32 v{vU}, v{vU+4}, v{vU+5}
                v_add_f32 v{vU}, v{vU}, v{vU+8}
                v_cvt_pk_bf16_f32 v{vU}, v{vU}, v{vU}
                v_lshlrev_b32 v{vU}, 16, v{vU}
                v_mul_f32 v{vU}, {f2u(-1.4426950408889634):#x}, v{vU}
                v_exp_f32 v{vU}, v{vU}
                v_add_f32 v{vU}, 1.0, v{vU}
                v_rcp_f32 v{vU}, v{vU}
                v_cvt_pk_bf16_f32 v{vU}, v{vU}, v{vU}
                v_lshlrev_b32 v{vG}, 16, v{vU}
                v_sub_f32 v{vU}, 1.0, v{vG}
                v_cvt_pk_bf16_f32 v{vU}, v{vU}, v{vU}
                v_lshlrev_b32 v{vOMG}, 16, v{vU}
                """)
            if k == 5:
                a(f"""
                s_lshl_b32 s4, s{sJ}, 16
                s_lshl_b32 s5, s{sG}, 12
                s_add_u32 s4, s4, s5
                s_add_u32 s4, s4, {RA}
                v_lshrrev_b32 v{vU}, 4, v{vL}
                v_lshlrev_b32 v{vU}, 10, v{vU}
                v_and_b32 v{vU+1}, 15, v{vL}
                v_lshl_add_u32 v{vU}, v{vU+1}, 4, v{vU}
                v_add_u32 v{vQa}, s4, v{vU}
                s_xor_b32 s5, s{sG}, 1
                s_lshl_b32 s5, s5, 12
                s_add_u32 s5, s5, {RA}
                v_bfe_u32 v{vU}, v0, 2, 2
                v_lshlrev_b32 v{vU}, 16, v{vU}
                v_and_b32 v{vU+1}, 3, v0
                v_lshl_add_u32 v{vU}, v{vU+1}, 10, v{vU}
                v_add_u32 v{vQb}, s5, v{vU}
                """)
        for k in range(2):
            l8(f"R{k}", vS + 6 + k, vAr, k == 0)
            if k == 1: self.gdone = True
            fill(f"R{k}")
        for i in range(4): a(f"ds_write_b32 v{vU+14}, v{vAg+i} offset:{P1+32*i}")
        a(f"""
        v_mul_u32_u24 v{vRS}, 1821, v0
        v_lshrrev_b32 v{vRS}, 16, v{vRS}
        v_mul_u32_u24 v{vCH}, 36, v{vRS}
        v_sub_u32 v{vCH}, v0, v{vCH}
        v_mul_u32_u24 v{vPO}, {6*1152}, v{vRS}
        v_lshl_add_u32 v{vPO}, v{vCH}, 4, v{vPO}
        v_add_u32 v{vGU}, 4608, v{vPO}
        """)
        for i in range(4): a(f"ds_write_b32 v{vU+15}, v{vAr+i} offset:{P1+6144+32*i}")
        a(f"""
        s_bfe_u32 s4, s2, 0x10006
        s_lshl1_add_u32 s4, s{sC6}, s4
        s_mul_i32 s4, s4, {32*1152}
        v_add_u32 v{vPD}, s4, v{vPO}
        s_lshr_b32 s5, s{sC6}, 3
        s_lshl_b32 s5, s5, 4
        s_and_b32 s6, s{sC6}, 7
        s_add_u32 s5, s5, s6
        s_bfe_u32 s6, s2, 0x10006
        s_lshl3_add_u32 s5, s6, s5
        s_mul_i32 s5, s5, {4*1152}
        s_add_u32 s5, s5, {(4096-2)*1152}
        v_lshl_add_u32 v{vPD2}, v{vCH}, 4, s5
        v_cmp_gt_u32 vcc, 5, v{vRS}
        v_cmp_gt_u32 s[4:5], 6, v{vRS}
        v_bfrev_b32 v{vU}, -2
        v_cndmask_b32 v{vPD2}, v{vPD2}, v{vPD}, vcc
        v_cndmask_b32 v{vPD}, v{vU}, v{vPD}, s[4:5]
        v_cndmask_b32 v{vPD2}, v{vU}, v{vPD2}, s[4:5]
        v_mul_u32_u24 v{vU}, 1152, v{vRS}
        v_lshl_add_u32 v{vCH}, v{vCH}, 5, v{vU}
        v_mul_u32_u24 v{vRS}, 12, v{vRS}
        v_add_u32 v{vRS}, {HL}, v{vRS}
        """)
        (None if o["st4"] else self.stamp("gpub"))
        more(o["pre_g"])
        if o["pts"]:
            a(f"""
            s_lshr_b32 s4, s2, 7
            s_mul_i32 s4, s4, {72 // CG}
            s_mul_i32 s5, s{sJ}, {(72 // CG + 3) // 4}
            s_add_u32 s4, s4, s5
            s_mul_i32 s4, s4, {128 * CG * 16}
            s_and_b32 s5, s2, 127
            s_mul_i32 s5, s5, {CG * 16}
            s_add_u32 s4, s4, s5
            s_add_u32 s4, s4, {FB}
            s_add_u32 s4, s60, s4
            s_addc_u32 s5, s61, 0
            """)
            for i in range((72 // CG + 3) // 4): a(f"s_load_dword s33, s[4:5], {128*CG*16*i} {'glc' if o['pts'] == 2 else ''}")
        if o["cpf"]:
            a(f"""
            s_getpc_b64 s[4:5]
            s_lshr_b32 s6, s101, 3
            s_lshl2_add_u32 s6, s6, s{sJ}
            s_lshl_b32 s6, s6, 6
            s_add_u32 s4, s4, s6
            s_addc_u32 s5, s5, 0
            s_load_dword s33, s[4:5], 0
            """)
        qload = f"buffer_load_dwordx4 {r4(vPoll)}, v{vQa}, s[{SW}:{SW+3}], 0 offen sc1"
        for k in range(o["qp"] + 1):
            self.wait(f"K{k}"); fill(f"K{k}")
        a(f"s_cmp_eq_u32 s{sJ}, 0"); a("s_cselect_b64 exec, 0xffff, 0")
        self.issue("QP2", f"buffer_load_dwordx4 {r4(vAO)}, v{vQb}, s[{SW}:{SW+3}], 0 offen sc1")
        a("s_mov_b64 exec, -1")
        self.issue("QP", qload.replace("sc1", o["first"]))
        lastK = min(15, self.ip - 1 - big.index("K0"))
        for k in range(o["qp"] + 1, lastK + 1):
            self.wait(f"K{k}"); fill(f"K{k}")
        more(o["pre_q"])
        a(f"""
        v_bfe_u32 v{vU+1}, v0, 3, 1
        v_lshlrev_b32 v{vU+1}, 9, v{vU+1}
        v_bfe_u32 v{vU+2}, v0, 4, 2
        v_lshl_add_u32 v{vU+1}, v{vU+2}, 7, v{vU+1}
        v_and_b32 v{vU+2}, 3, v0
        v_lshl_add_u32 v{vU+1}, v{vU+2}, 5, v{vU+1}
        """)
        self.wait("QP")
        retry_loop("q", [qload], [vPoll], vU)
        a(f"""
        ds_write_b128 v{vV}, {r4(vPoll)} offset:{QL}
        v_cmp_gt_u32 vcc, 16, v0
        v_xor_b32 v{vU}, s{sXE}, v{vPoll}
        v_xor_b32 v{vU+2}, s{sTAG}, v{vAO+1}
        v_bitop3_b32 v{vU+2}, v{vAO+2}, s{sTAG}, v{vU+2} bitop3:0xbe
        v_bitop3_b32 v{vU+2}, v{vAO+3}, s{sTAG}, v{vU+2} bitop3:0xbe
        v_and_b32 v{vU+2}, 0xff, v{vU+2}
        v_bitop3_b32 v{vU+2}, v{vAO}, s{sXE}, v{vU+2} bitop3:0xbe
        v_cndmask_b32 v{vU+2}, 0, v{vU+2}, vcc
        v_or_b32 v{vU}, v{vU}, v{vU+2}
        v_and_b32 v{vU}, 0xfff, v{vU}
        v_cmp_ne_u32 vcc, 0, v{vU}
        v_lshlrev_b32 v{vU+2}, 2, v{vJ}
        s_cmp_lg_u64 vcc, 0
        s_cselect_b32 s4, 1, 0
        v_mov_b32 v{vU}, s4
        ds_write_b32 v{vU+2}, v{vU} offset:{XF}
        v_mov_b32 v{vU+2}, 0
        s_waitcnt lgkmcnt(0)
        s_barrier
        ds_read_b128 {r4(vAO)}, v{vU+2} offset:{XF}
        """)
        qd = [vT, vT + 8, vU + 8, vU + 16]
        for k in range(4):
            a(f"ds_read_b128 {r4(qd[k])}, v{vU+1} offset:{QL+1024*k}")
            a(f"ds_read_b128 {r4(qd[k]+4)}, v{vU+1} offset:{QL+1024*k+16}")
        a("s_waitcnt lgkmcnt(4)")
        a(f"v_or3_b32 v{vAO}, v{vAO}, v{vAO+1}, v{vAO+2}")
        a(f"v_or_b32 v{vAO}, v{vAO}, v{vAO+3}")
        for i in range(0, 8, 2): a(f"v_pk_add_f32 {r2(qd[0]+i)}, {r2(qd[0]+i)}, {r2(qd[1]+i)}")
        a(f"v_cmp_eq_u32 s[{sPL}:{sPL+1}], 0, v{vAO}")
        a("s_waitcnt lgkmcnt(0)")
        for i in range(0, 8, 2): a(f"v_pk_add_f32 {r2(qd[2]+i)}, {r2(qd[2]+i)}, {r2(qd[3]+i)}")
        for i in range(0, 8, 2): a(f"v_pk_add_f32 {r2(qd[0]+i)}, {r2(qd[0]+i)}, {r2(qd[2]+i)}")
        for i in range(4): a(f"v_cvt_pk_bf16_f32 v{vBq+i}, v{qd[0]+2*i}, v{qd[0]+2*i+1}")
        pubA(16, 64, 2, "gpub", [vAO, vAO + 4, vT, vT + 4, vT + 8, vT + 12, vU + 4, vU + 8])
        a(f"v_mov_b32 v{vTM}, {0xffffffff ^ TM2:#x}")
        if o["stamps"] and o["cnt"] == 3:
            r = self.sreg(self.nst); self.names.append("xretry"); self.nst += 1
            a(f"s_and_b32 s4, s{sPL}, 100"); a(f"s_add_u32 s{r}, s16, s4"); a(f"s_addc_u32 s{r+1}, s17, 0")
        (None if o["st4"] else self.stamp("qcons"))
        if o["round_scores"]: a(f"s_mov_b32 s{sC}, {f2u(128 ** -0.5):#x}")
        def qk_fin(t):
            D = vT + 4 * (t % 4)
            a(f"v_mov_b32_dpp v{vS+t}, v{D} quad_perm:[0,0,0,0] {DPP}")
            for u in range(1, 4): a(f"v_add_f32_dpp v{vS+t}, v{D+u}, v{vS+t} quad_perm:[{u},{u},{u},{u}] {DPP}")
            if t & 1:
                t0 = t - 1
                if o["round_scores"]:
                    a(f"""
                    v_cvt_pk_bf16_f32 v{vU}, v{vS+t0}, v{vS+t0+1}
                    v_lshlrev_b32 v{vS+t0}, 16, v{vU}
                    v_and_b32 v{vS+t0+1}, 0xffff0000, v{vU}
                    v_mul_f32 v{vS+t0}, s{sC}, v{vS+t0}
                    v_mul_f32 v{vS+t0+1}, s{sC}, v{vS+t0+1}
                    v_cvt_pk_bf16_f32 v{vU}, v{vS+t0}, v{vS+t0+1}
                    v_lshlrev_b32 v{vS+t0}, 16, v{vU}
                    v_and_b32 v{vS+t0+1}, 0xffff0000, v{vU}
                    """)
                if t == 1: a(f"v_max_f32 v{vU+1}, v{vS}, v{vS+1}")
                else: a(f"v_max3_f32 v{vU+1}, v{vU+1}, v{vS+t0}, v{vS+t0+1}")
        for t in range(16):
            if t > lastK: self.wait(f"K{t}")
            D = vT + 4 * (t % 4)
            a(f"v_mfma_f32_16x16x32_bf16 {r4(D)}, {r4(dst[f'K{t}'])}, {r4(vBq)}, 0")
            if t == 15: self.kdone = True
            if t > lastK: fill(f"K{t}")
            if t >= 2: qk_fin(t - 2)
        more(o["pre_s"])
        a(f"""
        v_bfe_u32 v{vU+2}, v0, 3, 1
        v_lshlrev_b32 v{vU+2}, 6, v{vU+2}
        v_lshrrev_b32 v{vU+3}, 4, v0
        v_lshl_add_u32 v{vK}, v{vU+3}, 2, v{vU+2}
        """)
        qk_fin(14); qk_fin(15)
        cexp = 1.4426950408889634 if o["round_scores"] else 128 ** -0.5 * 1.4426950408889634
        a(f"""
        ds_write_b32 v{vK}, v{vU+1} offset:{MX}
        s_mov_b32 s{sC}, {f2u(cexp):#x}
        s_waitcnt lgkmcnt(0)
        s_barrier
        """)
        for i in range(4): a(f"ds_read_b128 {r4(vT+4*i)}, v{vU+2} offset:{MX+16*i}")
        a("s_waitcnt lgkmcnt(0)")
        a(f"v_max3_f32 v{vT}, v{vT}, v{vT+1}, v{vT+2}")
        for t in range(3, 15, 2): a(f"v_max3_f32 v{vT}, v{vT}, v{vT+t}, v{vT+t+1}")
        a(f"v_max_f32 v{vMx}, v{vT}, v{vT+15}")
        a(f"v_and_b32 v{vMx}, v{vMx}, v{vTM}")
        a(f"v_mul_f32 v{vMc}, s{sC}, v{vMx}")
        for t in range(16): a(f"v_fma_f32 v{vS+t}, v{vS+t}, s{sC}, -v{vMc}")
        for t in range(16): a(f"v_exp_f32 v{vS+t}, v{vS+t}")
        a(f"v_pk_add_f32 {r2(vT)}, {r2(vS)}, {r2(vS+2)}")
        for t in range(4, 16, 2): a(f"v_pk_add_f32 {r2(vT)}, {r2(vT)}, {r2(vS+t)}")
        a(f"v_add_f32 v{vT}, v{vT}, v{vT+1}")
        a(f"ds_write_b32 v{vK}, v{vT} offset:{LS}")
        self.stamp("smax")
        Lha = self.lab("haddr")
        hl = [f"buffer_load_dwordx4 {r4(vAO)}, v{vQa}, s[{SW}:{SW+3}], 0 offen sc1",
              f"buffer_load_dwordx4 {r4(vAO+4)}, v{vQb}, s[{SW}:{SW+3}], 0 offen sc1"]
        a(f"""
        s_cmp_lg_u32 s{sJ}, 3
        s_cbranch_scc1 {Lha}
        s_bfe_u32 s4, s2, 0x10006
        s_lshl_b32 s4, s4, 7
        s_add_u32 s4, s4, {RA+256}
        v_and_b32 v{vU}, 3, v0
        v_lshlrev_b32 v{vU}, 16, v{vU}
        v_bfe_u32 v{vU+1}, v0, 5, 1
        v_lshl_add_u32 v{vU}, v{vU+1}, 8, v{vU}
        v_add_u32 v{vU+1}, 1, v{vU+1}
        {"" if o["mix"] else f"v_mov_b32 v{vU+1}, 0"}
        v_xor_b32 v{vU+1}, s{sC6}, v{vU+1}
        v_lshl_add_u32 v{vU}, v{vU+1}, 10, v{vU}
        v_bfe_u32 v{vU+1}, v0, 2, 3
        v_lshl_add_u32 v{vU}, v{vU+1}, 4, v{vU}
        v_add_u32 v{vQa}, s4, v{vU}
        s_and_b32 s4, s{sC6}, 0x38
        s_lshl_b32 s4, s4, 10
        s_and_b32 s5, s{sC6}, 7
        s_bfe_u32 s6, s2, 0x10006
        s_lshl3_add_u32 s5, s6, s5
        s_lshl_b32 s5, s5, 4
        s_add_u32 s4, s4, s5
        s_add_u32 s4, s4, {RA+768}
        v_bfe_u32 v{vU}, v0, 2, 2
        v_lshlrev_b32 v{vU}, 16, v{vU}
        v_and_b32 v{vU+1}, 3, v0
        v_lshl_add_u32 v{vU}, v{vU+1}, 11, v{vU}
        v_bfe_u32 v{vU+1}, v0, 4, 1
        v_lshl_add_u32 v{vU}, v{vU+1}, 10, v{vU}
        v_add_u32 v{vQb}, s4, v{vU}
        {Lha}:
        """)
        def hfin():
            Lh = self.lab("hfin")
            a(f"""
            s_cmp_lg_u32 s{sJ}, 3
            s_cbranch_scc1 {Lh}
            s_waitcnt vmcnt({len(self.vm) - self.hmark})
            """)
            retry_loop("h", hl, [vAO, vAO + 4], vU)
            for i in range(4): a(f"v_add_f32_dpp v{vAO+i}, v{vAO+i}, v{vAO+i} quad_perm:[1,0,3,2] {DPP}")
            for i in range(4): a(f"v_add_f32_dpp v{vAO+4+i}, v{vAO+4+i}, v{vAO+4+i} row_ror:1 {DPP}")
            for i in range(4): a(f"v_add_f32_dpp v{vAO+i}, v{vAO+i}, v{vAO+i} quad_perm:[2,3,0,1] {DPP}")
            for r in (2, 4, 8):
                for i in range(4): a(f"v_add_f32_dpp v{vAO+4+i}, v{vAO+4+i}, v{vAO+4+i} row_ror:{r} {DPP}")
            a(f"""
            v_bfe_u32 v{vU+1}, v0, 5, 1
            v_mul_u32_u24 v{vU+1}, 192, v{vU+1}
            v_bfe_u32 v{vU+2}, v0, 2, 3
            v_lshl_add_u32 v{vU+1}, v{vU+2}, 4, v{vU+1}
            ds_write_b128 v{vU+1}, {r4(vAO)} offset:{HP}
            v_bfe_u32 v{vU+1}, v0, 4, 1
            v_mul_u32_u24 v{vU+1}, 192, v{vU+1}
            ds_write_b128 v{vU+1}, {r4(vAO+4)} offset:{HP+128}
            v_min_u32 v{vU+1}, 35, v{vL}
            v_lshlrev_b32 v{vU+2}, 2, v{vU+1}
            v_add_u32 v{vU+2}, {HP}, v{vU+2}
            s_waitcnt lgkmcnt(0)
            ds_read2_b32 {r2(vU+4)}, v{vU+2} offset0:0 offset1:48
            v_lshlrev_b32 v{vU+1}, 1, v{vU+1}
            s_waitcnt lgkmcnt(0)
            v_cvt_pk_bf16_f32 v{vU+4}, v{vU+4}, v{vU+5}
            v_and_b32 v{vU+5}, 0xffff0000, v{vU+4}
            v_lshlrev_b32 v{vU+4}, 16, v{vU+4}
            v_max_f32 v{vU+4}, 0, v{vU+4}
            v_mul_f32 v{vU+4}, v{vU+4}, v{vU+5}
            v_cvt_pk_bf16_f32 v{vU+4}, v{vU+4}, v{vU+4}
            ds_write_b16 v{vU+1}, v{vU+4} offset:{HL}
            {Lh}:
            """)
        hcheck = None
        for t in range(16):
            B = vT + 4 * (t % 2)
            a(f"v_cvt_pk_bf16_f32 v{vU}, v{vS+t}, v{vS+t}")
            for j in range(4): a(f"v_and_b32 v{B+j}, v{vU}, v{vM[j]}")
            self.wait(f"V{t}")
            a(f"v_mfma_f32_16x16x32_bf16 {r4(vAcc)}, {r4(dst[f'V{t}'])}, {r4(B)}, {'0' if t == 0 else r4(vAcc)}")
            fill(f"V{t}", min(W, 15 + o["Wt"] - t))
            if o["st4"] and t in (1, 2, 5, 8, 9, 12): self.stamp(f"V{t}")
            if t == o["hp"]:
                a(f"s_cmp_eq_u32 s{sJ}, 3"); a("s_cselect_b64 exec, -1, 0")
                for i, ld in enumerate(hl): self.issue(f"H{i}", ld.replace("sc1", o["first"]))
                a("s_mov_b64 exec, -1")
                self.hmark = len(self.vm)
                hcheck = min(15, self.ip - big.index("V0"))
            if t == 3:
                a(f"""
                v_bfe_u32 v{vK}, v0, 3, 1
                v_lshlrev_b32 v{vK}, 9, v{vK}
                v_bfe_u32 v{vU+1}, v0, 4, 2
                v_lshl_add_u32 v{vK}, v{vU+1}, 7, v{vK}
                v_and_b32 v{vU+1}, 7, v0
                v_lshl_add_u32 v{vK}, v{vU+1}, 2, v{vK}
                v_lshl_add_u32 v{vK}, v{vJ}, 10, v{vK}
                s_lshl4_add_u32 s6, s{sG}, s{sS}
                s_mul_i32 s6, s6, 1152
                s_add_u32 s6, s6, {OB}
                v_lshl_add_u32 v{vX+4}, v{vL}, 4, s6
                s_mul_i32 s4, s{sG}, {16*1152}
                s_add_u32 s4, s4, {OB}
                v_and_b32 v{vX+5}, 15, v0
                v_mul_u32_u24 v{vX+5}, 1152, v{vX+5}
                v_add_u32 v{vX+5}, s4, v{vX+5}
                s_and_b32 s5, s{sS}, 7
                s_lshl_b32 s5, s5, 7
                s_lshr_b32 s4, s{sJ}, 1
                s_lshl_b32 s4, s4, 6
                s_add_u32 s4, s4, s5
                v_bfe_u32 v{vU+1}, v0, 4, 2
                v_lshl_add_u32 v{vX+6}, v{vU+1}, 4, v{vX+5}
                v_add_u32 v{vX+6}, s4, v{vX+6}
                s_bfe_u32 s4, s{sS}, 0x10002
                s_lshl_b32 s4, s4, 4
                v_add_u32 v{vX+5}, s4, v{vX+5}
                v_lshrrev_b32 v{vFA}, {CG.bit_length()-1}, v0
                v_mul_u32_u24 v{vFA}, {128*CG*16}, v{vFA}
                v_and_b32 v{vU+1}, {CG-1}, v0
                v_lshl_add_u32 v{vFA}, v{vU+1}, 4, v{vFA}
                s_and_b32 s4, s2, 127
                s_mul_i32 s4, s4, {CG*16}
                s_lshr_b32 s5, s2, 7
                s_mul_i32 s5, s5, {72*128*16}
                s_add_u32 s4, s4, s5
                s_add_u32 s4, s4, {FB}
                v_add_u32 v{vFA}, s4, v{vFA}
                """)
            if t == 4:
                a(f"""
                v_subrev_u32 v{vX+7}, {HL}, v{vRS}
                v_and_b32 v{vU+1}, 3, v0
                v_lshlrev_b32 v{vU+1}, 3, v{vU+1}
                v_lshl_add_u32 v{vX+7}, v{vX+7}, 4, v{vU+1}
                v_add_u32 v{vX+7}, {OLX}, v{vX+7}
                v_bfe_u32 v{vU+1}, v0, 2, 2
                s_mov_b32 s4, 0x02020202
                v_mul_lo_u32 v{vU+1}, v{vU+1}, s4
                v_add_u32 v{vU+1}, s32, v{vU+1}
                v_or_b32 v{vU+2}, v{vM[0]}, v{vM[2]}
                v_or_b32 v{vU+3}, v{vM[1]}, v{vM[3]}
                v_mov_b32 v{vU+4}, 0x0c0c0c0c
                v_bfi_b32 v{vBq+2}, v{vU+2}, v{vU+1}, v{vU+4}
                v_bfi_b32 v{vBq+3}, v{vU+3}, v{vU+1}, v{vU+4}
                s_lshr_b32 s5, s{sJ}, 1
                s_lshl_b32 s5, s5, 9
                s_add_u32 s5, s5, {OLX}
                v_lshl_add_u32 v{vX+3}, v{vL}, 3, s5
                """)
            if hcheck is not None and t == min(15, hcheck):
                hcheck = None
                if not o["hlate"]: hfin()
        assert hcheck is None
        for i in range(4): a(f"ds_write_b32 v{vK}, v{vAcc+i} offset:{OW+32*i}")
        a(f"""
        s_waitcnt lgkmcnt(0)
        s_barrier
        """)
        self.stamp("pvdone")
        if o["hlate"]:
            hfin(); assert o["obar"]
        Lo1 = self.lab("opub"); Lm = self.lab("mlpub")
        a(f"""
        s_cmp_eq_u32 s{sJ}, 2
        s_cbranch_scc1 {Lm}
        s_cmp_lg_u32 s{sJ}, 0
        s_cbranch_scc1 {Lo1}
        """)
        for jj in range(4): a(f"ds_read_b128 {r4(vT+4*jj)}, v{vV} offset:{OW+1024*jj}")
        a("s_waitcnt lgkmcnt(2)")
        pkadd(vT, vT, vT + 4)
        a("s_waitcnt lgkmcnt(0)")
        pkadd(vT + 8, vT + 8, vT + 12); pkadd(vT, vT, vT + 8)
        a(f"""
        s_branch {Lo1}t
        {Lm}:
        v_bfe_u32 v{vU+1}, v0, 3, 1
        v_lshlrev_b32 v{vU+1}, 6, v{vU+1}
        """)
        for i in range(4): a(f"ds_read_b128 {r4(vU+4+4*i)}, v{vU+1} offset:{LS+16*i}")
        a(f"v_lshrrev_b32 v{vU+1}, 2, v{vU+1}")
        a(f"v_add_u32 v{vX+4}, s6, v{vU+1}")
        a(f"v_add_u32 v{vX+4}, 1024, v{vX+4}")
        a("s_waitcnt lgkmcnt(0)")
        pkadd(vU + 4, vU + 4, vU + 8); pkadd(vU + 12, vU + 12, vU + 16); pkadd(vU + 4, vU + 4, vU + 12)
        a(f"""
        v_pk_add_f32 {r2(vU+4)}, {r2(vU+4)}, {r2(vU+6)}
        v_add_f32 v{vT+1}, v{vU+4}, v{vU+5}
        v_mov_b32 v{vT}, v{vMx}
        v_mov_b32 v{vT+2}, v{vMx}
        v_mov_b32 v{vT+3}, v{vT+1}
        s_mov_b64 exec, 0x101
        {Lo1}t:
        """)
        tagins(vT, True)
        a(f"""
        s_branch {Lo1}s
        {Lo1}:
        s_mov_b64 exec, 0
        {Lo1}s:
        """)
        dual("OP", f"buffer_store_dwordx4 {r4(vT)}, v{vX+4}, s[{SW}:{SW+3}], 0 offen", True)
        if o["obar"]: a("s_waitcnt lgkmcnt(0)"); a("s_barrier")
        (None if o["st4"] else self.stamp("opub"))
        def omk(st): return [f"buffer_load_dwordx4 {r4(st[0])}, v{vX+6}, s[{SW}:{SW+3}], 0 offen sc1",
                             f"buffer_load_dwordx4 {r4(st[0]+4)}, v{vX+5}, s[{SW}:{SW+3}], 0 offen offset:1024 sc1"]
        osets = [[R1 + 8 * d] for d in range(o["odepth"])]
        polled = False
        if o["oearly"]:
            polled = True
            a(f"s_bitcmp1_b32 s{sJ}, 0"); a("s_cselect_b64 exec, -1, 0")
            for i, ld in enumerate(omk(osets[0])): self.issue(f"OPL{i}", ld)
            a("s_mov_b64 exec, -1")
        fill("V15", o["post"])
        a(f"""
        ds_read2_b32 {r2(vX)}, v{vRS} offset0:0 offset1:1
        ds_read_b32 v{vX+2}, v{vRS} offset:8
        """)
        def flat_A(k, xsrc):
            p = k & 1; A = vU + 2 * p
            a(f"v_perm_b32 v{A}, v{xsrc+(k>>1)}, v{xsrc+(k>>1)}, v{vSel[2*p]}")
            a(f"v_perm_b32 v{A+1}, v{xsrc+(k>>1)}, v{xsrc+(k>>1)}, v{vSel[2*p+1]}")
            return A
        def flat_mfma(A, data, acc, first):
            a(f"v_mfma_f32_4x4x4_16b_bf16 {r4(acc)}, {r2(A)}, {r2(data)}, {'0' if first else r4(acc)}")
            a(f"v_mfma_f32_4x4x4_16b_bf16 {r4(acc+4)}, {r2(A)}, {r2(data+2)}, {'0' if first else r4(acc+4)}")
        vDA = vU + 8
        if o["dlate"]:
            a("s_waitcnt lgkmcnt(0)")
            assert self.ip == len(big) and polled
            for k in range(6):
                p = k & 1
                a(f"v_perm_b32 v{vDA+2*k}, v{vX+(k>>1)}, v{vX+(k>>1)}, v{vSel[2*p]}")
                a(f"v_perm_b32 v{vDA+2*k+1}, v{vX+(k>>1)}, v{vX+(k>>1)}, v{vSel[2*p+1]}")
        else:
            a("s_waitcnt lgkmcnt(0)")
            for k in range(6):
                A = flat_A(k, vX)
                self.wait(f"D{k}")
                flat_mfma(A, dst[f"D{k}"], vAD, k == 0)
                fill(f"D{k}", o["post"])
                if self.ip == len(big) and k >= o["opa"] and not polled:
                    polled = True
                    a(f"s_bitcmp1_b32 s{sJ}, 0"); a("s_cselect_b64 exec, -1, 0")
                    for i, ld in enumerate(omk(osets[0])): self.issue(f"OPL{i}", ld)
                    a("s_mov_b64 exec, -1")
            assert polled
            (None if o["st3"] else self.stamp("Ddone"))
            for i in range(0, 8): a(f"v_mul_f32 v{vAD+i}, v{vOMG}, v{vAD+i}")
        Lo2 = self.lab("ocons")
        a(f"""
        s_bitcmp0_b32 s{sJ}, 0
        s_cbranch_scc1 {Lo2}
        """)
        P = vS
        def ofin(st):
            a(f"v_and_b32 v{vBq}, v{st[0]+4}, v{vTM}")
            a(f"v_mov_b32 v{vBq+1}, v{st[0]+5}")
            a(f"v_pk_mul_f32 {r2(P)}, {r2(st[0])}, {r2(vG-1)} op_sel:[0,1] op_sel_hi:[1,1]")
            a(f"v_pk_mul_f32 {r2(P+2)}, {r2(st[0]+2)}, {r2(vG-1)} op_sel:[0,1] op_sel_hi:[1,1]")
        if o["oearly"]:
            assert o["odepth"] == 1
            Lx = self.lab("oex"); Lre = self.lab("oere"); OD = o["od"]
            self.wait("OPL1")
            tagchk(osets[0], vU + 4, 4, True)
            a(f"s_cbranch_vccz {Lx}d")
            if o["osel"] and OD > 1: a("s_mov_b64 exec, vcc")
            for _ in range(OD - 1):
                for ld in omk(osets[0]): a(ld)
            a(f"s_mov_b32 s7, {o['spin']}")
            a(f"{Lre}:")
            if o["osel"]: a("s_mov_b64 exec, vcc")
            for ld in omk(osets[0]): a(ld)
            if o["osel"]: a("s_mov_b64 exec, -1")
            a(f"s_waitcnt vmcnt({2*(OD-1)})")
            tagchk(osets[0], vU + 4, 4, True)
            a(f"s_cbranch_vccz {Lx}")
            a("s_sub_u32 s7, s7, 1"); a("s_cmp_lg_u32 s7, 0"); a(f"s_cbranch_scc1 {Lre}")
            a(f"s_branch {Lx}")
            a(f"{Lx}d:")
            if OD > 1:
                a("s_mov_b64 exec, 0")
                for _ in range(OD - 1):
                    for ld in omk(osets[0]): a(ld)
                a("s_mov_b64 exec, -1")
            a(f"{Lx}:")
            ofin(osets[0])
        else:
            assert False
            pipe_poll("o", omk, osets, vU + 4, 1, ofin, o["osleep"], extra=4)
        (None if o["st3"] else self.stamp("opollok"))
        a(f"v_max_f32_dpp v{vU+4}, v{vBq}, v{vBq} row_ror:1 {DPP}")
        for r in (2, 4, 8): a(f"v_max_f32_dpp v{vU+4}, v{vU+4}, v{vU+4} row_ror:{r} {DPP}")
        a(f"""
        v_sub_f32 v{vBq}, v{vBq}, v{vU+4}
        v_mul_f32 v{vBq}, s{sC}, v{vBq}
        v_exp_f32 v{vBq}, v{vBq}
        v_mul_f32 v{P+4}, v{vBq}, v{vBq+1}
        v_pk_mul_f32 {r2(P)}, {r2(P)}, {r2(vBq)} op_sel_hi:[1,0]
        v_pk_mul_f32 {r2(P+2)}, {r2(P+2)}, {r2(vBq)} op_sel_hi:[1,0]
        """)
        for r in (1, 2, 4, 8):
            for i in (4, 0, 1, 2, 3): a(f"v_add_f32_dpp v{P+i}, v{P+i}, v{P+i} row_ror:{r} {DPP}")
            if r == 8: self.l.insert(len(self.l) - 2, f"    v_rcp_f32 v{vBq}, v{P+4}")
        a(f"""
        v_pk_mul_f32 {r2(P)}, {r2(P)}, {r2(vBq)} op_sel_hi:[1,0]
        v_pk_mul_f32 {r2(P+2)}, {r2(P+2)}, {r2(vBq)} op_sel_hi:[1,0]
        v_cvt_pk_bf16_f32 v{P}, v{P}, v{P+1}
        v_cvt_pk_bf16_f32 v{P+1}, v{P+2}, v{P+3}
        v_perm_b32 v{P+2}, v{P+1}, v{P}, v{vBq+2}
        v_perm_b32 v{P+3}, v{P+1}, v{P}, v{vBq+3}
        ds_write_b64 v{vX+3}, {r2(P+2)}
        s_branch {Lo2}x
        {Lo2}:
        """)
        if o["od"] > 1:
            a("s_mov_b64 exec, 0")
            for i in range(o["od"] - 1):
                for j, ld in enumerate(omk(osets[0])): self.issue(f"ODM{i}{j}", ld)
            a("s_mov_b64 exec, -1")
        a(f"""
        {Lo2}x:
        v_cmp_gt_u32 vcc, 72, v0
        s_waitcnt lgkmcnt(0)
        s_barrier
        """)
        for k in range(3): a(f"ds_read2_b64 {r4(vT+4*k)}, v{vX+7} offset0:{8*k} offset1:{8*k+4}")
        (None if o["st3"] else self.stamp("B7"))
        if o["dlate"]:
            for k in range(6):
                self.wait(f"D{k}")
                flat_mfma(vDA + 2 * k, dst[f"D{k}"], vAD, k == 0)
            (None if o["st3"] else self.stamp("Ddone"))
            for k in range(6):
                if k % 2 == 0: a(f"s_waitcnt lgkmcnt({0 if o['stamps'] else 2 - k // 2})")
                self.wait(f"O{k}")
                flat_mfma(vT + 2 * k, dst[f"O{k}"], vAO, k == 0)
                if k == 3:
                    for i in range(0, 8, 2): a(f"v_pk_mul_f32 {r2(vAD+i)}, {r2(vAD+i)}, {r2(vOMG)} op_sel_hi:[1,0]")
            for i in range(0, 8, 2): a(f"v_pk_add_f32 {r2(vAD+i)}, {r2(vAD+i)}, {r2(vAO+i)}")
        else:
            for k in range(6):
                if k % 2 == 0: a(f"s_waitcnt lgkmcnt({0 if o['stamps'] else 2 - k // 2})")
                self.wait(f"O{k}")
                flat_mfma(vT + 2 * k, dst[f"O{k}"], vAD, False)
        Lf = self.lab("fpub")
        a(f"""
        ds_write_b128 v{vCH}, {r4(vAD)} offset:{LF}
        ds_write_b128 v{vCH}, {r4(vAD+4)} offset:{LF+16}
        s_waitcnt lgkmcnt(0)
        s_barrier
        s_and_saveexec_b64 s[4:5], vcc
        s_cbranch_execz {Lf}
        """)
        tg = [vT, vT + 4, vT + 8, vT + 12, vT + 16, vU + 4]
        for p in range(6): a(f"ds_read_b128 {r4(tg[p])}, v{vV} offset:{LF+1152*p}")
        a("s_waitcnt lgkmcnt(4)"); pkadd(tg[0], tg[0], tg[1])
        a("s_waitcnt lgkmcnt(2)"); pkadd(tg[2], tg[2], tg[3])
        a("s_waitcnt lgkmcnt(0)"); pkadd(tg[4], tg[4], tg[5]); pkadd(tg[0], tg[0], tg[2]); pkadd(tg[0], tg[0], tg[4])
        tagins(vT, True)
        a(f"""
        buffer_store_dwordx4 {r4(vT)}, v{vFA}, s[{SW}:{SW+3}], 0 offen sc1
        {Lf}:
        s_mov_b64 exec, s[4:5]
        """)
        self.stamp("fpub")
        NL = CG // 2
        if o["rorig"]: a("s_mov_b32 s2, s101")
        a(f"""
        s_cmpk_ge_u32 s2, {R}
        s_cbranch_scc1 L_fin
        s_mul_i32 s4, s2, {128*CG*16}
        s_add_u32 s4, s4, {FB}
        """)
        if CG == 4:
            a(f"""
            v_and_b32 v{vQa}, 15, v0
            v_lshlrev_b32 v{vQa}, 6, v{vQa}
            v_bfe_u32 v{vQb}, v0, 4, 2
            v_lshl_add_u32 v{vQa}, v{vQb}, 4, v{vQa}
            v_lshl_add_u32 v{vQa}, v{vJ}, 10, v{vQa}
            v_add_u32 v{vQa}, s4, v{vQa}
            s_movk_i32 s33, 0x1000
            """)
            offs = [("0", 0), ("s33", 0)]
        elif CG == 2:
            a(f"""
            v_and_b32 v{vQa}, 15, v0
            v_lshlrev_b32 v{vQa}, 5, v{vQa}
            v_bfe_u32 v{vQb}, v0, 4, 1
            v_lshl_add_u32 v{vQa}, v{vQb}, 4, v{vQa}
            v_lshrrev_b32 v{vQb}, 5, v0
            v_lshl_add_u32 v{vQa}, v{vQb}, 9, v{vQa}
            v_add_u32 v{vQa}, s4, v{vQa}
            """)
            offs = [("0", 0)]
        else:
            a(f"""
            v_and_b32 v{vQa}, 15, v0
            v_lshlrev_b32 v{vQa}, 7, v{vQa}
            v_bfe_u32 v{vQb}, v0, 4, 2
            v_lshl_add_u32 v{vQa}, v{vQb}, 4, v{vQa}
            v_lshl_add_u32 v{vQa}, v{vJ}, 11, v{vQa}
            v_add_u32 v{vQa}, s4, v{vQa}
            s_movk_i32 s33, 0x2000
            """)
            offs = [("0", 0), ("s33", 0), ("0", 64), ("s33", 64)]
        def fmk(st): return [f"buffer_load_dwordx4 {r4(st[k])}, v{vQa}, s[{SW}:{SW+3}], {offs[k][0]} offen offset:{offs[k][1]} sc1" for k in range(NL)]
        fsets = [[R2 + 16 * d + 4 * k for k in range(NL)] for d in range(o["fdepth"])]
        F = vS
        NF = 8 if CG == 8 else 4
        def ffin(st):
            if CG == 4: pkadd(F, st[0], st[1])
            elif CG == 8: pkadd(F, st[0], st[1]); pkadd(F + 4, st[2], st[3])
            else:
                for i in range(4): a(f"v_add_f32_dpp v{F+i}, v{st[0]+i}, v{st[0]+i} row_ror:1 {DPP}")
        if o["fx"]:
            lds_ = fmk(fsets[0])
            for ld in lds_: a(ld)
            a(f"""
            v_lshrrev_b32 v{vU}, 4, v0
            v_lshlrev_b32 v{vU}, 4, v{vU}
            s_mov_b32 s{SX}, s56
            s_mov_b32 s{SX+1}, s57
            s_mul_i32 s4, s2, {CG*8}
            v_mov_b32 v{vU+2}, s{sT2}
            v_mov_b32 v{vU+3}, 0
            """)
            if CG == 8:
                a(f"""
                v_and_b32 v{vU+1}, 3, v0
                v_lshrrev_b32 v{vU+10}, 4, v0
                v_lshl_add_u32 v{vU+1}, v{vU+10}, 2, v{vU+1}
                v_lshl_add_u32 v{vU+1}, v{vU+1}, 3, s4
                """)
            else:
                a(f"v_lshl_add_u32 v{vU+1}, v0, 3, s4")
            pass
            sel_poll("f", [([lds_[k]], fsets[0][k], 4) for k in range(NL)], vU + 4, o["fx"])
            ffin(fsets[0])
        elif True:
            assert False, "only fx path maintained"
        elif o["fsel"]:
            assert CG == 4
            for k in range(2): a(fmk(fsets[0])[k])
            D = o["fdepth"]
            for k in range(2):
                mk1 = lambda st, k=k: [f"buffer_load_dwordx4 {r4(st[0])}, v{vQa}, s[{SW}:{SW+3}], {offs[k][0]} offen offset:{offs[k][1]} sc1"]
                Lq = self.lab("fq")
                a(f"s_waitcnt vmcnt({1 - k})" if k == 0 else "s_nop 0")
                sets1 = [[R2 + 32 + 16 * k + 4 * d] for d in range(D)]
                if k == 1: a("s_waitcnt vmcnt(%d)" % 0) if False else None
                tagchk([fsets[0][k]], vU + 4)
                a(f"s_cbranch_vccz {Lq}")
                def fin1(st, k=k):
                    a(f"v_pk_mul_f32 {r2(fsets[0][k])}, {r2(st[0])}, 1.0 op_sel_hi:[1,0]")
                    a(f"v_pk_mul_f32 {r2(fsets[0][k]+2)}, {r2(st[0]+2)}, 1.0 op_sel_hi:[1,0]")
                pipe_poll(f"f{k}", mk1, sets1, vU + 4, 0, fin1, o["fsleep"])
                if k == 0:
                    a(f"s_branch {Lq}b"); a(f"{Lq}:"); a("s_waitcnt vmcnt(0)"); a(f"{Lq}b:")
                else: a(f"{Lq}:")
            ffin(fsets[0])
        else:
            pipe_poll("f", fmk, fsets, vU + 4, 0, ffin, o["fsleep"])
        (None if o["st3"] else self.stamp("fpollok"))
        for r in (1, 2, 4, 8):
            if CG == 2 and r == 1: continue
            for i in range(NF): a(f"v_add_f32_dpp v{F+i}, v{F+i}, v{F+i} row_ror:{r} {DPP}")
        a(f"ds_write_b128 v{vU}, {r4(F)} offset:{RD}")
        if CG == 8: a(f"ds_write_b128 v{vU}, {r4(F+4)} offset:{RD+256}")
        a(f"""
        s_waitcnt lgkmcnt(0)
        s_barrier
        s_cmp_lg_u32 s{sJ}, 0
        s_cbranch_scc1 L_fin
        s_mov_b64 exec, {'0xffffffff' if CG == 8 else '0xffff'}
        ds_read_b128 {r4(vT)}, v{vV} offset:{RD}
        s_waitcnt lgkmcnt(0)
        """)
        for r in (1, 2, 4, 8):
            if r >= min(CG, 4):
                for i in range(4): a(f"v_add_f32_dpp v{vT+i}, v{vT+i}, v{vT+i} row_ror:{r} {DPP}")
        a(f"""
        v_cvt_pk_bf16_f32 v{vT}, v{vT}, v{vT+1}
        v_cvt_pk_bf16_f32 v{vT+1}, v{vT+2}, v{vT+3}
        s_mov_b64 exec, {0xf000f if CG == 8 else (1 << CG) - 1:#x}
        buffer_store_dwordx2 {r2(vT)}, v{vU+1}, s[{SX}:{SX+3}], 0 offen {o['outf']}
        s_cmp_lg_u32 s2, 0
        s_cbranch_scc1 L_fin
        s_mov_b64 exec, 1
        buffer_store_dword v{vU+2}, v{vU+3}, s[{SW}:{SW+3}], 0 offen {o['epf']}
        L_fin:
        """)
        if o["skewm"]:
            a(f"""
            s_cmp_lg_u32 s2, 0
            s_cbranch_scc1 L_end
            s_cmp_lg_u32 s{sJ}, 0
            s_cbranch_scc1 L_end
            s_add_u32 s4, s60, 0xF0000
            s_addc_u32 s5, s61, 0
            s_load_dwordx8 s[64:71], s[4:5], 0 glc
            s_waitcnt lgkmcnt(0)
            """)
            for i in range(8): a(f"s_sub_u32 s{64+i}, s{64+i}, s16"); a(f"s_add_u32 s{64+i}, s{64+i}, 500")
            m = o["skewm"]
            if m == "late":
                a("s_add_u32 s6, s68, s69"); a("s_add_u32 s6, s6, s70"); a("s_add_u32 s6, s6, s71")
                a("s_sub_u32 s6, s6, s65"); a("s_sub_u32 s6, s6, s66"); a("s_sub_u32 s6, s6, s67"); a("s_sub_u32 s6, s6, s66")
                a("s_mul_i32 s6, s6, 5"); a("s_add_u32 s6, s6, 3000")
            else:
                a("s_min_u32 s72, s64, s65")
                for i in range(2, 8): a(f"s_min_u32 s72, s72, s{64+i}")
                if m == "max":
                    a("s_max_u32 s73, s64, s65")
                    for i in range(2, 8): a(f"s_max_u32 s73, s73, s{64+i}")
                else:
                    a(f"s_mov_b32 s73, s{64+int(m)}")
                a("s_sub_u32 s6, s73, s72"); a("s_mul_i32 s6, s6, 20"); a("s_add_u32 s6, s6, 3000")
            a(f"""
            s_min_u32 s6, s6, 20000
            L_hold:
            s_memrealtime s[4:5]
            s_waitcnt lgkmcnt(0)
            s_sub_u32 s4, s4, s16
            s_cmp_lt_u32 s4, s6
            s_cbranch_scc1 L_hold
            """)
        elif o["amp"] >= 0:
            self.stamp("end"); k = o["amp"]
            if o["ampx"] >= 0:
                a("s_bfe_u32 s4, s101, 0x10002"); a(f"s_cmp_lg_u32 s4, {o['ampx']}"); a("s_cbranch_scc1 L_end")
            a(f"""
            s_waitcnt lgkmcnt(0)
            s_sub_u32 s6, s{self.sreg(k)}, s16
            s_min_u32 s6, s6, 3000
            s_mul_i32 s6, s6, 10
            s_add_u32 s6, s6, 3000
            L_hold:
            s_memrealtime s[4:5]
            s_waitcnt lgkmcnt(0)
            s_sub_u32 s4, s4, s16
            s_cmp_lt_u32 s4, s6
            s_cbranch_scc1 L_hold
            """)
        elif o["stamps"]:
            self.stamp("end")
            a(f"""
            s_waitcnt lgkmcnt(0)
            s_lshl_b32 s4, s101, 2
            s_add_u32 s4, s4, s{sJ}
            s_lshl_b32 s4, s4, 7
            s_add_u32 s4, s4, {STAMP_OFF:#x}
            s_add_u32 s6, s60, s4
            s_addc_u32 s7, s61, 0
            s_sub_u32 s6, s6, {o['wsoff']:#x}
            s_subb_u32 s7, s7, 0
            s_mov_b64 exec, 1
            v_mov_b32 v4, 0
            """)
            for j in range(self.nst):
                a(f"""
                v_mov_b32 v2, s{self.sreg(j)}
                v_mov_b32 v3, s{self.sreg(j)+1}
                global_store_dwordx2 v4, v[2:3], s[6:7] offset:{8*j}
                s_nop 1
                """)
        if o["hold"]:
            a(f"""
            s_waitcnt lgkmcnt(0)
            L_hold:
            s_memrealtime s[4:5]
            s_waitcnt lgkmcnt(0)
            s_sub_u32 s4, s4, s16
            s_cmp_lt_u32 s4, {o["hold"]}
            s_cbranch_scc1 L_hold
            """)
        a("L_end:")
        a("s_endpgm")
        cl = []
        for x in self.l:
            if cl and cl[-1].strip() == "s_mov_b64 exec, -1" and x.strip().startswith("s_mov_b64 exec,"): cl.pop()
            if len(cl) > 1 and cl[-2].strip() == "s_mov_b64 exec, -1" and cl[-1].strip().startswith("s_waitcnt vmcnt") and x.strip().startswith("s_mov_b64 exec,"):
                del cl[-2]
            cl.append(x)
        c2 = []
        for x in cl:
            c2.append(x)
        body = "\n".join(fix(c2)) + "\n"
        head = open("cdna_kernels/" + KN + ".s.ref").read().split("; Override launch")[0]
        if self.names: head += "; stamps: " + " ".join(self.names) + "\n"
        return head + f"""; @launch grid=(256,1,1) block=(256,1,1) lds={o['lds']}
.amdgcn_target "amdgcn-amd-amdhsa--gfx950"
.text
.globl {KN}_kernel
.p2align 8
.type {KN}_kernel,@function
{KN}_kernel:
""" + body + f""".section .rodata,"a"
.p2align 6
.amdhsa_kernel {KN}_kernel
  .amdhsa_next_free_vgpr 256
  .amdhsa_next_free_sgpr 102
  .amdhsa_accum_offset 256
  .amdhsa_group_segment_fixed_size 0
  .amdhsa_kernarg_size 104
  .amdhsa_user_sgpr_count 2
  .amdhsa_user_sgpr_kernarg_segment_ptr 1
  .amdhsa_system_sgpr_workgroup_id_x 1
.end_amdhsa_kernel
"""

if __name__ == "__main__":
    out = sys.argv[1]; opt = {}
    for kv in sys.argv[2:]:
        k, v = kv.split("="); opt[k] = eval(v)
    open(out, "w").write(Gen(**opt).build())
```

```python
import sys, struct
from hazard import fix
KN = "gated_mix__sliding_block_cached__glu_gated_reglu__decode"
STAMP_OFF = 0x30000000
def f2u(x): return struct.unpack("<I", struct.pack("<f", x))[0]

class Gen:
    def __init__(self, **opt):
        self.o = dict(W=10, stamps=False, wsoff=0, qp=1, hp=5, CG=4, round_scores=True, prefetch=0, jitter=0,
                      hold=0, amp=-1, lds=90112, nt="nt", spin=20000, pre_g=2, pre_q=2, pre_s=3, Wt=4, fdepth=1, odepth=1,
                      cnt=0, post=12, osleep=0, fsleep=0, pre_qp=0, first='sc1', pt=0, ptf='', st3=0, early=3, skewm='', adapt=11, flagrd=5, nearly=7, lpost=8, st4=0, atime=0, obar=1, opa=0, fsel=0, tlb=0, outf='', rot=1, mix=1, hlate=1, fx=1, oearly=1, pts=1, epf='', od=1, rorig=1, xs=0, cpf=0, osel=1, dlate=1, ampx=-1, tb=10, p3f='nt', skip=1)
        for k in opt: assert k in self.o, k
        self.o.update(opt)
        self.l = []; self.vm = []; self.nl = 0; self.nst = 0; self.names = []
    def a(self, s):
        for x in s.strip().split("\n"):
            x = x.strip()
            if x: self.l.append(x if x.endswith(":") else "    " + x)
    def lab(self, p):
        self.nl += 1
        return f"L_{p}{self.nl}"
    def issue(self, label, s):
        self.a(s); self.vm.append(label)
    def wait(self, label):
        n = len(self.vm) - 1 - self.vm.index(label)
        assert n <= 63
        self.a(f"s_waitcnt vmcnt({n})")
    def sreg(self, k): return 16 + 2 * k if k < 8 else 36 + 2 * (k - 8)
    def stamp(self, name=""):
        if self.o["stamps"]:
            assert self.nst < 16
            r = self.sreg(self.nst)
            self.a(f"s_memrealtime s[{r}:{r+1}]")
            self.names.append(name); self.nst += 1

    def build(self):
        o = self.o; a = self.a; nt = o["nt"]; W = o["W"]
        RA, OB, FB, MLB = 0x1000, 0x50000, 0xA0000, 0xF8000
        CG = o["CG"]; R = 144 // CG
        XL, P1, QL, MX, LS, GS, HP, HL, OL, OW, LF, RD, DUM = 0, 2560, 10752, 14848, 14976, 15104, 15232, 15616, 15744, 15872, 19968, 29184, 29696
        OLX = 30208; XF = 31744
        vL = 1; vM = [2, 3, 4, 5]; vSel = [6, 7, 8, 9]
        vQa, vQb, vGU, vK, vV, vPD, vPD2, vPO, vTM = 10, 11, 12, 13, 14, 15, 16, 18, 17
        vMx, vMc, vFA, vRS = 19, 20, 21, 22
        vX = 24
        vS = 32; vBq = 48; vAq = 52; vAg = 56; vAr = 60; vAD = 56; vAO = 64; vT = 72; vPoll = 92
        vCH, vG, vOMG, vJ = 96, 97, 98, 99
        R1 = 100; R2 = 164; vU = 228
        vAcc = vAq
        dst = {}
        for i in range(5): dst[f"Q{i}"] = R1 + 4 * i
        for i in range(9): dst[f"G{i}"] = R1 + 20 + 4 * i
        for i in range(2): dst[f"R{i}"] = R1 + 56 + 4 * i
        for i in range(16): dst[f"K{i}"] = R2 + 4 * i; dst[f"V{i}"] = R1 + 4 * i
        for i in range(6): dst[f"D{i}"] = R2 + 4 * i; dst[f"O{i}"] = R2 + 24 + 4 * i
        big = [f"Q{i}" for i in range(5)] + [f"G{i}" for i in range(9)] + ["R0", "R1"] + [f"K{i}" for i in range(16)] + \
              [f"V{i}" for i in range(16)] + [f"O{i}" for i in range(6)] + [f"D{i}" for i in range(6)]
        sTAG = 62; sJ = 3; sKQ, sG, sS, sC6 = 8, 9, 10, 11; s4608 = 12
        sKV = 13; sGU = 14; sC = 15
        SQ, SGU, SK, SR, SD, SO, SX, SV, SW = 64, 68, 72, 76, 80, 84, 88, 92, 96
        sPL = 34; sXE = 100; XB = 0xF9000
        r4 = lambda v: f"v[{v}:{v+3}]"
        r2 = lambda v: f"v[{v}:{v+1}]"
        DPP = "row_mask:0xf bank_mask:0xf"
        self.ip = 0; self.gdone = self.kdone = self.hready = False
        def issue_next():
            lb = big[self.ip]; self.ip += 1
            d = r4(dst[lb]); k = int(lb[1:]); c = lb[0]
            if c == "V": assert self.gdone
            if c in "DO": assert self.kdone
            if c == "Q":
                if k == 0: self.issue(lb, f"buffer_load_dwordx4 {d}, v{vQa}, s[{SQ}:{SQ+3}], 0 offen {nt}")
                elif k < 4: self.issue(lb, f"buffer_load_dwordx4 {d}, v{vQa}, s[{SQ}:{SQ+3}], s{32+k} offen {nt}")
                else: self.issue(lb, f"buffer_load_dwordx4 {d}, v{vQb}, s[{SQ}:{SQ+3}], 0 offen {nt}")
            elif c == "G":
                if k == 0: a(f"s_mov_b32 s{sGU}, 0")
                elif k < 8: a(f"s_addk_i32 s{sGU}, 9216")
                if k < 8: self.issue(lb, f"buffer_load_dwordx4 {d}, v{vGU}, s[{SGU}:{SGU+3}], s{sGU} offen {nt}")
                else: self.issue(lb, f"buffer_load_dwordx4 {d}, v{vPD}, s[{SGU}:{SGU+3}], 0 offen {nt}")
            elif c == "R":
                self.issue(lb, f"buffer_load_dwordx4 {d}, v{vPD2 if k == 0 else vPO}, s[{SR}:{SR+3}], 0 offen {nt}")
            elif c in "KV":
                if k == 0: a(f"s_lshl_b32 s{sKV}, s{sG}, 12" if o["rot"] else f"s_mov_b32 s{sKV}, 0")
                else:
                    a(f"s_addk_i32 s{sKV}, 4096")
                    if o["rot"]: a(f"s_bitset0_b32 s{sKV}, 16")
                sr, vo = (SK, vK) if c == "K" else (SV, vV)
                self.issue(lb, f"buffer_load_dwordx4 {d}, v{vo}, s[{sr}:{sr+3}], s{sKV} offen {nt}")
            else:
                sr = SD if c == "D" else SO
                vo = vPO if c == "O" else (vPD if k < 2 else vPD2)
                if c == "D" and o["skip"]:
                    assert self.hready; vo = vU + 20 + k
                so, im = ("0", k * 1152) if k < 4 else (f"s{s4608}", (k - 4) * 1152)
                if c == "O" and k >= 4: vo, so = vGU, "0"
                self.issue(lb, f"buffer_load_dwordx4 {d}, v{vo}, s[{sr}:{sr+3}], {so} offen offset:{im} {o['p3f']}")
        def fill(label, w=None):
            w = W if w is None else w
            idx = big.index(label)
            while self.ip < len(big) and self.ip <= idx + w: issue_next()
        def more(n):
            for _ in range(n):
                if self.ip < len(big): issue_next()
        sT2 = 63; TB = o["tb"]; TM2 = (1 << TB) - 1
        def tagins(v, wide=False):
            for i in range(4): a(f"v_and_or_b32 v{v+i}, v{v+i}, v{vTM}, s{sT2 if wide else sTAG}")
        def tagchk(vs, acc, extra=0, wide=False):
            first = True; st = sT2 if wide else sTAG
            for v in vs:
                for i in range(4 + extra):
                    if first: a(f"v_xor_b32 v{acc}, s{st}, v{v+i}"); first = False
                    else: a(f"v_bitop3_b32 v{acc}, v{v+i}, s{st}, v{acc} bitop3:0xbe")
            a(f"v_and_b32 v{acc}, {TM2 if wide else 0xff:#x}, v{acc}")
            a(f"v_cmp_ne_u32 vcc, 0, v{acc}")
        def retry_loop(name, loads, vs, acc):
            Lok = self.lab(name + "ok"); Lre = self.lab(name + "re")
            a(f"s_mov_b32 s7, {o['spin']}")
            a(f"{Lre}:")
            tagchk(vs, acc)
            a(f"s_cbranch_vccz {Lok}")
            for ld in loads: a(ld)
            a("s_waitcnt vmcnt(0)")
            a("s_sub_u32 s7, s7, 1")
            a("s_cmp_lg_u32 s7, 0")
            a(f"s_cbranch_scc1 {Lre}")
            a(f"{Lok}:")
            if o["stamps"] and o["cnt"] == 1:
                r = self.sreg(self.nst); self.names.append(name + "retry"); self.nst += 1
                a(f"s_sub_u32 s7, {o['spin']}, s7"); a(f"s_mul_i32 s7, s7, 100")
                a(f"s_add_u32 s{r}, s16, s7"); a(f"s_addc_u32 s{r+1}, s17, 0")
        def pipe_poll(name, mk, sets, acc, first_issued, fin, slp=0, extra=0):
            n = len(mk(sets[0])); D = len(sets)
            Lx = self.lab(name + "x"); Lre = self.lab(name + "re")
            Lmv = [self.lab(name + "mv") for _ in range(D)]
            for d in range(first_issued, D):
                for ld in mk(sets[d]): a(ld)
            a(f"s_mov_b32 s7, {o['spin']}")
            a(f"{Lre}:")
            for d in range(D):
                a(f"s_waitcnt vmcnt({n*(D-1)})")
                tagchk(sets[d], acc, extra)
                a(f"s_cbranch_vccz {Lmv[d]}")
                if slp: a(f"s_sleep {slp}")
                for ld in mk(sets[d]): a(ld)
            a("s_sub_u32 s7, s7, 1")
            a("s_cmp_lg_u32 s7, 0")
            a(f"s_cbranch_scc1 {Lre}")
            for d in range(D - 1, -1, -1):
                a(f"{Lmv[d]}:")
                fin(sets[d])
                if d: a(f"s_branch {Lx}")
            a(f"{Lx}:")
        def dual(name, st, local):
            if local:
                a("s_mov_b64 s[4:5], exec")
                a(f"s_and_b64 exec, s[4:5], s[{sPL}:{sPL+1}]")
                self.issue(name + "p", st)
                a(f"s_andn2_b64 exec, s[4:5], s[{sPL}:{sPL+1}]")
            self.issue(name, st + " sc1")
            a("s_mov_b64 exec, -1")
        def sel_poll(name, pieces, acc, depth):
            Lx = self.lab(name + "x"); Lre = self.lab(name + "re")
            n = sum(len(p[0]) for p in pieces)
            for _ in range(depth - 1):
                for p in pieces:
                    for ld in p[0]: a(ld)
            a(f"s_mov_b32 s7, {o['spin']}")
            a(f"{Lre}:")
            a(f"s_waitcnt vmcnt({n * (depth - 1)})")
            for i, p in enumerate(pieces):
                first = True
                for v in range(p[1], p[1] + p[2]):
                    if first: a(f"v_xor_b32 v{acc+i}, s{sT2}, v{v}"); first = False
                    else: a(f"v_bitop3_b32 v{acc+i}, v{v}, s{sT2}, v{acc+i} bitop3:0xbe")
                a(f"v_and_b32 v{acc+i}, {TM2:#x}, v{acc+i}")
            for i, p in enumerate(pieces): a(f"v_cmp_ne_u32 s[{64+2*i}:{65+2*i}], 0, v{acc+i}")
            if len(pieces) == 1: a("s_cmp_lg_u64 s[64:65], 0")
            else:
                a("s_or_b64 s[4:5], s[64:65], s[66:67]")
                for i in range(2, len(pieces)): a(f"s_or_b64 s[4:5], s[4:5], s[{64+2*i}:{65+2*i}]")
            a(f"s_cbranch_scc0 {Lx}")
            if o["xs"]: a(f"s_sleep {o['xs']}")
            for i, p in enumerate(pieces):
                a(f"s_mov_b64 exec, s[{64+2*i}:{65+2*i}]")
                for ld in p[0]: a(ld)
            a("s_mov_b64 exec, -1")
            a("s_sub_u32 s7, s7, 1")
            a("s_cmp_lg_u32 s7, 0")
            a(f"s_cbranch_scc1 {Lre}")
            a(f"{Lx}:")
        def pkadd(d, x, y):
            a(f"v_pk_add_f32 {r2(d)}, {r2(x)}, {r2(y)}"); a(f"v_pk_add_f32 {r2(d+2)}, {r2(x+2)}, {r2(y+2)}")

        self.stamp("start")
        if o["hold"]: a("s_memrealtime s[16:17]")
        a(f"""
        s_load_dwordx16 s[36:51], s[0:1], 0
        s_cmpk_ge_u32 s2, 0x100
        s_cbranch_scc1 L_end
        """)
        if o["jitter"]:
            a(f"""s_mul_i32 s4, s2, 0x9e3779b1
            s_lshr_b32 s4, s4, {32-o["jitter"]}
            L_jit:
            s_cmp_eq_u32 s4, 0
            s_cbranch_scc1 L_jitd
            s_sleep 40
            s_sub_u32 s4, s4, 1
            s_branch L_jit
            L_jitd:""")
        a("s_mov_b32 s101, s2")
        a(f"""
        s_lshr_b32 s{sKQ}, s2, 6
        s_mul_i32 s4, s{sKQ}, {144*8192}
        s_and_b32 s5, s2, 7
        s_bfe_u32 s6, s2, 0x30003
        s_lshl3_add_u32 s{sC6}, s5, s6
        s_lshl_b32 s5, s{sC6}, 7
        s_add_u32 s4, s4, s5
        v_lshrrev_b32 v{vT}, 3, v0
        v_and_b32 v{vT+1}, 7, v0
        v_lshlrev_b32 v{vT+1}, 4, v{vT+1}
        v_lshl_add_u32 v{vQa}, v{vT}, 15, v{vT+1}
        s_mov_b32 s{SQ+2}, {143*8192+128}
        s_mov_b32 s{SQ+3}, 0x20000
        s_movk_i32 s33, 0x2000
        s_movk_i32 s34, 0x4000
        s_movk_i32 s35, 0x6000
        s_waitcnt lgkmcnt(0)
        s_add_u32 s{SQ}, s42, s4
        s_addc_u32 s{SQ+1}, s43, 0
        """)
        if o["st3"]: self.stamp("karg")
        more(4)
        if o["st3"]: self.stamp("Q3iss")
        a(f"""
        s_load_dwordx8 s[52:59], s[0:1], 64
        s_load_dwordx2 s[60:61], s[0:1], 96
        s_lshl_b32 s2, s{sKQ}, 6
        s_add_u32 s2, s2, s{sC6}
        v_lshl_add_u32 v{vQb}, v{vT}, 13, v{vT+1}
        v_add_u32 v{vQb}, {128*8192}, v{vQb}
        v_lshrrev_b32 v{vJ}, 6, v0
        v_lshlrev_b32 v{vV}, 4, v0
        v_readfirstlane_b32 s{sJ}, v{vJ}
        """)
        more(1)
        a(f"""
        s_mov_b32 s{SX}, s36
        s_mov_b32 s{SX+1}, s37
        s_movk_i32 s{SX+2}, 1152
        s_mov_b32 s{SX+3}, 0x20000
        """)
        self.issue("X", f"buffer_load_dwordx4 {r4(vX)}, v{vV}, s[{SX}:{SX+3}], 0 offen")
        MIXG = f"s_xor_b32 s5, s{sC6}, s7\ns_lshl_b32 s5, s5, 7" if o["mix"] else ""
        a(f"""
        s_bitcmp1_b32 s{sJ}, 0
        s_cselect_b32 s{SGU}, s50, s48
        s_cselect_b32 s{SGU+1}, s51, s49
        s_cselect_b32 s7, 2, 1
        s_lshr_b32 s6, s{sJ}, 1
        s_lshl1_add_u32 s6, s{sKQ}, s6
        s_mul_i32 s4, s6, {72*9216}
        {MIXG}
        s_add_u32 s4, s4, s5
        s_add_u32 s{SGU}, s{SGU}, s4
        s_addc_u32 s{SGU+1}, s{SGU+1}, 0
        s_mov_b32 s{SGU+2}, {71*9216+128}
        s_mov_b32 s{SGU+3}, 0x20000
        v_and_b32 v{vT+2}, 7, v{vT}
        v_mul_u32_u24 v{vGU}, {8*9216}, v{vT+2}
        v_add_u32 v{vGU}, v{vGU}, v{vT+1}
        """)
        more(2)
        a(f"""
        v_mul_u32_u24 v{vPD}, 9216, v{vT+2}
        v_add_u32 v{vPD}, v{vPD}, v{vT+1}
        v_add_u32 v{vPD}, {64*9216}, v{vPD}
        s_waitcnt lgkmcnt(0)
        s_mov_b32 s{SR}, s54
        s_mov_b32 s{SR+1}, s55
        s_movk_i32 s{SR+2}, 1152
        s_mov_b32 s{SR+3}, 0x20000
        """)
        self.issue("GW", f"buffer_load_dwordx4 {r4(vX+4)}, v{vV}, s[{SR}:{SR+3}], 0 offen")
        if o["prefetch"]:
            a(f"""
            s_getpc_b64 s[4:5]
            s_lshr_b32 s7, s2, 3
            s_mul_i32 s7, s7, {128*o['prefetch']}
            v_and_b32 v{vT+3}, 63, v0
            v_lshl_add_u32 v{vT+3}, v{vT+3}, 7, s7
            s_mov_b64 exec, {(1 << o['prefetch']) - 1}
            """)
            self.issue("PF", f"global_load_dword v{vMc}, v{vT+3}, s[4:5]")
            a("s_mov_b64 exec, -1")
        more(o["early"])
        TLB = ""
        if o["tlb"]:
            TLB = f"""s_load_dword s33, s[{SK}:{SK+1}], 0
            s_load_dword s33, s[{SV}:{SV+1}], 0
            s_load_dword s33, s[{SO}:{SO+1}], 0
            s_load_dword s33, s[{SR}:{SR+1}], 0
            s_mul_i32 s4, s{sC6}, {64*1152}
            s_add_u32 s4, s52, s4
            s_addc_u32 s5, s53, 0
            s_load_dword s33, s[4:5], 0
            s_add_u32 s4, s52, {4300*1152}
            s_addc_u32 s5, s53, 0
            s_load_dword s33, s[4:5], 0"""
        a(f"""
        s_add_u32 s60, s60, {o['wsoff']:#x}
        s_addc_u32 s61, s61, 0
        s_load_dword s{sTAG}, s[60:61], 0
        s_bitcmp1_b32 s2, 0
        s_cselect_b32 s{SR}, s50, s48
        s_cselect_b32 s{SR+1}, s51, s49
        s_bfe_u32 s7, s2, 0x20001
        s_lshl2_add_u32 s7, s{sKQ}, s7
        s_mul_i32 s4, s7, {36*9216}
        s_lshr_b32 s5, s{sC6}, 3
        s_lshl_b32 s5, s5, 7
        s_add_u32 s4, s4, s5
        s_add_u32 s4, s4, 8192
        s_add_u32 s{SR}, s{SR}, s4
        s_addc_u32 s{SR+1}, s{SR+1}, 0
        s_mov_b32 s{SR+2}, {35*9216+128}
        v_mul_u32_u24 v{vPD2}, 9216, v{vT}
        v_add_u32 v{vPD2}, v{vPD2}, v{vT+1}
        v_add_u32 v{vPO}, {32*9216}, v{vPD2}
        s_lshr_b32 s{sG}, s{sC6}, 2
        s_and_b32 s{sS}, s2, 3
        s_lshl2_add_u32 s{sS}, s{sKQ}, s{sS}
        s_lshl_b32 s4, s{sG}, 24
        s_lshl_b32 s5, s{sS}, 16
        s_add_u32 s4, s4, s5
        s_add_u32 s4, s4, {61440*256}
        s_add_u32 s{SK}, s38, s4
        s_addc_u32 s{SK+1}, s39, 0
        s_mov_b32 s{SK+2}, 0x10000
        s_mov_b32 s{SK+3}, 0x20000
        s_add_u32 s{SV}, s40, s4
        s_addc_u32 s{SV+1}, s41, 0
        s_mov_b32 s{SV+2}, 0x10000
        s_mov_b32 s{SV+3}, 0x20000
        s_lshr_b32 s4, s2, 7
        s_mul_i32 s4, s4, 576
        s_add_u32 s{SD}, s52, s4
        s_addc_u32 s{SD+1}, s53, 0
        s_mov_b32 s{SD+2}, {4607*1152+576}
        s_mov_b32 s{SD+3}, 0x20000
        s_and_b32 s5, s{sS}, 7
        s_lshl3_add_u32 s5, s{sG}, s5
        s_mul_i32 s5, s5, {32*1152}
        s_add_u32 s4, s4, s5
        s_add_u32 s{SO}, s44, s4
        s_addc_u32 s{SO+1}, s45, 0
        s_mov_b32 s{SO+2}, {31*1152+576}
        s_mov_b32 s{SO+3}, 0x20000
        s_mov_b32 s{SW}, s60
        s_mov_b32 s{SW+1}, s61
        s_mov_b32 s{SW+2}, 0x100000
        s_mov_b32 s{SW+3}, 0x20000
        s_movk_i32 s{s4608}, 4608
        {TLB}
        v_and_b32 v{vL}, 63, v0
        v_and_b32 v{vU}, 3, v0
        v_lshlrev_b32 v{vU}, 4, v{vU}
        v_bfe_u32 v{vU+1}, v0, 2, 2
        v_lshl_add_u32 v{vU}, v{vU+1}, 8, v{vU}
        v_bfe_u32 v{vU+1}, v0, 4, 2
        v_lshl_add_u32 v{vU}, v{vU+1}, 6, v{vU}
        v_lshl_add_u32 v{vK}, v{vJ}, 10, v{vU}
        v_mov_b32 v{vTM}, 0xffffff00
        v_and_b32 v{vU}, 1, v0
        v_lshlrev_b32 v{vU}, 4, v{vU}
        v_mov_b32 v{vU+1}, 0xffff
        v_lshlrev_b32 v{vU}, v{vU}, v{vU+1}
        v_bfe_u32 v{vU+1}, v0, 1, 2
        v_cmp_eq_u32 s[4:5], 0, v{vU+1}
        v_cmp_eq_u32 s[36:37], 1, v{vU+1}
        v_cmp_eq_u32 vcc, 2, v{vU+1}
        v_cndmask_b32 v{vM[0]}, 0, v{vU}, s[4:5]
        v_cndmask_b32 v{vM[1]}, 0, v{vU}, s[36:37]
        v_cmp_eq_u32 s[36:37], 3, v{vU+1}
        v_cndmask_b32 v{vM[2]}, 0, v{vU}, vcc
        v_or_b32 v{vU+3}, v{vM[0]}, v{vM[2]}
        v_cndmask_b32 v{vM[3]}, 0, v{vU}, s[36:37]
        v_or_b32 v{vU+1}, v{vM[1]}, v{vM[3]}
        v_mov_b32 v{vU+2}, 0x0c0c0c0c
        s_mov_b32 s32, 0x01000100
        s_mov_b32 s63, 0x03020302
        v_bfi_b32 v{vSel[0]}, v{vU+3}, s32, v{vU+2}
        v_bfi_b32 v{vSel[1]}, v{vU+1}, s32, v{vU+2}
        v_bfi_b32 v{vSel[2]}, v{vU+3}, s63, v{vU+2}
        v_bfi_b32 v{vSel[3]}, v{vU+1}, s63, v{vU+2}
        """)
        if o["pt"]:
            a(f"""
            s_lshl_b32 s4, s2, 10
            s_add_u32 s4, s4, {RA}
            s_lshl4_add_u32 s5, s{sG}, s{sS}
            s_mul_i32 s5, s5, 1152
            s_add_u32 s5, s5, {OB}
            s_cmp_eq_u32 s{sJ}, 1
            s_cselect_b32 s4, s5, s4
            s_and_b32 s5, s2, 127
            s_mul_i32 s5, s5, {CG*16}
            s_lshr_b32 s100, s2, 7
            s_lshl1_add_u32 s100, s100, s{sJ}
            s_sub_u32 s100, s100, 2
            s_mul_i32 s100, s100, {9*128*CG*16}
            s_add_u32 s5, s5, s100
            s_add_u32 s5, s5, {FB}
            s_cmp_ge_u32 s{sJ}, 2
            s_cselect_b32 s4, s5, s4
            s_cselect_b32 s5, {(128*CG*16).bit_length()-1}, 7
            v_lshlrev_b32 v{vU}, s5, v{vL}
            v_add_u32 v{vU}, s4, v{vU}
            s_mov_b64 exec, 0x1ff
            """)
            self.issue("PT", f"buffer_load_dword v{vMx}, v{vU}, s[{SW}:{SW+3}], 0 offen {o['ptf']}")
            a("s_mov_b64 exec, -1")
        a(f"""
        v_lshlrev_b32 v{vU}, 2, v{vL}
        v_mov_b32 v{vU+4}, 0
        v_mov_b32 v{vU+5}, 0
        v_mov_b32 v{vU+6}, 0
        v_mov_b32 v{vU+7}, 0
        ds_write_b32 v{vU}, v{vU+4} offset:{HL}
        ds_write_b32 v{vU}, v{vU+4} offset:{XL+2304}
        v_lshlrev_b32 v{vU+1}, 3, v{vL}
        ds_write_b64 v{vU+1}, {r2(vU+4)} offset:{OLX+1024}
        v_and_b32 v{vU+1}, 1, v{vJ}
        v_lshlrev_b32 v{vU+1}, 11, v{vU+1}
        v_lshl_add_u32 v{vU+1}, v{vL}, 4, v{vU+1}
        ds_write_b128 v{vU+1}, {r4(vU+4)} offset:{P1+2048+1024}
        """)
        a(f"""
        s_mul_i32 s4, s{sKQ}, 576
        v_lshl_add_u32 v{vU+8}, v{vT}, 4, s4
        v_lshl_add_u32 v{vU+9}, v{vT}, 2, s4
        s_mul_i32 s4, s6, 288
        v_lshl_add_u32 v{vU+10}, v{vT+2}, 5, s4
        v_lshl_add_u32 v{vU+11}, v{vT+2}, 2, s4
        s_mul_i32 s4, s7, 144
        v_lshl_add_u32 v{vU+12}, v{vT}, 2, s4
        v_bfe_u32 v{vU+4}, v0, 3, 1
        v_bfe_u32 v{vU+5}, v0, 5, 1
        v_cmp_eq_u32 vcc, v{vU+4}, v{vU+5}
        v_bfe_u32 v{vU+4}, v0, 4, 1
        v_lshlrev_b32 v{vU+4}, 7, v{vU+4}
        v_lshl_add_u32 v{vU+4}, v{vU+5}, 8, v{vU+4}
        v_lshrrev_b32 v{vU+5}, 2, v{vT+1}
        v_add_u32 v{vU+4}, v{vU+4}, v{vU+5}
        v_lshl_add_u32 v{vU+13}, v{vJ}, 9, v{vU+4}
        s_and_b32 s4, s{sJ}, 1
        s_lshl_b32 s4, s4, 11
        s_lshr_b32 s5, s{sJ}, 1
        s_lshl_b32 s5, s5, 9
        s_add_u32 s4, s4, s5
        s_add_u32 s4, s4, 2048
        v_add_u32 v{vU+14}, s4, v{vU+4}
        v_mov_b32 v{vU+5}, {DUM-P1}
        v_cndmask_b32 v{vU+13}, v{vU+5}, v{vU+13}, vcc
        v_cndmask_b32 v{vU+14}, v{vU+5}, v{vU+14}, vcc
        v_mov_b32 v{vU+5}, {DUM-P1-6144}
        v_lshl_add_u32 v{vU+15}, v{vJ}, 9, v{vU+4}
        v_cndmask_b32 v{vU+15}, v{vU+5}, v{vU+15}, vcc
        v_lshlrev_b32 v{vU+16}, 5, v0
        v_min_u32 v{vU+16}, 2304, v{vU+16}
        """)
        if o["skewm"]:
            a(f"""
            s_waitcnt lgkmcnt(0)
            s_lshl_b32 s4, s2, 2
            s_add_u32 s4, s4, 0xF0000
            v_mov_b32 v{vBq}, s16
            v_mov_b32 v{vBq+1}, s4
            s_mov_b64 exec, 1
            """)
            self.issue("SK", f"buffer_store_dword v{vBq}, v{vBq+1}, s[{SW}:{SW+3}], 0 offen sc1")
            a("s_mov_b64 exec, -1")
        (None if o["st4"] else self.stamp("prol"))
        if o["st3"]:
            self.wait("Q0"); self.stamp("Q0land")
        self.wait("X")
        if o["st3"]: self.stamp("Xland")
        for i in range(4):
            a(f"v_perm_b32 v{vT+2*i}, v{vX+i}, v{vX+i}, s32")
            a(f"v_perm_b32 v{vT+2*i+1}, v{vX+i}, v{vX+i}, s63")
        a(f"""
        ds_write_b128 v{vU+16}, {r4(vT)} offset:{XL}
        ds_write_b128 v{vU+16}, {r4(vT+4)} offset:{XL+16}
        """)
        fill("Q4")
        a(f"""
        s_waitcnt lgkmcnt(0)
        s_barrier
        ds_read_b128 {r4(vS)}, v{vU+8} offset:{XL}
        ds_read_b32 v{vS+4}, v{vU+9} offset:{XL+512}
        ds_read_b128 {r4(vS+8)}, v{vU+10} offset:{XL}
        ds_read_b128 {r4(vS+12)}, v{vU+10} offset:{XL+16}
        ds_read_b32 v{vS+5}, v{vU+11} offset:{XL+256}
        ds_read_b32 v{vS+6}, v{vU+12} offset:{XL}
        ds_read_b32 v{vS+7}, v{vU+12} offset:{XL+128}
        s_add_u32 s{sTAG}, s{sTAG}, 1
        s_and_b32 s{sT2}, s{sTAG}, {TM2:#x}
        s_and_b32 s{sTAG}, s{sTAG}, 0xff
        s_getreg_b32 s{sXE}, hwreg(HW_REG_XCC_ID, 0, 4)
        s_lshl_b32 s{sXE}, s{sXE}, 8
        s_add_u32 s{sXE}, s{sXE}, s{sTAG}
        s_waitcnt lgkmcnt(5)
        """)
        nb = [0]
        def l8(lbl, xreg, acc, first, dowait=True):
            B = vT + 4 * (nb[0] % 4); nb[0] += 1
            for j in range(4): a(f"v_and_b32 v{B+j}, v{xreg}, v{vM[j]}")
            if dowait: self.wait(lbl)
            a(f"v_mfma_f32_16x16x32_bf16 {r4(acc)}, {r4(dst[lbl])}, {r4(B)}, {'0' if first else r4(acc)}")
        for t in range(5): l8(f"Q{t}", vS + t, vAq, t == 0, False)
        self.wait("GW")
        for i in range(4):
            a(f"""
            v_lshlrev_b32 v{vU}, 16, v{vX+i}
            v_and_b32 v{vU+1}, 0xffff0000, v{vX+i}
            v_lshlrev_b32 v{vU+2}, 16, v{vX+4+i}
            v_and_b32 v{vU+3}, 0xffff0000, v{vX+4+i}
            v_pk_mul_f32 {r2(vU)}, {r2(vU)}, {r2(vU+2)}
            v_cvt_pk_bf16_f32 v{vU}, v{vU}, v{vU+1}
            v_and_b32 v{vU+1}, 0xffff0000, v{vU}
            v_lshlrev_b32 v{vU}, 16, v{vU}
            """)
            if i == 0: a(f"v_pk_mul_f32 {r2(vU+4)}, {r2(vU)}, 1.0 op_sel_hi:[1,0]")
            else: a(f"v_pk_add_f32 {r2(vU+4)}, {r2(vU+4)}, {r2(vU)}")
        for i in range(4): a(f"ds_write_b32 v{vU+13}, v{vAq+i} offset:{P1+32*i}")
        a(f"v_add_f32 v{vU+4}, v{vU+4}, v{vU+5}")
        for r in (1, 2, 4, 8): a(f"v_add_f32_dpp v{vU+4}, v{vU+4}, v{vU+4} row_ror:{r} {DPP}")
        a(f"""
        v_lshrrev_b32 v{vU+1}, 4, v0
        v_lshlrev_b32 v{vU+1}, 2, v{vU+1}
        ds_write_b32 v{vU+1}, v{vU+4} offset:{GS}
        s_lshl_b32 s4, s2, 10
        s_add_u32 s4, s4, {RA}
        v_lshl_add_u32 v{vFA}, v{vL}, 4, s4
        s_waitcnt lgkmcnt(0)
        s_barrier
        """)
        def pubA(lo, hi, wave, name, tg=None):
            L = self.lab(name)
            mask = ((1 << hi) - 1) ^ ((1 << lo) - 1)
            a(f"""
            s_cmp_lg_u32 s{sJ}, {wave}
            s_cbranch_scc1 {L}
            s_mov_b32 exec_lo, {mask & 0xffffffff:#x}
            s_mov_b32 exec_hi, {mask >> 32:#x}
            v_lshrrev_b32 v{vU}, 4, v{vL}
            v_lshlrev_b32 v{vU}, 11, v{vU}
            v_and_b32 v{vU+1}, 15, v{vL}
            v_lshl_add_u32 v{vU}, v{vU+1}, 4, v{vU}
            """)
            tg = tg or [vAO, vAO + 4, vBq, vPoll, vU + 4, vU + 8, vU + 20, vU + 24]
            for p in range(8): a(f"ds_read_b128 {r4(tg[p])}, v{vU} offset:{P1+256*p}")
            a("s_waitcnt lgkmcnt(0)")
            for p in range(1, 8): pkadd(tg[0], tg[0], tg[p])
            tagins(tg[0])
            if name == "qpub":
                a(f"v_and_b32 v{tg[0]}, 0xfffff000, v{tg[0]}"); a(f"v_or_b32 v{tg[0]}, s{sXE}, v{tg[0]}")
            a(f"""
            s_branch {L}s
            {L}:
            s_mov_b64 exec, 0
            {L}s:
            """)
            dual(name, f"buffer_store_dwordx4 {r4(tg[0])}, v{vFA}, s[{SW}:{SW+3}], 0 offen", name == "gpub")
        pubA(0, 16, 3, "qpub")
        (None if o["st4"] else self.stamp("qpub"))
        more(o["pre_qp"])
        for k in range(9):
            l8(f"G{k}", vS + 8 + k if k < 8 else vS + 5, vAg, k == 0)
            fill(f"G{k}")
            if k == 2:
                a(f"""
                v_mov_b32 v{vU}, 0
                ds_read_b128 {r4(vU+4)}, v{vU} offset:{GS}
                ds_read_b32 v{vU+8}, v{vU} offset:{GS+16}
                s_waitcnt lgkmcnt(0)
                v_pk_add_f32 {r2(vU+4)}, {r2(vU+4)}, {r2(vU+6)}
                v_add_f32 v{vU}, v{vU+4}, v{vU+5}
                v_add_f32 v{vU}, v{vU}, v{vU+8}
                v_cvt_pk_bf16_f32 v{vU}, v{vU}, v{vU}
                v_lshlrev_b32 v{vU}, 16, v{vU}
                v_mul_f32 v{vU}, {f2u(-1.4426950408889634):#x}, v{vU}
                v_exp_f32 v{vU}, v{vU}
                v_add_f32 v{vU}, 1.0, v{vU}
                v_rcp_f32 v{vU}, v{vU}
                v_cvt_pk_bf16_f32 v{vU}, v{vU}, v{vU}
                v_lshlrev_b32 v{vG}, 16, v{vU}
                v_sub_f32 v{vU}, 1.0, v{vG}
                v_cvt_pk_bf16_f32 v{vU}, v{vU}, v{vU}
                v_lshlrev_b32 v{vOMG}, 16, v{vU}
                """)
            if k == 5:
                a(f"""
                s_lshl_b32 s4, s{sJ}, 16
                s_lshl_b32 s5, s{sG}, 12
                s_add_u32 s4, s4, s5
                s_add_u32 s4, s4, {RA}
                v_lshrrev_b32 v{vU}, 4, v{vL}
                v_lshlrev_b32 v{vU}, 10, v{vU}
                v_and_b32 v{vU+1}, 15, v{vL}
                v_lshl_add_u32 v{vU}, v{vU+1}, 4, v{vU}
                v_add_u32 v{vQa}, s4, v{vU}
                s_xor_b32 s5, s{sG}, 1
                s_lshl_b32 s5, s5, 12
                s_add_u32 s5, s5, {RA}
                v_bfe_u32 v{vU}, v0, 2, 2
                v_lshlrev_b32 v{vU}, 16, v{vU}
                v_and_b32 v{vU+1}, 3, v0
                v_lshl_add_u32 v{vU}, v{vU+1}, 10, v{vU}
                v_add_u32 v{vQb}, s5, v{vU}
                """)
        for k in range(2):
            l8(f"R{k}", vS + 6 + k, vAr, k == 0)
            if k == 1: self.gdone = True
            fill(f"R{k}")
        for i in range(4): a(f"ds_write_b32 v{vU+14}, v{vAg+i} offset:{P1+32*i}")
        a(f"""
        v_mul_u32_u24 v{vRS}, 1821, v0
        v_lshrrev_b32 v{vRS}, 16, v{vRS}
        v_mul_u32_u24 v{vCH}, 36, v{vRS}
        v_sub_u32 v{vCH}, v0, v{vCH}
        v_mul_u32_u24 v{vPO}, {6*1152}, v{vRS}
        v_lshl_add_u32 v{vPO}, v{vCH}, 4, v{vPO}
        v_add_u32 v{vGU}, 4608, v{vPO}
        """)
        for i in range(4): a(f"ds_write_b32 v{vU+15}, v{vAr+i} offset:{P1+6144+32*i}")
        a(f"""
        s_bfe_u32 s4, s2, 0x10006
        s_lshl1_add_u32 s4, s{sC6}, s4
        s_mul_i32 s4, s4, {32*1152}
        v_add_u32 v{vPD}, s4, v{vPO}
        s_lshr_b32 s5, s{sC6}, 3
        s_lshl_b32 s5, s5, 4
        s_and_b32 s6, s{sC6}, 7
        s_add_u32 s5, s5, s6
        s_bfe_u32 s6, s2, 0x10006
        s_lshl3_add_u32 s5, s6, s5
        s_mul_i32 s5, s5, {4*1152}
        s_add_u32 s5, s5, {(4096-2)*1152}
        v_lshl_add_u32 v{vPD2}, v{vCH}, 4, s5
        v_cmp_gt_u32 vcc, 5, v{vRS}
        v_cmp_gt_u32 s[4:5], 6, v{vRS}
        v_bfrev_b32 v{vU}, -2
        v_cndmask_b32 v{vPD2}, v{vPD2}, v{vPD}, vcc
        v_cndmask_b32 v{vPD}, v{vU}, v{vPD}, s[4:5]
        v_cndmask_b32 v{vPD2}, v{vU}, v{vPD2}, s[4:5]
        v_mul_u32_u24 v{vU}, 1152, v{vRS}
        v_lshl_add_u32 v{vCH}, v{vCH}, 5, v{vU}
        v_mul_u32_u24 v{vRS}, 12, v{vRS}
        v_add_u32 v{vRS}, {HL}, v{vRS}
        """)
        (None if o["st4"] else self.stamp("gpub"))
        more(o["pre_g"])
        if o["pts"]:
            a(f"""
            s_lshr_b32 s4, s2, 7
            s_mul_i32 s4, s4, {72 // CG}
            s_mul_i32 s5, s{sJ}, {(72 // CG + 3) // 4}
            s_add_u32 s4, s4, s5
            s_mul_i32 s4, s4, {128 * CG * 16}
            s_and_b32 s5, s2, 127
            s_mul_i32 s5, s5, {CG * 16}
            s_add_u32 s4, s4, s5
            s_add_u32 s4, s4, {FB}
            s_add_u32 s4, s60, s4
            s_addc_u32 s5, s61, 0
            """)
            for i in range((72 // CG + 3) // 4): a(f"s_load_dword s33, s[4:5], {128*CG*16*i} {'glc' if o['pts'] == 2 else ''}")
        if o["cpf"]:
            a(f"""
            s_getpc_b64 s[4:5]
            s_lshr_b32 s6, s101, 3
            s_lshl2_add_u32 s6, s6, s{sJ}
            s_lshl_b32 s6, s6, 6
            s_add_u32 s4, s4, s6
            s_addc_u32 s5, s5, 0
            s_load_dword s33, s[4:5], 0
            """)
        qload = f"buffer_load_dwordx4 {r4(vPoll)}, v{vQa}, s[{SW}:{SW+3}], 0 offen sc1"
        for k in range(o["qp"] + 1):
            self.wait(f"K{k}"); fill(f"K{k}")
        a(f"s_cmp_eq_u32 s{sJ}, 0"); a("s_cselect_b64 exec, 0xffff, 0")
        self.issue("QP2", f"buffer_load_dwordx4 {r4(vAO)}, v{vQb}, s[{SW}:{SW+3}], 0 offen sc1")
        a("s_mov_b64 exec, -1")
        self.issue("QP", qload.replace("sc1", o["first"]))
        lastK = min(15, self.ip - 1 - big.index("K0"))
        for k in range(o["qp"] + 1, lastK + 1):
            self.wait(f"K{k}"); fill(f"K{k}")
        more(o["pre_q"])
        a(f"""
        v_bfe_u32 v{vU+1}, v0, 3, 1
        v_lshlrev_b32 v{vU+1}, 9, v{vU+1}
        v_bfe_u32 v{vU+2}, v0, 4, 2
        v_lshl_add_u32 v{vU+1}, v{vU+2}, 7, v{vU+1}
        v_and_b32 v{vU+2}, 3, v0
        v_lshl_add_u32 v{vU+1}, v{vU+2}, 5, v{vU+1}
        """)
        self.wait("QP")
        retry_loop("q", [qload], [vPoll], vU)
        a(f"""
        ds_write_b128 v{vV}, {r4(vPoll)} offset:{QL}
        v_cmp_gt_u32 vcc, 16, v0
        v_xor_b32 v{vU}, s{sXE}, v{vPoll}
        v_xor_b32 v{vU+2}, s{sTAG}, v{vAO+1}
        v_bitop3_b32 v{vU+2}, v{vAO+2}, s{sTAG}, v{vU+2} bitop3:0xbe
        v_bitop3_b32 v{vU+2}, v{vAO+3}, s{sTAG}, v{vU+2} bitop3:0xbe
        v_and_b32 v{vU+2}, 0xff, v{vU+2}
        v_bitop3_b32 v{vU+2}, v{vAO}, s{sXE}, v{vU+2} bitop3:0xbe
        v_cndmask_b32 v{vU+2}, 0, v{vU+2}, vcc
        v_or_b32 v{vU}, v{vU}, v{vU+2}
        v_and_b32 v{vU}, 0xfff, v{vU}
        v_cmp_ne_u32 vcc, 0, v{vU}
        v_lshlrev_b32 v{vU+2}, 2, v{vJ}
        s_cmp_lg_u64 vcc, 0
        s_cselect_b32 s4, 1, 0
        v_mov_b32 v{vU}, s4
        ds_write_b32 v{vU+2}, v{vU} offset:{XF}
        v_mov_b32 v{vU+2}, 0
        s_waitcnt lgkmcnt(0)
        s_barrier
        ds_read_b128 {r4(vAO)}, v{vU+2} offset:{XF}
        """)
        qd = [vT, vT + 8, vU + 8, vU + 16]
        for k in range(4):
            a(f"ds_read_b128 {r4(qd[k])}, v{vU+1} offset:{QL+1024*k}")
            a(f"ds_read_b128 {r4(qd[k]+4)}, v{vU+1} offset:{QL+1024*k+16}")
        a("s_waitcnt lgkmcnt(4)")
        a(f"v_or3_b32 v{vAO}, v{vAO}, v{vAO+1}, v{vAO+2}")
        a(f"v_or_b32 v{vAO}, v{vAO}, v{vAO+3}")
        for i in range(0, 8, 2): a(f"v_pk_add_f32 {r2(qd[0]+i)}, {r2(qd[0]+i)}, {r2(qd[1]+i)}")
        a(f"v_cmp_eq_u32 s[{sPL}:{sPL+1}], 0, v{vAO}")
        a("s_waitcnt lgkmcnt(0)")
        for i in range(0, 8, 2): a(f"v_pk_add_f32 {r2(qd[2]+i)}, {r2(qd[2]+i)}, {r2(qd[3]+i)}")
        for i in range(0, 8, 2): a(f"v_pk_add_f32 {r2(qd[0]+i)}, {r2(qd[0]+i)}, {r2(qd[2]+i)}")
        for i in range(4): a(f"v_cvt_pk_bf16_f32 v{vBq+i}, v{qd[0]+2*i}, v{qd[0]+2*i+1}")
        pubA(16, 64, 2, "gpub", [vAO, vAO + 4, vT, vT + 4, vT + 8, vT + 12, vU + 4, vU + 8])
        a(f"v_mov_b32 v{vTM}, {0xffffffff ^ TM2:#x}")
        if o["stamps"] and o["cnt"] == 3:
            r = self.sreg(self.nst); self.names.append("xretry"); self.nst += 1
            a(f"s_and_b32 s4, s{sPL}, 100"); a(f"s_add_u32 s{r}, s16, s4"); a(f"s_addc_u32 s{r+1}, s17, 0")
        (None if o["st4"] else self.stamp("qcons"))
        if o["round_scores"]: a(f"s_mov_b32 s{sC}, {f2u(128 ** -0.5):#x}")
        def qk_fin(t):
            D = vT + 4 * (t % 4)
            a(f"v_mov_b32_dpp v{vS+t}, v{D} quad_perm:[0,0,0,0] {DPP}")
            for u in range(1, 4): a(f"v_add_f32_dpp v{vS+t}, v{D+u}, v{vS+t} quad_perm:[{u},{u},{u},{u}] {DPP}")
            if t & 1:
                t0 = t - 1
                if o["round_scores"]:
                    a(f"""
                    v_cvt_pk_bf16_f32 v{vU}, v{vS+t0}, v{vS+t0+1}
                    v_lshlrev_b32 v{vS+t0}, 16, v{vU}
                    v_and_b32 v{vS+t0+1}, 0xffff0000, v{vU}
                    v_mul_f32 v{vS+t0}, s{sC}, v{vS+t0}
                    v_mul_f32 v{vS+t0+1}, s{sC}, v{vS+t0+1}
                    v_cvt_pk_bf16_f32 v{vU}, v{vS+t0}, v{vS+t0+1}
                    v_lshlrev_b32 v{vS+t0}, 16, v{vU}
                    v_and_b32 v{vS+t0+1}, 0xffff0000, v{vU}
                    """)
                if t == 1: a(f"v_max_f32 v{vU+1}, v{vS}, v{vS+1}")
                else: a(f"v_max3_f32 v{vU+1}, v{vU+1}, v{vS+t0}, v{vS+t0+1}")
        for t in range(16):
            if t > lastK: self.wait(f"K{t}")
            D = vT + 4 * (t % 4)
            a(f"v_mfma_f32_16x16x32_bf16 {r4(D)}, {r4(dst[f'K{t}'])}, {r4(vBq)}, 0")
            if t == 15: self.kdone = True
            if t > lastK: fill(f"K{t}")
            if t >= 2: qk_fin(t - 2)
        more(o["pre_s"])
        a(f"""
        v_bfe_u32 v{vU+2}, v0, 3, 1
        v_lshlrev_b32 v{vU+2}, 6, v{vU+2}
        v_lshrrev_b32 v{vU+3}, 4, v0
        v_lshl_add_u32 v{vK}, v{vU+3}, 2, v{vU+2}
        """)
        qk_fin(14); qk_fin(15)
        cexp = 1.4426950408889634 if o["round_scores"] else 128 ** -0.5 * 1.4426950408889634
        a(f"""
        ds_write_b32 v{vK}, v{vU+1} offset:{MX}
        s_mov_b32 s{sC}, {f2u(cexp):#x}
        s_waitcnt lgkmcnt(0)
        s_barrier
        """)
        for i in range(4): a(f"ds_read_b128 {r4(vT+4*i)}, v{vU+2} offset:{MX+16*i}")
        a("s_waitcnt lgkmcnt(0)")
        a(f"v_max3_f32 v{vT}, v{vT}, v{vT+1}, v{vT+2}")
        for t in range(3, 15, 2): a(f"v_max3_f32 v{vT}, v{vT}, v{vT+t}, v{vT+t+1}")
        a(f"v_max_f32 v{vMx}, v{vT}, v{vT+15}")
        a(f"v_and_b32 v{vMx}, v{vMx}, v{vTM}")
        a(f"v_mul_f32 v{vMc}, s{sC}, v{vMx}")
        for t in range(16): a(f"v_fma_f32 v{vS+t}, v{vS+t}, s{sC}, -v{vMc}")
        for t in range(16): a(f"v_exp_f32 v{vS+t}, v{vS+t}")
        a(f"v_pk_add_f32 {r2(vT)}, {r2(vS)}, {r2(vS+2)}")
        for t in range(4, 16, 2): a(f"v_pk_add_f32 {r2(vT)}, {r2(vT)}, {r2(vS+t)}")
        a(f"v_add_f32 v{vT}, v{vT}, v{vT+1}")
        a(f"ds_write_b32 v{vK}, v{vT} offset:{LS}")
        self.stamp("smax")
        Lha = self.lab("haddr")
        hl = [f"buffer_load_dwordx4 {r4(vAO)}, v{vQa}, s[{SW}:{SW+3}], 0 offen sc1",
              f"buffer_load_dwordx4 {r4(vAO+4)}, v{vQb}, s[{SW}:{SW+3}], 0 offen sc1"]
        a(f"""
        s_cmp_lg_u32 s{sJ}, 3
        s_cbranch_scc1 {Lha}
        s_bfe_u32 s4, s2, 0x10006
        s_lshl_b32 s4, s4, 7
        s_add_u32 s4, s4, {RA+256}
        v_and_b32 v{vU}, 3, v0
        v_lshlrev_b32 v{vU}, 16, v{vU}
        v_bfe_u32 v{vU+1}, v0, 5, 1
        v_lshl_add_u32 v{vU}, v{vU+1}, 8, v{vU}
        v_add_u32 v{vU+1}, 1, v{vU+1}
        {"" if o["mix"] else f"v_mov_b32 v{vU+1}, 0"}
        v_xor_b32 v{vU+1}, s{sC6}, v{vU+1}
        v_lshl_add_u32 v{vU}, v{vU+1}, 10, v{vU}
        v_bfe_u32 v{vU+1}, v0, 2, 3
        v_lshl_add_u32 v{vU}, v{vU+1}, 4, v{vU}
        v_add_u32 v{vQa}, s4, v{vU}
        s_and_b32 s4, s{sC6}, 0x38
        s_lshl_b32 s4, s4, 10
        s_and_b32 s5, s{sC6}, 7
        s_bfe_u32 s6, s2, 0x10006
        s_lshl3_add_u32 s5, s6, s5
        s_lshl_b32 s5, s5, 4
        s_add_u32 s4, s4, s5
        s_add_u32 s4, s4, {RA+768}
        v_bfe_u32 v{vU}, v0, 2, 2
        v_lshlrev_b32 v{vU}, 16, v{vU}
        v_and_b32 v{vU+1}, 3, v0
        v_lshl_add_u32 v{vU}, v{vU+1}, 11, v{vU}
        v_bfe_u32 v{vU+1}, v0, 4, 1
        v_lshl_add_u32 v{vU}, v{vU+1}, 10, v{vU}
        v_add_u32 v{vQb}, s4, v{vU}
        {Lha}:
        """)
        def hfin():
            Lh = self.lab("hfin")
            a(f"""
            s_cmp_lg_u32 s{sJ}, 3
            s_cbranch_scc1 {Lh}
            s_waitcnt vmcnt({len(self.vm) - self.hmark})
            """)
            retry_loop("h", hl, [vAO, vAO + 4], vU)
            for i in range(4): a(f"v_add_f32_dpp v{vAO+i}, v{vAO+i}, v{vAO+i} quad_perm:[1,0,3,2] {DPP}")
            for i in range(4): a(f"v_add_f32_dpp v{vAO+4+i}, v{vAO+4+i}, v{vAO+4+i} row_ror:1 {DPP}")
            for i in range(4): a(f"v_add_f32_dpp v{vAO+i}, v{vAO+i}, v{vAO+i} quad_perm:[2,3,0,1] {DPP}")
            for r in (2, 4, 8):
                for i in range(4): a(f"v_add_f32_dpp v{vAO+4+i}, v{vAO+4+i}, v{vAO+4+i} row_ror:{r} {DPP}")
            a(f"""
            v_bfe_u32 v{vU+1}, v0, 5, 1
            v_mul_u32_u24 v{vU+1}, 192, v{vU+1}
            v_bfe_u32 v{vU+2}, v0, 2, 3
            v_lshl_add_u32 v{vU+1}, v{vU+2}, 4, v{vU+1}
            ds_write_b128 v{vU+1}, {r4(vAO)} offset:{HP}
            v_bfe_u32 v{vU+1}, v0, 4, 1
            v_mul_u32_u24 v{vU+1}, 192, v{vU+1}
            ds_write_b128 v{vU+1}, {r4(vAO+4)} offset:{HP+128}
            v_min_u32 v{vU+1}, 35, v{vL}
            v_lshlrev_b32 v{vU+2}, 2, v{vU+1}
            v_add_u32 v{vU+2}, {HP}, v{vU+2}
            s_waitcnt lgkmcnt(0)
            ds_read2_b32 {r2(vU+4)}, v{vU+2} offset0:0 offset1:48
            v_lshlrev_b32 v{vU+1}, 1, v{vU+1}
            s_waitcnt lgkmcnt(0)
            v_cvt_pk_bf16_f32 v{vU+4}, v{vU+4}, v{vU+5}
            v_and_b32 v{vU+5}, 0xffff0000, v{vU+4}
            v_lshlrev_b32 v{vU+4}, 16, v{vU+4}
            v_max_f32 v{vU+4}, 0, v{vU+4}
            v_mul_f32 v{vU+4}, v{vU+4}, v{vU+5}
            v_add_f32 v{vU+4}, 0, v{vU+4}
            v_cvt_pk_bf16_f32 v{vU+4}, v{vU+4}, v{vU+4}
            ds_write_b16 v{vU+1}, v{vU+4} offset:{HL}
            {Lh}:
            """)
        hcheck = None
        for t in range(16):
            B = vT + 4 * (t % 2)
            a(f"v_cvt_pk_bf16_f32 v{vU}, v{vS+t}, v{vS+t}")
            for j in range(4): a(f"v_and_b32 v{B+j}, v{vU}, v{vM[j]}")
            self.wait(f"V{t}")
            a(f"v_mfma_f32_16x16x32_bf16 {r4(vAcc)}, {r4(dst[f'V{t}'])}, {r4(B)}, {'0' if t == 0 else r4(vAcc)}")
            fill(f"V{t}", min(W, 15 + o["Wt"] - t))
            if o["st4"] and t in (1, 2, 5, 8, 9, 12): self.stamp(f"V{t}")
            if t == o["hp"]:
                a(f"s_cmp_eq_u32 s{sJ}, 3"); a("s_cselect_b64 exec, -1, 0")
                for i, ld in enumerate(hl): self.issue(f"H{i}", ld.replace("sc1", o["first"]))
                a("s_mov_b64 exec, -1")
                self.hmark = len(self.vm)
                hcheck = min(15, self.ip - big.index("V0"))
            if t == 3:
                a(f"""
                v_bfe_u32 v{vK}, v0, 3, 1
                v_lshlrev_b32 v{vK}, 9, v{vK}
                v_bfe_u32 v{vU+1}, v0, 4, 2
                v_lshl_add_u32 v{vK}, v{vU+1}, 7, v{vK}
                v_and_b32 v{vU+1}, 7, v0
                v_lshl_add_u32 v{vK}, v{vU+1}, 2, v{vK}
                v_lshl_add_u32 v{vK}, v{vJ}, 10, v{vK}
                s_lshl4_add_u32 s6, s{sG}, s{sS}
                s_mul_i32 s6, s6, 1152
                s_add_u32 s6, s6, {OB}
                v_lshl_add_u32 v{vX+4}, v{vL}, 4, s6
                s_mul_i32 s4, s{sG}, {16*1152}
                s_add_u32 s4, s4, {OB}
                v_and_b32 v{vX+5}, 15, v0
                v_mul_u32_u24 v{vX+5}, 1152, v{vX+5}
                v_add_u32 v{vX+5}, s4, v{vX+5}
                s_and_b32 s5, s{sS}, 7
                s_lshl_b32 s5, s5, 7
                s_lshr_b32 s4, s{sJ}, 1
                s_lshl_b32 s4, s4, 6
                s_add_u32 s4, s4, s5
                v_bfe_u32 v{vU+1}, v0, 4, 2
                v_lshl_add_u32 v{vX+6}, v{vU+1}, 4, v{vX+5}
                v_add_u32 v{vX+6}, s4, v{vX+6}
                s_bfe_u32 s4, s{sS}, 0x10002
                s_lshl_b32 s4, s4, 4
                v_add_u32 v{vX+5}, s4, v{vX+5}
                v_lshrrev_b32 v{vFA}, {CG.bit_length()-1}, v0
                v_mul_u32_u24 v{vFA}, {128*CG*16}, v{vFA}
                v_and_b32 v{vU+1}, {CG-1}, v0
                v_lshl_add_u32 v{vFA}, v{vU+1}, 4, v{vFA}
                s_and_b32 s4, s2, 127
                s_mul_i32 s4, s4, {CG*16}
                s_lshr_b32 s5, s2, 7
                s_mul_i32 s5, s5, {72*128*16}
                s_add_u32 s4, s4, s5
                s_add_u32 s4, s4, {FB}
                v_add_u32 v{vFA}, s4, v{vFA}
                """)
            if t == 4:
                a(f"""
                v_subrev_u32 v{vX+7}, {HL}, v{vRS}
                v_and_b32 v{vU+1}, 3, v0
                v_lshlrev_b32 v{vU+1}, 3, v{vU+1}
                v_lshl_add_u32 v{vX+7}, v{vX+7}, 4, v{vU+1}
                v_add_u32 v{vX+7}, {OLX}, v{vX+7}
                v_bfe_u32 v{vU+1}, v0, 2, 2
                s_mov_b32 s4, 0x02020202
                v_mul_lo_u32 v{vU+1}, v{vU+1}, s4
                v_add_u32 v{vU+1}, s32, v{vU+1}
                v_or_b32 v{vU+2}, v{vM[0]}, v{vM[2]}
                v_or_b32 v{vU+3}, v{vM[1]}, v{vM[3]}
                v_mov_b32 v{vU+4}, 0x0c0c0c0c
                v_bfi_b32 v{vBq+2}, v{vU+2}, v{vU+1}, v{vU+4}
                v_bfi_b32 v{vBq+3}, v{vU+3}, v{vU+1}, v{vU+4}
                s_lshr_b32 s5, s{sJ}, 1
                s_lshl_b32 s5, s5, 9
                s_add_u32 s5, s5, {OLX}
                v_lshl_add_u32 v{vX+3}, v{vL}, 3, s5
                """)
            if hcheck is not None and t == min(15, hcheck):
                hcheck = None
                if not o["hlate"]: hfin()
        assert hcheck is None
        for i in range(4): a(f"ds_write_b32 v{vK}, v{vAcc+i} offset:{OW+32*i}")
        a(f"""
        s_waitcnt lgkmcnt(0)
        s_barrier
        """)
        self.stamp("pvdone")
        def hread():
            a(f"ds_read2_b32 {r2(vX)}, v{vRS} offset0:0 offset1:1"); a(f"ds_read_b32 v{vX+2}, v{vRS} offset:8")
        def hmask():
            if o["skip"]:
                a(f"v_bfrev_b32 v{vU+26}, -2"); a("s_mov_b32 s4, 0xffff"); a("s_waitcnt lgkmcnt(0)")
                for k in range(6):
                    if k & 1: a(f"v_cmp_lt_u32 s[{64+2*k}:{65+2*k}], s4, v{vX+(k>>1)}")
                    else: a(f"v_cmp_ne_u16 s[{64+2*k}:{65+2*k}], 0, v{vX+(k>>1)}")
                for k in range(6):
                    a(f"v_cndmask_b32 v{vU+20+k}, v{vU+26}, v{vPD if k < 2 else vPD2}, s[{64+2*k}:{65+2*k}]")
                self.hready = True
        if o["hlate"]:
            hfin(); assert o["obar"]
        else:
            hread()
        Lo1 = self.lab("opub"); Lm = self.lab("mlpub")
        a(f"""
        s_cmp_eq_u32 s{sJ}, 2
        s_cbranch_scc1 {Lm}
        s_cmp_lg_u32 s{sJ}, 0
        s_cbranch_scc1 {Lo1}
        """)
        for jj in range(4): a(f"ds_read_b128 {r4(vT+4*jj)}, v{vV} offset:{OW+1024*jj}")
        a("s_waitcnt lgkmcnt(2)")
        pkadd(vT, vT, vT + 4)
        a("s_waitcnt lgkmcnt(0)")
        pkadd(vT + 8, vT + 8, vT + 12); pkadd(vT, vT, vT + 8)
        a(f"""
        s_branch {Lo1}t
        {Lm}:
        v_bfe_u32 v{vU+1}, v0, 3, 1
        v_lshlrev_b32 v{vU+1}, 6, v{vU+1}
        """)
        for i in range(4): a(f"ds_read_b128 {r4(vU+4+4*i)}, v{vU+1} offset:{LS+16*i}")
        a(f"v_lshrrev_b32 v{vU+1}, 2, v{vU+1}")
        a(f"v_add_u32 v{vX+4}, s6, v{vU+1}")
        a(f"v_add_u32 v{vX+4}, 1024, v{vX+4}")
        a("s_waitcnt lgkmcnt(0)")
        pkadd(vU + 4, vU + 4, vU + 8); pkadd(vU + 12, vU + 12, vU + 16); pkadd(vU + 4, vU + 4, vU + 12)
        a(f"""
        v_pk_add_f32 {r2(vU+4)}, {r2(vU+4)}, {r2(vU+6)}
        v_add_f32 v{vT+1}, v{vU+4}, v{vU+5}
        v_mov_b32 v{vT}, v{vMx}
        v_mov_b32 v{vT+2}, v{vMx}
        v_mov_b32 v{vT+3}, v{vT+1}
        s_mov_b64 exec, 0x101
        {Lo1}t:
        """)
        tagins(vT, True)
        a(f"""
        s_branch {Lo1}s
        {Lo1}:
        s_mov_b64 exec, 0
        {Lo1}s:
        """)
        dual("OP", f"buffer_store_dwordx4 {r4(vT)}, v{vX+4}, s[{SW}:{SW+3}], 0 offen", True)
        if not o["hlate"]: hmask()
        if o["obar"]: a("s_waitcnt lgkmcnt(0)"); a("s_barrier")
        (None if o["st4"] else self.stamp("opub"))
        def omk(st): return [f"buffer_load_dwordx4 {r4(st[0])}, v{vX+6}, s[{SW}:{SW+3}], 0 offen sc1",
                             f"buffer_load_dwordx4 {r4(st[0]+4)}, v{vX+5}, s[{SW}:{SW+3}], 0 offen offset:1024 sc1"]
        osets = [[R1 + 8 * d] for d in range(o["odepth"])]
        polled = False
        if o["oearly"]:
            polled = True
            a(f"s_bitcmp1_b32 s{sJ}, 0"); a("s_cselect_b64 exec, -1, 0")
            for i, ld in enumerate(omk(osets[0])): self.issue(f"OPL{i}", ld)
            a("s_mov_b64 exec, -1")
        assert o["Wt"] <= 6 and o["dlate"]
        if o["hlate"]: hread()
        fill("V15", 6)
        if o["hlate"]: hmask()
        fill("V15", 12)
        def flat_A(k, xsrc):
            p = k & 1; A = vU + 2 * p
            a(f"v_perm_b32 v{A}, v{xsrc+(k>>1)}, v{xsrc+(k>>1)}, v{vSel[2*p]}")
            a(f"v_perm_b32 v{A+1}, v{xsrc+(k>>1)}, v{xsrc+(k>>1)}, v{vSel[2*p+1]}")
            return A
        def flat_mfma(A, data, acc, first):
            a(f"v_mfma_f32_4x4x4_16b_bf16 {r4(acc)}, {r2(A)}, {r2(data)}, {'0' if first else r4(acc)}")
            a(f"v_mfma_f32_4x4x4_16b_bf16 {r4(acc+4)}, {r2(A)}, {r2(data+2)}, {'0' if first else r4(acc+4)}")
        vDA = vU + 8
        if o["dlate"]:
            a("s_waitcnt lgkmcnt(0)")
            assert self.ip == len(big) and polled
            for k in range(6):
                p = k & 1
                a(f"v_perm_b32 v{vDA+2*k}, v{vX+(k>>1)}, v{vX+(k>>1)}, v{vSel[2*p]}")
                a(f"v_perm_b32 v{vDA+2*k+1}, v{vX+(k>>1)}, v{vX+(k>>1)}, v{vSel[2*p+1]}")
        else:
            a("s_waitcnt lgkmcnt(0)")
            for k in range(6):
                A = flat_A(k, vX)
                self.wait(f"D{k}")
                flat_mfma(A, dst[f"D{k}"], vAD, k == 0)
                fill(f"D{k}", o["post"])
                if self.ip == len(big) and k >= o["opa"] and not polled:
                    polled = True
                    a(f"s_bitcmp1_b32 s{sJ}, 0"); a("s_cselect_b64 exec, -1, 0")
                    for i, ld in enumerate(omk(osets[0])): self.issue(f"OPL{i}", ld)
                    a("s_mov_b64 exec, -1")
            assert polled
            (None if o["st3"] else self.stamp("Ddone"))
            for i in range(0, 8): a(f"v_mul_f32 v{vAD+i}, v{vOMG}, v{vAD+i}")
        Lo2 = self.lab("ocons")
        a(f"""
        s_bitcmp0_b32 s{sJ}, 0
        s_cbranch_scc1 {Lo2}
        """)
        P = vS
        def ofin(st):
            a(f"v_and_b32 v{vBq}, v{st[0]+4}, v{vTM}")
            a(f"v_mov_b32 v{vBq+1}, v{st[0]+5}")
            a(f"v_pk_mul_f32 {r2(P)}, {r2(st[0])}, {r2(vG-1)} op_sel:[0,1] op_sel_hi:[1,1]")
            a(f"v_pk_mul_f32 {r2(P+2)}, {r2(st[0]+2)}, {r2(vG-1)} op_sel:[0,1] op_sel_hi:[1,1]")
        if o["oearly"]:
            assert o["odepth"] == 1
            Lx = self.lab("oex"); Lre = self.lab("oere"); OD = o["od"]
            self.wait("OPL1")
            tagchk(osets[0], vU + 4, 4, True)
            a(f"s_cbranch_vccz {Lx}d")
            if o["osel"] and OD > 1: a("s_mov_b64 exec, vcc")
            for _ in range(OD - 1):
                for ld in omk(osets[0]): a(ld)
            a(f"s_mov_b32 s7, {o['spin']}")
            a(f"{Lre}:")
            if o["osel"]: a("s_mov_b64 exec, vcc")
            for ld in omk(osets[0]): a(ld)
            if o["osel"]: a("s_mov_b64 exec, -1")
            a(f"s_waitcnt vmcnt({2*(OD-1)})")
            tagchk(osets[0], vU + 4, 4, True)
            a(f"s_cbranch_vccz {Lx}")
            a("s_sub_u32 s7, s7, 1"); a("s_cmp_lg_u32 s7, 0"); a(f"s_cbranch_scc1 {Lre}")
            a(f"s_branch {Lx}")
            a(f"{Lx}d:")
            if OD > 1:
                a("s_mov_b64 exec, 0")
                for _ in range(OD - 1):
                    for ld in omk(osets[0]): a(ld)
                a("s_mov_b64 exec, -1")
            a(f"{Lx}:")
            ofin(osets[0])
        else:
            assert False
            pipe_poll("o", omk, osets, vU + 4, 1, ofin, o["osleep"], extra=4)
        (None if o["st3"] else self.stamp("opollok"))
        a(f"v_max_f32_dpp v{vU+4}, v{vBq}, v{vBq} row_ror:1 {DPP}")
        for r in (2, 4, 8): a(f"v_max_f32_dpp v{vU+4}, v{vU+4}, v{vU+4} row_ror:{r} {DPP}")
        a(f"""
        v_sub_f32 v{vBq}, v{vBq}, v{vU+4}
        v_mul_f32 v{vBq}, s{sC}, v{vBq}
        v_exp_f32 v{vBq}, v{vBq}
        v_mul_f32 v{P+4}, v{vBq}, v{vBq+1}
        v_pk_mul_f32 {r2(P)}, {r2(P)}, {r2(vBq)} op_sel_hi:[1,0]
        v_pk_mul_f32 {r2(P+2)}, {r2(P+2)}, {r2(vBq)} op_sel_hi:[1,0]
        """)
        for r in (1, 2, 4, 8):
            for i in (4, 0, 1, 2, 3): a(f"v_add_f32_dpp v{P+i}, v{P+i}, v{P+i} row_ror:{r} {DPP}")
            if r == 8: self.l.insert(len(self.l) - 2, f"    v_rcp_f32 v{vBq}, v{P+4}")
        a(f"""
        v_pk_mul_f32 {r2(P)}, {r2(P)}, {r2(vBq)} op_sel_hi:[1,0]
        v_pk_mul_f32 {r2(P+2)}, {r2(P+2)}, {r2(vBq)} op_sel_hi:[1,0]
        v_cvt_pk_bf16_f32 v{P}, v{P}, v{P+1}
        v_cvt_pk_bf16_f32 v{P+1}, v{P+2}, v{P+3}
        v_perm_b32 v{P+2}, v{P+1}, v{P}, v{vBq+2}
        v_perm_b32 v{P+3}, v{P+1}, v{P}, v{vBq+3}
        ds_write_b64 v{vX+3}, {r2(P+2)}
        s_branch {Lo2}x
        {Lo2}:
        """)
        if o["od"] > 1:
            a("s_mov_b64 exec, 0")
            for i in range(o["od"] - 1):
                for j, ld in enumerate(omk(osets[0])): self.issue(f"ODM{i}{j}", ld)
            a("s_mov_b64 exec, -1")
        a(f"""
        {Lo2}x:
        v_cmp_gt_u32 vcc, 72, v0
        s_waitcnt lgkmcnt(0)
        s_barrier
        """)
        for k in range(3): a(f"ds_read2_b64 {r4(vT+4*k)}, v{vX+7} offset0:{8*k} offset1:{8*k+4}")
        (None if o["st3"] else self.stamp("B7"))
        if o["dlate"]:
            for k in range(6):
                self.wait(f"D{k}")
                flat_mfma(vDA + 2 * k, dst[f"D{k}"], vAD, k == 0)
            (None if o["st3"] else self.stamp("Ddone"))
            for k in range(6):
                if k % 2 == 0: a(f"s_waitcnt lgkmcnt({0 if o['stamps'] else 2 - k // 2})")
                self.wait(f"O{k}")
                flat_mfma(vT + 2 * k, dst[f"O{k}"], vAO, k == 0)
                if k == 3:
                    for i in range(0, 8, 2): a(f"v_pk_mul_f32 {r2(vAD+i)}, {r2(vAD+i)}, {r2(vOMG)} op_sel_hi:[1,0]")
            for i in range(0, 8, 2): a(f"v_pk_add_f32 {r2(vAD+i)}, {r2(vAD+i)}, {r2(vAO+i)}")
        else:
            for k in range(6):
                if k % 2 == 0: a(f"s_waitcnt lgkmcnt({0 if o['stamps'] else 2 - k // 2})")
                self.wait(f"O{k}")
                flat_mfma(vT + 2 * k, dst[f"O{k}"], vAD, False)
        Lf = self.lab("fpub")
        a(f"""
        ds_write_b128 v{vCH}, {r4(vAD)} offset:{LF}
        ds_write_b128 v{vCH}, {r4(vAD+4)} offset:{LF+16}
        s_waitcnt lgkmcnt(0)
        s_barrier
        s_and_saveexec_b64 s[4:5], vcc
        s_cbranch_execz {Lf}
        """)
        tg = [vT, vT + 4, vT + 8, vT + 12, vT + 16, vU + 4]
        for p in range(6): a(f"ds_read_b128 {r4(tg[p])}, v{vV} offset:{LF+1152*p}")
        a("s_waitcnt lgkmcnt(4)"); pkadd(tg[0], tg[0], tg[1])
        a("s_waitcnt lgkmcnt(2)"); pkadd(tg[2], tg[2], tg[3])
        a("s_waitcnt lgkmcnt(0)"); pkadd(tg[4], tg[4], tg[5]); pkadd(tg[0], tg[0], tg[2]); pkadd(tg[0], tg[0], tg[4])
        tagins(vT, True)
        a(f"""
        buffer_store_dwordx4 {r4(vT)}, v{vFA}, s[{SW}:{SW+3}], 0 offen sc1
        {Lf}:
        s_mov_b64 exec, s[4:5]
        """)
        self.stamp("fpub")
        NL = CG // 2
        if o["rorig"]: a("s_mov_b32 s2, s101")
        a(f"""
        s_cmpk_ge_u32 s2, {R}
        s_cbranch_scc1 L_fin
        s_mul_i32 s4, s2, {128*CG*16}
        s_add_u32 s4, s4, {FB}
        """)
        if CG == 4:
            a(f"""
            v_and_b32 v{vQa}, 15, v0
            v_lshlrev_b32 v{vQa}, 6, v{vQa}
            v_bfe_u32 v{vQb}, v0, 4, 2
            v_lshl_add_u32 v{vQa}, v{vQb}, 4, v{vQa}
            v_lshl_add_u32 v{vQa}, v{vJ}, 10, v{vQa}
            v_add_u32 v{vQa}, s4, v{vQa}
            s_movk_i32 s33, 0x1000
            """)
            offs = [("0", 0), ("s33", 0)]
        elif CG == 2:
            a(f"""
            v_and_b32 v{vQa}, 15, v0
            v_lshlrev_b32 v{vQa}, 5, v{vQa}
            v_bfe_u32 v{vQb}, v0, 4, 1
            v_lshl_add_u32 v{vQa}, v{vQb}, 4, v{vQa}
            v_lshrrev_b32 v{vQb}, 5, v0
            v_lshl_add_u32 v{vQa}, v{vQb}, 9, v{vQa}
            v_add_u32 v{vQa}, s4, v{vQa}
            """)
            offs = [("0", 0)]
        else:
            a(f"""
            v_and_b32 v{vQa}, 15, v0
            v_lshlrev_b32 v{vQa}, 7, v{vQa}
            v_bfe_u32 v{vQb}, v0, 4, 2
            v_lshl_add_u32 v{vQa}, v{vQb}, 4, v{vQa}
            v_lshl_add_u32 v{vQa}, v{vJ}, 11, v{vQa}
            v_add_u32 v{vQa}, s4, v{vQa}
            s_movk_i32 s33, 0x2000
            """)
            offs = [("0", 0), ("s33", 0), ("0", 64), ("s33", 64)]
        def fmk(st): return [f"buffer_load_dwordx4 {r4(st[k])}, v{vQa}, s[{SW}:{SW+3}], {offs[k][0]} offen offset:{offs[k][1]} sc1" for k in range(NL)]
        fsets = [[R2 + 16 * d + 4 * k for k in range(NL)] for d in range(o["fdepth"])]
        F = vS
        NF = 8 if CG == 8 else 4
        def ffin(st):
            if CG == 4: pkadd(F, st[0], st[1])
            elif CG == 8: pkadd(F, st[0], st[1]); pkadd(F + 4, st[2], st[3])
            else:
                for i in range(4): a(f"v_add_f32_dpp v{F+i}, v{st[0]+i}, v{st[0]+i} row_ror:1 {DPP}")
        if o["fx"]:
            lds_ = fmk(fsets[0])
            for ld in lds_: a(ld)
            a(f"""
            v_lshrrev_b32 v{vU}, 4, v0
            v_lshlrev_b32 v{vU}, 4, v{vU}
            s_mov_b32 s{SX}, s56
            s_mov_b32 s{SX+1}, s57
            s_mul_i32 s4, s2, {CG*8}
            v_mov_b32 v{vU+2}, s{sT2}
            v_mov_b32 v{vU+3}, 0
            """)
            if CG == 8:
                a(f"""
                v_and_b32 v{vU+1}, 3, v0
                v_lshrrev_b32 v{vU+10}, 4, v0
                v_lshl_add_u32 v{vU+1}, v{vU+10}, 2, v{vU+1}
                v_lshl_add_u32 v{vU+1}, v{vU+1}, 3, s4
                """)
            else:
                a(f"v_lshl_add_u32 v{vU+1}, v0, 3, s4")
            pass
            sel_poll("f", [([lds_[k]], fsets[0][k], 4) for k in range(NL)], vU + 4, o["fx"])
            ffin(fsets[0])
        elif True:
            assert False, "only fx path maintained"
        elif o["fsel"]:
            assert CG == 4
            for k in range(2): a(fmk(fsets[0])[k])
            D = o["fdepth"]
            for k in range(2):
                mk1 = lambda st, k=k: [f"buffer_load_dwordx4 {r4(st[0])}, v{vQa}, s[{SW}:{SW+3}], {offs[k][0]} offen offset:{offs[k][1]} sc1"]
                Lq = self.lab("fq")
                a(f"s_waitcnt vmcnt({1 - k})" if k == 0 else "s_nop 0")
                sets1 = [[R2 + 32 + 16 * k + 4 * d] for d in range(D)]
                if k == 1: a("s_waitcnt vmcnt(%d)" % 0) if False else None
                tagchk([fsets[0][k]], vU + 4)
                a(f"s_cbranch_vccz {Lq}")
                def fin1(st, k=k):
                    a(f"v_pk_mul_f32 {r2(fsets[0][k])}, {r2(st[0])}, 1.0 op_sel_hi:[1,0]")
                    a(f"v_pk_mul_f32 {r2(fsets[0][k]+2)}, {r2(st[0]+2)}, 1.0 op_sel_hi:[1,0]")
                pipe_poll(f"f{k}", mk1, sets1, vU + 4, 0, fin1, o["fsleep"])
                if k == 0:
                    a(f"s_branch {Lq}b"); a(f"{Lq}:"); a("s_waitcnt vmcnt(0)"); a(f"{Lq}b:")
                else: a(f"{Lq}:")
            ffin(fsets[0])
        else:
            pipe_poll("f", fmk, fsets, vU + 4, 0, ffin, o["fsleep"])
        (None if o["st3"] else self.stamp("fpollok"))
        for r in (1, 2, 4, 8):
            if CG == 2 and r == 1: continue
            for i in range(NF): a(f"v_add_f32_dpp v{F+i}, v{F+i}, v{F+i} row_ror:{r} {DPP}")
        a(f"ds_write_b128 v{vU}, {r4(F)} offset:{RD}")
        if CG == 8: a(f"ds_write_b128 v{vU}, {r4(F+4)} offset:{RD+256}")
        a(f"""
        s_waitcnt lgkmcnt(0)
        s_barrier
        s_cmp_lg_u32 s{sJ}, 0
        s_cbranch_scc1 L_fin
        s_mov_b64 exec, {'0xffffffff' if CG == 8 else '0xffff'}
        ds_read_b128 {r4(vT)}, v{vV} offset:{RD}
        s_waitcnt lgkmcnt(0)
        """)
        for r in (1, 2, 4, 8):
            if r >= min(CG, 4):
                for i in range(4): a(f"v_add_f32_dpp v{vT+i}, v{vT+i}, v{vT+i} row_ror:{r} {DPP}")
        a(f"""
        v_cvt_pk_bf16_f32 v{vT}, v{vT}, v{vT+1}
        v_cvt_pk_bf16_f32 v{vT+1}, v{vT+2}, v{vT+3}
        s_mov_b64 exec, {0xf000f if CG == 8 else (1 << CG) - 1:#x}
        buffer_store_dwordx2 {r2(vT)}, v{vU+1}, s[{SX}:{SX+3}], 0 offen {o['outf']}
        s_cmp_lg_u32 s2, 0
        s_cbranch_scc1 L_fin
        s_mov_b64 exec, 1
        buffer_store_dword v{vU+2}, v{vU+3}, s[{SW}:{SW+3}], 0 offen {o['epf']}
        L_fin:
        """)
        if o["skewm"]:
            a(f"""
            s_cmp_lg_u32 s2, 0
            s_cbranch_scc1 L_end
            s_cmp_lg_u32 s{sJ}, 0
            s_cbranch_scc1 L_end
            s_add_u32 s4, s60, 0xF0000
            s_addc_u32 s5, s61, 0
            s_load_dwordx8 s[64:71], s[4:5], 0 glc
            s_waitcnt lgkmcnt(0)
            """)
            for i in range(8): a(f"s_sub_u32 s{64+i}, s{64+i}, s16"); a(f"s_add_u32 s{64+i}, s{64+i}, 500")
            m = o["skewm"]
            if m == "late":
                a("s_add_u32 s6, s68, s69"); a("s_add_u32 s6, s6, s70"); a("s_add_u32 s6, s6, s71")
                a("s_sub_u32 s6, s6, s65"); a("s_sub_u32 s6, s6, s66"); a("s_sub_u32 s6, s6, s67"); a("s_sub_u32 s6, s6, s66")
                a("s_mul_i32 s6, s6, 5"); a("s_add_u32 s6, s6, 3000")
            else:
                a("s_min_u32 s72, s64, s65")
                for i in range(2, 8): a(f"s_min_u32 s72, s72, s{64+i}")
                if m == "max":
                    a("s_max_u32 s73, s64, s65")
                    for i in range(2, 8): a(f"s_max_u32 s73, s73, s{64+i}")
                else:
                    a(f"s_mov_b32 s73, s{64+int(m)}")
                a("s_sub_u32 s6, s73, s72"); a("s_mul_i32 s6, s6, 20"); a("s_add_u32 s6, s6, 3000")
            a(f"""
            s_min_u32 s6, s6, 20000
            L_hold:
            s_memrealtime s[4:5]
            s_waitcnt lgkmcnt(0)
            s_sub_u32 s4, s4, s16
            s_cmp_lt_u32 s4, s6
            s_cbranch_scc1 L_hold
            """)
        elif o["amp"] >= 0:
            self.stamp("end"); k = o["amp"]
            if o["ampx"] >= 0:
                a("s_bfe_u32 s4, s101, 0x10002"); a(f"s_cmp_lg_u32 s4, {o['ampx']}"); a("s_cbranch_scc1 L_end")
            a(f"""
            s_waitcnt lgkmcnt(0)
            s_sub_u32 s6, s{self.sreg(k)}, s16
            s_min_u32 s6, s6, 3000
            s_mul_i32 s6, s6, 10
            s_add_u32 s6, s6, 3000
            L_hold:
            s_memrealtime s[4:5]
            s_waitcnt lgkmcnt(0)
            s_sub_u32 s4, s4, s16
            s_cmp_lt_u32 s4, s6
            s_cbranch_scc1 L_hold
            """)
        elif o["stamps"]:
            self.stamp("end")
            a(f"""
            s_waitcnt lgkmcnt(0)
            s_lshl_b32 s4, s101, 2
            s_add_u32 s4, s4, s{sJ}
            s_lshl_b32 s4, s4, 7
            s_add_u32 s4, s4, {STAMP_OFF:#x}
            s_add_u32 s6, s60, s4
            s_addc_u32 s7, s61, 0
            s_sub_u32 s6, s6, {o['wsoff']:#x}
            s_subb_u32 s7, s7, 0
            s_mov_b64 exec, 1
            v_mov_b32 v4, 0
            """)
            for j in range(self.nst):
                a(f"""
                v_mov_b32 v2, s{self.sreg(j)}
                v_mov_b32 v3, s{self.sreg(j)+1}
                global_store_dwordx2 v4, v[2:3], s[6:7] offset:{8*j}
                s_nop 1
                """)
        if o["hold"]:
            a(f"""
            s_waitcnt lgkmcnt(0)
            L_hold:
            s_memrealtime s[4:5]
            s_waitcnt lgkmcnt(0)
            s_sub_u32 s4, s4, s16
            s_cmp_lt_u32 s4, {o["hold"]}
            s_cbranch_scc1 L_hold
            """)
        a("L_end:")
        a("s_endpgm")
        cl = []
        for x in self.l:
            if cl and cl[-1].strip() == "s_mov_b64 exec, -1" and x.strip().startswith("s_mov_b64 exec,"): cl.pop()
            if len(cl) > 1 and cl[-2].strip() == "s_mov_b64 exec, -1" and cl[-1].strip().startswith("s_waitcnt vmcnt") and x.strip().startswith("s_mov_b64 exec,"):
                del cl[-2]
            cl.append(x)
        c2 = []
        for x in cl:
            c2.append(x)
        body = "\n".join(fix(c2)) + "\n"
        head = open("cdna_kernels/" + KN + ".s.ref").read().split("; Override launch")[0]
        if self.names: head += "; stamps: " + " ".join(self.names) + "\n"
        DOC = """; One persistent launch, 256 workgroups (one per CU) x 4 waves; every weight / KV byte is streamed once (nt, ~10 loads per wave in flight).
;  diagonal-expanded vector operand, QK uses MFMA on a quad-contiguous K layout; softmax subtracts the CU-wide true max, splits are
;  merged with exp(m_s - M) / L weights (flash-decode); out = g*a + (1-g)*b is reduced over 128 partials per column by 36 workgroups.
;  Default publication is write-through (sc1); a plain store is used only after the q hand-off has shown (XCC id bits in the q records)
"""
        return head + DOC + f"""; @launch grid=(256,1,1) block=(256,1,1) lds={o['lds']}
.amdgcn_target "amdgcn-amd-amdhsa--gfx950"
.text
.globl {KN}_kernel
.p2align 8
.type {KN}_kernel,@function
{KN}_kernel:
""" + body + f""".section .rodata,"a"
.p2align 6
.amdhsa_kernel {KN}_kernel
  .amdhsa_next_free_vgpr 256
  .amdhsa_next_free_sgpr 102
  .amdhsa_accum_offset 256
  .amdhsa_group_segment_fixed_size 0
  .amdhsa_kernarg_size 104
  .amdhsa_user_sgpr_count 2
  .amdhsa_user_sgpr_kernarg_segment_ptr 1
  .amdhsa_system_sgpr_workgroup_id_x 1
.end_amdhsa_kernel
"""

if __name__ == "__main__":
    out = sys.argv[1]; opt = {}
    for kv in sys.argv[2:]:
        k, v = kv.split("="); opt[k] = eval(v)
    open(out, "w").write(Gen(**opt).build())
```

```python
import sys, struct
from hazard import fix
KN = "gated_mix__sliding_block_cached__glu_gated_reglu__decode"
STAMP_OFF = 0x30000000
def f2u(x): return struct.unpack("<I", struct.pack("<f", x))[0]

class Gen:
    def __init__(self, **opt):
        self.o = dict(W=10, stamps=False, wsoff=0, qp=1, hp=5, CG=4, round_scores=True, prefetch=0, jitter=0,
                      hold=0, amp=-1, lds=90112, nt="nt", spin=20000, pre_g=2, pre_q=2, pre_s=3, Wt=4, fdepth=1, odepth=1,
                      cnt=0, post=12, osleep=0, fsleep=0, pre_qp=0, first='sc1', pt=0, ptf='', st3=0, early=3, skewm='', adapt=11, flagrd=5, nearly=7, lpost=8, st4=0, atime=0, obar=1, opa=0, fsel=0, tlb=0, outf='', rot=1, mix=1, hlate=1, fx=1, oearly=1, pts=1, epf='', od=1, rorig=1, xs=0, cpf=0, osel=1, dlate=1, ampx=-1, tb=10, p3f='nt', skip=1, ofirst=0, unev=1, pad=0)
        for k in opt: assert k in self.o, k
        self.o.update(opt)
        self.l = []; self.vm = []; self.nl = 0; self.nst = 0; self.names = []
    def a(self, s):
        for x in s.strip().split("\n"):
            x = x.strip()
            if x: self.l.append(x if x.endswith(":") else "    " + x)
    def lab(self, p):
        self.nl += 1
        return f"L_{p}{self.nl}"
    def issue(self, label, s):
        self.a(s); self.vm.append(label)
    def wait(self, label):
        n = len(self.vm) - 1 - self.vm.index(label)
        assert n <= 63
        self.a(f"s_waitcnt vmcnt({n})")
    def sreg(self, k): return 16 + 2 * k if k < 8 else 36 + 2 * (k - 8)
    def stamp(self, name=""):
        if self.o["stamps"]:
            assert self.nst < 16
            r = self.sreg(self.nst)
            self.a(f"s_memrealtime s[{r}:{r+1}]")
            self.names.append(name); self.nst += 1

    def build(self):
        o = self.o; a = self.a; nt = o["nt"]; W = o["W"]
        RA, OB, FB, MLB = 0x1000, 0x50000, 0xA0000, 0xF8000
        CG = o["CG"]; R = 144 // CG
        XL, P1, QL, MX, LS, GS, HP, HL, OL, OW, LF, RD, DUM = 0, 2560, 10752, 14848, 14976, 15104, 15232, 15616, 15744, 15872, 19968, 29184, 29696
        OLX = 30208; XF = 31744
        UN = o['unev']; NCH = 40 if UN else 36; HB = 640 if UN else 576; MAG = 1639 if UN else 1821
        vL = 1; vM = [2, 3, 4, 5]; vSel = [6, 7, 8, 9]
        vQa, vQb, vGU, vK, vV, vPD, vPD2, vPO, vTM = 10, 11, 12, 13, 14, 15, 16, 18, 17
        vMx, vMc, vFA, vRS = 19, 20, 21, 22
        vX = 24
        vS = 32; vBq = 48; vAq = 52; vAg = 56; vAr = 60; vAD = 56; vAO = 64; vT = 72; vPoll = 92
        vCH, vG, vOMG, vJ = 96, 97, 98, 99
        R1 = 100; R2 = 164; vU = 228
        vAcc = vAq
        dst = {}
        for i in range(5): dst[f"Q{i}"] = R1 + 4 * i
        for i in range(9): dst[f"G{i}"] = R1 + 20 + 4 * i
        for i in range(2): dst[f"R{i}"] = R1 + 56 + 4 * i
        for i in range(16): dst[f"K{i}"] = R2 + 4 * i; dst[f"V{i}"] = R1 + 4 * i
        for i in range(6): dst[f"D{i}"] = R2 + 4 * i; dst[f"O{i}"] = R2 + 24 + 4 * i
        big = [f"Q{i}" for i in range(5)] + [f"G{i}" for i in range(9)] + ["R0", "R1"] + [f"K{i}" for i in range(16)] + \
              [f"V{i}" for i in range(16)] + [f"O{i}" for i in range(6)] + [f"D{i}" for i in range(6)]
        sTAG = 62; sJ = 3; sKQ, sG, sS, sC6 = 8, 9, 10, 11; s4608 = 12
        sKV = 13; sGU = 14; sC = 15
        SQ, SGU, SK, SR, SD, SO, SX, SV, SW = 64, 68, 72, 76, 80, 84, 88, 92, 96
        sPL = 34; sXE = 100; XB = 0xF9000
        r4 = lambda v: f"v[{v}:{v+3}]"
        r2 = lambda v: f"v[{v}:{v+1}]"
        DPP = "row_mask:0xf bank_mask:0xf"
        self.ip = 0; self.gdone = self.kdone = self.hready = False
        def issue_next():
            lb = big[self.ip]; self.ip += 1
            d = r4(dst[lb]); k = int(lb[1:]); c = lb[0]
            if c == "V": assert self.gdone
            if c in "DO": assert self.kdone
            if c == "Q":
                if k == 0: self.issue(lb, f"buffer_load_dwordx4 {d}, v{vQa}, s[{SQ}:{SQ+3}], 0 offen {nt}")
                elif k < 4: self.issue(lb, f"buffer_load_dwordx4 {d}, v{vQa}, s[{SQ}:{SQ+3}], s{32+k} offen {nt}")
                else: self.issue(lb, f"buffer_load_dwordx4 {d}, v{vQb}, s[{SQ}:{SQ+3}], 0 offen {nt}")
            elif c == "G":
                if k == 0: a(f"s_mov_b32 s{sGU}, 0")
                elif k < 8: a(f"s_addk_i32 s{sGU}, 9216")
                if k < 8: self.issue(lb, f"buffer_load_dwordx4 {d}, v{vGU}, s[{SGU}:{SGU+3}], s{sGU} offen {nt}")
                else: self.issue(lb, f"buffer_load_dwordx4 {d}, v{vPD}, s[{SGU}:{SGU+3}], 0 offen {nt}")
            elif c == "R":
                self.issue(lb, f"buffer_load_dwordx4 {d}, v{vPD2 if k == 0 else vPO}, s[{SR}:{SR+3}], 0 offen {nt}")
            elif c in "KV":
                if k == 0: a(f"s_lshl_b32 s{sKV}, s{sG}, 12" if o["rot"] else f"s_mov_b32 s{sKV}, 0")
                else:
                    a(f"s_addk_i32 s{sKV}, 4096")
                    if o["rot"]: a(f"s_bitset0_b32 s{sKV}, 16")
                sr, vo = (SK, vK) if c == "K" else (SV, vV)
                self.issue(lb, f"buffer_load_dwordx4 {d}, v{vo}, s[{sr}:{sr+3}], s{sKV} offen {nt}")
            else:
                sr = SD if c == "D" else SO
                vo = vPO if c == "O" else (vPD if k < 2 else vPD2)
                if c == "D" and o["skip"]:
                    assert self.hready; vo = vU + 20 + k
                so, im = ("0", k * 1152) if k < 4 else (f"s{s4608}", (k - 4) * 1152)
                if c == "O" and k >= 4: vo, so = vGU, "0"
                self.issue(lb, f"buffer_load_dwordx4 {d}, v{vo}, s[{sr}:{sr+3}], {so} offen offset:{im} {o['p3f']}")
        def fill(label, w=None):
            w = W if w is None else w
            idx = big.index(label)
            while self.ip < len(big) and self.ip <= idx + w: issue_next()
        def more(n):
            for _ in range(n):
                if self.ip < len(big): issue_next()
        sT2 = 63; TB = o["tb"]; TM2 = (1 << TB) - 1
        def tagins(v, wide=False):
            for i in range(4): a(f"v_and_or_b32 v{v+i}, v{v+i}, v{vTM}, s{sT2 if wide else sTAG}")
        def tagchk(vs, acc, extra=0, wide=False):
            first = True; st = sT2 if wide else sTAG
            for v in vs:
                for i in range(4 + extra):
                    if first: a(f"v_xor_b32 v{acc}, s{st}, v{v+i}"); first = False
                    else: a(f"v_bitop3_b32 v{acc}, v{v+i}, s{st}, v{acc} bitop3:0xbe")
            a(f"v_and_b32 v{acc}, {TM2 if wide else 0xff:#x}, v{acc}")
            a(f"v_cmp_ne_u32 vcc, 0, v{acc}")
        def retry_loop(name, loads, vs, acc):
            Lok = self.lab(name + "ok"); Lre = self.lab(name + "re")
            a(f"s_mov_b32 s7, {o['spin']}")
            a(f"{Lre}:")
            tagchk(vs, acc)
            a(f"s_cbranch_vccz {Lok}")
            for ld in loads: a(ld)
            a("s_waitcnt vmcnt(0)")
            a("s_sub_u32 s7, s7, 1")
            a("s_cmp_lg_u32 s7, 0")
            a(f"s_cbranch_scc1 {Lre}")
            a(f"{Lok}:")
            if o["stamps"] and o["cnt"] == 1:
                r = self.sreg(self.nst); self.names.append(name + "retry"); self.nst += 1
                a(f"s_sub_u32 s7, {o['spin']}, s7"); a(f"s_mul_i32 s7, s7, 100")
                a(f"s_add_u32 s{r}, s16, s7"); a(f"s_addc_u32 s{r+1}, s17, 0")
        def pipe_poll(name, mk, sets, acc, first_issued, fin, slp=0, extra=0):
            n = len(mk(sets[0])); D = len(sets)
            Lx = self.lab(name + "x"); Lre = self.lab(name + "re")
            Lmv = [self.lab(name + "mv") for _ in range(D)]
            for d in range(first_issued, D):
                for ld in mk(sets[d]): a(ld)
            a(f"s_mov_b32 s7, {o['spin']}")
            a(f"{Lre}:")
            for d in range(D):
                a(f"s_waitcnt vmcnt({n*(D-1)})")
                tagchk(sets[d], acc, extra)
                a(f"s_cbranch_vccz {Lmv[d]}")
                if slp: a(f"s_sleep {slp}")
                for ld in mk(sets[d]): a(ld)
            a("s_sub_u32 s7, s7, 1")
            a("s_cmp_lg_u32 s7, 0")
            a(f"s_cbranch_scc1 {Lre}")
            for d in range(D - 1, -1, -1):
                a(f"{Lmv[d]}:")
                fin(sets[d])
                if d: a(f"s_branch {Lx}")
            a(f"{Lx}:")
        def dual(name, st, local):
            if local:
                a("s_mov_b64 s[4:5], exec")
                a(f"s_and_b64 exec, s[4:5], s[{sPL}:{sPL+1}]")
                self.issue(name + "p", st)
                a(f"s_andn2_b64 exec, s[4:5], s[{sPL}:{sPL+1}]")
            self.issue(name, st + " sc1")
            a("s_mov_b64 exec, -1")
        def sel_poll(name, pieces, acc, depth):
            Lx = self.lab(name + "x"); Lre = self.lab(name + "re")
            n = sum(len(p[0]) for p in pieces)
            for _ in range(depth - 1):
                for p in pieces:
                    for ld in p[0]: a(ld)
            a(f"s_mov_b32 s7, {o['spin']}")
            a(f"{Lre}:")
            a(f"s_waitcnt vmcnt({n * (depth - 1)})")
            for i, p in enumerate(pieces):
                first = True
                for v in range(p[1], p[1] + p[2]):
                    if first: a(f"v_xor_b32 v{acc+i}, s{sT2}, v{v}"); first = False
                    else: a(f"v_bitop3_b32 v{acc+i}, v{v}, s{sT2}, v{acc+i} bitop3:0xbe")
                a(f"v_and_b32 v{acc+i}, {TM2:#x}, v{acc+i}")
            for i, p in enumerate(pieces): a(f"v_cmp_ne_u32 s[{64+2*i}:{65+2*i}], 0, v{acc+i}")
            if len(pieces) == 1: a("s_cmp_lg_u64 s[64:65], 0")
            else:
                a("s_or_b64 s[4:5], s[64:65], s[66:67]")
                for i in range(2, len(pieces)): a(f"s_or_b64 s[4:5], s[4:5], s[{64+2*i}:{65+2*i}]")
            a(f"s_cbranch_scc0 {Lx}")
            if o["xs"]: a(f"s_sleep {o['xs']}")
            for i, p in enumerate(pieces):
                a(f"s_mov_b64 exec, s[{64+2*i}:{65+2*i}]")
                for ld in p[0]: a(ld)
            a("s_mov_b64 exec, -1")
            a("s_sub_u32 s7, s7, 1")
            a("s_cmp_lg_u32 s7, 0")
            a(f"s_cbranch_scc1 {Lre}")
            a(f"{Lx}:")
        def pkadd(d, x, y):
            a(f"v_pk_add_f32 {r2(d)}, {r2(x)}, {r2(y)}"); a(f"v_pk_add_f32 {r2(d+2)}, {r2(x+2)}, {r2(y+2)}")

        self.stamp("start")
        if o["hold"]: a("s_memrealtime s[16:17]")
        a(f"""
        s_load_dwordx16 s[36:51], s[0:1], 0
        s_cmpk_ge_u32 s2, 0x100
        s_cbranch_scc1 L_end
        """)
        if o["jitter"]:
            a(f"""s_mul_i32 s4, s2, 0x9e3779b1
            s_lshr_b32 s4, s4, {32-o["jitter"]}
            L_jit:
            s_cmp_eq_u32 s4, 0
            s_cbranch_scc1 L_jitd
            s_sleep 40
            s_sub_u32 s4, s4, 1
            s_branch L_jit
            L_jitd:""")
        for _ in range(o["pad"]): a("s_nop 0")
        a("s_mov_b32 s101, s2")
        a(f"""
        s_lshr_b32 s{sKQ}, s2, 6
        s_mul_i32 s4, s{sKQ}, {144*8192}
        s_and_b32 s5, s2, 7
        s_bfe_u32 s6, s2, 0x30003
        s_lshl3_add_u32 s{sC6}, s5, s6
        s_lshl_b32 s5, s{sC6}, 7
        s_add_u32 s4, s4, s5
        v_lshrrev_b32 v{vT}, 3, v0
        v_and_b32 v{vT+1}, 7, v0
        v_lshlrev_b32 v{vT+1}, 4, v{vT+1}
        v_lshl_add_u32 v{vQa}, v{vT}, 15, v{vT+1}
        s_mov_b32 s{SQ+2}, {143*8192+128}
        s_mov_b32 s{SQ+3}, 0x20000
        s_movk_i32 s33, 0x2000
        s_movk_i32 s34, 0x4000
        s_movk_i32 s35, 0x6000
        s_waitcnt lgkmcnt(0)
        s_add_u32 s{SQ}, s42, s4
        s_addc_u32 s{SQ+1}, s43, 0
        """)
        if o["st3"]: self.stamp("karg")
        more(4)
        if o["st3"]: self.stamp("Q3iss")
        a(f"""
        s_load_dwordx8 s[52:59], s[0:1], 64
        s_load_dwordx2 s[60:61], s[0:1], 96
        s_lshl_b32 s2, s{sKQ}, 6
        s_add_u32 s2, s2, s{sC6}
        v_lshl_add_u32 v{vQb}, v{vT}, 13, v{vT+1}
        v_add_u32 v{vQb}, {128*8192}, v{vQb}
        v_lshrrev_b32 v{vJ}, 6, v0
        v_lshlrev_b32 v{vV}, 4, v0
        v_readfirstlane_b32 s{sJ}, v{vJ}
        """)
        more(1)
        a(f"""
        s_mov_b32 s{SX}, s36
        s_mov_b32 s{SX+1}, s37
        s_movk_i32 s{SX+2}, 1152
        s_mov_b32 s{SX+3}, 0x20000
        """)
        self.issue("X", f"buffer_load_dwordx4 {r4(vX)}, v{vV}, s[{SX}:{SX+3}], 0 offen")
        MIXG = f"s_xor_b32 s5, s{sC6}, s7\ns_lshl_b32 s5, s5, 7" if o["mix"] else ""
        a(f"""
        s_bitcmp1_b32 s{sJ}, 0
        s_cselect_b32 s{SGU}, s50, s48
        s_cselect_b32 s{SGU+1}, s51, s49
        s_cselect_b32 s7, 2, 1
        s_lshr_b32 s6, s{sJ}, 1
        s_lshl1_add_u32 s6, s{sKQ}, s6
        s_mul_i32 s4, s6, {72*9216}
        {MIXG}
        s_add_u32 s4, s4, s5
        s_add_u32 s{SGU}, s{SGU}, s4
        s_addc_u32 s{SGU+1}, s{SGU+1}, 0
        s_mov_b32 s{SGU+2}, {71*9216+128}
        s_mov_b32 s{SGU+3}, 0x20000
        v_and_b32 v{vT+2}, 7, v{vT}
        v_mul_u32_u24 v{vGU}, {8*9216}, v{vT+2}
        v_add_u32 v{vGU}, v{vGU}, v{vT+1}
        """)
        more(2)
        a(f"""
        v_mul_u32_u24 v{vPD}, 9216, v{vT+2}
        v_add_u32 v{vPD}, v{vPD}, v{vT+1}
        v_add_u32 v{vPD}, {64*9216}, v{vPD}
        s_waitcnt lgkmcnt(0)
        s_mov_b32 s{SR}, s54
        s_mov_b32 s{SR+1}, s55
        s_movk_i32 s{SR+2}, 1152
        s_mov_b32 s{SR+3}, 0x20000
        """)
        self.issue("GW", f"buffer_load_dwordx4 {r4(vX+4)}, v{vV}, s[{SR}:{SR+3}], 0 offen")
        if o["prefetch"]:
            a(f"""
            s_getpc_b64 s[4:5]
            s_lshr_b32 s7, s2, 3
            s_mul_i32 s7, s7, {128*o['prefetch']}
            v_and_b32 v{vT+3}, 63, v0
            v_lshl_add_u32 v{vT+3}, v{vT+3}, 7, s7
            s_mov_b64 exec, {(1 << o['prefetch']) - 1}
            """)
            self.issue("PF", f"global_load_dword v{vMc}, v{vT+3}, s[4:5]")
            a("s_mov_b64 exec, -1")
        more(o["early"])
        TLB = ""
        if o["tlb"]:
            TLB = f"""s_load_dword s33, s[{SK}:{SK+1}], 0
            s_load_dword s33, s[{SV}:{SV+1}], 0
            s_load_dword s33, s[{SO}:{SO+1}], 0
            s_load_dword s33, s[{SR}:{SR+1}], 0
            s_mul_i32 s4, s{sC6}, {64*1152}
            s_add_u32 s4, s52, s4
            s_addc_u32 s5, s53, 0
            s_load_dword s33, s[4:5], 0
            s_add_u32 s4, s52, {4300*1152}
            s_addc_u32 s5, s53, 0
            s_load_dword s33, s[4:5], 0"""
        a(f"""
        s_add_u32 s60, s60, {o['wsoff']:#x}
        s_addc_u32 s61, s61, 0
        s_load_dword s{sTAG}, s[60:61], 0
        s_bitcmp1_b32 s2, 0
        s_cselect_b32 s{SR}, s50, s48
        s_cselect_b32 s{SR+1}, s51, s49
        s_bfe_u32 s7, s2, 0x20001
        s_lshl2_add_u32 s7, s{sKQ}, s7
        s_mul_i32 s4, s7, {36*9216}
        s_lshr_b32 s5, s{sC6}, 3
        s_lshl_b32 s5, s5, 7
        s_add_u32 s4, s4, s5
        s_add_u32 s4, s4, 8192
        s_add_u32 s{SR}, s{SR}, s4
        s_addc_u32 s{SR+1}, s{SR+1}, 0
        s_mov_b32 s{SR+2}, {35*9216+128}
        v_mul_u32_u24 v{vPD2}, 9216, v{vT}
        v_add_u32 v{vPD2}, v{vPD2}, v{vT+1}
        v_add_u32 v{vPO}, {32*9216}, v{vPD2}
        s_lshr_b32 s{sG}, s{sC6}, 2
        s_and_b32 s{sS}, s2, 3
        s_lshl2_add_u32 s{sS}, s{sKQ}, s{sS}
        s_lshl_b32 s4, s{sG}, 24
        s_lshl_b32 s5, s{sS}, 16
        s_add_u32 s4, s4, s5
        s_add_u32 s4, s4, {61440*256}
        s_add_u32 s{SK}, s38, s4
        s_addc_u32 s{SK+1}, s39, 0
        s_mov_b32 s{SK+2}, 0x10000
        s_mov_b32 s{SK+3}, 0x20000
        s_add_u32 s{SV}, s40, s4
        s_addc_u32 s{SV+1}, s41, 0
        s_mov_b32 s{SV+2}, 0x10000
        s_mov_b32 s{SV+3}, 0x20000
        s_lshr_b32 s4, s2, 7
        s_mul_i32 s4, s4, {HB}
        s_add_u32 s{SD}, s52, s4
        s_addc_u32 s{SD+1}, s53, 0
        s_sub_u32 s{SD+2}, {4608*1152}, s4
        s_mov_b32 s{SD+3}, 0x20000
        s_and_b32 s5, s{sS}, 7
        s_lshl3_add_u32 s5, s{sG}, s5
        s_mul_i32 s5, s5, {32*1152}
        s_add_u32 s4, s4, s5
        s_add_u32 s{SO}, s44, s4
        s_addc_u32 s{SO+1}, s45, 0
        s_mov_b32 s{SO+2}, {31*1152+HB}
        s_mov_b32 s{SO+3}, 0x20000
        s_mov_b32 s{SW}, s60
        s_mov_b32 s{SW+1}, s61
        s_mov_b32 s{SW+2}, 0x100000
        s_mov_b32 s{SW+3}, 0x20000
        s_movk_i32 s{s4608}, 4608
        {TLB}
        v_and_b32 v{vL}, 63, v0
        v_and_b32 v{vU}, 3, v0
        v_lshlrev_b32 v{vU}, 4, v{vU}
        v_bfe_u32 v{vU+1}, v0, 2, 2
        v_lshl_add_u32 v{vU}, v{vU+1}, 8, v{vU}
        v_bfe_u32 v{vU+1}, v0, 4, 2
        v_lshl_add_u32 v{vU}, v{vU+1}, 6, v{vU}
        v_lshl_add_u32 v{vK}, v{vJ}, 10, v{vU}
        v_mov_b32 v{vTM}, 0xffffff00
        v_and_b32 v{vU}, 1, v0
        v_lshlrev_b32 v{vU}, 4, v{vU}
        v_mov_b32 v{vU+1}, 0xffff
        v_lshlrev_b32 v{vU}, v{vU}, v{vU+1}
        v_bfe_u32 v{vU+1}, v0, 1, 2
        v_cmp_eq_u32 s[4:5], 0, v{vU+1}
        v_cmp_eq_u32 s[36:37], 1, v{vU+1}
        v_cmp_eq_u32 vcc, 2, v{vU+1}
        v_cndmask_b32 v{vM[0]}, 0, v{vU}, s[4:5]
        v_cndmask_b32 v{vM[1]}, 0, v{vU}, s[36:37]
        v_cmp_eq_u32 s[36:37], 3, v{vU+1}
        v_cndmask_b32 v{vM[2]}, 0, v{vU}, vcc
        v_or_b32 v{vU+3}, v{vM[0]}, v{vM[2]}
        v_cndmask_b32 v{vM[3]}, 0, v{vU}, s[36:37]
        v_or_b32 v{vU+1}, v{vM[1]}, v{vM[3]}
        v_mov_b32 v{vU+2}, 0x0c0c0c0c
        s_mov_b32 s32, 0x01000100
        s_mov_b32 s63, 0x03020302
        v_bfi_b32 v{vSel[0]}, v{vU+3}, s32, v{vU+2}
        v_bfi_b32 v{vSel[1]}, v{vU+1}, s32, v{vU+2}
        v_bfi_b32 v{vSel[2]}, v{vU+3}, s63, v{vU+2}
        v_bfi_b32 v{vSel[3]}, v{vU+1}, s63, v{vU+2}
        """)
        if o["pt"]:
            a(f"""
            s_lshl_b32 s4, s2, 10
            s_add_u32 s4, s4, {RA}
            s_lshl4_add_u32 s5, s{sG}, s{sS}
            s_mul_i32 s5, s5, 1152
            s_add_u32 s5, s5, {OB}
            s_cmp_eq_u32 s{sJ}, 1
            s_cselect_b32 s4, s5, s4
            s_and_b32 s5, s2, 127
            s_mul_i32 s5, s5, {CG*16}
            s_lshr_b32 s100, s2, 7
            s_lshl1_add_u32 s100, s100, s{sJ}
            s_sub_u32 s100, s100, 2
            s_mul_i32 s100, s100, {9*128*CG*16}
            s_add_u32 s5, s5, s100
            s_add_u32 s5, s5, {FB}
            s_cmp_ge_u32 s{sJ}, 2
            s_cselect_b32 s4, s5, s4
            s_cselect_b32 s5, {(128*CG*16).bit_length()-1}, 7
            v_lshlrev_b32 v{vU}, s5, v{vL}
            v_add_u32 v{vU}, s4, v{vU}
            s_mov_b64 exec, 0x1ff
            """)
            self.issue("PT", f"buffer_load_dword v{vMx}, v{vU}, s[{SW}:{SW+3}], 0 offen {o['ptf']}")
            a("s_mov_b64 exec, -1")
        a(f"""
        v_lshlrev_b32 v{vU}, 2, v{vL}
        v_mov_b32 v{vU+4}, 0
        v_mov_b32 v{vU+5}, 0
        v_mov_b32 v{vU+6}, 0
        v_mov_b32 v{vU+7}, 0
        ds_write_b32 v{vU}, v{vU+4} offset:{HL}
        ds_write_b32 v{vU}, v{vU+4} offset:{XL+2304}
        v_lshlrev_b32 v{vU+1}, 3, v{vL}
        ds_write_b64 v{vU+1}, {r2(vU+4)} offset:{OLX+1024}
        v_and_b32 v{vU+1}, 1, v{vJ}
        v_lshlrev_b32 v{vU+1}, 11, v{vU+1}
        v_lshl_add_u32 v{vU+1}, v{vL}, 4, v{vU+1}
        ds_write_b128 v{vU+1}, {r4(vU+4)} offset:{P1+2048+1024}
        """)
        a(f"""
        s_mul_i32 s4, s{sKQ}, 576
        v_lshl_add_u32 v{vU+8}, v{vT}, 4, s4
        v_lshl_add_u32 v{vU+9}, v{vT}, 2, s4
        s_mul_i32 s4, s6, 288
        v_lshl_add_u32 v{vU+10}, v{vT+2}, 5, s4
        v_lshl_add_u32 v{vU+11}, v{vT+2}, 2, s4
        s_mul_i32 s4, s7, 144
        v_lshl_add_u32 v{vU+12}, v{vT}, 2, s4
        v_bfe_u32 v{vU+4}, v0, 3, 1
        v_bfe_u32 v{vU+5}, v0, 5, 1
        v_cmp_eq_u32 vcc, v{vU+4}, v{vU+5}
        v_bfe_u32 v{vU+4}, v0, 4, 1
        v_lshlrev_b32 v{vU+4}, 7, v{vU+4}
        v_lshl_add_u32 v{vU+4}, v{vU+5}, 8, v{vU+4}
        v_lshrrev_b32 v{vU+5}, 2, v{vT+1}
        v_add_u32 v{vU+4}, v{vU+4}, v{vU+5}
        v_lshl_add_u32 v{vU+13}, v{vJ}, 9, v{vU+4}
        s_and_b32 s4, s{sJ}, 1
        s_lshl_b32 s4, s4, 11
        s_lshr_b32 s5, s{sJ}, 1
        s_lshl_b32 s5, s5, 9
        s_add_u32 s4, s4, s5
        s_add_u32 s4, s4, 2048
        v_add_u32 v{vU+14}, s4, v{vU+4}
        v_mov_b32 v{vU+5}, {DUM-P1}
        v_cndmask_b32 v{vU+13}, v{vU+5}, v{vU+13}, vcc
        v_cndmask_b32 v{vU+14}, v{vU+5}, v{vU+14}, vcc
        v_mov_b32 v{vU+5}, {DUM-P1-6144}
        v_lshl_add_u32 v{vU+15}, v{vJ}, 9, v{vU+4}
        v_cndmask_b32 v{vU+15}, v{vU+5}, v{vU+15}, vcc
        v_lshlrev_b32 v{vU+16}, 5, v0
        v_min_u32 v{vU+16}, 2304, v{vU+16}
        """)
        if o["skewm"]:
            a(f"""
            s_waitcnt lgkmcnt(0)
            s_lshl_b32 s4, s2, 2
            s_add_u32 s4, s4, 0xF0000
            v_mov_b32 v{vBq}, s16
            v_mov_b32 v{vBq+1}, s4
            s_mov_b64 exec, 1
            """)
            self.issue("SK", f"buffer_store_dword v{vBq}, v{vBq+1}, s[{SW}:{SW+3}], 0 offen sc1")
            a("s_mov_b64 exec, -1")
        (None if o["st4"] else self.stamp("prol"))
        if o["st3"]:
            self.wait("Q0"); self.stamp("Q0land")
        self.wait("X")
        if o["st3"]: self.stamp("Xland")
        for i in range(4):
            a(f"v_perm_b32 v{vT+2*i}, v{vX+i}, v{vX+i}, s32")
            a(f"v_perm_b32 v{vT+2*i+1}, v{vX+i}, v{vX+i}, s63")
        a(f"""
        ds_write_b128 v{vU+16}, {r4(vT)} offset:{XL}
        ds_write_b128 v{vU+16}, {r4(vT+4)} offset:{XL+16}
        """)
        fill("Q4")
        a(f"""
        s_waitcnt lgkmcnt(0)
        s_barrier
        ds_read_b128 {r4(vS)}, v{vU+8} offset:{XL}
        ds_read_b32 v{vS+4}, v{vU+9} offset:{XL+512}
        ds_read_b128 {r4(vS+8)}, v{vU+10} offset:{XL}
        ds_read_b128 {r4(vS+12)}, v{vU+10} offset:{XL+16}
        ds_read_b32 v{vS+5}, v{vU+11} offset:{XL+256}
        ds_read_b32 v{vS+6}, v{vU+12} offset:{XL}
        ds_read_b32 v{vS+7}, v{vU+12} offset:{XL+128}
        s_add_u32 s{sTAG}, s{sTAG}, 1
        s_and_b32 s{sT2}, s{sTAG}, {TM2:#x}
        s_and_b32 s{sTAG}, s{sTAG}, 0xff
        s_getreg_b32 s{sXE}, hwreg(HW_REG_XCC_ID, 0, 4)
        s_lshl_b32 s{sXE}, s{sXE}, 8
        s_add_u32 s{sXE}, s{sXE}, s{sTAG}
        s_waitcnt lgkmcnt(5)
        """)
        nb = [0]
        def l8(lbl, xreg, acc, first, dowait=True):
            B = vT + 4 * (nb[0] % 4); nb[0] += 1
            for j in range(4): a(f"v_and_b32 v{B+j}, v{xreg}, v{vM[j]}")
            if dowait: self.wait(lbl)
            a(f"v_mfma_f32_16x16x32_bf16 {r4(acc)}, {r4(dst[lbl])}, {r4(B)}, {'0' if first else r4(acc)}")
        for t in range(5): l8(f"Q{t}", vS + t, vAq, t == 0, False)
        self.wait("GW")
        for i in range(4):
            a(f"""
            v_lshlrev_b32 v{vU}, 16, v{vX+i}
            v_and_b32 v{vU+1}, 0xffff0000, v{vX+i}
            v_lshlrev_b32 v{vU+2}, 16, v{vX+4+i}
            v_and_b32 v{vU+3}, 0xffff0000, v{vX+4+i}
            v_pk_mul_f32 {r2(vU)}, {r2(vU)}, {r2(vU+2)}
            v_cvt_pk_bf16_f32 v{vU}, v{vU}, v{vU+1}
            v_and_b32 v{vU+1}, 0xffff0000, v{vU}
            v_lshlrev_b32 v{vU}, 16, v{vU}
            """)
            if i == 0: a(f"v_pk_mul_f32 {r2(vU+4)}, {r2(vU)}, 1.0 op_sel_hi:[1,0]")
            else: a(f"v_pk_add_f32 {r2(vU+4)}, {r2(vU+4)}, {r2(vU)}")
        for i in range(4): a(f"ds_write_b32 v{vU+13}, v{vAq+i} offset:{P1+32*i}")
        a(f"v_add_f32 v{vU+4}, v{vU+4}, v{vU+5}")
        for r in (1, 2, 4, 8): a(f"v_add_f32_dpp v{vU+4}, v{vU+4}, v{vU+4} row_ror:{r} {DPP}")
        a(f"""
        v_lshrrev_b32 v{vU+1}, 4, v0
        v_lshlrev_b32 v{vU+1}, 2, v{vU+1}
        ds_write_b32 v{vU+1}, v{vU+4} offset:{GS}
        s_lshl_b32 s4, s2, 10
        s_add_u32 s4, s4, {RA}
        v_lshl_add_u32 v{vFA}, v{vL}, 4, s4
        s_waitcnt lgkmcnt(0)
        s_barrier
        """)
        def pubA(lo, hi, wave, name, tg=None):
            L = self.lab(name)
            mask = ((1 << hi) - 1) ^ ((1 << lo) - 1)
            a(f"""
            s_cmp_lg_u32 s{sJ}, {wave}
            s_cbranch_scc1 {L}
            s_mov_b32 exec_lo, {mask & 0xffffffff:#x}
            s_mov_b32 exec_hi, {mask >> 32:#x}
            v_lshrrev_b32 v{vU}, 4, v{vL}
            v_lshlrev_b32 v{vU}, 11, v{vU}
            v_and_b32 v{vU+1}, 15, v{vL}
            v_lshl_add_u32 v{vU}, v{vU+1}, 4, v{vU}
            """)
            tg = tg or [vAO, vAO + 4, vBq, vPoll, vU + 4, vU + 8, vU + 20, vU + 24]
            for p in range(8): a(f"ds_read_b128 {r4(tg[p])}, v{vU} offset:{P1+256*p}")
            a("s_waitcnt lgkmcnt(0)")
            for p in range(1, 8): pkadd(tg[0], tg[0], tg[p])
            tagins(tg[0])
            if name == "qpub":
                a(f"v_and_b32 v{tg[0]}, 0xfffff000, v{tg[0]}"); a(f"v_or_b32 v{tg[0]}, s{sXE}, v{tg[0]}")
            a(f"""
            s_branch {L}s
            {L}:
            s_mov_b64 exec, 0
            {L}s:
            """)
            dual(name, f"buffer_store_dwordx4 {r4(tg[0])}, v{vFA}, s[{SW}:{SW+3}], 0 offen", name == "gpub")
        pubA(0, 16, 3, "qpub")
        (None if o["st4"] else self.stamp("qpub"))
        more(o["pre_qp"])
        for k in range(9):
            l8(f"G{k}", vS + 8 + k if k < 8 else vS + 5, vAg, k == 0)
            fill(f"G{k}")
            if k == 2:
                a(f"""
                v_mov_b32 v{vU}, 0
                ds_read_b128 {r4(vU+4)}, v{vU} offset:{GS}
                ds_read_b32 v{vU+8}, v{vU} offset:{GS+16}
                s_waitcnt lgkmcnt(0)
                v_pk_add_f32 {r2(vU+4)}, {r2(vU+4)}, {r2(vU+6)}
                v_add_f32 v{vU}, v{vU+4}, v{vU+5}
                v_add_f32 v{vU}, v{vU}, v{vU+8}
                v_cvt_pk_bf16_f32 v{vU}, v{vU}, v{vU}
                v_lshlrev_b32 v{vU}, 16, v{vU}
                v_mul_f32 v{vU}, {f2u(-1.4426950408889634):#x}, v{vU}
                v_exp_f32 v{vU}, v{vU}
                v_add_f32 v{vU}, 1.0, v{vU}
                v_rcp_f32 v{vU}, v{vU}
                v_cvt_pk_bf16_f32 v{vU}, v{vU}, v{vU}
                v_lshlrev_b32 v{vG}, 16, v{vU}
                v_sub_f32 v{vU}, 1.0, v{vG}
                v_cvt_pk_bf16_f32 v{vU}, v{vU}, v{vU}
                v_lshlrev_b32 v{vOMG}, 16, v{vU}
                """)
            if k == 5:
                a(f"""
                s_lshl_b32 s4, s{sJ}, 16
                s_lshl_b32 s5, s{sG}, 12
                s_add_u32 s4, s4, s5
                s_add_u32 s4, s4, {RA}
                v_lshrrev_b32 v{vU}, 4, v{vL}
                v_lshlrev_b32 v{vU}, 10, v{vU}
                v_and_b32 v{vU+1}, 15, v{vL}
                v_lshl_add_u32 v{vU}, v{vU+1}, 4, v{vU}
                v_add_u32 v{vQa}, s4, v{vU}
                s_xor_b32 s5, s{sG}, 1
                s_lshl_b32 s5, s5, 12
                s_add_u32 s5, s5, {RA}
                v_bfe_u32 v{vU}, v0, 2, 2
                v_lshlrev_b32 v{vU}, 16, v{vU}
                v_and_b32 v{vU+1}, 3, v0
                v_lshl_add_u32 v{vU}, v{vU+1}, 10, v{vU}
                v_add_u32 v{vQb}, s5, v{vU}
                """)
        for k in range(2):
            l8(f"R{k}", vS + 6 + k, vAr, k == 0)
            if k == 1: self.gdone = True
            fill(f"R{k}")
        for i in range(4): a(f"ds_write_b32 v{vU+14}, v{vAg+i} offset:{P1+32*i}")
        UNEV = f"""s_lshr_b32 s4, s2, 7
        s_lshl_b32 s4, s4, 3
        s_sub_u32 s4, 40, s4
        v_cmp_gt_u32 vcc, s4, v{vCH}
        s_lshl_b32 s14, s4, 1
        v_cndmask_b32 v{vPD}, v{vU}, v{vPD}, vcc
        v_cndmask_b32 v{vPD2}, v{vU}, v{vPD2}, vcc
        v_cndmask_b32 v{vPO}, v{vU}, v{vPO}, vcc
        v_cndmask_b32 v{vGU}, v{vU}, v{vGU}, vcc""" if UN else "s_movk_i32 s14, 72"
        a(f"""
        v_mul_u32_u24 v{vRS}, {MAG}, v0
        v_lshrrev_b32 v{vRS}, 16, v{vRS}
        v_mul_u32_u24 v{vCH}, {NCH}, v{vRS}
        v_sub_u32 v{vCH}, v0, v{vCH}
        v_mul_u32_u24 v{vPO}, {6*1152}, v{vRS}
        v_lshl_add_u32 v{vPO}, v{vCH}, 4, v{vPO}
        v_add_u32 v{vGU}, 4608, v{vPO}
        """)
        for i in range(4): a(f"ds_write_b32 v{vU+15}, v{vAr+i} offset:{P1+6144+32*i}")
        a(f"""
        s_bfe_u32 s4, s2, 0x10006
        s_lshl1_add_u32 s4, s{sC6}, s4
        s_mul_i32 s4, s4, {32*1152}
        v_add_u32 v{vPD}, s4, v{vPO}
        s_lshr_b32 s5, s{sC6}, 3
        s_lshl_b32 s5, s5, 4
        s_and_b32 s6, s{sC6}, 7
        s_add_u32 s5, s5, s6
        s_bfe_u32 s6, s2, 0x10006
        s_lshl3_add_u32 s5, s6, s5
        s_mul_i32 s5, s5, {4*1152}
        s_add_u32 s5, s5, {(4096-2)*1152}
        v_lshl_add_u32 v{vPD2}, v{vCH}, 4, s5
        v_cmp_gt_u32 vcc, 5, v{vRS}
        v_cmp_gt_u32 s[4:5], 6, v{vRS}
        v_bfrev_b32 v{vU}, -2
        v_cndmask_b32 v{vPD2}, v{vPD2}, v{vPD}, vcc
        v_cndmask_b32 v{vPD}, v{vU}, v{vPD}, s[4:5]
        v_cndmask_b32 v{vPD2}, v{vU}, v{vPD2}, s[4:5]
        {UNEV}
        v_mul_u32_u24 v{vU}, {NCH*32}, v{vRS}
        v_lshl_add_u32 v{vCH}, v{vCH}, 5, v{vU}
        v_mul_u32_u24 v{vRS}, 12, v{vRS}
        v_add_u32 v{vRS}, {HL}, v{vRS}
        """)
        (None if o["st4"] else self.stamp("gpub"))
        more(o["pre_g"])
        if o["pts"]:
            a(f"""
            s_lshr_b32 s4, s2, 7
            s_mul_i32 s4, s4, {2 * NCH // CG}
            s_mul_i32 s5, s{sJ}, {(72 // CG + 3) // 4}
            s_add_u32 s4, s4, s5
            s_mul_i32 s4, s4, {128 * CG * 16}
            s_and_b32 s5, s2, 127
            s_mul_i32 s5, s5, {CG * 16}
            s_add_u32 s4, s4, s5
            s_add_u32 s4, s4, {FB}
            s_add_u32 s4, s60, s4
            s_addc_u32 s5, s61, 0
            """)
            for i in range((72 // CG + 3) // 4): a(f"s_load_dword s33, s[4:5], {128*CG*16*i} {'glc' if o['pts'] == 2 else ''}")
        if o["cpf"]:
            a(f"""
            s_getpc_b64 s[4:5]
            s_lshr_b32 s6, s101, 3
            s_lshl2_add_u32 s6, s6, s{sJ}
            s_lshl_b32 s6, s6, 6
            s_add_u32 s4, s4, s6
            s_addc_u32 s5, s5, 0
            s_load_dword s33, s[4:5], 0
            """)
        qload = f"buffer_load_dwordx4 {r4(vPoll)}, v{vQa}, s[{SW}:{SW+3}], 0 offen sc1"
        for k in range(o["qp"] + 1):
            self.wait(f"K{k}"); fill(f"K{k}")
        a(f"s_cmp_eq_u32 s{sJ}, 0"); a("s_cselect_b64 exec, 0xffff, 0")
        self.issue("QP2", f"buffer_load_dwordx4 {r4(vAO)}, v{vQb}, s[{SW}:{SW+3}], 0 offen sc1")
        a("s_mov_b64 exec, -1")
        self.issue("QP", qload.replace("sc1", o["first"]))
        lastK = min(15, self.ip - 1 - big.index("K0"))
        for k in range(o["qp"] + 1, lastK + 1):
            self.wait(f"K{k}"); fill(f"K{k}")
        more(o["pre_q"])
        a(f"""
        v_bfe_u32 v{vU+1}, v0, 3, 1
        v_lshlrev_b32 v{vU+1}, 9, v{vU+1}
        v_bfe_u32 v{vU+2}, v0, 4, 2
        v_lshl_add_u32 v{vU+1}, v{vU+2}, 7, v{vU+1}
        v_and_b32 v{vU+2}, 3, v0
        v_lshl_add_u32 v{vU+1}, v{vU+2}, 5, v{vU+1}
        """)
        self.wait("QP")
        retry_loop("q", [qload], [vPoll], vU)
        a(f"""
        ds_write_b128 v{vV}, {r4(vPoll)} offset:{QL}
        v_cmp_gt_u32 vcc, 16, v0
        v_xor_b32 v{vU}, s{sXE}, v{vPoll}
        v_xor_b32 v{vU+2}, s{sTAG}, v{vAO+1}
        v_bitop3_b32 v{vU+2}, v{vAO+2}, s{sTAG}, v{vU+2} bitop3:0xbe
        v_bitop3_b32 v{vU+2}, v{vAO+3}, s{sTAG}, v{vU+2} bitop3:0xbe
        v_and_b32 v{vU+2}, 0xff, v{vU+2}
        v_bitop3_b32 v{vU+2}, v{vAO}, s{sXE}, v{vU+2} bitop3:0xbe
        v_cndmask_b32 v{vU+2}, 0, v{vU+2}, vcc
        v_or_b32 v{vU}, v{vU}, v{vU+2}
        v_and_b32 v{vU}, 0xfff, v{vU}
        v_cmp_ne_u32 vcc, 0, v{vU}
        v_lshlrev_b32 v{vU+2}, 2, v{vJ}
        s_cmp_lg_u64 vcc, 0
        s_cselect_b32 s4, 1, 0
        v_mov_b32 v{vU}, s4
        ds_write_b32 v{vU+2}, v{vU} offset:{XF}
        v_mov_b32 v{vU+2}, 0
        s_waitcnt lgkmcnt(0)
        s_barrier
        ds_read_b128 {r4(vAO)}, v{vU+2} offset:{XF}
        """)
        qd = [vT, vT + 8, vU + 8, vU + 16]
        for k in range(4):
            a(f"ds_read_b128 {r4(qd[k])}, v{vU+1} offset:{QL+1024*k}")
            a(f"ds_read_b128 {r4(qd[k]+4)}, v{vU+1} offset:{QL+1024*k+16}")
        a("s_waitcnt lgkmcnt(4)")
        a(f"v_or3_b32 v{vAO}, v{vAO}, v{vAO+1}, v{vAO+2}")
        a(f"v_or_b32 v{vAO}, v{vAO}, v{vAO+3}")
        for i in range(0, 8, 2): a(f"v_pk_add_f32 {r2(qd[0]+i)}, {r2(qd[0]+i)}, {r2(qd[1]+i)}")
        a(f"v_cmp_eq_u32 s[{sPL}:{sPL+1}], 0, v{vAO}")
        a("s_waitcnt lgkmcnt(0)")
        for i in range(0, 8, 2): a(f"v_pk_add_f32 {r2(qd[2]+i)}, {r2(qd[2]+i)}, {r2(qd[3]+i)}")
        for i in range(0, 8, 2): a(f"v_pk_add_f32 {r2(qd[0]+i)}, {r2(qd[0]+i)}, {r2(qd[2]+i)}")
        for i in range(4): a(f"v_cvt_pk_bf16_f32 v{vBq+i}, v{qd[0]+2*i}, v{qd[0]+2*i+1}")
        pubA(16, 64, 2, "gpub", [vAO, vAO + 4, vT, vT + 4, vT + 8, vT + 12, vU + 4, vU + 8])
        a(f"v_mov_b32 v{vTM}, {0xffffffff ^ TM2:#x}")
        if o["stamps"] and o["cnt"] == 3:
            r = self.sreg(self.nst); self.names.append("xretry"); self.nst += 1
            a(f"s_and_b32 s4, s{sPL}, 100"); a(f"s_add_u32 s{r}, s16, s4"); a(f"s_addc_u32 s{r+1}, s17, 0")
        (None if o["st4"] else self.stamp("qcons"))
        if o["round_scores"]: a(f"s_mov_b32 s{sC}, {f2u(128 ** -0.5):#x}")
        def qk_fin(t):
            D = vT + 4 * (t % 4)
            a(f"v_mov_b32_dpp v{vS+t}, v{D} quad_perm:[0,0,0,0] {DPP}")
            for u in range(1, 4): a(f"v_add_f32_dpp v{vS+t}, v{D+u}, v{vS+t} quad_perm:[{u},{u},{u},{u}] {DPP}")
            if t & 1:
                t0 = t - 1
                if o["round_scores"]:
                    a(f"""
                    v_cvt_pk_bf16_f32 v{vU}, v{vS+t0}, v{vS+t0+1}
                    v_lshlrev_b32 v{vS+t0}, 16, v{vU}
                    v_and_b32 v{vS+t0+1}, 0xffff0000, v{vU}
                    v_mul_f32 v{vS+t0}, s{sC}, v{vS+t0}
                    v_mul_f32 v{vS+t0+1}, s{sC}, v{vS+t0+1}
                    v_cvt_pk_bf16_f32 v{vU}, v{vS+t0}, v{vS+t0+1}
                    v_lshlrev_b32 v{vS+t0}, 16, v{vU}
                    v_and_b32 v{vS+t0+1}, 0xffff0000, v{vU}
                    """)
                if t == 1: a(f"v_max_f32 v{vU+1}, v{vS}, v{vS+1}")
                else: a(f"v_max3_f32 v{vU+1}, v{vU+1}, v{vS+t0}, v{vS+t0+1}")
        for t in range(16):
            if t > lastK: self.wait(f"K{t}")
            D = vT + 4 * (t % 4)
            a(f"v_mfma_f32_16x16x32_bf16 {r4(D)}, {r4(dst[f'K{t}'])}, {r4(vBq)}, 0")
            if t == 15: self.kdone = True
            if t > lastK: fill(f"K{t}")
            if t >= 2: qk_fin(t - 2)
        more(o["pre_s"])
        a(f"""
        v_bfe_u32 v{vU+2}, v0, 3, 1
        v_lshlrev_b32 v{vU+2}, 6, v{vU+2}
        v_lshrrev_b32 v{vU+3}, 4, v0
        v_lshl_add_u32 v{vK}, v{vU+3}, 2, v{vU+2}
        """)
        qk_fin(14); qk_fin(15)
        cexp = 1.4426950408889634 if o["round_scores"] else 128 ** -0.5 * 1.4426950408889634
        a(f"""
        ds_write_b32 v{vK}, v{vU+1} offset:{MX}
        s_mov_b32 s{sC}, {f2u(cexp):#x}
        s_waitcnt lgkmcnt(0)
        s_barrier
        """)
        for i in range(4): a(f"ds_read_b128 {r4(vT+4*i)}, v{vU+2} offset:{MX+16*i}")
        a("s_waitcnt lgkmcnt(0)")
        a(f"v_max3_f32 v{vT}, v{vT}, v{vT+1}, v{vT+2}")
        for t in range(3, 15, 2): a(f"v_max3_f32 v{vT}, v{vT}, v{vT+t}, v{vT+t+1}")
        a(f"v_max_f32 v{vMx}, v{vT}, v{vT+15}")
        a(f"v_and_b32 v{vMx}, v{vMx}, v{vTM}")
        a(f"v_mul_f32 v{vMc}, s{sC}, v{vMx}")
        for t in range(16): a(f"v_fma_f32 v{vS+t}, v{vS+t}, s{sC}, -v{vMc}")
        for t in range(16): a(f"v_exp_f32 v{vS+t}, v{vS+t}")
        a(f"v_pk_add_f32 {r2(vT)}, {r2(vS)}, {r2(vS+2)}")
        for t in range(4, 16, 2): a(f"v_pk_add_f32 {r2(vT)}, {r2(vT)}, {r2(vS+t)}")
        a(f"v_add_f32 v{vT}, v{vT}, v{vT+1}")
        a(f"ds_write_b32 v{vK}, v{vT} offset:{LS}")
        self.stamp("smax")
        Lha = self.lab("haddr")
        hl = [f"buffer_load_dwordx4 {r4(vAO)}, v{vQa}, s[{SW}:{SW+3}], 0 offen sc1",
              f"buffer_load_dwordx4 {r4(vAO+4)}, v{vQb}, s[{SW}:{SW+3}], 0 offen sc1"]
        a(f"""
        s_cmp_lg_u32 s{sJ}, 3
        s_cbranch_scc1 {Lha}
        s_bfe_u32 s4, s2, 0x10006
        s_lshl_b32 s4, s4, 7
        s_add_u32 s4, s4, {RA+256}
        v_and_b32 v{vU}, 3, v0
        v_lshlrev_b32 v{vU}, 16, v{vU}
        v_bfe_u32 v{vU+1}, v0, 5, 1
        v_lshl_add_u32 v{vU}, v{vU+1}, 8, v{vU}
        v_add_u32 v{vU+1}, 1, v{vU+1}
        {"" if o["mix"] else f"v_mov_b32 v{vU+1}, 0"}
        v_xor_b32 v{vU+1}, s{sC6}, v{vU+1}
        v_lshl_add_u32 v{vU}, v{vU+1}, 10, v{vU}
        v_bfe_u32 v{vU+1}, v0, 2, 3
        v_lshl_add_u32 v{vU}, v{vU+1}, 4, v{vU}
        v_add_u32 v{vQa}, s4, v{vU}
        s_and_b32 s4, s{sC6}, 0x38
        s_lshl_b32 s4, s4, 10
        s_and_b32 s5, s{sC6}, 7
        s_bfe_u32 s6, s2, 0x10006
        s_lshl3_add_u32 s5, s6, s5
        s_lshl_b32 s5, s5, 4
        s_add_u32 s4, s4, s5
        s_add_u32 s4, s4, {RA+768}
        v_bfe_u32 v{vU}, v0, 2, 2
        v_lshlrev_b32 v{vU}, 16, v{vU}
        v_and_b32 v{vU+1}, 3, v0
        v_lshl_add_u32 v{vU}, v{vU+1}, 11, v{vU}
        v_bfe_u32 v{vU+1}, v0, 4, 1
        v_lshl_add_u32 v{vU}, v{vU+1}, 10, v{vU}
        v_add_u32 v{vQb}, s4, v{vU}
        {Lha}:
        """)
        def hfin():
            Lh = self.lab("hfin")
            a(f"""
            s_cmp_lg_u32 s{sJ}, 3
            s_cbranch_scc1 {Lh}
            s_waitcnt vmcnt({len(self.vm) - self.hmark})
            """)
            retry_loop("h", hl, [vAO, vAO + 4], vU)
            for i in range(4): a(f"v_add_f32_dpp v{vAO+i}, v{vAO+i}, v{vAO+i} quad_perm:[1,0,3,2] {DPP}")
            for i in range(4): a(f"v_add_f32_dpp v{vAO+4+i}, v{vAO+4+i}, v{vAO+4+i} row_ror:1 {DPP}")
            for i in range(4): a(f"v_add_f32_dpp v{vAO+i}, v{vAO+i}, v{vAO+i} quad_perm:[2,3,0,1] {DPP}")
            for r in (2, 4, 8):
                for i in range(4): a(f"v_add_f32_dpp v{vAO+4+i}, v{vAO+4+i}, v{vAO+4+i} row_ror:{r} {DPP}")
            a(f"""
            v_bfe_u32 v{vU+1}, v0, 5, 1
            v_mul_u32_u24 v{vU+1}, 192, v{vU+1}
            v_bfe_u32 v{vU+2}, v0, 2, 3
            v_lshl_add_u32 v{vU+1}, v{vU+2}, 4, v{vU+1}
            ds_write_b128 v{vU+1}, {r4(vAO)} offset:{HP}
            v_bfe_u32 v{vU+1}, v0, 4, 1
            v_mul_u32_u24 v{vU+1}, 192, v{vU+1}
            ds_write_b128 v{vU+1}, {r4(vAO+4)} offset:{HP+128}
            v_min_u32 v{vU+1}, 35, v{vL}
            v_lshlrev_b32 v{vU+2}, 2, v{vU+1}
            v_add_u32 v{vU+2}, {HP}, v{vU+2}
            s_waitcnt lgkmcnt(0)
            ds_read2_b32 {r2(vU+4)}, v{vU+2} offset0:0 offset1:48
            v_lshlrev_b32 v{vU+1}, 1, v{vU+1}
            s_waitcnt lgkmcnt(0)
            v_cvt_pk_bf16_f32 v{vU+4}, v{vU+4}, v{vU+5}
            v_and_b32 v{vU+5}, 0xffff0000, v{vU+4}
            v_lshlrev_b32 v{vU+4}, 16, v{vU+4}
            v_max_f32 v{vU+4}, 0, v{vU+4}
            v_mul_f32 v{vU+4}, v{vU+4}, v{vU+5}
            v_add_f32 v{vU+4}, 0, v{vU+4}
            v_cvt_pk_bf16_f32 v{vU+4}, v{vU+4}, v{vU+4}
            ds_write_b16 v{vU+1}, v{vU+4} offset:{HL}
            {Lh}:
            """)
        hcheck = None
        for t in range(16):
            B = vT + 4 * (t % 2)
            a(f"v_cvt_pk_bf16_f32 v{vU}, v{vS+t}, v{vS+t}")
            for j in range(4): a(f"v_and_b32 v{B+j}, v{vU}, v{vM[j]}")
            self.wait(f"V{t}")
            a(f"v_mfma_f32_16x16x32_bf16 {r4(vAcc)}, {r4(dst[f'V{t}'])}, {r4(B)}, {'0' if t == 0 else r4(vAcc)}")
            fill(f"V{t}", min(W, 15 + o["Wt"] - t))
            if o["st4"] and t in (1, 2, 5, 8, 9, 12): self.stamp(f"V{t}")
            if t == o["hp"]:
                a(f"s_cmp_eq_u32 s{sJ}, 3"); a("s_cselect_b64 exec, -1, 0")
                for i, ld in enumerate(hl): self.issue(f"H{i}", ld.replace("sc1", o["first"]))
                a("s_mov_b64 exec, -1")
                self.hmark = len(self.vm)
                hcheck = min(15, self.ip - big.index("V0"))
            if t == 3:
                a(f"""
                v_bfe_u32 v{vK}, v0, 3, 1
                v_lshlrev_b32 v{vK}, 9, v{vK}
                v_bfe_u32 v{vU+1}, v0, 4, 2
                v_lshl_add_u32 v{vK}, v{vU+1}, 7, v{vK}
                v_and_b32 v{vU+1}, 7, v0
                v_lshl_add_u32 v{vK}, v{vU+1}, 2, v{vK}
                v_lshl_add_u32 v{vK}, v{vJ}, 10, v{vK}
                s_lshl4_add_u32 s6, s{sG}, s{sS}
                s_mul_i32 s6, s6, 1152
                s_add_u32 s6, s6, {OB}
                v_lshl_add_u32 v{vX+4}, v{vL}, 4, s6
                s_mul_i32 s4, s{sG}, {16*1152}
                s_add_u32 s4, s4, {OB}
                v_and_b32 v{vX+5}, 15, v0
                v_mul_u32_u24 v{vX+5}, 1152, v{vX+5}
                v_add_u32 v{vX+5}, s4, v{vX+5}
                s_and_b32 s5, s{sS}, 7
                s_lshl_b32 s5, s5, 7
                s_lshr_b32 s4, s{sJ}, 1
                s_lshl_b32 s4, s4, 6
                s_add_u32 s4, s4, s5
                v_bfe_u32 v{vU+1}, v0, 4, 2
                v_lshl_add_u32 v{vX+6}, v{vU+1}, 4, v{vX+5}
                v_add_u32 v{vX+6}, s4, v{vX+6}
                s_bfe_u32 s4, s{sS}, 0x10002
                s_lshl_b32 s4, s4, 4
                v_add_u32 v{vX+5}, s4, v{vX+5}
                v_lshrrev_b32 v{vFA}, {CG.bit_length()-1}, v0
                v_mul_u32_u24 v{vFA}, {128*CG*16}, v{vFA}
                v_and_b32 v{vU+1}, {CG-1}, v0
                v_lshl_add_u32 v{vFA}, v{vU+1}, 4, v{vFA}
                s_and_b32 s4, s2, 127
                s_mul_i32 s4, s4, {CG*16}
                s_lshr_b32 s5, s2, 7
                s_mul_i32 s5, s5, {2*NCH*128*16}
                s_add_u32 s4, s4, s5
                s_add_u32 s4, s4, {FB}
                v_add_u32 v{vFA}, s4, v{vFA}
                """)
            if t == 4:
                a(f"""
                v_subrev_u32 v{vX+7}, {HL}, v{vRS}
                v_and_b32 v{vU+1}, 3, v0
                v_lshlrev_b32 v{vU+1}, 3, v{vU+1}
                v_lshl_add_u32 v{vX+7}, v{vX+7}, 4, v{vU+1}
                v_add_u32 v{vX+7}, {OLX}, v{vX+7}
                v_bfe_u32 v{vU+1}, v0, 2, 2
                s_mov_b32 s4, 0x02020202
                v_mul_lo_u32 v{vU+1}, v{vU+1}, s4
                v_add_u32 v{vU+1}, s32, v{vU+1}
                v_or_b32 v{vU+2}, v{vM[0]}, v{vM[2]}
                v_or_b32 v{vU+3}, v{vM[1]}, v{vM[3]}
                v_mov_b32 v{vU+4}, 0x0c0c0c0c
                v_bfi_b32 v{vBq+2}, v{vU+2}, v{vU+1}, v{vU+4}
                v_bfi_b32 v{vBq+3}, v{vU+3}, v{vU+1}, v{vU+4}
                s_lshr_b32 s5, s{sJ}, 1
                s_lshl_b32 s5, s5, 9
                s_add_u32 s5, s5, {OLX}
                v_lshl_add_u32 v{vX+3}, v{vL}, 3, s5
                """)
            if hcheck is not None and t == min(15, hcheck):
                hcheck = None
                if not o["hlate"]: hfin()
        assert hcheck is None
        for i in range(4): a(f"ds_write_b32 v{vK}, v{vAcc+i} offset:{OW+32*i}")
        a(f"""
        s_waitcnt lgkmcnt(0)
        s_barrier
        """)
        self.stamp("pvdone")
        def hread():
            a(f"ds_read2_b32 {r2(vX)}, v{vRS} offset0:0 offset1:1"); a(f"ds_read_b32 v{vX+2}, v{vRS} offset:8")
        def hmask():
            if o["skip"]:
                a(f"v_bfrev_b32 v{vU+26}, -2"); a("s_mov_b32 s4, 0xffff"); a("s_waitcnt lgkmcnt(0)")
                for k in range(6):
                    if k & 1: a(f"v_cmp_lt_u32 s[{64+2*k}:{65+2*k}], s4, v{vX+(k>>1)}")
                    else: a(f"v_cmp_ne_u16 s[{64+2*k}:{65+2*k}], 0, v{vX+(k>>1)}")
                for k in range(6):
                    a(f"v_cndmask_b32 v{vU+20+k}, v{vU+26}, v{vPD if k < 2 else vPD2}, s[{64+2*k}:{65+2*k}]")
                self.hready = True
        if o["hlate"]:
            hfin(); assert o["obar"]
        else:
            hread()
        Lo1 = self.lab("opub"); Lm = self.lab("mlpub")
        a(f"""
        s_cmp_eq_u32 s{sJ}, 2
        s_cbranch_scc1 {Lm}
        s_cmp_lg_u32 s{sJ}, 0
        s_cbranch_scc1 {Lo1}
        """)
        for jj in range(4): a(f"ds_read_b128 {r4(vT+4*jj)}, v{vV} offset:{OW+1024*jj}")
        a("s_waitcnt lgkmcnt(2)")
        pkadd(vT, vT, vT + 4)
        a("s_waitcnt lgkmcnt(0)")
        pkadd(vT + 8, vT + 8, vT + 12); pkadd(vT, vT, vT + 8)
        a(f"""
        s_branch {Lo1}t
        {Lm}:
        v_bfe_u32 v{vU+1}, v0, 3, 1
        v_lshlrev_b32 v{vU+1}, 6, v{vU+1}
        """)
        for i in range(4): a(f"ds_read_b128 {r4(vU+4+4*i)}, v{vU+1} offset:{LS+16*i}")
        a(f"v_lshrrev_b32 v{vU+1}, 2, v{vU+1}")
        a(f"v_add_u32 v{vX+4}, s6, v{vU+1}")
        a(f"v_add_u32 v{vX+4}, 1024, v{vX+4}")
        a("s_waitcnt lgkmcnt(0)")
        pkadd(vU + 4, vU + 4, vU + 8); pkadd(vU + 12, vU + 12, vU + 16); pkadd(vU + 4, vU + 4, vU + 12)
        a(f"""
        v_pk_add_f32 {r2(vU+4)}, {r2(vU+4)}, {r2(vU+6)}
        v_add_f32 v{vT+1}, v{vU+4}, v{vU+5}
        v_mov_b32 v{vT}, v{vMx}
        v_mov_b32 v{vT+2}, v{vMx}
        v_mov_b32 v{vT+3}, v{vT+1}
        s_mov_b64 exec, 0x101
        {Lo1}t:
        """)
        tagins(vT, True)
        a(f"""
        s_branch {Lo1}s
        {Lo1}:
        s_mov_b64 exec, 0
        {Lo1}s:
        """)
        dual("OP", f"buffer_store_dwordx4 {r4(vT)}, v{vX+4}, s[{SW}:{SW+3}], 0 offen", True)
        if not o["hlate"]: hmask()
        if o["obar"]: a("s_waitcnt lgkmcnt(0)"); a("s_barrier")
        (None if o["st4"] else self.stamp("opub"))
        def omk(st): return [f"buffer_load_dwordx4 {r4(st[0])}, v{vX+6}, s[{SW}:{SW+3}], 0 offen sc1",
                             f"buffer_load_dwordx4 {r4(st[0]+4)}, v{vX+5}, s[{SW}:{SW+3}], 0 offen offset:1024 sc1"]
        osets = [[R1 + 8 * d] for d in range(o["odepth"])]
        polled = False
        if o["oearly"]:
            polled = True
            a(f"s_bitcmp1_b32 s{sJ}, 0"); a("s_cselect_b64 exec, -1, 0")
            for i, ld in enumerate(omk(osets[0])): self.issue(f"OPL{i}", ld)
            a("s_mov_b64 exec, -1")
        assert o["Wt"] <= 6 and o["dlate"]
        if o["hlate"]: hread()
        fill("V15", 6)
        if o["hlate"]: hmask()
        fill("V15", 12)
        def flat_A(k, xsrc):
            p = k & 1; A = vU + 2 * p
            a(f"v_perm_b32 v{A}, v{xsrc+(k>>1)}, v{xsrc+(k>>1)}, v{vSel[2*p]}")
            a(f"v_perm_b32 v{A+1}, v{xsrc+(k>>1)}, v{xsrc+(k>>1)}, v{vSel[2*p+1]}")
            return A
        def flat_mfma(A, data, acc, first):
            a(f"v_mfma_f32_4x4x4_16b_bf16 {r4(acc)}, {r2(A)}, {r2(data)}, {'0' if first else r4(acc)}")
            a(f"v_mfma_f32_4x4x4_16b_bf16 {r4(acc+4)}, {r2(A)}, {r2(data+2)}, {'0' if first else r4(acc+4)}")
        vDA = vU + 8
        if o["dlate"]:
            a("s_waitcnt lgkmcnt(0)")
            assert self.ip == len(big) and polled
            for k in range(6):
                p = k & 1
                a(f"v_perm_b32 v{vDA+2*k}, v{vX+(k>>1)}, v{vX+(k>>1)}, v{vSel[2*p]}")
                a(f"v_perm_b32 v{vDA+2*k+1}, v{vX+(k>>1)}, v{vX+(k>>1)}, v{vSel[2*p+1]}")
        else:
            a("s_waitcnt lgkmcnt(0)")
            for k in range(6):
                A = flat_A(k, vX)
                self.wait(f"D{k}")
                flat_mfma(A, dst[f"D{k}"], vAD, k == 0)
                fill(f"D{k}", o["post"])
                if self.ip == len(big) and k >= o["opa"] and not polled:
                    polled = True
                    a(f"s_bitcmp1_b32 s{sJ}, 0"); a("s_cselect_b64 exec, -1, 0")
                    for i, ld in enumerate(omk(osets[0])): self.issue(f"OPL{i}", ld)
                    a("s_mov_b64 exec, -1")
            assert polled
            (None if o["st3"] else self.stamp("Ddone"))
            for i in range(0, 8): a(f"v_mul_f32 v{vAD+i}, v{vOMG}, v{vAD+i}")
        Lo2 = self.lab("ocons")
        a(f"""
        s_bitcmp0_b32 s{sJ}, 0
        s_cbranch_scc1 {Lo2}
        """)
        P = vS
        def ofin(st):
            a(f"v_and_b32 v{vBq}, v{st[0]+4}, v{vTM}")
            a(f"v_mov_b32 v{vBq+1}, v{st[0]+5}")
            a(f"v_pk_mul_f32 {r2(P)}, {r2(st[0])}, {r2(vG-1)} op_sel:[0,1] op_sel_hi:[1,1]")
            a(f"v_pk_mul_f32 {r2(P+2)}, {r2(st[0]+2)}, {r2(vG-1)} op_sel:[0,1] op_sel_hi:[1,1]")
        if o["oearly"]:
            assert o["odepth"] == 1
            Lx = self.lab("oex"); Lre = self.lab("oere"); OD = o["od"]
            self.wait("OPL1")
            tagchk(osets[0], vU + 4, 4, True)
            a(f"s_cbranch_vccz {Lx}d")
            if o["osel"] and OD > 1: a("s_mov_b64 exec, vcc")
            for _ in range(OD - 1):
                for ld in omk(osets[0]): a(ld)
            a(f"s_mov_b32 s7, {o['spin']}")
            a(f"{Lre}:")
            if o["osel"]: a("s_mov_b64 exec, vcc")
            for ld in omk(osets[0]): a(ld)
            if o["osel"]: a("s_mov_b64 exec, -1")
            a(f"s_waitcnt vmcnt({2*(OD-1)})")
            tagchk(osets[0], vU + 4, 4, True)
            a(f"s_cbranch_vccz {Lx}")
            a("s_sub_u32 s7, s7, 1"); a("s_cmp_lg_u32 s7, 0"); a(f"s_cbranch_scc1 {Lre}")
            a(f"s_branch {Lx}")
            a(f"{Lx}d:")
            if OD > 1:
                a("s_mov_b64 exec, 0")
                for _ in range(OD - 1):
                    for ld in omk(osets[0]): a(ld)
                a("s_mov_b64 exec, -1")
            a(f"{Lx}:")
            ofin(osets[0])
        else:
            assert False
            pipe_poll("o", omk, osets, vU + 4, 1, ofin, o["osleep"], extra=4)
        (None if o["st3"] else self.stamp("opollok"))
        a(f"v_max_f32_dpp v{vU+4}, v{vBq}, v{vBq} row_ror:1 {DPP}")
        for r in (2, 4, 8): a(f"v_max_f32_dpp v{vU+4}, v{vU+4}, v{vU+4} row_ror:{r} {DPP}")
        a(f"""
        v_sub_f32 v{vBq}, v{vBq}, v{vU+4}
        v_mul_f32 v{vBq}, s{sC}, v{vBq}
        v_exp_f32 v{vBq}, v{vBq}
        v_mul_f32 v{P+4}, v{vBq}, v{vBq+1}
        v_pk_mul_f32 {r2(P)}, {r2(P)}, {r2(vBq)} op_sel_hi:[1,0]
        v_pk_mul_f32 {r2(P+2)}, {r2(P+2)}, {r2(vBq)} op_sel_hi:[1,0]
        """)
        for r in (1, 2, 4, 8):
            for i in (4, 0, 1, 2, 3): a(f"v_add_f32_dpp v{P+i}, v{P+i}, v{P+i} row_ror:{r} {DPP}")
            if r == 8: self.l.insert(len(self.l) - 2, f"    v_rcp_f32 v{vBq}, v{P+4}")
        a(f"""
        v_pk_mul_f32 {r2(P)}, {r2(P)}, {r2(vBq)} op_sel_hi:[1,0]
        v_pk_mul_f32 {r2(P+2)}, {r2(P+2)}, {r2(vBq)} op_sel_hi:[1,0]
        v_cvt_pk_bf16_f32 v{P}, v{P}, v{P+1}
        v_cvt_pk_bf16_f32 v{P+1}, v{P+2}, v{P+3}
        v_perm_b32 v{P+2}, v{P+1}, v{P}, v{vBq+2}
        v_perm_b32 v{P+3}, v{P+1}, v{P}, v{vBq+3}
        ds_write_b64 v{vX+3}, {r2(P+2)}
        s_branch {Lo2}x
        {Lo2}:
        """)
        if o["od"] > 1:
            a("s_mov_b64 exec, 0")
            for i in range(o["od"] - 1):
                for j, ld in enumerate(omk(osets[0])): self.issue(f"ODM{i}{j}", ld)
            a("s_mov_b64 exec, -1")
        a(f"""
        {Lo2}x:
        v_cmp_gt_u32 vcc, s14, v0
        s_waitcnt lgkmcnt(0)
        s_barrier
        """)
        for k in range(3): a(f"ds_read2_b64 {r4(vT+4*k)}, v{vX+7} offset0:{8*k} offset1:{8*k+4}")
        (None if o["st3"] else self.stamp("B7"))
        if o["dlate"] and o["ofirst"]:
            for k in range(6):
                if k % 2 == 0: a(f"s_waitcnt lgkmcnt({0 if o['stamps'] else 2 - k // 2})")
                self.wait(f"O{k}")
                flat_mfma(vT + 2 * k, dst[f"O{k}"], vAO, k == 0)
            for k in range(6):
                self.wait(f"D{k}")
                flat_mfma(vDA + 2 * k, dst[f"D{k}"], vAD, k == 0)
            (None if o["st3"] else self.stamp("Ddone"))
            for i in range(0, 8, 2): a(f"v_pk_fma_f32 {r2(vAD+i)}, {r2(vAD+i)}, {r2(vOMG)}, {r2(vAO+i)} op_sel_hi:[1,0,1]")
        elif o["dlate"]:
            for k in range(6):
                self.wait(f"D{k}")
                flat_mfma(vDA + 2 * k, dst[f"D{k}"], vAD, k == 0)
            (None if o["st3"] else self.stamp("Ddone"))
            for k in range(6):
                if k % 2 == 0: a(f"s_waitcnt lgkmcnt({0 if o['stamps'] else 2 - k // 2})")
                self.wait(f"O{k}")
                flat_mfma(vT + 2 * k, dst[f"O{k}"], vAO, k == 0)
                if k == 3:
                    for i in range(0, 8, 2): a(f"v_pk_mul_f32 {r2(vAD+i)}, {r2(vAD+i)}, {r2(vOMG)} op_sel_hi:[1,0]")
            for i in range(0, 8, 2): a(f"v_pk_add_f32 {r2(vAD+i)}, {r2(vAD+i)}, {r2(vAO+i)}")
        else:
            for k in range(6):
                if k % 2 == 0: a(f"s_waitcnt lgkmcnt({0 if o['stamps'] else 2 - k // 2})")
                self.wait(f"O{k}")
                flat_mfma(vT + 2 * k, dst[f"O{k}"], vAD, False)
        Lf = self.lab("fpub")
        a(f"""
        ds_write_b128 v{vCH}, {r4(vAD)} offset:{LF}
        ds_write_b128 v{vCH}, {r4(vAD+4)} offset:{LF+16}
        s_waitcnt lgkmcnt(0)
        s_barrier
        s_and_saveexec_b64 s[4:5], vcc
        s_cbranch_execz {Lf}
        """)
        tg = [vT, vT + 4, vT + 8, vT + 12, vT + 16, vU + 4]
        for p in range(6): a(f"ds_read_b128 {r4(tg[p])}, v{vV} offset:{LF+NCH*32*p}")
        a("s_waitcnt lgkmcnt(4)"); pkadd(tg[0], tg[0], tg[1])
        a("s_waitcnt lgkmcnt(2)"); pkadd(tg[2], tg[2], tg[3])
        a("s_waitcnt lgkmcnt(0)"); pkadd(tg[4], tg[4], tg[5]); pkadd(tg[0], tg[0], tg[2]); pkadd(tg[0], tg[0], tg[4])
        tagins(vT, True)
        a(f"""
        buffer_store_dwordx4 {r4(vT)}, v{vFA}, s[{SW}:{SW+3}], 0 offen sc1
        {Lf}:
        s_mov_b64 exec, s[4:5]
        """)
        self.stamp("fpub")
        NL = CG // 2
        if o["rorig"]: a("s_mov_b32 s2, s101")
        a(f"""
        s_cmpk_ge_u32 s2, {R}
        s_cbranch_scc1 L_fin
        s_mul_i32 s4, s2, {128*CG*16}
        s_add_u32 s4, s4, {FB}
        """)
        if CG == 4:
            a(f"""
            v_and_b32 v{vQa}, 15, v0
            v_lshlrev_b32 v{vQa}, 6, v{vQa}
            v_bfe_u32 v{vQb}, v0, 4, 2
            v_lshl_add_u32 v{vQa}, v{vQb}, 4, v{vQa}
            v_lshl_add_u32 v{vQa}, v{vJ}, 10, v{vQa}
            v_add_u32 v{vQa}, s4, v{vQa}
            s_movk_i32 s33, 0x1000
            """)
            offs = [("0", 0), ("s33", 0)]
        elif CG == 2:
            a(f"""
            v_and_b32 v{vQa}, 15, v0
            v_lshlrev_b32 v{vQa}, 5, v{vQa}
            v_bfe_u32 v{vQb}, v0, 4, 1
            v_lshl_add_u32 v{vQa}, v{vQb}, 4, v{vQa}
            v_lshrrev_b32 v{vQb}, 5, v0
            v_lshl_add_u32 v{vQa}, v{vQb}, 9, v{vQa}
            v_add_u32 v{vQa}, s4, v{vQa}
            """)
            offs = [("0", 0)]
        else:
            a(f"""
            v_and_b32 v{vQa}, 15, v0
            v_lshlrev_b32 v{vQa}, 7, v{vQa}
            v_bfe_u32 v{vQb}, v0, 4, 2
            v_lshl_add_u32 v{vQa}, v{vQb}, 4, v{vQa}
            v_lshl_add_u32 v{vQa}, v{vJ}, 11, v{vQa}
            v_add_u32 v{vQa}, s4, v{vQa}
            s_movk_i32 s33, 0x2000
            """)
            offs = [("0", 0), ("s33", 0), ("0", 64), ("s33", 64)]
        def fmk(st): return [f"buffer_load_dwordx4 {r4(st[k])}, v{vQa}, s[{SW}:{SW+3}], {offs[k][0]} offen offset:{offs[k][1]} sc1" for k in range(NL)]
        fsets = [[R2 + 16 * d + 4 * k for k in range(NL)] for d in range(o["fdepth"])]
        F = vS
        NF = 8 if CG == 8 else 4
        def ffin(st):
            if CG == 4: pkadd(F, st[0], st[1])
            elif CG == 8: pkadd(F, st[0], st[1]); pkadd(F + 4, st[2], st[3])
            else:
                for i in range(4): a(f"v_add_f32_dpp v{F+i}, v{st[0]+i}, v{st[0]+i} row_ror:1 {DPP}")
        if o["fx"]:
            lds_ = fmk(fsets[0])
            for ld in lds_: a(ld)
            a(f"""
            v_lshrrev_b32 v{vU}, 4, v0
            v_lshlrev_b32 v{vU}, 4, v{vU}
            s_mov_b32 s{SX}, s56
            s_mov_b32 s{SX+1}, s57
            s_mul_i32 s4, s2, {CG*8}
            v_mov_b32 v{vU+2}, s{sT2}
            v_mov_b32 v{vU+3}, 0
            """)
            if CG == 8:
                a(f"""
                v_and_b32 v{vU+1}, 3, v0
                v_lshrrev_b32 v{vU+10}, 4, v0
                v_lshl_add_u32 v{vU+1}, v{vU+10}, 2, v{vU+1}
                v_lshl_add_u32 v{vU+1}, v{vU+1}, 3, s4
                """)
            else:
                a(f"v_lshl_add_u32 v{vU+1}, v0, 3, s4")
            pass
            sel_poll("f", [([lds_[k]], fsets[0][k], 4) for k in range(NL)], vU + 4, o["fx"])
            ffin(fsets[0])
        elif True:
            assert False, "only fx path maintained"
        elif o["fsel"]:
            assert CG == 4
            for k in range(2): a(fmk(fsets[0])[k])
            D = o["fdepth"]
            for k in range(2):
                mk1 = lambda st, k=k: [f"buffer_load_dwordx4 {r4(st[0])}, v{vQa}, s[{SW}:{SW+3}], {offs[k][0]} offen offset:{offs[k][1]} sc1"]
                Lq = self.lab("fq")
                a(f"s_waitcnt vmcnt({1 - k})" if k == 0 else "s_nop 0")
                sets1 = [[R2 + 32 + 16 * k + 4 * d] for d in range(D)]
                if k == 1: a("s_waitcnt vmcnt(%d)" % 0) if False else None
                tagchk([fsets[0][k]], vU + 4)
                a(f"s_cbranch_vccz {Lq}")
                def fin1(st, k=k):
                    a(f"v_pk_mul_f32 {r2(fsets[0][k])}, {r2(st[0])}, 1.0 op_sel_hi:[1,0]")
                    a(f"v_pk_mul_f32 {r2(fsets[0][k]+2)}, {r2(st[0]+2)}, 1.0 op_sel_hi:[1,0]")
                pipe_poll(f"f{k}", mk1, sets1, vU + 4, 0, fin1, o["fsleep"])
                if k == 0:
                    a(f"s_branch {Lq}b"); a(f"{Lq}:"); a("s_waitcnt vmcnt(0)"); a(f"{Lq}b:")
                else: a(f"{Lq}:")
            ffin(fsets[0])
        else:
            pipe_poll("f", fmk, fsets, vU + 4, 0, ffin, o["fsleep"])
        (None if o["st3"] else self.stamp("fpollok"))
        for r in (1, 2, 4, 8):
            if CG == 2 and r == 1: continue
            for i in range(NF): a(f"v_add_f32_dpp v{F+i}, v{F+i}, v{F+i} row_ror:{r} {DPP}")
        a(f"ds_write_b128 v{vU}, {r4(F)} offset:{RD}")
        if CG == 8: a(f"ds_write_b128 v{vU}, {r4(F+4)} offset:{RD+256}")
        a(f"""
        s_waitcnt lgkmcnt(0)
        s_barrier
        s_cmp_lg_u32 s{sJ}, 0
        s_cbranch_scc1 L_fin
        s_mov_b64 exec, {'0xffffffff' if CG == 8 else '0xffff'}
        ds_read_b128 {r4(vT)}, v{vV} offset:{RD}
        s_waitcnt lgkmcnt(0)
        """)
        for r in (1, 2, 4, 8):
            if r >= min(CG, 4):
                for i in range(4): a(f"v_add_f32_dpp v{vT+i}, v{vT+i}, v{vT+i} row_ror:{r} {DPP}")
        a(f"""
        v_cvt_pk_bf16_f32 v{vT}, v{vT}, v{vT+1}
        v_cvt_pk_bf16_f32 v{vT+1}, v{vT+2}, v{vT+3}
        s_mov_b64 exec, {0xf000f if CG == 8 else (1 << CG) - 1:#x}
        buffer_store_dwordx2 {r2(vT)}, v{vU+1}, s[{SX}:{SX+3}], 0 offen {o['outf']}
        s_cmp_lg_u32 s2, 0
        s_cbranch_scc1 L_fin
        s_mov_b64 exec, 1
        buffer_store_dword v{vU+2}, v{vU+3}, s[{SW}:{SW+3}], 0 offen {o['epf']}
        L_fin:
        """)
        if o["skewm"]:
            a(f"""
            s_cmp_lg_u32 s2, 0
            s_cbranch_scc1 L_end
            s_cmp_lg_u32 s{sJ}, 0
            s_cbranch_scc1 L_end
            s_add_u32 s4, s60, 0xF0000
            s_addc_u32 s5, s61, 0
            s_load_dwordx8 s[64:71], s[4:5], 0 glc
            s_waitcnt lgkmcnt(0)
            """)
            for i in range(8): a(f"s_sub_u32 s{64+i}, s{64+i}, s16"); a(f"s_add_u32 s{64+i}, s{64+i}, 500")
            m = o["skewm"]
            if m == "late":
                a("s_add_u32 s6, s68, s69"); a("s_add_u32 s6, s6, s70"); a("s_add_u32 s6, s6, s71")
                a("s_sub_u32 s6, s6, s65"); a("s_sub_u32 s6, s6, s66"); a("s_sub_u32 s6, s6, s67"); a("s_sub_u32 s6, s6, s66")
                a("s_mul_i32 s6, s6, 5"); a("s_add_u32 s6, s6, 3000")
            else:
                a("s_min_u32 s72, s64, s65")
                for i in range(2, 8): a(f"s_min_u32 s72, s72, s{64+i}")
                if m == "max":
                    a("s_max_u32 s73, s64, s65")
                    for i in range(2, 8): a(f"s_max_u32 s73, s73, s{64+i}")
                else:
                    a(f"s_mov_b32 s73, s{64+int(m)}")
                a("s_sub_u32 s6, s73, s72"); a("s_mul_i32 s6, s6, 20"); a("s_add_u32 s6, s6, 3000")
            a(f"""
            s_min_u32 s6, s6, 20000
            L_hold:
            s_memrealtime s[4:5]
            s_waitcnt lgkmcnt(0)
            s_sub_u32 s4, s4, s16
            s_cmp_lt_u32 s4, s6
            s_cbranch_scc1 L_hold
            """)
        elif o["amp"] >= 0:
            self.stamp("end"); k = o["amp"]
            if o["ampx"] >= 0:
                a("s_bfe_u32 s4, s101, 0x10002"); a(f"s_cmp_lg_u32 s4, {o['ampx']}"); a("s_cbranch_scc1 L_end")
            a(f"""
            s_waitcnt lgkmcnt(0)
            s_sub_u32 s6, s{self.sreg(k)}, s16
            s_min_u32 s6, s6, 3000
            s_mul_i32 s6, s6, 10
            s_add_u32 s6, s6, 3000
            L_hold:
            s_memrealtime s[4:5]
            s_waitcnt lgkmcnt(0)
            s_sub_u32 s4, s4, s16
            s_cmp_lt_u32 s4, s6
            s_cbranch_scc1 L_hold
            """)
        elif o["stamps"]:
            self.stamp("end")
            a(f"""
            s_waitcnt lgkmcnt(0)
            s_lshl_b32 s4, s101, 2
            s_add_u32 s4, s4, s{sJ}
            s_lshl_b32 s4, s4, 7
            s_add_u32 s4, s4, {STAMP_OFF:#x}
            s_add_u32 s6, s60, s4
            s_addc_u32 s7, s61, 0
            s_sub_u32 s6, s6, {o['wsoff']:#x}
            s_subb_u32 s7, s7, 0
            s_mov_b64 exec, 1
            v_mov_b32 v4, 0
            """)
            for j in range(self.nst):
                a(f"""
                v_mov_b32 v2, s{self.sreg(j)}
                v_mov_b32 v3, s{self.sreg(j)+1}
                global_store_dwordx2 v4, v[2:3], s[6:7] offset:{8*j}
                s_nop 1
                """)
        if o["hold"]:
            a(f"""
            s_waitcnt lgkmcnt(0)
            L_hold:
            s_memrealtime s[4:5]
            s_waitcnt lgkmcnt(0)
            s_sub_u32 s4, s4, s16
            s_cmp_lt_u32 s4, {o["hold"]}
            s_cbranch_scc1 L_hold
            """)
        a("L_end:")
        a("s_endpgm")
        cl = []
        for x in self.l:
            if cl and cl[-1].strip() == "s_mov_b64 exec, -1" and x.strip().startswith("s_mov_b64 exec,"): cl.pop()
            if len(cl) > 1 and cl[-2].strip() == "s_mov_b64 exec, -1" and cl[-1].strip().startswith("s_waitcnt vmcnt") and x.strip().startswith("s_mov_b64 exec,"):
                del cl[-2]
            cl.append(x)
        c2 = []
        for x in cl:
            c2.append(x)
        body = "\n".join(fix(c2)) + "\n"
        head = open("cdna_kernels/" + KN + ".s.ref").read().split("; Override launch")[0]
        if self.names: head += "; stamps: " + " ".join(self.names) + "\n"
        DOC = """; One persistent launch, 256 workgroups (one per CU) x 4 waves; every weight / KV byte is streamed once (nt, ~10 loads per wave in flight).
;  diagonal-expanded vector operand, QK uses MFMA on a quad-contiguous K layout; softmax subtracts the CU-wide true max, splits are
;  merged with exp(m_s - M) / L weights (flash-decode); out = g*a + (1-g)*b is reduced over 128 partials per column by 36 workgroups.
;  Default publication is write-through (sc1); a plain store is used only after the q hand-off has shown (XCC id bits in the q records)
"""
        return head + DOC + f"""; @launch grid=(256,1,1) block=(256,1,1) lds={o['lds']}
.amdgcn_target "amdgcn-amd-amdhsa--gfx950"
.text
.globl {KN}_kernel
.p2align 8
.type {KN}_kernel,@function
{KN}_kernel:
""" + body + f""".section .rodata,"a"
.p2align 6
.amdhsa_kernel {KN}_kernel
  .amdhsa_next_free_vgpr 256
  .amdhsa_next_free_sgpr 102
  .amdhsa_accum_offset 256
  .amdhsa_group_segment_fixed_size 0
  .amdhsa_kernarg_size 104
  .amdhsa_user_sgpr_count 2
  .amdhsa_user_sgpr_kernarg_segment_ptr 1
  .amdhsa_system_sgpr_workgroup_id_x 1
.end_amdhsa_kernel
"""

if __name__ == "__main__":
    out = sys.argv[1]; opt = {}
    for kv in sys.argv[2:]:
        k, v = kv.split("="); opt[k] = eval(v)
    open(out, "w").write(Gen(**opt).build())
```

```python
import sys, struct
from hazard import fix
KN = "gated_mix__sliding_block_cached__glu_gated_reglu__decode"
STAMP_OFF = 0x30000000
def f2u(x): return struct.unpack("<I", struct.pack("<f", x))[0]

class Gen:
    def __init__(self, **opt):
        self.o = dict(W=10, stamps=False, wsoff=0, qp=1, hp=5, CG=4, round_scores=True, prefetch=0, jitter=0,
                      hold=0, amp=-1, lds=90112, nt="nt", spin=20000, pre_g=2, pre_q=2, pre_s=3, Wt=4, fdepth=1, odepth=1,
                      cnt=0, post=12, osleep=0, fsleep=0, pre_qp=0, first='sc1', pt=0, ptf='', st3=0, early=3, skewm='', adapt=11, flagrd=5, nearly=7, lpost=8, st4=0, atime=0, obar=1, opa=0, fsel=0, tlb=0, outf='', rot=1, mix=1, hlate=1, fx=1, oearly=1, pts=1, epf='', od=1, rorig=1, xs=0, cpf=0, osel=1, dlate=1, ampx=-1, tb=10, p3f='nt', skip=1, ofirst=0, unev=1, pad=0)
        for k in opt: assert k in self.o, k
        self.o.update(opt)
        self.l = []; self.vm = []; self.nl = 0; self.nst = 0; self.names = []
    def a(self, s):
        for x in s.strip().split("\n"):
            x = x.strip()
            if x: self.l.append(x if x.endswith(":") else "    " + x)
    def lab(self, p):
        self.nl += 1
        return f"L_{p}{self.nl}"
    def issue(self, label, s):
        self.a(s); self.vm.append(label)
    def wait(self, label):
        n = len(self.vm) - 1 - self.vm.index(label)
        assert n <= 63
        self.a(f"s_waitcnt vmcnt({n})")
    def sreg(self, k): return 16 + 2 * k if k < 8 else 36 + 2 * (k - 8)
    def stamp(self, name=""):
        if self.o["stamps"]:
            assert self.nst < 16
            r = self.sreg(self.nst)
            self.a(f"s_memrealtime s[{r}:{r+1}]")
            self.names.append(name); self.nst += 1

    def build(self):
        o = self.o; a = self.a; nt = o["nt"]; W = o["W"]
        RA, OB, FB, MLB = 0x1000, 0x50000, 0xA0000, 0xF8000
        CG = o["CG"]; R = 144 // CG
        XL, P1, QL, MX, LS, GS, HP, HL, OL, OW, LF, RD, DUM = 0, 2560, 10752, 14848, 14976, 15104, 15232, 15616, 15744, 15872, 19968, 29184, 29696
        OLX = 30208; XF = 31744
        UN = o['unev']; NCH = 40 if UN else 36; HB = 640 if UN else 576; MAG = 1639 if UN else 1821
        vL = 1; vM = [2, 3, 4, 5]; vSel = [6, 7, 8, 9]
        vQa, vQb, vGU, vK, vV, vPD, vPD2, vPO, vTM = 10, 11, 12, 13, 14, 15, 16, 18, 17
        vMx, vMc, vFA, vRS = 19, 20, 21, 22
        vX = 24
        vS = 32; vBq = 48; vAq = 52; vAg = 56; vAr = 60; vAD = 56; vAO = 64; vT = 72; vPoll = 92
        vCH, vG, vOMG, vJ = 96, 97, 98, 99
        R1 = 100; R2 = 164; vU = 228
        vAcc = vAq
        dst = {}
        for i in range(5): dst[f"Q{i}"] = R1 + 4 * i
        for i in range(9): dst[f"G{i}"] = R1 + 20 + 4 * i
        for i in range(2): dst[f"R{i}"] = R1 + 56 + 4 * i
        for i in range(16): dst[f"K{i}"] = R2 + 4 * i; dst[f"V{i}"] = R1 + 4 * i
        for i in range(6): dst[f"D{i}"] = R2 + 4 * i; dst[f"O{i}"] = R2 + 24 + 4 * i
        big = [f"Q{i}" for i in range(5)] + [f"G{i}" for i in range(9)] + ["R0", "R1"] + [f"K{i}" for i in range(16)] + \
              [f"V{i}" for i in range(16)] + [f"O{i}" for i in range(6)] + [f"D{i}" for i in range(6)]
        sTAG = 62; sJ = 3; sKQ, sG, sS, sC6 = 8, 9, 10, 11; s4608 = 12
        sKV = 13; sGU = 14; sC = 15
        SQ, SGU, SK, SR, SD, SO, SX, SV, SW = 64, 68, 72, 76, 80, 84, 88, 92, 96
        sPL = 34; sXE = 100; XB = 0xF9000
        r4 = lambda v: f"v[{v}:{v+3}]"
        r2 = lambda v: f"v[{v}:{v+1}]"
        DPP = "row_mask:0xf bank_mask:0xf"
        self.ip = 0; self.gdone = self.kdone = self.hready = False
        def issue_next():
            lb = big[self.ip]; self.ip += 1
            d = r4(dst[lb]); k = int(lb[1:]); c = lb[0]
            if c == "V": assert self.gdone
            if c in "DO": assert self.kdone
            if c == "Q":
                if k == 0: self.issue(lb, f"buffer_load_dwordx4 {d}, v{vQa}, s[{SQ}:{SQ+3}], 0 offen {nt}")
                elif k < 4: self.issue(lb, f"buffer_load_dwordx4 {d}, v{vQa}, s[{SQ}:{SQ+3}], s{32+k} offen {nt}")
                else: self.issue(lb, f"buffer_load_dwordx4 {d}, v{vQb}, s[{SQ}:{SQ+3}], 0 offen {nt}")
            elif c == "G":
                if k == 0: a(f"s_mov_b32 s{sGU}, 0")
                elif k < 8: a(f"s_addk_i32 s{sGU}, 9216")
                if k < 8: self.issue(lb, f"buffer_load_dwordx4 {d}, v{vGU}, s[{SGU}:{SGU+3}], s{sGU} offen {nt}")
                else: self.issue(lb, f"buffer_load_dwordx4 {d}, v{vPD}, s[{SGU}:{SGU+3}], 0 offen {nt}")
            elif c == "R":
                self.issue(lb, f"buffer_load_dwordx4 {d}, v{vPD2 if k == 0 else vPO}, s[{SR}:{SR+3}], 0 offen {nt}")
            elif c in "KV":
                if k == 0: a(f"s_lshl_b32 s{sKV}, s{sG}, 12" if o["rot"] else f"s_mov_b32 s{sKV}, 0")
                else:
                    a(f"s_addk_i32 s{sKV}, 4096")
                    if o["rot"]: a(f"s_bitset0_b32 s{sKV}, 16")
                sr, vo = (SK, vK) if c == "K" else (SV, vV)
                self.issue(lb, f"buffer_load_dwordx4 {d}, v{vo}, s[{sr}:{sr+3}], s{sKV} offen {nt}")
            else:
                sr = SD if c == "D" else SO
                vo = vPO if c == "O" else (vPD if k < 2 else vPD2)
                if c == "D" and o["skip"]:
                    assert self.hready; vo = vU + 20 + k
                so, im = ("0", k * 1152) if k < 4 else (f"s{s4608}", (k - 4) * 1152)
                if c == "O" and k >= 4: vo, so = vGU, "0"
                self.issue(lb, f"buffer_load_dwordx4 {d}, v{vo}, s[{sr}:{sr+3}], {so} offen offset:{im} {o['p3f']}")
        def fill(label, w=None):
            w = W if w is None else w
            idx = big.index(label)
            while self.ip < len(big) and self.ip <= idx + w: issue_next()
        def more(n):
            for _ in range(n):
                if self.ip < len(big): issue_next()
        sT2 = 63; TB = o["tb"]; TM2 = (1 << TB) - 1
        def tagins(v, wide=False):
            for i in range(4): a(f"v_and_or_b32 v{v+i}, v{v+i}, v{vTM}, s{sT2 if wide else sTAG}")
        def tagchk(vs, acc, extra=0, wide=False):
            first = True; st = sT2 if wide else sTAG
            for v in vs:
                for i in range(4 + extra):
                    if first: a(f"v_xor_b32 v{acc}, s{st}, v{v+i}"); first = False
                    else: a(f"v_bitop3_b32 v{acc}, v{v+i}, s{st}, v{acc} bitop3:0xbe")
            a(f"v_and_b32 v{acc}, {TM2 if wide else 0xff:#x}, v{acc}")
            a(f"v_cmp_ne_u32 vcc, 0, v{acc}")
        def retry_loop(name, loads, vs, acc):
            Lok = self.lab(name + "ok"); Lre = self.lab(name + "re")
            a(f"s_mov_b32 s7, {o['spin']}")
            a(f"{Lre}:")
            tagchk(vs, acc)
            a(f"s_cbranch_vccz {Lok}")
            for ld in loads: a(ld)
            a("s_waitcnt vmcnt(0)")
            a("s_sub_u32 s7, s7, 1")
            a("s_cmp_lg_u32 s7, 0")
            a(f"s_cbranch_scc1 {Lre}")
            a(f"{Lok}:")
            if o["stamps"] and o["cnt"] == 1:
                r = self.sreg(self.nst); self.names.append(name + "retry"); self.nst += 1
                a(f"s_sub_u32 s7, {o['spin']}, s7"); a(f"s_mul_i32 s7, s7, 100")
                a(f"s_add_u32 s{r}, s16, s7"); a(f"s_addc_u32 s{r+1}, s17, 0")
        def pipe_poll(name, mk, sets, acc, first_issued, fin, slp=0, extra=0):
            n = len(mk(sets[0])); D = len(sets)
            Lx = self.lab(name + "x"); Lre = self.lab(name + "re")
            Lmv = [self.lab(name + "mv") for _ in range(D)]
            for d in range(first_issued, D):
                for ld in mk(sets[d]): a(ld)
            a(f"s_mov_b32 s7, {o['spin']}")
            a(f"{Lre}:")
            for d in range(D):
                a(f"s_waitcnt vmcnt({n*(D-1)})")
                tagchk(sets[d], acc, extra)
                a(f"s_cbranch_vccz {Lmv[d]}")
                if slp: a(f"s_sleep {slp}")
                for ld in mk(sets[d]): a(ld)
            a("s_sub_u32 s7, s7, 1")
            a("s_cmp_lg_u32 s7, 0")
            a(f"s_cbranch_scc1 {Lre}")
            for d in range(D - 1, -1, -1):
                a(f"{Lmv[d]}:")
                fin(sets[d])
                if d: a(f"s_branch {Lx}")
            a(f"{Lx}:")
        def dual(name, st, local):
            if local:
                a("s_mov_b64 s[4:5], exec")
                a(f"s_and_b64 exec, s[4:5], s[{sPL}:{sPL+1}]")
                self.issue(name + "p", st)
                a(f"s_andn2_b64 exec, s[4:5], s[{sPL}:{sPL+1}]")
            self.issue(name, st + " sc1")
            a("s_mov_b64 exec, -1")
        def sel_poll(name, pieces, acc, depth):
            Lx = self.lab(name + "x"); Lre = self.lab(name + "re")
            n = sum(len(p[0]) for p in pieces)
            for _ in range(depth - 1):
                for p in pieces:
                    for ld in p[0]: a(ld)
            a(f"s_mov_b32 s7, {o['spin']}")
            a(f"{Lre}:")
            a(f"s_waitcnt vmcnt({n * (depth - 1)})")
            for i, p in enumerate(pieces):
                first = True
                for v in range(p[1], p[1] + p[2]):
                    if first: a(f"v_xor_b32 v{acc+i}, s{sT2}, v{v}"); first = False
                    else: a(f"v_bitop3_b32 v{acc+i}, v{v}, s{sT2}, v{acc+i} bitop3:0xbe")
                a(f"v_and_b32 v{acc+i}, {TM2:#x}, v{acc+i}")
            for i, p in enumerate(pieces): a(f"v_cmp_ne_u32 s[{64+2*i}:{65+2*i}], 0, v{acc+i}")
            if len(pieces) == 1: a("s_cmp_lg_u64 s[64:65], 0")
            else:
                a("s_or_b64 s[4:5], s[64:65], s[66:67]")
                for i in range(2, len(pieces)): a(f"s_or_b64 s[4:5], s[4:5], s[{64+2*i}:{65+2*i}]")
            a(f"s_cbranch_scc0 {Lx}")
            if o["xs"]: a(f"s_sleep {o['xs']}")
            for i, p in enumerate(pieces):
                a(f"s_mov_b64 exec, s[{64+2*i}:{65+2*i}]")
                for ld in p[0]: a(ld)
            a("s_mov_b64 exec, -1")
            a("s_sub_u32 s7, s7, 1")
            a("s_cmp_lg_u32 s7, 0")
            a(f"s_cbranch_scc1 {Lre}")
            a(f"{Lx}:")
        def pkadd(d, x, y):
            a(f"v_pk_add_f32 {r2(d)}, {r2(x)}, {r2(y)}"); a(f"v_pk_add_f32 {r2(d+2)}, {r2(x+2)}, {r2(y+2)}")

        self.stamp("start")
        if o["hold"]: a("s_memrealtime s[16:17]")
        a(f"""
        s_load_dwordx16 s[36:51], s[0:1], 0
        s_cmpk_ge_u32 s2, 0x100
        s_cbranch_scc1 L_end
        """)
        if o["jitter"]:
            a(f"""s_mul_i32 s4, s2, 0x9e3779b1
            s_lshr_b32 s4, s4, {32-o["jitter"]}
            L_jit:
            s_cmp_eq_u32 s4, 0
            s_cbranch_scc1 L_jitd
            s_sleep 40
            s_sub_u32 s4, s4, 1
            s_branch L_jit
            L_jitd:""")
        for _ in range(o["pad"]): a("s_nop 0")
        a("s_mov_b32 s101, s2")
        a(f"""
        s_lshr_b32 s{sKQ}, s2, 6
        s_mul_i32 s4, s{sKQ}, {144*8192}
        s_and_b32 s5, s2, 7
        s_bfe_u32 s6, s2, 0x30003
        s_lshl3_add_u32 s{sC6}, s5, s6
        s_lshl_b32 s5, s{sC6}, 7
        s_add_u32 s4, s4, s5
        v_lshrrev_b32 v{vT}, 3, v0
        v_and_b32 v{vT+1}, 7, v0
        v_lshlrev_b32 v{vT+1}, 4, v{vT+1}
        v_lshl_add_u32 v{vQa}, v{vT}, 15, v{vT+1}
        s_mov_b32 s{SQ+2}, {143*8192+128}
        s_mov_b32 s{SQ+3}, 0x20000
        s_movk_i32 s33, 0x2000
        s_movk_i32 s34, 0x4000
        s_movk_i32 s35, 0x6000
        s_waitcnt lgkmcnt(0)
        s_add_u32 s{SQ}, s42, s4
        s_addc_u32 s{SQ+1}, s43, 0
        """)
        if o["st3"]: self.stamp("karg")
        more(4)
        if o["st3"]: self.stamp("Q3iss")
        a(f"""
        s_load_dwordx8 s[52:59], s[0:1], 64
        s_load_dwordx2 s[60:61], s[0:1], 96
        s_lshl_b32 s2, s{sKQ}, 6
        s_add_u32 s2, s2, s{sC6}
        v_lshl_add_u32 v{vQb}, v{vT}, 13, v{vT+1}
        v_add_u32 v{vQb}, {128*8192}, v{vQb}
        v_lshrrev_b32 v{vJ}, 6, v0
        v_lshlrev_b32 v{vV}, 4, v0
        v_readfirstlane_b32 s{sJ}, v{vJ}
        """)
        more(1)
        a(f"""
        s_mov_b32 s{SX}, s36
        s_mov_b32 s{SX+1}, s37
        s_movk_i32 s{SX+2}, 1152
        s_mov_b32 s{SX+3}, 0x20000
        """)
        self.issue("X", f"buffer_load_dwordx4 {r4(vX)}, v{vV}, s[{SX}:{SX+3}], 0 offen")
        MIXG = f"s_xor_b32 s5, s{sC6}, s7\ns_lshl_b32 s5, s5, 7" if o["mix"] else ""
        a(f"""
        s_bitcmp1_b32 s{sJ}, 0
        s_cselect_b32 s{SGU}, s50, s48
        s_cselect_b32 s{SGU+1}, s51, s49
        s_cselect_b32 s7, 2, 1
        s_lshr_b32 s6, s{sJ}, 1
        s_lshl1_add_u32 s6, s{sKQ}, s6
        s_mul_i32 s4, s6, {72*9216}
        {MIXG}
        s_add_u32 s4, s4, s5
        s_add_u32 s{SGU}, s{SGU}, s4
        s_addc_u32 s{SGU+1}, s{SGU+1}, 0
        s_mov_b32 s{SGU+2}, {71*9216+128}
        s_mov_b32 s{SGU+3}, 0x20000
        v_and_b32 v{vT+2}, 7, v{vT}
        v_mul_u32_u24 v{vGU}, {8*9216}, v{vT+2}
        v_add_u32 v{vGU}, v{vGU}, v{vT+1}
        """)
        more(2)
        a(f"""
        v_mul_u32_u24 v{vPD}, 9216, v{vT+2}
        v_add_u32 v{vPD}, v{vPD}, v{vT+1}
        v_add_u32 v{vPD}, {64*9216}, v{vPD}
        s_waitcnt lgkmcnt(0)
        s_mov_b32 s{SR}, s54
        s_mov_b32 s{SR+1}, s55
        s_movk_i32 s{SR+2}, 1152
        s_mov_b32 s{SR+3}, 0x20000
        """)
        self.issue("GW", f"buffer_load_dwordx4 {r4(vX+4)}, v{vV}, s[{SR}:{SR+3}], 0 offen")
        if o["prefetch"]:
            a(f"""
            s_getpc_b64 s[4:5]
            s_lshr_b32 s7, s2, 3
            s_mul_i32 s7, s7, {128*o['prefetch']}
            v_and_b32 v{vT+3}, 63, v0
            v_lshl_add_u32 v{vT+3}, v{vT+3}, 7, s7
            s_mov_b64 exec, {(1 << o['prefetch']) - 1}
            """)
            self.issue("PF", f"global_load_dword v{vMc}, v{vT+3}, s[4:5]")
            a("s_mov_b64 exec, -1")
        more(o["early"])
        TLB = ""
        if o["tlb"]:
            TLB = f"""s_load_dword s33, s[{SK}:{SK+1}], 0
            s_load_dword s33, s[{SV}:{SV+1}], 0
            s_load_dword s33, s[{SO}:{SO+1}], 0
            s_load_dword s33, s[{SR}:{SR+1}], 0
            s_mul_i32 s4, s{sC6}, {64*1152}
            s_add_u32 s4, s52, s4
            s_addc_u32 s5, s53, 0
            s_load_dword s33, s[4:5], 0
            s_add_u32 s4, s52, {4300*1152}
            s_addc_u32 s5, s53, 0
            s_load_dword s33, s[4:5], 0"""
        a(f"""
        s_add_u32 s60, s60, {o['wsoff']:#x}
        s_addc_u32 s61, s61, 0
        s_load_dword s{sTAG}, s[60:61], 0
        s_bitcmp1_b32 s2, 0
        s_cselect_b32 s{SR}, s50, s48
        s_cselect_b32 s{SR+1}, s51, s49
        s_bfe_u32 s7, s2, 0x20001
        s_lshl2_add_u32 s7, s{sKQ}, s7
        s_mul_i32 s4, s7, {36*9216}
        s_lshr_b32 s5, s{sC6}, 3
        s_lshl_b32 s5, s5, 7
        s_add_u32 s4, s4, s5
        s_add_u32 s4, s4, 8192
        s_add_u32 s{SR}, s{SR}, s4
        s_addc_u32 s{SR+1}, s{SR+1}, 0
        s_mov_b32 s{SR+2}, {35*9216+128}
        v_mul_u32_u24 v{vPD2}, 9216, v{vT}
        v_add_u32 v{vPD2}, v{vPD2}, v{vT+1}
        v_add_u32 v{vPO}, {32*9216}, v{vPD2}
        s_lshr_b32 s{sG}, s{sC6}, 2
        s_and_b32 s{sS}, s2, 3
        s_lshl2_add_u32 s{sS}, s{sKQ}, s{sS}
        s_lshl_b32 s4, s{sG}, 24
        s_lshl_b32 s5, s{sS}, 16
        s_add_u32 s4, s4, s5
        s_add_u32 s4, s4, {61440*256}
        s_add_u32 s{SK}, s38, s4
        s_addc_u32 s{SK+1}, s39, 0
        s_mov_b32 s{SK+2}, 0x10000
        s_mov_b32 s{SK+3}, 0x20000
        s_add_u32 s{SV}, s40, s4
        s_addc_u32 s{SV+1}, s41, 0
        s_mov_b32 s{SV+2}, 0x10000
        s_mov_b32 s{SV+3}, 0x20000
        s_lshr_b32 s4, s2, 7
        s_mul_i32 s4, s4, {HB}
        s_add_u32 s{SD}, s52, s4
        s_addc_u32 s{SD+1}, s53, 0
        s_sub_u32 s{SD+2}, {4608*1152}, s4
        s_mov_b32 s{SD+3}, 0x20000
        s_and_b32 s5, s{sS}, 7
        s_lshl3_add_u32 s5, s{sG}, s5
        s_mul_i32 s5, s5, {32*1152}
        s_add_u32 s4, s4, s5
        s_add_u32 s{SO}, s44, s4
        s_addc_u32 s{SO+1}, s45, 0
        s_mov_b32 s{SO+2}, {31*1152+HB}
        s_mov_b32 s{SO+3}, 0x20000
        s_mov_b32 s{SW}, s60
        s_mov_b32 s{SW+1}, s61
        s_mov_b32 s{SW+2}, 0x100000
        s_mov_b32 s{SW+3}, 0x20000
        s_movk_i32 s{s4608}, 4608
        {TLB}
        v_and_b32 v{vL}, 63, v0
        v_and_b32 v{vU}, 3, v0
        v_lshlrev_b32 v{vU}, 4, v{vU}
        v_bfe_u32 v{vU+1}, v0, 2, 2
        v_lshl_add_u32 v{vU}, v{vU+1}, 8, v{vU}
        v_bfe_u32 v{vU+1}, v0, 4, 2
        v_lshl_add_u32 v{vU}, v{vU+1}, 6, v{vU}
        v_lshl_add_u32 v{vK}, v{vJ}, 10, v{vU}
        v_mov_b32 v{vTM}, 0xffffff00
        v_and_b32 v{vU}, 1, v0
        v_lshlrev_b32 v{vU}, 4, v{vU}
        v_mov_b32 v{vU+1}, 0xffff
        v_lshlrev_b32 v{vU}, v{vU}, v{vU+1}
        v_bfe_u32 v{vU+1}, v0, 1, 2
        v_cmp_eq_u32 s[4:5], 0, v{vU+1}
        v_cmp_eq_u32 s[36:37], 1, v{vU+1}
        v_cmp_eq_u32 vcc, 2, v{vU+1}
        v_cndmask_b32 v{vM[0]}, 0, v{vU}, s[4:5]
        v_cndmask_b32 v{vM[1]}, 0, v{vU}, s[36:37]
        v_cmp_eq_u32 s[36:37], 3, v{vU+1}
        v_cndmask_b32 v{vM[2]}, 0, v{vU}, vcc
        v_or_b32 v{vU+3}, v{vM[0]}, v{vM[2]}
        v_cndmask_b32 v{vM[3]}, 0, v{vU}, s[36:37]
        v_or_b32 v{vU+1}, v{vM[1]}, v{vM[3]}
        v_mov_b32 v{vU+2}, 0x0c0c0c0c
        s_mov_b32 s32, 0x01000100
        s_mov_b32 s63, 0x03020302
        v_bfi_b32 v{vSel[0]}, v{vU+3}, s32, v{vU+2}
        v_bfi_b32 v{vSel[1]}, v{vU+1}, s32, v{vU+2}
        v_bfi_b32 v{vSel[2]}, v{vU+3}, s63, v{vU+2}
        v_bfi_b32 v{vSel[3]}, v{vU+1}, s63, v{vU+2}
        """)
        if o["pt"]:
            a(f"""
            s_lshl_b32 s4, s2, 10
            s_add_u32 s4, s4, {RA}
            s_lshl4_add_u32 s5, s{sG}, s{sS}
            s_mul_i32 s5, s5, 1152
            s_add_u32 s5, s5, {OB}
            s_cmp_eq_u32 s{sJ}, 1
            s_cselect_b32 s4, s5, s4
            s_and_b32 s5, s2, 127
            s_mul_i32 s5, s5, {CG*16}
            s_lshr_b32 s100, s2, 7
            s_lshl1_add_u32 s100, s100, s{sJ}
            s_sub_u32 s100, s100, 2
            s_mul_i32 s100, s100, {9*128*CG*16}
            s_add_u32 s5, s5, s100
            s_add_u32 s5, s5, {FB}
            s_cmp_ge_u32 s{sJ}, 2
            s_cselect_b32 s4, s5, s4
            s_cselect_b32 s5, {(128*CG*16).bit_length()-1}, 7
            v_lshlrev_b32 v{vU}, s5, v{vL}
            v_add_u32 v{vU}, s4, v{vU}
            s_mov_b64 exec, 0x1ff
            """)
            self.issue("PT", f"buffer_load_dword v{vMx}, v{vU}, s[{SW}:{SW+3}], 0 offen {o['ptf']}")
            a("s_mov_b64 exec, -1")
        a(f"""
        v_lshlrev_b32 v{vU}, 2, v{vL}
        v_mov_b32 v{vU+4}, 0
        v_mov_b32 v{vU+5}, 0
        v_mov_b32 v{vU+6}, 0
        v_mov_b32 v{vU+7}, 0
        ds_write_b32 v{vU}, v{vU+4} offset:{HL}
        ds_write_b32 v{vU}, v{vU+4} offset:{XL+2304}
        v_lshlrev_b32 v{vU+1}, 3, v{vL}
        ds_write_b64 v{vU+1}, {r2(vU+4)} offset:{OLX+1024}
        v_and_b32 v{vU+1}, 1, v{vJ}
        v_lshlrev_b32 v{vU+1}, 11, v{vU+1}
        v_lshl_add_u32 v{vU+1}, v{vL}, 4, v{vU+1}
        ds_write_b128 v{vU+1}, {r4(vU+4)} offset:{P1+2048+1024}
        """)
        a(f"""
        s_mul_i32 s4, s{sKQ}, 576
        v_lshl_add_u32 v{vU+8}, v{vT}, 4, s4
        v_lshl_add_u32 v{vU+9}, v{vT}, 2, s4
        s_mul_i32 s4, s6, 288
        v_lshl_add_u32 v{vU+10}, v{vT+2}, 5, s4
        v_lshl_add_u32 v{vU+11}, v{vT+2}, 2, s4
        s_mul_i32 s4, s7, 144
        v_lshl_add_u32 v{vU+12}, v{vT}, 2, s4
        v_bfe_u32 v{vU+4}, v0, 3, 1
        v_bfe_u32 v{vU+5}, v0, 5, 1
        v_cmp_eq_u32 vcc, v{vU+4}, v{vU+5}
        v_bfe_u32 v{vU+4}, v0, 4, 1
        v_lshlrev_b32 v{vU+4}, 7, v{vU+4}
        v_lshl_add_u32 v{vU+4}, v{vU+5}, 8, v{vU+4}
        v_lshrrev_b32 v{vU+5}, 2, v{vT+1}
        v_add_u32 v{vU+4}, v{vU+4}, v{vU+5}
        v_lshl_add_u32 v{vU+13}, v{vJ}, 9, v{vU+4}
        s_and_b32 s4, s{sJ}, 1
        s_lshl_b32 s4, s4, 11
        s_lshr_b32 s5, s{sJ}, 1
        s_lshl_b32 s5, s5, 9
        s_add_u32 s4, s4, s5
        s_add_u32 s4, s4, 2048
        v_add_u32 v{vU+14}, s4, v{vU+4}
        v_mov_b32 v{vU+5}, {DUM-P1}
        v_cndmask_b32 v{vU+13}, v{vU+5}, v{vU+13}, vcc
        v_cndmask_b32 v{vU+14}, v{vU+5}, v{vU+14}, vcc
        v_mov_b32 v{vU+5}, {DUM-P1-6144}
        v_lshl_add_u32 v{vU+15}, v{vJ}, 9, v{vU+4}
        v_cndmask_b32 v{vU+15}, v{vU+5}, v{vU+15}, vcc
        v_lshlrev_b32 v{vU+16}, 5, v0
        v_min_u32 v{vU+16}, 2304, v{vU+16}
        """)
        if o["skewm"]:
            a(f"""
            s_waitcnt lgkmcnt(0)
            s_lshl_b32 s4, s2, 2
            s_add_u32 s4, s4, 0xF0000
            v_mov_b32 v{vBq}, s16
            v_mov_b32 v{vBq+1}, s4
            s_mov_b64 exec, 1
            """)
            self.issue("SK", f"buffer_store_dword v{vBq}, v{vBq+1}, s[{SW}:{SW+3}], 0 offen sc1")
            a("s_mov_b64 exec, -1")
        (None if o["st4"] else self.stamp("prol"))
        if o["st3"]:
            self.wait("Q0"); self.stamp("Q0land")
        self.wait("X")
        if o["st3"]: self.stamp("Xland")
        for i in range(4):
            a(f"v_perm_b32 v{vT+2*i}, v{vX+i}, v{vX+i}, s32")
            a(f"v_perm_b32 v{vT+2*i+1}, v{vX+i}, v{vX+i}, s63")
        a(f"""
        ds_write_b128 v{vU+16}, {r4(vT)} offset:{XL}
        ds_write_b128 v{vU+16}, {r4(vT+4)} offset:{XL+16}
        """)
        fill("Q4")
        a(f"""
        s_waitcnt lgkmcnt(0)
        s_barrier
        ds_read_b128 {r4(vS)}, v{vU+8} offset:{XL}
        ds_read_b32 v{vS+4}, v{vU+9} offset:{XL+512}
        ds_read_b128 {r4(vS+8)}, v{vU+10} offset:{XL}
        ds_read_b128 {r4(vS+12)}, v{vU+10} offset:{XL+16}
        ds_read_b32 v{vS+5}, v{vU+11} offset:{XL+256}
        ds_read_b32 v{vS+6}, v{vU+12} offset:{XL}
        ds_read_b32 v{vS+7}, v{vU+12} offset:{XL+128}
        s_add_u32 s{sTAG}, s{sTAG}, 1
        s_and_b32 s{sT2}, s{sTAG}, {TM2:#x}
        s_and_b32 s{sTAG}, s{sTAG}, 0xff
        s_getreg_b32 s{sXE}, hwreg(HW_REG_XCC_ID, 0, 4)
        s_lshl_b32 s{sXE}, s{sXE}, 8
        s_add_u32 s{sXE}, s{sXE}, s{sTAG}
        s_waitcnt lgkmcnt(5)
        """)
        nb = [0]
        def l8(lbl, xreg, acc, first, dowait=True):
            B = vT + 4 * (nb[0] % 4); nb[0] += 1
            for j in range(4): a(f"v_and_b32 v{B+j}, v{xreg}, v{vM[j]}")
            if dowait: self.wait(lbl)
            a(f"v_mfma_f32_16x16x32_bf16 {r4(acc)}, {r4(dst[lbl])}, {r4(B)}, {'0' if first else r4(acc)}")
        for t in range(5): l8(f"Q{t}", vS + t, vAq, t == 0, False)
        self.wait("GW")
        for i in range(4):
            a(f"""
            v_lshlrev_b32 v{vU}, 16, v{vX+i}
            v_and_b32 v{vU+1}, 0xffff0000, v{vX+i}
            v_lshlrev_b32 v{vU+2}, 16, v{vX+4+i}
            v_and_b32 v{vU+3}, 0xffff0000, v{vX+4+i}
            v_pk_mul_f32 {r2(vU)}, {r2(vU)}, {r2(vU+2)}
            v_cvt_pk_bf16_f32 v{vU}, v{vU}, v{vU+1}
            v_and_b32 v{vU+1}, 0xffff0000, v{vU}
            v_lshlrev_b32 v{vU}, 16, v{vU}
            """)
            if i == 0: a(f"v_pk_mul_f32 {r2(vU+4)}, {r2(vU)}, 1.0 op_sel_hi:[1,0]")
            else: a(f"v_pk_add_f32 {r2(vU+4)}, {r2(vU+4)}, {r2(vU)}")
        for i in range(4): a(f"ds_write_b32 v{vU+13}, v{vAq+i} offset:{P1+32*i}")
        a(f"v_add_f32 v{vU+4}, v{vU+4}, v{vU+5}")
        for r in (1, 2, 4, 8): a(f"v_add_f32_dpp v{vU+4}, v{vU+4}, v{vU+4} row_ror:{r} {DPP}")
        a(f"""
        v_lshrrev_b32 v{vU+1}, 4, v0
        v_lshlrev_b32 v{vU+1}, 2, v{vU+1}
        ds_write_b32 v{vU+1}, v{vU+4} offset:{GS}
        s_lshl_b32 s4, s2, 10
        s_add_u32 s4, s4, {RA}
        v_lshl_add_u32 v{vFA}, v{vL}, 4, s4
        s_waitcnt lgkmcnt(0)
        s_barrier
        """)
        def pubA(lo, hi, wave, name, tg=None):
            L = self.lab(name)
            mask = ((1 << hi) - 1) ^ ((1 << lo) - 1)
            a(f"""
            s_cmp_lg_u32 s{sJ}, {wave}
            s_cbranch_scc1 {L}
            s_mov_b32 exec_lo, {mask & 0xffffffff:#x}
            s_mov_b32 exec_hi, {mask >> 32:#x}
            v_lshrrev_b32 v{vU}, 4, v{vL}
            v_lshlrev_b32 v{vU}, 11, v{vU}
            v_and_b32 v{vU+1}, 15, v{vL}
            v_lshl_add_u32 v{vU}, v{vU+1}, 4, v{vU}
            """)
            tg = tg or [vAO, vAO + 4, vBq, vPoll, vU + 4, vU + 8, vU + 20, vU + 24]
            for p in range(8): a(f"ds_read_b128 {r4(tg[p])}, v{vU} offset:{P1+256*p}")
            a("s_waitcnt lgkmcnt(0)")
            for p in range(1, 8): pkadd(tg[0], tg[0], tg[p])
            tagins(tg[0])
            if name == "qpub":
                a("s_mov_b64 exec, 1")
                a(f"v_and_b32 v{tg[0]}, 0xfffff000, v{tg[0]}"); a(f"v_or_b32 v{tg[0]}, s{sXE}, v{tg[0]}")
                a("s_mov_b64 exec, 0xffff")
            a(f"""
            s_branch {L}s
            {L}:
            s_mov_b64 exec, 0
            {L}s:
            """)
            dual(name, f"buffer_store_dwordx4 {r4(tg[0])}, v{vFA}, s[{SW}:{SW+3}], 0 offen", name == "gpub")
        pubA(0, 16, 3, "qpub")
        (None if o["st4"] else self.stamp("qpub"))
        more(o["pre_qp"])
        for k in range(9):
            l8(f"G{k}", vS + 8 + k if k < 8 else vS + 5, vAg, k == 0)
            fill(f"G{k}")
            if k == 2:
                a(f"""
                v_mov_b32 v{vU}, 0
                ds_read_b128 {r4(vU+4)}, v{vU} offset:{GS}
                ds_read_b32 v{vU+8}, v{vU} offset:{GS+16}
                s_waitcnt lgkmcnt(0)
                v_pk_add_f32 {r2(vU+4)}, {r2(vU+4)}, {r2(vU+6)}
                v_add_f32 v{vU}, v{vU+4}, v{vU+5}
                v_add_f32 v{vU}, v{vU}, v{vU+8}
                v_cvt_pk_bf16_f32 v{vU}, v{vU}, v{vU}
                v_lshlrev_b32 v{vU}, 16, v{vU}
                v_mul_f32 v{vU}, {f2u(-1.4426950408889634):#x}, v{vU}
                v_exp_f32 v{vU}, v{vU}
                v_add_f32 v{vU}, 1.0, v{vU}
                v_rcp_f32 v{vU}, v{vU}
                v_cvt_pk_bf16_f32 v{vU}, v{vU}, v{vU}
                v_lshlrev_b32 v{vG}, 16, v{vU}
                v_sub_f32 v{vU}, 1.0, v{vG}
                v_cvt_pk_bf16_f32 v{vU}, v{vU}, v{vU}
                v_lshlrev_b32 v{vOMG}, 16, v{vU}
                """)
            if k == 5:
                a(f"""
                s_lshl_b32 s4, s{sJ}, 16
                s_lshl_b32 s5, s{sG}, 12
                s_add_u32 s4, s4, s5
                s_add_u32 s4, s4, {RA}
                v_lshrrev_b32 v{vU}, 4, v{vL}
                v_lshlrev_b32 v{vU}, 10, v{vU}
                v_and_b32 v{vU+1}, 15, v{vL}
                v_lshl_add_u32 v{vU}, v{vU+1}, 4, v{vU}
                v_add_u32 v{vQa}, s4, v{vU}
                s_xor_b32 s5, s{sG}, 1
                s_lshl_b32 s5, s5, 12
                s_add_u32 s5, s5, {RA}
                v_bfe_u32 v{vU}, v0, 2, 2
                v_lshlrev_b32 v{vU}, 16, v{vU}
                v_and_b32 v{vU+1}, 3, v0
                v_lshl_add_u32 v{vU}, v{vU+1}, 10, v{vU}
                v_add_u32 v{vQb}, s5, v{vU}
                """)
        for k in range(2):
            l8(f"R{k}", vS + 6 + k, vAr, k == 0)
            if k == 1: self.gdone = True
            fill(f"R{k}")
        for i in range(4): a(f"ds_write_b32 v{vU+14}, v{vAg+i} offset:{P1+32*i}")
        UNEV = f"""s_lshr_b32 s4, s2, 7
        s_lshl_b32 s4, s4, 3
        s_sub_u32 s4, 40, s4
        v_cmp_gt_u32 vcc, s4, v{vCH}
        s_lshl_b32 s14, s4, 1
        v_cndmask_b32 v{vPD}, v{vU}, v{vPD}, vcc
        v_cndmask_b32 v{vPD2}, v{vU}, v{vPD2}, vcc
        v_cndmask_b32 v{vPO}, v{vU}, v{vPO}, vcc
        v_cndmask_b32 v{vGU}, v{vU}, v{vGU}, vcc""" if UN else "s_movk_i32 s14, 72"
        a(f"""
        v_mul_u32_u24 v{vRS}, {MAG}, v0
        v_lshrrev_b32 v{vRS}, 16, v{vRS}
        v_mul_u32_u24 v{vCH}, {NCH}, v{vRS}
        v_sub_u32 v{vCH}, v0, v{vCH}
        v_mul_u32_u24 v{vPO}, {6*1152}, v{vRS}
        v_lshl_add_u32 v{vPO}, v{vCH}, 4, v{vPO}
        v_add_u32 v{vGU}, 4608, v{vPO}
        """)
        for i in range(4): a(f"ds_write_b32 v{vU+15}, v{vAr+i} offset:{P1+6144+32*i}")
        a(f"""
        s_bfe_u32 s4, s2, 0x10006
        s_lshl1_add_u32 s4, s{sC6}, s4
        s_mul_i32 s4, s4, {32*1152}
        v_add_u32 v{vPD}, s4, v{vPO}
        s_lshr_b32 s5, s{sC6}, 3
        s_lshl_b32 s5, s5, 4
        s_and_b32 s6, s{sC6}, 7
        s_add_u32 s5, s5, s6
        s_bfe_u32 s6, s2, 0x10006
        s_lshl3_add_u32 s5, s6, s5
        s_mul_i32 s5, s5, {4*1152}
        s_add_u32 s5, s5, {(4096-2)*1152}
        v_lshl_add_u32 v{vPD2}, v{vCH}, 4, s5
        v_cmp_gt_u32 vcc, 5, v{vRS}
        v_cmp_gt_u32 s[4:5], 6, v{vRS}
        v_bfrev_b32 v{vU}, -2
        v_cndmask_b32 v{vPD2}, v{vPD2}, v{vPD}, vcc
        v_cndmask_b32 v{vPD}, v{vU}, v{vPD}, s[4:5]
        v_cndmask_b32 v{vPD2}, v{vU}, v{vPD2}, s[4:5]
        {UNEV}
        v_mul_u32_u24 v{vU}, {NCH*32}, v{vRS}
        v_lshl_add_u32 v{vCH}, v{vCH}, 5, v{vU}
        v_mul_u32_u24 v{vRS}, 12, v{vRS}
        v_add_u32 v{vRS}, {HL}, v{vRS}
        """)
        (None if o["st4"] else self.stamp("gpub"))
        more(o["pre_g"])
        if o["pts"]:
            a(f"""
            s_lshr_b32 s4, s2, 7
            s_mul_i32 s4, s4, {2 * NCH // CG}
            s_mul_i32 s5, s{sJ}, {(72 // CG + 3) // 4}
            s_add_u32 s4, s4, s5
            s_mul_i32 s4, s4, {128 * CG * 16}
            s_and_b32 s5, s2, 127
            s_mul_i32 s5, s5, {CG * 16}
            s_add_u32 s4, s4, s5
            s_add_u32 s4, s4, {FB}
            s_add_u32 s4, s60, s4
            s_addc_u32 s5, s61, 0
            """)
            for i in range((72 // CG + 3) // 4): a(f"s_load_dword s33, s[4:5], {128*CG*16*i} {'glc' if o['pts'] == 2 else ''}")
        if o["cpf"]:
            a(f"""
            s_getpc_b64 s[4:5]
            s_lshr_b32 s6, s101, 3
            s_lshl2_add_u32 s6, s6, s{sJ}
            s_lshl_b32 s6, s6, 6
            s_add_u32 s4, s4, s6
            s_addc_u32 s5, s5, 0
            s_load_dword s33, s[4:5], 0
            """)
        qload = f"buffer_load_dwordx4 {r4(vPoll)}, v{vQa}, s[{SW}:{SW+3}], 0 offen sc1"
        for k in range(o["qp"] + 1):
            self.wait(f"K{k}"); fill(f"K{k}")
        a(f"s_cmp_eq_u32 s{sJ}, 0"); a("s_cselect_b64 exec, 0xffff, 0")
        self.issue("QP2", f"buffer_load_dwordx4 {r4(vAO)}, v{vQb}, s[{SW}:{SW+3}], 0 offen sc1")
        a("s_mov_b64 exec, -1")
        self.issue("QP", qload.replace("sc1", o["first"]))
        lastK = min(15, self.ip - 1 - big.index("K0"))
        for k in range(o["qp"] + 1, lastK + 1):
            self.wait(f"K{k}"); fill(f"K{k}")
        more(o["pre_q"])
        a(f"""
        v_bfe_u32 v{vU+1}, v0, 3, 1
        v_lshlrev_b32 v{vU+1}, 9, v{vU+1}
        v_bfe_u32 v{vU+2}, v0, 4, 2
        v_lshl_add_u32 v{vU+1}, v{vU+2}, 7, v{vU+1}
        v_and_b32 v{vU+2}, 3, v0
        v_lshl_add_u32 v{vU+1}, v{vU+2}, 5, v{vU+1}
        """)
        self.wait("QP")
        retry_loop("q", [qload], [vPoll], vU)
        a(f"""
        v_and_b32 v{vU+2}, 15, v0
        v_cmp_eq_u32 vcc, 0, v{vU+2}
        v_xor_b32 v{vU}, s{sXE}, v{vPoll}
        s_movk_i32 s4, 0x80
        v_cndmask_b32 v{vU}, 0, v{vU}, vcc
        v_mov_b32 v{vU+2}, 0x800
        v_mov_b32 v{vU+3}, 0xfffff000
        v_and_or_b32 v{vU+2}, v{vPoll}, v{vU+3}, v{vU+2}
        v_and_or_b32 v{vPoll}, v{vPoll}, v{vTM}, s4
        v_and_or_b32 v{vPoll+1}, v{vPoll+1}, v{vTM}, s4
        v_and_or_b32 v{vPoll+2}, v{vPoll+2}, v{vTM}, s4
        v_and_or_b32 v{vPoll+3}, v{vPoll+3}, v{vTM}, s4
        v_cndmask_b32 v{vPoll}, v{vPoll}, v{vU+2}, vcc
        ds_write_b128 v{vV}, {r4(vPoll)} offset:{QL}
        v_cmp_gt_u32 vcc, 16, v0
        v_xor_b32 v{vU+2}, s{sTAG}, v{vAO+1}
        v_bitop3_b32 v{vU+2}, v{vAO+2}, s{sTAG}, v{vU+2} bitop3:0xbe
        v_bitop3_b32 v{vU+2}, v{vAO+3}, s{sTAG}, v{vU+2} bitop3:0xbe
        v_and_b32 v{vU+2}, 0xff, v{vU+2}
        v_bitop3_b32 v{vU+2}, v{vAO}, s{sXE}, v{vU+2} bitop3:0xbe
        v_cndmask_b32 v{vU+2}, 0, v{vU+2}, vcc
        v_or_b32 v{vU}, v{vU}, v{vU+2}
        v_and_b32 v{vU}, 0xfff, v{vU}
        v_cmp_ne_u32 vcc, 0, v{vU}
        v_lshlrev_b32 v{vU+2}, 2, v{vJ}
        s_cmp_lg_u64 vcc, 0
        s_cselect_b32 s4, 1, 0
        v_mov_b32 v{vU}, s4
        ds_write_b32 v{vU+2}, v{vU} offset:{XF}
        v_mov_b32 v{vU+2}, 0
        s_waitcnt lgkmcnt(0)
        s_barrier
        ds_read_b128 {r4(vAO)}, v{vU+2} offset:{XF}
        """)
        qd = [vT, vT + 8, vU + 8, vU + 16]
        for k in range(4):
            a(f"ds_read_b128 {r4(qd[k])}, v{vU+1} offset:{QL+1024*k}")
            a(f"ds_read_b128 {r4(qd[k]+4)}, v{vU+1} offset:{QL+1024*k+16}")
        a("s_waitcnt lgkmcnt(4)")
        a(f"v_or3_b32 v{vAO}, v{vAO}, v{vAO+1}, v{vAO+2}")
        a(f"v_or_b32 v{vAO}, v{vAO}, v{vAO+3}")
        for i in range(0, 8, 2): a(f"v_pk_add_f32 {r2(qd[0]+i)}, {r2(qd[0]+i)}, {r2(qd[1]+i)}")
        a(f"v_cmp_eq_u32 s[{sPL}:{sPL+1}], 0, v{vAO}")
        a("s_waitcnt lgkmcnt(0)")
        for i in range(0, 8, 2): a(f"v_pk_add_f32 {r2(qd[2]+i)}, {r2(qd[2]+i)}, {r2(qd[3]+i)}")
        for i in range(0, 8, 2): a(f"v_pk_add_f32 {r2(qd[0]+i)}, {r2(qd[0]+i)}, {r2(qd[2]+i)}")
        for i in range(4): a(f"v_cvt_pk_bf16_f32 v{vBq+i}, v{qd[0]+2*i}, v{qd[0]+2*i+1}")
        pubA(16, 64, 2, "gpub", [vAO, vAO + 4, vT, vT + 4, vT + 8, vT + 12, vU + 4, vU + 8])
        a(f"v_mov_b32 v{vTM}, {0xffffffff ^ TM2:#x}")
        if o["stamps"] and o["cnt"] == 3:
            r = self.sreg(self.nst); self.names.append("xretry"); self.nst += 1
            a(f"s_and_b32 s4, s{sPL}, 100"); a(f"s_add_u32 s{r}, s16, s4"); a(f"s_addc_u32 s{r+1}, s17, 0")
        (None if o["st4"] else self.stamp("qcons"))
        if o["round_scores"]: a(f"s_mov_b32 s{sC}, {f2u(128 ** -0.5):#x}")
        def qk_fin(t):
            D = vT + 4 * (t % 4)
            a(f"v_mov_b32_dpp v{vS+t}, v{D} quad_perm:[0,0,0,0] {DPP}")
            for u in range(1, 4): a(f"v_add_f32_dpp v{vS+t}, v{D+u}, v{vS+t} quad_perm:[{u},{u},{u},{u}] {DPP}")
            if t & 1:
                t0 = t - 1
                if o["round_scores"]:
                    a(f"""
                    v_cvt_pk_bf16_f32 v{vU}, v{vS+t0}, v{vS+t0+1}
                    v_lshlrev_b32 v{vS+t0}, 16, v{vU}
                    v_and_b32 v{vS+t0+1}, 0xffff0000, v{vU}
                    v_mul_f32 v{vS+t0}, s{sC}, v{vS+t0}
                    v_mul_f32 v{vS+t0+1}, s{sC}, v{vS+t0+1}
                    v_cvt_pk_bf16_f32 v{vU}, v{vS+t0}, v{vS+t0+1}
                    v_lshlrev_b32 v{vS+t0}, 16, v{vU}
                    v_and_b32 v{vS+t0+1}, 0xffff0000, v{vU}
                    """)
                if t == 1: a(f"v_max_f32 v{vU+1}, v{vS}, v{vS+1}")
                else: a(f"v_max3_f32 v{vU+1}, v{vU+1}, v{vS+t0}, v{vS+t0+1}")
        for t in range(16):
            if t > lastK: self.wait(f"K{t}")
            D = vT + 4 * (t % 4)
            a(f"v_mfma_f32_16x16x32_bf16 {r4(D)}, {r4(dst[f'K{t}'])}, {r4(vBq)}, 0")
            if t == 15: self.kdone = True
            if t > lastK: fill(f"K{t}")
            if t >= 2: qk_fin(t - 2)
        more(o["pre_s"])
        a(f"""
        v_bfe_u32 v{vU+2}, v0, 3, 1
        v_lshlrev_b32 v{vU+2}, 6, v{vU+2}
        v_lshrrev_b32 v{vU+3}, 4, v0
        v_lshl_add_u32 v{vK}, v{vU+3}, 2, v{vU+2}
        """)
        qk_fin(14); qk_fin(15)
        cexp = 1.4426950408889634 if o["round_scores"] else 128 ** -0.5 * 1.4426950408889634
        a(f"""
        ds_write_b32 v{vK}, v{vU+1} offset:{MX}
        s_mov_b32 s{sC}, {f2u(cexp):#x}
        s_waitcnt lgkmcnt(0)
        s_barrier
        """)
        for i in range(4): a(f"ds_read_b128 {r4(vT+4*i)}, v{vU+2} offset:{MX+16*i}")
        a("s_waitcnt lgkmcnt(0)")
        a(f"v_max3_f32 v{vT}, v{vT}, v{vT+1}, v{vT+2}")
        for t in range(3, 15, 2): a(f"v_max3_f32 v{vT}, v{vT}, v{vT+t}, v{vT+t+1}")
        a(f"v_max_f32 v{vMx}, v{vT}, v{vT+15}")
        a(f"v_and_b32 v{vMx}, v{vMx}, v{vTM}")
        a(f"v_mul_f32 v{vMc}, s{sC}, v{vMx}")
        for t in range(16): a(f"v_fma_f32 v{vS+t}, v{vS+t}, s{sC}, -v{vMc}")
        for t in range(16): a(f"v_exp_f32 v{vS+t}, v{vS+t}")
        a(f"v_pk_add_f32 {r2(vT)}, {r2(vS)}, {r2(vS+2)}")
        for t in range(4, 16, 2): a(f"v_pk_add_f32 {r2(vT)}, {r2(vT)}, {r2(vS+t)}")
        a(f"v_add_f32 v{vT}, v{vT}, v{vT+1}")
        a(f"ds_write_b32 v{vK}, v{vT} offset:{LS}")
        self.stamp("smax")
        Lha = self.lab("haddr")
        hl = [f"buffer_load_dwordx4 {r4(vAO)}, v{vQa}, s[{SW}:{SW+3}], 0 offen sc1",
              f"buffer_load_dwordx4 {r4(vAO+4)}, v{vQb}, s[{SW}:{SW+3}], 0 offen sc1"]
        a(f"""
        s_cmp_lg_u32 s{sJ}, 3
        s_cbranch_scc1 {Lha}
        s_bfe_u32 s4, s2, 0x10006
        s_lshl_b32 s4, s4, 7
        s_add_u32 s4, s4, {RA+256}
        v_and_b32 v{vU}, 3, v0
        v_lshlrev_b32 v{vU}, 16, v{vU}
        v_bfe_u32 v{vU+1}, v0, 5, 1
        v_lshl_add_u32 v{vU}, v{vU+1}, 8, v{vU}
        v_add_u32 v{vU+1}, 1, v{vU+1}
        {"" if o["mix"] else f"v_mov_b32 v{vU+1}, 0"}
        v_xor_b32 v{vU+1}, s{sC6}, v{vU+1}
        v_lshl_add_u32 v{vU}, v{vU+1}, 10, v{vU}
        v_bfe_u32 v{vU+1}, v0, 2, 3
        v_lshl_add_u32 v{vU}, v{vU+1}, 4, v{vU}
        v_add_u32 v{vQa}, s4, v{vU}
        s_and_b32 s4, s{sC6}, 0x38
        s_lshl_b32 s4, s4, 10
        s_and_b32 s5, s{sC6}, 7
        s_bfe_u32 s6, s2, 0x10006
        s_lshl3_add_u32 s5, s6, s5
        s_lshl_b32 s5, s5, 4
        s_add_u32 s4, s4, s5
        s_add_u32 s4, s4, {RA+768}
        v_bfe_u32 v{vU}, v0, 2, 2
        v_lshlrev_b32 v{vU}, 16, v{vU}
        v_and_b32 v{vU+1}, 3, v0
        v_lshl_add_u32 v{vU}, v{vU+1}, 11, v{vU}
        v_bfe_u32 v{vU+1}, v0, 4, 1
        v_lshl_add_u32 v{vU}, v{vU+1}, 10, v{vU}
        v_add_u32 v{vQb}, s4, v{vU}
        {Lha}:
        """)
        def hfin():
            Lh = self.lab("hfin")
            a(f"""
            s_cmp_lg_u32 s{sJ}, 3
            s_cbranch_scc1 {Lh}
            s_waitcnt vmcnt({len(self.vm) - self.hmark})
            """)
            retry_loop("h", hl, [vAO, vAO + 4], vU)
            for i in range(4): a(f"v_add_f32_dpp v{vAO+i}, v{vAO+i}, v{vAO+i} quad_perm:[1,0,3,2] {DPP}")
            for i in range(4): a(f"v_add_f32_dpp v{vAO+4+i}, v{vAO+4+i}, v{vAO+4+i} row_ror:1 {DPP}")
            for i in range(4): a(f"v_add_f32_dpp v{vAO+i}, v{vAO+i}, v{vAO+i} quad_perm:[2,3,0,1] {DPP}")
            for r in (2, 4, 8):
                for i in range(4): a(f"v_add_f32_dpp v{vAO+4+i}, v{vAO+4+i}, v{vAO+4+i} row_ror:{r} {DPP}")
            a(f"""
            v_bfe_u32 v{vU+1}, v0, 5, 1
            v_mul_u32_u24 v{vU+1}, 192, v{vU+1}
            v_bfe_u32 v{vU+2}, v0, 2, 3
            v_lshl_add_u32 v{vU+1}, v{vU+2}, 4, v{vU+1}
            ds_write_b128 v{vU+1}, {r4(vAO)} offset:{HP}
            v_bfe_u32 v{vU+1}, v0, 4, 1
            v_mul_u32_u24 v{vU+1}, 192, v{vU+1}
            ds_write_b128 v{vU+1}, {r4(vAO+4)} offset:{HP+128}
            v_min_u32 v{vU+1}, 35, v{vL}
            v_lshlrev_b32 v{vU+2}, 2, v{vU+1}
            v_add_u32 v{vU+2}, {HP}, v{vU+2}
            s_waitcnt lgkmcnt(0)
            ds_read2_b32 {r2(vU+4)}, v{vU+2} offset0:0 offset1:48
            v_lshlrev_b32 v{vU+1}, 1, v{vU+1}
            s_waitcnt lgkmcnt(0)
            v_cvt_pk_bf16_f32 v{vU+4}, v{vU+4}, v{vU+5}
            v_and_b32 v{vU+5}, 0xffff0000, v{vU+4}
            v_lshlrev_b32 v{vU+4}, 16, v{vU+4}
            v_max_f32 v{vU+4}, 0, v{vU+4}
            v_mul_f32 v{vU+4}, v{vU+4}, v{vU+5}
            v_add_f32 v{vU+4}, 0, v{vU+4}
            v_cvt_pk_bf16_f32 v{vU+4}, v{vU+4}, v{vU+4}
            ds_write_b16 v{vU+1}, v{vU+4} offset:{HL}
            {Lh}:
            """)
        hcheck = None
        for t in range(16):
            B = vT + 4 * (t % 2)
            a(f"v_cvt_pk_bf16_f32 v{vU}, v{vS+t}, v{vS+t}")
            for j in range(4): a(f"v_and_b32 v{B+j}, v{vU}, v{vM[j]}")
            self.wait(f"V{t}")
            a(f"v_mfma_f32_16x16x32_bf16 {r4(vAcc)}, {r4(dst[f'V{t}'])}, {r4(B)}, {'0' if t == 0 else r4(vAcc)}")
            fill(f"V{t}", min(W, 15 + o["Wt"] - t))
            if o["st4"] and t in (1, 2, 5, 8, 9, 12): self.stamp(f"V{t}")
            if t == o["hp"]:
                a(f"s_cmp_eq_u32 s{sJ}, 3"); a("s_cselect_b64 exec, -1, 0")
                for i, ld in enumerate(hl): self.issue(f"H{i}", ld.replace("sc1", o["first"]))
                a("s_mov_b64 exec, -1")
                self.hmark = len(self.vm)
                hcheck = min(15, self.ip - big.index("V0"))
            if t == 3:
                a(f"""
                v_bfe_u32 v{vK}, v0, 3, 1
                v_lshlrev_b32 v{vK}, 9, v{vK}
                v_bfe_u32 v{vU+1}, v0, 4, 2
                v_lshl_add_u32 v{vK}, v{vU+1}, 7, v{vK}
                v_and_b32 v{vU+1}, 7, v0
                v_lshl_add_u32 v{vK}, v{vU+1}, 2, v{vK}
                v_lshl_add_u32 v{vK}, v{vJ}, 10, v{vK}
                s_lshl4_add_u32 s6, s{sG}, s{sS}
                s_mul_i32 s6, s6, 1152
                s_add_u32 s6, s6, {OB}
                v_lshl_add_u32 v{vX+4}, v{vL}, 4, s6
                s_mul_i32 s4, s{sG}, {16*1152}
                s_add_u32 s4, s4, {OB}
                v_and_b32 v{vX+5}, 15, v0
                v_mul_u32_u24 v{vX+5}, 1152, v{vX+5}
                v_add_u32 v{vX+5}, s4, v{vX+5}
                s_and_b32 s5, s{sS}, 7
                s_lshl_b32 s5, s5, 7
                s_lshr_b32 s4, s{sJ}, 1
                s_lshl_b32 s4, s4, 6
                s_add_u32 s4, s4, s5
                v_bfe_u32 v{vU+1}, v0, 4, 2
                v_lshl_add_u32 v{vX+6}, v{vU+1}, 4, v{vX+5}
                v_add_u32 v{vX+6}, s4, v{vX+6}
                s_bfe_u32 s4, s{sS}, 0x10002
                s_lshl_b32 s4, s4, 4
                v_add_u32 v{vX+5}, s4, v{vX+5}
                v_lshrrev_b32 v{vFA}, {CG.bit_length()-1}, v0
                v_mul_u32_u24 v{vFA}, {128*CG*16}, v{vFA}
                v_and_b32 v{vU+1}, {CG-1}, v0
                v_lshl_add_u32 v{vFA}, v{vU+1}, 4, v{vFA}
                s_and_b32 s4, s2, 127
                s_mul_i32 s4, s4, {CG*16}
                s_lshr_b32 s5, s2, 7
                s_mul_i32 s5, s5, {2*NCH*128*16}
                s_add_u32 s4, s4, s5
                s_add_u32 s4, s4, {FB}
                v_add_u32 v{vFA}, s4, v{vFA}
                """)
            if t == 4:
                a(f"""
                v_subrev_u32 v{vX+7}, {HL}, v{vRS}
                v_and_b32 v{vU+1}, 3, v0
                v_lshlrev_b32 v{vU+1}, 3, v{vU+1}
                v_lshl_add_u32 v{vX+7}, v{vX+7}, 4, v{vU+1}
                v_add_u32 v{vX+7}, {OLX}, v{vX+7}
                v_bfe_u32 v{vU+1}, v0, 2, 2
                s_mov_b32 s4, 0x02020202
                v_mul_lo_u32 v{vU+1}, v{vU+1}, s4
                v_add_u32 v{vU+1}, s32, v{vU+1}
                v_or_b32 v{vU+2}, v{vM[0]}, v{vM[2]}
                v_or_b32 v{vU+3}, v{vM[1]}, v{vM[3]}
                v_mov_b32 v{vU+4}, 0x0c0c0c0c
                v_bfi_b32 v{vBq+2}, v{vU+2}, v{vU+1}, v{vU+4}
                v_bfi_b32 v{vBq+3}, v{vU+3}, v{vU+1}, v{vU+4}
                s_lshr_b32 s5, s{sJ}, 1
                s_lshl_b32 s5, s5, 9
                s_add_u32 s5, s5, {OLX}
                v_lshl_add_u32 v{vX+3}, v{vL}, 3, s5
                """)
            if hcheck is not None and t == min(15, hcheck):
                hcheck = None
                if not o["hlate"]: hfin()
        assert hcheck is None
        for i in range(4): a(f"ds_write_b32 v{vK}, v{vAcc+i} offset:{OW+32*i}")
        a(f"""
        s_waitcnt lgkmcnt(0)
        s_barrier
        """)
        self.stamp("pvdone")
        def hread():
            a(f"ds_read2_b32 {r2(vX)}, v{vRS} offset0:0 offset1:1"); a(f"ds_read_b32 v{vX+2}, v{vRS} offset:8")
        def hmask():
            if o["skip"]:
                a(f"v_bfrev_b32 v{vU+26}, -2"); a("s_mov_b32 s4, 0xffff"); a("s_waitcnt lgkmcnt(0)")
                for k in range(6):
                    if k & 1: a(f"v_cmp_lt_u32 s[{64+2*k}:{65+2*k}], s4, v{vX+(k>>1)}")
                    else: a(f"v_cmp_ne_u16 s[{64+2*k}:{65+2*k}], 0, v{vX+(k>>1)}")
                for k in range(6):
                    a(f"v_cndmask_b32 v{vU+20+k}, v{vU+26}, v{vPD if k < 2 else vPD2}, s[{64+2*k}:{65+2*k}]")
                self.hready = True
        if o["hlate"]:
            hfin(); assert o["obar"]
        else:
            hread()
        Lo1 = self.lab("opub"); Lm = self.lab("mlpub")
        a(f"""
        s_cmp_eq_u32 s{sJ}, 2
        s_cbranch_scc1 {Lm}
        s_cmp_lg_u32 s{sJ}, 0
        s_cbranch_scc1 {Lo1}
        """)
        for jj in range(4): a(f"ds_read_b128 {r4(vT+4*jj)}, v{vV} offset:{OW+1024*jj}")
        a("s_waitcnt lgkmcnt(2)")
        pkadd(vT, vT, vT + 4)
        a("s_waitcnt lgkmcnt(0)")
        pkadd(vT + 8, vT + 8, vT + 12); pkadd(vT, vT, vT + 8)
        a(f"""
        s_branch {Lo1}t
        {Lm}:
        v_bfe_u32 v{vU+1}, v0, 3, 1
        v_lshlrev_b32 v{vU+1}, 6, v{vU+1}
        """)
        for i in range(4): a(f"ds_read_b128 {r4(vU+4+4*i)}, v{vU+1} offset:{LS+16*i}")
        a(f"v_lshrrev_b32 v{vU+1}, 2, v{vU+1}")
        a(f"v_add_u32 v{vX+4}, s6, v{vU+1}")
        a(f"v_add_u32 v{vX+4}, 1024, v{vX+4}")
        a("s_waitcnt lgkmcnt(0)")
        pkadd(vU + 4, vU + 4, vU + 8); pkadd(vU + 12, vU + 12, vU + 16); pkadd(vU + 4, vU + 4, vU + 12)
        a(f"""
        v_pk_add_f32 {r2(vU+4)}, {r2(vU+4)}, {r2(vU+6)}
        v_add_f32 v{vT+1}, v{vU+4}, v{vU+5}
        v_mov_b32 v{vT}, v{vMx}
        v_mov_b32 v{vT+2}, v{vMx}
        v_mov_b32 v{vT+3}, v{vT+1}
        s_mov_b64 exec, 0x101
        {Lo1}t:
        """)
        tagins(vT, True)
        a(f"""
        s_branch {Lo1}s
        {Lo1}:
        s_mov_b64 exec, 0
        {Lo1}s:
        """)
        dual("OP", f"buffer_store_dwordx4 {r4(vT)}, v{vX+4}, s[{SW}:{SW+3}], 0 offen", True)
        if not o["hlate"]: hmask()
        if o["obar"]: a("s_waitcnt lgkmcnt(0)"); a("s_barrier")
        (None if o["st4"] else self.stamp("opub"))
        def omk(st): return [f"buffer_load_dwordx4 {r4(st[0])}, v{vX+6}, s[{SW}:{SW+3}], 0 offen sc1",
                             f"buffer_load_dwordx4 {r4(st[0]+4)}, v{vX+5}, s[{SW}:{SW+3}], 0 offen offset:1024 sc1"]
        osets = [[R1 + 8 * d] for d in range(o["odepth"])]
        polled = False
        if o["oearly"]:
            polled = True
            a(f"s_bitcmp1_b32 s{sJ}, 0"); a("s_cselect_b64 exec, -1, 0")
            for i, ld in enumerate(omk(osets[0])): self.issue(f"OPL{i}", ld)
            a("s_mov_b64 exec, -1")
        assert o["Wt"] <= 6 and o["dlate"]
        if o["hlate"]: hread()
        fill("V15", 6)
        if o["hlate"]: hmask()
        fill("V15", 12)
        def flat_A(k, xsrc):
            p = k & 1; A = vU + 2 * p
            a(f"v_perm_b32 v{A}, v{xsrc+(k>>1)}, v{xsrc+(k>>1)}, v{vSel[2*p]}")
            a(f"v_perm_b32 v{A+1}, v{xsrc+(k>>1)}, v{xsrc+(k>>1)}, v{vSel[2*p+1]}")
            return A
        def flat_mfma(A, data, acc, first):
            a(f"v_mfma_f32_4x4x4_16b_bf16 {r4(acc)}, {r2(A)}, {r2(data)}, {'0' if first else r4(acc)}")
            a(f"v_mfma_f32_4x4x4_16b_bf16 {r4(acc+4)}, {r2(A)}, {r2(data+2)}, {'0' if first else r4(acc+4)}")
        vDA = vU + 8
        if o["dlate"]:
            a("s_waitcnt lgkmcnt(0)")
            assert self.ip == len(big) and polled
            for k in range(6):
                p = k & 1
                a(f"v_perm_b32 v{vDA+2*k}, v{vX+(k>>1)}, v{vX+(k>>1)}, v{vSel[2*p]}")
                a(f"v_perm_b32 v{vDA+2*k+1}, v{vX+(k>>1)}, v{vX+(k>>1)}, v{vSel[2*p+1]}")
        else:
            a("s_waitcnt lgkmcnt(0)")
            for k in range(6):
                A = flat_A(k, vX)
                self.wait(f"D{k}")
                flat_mfma(A, dst[f"D{k}"], vAD, k == 0)
                fill(f"D{k}", o["post"])
                if self.ip == len(big) and k >= o["opa"] and not polled:
                    polled = True
                    a(f"s_bitcmp1_b32 s{sJ}, 0"); a("s_cselect_b64 exec, -1, 0")
                    for i, ld in enumerate(omk(osets[0])): self.issue(f"OPL{i}", ld)
                    a("s_mov_b64 exec, -1")
            assert polled
            (None if o["st3"] else self.stamp("Ddone"))
            for i in range(0, 8): a(f"v_mul_f32 v{vAD+i}, v{vOMG}, v{vAD+i}")
        Lo2 = self.lab("ocons")
        a(f"""
        s_bitcmp0_b32 s{sJ}, 0
        s_cbranch_scc1 {Lo2}
        """)
        P = vS
        def ofin(st):
            a(f"v_and_b32 v{vBq}, v{st[0]+4}, v{vTM}")
            a(f"v_mov_b32 v{vBq+1}, v{st[0]+5}")
            a(f"v_pk_mul_f32 {r2(P)}, {r2(st[0])}, {r2(vG-1)} op_sel:[0,1] op_sel_hi:[1,1]")
            a(f"v_pk_mul_f32 {r2(P+2)}, {r2(st[0]+2)}, {r2(vG-1)} op_sel:[0,1] op_sel_hi:[1,1]")
        if o["oearly"]:
            assert o["odepth"] == 1
            Lx = self.lab("oex"); Lre = self.lab("oere"); OD = o["od"]
            self.wait("OPL1")
            tagchk(osets[0], vU + 4, 4, True)
            a(f"s_cbranch_vccz {Lx}d")
            if o["osel"] and OD > 1: a("s_mov_b64 exec, vcc")
            for _ in range(OD - 1):
                for ld in omk(osets[0]): a(ld)
            a(f"s_mov_b32 s7, {o['spin']}")
            a(f"{Lre}:")
            if o["osel"]: a("s_mov_b64 exec, vcc")
            for ld in omk(osets[0]): a(ld)
            if o["osel"]: a("s_mov_b64 exec, -1")
            a(f"s_waitcnt vmcnt({2*(OD-1)})")
            tagchk(osets[0], vU + 4, 4, True)
            a(f"s_cbranch_vccz {Lx}")
            a("s_sub_u32 s7, s7, 1"); a("s_cmp_lg_u32 s7, 0"); a(f"s_cbranch_scc1 {Lre}")
            a(f"s_branch {Lx}")
            a(f"{Lx}d:")
            if OD > 1:
                a("s_mov_b64 exec, 0")
                for _ in range(OD - 1):
                    for ld in omk(osets[0]): a(ld)
                a("s_mov_b64 exec, -1")
            a(f"{Lx}:")
            ofin(osets[0])
        else:
            assert False
            pipe_poll("o", omk, osets, vU + 4, 1, ofin, o["osleep"], extra=4)
        (None if o["st3"] else self.stamp("opollok"))
        a(f"v_max_f32_dpp v{vU+4}, v{vBq}, v{vBq} row_ror:1 {DPP}")
        for r in (2, 4, 8): a(f"v_max_f32_dpp v{vU+4}, v{vU+4}, v{vU+4} row_ror:{r} {DPP}")
        a(f"""
        v_sub_f32 v{vBq}, v{vBq}, v{vU+4}
        v_mul_f32 v{vBq}, s{sC}, v{vBq}
        v_exp_f32 v{vBq}, v{vBq}
        v_mul_f32 v{P+4}, v{vBq}, v{vBq+1}
        v_pk_mul_f32 {r2(P)}, {r2(P)}, {r2(vBq)} op_sel_hi:[1,0]
        v_pk_mul_f32 {r2(P+2)}, {r2(P+2)}, {r2(vBq)} op_sel_hi:[1,0]
        """)
        for r in (1, 2, 4, 8):
            for i in (4, 0, 1, 2, 3): a(f"v_add_f32_dpp v{P+i}, v{P+i}, v{P+i} row_ror:{r} {DPP}")
            if r == 8: self.l.insert(len(self.l) - 2, f"    v_rcp_f32 v{vBq}, v{P+4}")
        a(f"""
        v_pk_mul_f32 {r2(P)}, {r2(P)}, {r2(vBq)} op_sel_hi:[1,0]
        v_pk_mul_f32 {r2(P+2)}, {r2(P+2)}, {r2(vBq)} op_sel_hi:[1,0]
        v_cvt_pk_bf16_f32 v{P}, v{P}, v{P+1}
        v_cvt_pk_bf16_f32 v{P+1}, v{P+2}, v{P+3}
        v_perm_b32 v{P+2}, v{P+1}, v{P}, v{vBq+2}
        v_perm_b32 v{P+3}, v{P+1}, v{P}, v{vBq+3}
        ds_write_b64 v{vX+3}, {r2(P+2)}
        s_branch {Lo2}x
        {Lo2}:
        """)
        if o["od"] > 1:
            a("s_mov_b64 exec, 0")
            for i in range(o["od"] - 1):
                for j, ld in enumerate(omk(osets[0])): self.issue(f"ODM{i}{j}", ld)
            a("s_mov_b64 exec, -1")
        a(f"""
        {Lo2}x:
        v_cmp_gt_u32 vcc, s14, v0
        s_waitcnt lgkmcnt(0)
        s_barrier
        """)
        for k in range(3): a(f"ds_read2_b64 {r4(vT+4*k)}, v{vX+7} offset0:{8*k} offset1:{8*k+4}")
        (None if o["st3"] else self.stamp("B7"))
        if o["dlate"] and o["ofirst"]:
            for k in range(6):
                if k % 2 == 0: a(f"s_waitcnt lgkmcnt({0 if o['stamps'] else 2 - k // 2})")
                self.wait(f"O{k}")
                flat_mfma(vT + 2 * k, dst[f"O{k}"], vAO, k == 0)
            for k in range(6):
                self.wait(f"D{k}")
                flat_mfma(vDA + 2 * k, dst[f"D{k}"], vAD, k == 0)
            (None if o["st3"] else self.stamp("Ddone"))
            for i in range(0, 8, 2): a(f"v_pk_fma_f32 {r2(vAD+i)}, {r2(vAD+i)}, {r2(vOMG)}, {r2(vAO+i)} op_sel_hi:[1,0,1]")
        elif o["dlate"]:
            for k in range(6):
                self.wait(f"D{k}")
                flat_mfma(vDA + 2 * k, dst[f"D{k}"], vAD, k == 0)
            (None if o["st3"] else self.stamp("Ddone"))
            for k in range(6):
                if k % 2 == 0: a(f"s_waitcnt lgkmcnt({0 if o['stamps'] else 2 - k // 2})")
                self.wait(f"O{k}")
                flat_mfma(vT + 2 * k, dst[f"O{k}"], vAO, k == 0)
                if k == 3:
                    for i in range(0, 8, 2): a(f"v_pk_mul_f32 {r2(vAD+i)}, {r2(vAD+i)}, {r2(vOMG)} op_sel_hi:[1,0]")
            for i in range(0, 8, 2): a(f"v_pk_add_f32 {r2(vAD+i)}, {r2(vAD+i)}, {r2(vAO+i)}")
        else:
            for k in range(6):
                if k % 2 == 0: a(f"s_waitcnt lgkmcnt({0 if o['stamps'] else 2 - k // 2})")
                self.wait(f"O{k}")
                flat_mfma(vT + 2 * k, dst[f"O{k}"], vAD, False)
        Lf = self.lab("fpub")
        a(f"""
        ds_write_b128 v{vCH}, {r4(vAD)} offset:{LF}
        ds_write_b128 v{vCH}, {r4(vAD+4)} offset:{LF+16}
        s_waitcnt lgkmcnt(0)
        s_barrier
        s_and_saveexec_b64 s[4:5], vcc
        s_cbranch_execz {Lf}
        """)
        tg = [vT, vT + 4, vT + 8, vT + 12, vT + 16, vU + 4]
        for p in range(6): a(f"ds_read_b128 {r4(tg[p])}, v{vV} offset:{LF+NCH*32*p}")
        a("s_waitcnt lgkmcnt(4)"); pkadd(tg[0], tg[0], tg[1])
        a("s_waitcnt lgkmcnt(2)"); pkadd(tg[2], tg[2], tg[3])
        a("s_waitcnt lgkmcnt(0)"); pkadd(tg[4], tg[4], tg[5]); pkadd(tg[0], tg[0], tg[2]); pkadd(tg[0], tg[0], tg[4])
        tagins(vT, True)
        a(f"""
        buffer_store_dwordx4 {r4(vT)}, v{vFA}, s[{SW}:{SW+3}], 0 offen sc1
        {Lf}:
        s_mov_b64 exec, s[4:5]
        """)
        self.stamp("fpub")
        NL = CG // 2
        if o["rorig"]: a("s_mov_b32 s2, s101")
        a(f"""
        s_cmpk_ge_u32 s2, {R}
        s_cbranch_scc1 L_fin
        s_mul_i32 s4, s2, {128*CG*16}
        s_add_u32 s4, s4, {FB}
        """)
        if CG == 4:
            a(f"""
            v_and_b32 v{vQa}, 15, v0
            v_lshlrev_b32 v{vQa}, 6, v{vQa}
            v_bfe_u32 v{vQb}, v0, 4, 2
            v_lshl_add_u32 v{vQa}, v{vQb}, 4, v{vQa}
            v_lshl_add_u32 v{vQa}, v{vJ}, 10, v{vQa}
            v_add_u32 v{vQa}, s4, v{vQa}
            s_movk_i32 s33, 0x1000
            """)
            offs = [("0", 0), ("s33", 0)]
        elif CG == 2:
            a(f"""
            v_and_b32 v{vQa}, 15, v0
            v_lshlrev_b32 v{vQa}, 5, v{vQa}
            v_bfe_u32 v{vQb}, v0, 4, 1
            v_lshl_add_u32 v{vQa}, v{vQb}, 4, v{vQa}
            v_lshrrev_b32 v{vQb}, 5, v0
            v_lshl_add_u32 v{vQa}, v{vQb}, 9, v{vQa}
            v_add_u32 v{vQa}, s4, v{vQa}
            """)
            offs = [("0", 0)]
        else:
            a(f"""
            v_and_b32 v{vQa}, 15, v0
            v_lshlrev_b32 v{vQa}, 7, v{vQa}
            v_bfe_u32 v{vQb}, v0, 4, 2
            v_lshl_add_u32 v{vQa}, v{vQb}, 4, v{vQa}
            v_lshl_add_u32 v{vQa}, v{vJ}, 11, v{vQa}
            v_add_u32 v{vQa}, s4, v{vQa}
            s_movk_i32 s33, 0x2000
            """)
            offs = [("0", 0), ("s33", 0), ("0", 64), ("s33", 64)]
        def fmk(st): return [f"buffer_load_dwordx4 {r4(st[k])}, v{vQa}, s[{SW}:{SW+3}], {offs[k][0]} offen offset:{offs[k][1]} sc1" for k in range(NL)]
        fsets = [[R2 + 16 * d + 4 * k for k in range(NL)] for d in range(o["fdepth"])]
        F = vS
        NF = 8 if CG == 8 else 4
        def ffin(st):
            if CG == 4: pkadd(F, st[0], st[1])
            elif CG == 8: pkadd(F, st[0], st[1]); pkadd(F + 4, st[2], st[3])
            else:
                for i in range(4): a(f"v_add_f32_dpp v{F+i}, v{st[0]+i}, v{st[0]+i} row_ror:1 {DPP}")
        if o["fx"]:
            lds_ = fmk(fsets[0])
            for ld in lds_: a(ld)
            a(f"""
            v_lshrrev_b32 v{vU}, 4, v0
            v_lshlrev_b32 v{vU}, 4, v{vU}
            s_mov_b32 s{SX}, s56
            s_mov_b32 s{SX+1}, s57
            s_mul_i32 s4, s2, {CG*8}
            v_mov_b32 v{vU+2}, s{sT2}
            v_mov_b32 v{vU+3}, 0
            """)
            if CG == 8:
                a(f"""
                v_and_b32 v{vU+1}, 3, v0
                v_lshrrev_b32 v{vU+10}, 4, v0
                v_lshl_add_u32 v{vU+1}, v{vU+10}, 2, v{vU+1}
                v_lshl_add_u32 v{vU+1}, v{vU+1}, 3, s4
                """)
            else:
                a(f"v_lshl_add_u32 v{vU+1}, v0, 3, s4")
            pass
            sel_poll("f", [([lds_[k]], fsets[0][k], 4) for k in range(NL)], vU + 4, o["fx"])
            ffin(fsets[0])
        elif True:
            assert False, "only fx path maintained"
        elif o["fsel"]:
            assert CG == 4
            for k in range(2): a(fmk(fsets[0])[k])
            D = o["fdepth"]
            for k in range(2):
                mk1 = lambda st, k=k: [f"buffer_load_dwordx4 {r4(st[0])}, v{vQa}, s[{SW}:{SW+3}], {offs[k][0]} offen offset:{offs[k][1]} sc1"]
                Lq = self.lab("fq")
                a(f"s_waitcnt vmcnt({1 - k})" if k == 0 else "s_nop 0")
                sets1 = [[R2 + 32 + 16 * k + 4 * d] for d in range(D)]
                if k == 1: a("s_waitcnt vmcnt(%d)" % 0) if False else None
                tagchk([fsets[0][k]], vU + 4)
                a(f"s_cbranch_vccz {Lq}")
                def fin1(st, k=k):
                    a(f"v_pk_mul_f32 {r2(fsets[0][k])}, {r2(st[0])}, 1.0 op_sel_hi:[1,0]")
                    a(f"v_pk_mul_f32 {r2(fsets[0][k]+2)}, {r2(st[0]+2)}, 1.0 op_sel_hi:[1,0]")
                pipe_poll(f"f{k}", mk1, sets1, vU + 4, 0, fin1, o["fsleep"])
                if k == 0:
                    a(f"s_branch {Lq}b"); a(f"{Lq}:"); a("s_waitcnt vmcnt(0)"); a(f"{Lq}b:")
                else: a(f"{Lq}:")
            ffin(fsets[0])
        else:
            pipe_poll("f", fmk, fsets, vU + 4, 0, ffin, o["fsleep"])
        (None if o["st3"] else self.stamp("fpollok"))
        for r in (1, 2, 4, 8):
            if CG == 2 and r == 1: continue
            for i in range(NF): a(f"v_add_f32_dpp v{F+i}, v{F+i}, v{F+i} row_ror:{r} {DPP}")
        a(f"ds_write_b128 v{vU}, {r4(F)} offset:{RD}")
        if CG == 8: a(f"ds_write_b128 v{vU}, {r4(F+4)} offset:{RD+256}")
        a(f"""
        s_waitcnt lgkmcnt(0)
        s_barrier
        s_cmp_lg_u32 s{sJ}, 0
        s_cbranch_scc1 L_fin
        s_mov_b64 exec, {'0xffffffff' if CG == 8 else '0xffff'}
        ds_read_b128 {r4(vT)}, v{vV} offset:{RD}
        s_waitcnt lgkmcnt(0)
        """)
        for r in (1, 2, 4, 8):
            if r >= min(CG, 4):
                for i in range(4): a(f"v_add_f32_dpp v{vT+i}, v{vT+i}, v{vT+i} row_ror:{r} {DPP}")
        a(f"""
        v_cvt_pk_bf16_f32 v{vT}, v{vT}, v{vT+1}
        v_cvt_pk_bf16_f32 v{vT+1}, v{vT+2}, v{vT+3}
        s_mov_b64 exec, {0xf000f if CG == 8 else (1 << CG) - 1:#x}
        buffer_store_dwordx2 {r2(vT)}, v{vU+1}, s[{SX}:{SX+3}], 0 offen {o['outf']}
        s_cmp_lg_u32 s2, 0
        s_cbranch_scc1 L_fin
        s_mov_b64 exec, 1
        buffer_store_dword v{vU+2}, v{vU+3}, s[{SW}:{SW+3}], 0 offen {o['epf']}
        L_fin:
        """)
        if o["skewm"]:
            a(f"""
            s_cmp_lg_u32 s2, 0
            s_cbranch_scc1 L_end
            s_cmp_lg_u32 s{sJ}, 0
            s_cbranch_scc1 L_end
            s_add_u32 s4, s60, 0xF0000
            s_addc_u32 s5, s61, 0
            s_load_dwordx8 s[64:71], s[4:5], 0 glc
            s_waitcnt lgkmcnt(0)
            """)
            for i in range(8): a(f"s_sub_u32 s{64+i}, s{64+i}, s16"); a(f"s_add_u32 s{64+i}, s{64+i}, 500")
            m = o["skewm"]
            if m == "late":
                a("s_add_u32 s6, s68, s69"); a("s_add_u32 s6, s6, s70"); a("s_add_u32 s6, s6, s71")
                a("s_sub_u32 s6, s6, s65"); a("s_sub_u32 s6, s6, s66"); a("s_sub_u32 s6, s6, s67"); a("s_sub_u32 s6, s6, s66")
                a("s_mul_i32 s6, s6, 5"); a("s_add_u32 s6, s6, 3000")
            else:
                a("s_min_u32 s72, s64, s65")
                for i in range(2, 8): a(f"s_min_u32 s72, s72, s{64+i}")
                if m == "max":
                    a("s_max_u32 s73, s64, s65")
                    for i in range(2, 8): a(f"s_max_u32 s73, s73, s{64+i}")
                else:
                    a(f"s_mov_b32 s73, s{64+int(m)}")
                a("s_sub_u32 s6, s73, s72"); a("s_mul_i32 s6, s6, 20"); a("s_add_u32 s6, s6, 3000")
            a(f"""
            s_min_u32 s6, s6, 20000
            L_hold:
            s_memrealtime s[4:5]
            s_waitcnt lgkmcnt(0)
            s_sub_u32 s4, s4, s16
            s_cmp_lt_u32 s4, s6
            s_cbranch_scc1 L_hold
            """)
        elif o["amp"] >= 0:
            self.stamp("end"); k = o["amp"]
            if o["ampx"] >= 0:
                a("s_bfe_u32 s4, s101, 0x10002"); a(f"s_cmp_lg_u32 s4, {o['ampx']}"); a("s_cbranch_scc1 L_end")
            a(f"""
            s_waitcnt lgkmcnt(0)
            s_sub_u32 s6, s{self.sreg(k)}, s16
            s_min_u32 s6, s6, 3000
            s_mul_i32 s6, s6, 10
            s_add_u32 s6, s6, 3000
            L_hold:
            s_memrealtime s[4:5]
            s_waitcnt lgkmcnt(0)
            s_sub_u32 s4, s4, s16
            s_cmp_lt_u32 s4, s6
            s_cbranch_scc1 L_hold
            """)
        elif o["stamps"]:
            self.stamp("end")
            a(f"""
            s_waitcnt lgkmcnt(0)
            s_lshl_b32 s4, s101, 2
            s_add_u32 s4, s4, s{sJ}
            s_lshl_b32 s4, s4, 7
            s_add_u32 s4, s4, {STAMP_OFF:#x}
            s_add_u32 s6, s60, s4
            s_addc_u32 s7, s61, 0
            s_sub_u32 s6, s6, {o['wsoff']:#x}
            s_subb_u32 s7, s7, 0
            s_mov_b64 exec, 1
            v_mov_b32 v4, 0
            """)
            for j in range(self.nst):
                a(f"""
                v_mov_b32 v2, s{self.sreg(j)}
                v_mov_b32 v3, s{self.sreg(j)+1}
                global_store_dwordx2 v4, v[2:3], s[6:7] offset:{8*j}
                s_nop 1
                """)
        if o["hold"]:
            a(f"""
            s_waitcnt lgkmcnt(0)
            L_hold:
            s_memrealtime s[4:5]
            s_waitcnt lgkmcnt(0)
            s_sub_u32 s4, s4, s16
            s_cmp_lt_u32 s4, {o["hold"]}
            s_cbranch_scc1 L_hold
            """)
        a("L_end:")
        a("s_endpgm")
        cl = []
        for x in self.l:
            if cl and cl[-1].strip() == "s_mov_b64 exec, -1" and x.strip().startswith("s_mov_b64 exec,"): cl.pop()
            if len(cl) > 1 and cl[-2].strip() == "s_mov_b64 exec, -1" and cl[-1].strip().startswith("s_waitcnt vmcnt") and x.strip().startswith("s_mov_b64 exec,"):
                del cl[-2]
            cl.append(x)
        c2 = []
        for x in cl:
            c2.append(x)
        body = "\n".join(fix(c2)) + "\n"
        head = open("cdna_kernels/" + KN + ".s.ref").read().split("; Override launch")[0]
        if self.names: head += "; stamps: " + " ".join(self.names) + "\n"
        DOC = """; One persistent launch, 256 workgroups (one per CU) x 4 waves; every weight / KV byte is streamed once (nt, ~10 loads per wave in flight).
;  diagonal-expanded vector operand, QK uses MFMA on a quad-contiguous K layout; softmax subtracts the CU-wide true max, splits are
;  merged with exp(m_s - M) / L weights (flash-decode); out = g*a + (1-g)*b is reduced over 128 partials per column by 36 workgroups.
;  Default publication is write-through (sc1); a plain store is used only after the q hand-off has shown (XCC id bits in the q records)
"""
        return head + DOC + f"""; @launch grid=(256,1,1) block=(256,1,1) lds={o['lds']}
.amdgcn_target "amdgcn-amd-amdhsa--gfx950"
.text
.globl {KN}_kernel
.p2align 8
.type {KN}_kernel,@function
{KN}_kernel:
""" + body + f""".section .rodata,"a"
.p2align 6
.amdhsa_kernel {KN}_kernel
  .amdhsa_next_free_vgpr 256
  .amdhsa_next_free_sgpr 102
  .amdhsa_accum_offset 256
  .amdhsa_group_segment_fixed_size 0
  .amdhsa_kernarg_size 104
  .amdhsa_user_sgpr_count 2
  .amdhsa_user_sgpr_kernarg_segment_ptr 1
  .amdhsa_system_sgpr_workgroup_id_x 1
.end_amdhsa_kernel
"""

if __name__ == "__main__":
    out = sys.argv[1]; opt = {}
    for kv in sys.argv[2:]:
        k, v = kv.split("="); opt[k] = eval(v)
    open(out, "w").write(Gen(**opt).build())
```
